```python
import torch

def _softmax(x, axis=-1):
    return torch.softmax(x, dim=axis)
def _gelu(x):
    return torch.nn.functional.gelu(x, approximate="tanh")
def _silu(x):
    return torch.nn.functional.silu(x)
def _sigmoid(x):
    return torch.sigmoid(x)
def _layernorm(x, axis=-1, eps=1e-5):
    m = x.mean(dim=axis, keepdim=True)
    v = x.var(dim=axis, keepdim=True, unbiased=False)
    return (x - m) / torch.sqrt(v + eps)
def _scatter_add(tgt, idx, src, axis=0):
    return tgt.clone().index_add_(axis, idx, src)
def _segment_sum(src, seg, n):
    out = torch.zeros((n,) + src.shape[1:], dtype=src.dtype)
    return out.index_add_(0, seg, src)
def _pad(x, pw):
    flat = tuple(v for pair in reversed(pw) for v in pair)
    return torch.nn.functional.pad(x, flat)

kernel_name = 'recurrent_scan__ssm_conv_s4__dense_activation_mish__prompt'

def setup_inputs():

    _w = (lambda a: (lambda t: t.to(torch.bfloat16) if t.is_floating_point() else t)(torch.as_tensor(a)))
    def _A_setup():
        B, L, D, N = 1, 2048, 448, 256
        A_re = -(lambda _x: torch.exp(torch.as_tensor(_x)))((lambda *s: torch.randn(*s, dtype=torch.bfloat16) * 3.2)(D, N))
        A_im = torch.pi * (lambda *s: torch.randn(*s, dtype=torch.bfloat16) * 0.2)(D, N)
        B_re = (lambda *s: torch.randn(*s, dtype=torch.bfloat16) * 0.2)(D, N)
        B_im = (lambda *s: torch.randn(*s, dtype=torch.bfloat16) * 0.2)(D, N)
        C_re = (lambda *s: torch.randn(*s, dtype=torch.bfloat16) * 0.2)(D, N)
        C_im = (lambda *s: torch.randn(*s, dtype=torch.bfloat16) * 0.2)(D, N)
        log_dt = (lambda *s: torch.randn(*s, dtype=torch.bfloat16) * 0.2)(D) * 0.5 - 4.0
        Dskip = (lambda *s: torch.randn(*s, dtype=torch.bfloat16) * 0.2)(D)
        return {
            "u": _w((lambda *s: torch.randn(*s, dtype=torch.bfloat16) * 0.05)(B, L, D)),
            "A_re": _w(A_re),
            "A_im": _w(A_im),
            "B_re": _w(B_re),
            "B_im": _w(B_im),
            "C_re": _w(C_re),
            "C_im": _w(C_im),
            "log_dt": _w(log_dt),
            "Dskip": _w(Dskip),
        }
    _A_in = _A_setup()

    def _B_setup():
        B, S, D, F = 1, 2048, 448, 1792
        return {
            "x": _w((lambda *s: torch.randn(*s, dtype=torch.bfloat16) * 0.05)(B, S, D)),
            "w1": _w((lambda *s: torch.randn(*s, dtype=torch.bfloat16) * 0.8)(D, F) * (D ** -0.5)),
            "b1": _w((lambda *s: torch.randn(*s, dtype=torch.bfloat16) * 0.1)(F)),
            "w2": _w((lambda *s: torch.randn(*s, dtype=torch.bfloat16) * 0.1)(F, D) * (F ** -0.5)),
        }
    _B_in = _B_setup()

    return {
        "A_u": _A_in["u"],
        "A_A_re": _A_in["A_re"],
        "A_A_im": _A_in["A_im"],
        "A_B_re": _A_in["B_re"],
        "A_B_im": _A_in["B_im"],
        "A_C_re": _A_in["C_re"],
        "A_C_im": _A_in["C_im"],
        "A_log_dt": _A_in["log_dt"],
        "A_Dskip": _A_in["Dskip"],
        "B_x": _B_in["x"],
        "B_w1": _B_in["w1"],
        "B_b1": _B_in["b1"],
        "B_w2": _B_in["w2"],
    }

def reference(A_u, A_A_re, A_A_im, A_B_re, A_B_im, A_C_re, A_C_im, A_log_dt, A_Dskip, B_x, B_w1, B_b1, B_w2):
    def _A_ref(u, A_re, A_im, B_re, B_im, C_re, C_im, log_dt, Dskip):
        Bsz, L, D = u.shape
        dt = torch.exp(log_dt)[:, None]
        A = A_re + 1j * A_im
        Bc = B_re + 1j * B_im
        Cc = C_re + 1j * C_im
        logdA = dt * A
        dB = dt * Bc
        l = (lambda x, dt: x.to(dt))(torch.arange(L), A_re.dtype)
        P = torch.exp(logdA[:, :, None] * l[None, None, :])
        K = torch.einsum("dn,dnl,dn->dl", Cc, P, dB).real
        L2 = 2 * L
        Kp = _pad(K, ((0, 0), (0, L)))
        up = (lambda x, *d: x.permute(*d))(u, 0, 2, 1)
        up = _pad(up, ((0, 0), (0, 0), (0, L)))
        Kf = (lambda x, axes=(-2,-1): torch.fft.rfft2(x.float(), dim=axes))(Kp[:, None, :], axes=(-2, -1))
        Uf = (lambda x, axes=(-2,-1): torch.fft.rfft2(x.float(), dim=axes))(up[:, :, None, :], axes=(-2, -1))
        Yf = Uf * Kf[None, :, :, :]
        y = (lambda x, s, axes=(-2,-1): torch.fft.irfft2(x, s=s, dim=axes).to(torch.bfloat16))(Yf, (1, L2), axes=(-2, -1))[:, :, 0, :L]
        y = (lambda x, *d: x.permute(*d))(y, 0, 2, 1) + u * Dskip[None, None, :]
        return y

    def _B_ref(x, w1, b1, w2):
        h = torch.einsum("bsd,df->bsf", x, w1) + b1
        sp = torch.log1p(torch.exp(-torch.abs(h))) + torch.where(h > 0, h, torch.zeros_like(h))
        act = h * torch.tanh(sp)
        return torch.einsum("bsf,fd->bsd", act, w2)

    x = A_u
    xn = _layernorm(x, axis=-1)
    s = _A_ref(xn, A_A_re, A_A_im, A_B_re, A_B_im, A_C_re, A_C_im, A_log_dt, A_Dskip)
    g = _silu(_B_ref(xn, B_w1, B_b1, B_w2))
    return x + s * g
```

```python
KNAME = "recurrent_scan__ssm_conv_s4__dense_activation_mish__prompt_kernel"
class Asm:
    def __init__(self):
        self.lines = []
    def __call__(self, s=""):
        for ln in s.split("\n"):
            self.lines.append(ln if ln.strip().endswith(":") or not ln.strip() else "    " + ln.strip())
    def text(self):
        return "\n".join(self.lines) + "\n"

def kernel_wrap(name, body, vgpr, agpr=0, sgpr=102):
    acc = (vgpr + 3) // 4 * 4
    nfv = acc + agpr if agpr else vgpr
    txt = f""".text
.globl {name}
.p2align 8
.type {name},@function
{name}:
{body}
.section .rodata,"a"
.p2align 6
.amdhsa_kernel {name}
  .amdhsa_next_free_vgpr {nfv}
  .amdhsa_next_free_sgpr {sgpr}
  .amdhsa_accum_offset {acc}
  .amdhsa_group_segment_fixed_size 0
  .amdhsa_kernarg_size 128
  .amdhsa_user_sgpr_count 2
  .amdhsa_user_sgpr_kernarg_segment_ptr 1
  .amdhsa_system_sgpr_workgroup_id_x 1
  .amdhsa_float_denorm_mode_32 3
.end_amdhsa_kernel
"""
    return txt

def file_wrap(launches, kernels, header=""):
    out = header
    if len(launches) == 1 and launches[0][0] == KNAME:
        k, g, b, lds = launches[0]
        out += f"; @launch grid=({g},1,1) block=({b},1,1) lds={lds}\n"
    else:
        for k, g, b, lds in launches:
            out += f"; @launch kernel={k} grid=({g},1,1) block=({b},1,1) lds={lds}\n"
    out += '.amdgcn_target "amdgcn-amd-amdhsa--gfx950"\n'
    out += "".join(kernels)
    return out
```

```python
import re
TRANS = ("v_exp_f32","v_log_f32","v_rcp_f32","v_rsq_f32","v_sqrt_f32","v_sin_f32","v_cos_f32")
MOD_RE = re.compile(r"\s+(op_sel|op_sel_hi|neg_lo|neg_hi|quad_perm):\[[^\]]*\]|\s+(offset|offset0|offset1|row_mask|bank_mask|row_shr|row_shl|row_ror|bitop3|bound_ctrl|dst_sel|dst_unused|src0_sel|src1_sel):\S+|\s+(offen|idxen|lds|sc0|sc1|nt|glc|row_half_mirror|row_mirror|clamp)\b")
def regs(op):
    op = op.strip()
    if op.startswith("-"): op = op[1:]
    if op.startswith("abs("): op = op[4:-1]
    if op.startswith("|"): op = op.strip("|")
    m = re.fullmatch(r"([vsa])(\d+)", op)
    if m: return {(m.group(1), int(m.group(2)))}
    m = re.fullmatch(r"([vsa])\[(\d+):(\d+)\]", op)
    if m: return {(m.group(1), i) for i in range(int(m.group(2)), int(m.group(3))+1)}
    if op in ("vcc","exec","m0"): return {("x", op)}
    if op in ("vcc_lo","vcc_hi"): return {("x","vcc")}
    return set()
class Ins:
    def __init__(self, text):
        self.text = text
        t = text.split(";")[0].strip()
        self.label = t.endswith(":")
        self.mn = t.split()[0] if t and not self.label else ""
        self.dst = set(); self.src = set(); self.A = self.B = self.C = set()
        self.kind = "other"
        if self.label or not t or self.mn.startswith("."): self.kind = "none"; return
        rest = t[len(self.mn):]
        self.lds = bool(re.search(r"\blds\b", rest))
        self.dpp = "_dpp" in self.mn or "quad_perm" in rest or "row_" in rest
        rest = MOD_RE.sub("", rest)
        ops = [o.strip() for o in rest.split(",")] if rest.strip() else []
        R = [regs(o) for o in ops]
        mn = self.mn
        allr = set().union(*R) if R else set()
        if mn.startswith("v_mfma"):
            self.kind = "mfma"; self.dst = R[0]; self.A, self.B, self.C = R[1], R[2], R[3]; self.src = R[1]|R[2]|R[3]
            self.passes = 8 if "32x32" in mn else 4
        elif mn.startswith("v_"):
            self.kind = "valu"; self.dst = set(R[0]); self.src = set().union(*R[1:]) if len(R) > 1 else set()
            if "_co_" in mn: self.dst |= R[1]; self.src = set().union(*R[2:])
            if mn.startswith(("v_fmac","v_dot2c","v_pk_fmac")): self.src |= R[0]
            if "permlane" in mn and "swap" in mn: self.src |= R[0]; self.dst |= R[1]
            if self.dpp: self.src |= R[0]
        elif mn.startswith("ds_"):
            self.kind = "ds"
            if mn.startswith("ds_read") or "_rtn" in mn or "permute" in mn or "swizzle" in mn:
                self.dst = R[0]; self.src = set().union(*R[1:]) if len(R) > 1 else set()
            else: self.src = allr
            if "addtid" in mn: self.src |= {("x","m0")}
            if "d16" in mn: self.src |= R[0]
        elif mn.startswith(("buffer_","global_")):
            self.kind = "vm"
            if "load" in mn and not self.lds:
                self.dst = R[0]; self.src = set().union(*R[1:])
            else: self.src = allr
            if self.lds: self.src |= {("x","m0")}
            self.wide = ("store" in mn and ("x3" in mn or "x4" in mn))
            self.data = (R[0] if mn.startswith("buffer") else R[1]) if self.wide else set()
        elif mn.startswith(("s_load","s_memtime","s_memrealtime","s_buffer_load")):
            self.kind = "smem"; self.dst = R[0]; self.src = set().union(*R[1:]) if len(R) > 1 else set()
        elif mn.startswith("s_"):
            self.kind = "salu"
            if mn.startswith(("s_cmp","s_bitcmp","s_waitcnt","s_barrier","s_cbranch","s_branch","s_nop","s_sleep","s_endpgm","s_setprio")):
                self.src = allr
            else:
                self.dst = set(R[0]) if R else set(); self.src = set().union(*R[1:]) if len(R) > 1 else set()
                if "saveexec" in mn: self.dst |= {("x","exec")}
    def states(self):
        if self.kind == "none": return 0
        if self.mn == "s_nop": return int(self.text.split()[1]) + 1
        return 1
def vonly(s): return {r for r in s if r[0] in "va"}
def sonly(s): return {r for r in s if r[0] == "s" or r == ("x","vcc")}
def need(p, c):
    n = 0
    if p.kind == "valu":
        pv = vonly(p.dst); ps = sonly(p.dst)
        isdot = p.mn.startswith("v_dot")
        if c.kind == "mfma" and pv & c.src: n = max(n, 3 if isdot else 2)
        if c.kind == "valu":
            if p.mn.startswith(TRANS) and not c.mn.startswith(TRANS) and pv & c.src: n = max(n, 1)
            if c.dpp and pv & c.src: n = max(n, 2)
            if "permlane" in c.mn and pv & c.src: n = max(n, 2)
            if c.mn.startswith(("v_readfirstlane","v_readlane")) and pv & c.src: n = max(n, 1)
            if ps & c.src: n = max(n, 4 if c.mn.startswith(("v_readlane","v_writelane")) else 2)
            if isdot:
                if c.mn != p.mn and pv & (c.src | c.dst): n = max(n, 3)
                if c.mn == p.mn and pv & (c.src - c.dst): n = max(n, 3)
        if isdot and c.kind in ("ds","vm") and pv & c.src: n = max(n, 3)
        if p.mn.startswith(TRANS) and c.kind in ("ds","vm") and pv & c.src: n = max(n, 1)
        if c.kind == "vm" and ps & c.src: n = max(n, 5)
    if p.kind == "mfma":
        big = {4: 8, 8: 12}[p.passes]
        if c.kind == "mfma":
            if p.dst & (c.A | c.B): n = max(n, big)
            if p.dst & c.C and not (p.dst == c.C and p.passes == c.passes): n = max(n, big - 2)
            if p.dst & c.dst and not (p.dst & c.C): n = max(n, big)
        elif c.kind in ("valu","ds","vm"):
            if p.dst & (c.src | c.dst): n = max(n, big)
            if c.kind == "valu" and p.C & c.dst: n = max(n, p.passes - 1)
    if p.kind == "salu" and ("x","m0") in p.dst and c.kind in ("vm","ds") and ("x","m0") in c.src: n = max(n, 1)
    if p.kind == "vm" and p.wide and p.data & c.dst: n = max(n, 2)
    return n
class K:
    def __init__(self):
        self.ins = []; self.vm = []; self.lg = []; self.nlabel = 0; self.padded = 0
    def __call__(self, text, tag=None):
        for ln in text.split("\n"):
            ln = ln.strip()
            if not ln: continue
            i = Ins(ln)
            dist = 0; req = 0
            for p in reversed(self.ins):
                if dist >= 14: break
                if p.mn in ("s_branch","s_endpgm"): break
                r = need(p, i) - dist
                req = max(req, r)
                dist += p.states()
            if req > 0:
                self.ins.append(Ins(f"s_nop {req-1}")); self.padded += req
            self.ins.append(i)
            if i.kind == "vm": self.vm.append(tag)
            if i.kind == "ds": self.lg.append(tag)
    def lab(self, base):
        self.nlabel += 1; return f"L_{base}_{self.nlabel}"
    def cnt(self, lst, tag):
        idx = [i for i, t in enumerate(lst) if t == tag]
        if not idx: return None
        return len(lst) - 1 - idx[-1]
    def wait(self, vm=None, lg=None):
        parts = []
        if vm is not None:
            n = 0 if vm == "*" else self.cnt(self.vm, vm)
            if n is not None:
                n = min(n, 63); parts.append(f"vmcnt({n})"); self.vm = self.vm[len(self.vm)-n:] if n else []
        if lg is not None:
            n = 0 if lg == "*" else self.cnt(self.lg, lg)
            if n is not None:
                n = min(n, 15); parts.append(f"lgkmcnt({n})"); self.lg = self.lg[len(self.lg)-n:] if n else []
        if parts: self("s_waitcnt " + " ".join(parts))
    def reset(self): self.vm = []; self.lg = []
    def text(self):
        return "\n".join(i.text if i.label else "    " + i.text for i in self.ins) + "\n"
def V(a, n=1): return f"v{a}" if n == 1 else f"v[{a}:{a+n-1}]"
def S(a, n=1): return f"s{a}" if n == 1 else f"s[{a}:{a+n-1}]"
```

```python
import sys, struct
from kasm import *
from asmlib import KNAME, kernel_wrap, file_wrap

def fbits(x): return "0x%08x" % struct.unpack("<I", struct.pack("<f", x))[0]
LOG2E = 1.4426950408889634

CNT, STATS, PROF, XT, ST, ACT, KDBG, WSN = 0, 0x8000, 0x10000, 0x100000, 0x300000, 0x500000, 0xD00000, 0x2000000
C_ACT, C_XT, C_ST = 0, 128, 184
L_X, L_W, L_E, L_KC, L_U, L_SY, L_TOT = 0, 49152, 98304, 114688, 149504, 162816, 163840
sX, sW1, sW2, sWS, sAUX, sOUT = 4, 8, 12, 16, 20, 24
pX, pARE, pLDT, pDSK, pW1, pB1, pW2, pOUT, pDBG, pWS = 28, 30, 42, 44, 48, 50, 52, 54, 56, 58
sXCD, sJ, sR, sC, sRB, sFC, sKAP = 60, 61, 62, 63, 64, 65, 66
SPIN = 200000

class Cfg:
    prof = False
    kdbg = False
    thr = [300, 540]
    depth = 8
    rot = True

def srd(k, d, ptr): k(f"s_mov_b64 {S(d,2)}, {S(ptr,2)}")
def srd_const(k, d, n): k(f"s_mov_b32 s{d+2}, {n}\ns_mov_b32 s{d+3}, 0x20000")

def stamp(k, cfg, i):
    if cfg.prof: k(f"s_memrealtime {S(78+2*i,2)}")
def prof_dump(k, cfg):
    if not cfg.prof: return
    k("s_waitcnt lgkmcnt(0)")
    k("s_lshl_b32 s76, s2, 3\ns_add_u32 s76, s76, s3\ns_lshl_b32 s76, s76, 6\ns_add_u32 s76, s76, %d" % PROF)
    k("s_mov_b64 exec, 1")
    for q in range(3):
        for e in range(4): k(f"v_mov_b32 v{4+e}, s{78+2*(4*q+e)}")
        k(f"buffer_store_dwordx4 v[4:7], off, {S(sWS,4)}, s76 offset:{16*q}")
    k("s_mov_b64 exec, -1")

def atomic_inc(k, srdreg, soff, vt):
    k(f"v_mov_b32 v{vt}, 1\ns_mov_b64 exec, 1")
    k(f"buffer_atomic_add v{vt}, off, {S(srdreg,4)}, {soff} sc1", "atom")
    k("s_mov_b64 exec, -1")

def lds_signal(k, vaddr, off, vone):
    k("s_mov_b64 exec, 1")
    k(f"ds_add_u32 v{vaddr}, v{vone} offset:{off}", "sig")
    k("s_mov_b64 exec, -1")
def lds_spin(k, vaddr, off, want, vt, st, sc):
    l = k.lab("spin"); o = k.lab("spun")
    k(f"s_mov_b32 s{sc}, 0")
    k(f"{l}:")
    k(f"ds_read_b32 v{vt}, v{vaddr} offset:{off}\ns_add_u32 s{sc}, s{sc}, 1")
    k.wait(lg="*")
    k(f"v_readfirstlane_b32 s{st}, v{vt}\ns_cmp_gt_u32 s{sc}, {SPIN}\ns_cbranch_scc1 {o}")
    k(f"s_cmp_lt_u32 s{st}, {want}\ns_cbranch_scc1 {l}")
    k(f"{o}:")

def prologue(k, cfg):
    stamp(k, cfg, 0)
    k("s_load_dwordx16 s[28:43], s[0:1], 0\ns_load_dwordx16 s[44:59], s[0:1], 64")
    k("s_cmp_ge_u32 s2, 256\ns_cbranch_scc1 L_end")
    k("v_lshrrev_b32 v1, 6, v0\nv_and_b32 v0, 63, v0\nv_readfirstlane_b32 s3, v1")
    k(f"s_and_b32 s{sXCD}, s2, 7\ns_lshr_b32 s{sJ}, s2, 3")
    srd_const(k, sWS, WSN); srd_const(k, sX, 1835008)
    k(f"s_cmp_lt_u32 s{sJ}, 4\ns_cbranch_scc1 L_helper")
    k(f"s_sub_u32 s{sJ}, s{sJ}, 4")
    k(f"s_cmp_ge_u32 s3, 4\ns_cbranch_scc1 L_S")

def main_ids(k, cfg):
    k(f"s_mul_i32 s{sR}, s{sJ}, 37\ns_lshr_b32 s{sR}, s{sR}, 8\ns_mul_i32 s{sC}, s{sR}, 7\ns_sub_u32 s{sC}, s{sJ}, s{sC}")
    k(f"s_lshr_b32 s{sRB}, s{sXCD}, 1\ns_lshl_b32 s{sRB}, s{sRB}, 2\ns_add_u32 s{sRB}, s{sRB}, s{sR}")
    k(f"s_and_b32 s{sFC}, s{sXCD}, 1\ns_mul_i32 s{sFC}, s{sFC}, 7\ns_add_u32 s{sFC}, s{sFC}, s{sC}")
    k(f"s_lshl_b32 s{sKAP}, s{sR}, 1\ns_add_u32 s{sKAP}, s{sKAP}, s{sC}")
    k(f"s_sub_u32 s67, s{sKAP}, 7\ns_cmp_ge_u32 s{sKAP}, 7\ns_cselect_b32 s{sKAP}, s67, s{sKAP}")

def gen_G(k, cfg):
    ACC, W2R, RING = 16, 80, 192
    FA, FB = 80, 96
    XD, WD, XA, WA, CS, B1, STT, AUG = 112, 116, 120, 124, 126, 128, 130, 132
    W2D, W2A, L16 = 1, 5, 9
    sXO, sWO, sM, sONE, sT, sT2, sA2, sB2, sSP = 68, 69, 70, 71, 72, 73, 74, 75, 77
    k("s_setprio 2")
    main_ids(k, cfg)
    srd_const(k, sW1, 1605632)
    k(f"v_lshrrev_b32 v10, 3, v0\nv_and_b32 v11, 7, v0\nv_lshrrev_b32 v12, 4, v0")
    k(f"v_xor_b32 v13, v11, v12\ns_lshl_b32 s{sT}, s3, 5\nv_add_u32 v14, s{sT}, v10\nv_mul_u32_u24 v14, 896, v14")
    k(f"v_lshl_add_u32 v{XD}, v13, 4, v14\nv_xor_b32 v13, 64, v{XD}")
    k(f"v_add_u32 v{XD+1}, 6144, v13\nv_add_u32 v{XD+2}, {2*6144}, v{XD}\nv_add_u32 v{XD+3}, {3*6144}, v13")
    k(f"v_and_b32 v13, 15, v0\nv_lshlrev_b32 v14, 2, v12\nv_xor_b32 v13, v13, v14")
    k(f"s_lshl_b32 s{sT}, s3, 4\nv_add_u32 v14, s{sT}, v12\nv_mul_u32_u24 v14, 3584, v14\nv_lshl_add_u32 v{WD}, v13, 4, v14")
    for n in (1,2,3): k(f"v_add_u32 v{WD+n}, {n*13312}, v{WD}")
    k(f"s_mul_i32 s{sXO}, s{sRB}, 114688\ns_lshl_b32 s{sT}, s{sKAP}, 7\ns_add_u32 s{sXO}, s{sXO}, s{sT}")
    k(f"s_mul_i32 s{sWO}, s{sKAP}, 229376\ns_lshl_b32 s{sT}, s{sFC}, 8\ns_add_u32 s{sWO}, s{sWO}, s{sT}")
    k(f"s_lshl_b32 s{sM}, s3, 12")
    def dma_list(c):
        sl = c % 3; out = []
        out.append([f"s_add_u32 m0, s{sM}, {L_X + sl*16384}", f"buffer_load_dwordx4 v{XD}, {S(sX,4)}, s{sXO} offen lds"])
        for n in (1,2,3): out.append([f"buffer_load_dwordx4 v{XD+n}, {S(sX,4)}, s{sXO} offen offset:{n*1024} lds"])
        out.append([f"s_add_u32 m0, s{sM}, {L_W + sl*16384}", f"s_add_u32 s{sXO}, s{sXO}, 128", f"buffer_load_dwordx4 v{WD}, {S(sW1,4)}, s{sWO} offen lds"])
        for n in (1,2,3): out.append([f"buffer_load_dwordx4 v{WD+n}, {S(sW1,4)}, s{sWO} offen offset:{n*1024} lds"])
        if c < 6:
            out[-1] += [f"s_add_u32 s{sWO}, s{sWO}, 229376", f"s_cmp_ge_u32 s{sWO}, 1605632", f"s_cselect_b32 s{sT}, 896, 0",
                        f"s_cselect_b32 s{sT2}, 1605632, 0", f"s_sub_u32 s{sXO}, s{sXO}, s{sT}", f"s_sub_u32 s{sWO}, s{sWO}, s{sT2}"]
        return [(g, f"c{c}") for g in out]
    k("s_waitcnt lgkmcnt(0)")
    srd(k, sX, pX); srd(k, sW1, pW1)
    for g, t in dma_list(0): k("\n".join(g), t)
    srd(k, sWS, pWS); srd(k, sW2, pW2); srd(k, sAUX, pB1); srd_const(k, sW2, 1605632); srd_const(k, sAUX, 3584)
    k(f"s_lshr_b32 s{sT}, s3, 1\ns_lshl_b32 s{sT}, s{sT}, 7\ns_lshl_b32 s{sT2}, s{sFC}, 8\ns_add_u32 s{sT}, s{sT}, s{sT2}")
    k(f"v_lshrrev_b32 v15, 5, v0\nv_and_b32 v14, 31, v0\nv_lshlrev_b32 v13, 1, v14\nv_lshl_add_u32 v13, v15, 12, v13")
    k(f"buffer_load_ushort v{B1}, v13, {S(sAUX,4)}, s{sT} offen\nbuffer_load_ushort v{B1+1}, v13, {S(sAUX,4)}, s{sT} offen offset:64", "b1")
    for g, t in dma_list(1): k("\n".join(g), t)
    k(f"s_and_b32 s{sT}, s3, 1\ns_lshl_b32 s{sT}, s{sT}, 13")
    k(f"v_bfe_u32 v13, v0, 1, 3\nv_xor_b32 v13, v13, v15\nv_lshlrev_b32 v13, 4, v13\nv_lshl_add_u32 v13, v14, 7, v13\nv_add_u32 v{XA}, s{sT}, v13")
    for s in (1,2,3): k(f"v_xor_b32 v{XA+s}, {32*s}, v{XA}")
    k(f"v_bfe_u32 v10, v0, 2, 2\nv_and_b32 v11, 3, v0\nv_lshlrev_b32 v11, 3, v11\nv_and_b32 v12, 16, v0\nv_lshl_add_u32 v11, v12, 1, v11")
    k(f"s_and_b32 s{sT}, s3, 2\nv_xor_b32 v12, s{sT}, v10\nv_lshl_add_u32 v12, v12, 6, v11")
    k(f"v_lshl_add_u32 v13, v15, 3, v10\nv_lshl_add_u32 v12, v13, 8, v12\nv_add_u32 v{WA}, {L_W}, v12\nv_xor_b32 v{WA+1}, 64, v{WA}")
    k(f"v_lshl_add_u32 v13, v15, 2, v10\nv_lshl_add_u32 v12, v13, 7, v11\nv_lshrrev_b32 v13, 1, v10\nv_lshl_add_u32 v12, v13, 6, v12")
    k(f"v_add_u32 v{W2A}, s{sM}, v12\nv_xor_b32 v{W2A+1}, 64, v{W2A}\nv_add_u32 v{W2A+2}, 65536, v{W2A}\nv_add_u32 v{W2A+3}, 65536, v{W2A+1}")
    k(f"v_lshrrev_b32 v10, 3, v0\nv_and_b32 v11, 7, v0\nv_bfe_u32 v12, v0, 4, 1\nv_lshlrev_b32 v12, 2, v12\nv_xor_b32 v11, v11, v12")
    k(f"v_mul_u32_u24 v10, 896, v10\nv_lshl_add_u32 v{W2D}, v11, 4, v10")
    for n in (1,2,3): k(f"v_add_u32 v{W2D+n}, {n*6144}, v{W2D}")
    k(f"v_lshlrev_b32 v{L16}, 4, v0\nv_mov_b32 v{CS}, 0\nv_mov_b32 v{CS+1}, 0\ns_mov_b32 s{sONE}, 0xbf80bf80")
    k(f"v_bfe_u32 v10, v0, 2, 1\nv_lshlrev_b32 v10, 12, v10\nv_bfe_u32 v11, v0, 3, 2\nv_lshl_add_u32 v10, v11, 4, v10\nv_and_b32 v11, 3, v0\nv_lshl_add_u32 v10, v11, 2, v10")
    k(f"s_mul_i32 s{sA2}, s3, {448*896}\ns_lshl_b32 s{sT}, s{sC}, 7\ns_add_u32 s{sA2}, s{sA2}, s{sT}\ns_add_u32 s{sB2}, s{sA2}, {224*896}")
    if cfg.rot:
        k(f"s_bitcmp1_b32 s{sC}, 0\ns_cselect_b32 s{sT}, s{sB2}, s{sA2}\ns_cselect_b32 s{sB2}, s{sA2}, s{sB2}\ns_mov_b32 s{sA2}, s{sT}")
    LOC = [1, 4, 2, 5, 0, 3, 6]
    def w2dma(b):
        base = sA2 if b < 7 else sB2
        out = [[f"s_add_u32 m0, s{sM}, {LOC[b%7]*16384}", f"s_add_u32 s{sT}, s{base}, {(b%7)*32*896}", f"buffer_load_dwordx4 v{W2D}, {S(sW2,4)}, s{sT} offen lds"]]
        for n in (1,2,3): out.append([f"buffer_load_dwordx4 v{W2D+n}, {S(sW2,4)}, s{sT} offen offset:{n*1024} lds"])
        return [(g, f"w2_{b}") for g in out]
    def w2read(step, dst_step):
        b = step // 2; loc = LOC[b % 7]*16384 + (step & 1)*2048; hi = 2 if loc >= 65536 else 0; loc -= hi*32768
        out = []
        for d2 in (0, 1):
            for rd in (0, 1):
                out.append(f"ds_read_b64_tr_b16 {V(W2R + dst_step*8 + d2*4 + rd*2, 2)}, v{W2A+hi+d2} offset:{loc + rd*1024}")
        return out
    def reads(c, s, F):
        sl = (c % 3)*16384
        for tt in (0, 1): k(f"ds_read_b128 {V(F+4*tt,4)}, v{XA+s} offset:{sl + tt*4096}", f"f{F}")
        for ft in (0, 1):
            for rd in (0, 1): k(f"ds_read_b64_tr_b16 {V(F+8+4*ft+2*rd,2)}, v{WA+ft} offset:{sl + s*4096 + rd*1024}", f"f{F}")
    first = [True]
    def group(F, fill):
        dots = [([f"v_dot2c_f32_bf16 v{CS+ft}, s{sONE}, v{F+8+4*ft+e}"], None) for e in range(4) for ft in (0, 1)]
        gaps = [[], [], [], []]
        for i, d in enumerate(dots): gaps[[0,0,0,1,1,2,2,2][i]].append(d)
        for i, f in enumerate(fill): gaps[(1, 2, 0)[i % 3] if len(fill) > 2 else (0, 1)[i]].append(f)
        for m in range(4):
            ft, tt = m >> 1, m & 1; a = ACC + 16*m
            k(f"v_mfma_f32_32x32x16_bf16 {V(a,16)}, {V(F+8+4*ft,4)}, {V(F+4*tt,4)}, {'0' if first[0] else V(a,16)}")
            for g, t in gaps[m]: k("\n".join(g), t)
        first[0] = False
    sSTO = 67
    k(f"s_lshl_b32 s{sSTO}, s{sRB}, 1\ns_and_b32 s{sT}, s3, 1\ns_add_u32 s{sSTO}, s{sSTO}, s{sT}")
    k(f"s_lshl_b32 s76, s{sSTO}, 7\ns_add_u32 s76, s76, {STATS}")
    statl = [f"buffer_load_dword v{STT}, v10, {S(sWS,4)}, s76 offen sc1", f"buffer_load_dword v{STT+1}, v10, {S(sWS,4)}, s76 offen offset:64 sc1"]
    stamp(k, cfg, 1)
    for c in range(7):
        k.wait(vm=f"c{c}")
        k("s_barrier")
        if c == 0: stamp(k, cfg, 2)
        if c <= 4: d = dma_list(c+2)
        elif c == 5: d = w2dma(0) + w2dma(1); d[0] = (statl + d[0][0], d[0][1])
        else: d = w2dma(2) + w2dma(3)
        reads(c, 0, FA)
        if c > 0: group(FB, d[0:2])
        else:
            for g, t in d[0:2]: k("\n".join(g), t)
        reads(c, 1, FB); k.wait(lg=f"f{FA}"); group(FA, d[2:4])
        reads(c, 2, FA); k.wait(lg=f"f{FB}"); group(FB, d[4:6])
        reads(c, 3, FB); k.wait(lg=f"f{FA}"); group(FA, d[6:8])
        k.wait(lg="*")
    k("s_barrier")
    stamp(k, cfg, 3)
    group(FB, [])
    k.wait(vm="w2_0")
    l = k.lab("st"); o = k.lab("sto")
    k(f"s_mov_b32 s{sSP}, 0")
    k(f"{l}:")
    k(f"v_min_u32 v11, v{STT}, v{STT+1}\ns_add_u32 s{sSP}, s{sSP}, 1\nv_cmp_eq_u32 vcc, 0, v11\ns_cmp_gt_u32 s{sSP}, {SPIN}\ns_cbranch_scc1 {o}\ns_cbranch_vccz {o}")
    sv = list(k.vm); k("\n".join(statl)); k("s_waitcnt vmcnt(0)"); k.vm = sv
    k(f"s_branch {l}")
    k(f"{o}:")
    RC, RL, T, P = 192, 196, 200, 208
    k(f"s_mov_b32 s{sT}, 0x01000100")
    for tt in (0, 1):
        k(f"v_and_b32 v11, 0xffff0000, v{STT+tt}\nv_rcp_f32 v{RC+2*tt}, v11")
        k(f"v_perm_b32 v{AUG+2*tt}, v{STT+tt}, v{STT+tt}, s{sT}\nv_lshrrev_b32 v{AUG+2*tt+1}, 16, v{STT+tt}")
        k(f"v_mul_f32 v{RC+2*tt+1}, -2.0, v{RC+2*tt}\nv_mul_f32 v{RL+tt}, {fbits(LOG2E)}, v{RC+2*tt}")
    for ft in (0, 1):
        k(f"v_cvt_pk_bf16_f32 v11, v{CS+ft}, v{CS+ft}\nv_and_b32 v11, 0xffff0000, v11\nv_sub_f32 v11, v{CS+ft}, v11")
        k(f"v_cvt_pk_bf16_f32 v{AUG+4+2*ft}, v{CS+ft}, v11\nv_mov_b32 v{AUG+5+2*ft}, v{B1+ft}")
    for m in range(4):
        ft, tt = m >> 1, m & 1; a = ACC + 16*m
        k(f"v_mfma_f32_32x32x8_bf16 {V(a,16)}, {V(AUG+4+2*ft,2)}, {V(AUG+2*tt,2)}, {V(a,16)}")
    k(f"s_lshl_b32 s{sXO}, s{sFC}, 1\ns_lshr_b32 s{sT}, s3, 1\ns_add_u32 s{sXO}, s{sXO}, s{sT}")
    k(f"s_mul_i32 s{sWO}, s{sXO}, 37\ns_lshr_b32 s{sWO}, s{sWO}, 8\ns_lshl_b32 s{sT}, s{sSTO}, 2\ns_add_u32 s{sWO}, s{sWO}, s{sT}\ns_lshl_b32 s{sWO}, s{sWO}, 7")
    k(f"s_lshl_b32 s{sXO}, s{sXO}, 13\ns_mul_i32 s{sT}, s{sSTO}, 229376\ns_add_u32 s{sXO}, s{sXO}, s{sT}\ns_add_u32 s{sXO}, s{sXO}, {ACT}\ns_add_u32 s76, s{sXO}, 4096")
    stamp(k, cfg, 4)
    for g in range(8):
        m, sp = g >> 1, g & 1; ft, tt = m >> 1, m & 1; a = ACC + 16*m + 8*sp; p = P + 4*(g & 1)
        d = w2dma(4 + g//2) if g in (1, 3, 5) else [([], None)]*4
        for i in range(4): k(f"v_pk_mul_f32 {V(T+2*i,2)}, {V(a+2*i,2)}, {V(RL,2)} op_sel:[0,{tt}] op_sel_hi:[1,{tt}]")
        k("\n".join(d[0][0]), d[0][1])
        for i in range(8): k(f"v_exp_f32 v{T+i}, v{T+i}")
        k("\n".join(d[1][0]), d[1][1])
        for i in range(4): k(f"v_pk_add_f32 {V(T+2*i,2)}, {V(T+2*i,2)}, 1.0 op_sel_hi:[1,0]")
        for i in range(4): k(f"v_pk_fma_f32 {V(T+2*i,2)}, {V(T+2*i,2)}, {V(T+2*i,2)}, 1.0 op_sel_hi:[1,1,0]")
        k("\n".join(d[2][0]), d[2][1])
        for i in range(8): k(f"v_rcp_f32 v{T+i}, v{T+i}")
        k("\n".join(d[3][0]), d[3][1])
        for i in range(4): k(f"v_pk_fma_f32 {V(T+2*i,2)}, {V(T+2*i,2)}, {V(RC+2*tt,2)}, {V(RC+2*tt,2)} op_sel:[0,1,0] op_sel_hi:[1,1,0]")
        for i in range(4): k(f"v_pk_mul_f32 {V(T+2*i,2)}, {V(T+2*i,2)}, {V(a+2*i,2)}")
        for i in range(4): k(f"v_cvt_pk_bf16_f32 v{p+i}, v{T+2*i}, v{T+2*i+1}")
        k(f"buffer_store_dwordx4 {V(p,4)}, v{L16}, {S(sWS,4)}, s{sXO if ft == 0 else 76} offen offset:{sp*2048 + tt*1024} sc1", "act")
    stamp(k, cfg, 5)
    k("s_setprio 0")
    def stage(b):
        k.wait(vm=f"w2_{b}")
        for s in (0, 1):
            for r in w2read(2*b+s, 2*b+s): k(r, "w2r")
        k.wait(lg="*")
        for g, t in w2dma(7+b): k("\n".join(g), t)
    stage(0); stage(1)
    k.wait(vm="act")
    atomic_inc(k, sWS, f"s{sWO}", 11)
    stamp(k, cfg, 6)
    for b in range(2, 7): stage(b)
    k(f"s_lshl_b32 s{sSTO}, s{sXCD}, 2\ns_add_u32 s{sSTO}, s{sSTO}, s{sR}")
    k(f"s_lshl_b32 s{sWO}, s{sSTO}, 2\ns_add_u32 s{sWO}, s{sWO}, s3\ns_lshl_b32 s{sWO}, s{sWO}, 7")
    k(f"s_mul_i32 s{sA2}, s{sSTO}, 229376\ns_mul_i32 s{sT}, s3, 57344\ns_add_u32 s{sA2}, s{sA2}, s{sT}\ns_add_u32 s{sA2}, s{sA2}, {ACT}\ns_add_u32 s{sB2}, s{sA2}, 28672")
    if cfg.rot:
        k(f"s_bitcmp1_b32 s{sC}, 0\ns_cselect_b32 s{sT}, s{sB2}, s{sA2}\ns_cselect_b32 s{sB2}, s{sA2}, s{sB2}\ns_mov_b32 s{sA2}, s{sT}")
    stamp(k, cfg, 7)
    l = k.lab("ap"); o = k.lab("apo")
    k(f"s_mov_b32 s{sSP}, 0")
    k(f"{l}:")
    k(f"buffer_load_dword v11, off, {S(sWS,4)}, s{sWO} sc1\ns_add_u32 s{sSP}, s{sSP}, 1")
    k.wait(vm="*")
    k(f"v_readfirstlane_b32 s{sT}, v11\ns_cmp_gt_u32 s{sSP}, {SPIN}\ns_cbranch_scc1 {o}\ns_cmp_lt_u32 s{sT}, 7\ns_cbranch_scc1 {l}")
    k(f"{o}:")
    k("s_setprio 2")
    stamp(k, cfg, 8)
    D = cfg.depth
    def actload(s):
        out = []
        if s % 2 == 0: out.append(f"s_add_u32 s{sT}, s{sA2 if s < 14 else sB2}, {(s % 14)*2048}")
        for tt in (0, 1): out.append(f"buffer_load_dwordx4 {V(RING + (s % D)*8 + 4*tt, 4)}, v{L16}, {S(sWS,4)}, s{sT} offen offset:{(s & 1)*2048 + tt*1024} sc1")
        return out
    for s in range(D): k("\n".join(actload(s)), f"a{s}")
    DA = [1, 2, 3, 4, 10, 11, 12, 13]
    k(f"v_and_b32 v14, 15, v0\nv_lshrrev_b32 v15, 5, v0\nv_xor_b32 v15, v15, v14\nv_lshlrev_b32 v15, 4, v15\nv_lshl_add_u32 v15, v14, 8, v15")
    k(f"v_bfe_u32 v14, v0, 4, 1\nv_lshl_add_u32 v15, v14, 14, v15\nv_add_u32 v{DA[0]}, s{sM}, v15")
    for i in range(1, 8): k(f"v_xor_b32 v{DA[i]}, {32*i}, v{DA[0]}")
    for s in range(28):
        k.wait(vm=f"a{s}", lg=f"r{s}" if s >= 14 else None)
        w = W2R + (s % 14)*8; x = RING + (s % D)*8
        rd = w2read(s + 13, s - 1) if 1 <= s <= 14 else []
        ld = actload(s - 1 + D) if (s >= 1 and s - 1 + D < 28) else []
        for m in range(4):
            d2, tt = m >> 1, m & 1; a = ACC + 16*m
            k(f"v_mfma_f32_32x32x16_bf16 {V(a,16)}, {V(w+4*d2,4)}, {V(x+4*tt,4)}, {'0' if s == 0 else V(a,16)}")
            if m == 0 and ld: k("\n".join(ld[:-1]), f"a{s-1+D}")
            if m == 2 and ld: k(ld[-1], f"a{s-1+D}")
            if m in (1, 3) and rd: k("\n".join(rd[m-1:m+1]), f"r{s+13}")
    stamp(k, cfg, 9)
    for m in range(4):
        d2, tt = m >> 1, m & 1
        for jj in range(4): k(f"ds_write_b128 v{DA[4*d2+jj]}, {V(ACC+16*m+4*jj,4)} offset:{tt*32768}")
    k.wait(lg="*")
    k("s_barrier")
    stamp(k, cfg, 10)
    prof_dump(k, cfg)
    k("s_endpgm")

def cmul(k, z, a, w, t):
    k(f"v_pk_mul_f32 {V(t,2)}, {V(a,2)}, {V(w,2)} op_sel_hi:[1,0]")
    k(f"v_pk_fma_f32 {V(z,2)}, {V(a,2)}, {V(w,2)}, {V(t,2)} op_sel:[1,1,0] op_sel_hi:[0,1,1] neg_lo:[0,1,0]")

def gen_S(k, cfg):
    k.reset()
    k("L_S:")
    sWV, sCP, sT, sT2, sHH, sCS, sG32, sSP, sO1, sO2 = 67, 68, 69, 70, 71, 72, 73, 74, 75, 76
    PRM, GA = 2, 8
    k("s_setprio 3")
    k(f"s_mul_i32 s{sCP}, s{sXCD}, 28\ns_add_u32 s{sCP}, s{sCP}, s{sJ}")
    k(f"s_lshl_b32 s{sT}, s{sCP}, 2\ns_add_u32 s{sT2}, s{sT}, s3\ns_sub_u32 s{sT2}, s{sT2}, 4\ns_lshl_b32 s{sT2}, s{sT2}, 8")
    k(f"v_lshl_add_u32 v1, v0, 2, s{sT2}")
    k("s_waitcnt lgkmcnt(0)")
    for i in range(6): k(f"global_load_dword v{PRM+i}, v1, {S(pARE+2*i,2)}", "prm")
    k(f"s_load_dword s{sO1}, {S(pLDT,2)}, s{sT}\ns_load_dword s{sO2}, {S(pDSK,2)}, s{sT}")
    k("s_setprio 0")
    main_ids(k, cfg)
    k(f"s_sub_u32 s{sWV}, s3, 4\ns_and_b32 s{sHH}, s3, 1\ns_bfe_u32 s{sCS}, s3, 0x10001")
    srd(k, sX, pX); srd(k, sWS, pWS); srd(k, sAUX, pDBG); srd(k, sOUT, pOUT); srd_const(k, sAUX, 256); srd_const(k, sOUT, 1835008)
    ZERO, VSY, VONE = 30, 34, 35
    for i in range(4): k(f"v_mov_b32 v{ZERO+i}, 0")
    k(f"v_mov_b32 v{VSY}, {L_SY}\nv_mov_b32 v{VONE}, 1")
    k(f"v_lshlrev_b32 v36, 3, v0\nv_add_u32 v37, {L_U}, v36\ns_mul_i32 s{sT}, s{sWV}, 3328\ns_add_u32 s{sT}, s{sT}, {L_E}\nv_lshl_add_u32 v38, v0, 2, s{sT}")
    k(f"ds_write_b64 v37, {V(ZERO,2)}\nds_write_b64 v37, {V(ZERO,2)} offset:4576\nds_write_b32 v38, v{ZERO}\nds_write_b128 v{VSY}, {V(ZERO,4)}")
    k(f"s_lshl_b32 s{sT}, s{sHH}, 10\ns_sub_u32 s{sT}, 2047, s{sT}\nv_sub_u32 v36, s{sT}, v36")
    k(f"s_mul_i32 s{sT}, s{sCS}, {2*3328//4}\ns_add_u32 s{sT}, s{sT}, {(L_E+256)//4 - 0x4300}")
    k(f"v_cvt_f32_i32 v37, v36\nv_add_u32 v36, s{sT}, v36\ns_sub_u32 s{sT2}, s{sT}, 1\nv_mov_b32 v38, s{sT2}\ns_add_u32 s{sT}, s{sT}, 128\ns_mov_b32 s{sT2}, {fbits(128.0)}")
    idx = [(p, i) for p in (0, 1) for i in range(11)]
    for n in range(0, 22, 2):
        for e in (0, 1):
            p, i = idx[n+e]; dl = 512*p + i
            k(f"v_subrev_f32 v{40+e}, {fbits(float(dl))}, v37\nv_max_f32 v{40+e}, s{sT2}, v{40+e}")
            k(f"v_subrev_u32 v{42+e}, {dl}, v36\nv_med3_i32 v{42+e}, v{42+e}, v38, s{sT}")
        k(f"v_cvt_pk_bf16_f32 v40, v40, v41\nv_lshrrev_b32 v41, 16, v40\nv_and_b32 v40, 0xffff, v40")
        k(f"v_add_lshl_u32 v{GA+n}, v40, v42, 2\nv_add_lshl_u32 v{GA+n+1}, v41, v43, 2")
    KW, KR, XTA, XTS, PA, DSK, DT = 36, 37, 38, 40, 41, 45, 46
    k(f"s_mul_i32 s{sT}, s{sWV}, 8704\ns_add_u32 s{sT}, s{sT}, {L_KC}\nv_lshl_add_u32 v{KW}, v0, 2, s{sT}")
    k(f"v_and_b32 v50, 31, v0\nv_lshrrev_b32 v51, 5, v0\nv_mul_u32_u24 v52, 272, v50\nv_lshl_add_u32 v52, v51, 4, v52\nv_add_u32 v{KR}, s{sT}, v52")
    k(f"s_mul_i32 s{sT}, s{sWV}, 3328\ns_add_u32 s{sT}, s{sT}, {L_E+256}")
    k(f"v_lshlrev_b32 v52, 5, v50\nv_lshl_add_u32 v52, v51, 4, v52\nv_add_u32 v{PA}, s{sT}, v52")
    k(f"v_sub_u32 v52, 4, v51\nv_lshlrev_b32 v52, v52, v50\nv_lshl_add_u32 v52, v51, 9, v52\nv_add_u32 v{PA+1}, s{sT}, v52")
    k(f"v_mul_u32_u24 v52, 248, v51\nv_add_u32 v{PA+2}, v52, v{PA+1}")
    k(f"v_lshlrev_b32 v52, 2, v50\nv_lshl_add_u32 v52, v51, 9, v52\nv_add_u32 v{PA+3}, s{sT}, v52")
    k(f"s_and_b32 s{sT}, s{sXCD}, 1\ns_lshl_b32 s{sG32}, s{sKAP}, 1\ns_add_u32 s{sG32}, s{sG32}, s{sT}\ns_lshl_b32 s{sT}, s{sT}, 2")
    k(f"v_lshrrev_b32 v50, 4, v0\nv_bfe_u32 v51, v0, 2, 2\nv_lshl_add_u32 v52, v50, 3, v51")
    k(f"v_bfe_u32 v53, v0, 1, 1\nv_or_b32 v53, s{sT}, v53\nv_bfe_u32 v54, v52, 1, 3\nv_xor_b32 v53, v53, v54\nv_lshlrev_b32 v53, 4, v53")
    k(f"v_lshl_add_u32 v53, v52, 7, v53\nv_and_b32 v54, 1, v0\nv_lshl_add_u32 v53, v54, 3, v53\ns_lshl_b32 s{sT}, s{sWV}, 12\nv_add_u32 v{XTA}, s{sT}, v53\nv_xor_b32 v{XTA+1}, 32, v{XTA}")
    k(f"v_bfe_u32 v53, v0, 1, 3\nv_lshlrev_b32 v53, 13, v53\nv_lshl_add_u32 v53, v50, 5, v53\nv_lshl_add_u32 v{XTS}, v54, 4, v53")
    k("s_waitcnt lgkmcnt(0)"); k.lg = []
    k(f"s_lshl_b32 s{sT}, s{sCS}, 4\ns_lshr_b32 s{sO1}, s{sO1}, s{sT}\ns_lshl_b32 s{sO1}, s{sO1}, 16\ns_lshr_b32 s{sO2}, s{sO2}, s{sT}\ns_lshl_b32 s{sO2}, s{sO2}, 16")
    k(f"s_cmp_eq_u32 s{sHH}, 0\ns_cselect_b32 s{sO2}, s{sO2}, 0")
    Lhi = struct.unpack("<f", struct.pack("<f", LOG2E))[0]; Llo = LOG2E - Lhi
    k(f"v_mov_b32 v50, {fbits(Lhi)}\nv_mul_f32 v51, s{sO1}, v50\nv_fma_f32 v52, s{sO1}, v50, -v51\nv_mov_b32 v53, {fbits(Llo)}\nv_fmac_f32 v52, s{sO1}, v53")
    k(f"v_exp_f32 v51, v51\nv_mul_f32 v52, {fbits(0.6931471805599453)}, v52\nv_fmac_f32 v51, v51, v52\nv_cvt_pk_bf16_f32 v51, v51, v51\nv_and_b32 v{DT+2}, 0xffff0000, v51")
    k(f"v_mul_f32 v{DT}, v50, v{DT+2}\nv_mul_f32 v{DT+1}, 0.15915494, v{DT+2}")
    k(f"v_mov_b32 v50, s{sO2}\nv_cmp_eq_u32 vcc, 0, v0\nv_cndmask_b32 v{DSK}, 0, v50, vcc")
    k(f"s_mov_b32 s{sO1}, {fbits(8.0)}\ns_mov_b32 s{sO2}, {fbits(256.0)}")
    k(f"s_lshl_b32 s{sT}, s{sG32}, 17\ns_lshl_b32 s{sT2}, s{sRB}, 9\ns_add_u32 s{sT}, s{sT}, s{sT2}\ns_lshl_b32 s{sT2}, s{sWV}, 7\ns_add_u32 s{sT}, s{sT}, s{sT2}\ns_add_u32 s{pX}, s{sT}, {XT}\ns_add_u32 s{pX+1}, s{pX}, 65536")
    stamp(k, cfg, 1)
    XR, CLR = 56, 49
    st = dict(nb=0, base=len(k.ins), pend=None)
    def xt_store():
        k.wait(lg="xt")
        k(f"buffer_load_dword v{CLR}, off, {S(sAUX,4)}, 0 sc1", "clr")
        for g in (0, 1): k(f"buffer_store_dwordx4 {V(XR+4*g,4)}, v{XTS}, {S(sWS,4)}, s{pX+g} offen sc1", "xts")
        st["pend"] = None
    def bar():
        if st["pend"] is not None: xt_store()
        k("s_barrier"); st["nb"] += 1
        if st["nb"] == 1:
            k(f"ds_read_b64_tr_b16 {V(XR,2)}, v{XTA}\nds_read_b64_tr_b16 {V(XR+2,2)}, v{XTA+1} offset:512", "xt")
            k(f"ds_read_b64_tr_b16 {V(XR+4,2)}, v{XTA+1}\nds_read_b64_tr_b16 {V(XR+6,2)}, v{XTA} offset:512", "xt")
            st["pend"] = len(k.ins) + 16
    def tick():
        if st["pend"] is not None and len(k.ins) >= st["pend"]: xt_store()
        if st["nb"] < len(cfg.thr) and len(k.ins) - st["base"] >= cfg.thr[st["nb"]]: bar()
    AB, BB, CB, X1, X8, X256, W1, W8, W256, W2, W4, TT, Z0, Z1, Z2, PK = 64, 66, 68, 70, 72, 74, 76, 78, 80, 82, 84, 86, 88, 90, 92, 94
    VF, UF, KA = 100, 132, 164
    k.wait(vm="prm")
    stamp(k, cfg, 2)
    npk = [0]
    def put(z, row, neg):
        p = PK + npk[0] % 4; npk[0] += 1
        k(f"v_cvt_pk_bf16_f32 v{p}, v{z}, {'-' if neg else ''}v{z+1}")
        k(f"ds_write_b32 v{KW}, v{p} offset:{272*row}")
        tick()
    def kmfma(p):
        k.wait(lg="uf")
        for s in range(8): k(f"v_mfma_f32_32x32x16_bf16 {V(KA,16)}, {V(UF+4*s,4)}, {V(VF+4*s,4)}, {'0' if (p == 0 and s == 0) else V(KA,16)}")
    for p in (0, 1):
        for i in range(6):
            k(f"v_lshlrev_b32 v{AB+i}, 16, v{PRM+i}" if p == 0 else f"v_and_b32 v{AB+i}, 0xffff0000, v{PRM+i}")
        k(f"v_pk_mul_f32 {V(X1,2)}, {V(AB,2)}, {V(DT,2)}")
        k(f"v_mul_f32 v{X8}, s{sO1}, v{X1}\nv_mul_f32 v{X8+1}, s{sO1}, v{X1+1}\nv_mul_f32 v{X256}, s{sO2}, v{X1}\nv_mul_f32 v{X256+1}, s{sO2}, v{X1+1}")
        for x in (X8, X1, X256): k(f"v_fract_f32 v{x+1}, v{x+1}")
        for x, w in ((X8, W8), (X1, W1), (X256, W256)):
            k(f"v_exp_f32 v{x}, v{x}\nv_cos_f32 v{w}, v{x+1}\nv_sin_f32 v{w+1}, v{x+1}")
        k(f"v_mov_b32 v{PK}, 0x3f80")
        for x, w in ((X8, W8), (X1, W1), (X256, W256)):
            k(f"v_pk_mul_f32 {V(w,2)}, {V(w,2)}, {V(x,2)} op_sel_hi:[1,0]")
        if p == 1: kmfma(0)
        k(f"ds_write_b32 v{KW}, v{PK}"); npk[0] = 1
        put(W8, 1, False)
        prev = W8
        for b in range(2, 32):
            cmul(k, Z0, prev, W8, TT); prev = Z0; put(Z0, b, False)
        for s in range(8): k(f"ds_read_b128 {V(VF+4*s,4)}, v{KR} offset:{32*s}", "vf")
        cmul(k, Z1, BB, CB, TT)
        k(f"v_pk_mul_f32 {V(Z1,2)}, {V(Z1,2)}, {V(DT+2,2)} op_sel_hi:[1,0]")
        put(Z1, 0, True)
        cmul(k, W2, W1, W1, TT); cmul(k, W4, W2, W2, TT)
        prev = Z1
        for a in range(1, 8):
            cmul(k, Z0, prev, W1, TT); prev = Z0; put(Z0, a, True)
        cmul(k, Z1, Z1, W256, TT); put(Z1, 8, True)
        prev = Z1
        for a in range(9, 12):
            cmul(k, Z0, prev, W2, TT); prev = Z0; put(Z0, a, True)
        for a in (12, 14):
            cmul(k, Z1, Z1, W256, TT); put(Z1, a, True)
            cmul(k, Z0, Z1, W4, TT); put(Z0, a+1, True)
        for a in range(16, 21):
            cmul(k, Z1, Z1, W256, TT); put(Z1, a, True)
        for s in range(8): k(f"ds_read_b128 {V(UF+4*s,4)}, v{KR} offset:{32*s}", "uf")
    kmfma(1)
    EW, CA, CBA, UW = 64, 65, 66, 67
    k(f"s_mul_i32 s{sT}, s{sCS}, 16640\ns_add_u32 s{sT}, s{sT}, {L_KC}\ns_lshl_b32 s{sT2}, s{sHH}, 11\ns_add_u32 s{sT2}, s{sT2}, s{sT}\nv_lshl_add_u32 v{EW}, v0, 4, s{sT2}")
    k(f"v_and_b32 v50, 3, v0\nv_sub_u32 v50, 3, v50\nv_mul_u32_u24 v50, 4160, v50\nv_bfe_u32 v51, v0, 2, 2\nv_lshlrev_b32 v51, 3, v51\nv_sub_u32 v50, v50, v51")
    k(f"v_lshrrev_b32 v51, 4, v0\nv_lshl_add_u32 v50, v51, 4, v50\ns_lshl_b32 s{sT2}, s{sHH}, 8\ns_sub_u32 s{sO1}, s{sT}, s{sT2}\ns_add_u32 s{sO1}, s{sO1}, 280\nv_add_u32 v{CA}, s{sO1}, v50")
    k(f"v_bfe_u32 v52, v0, 1, 2\nv_mul_u32_u24 v52, 4160, v52\nv_and_b32 v53, 1, v0\nv_lshl_add_u32 v52, v53, 4, v52\nv_add_u32 v54, s{sT}, v52")
    k(f"s_mul_i32 s{sT}, s{sCS}, 4576\ns_add_u32 s{sT}, s{sT}, {L_U+256}\ns_sub_u32 s{sT}, s{sT}, s{sT2}")
    k(f"v_and_b32 v50, 15, v0\nv_lshlrev_b32 v50, 5, v50\nv_lshl_add_u32 v50, v51, 4, v50\nv_add_u32 v{CBA}, s{sT}, v50")
    k(f"v_add_f32 v{KA}, v{KA}, v{DSK}")
    k(f"ds_write_b128 v{PA}, {V(KA,4)}\nds_write_b64 v{PA+1}, {V(KA+4,2)} offset:1024\nds_write_b64 v{PA+2}, {V(KA+6,2)} offset:1032")
    for e in range(4): k(f"ds_write_b32 v{PA+3}, v{KA+8+e} offset:{2048+128*e}")
    k.wait(lg="*")
    while st["nb"] < len(cfg.thr): bar()
    stamp(k, cfg, 3)
    bar()
    G0, XV, CP = 100, 148, 164
    for n in range(22): k(f"ds_read2st64_b32 {V(G0+2*n,2)}, v{GA+n} offset1:13", f"g{n//11}")
    k(f"ds_write_b128 v54, {V(ZERO,4)} offset:4096")
    for p in (0, 1):
        k.wait(lg=f"g{p}")
        for i in range(11): k(f"v_add_f32 v{XV+i}, v{G0+22*p+2*i}, v{G0+22*p+2*i+1}")
        for sg in range(4):
            c = CP + 16*p + 4*sg
            for jj in range(4): k(f"v_cvt_pk_bf16_f32 v{c+jj}, v{XV+sg+2*jj}, v{XV+sg+2*jj+1}")
            k(f"ds_write_b128 v{EW}, {V(c,4)} offset:{sg*4160 + p*1024}")
    k.wait(vm="*")
    l = k.lab("cl"); o = k.lab("clo")
    k(f"s_mov_b32 s{sSP}, 0")
    k(f"{l}:")
    k(f"v_readfirstlane_b32 s{sT}, v{CLR}\ns_add_u32 s{sSP}, s{sSP}, 1\ns_cmp_gt_u32 s{sSP}, {SPIN}\ns_cbranch_scc1 {o}\ns_cmp_ge_u32 s{sT}, 32\ns_cbranch_scc1 {o}")
    k(f"buffer_load_dword v{CLR}, off, {S(sAUX,4)}, 0 sc1"); k.wait(vm="*")
    k(f"s_branch {l}")
    k(f"{o}:")
    k(f"s_lshl_b32 s{sT}, s{sG32}, 2\ns_add_u32 s{sT}, s{sT}, s{sWV}\ns_add_u32 s{sT}, s{sT}, {C_XT}\ns_lshl_b32 s{sT}, s{sT}, 7")
    atomic_inc(k, sWS, f"s{sT}", 50)
    k.wait(lg="*")
    stamp(k, cfg, 4)
    assert st["nb"] <= 5, st["nb"]
    while st["nb"] < 8: bar()
    if cfg.kdbg:
        for it in range(5):
            k(f"v_lshl_add_u32 v50, s{sWV}, 6, v0\nv_lshlrev_b32 v50, 4, v50\nv_add_u32 v51, {L_KC}, v50")
            for jj in range(2): k(f"ds_read_b128 {V(100+4*jj,4)}, v51 offset:{it*8192+jj*4096}")
            k.wait(lg="*")
            k(f"s_mul_i32 s{sT}, s{sCP}, 40960\ns_add_u32 s{sT}, s{sT}, {KDBG + it*8192}\ns_add_u32 s{sT2}, s{sT}, 4096")
            k(f"buffer_store_dwordx4 v[100:103], v50, {S(sWS,4)}, s{sT} offen\nbuffer_store_dwordx4 v[104:107], v50, {S(sWS,4)}, s{sT2} offen")
            k.wait(vm="*")
    SV, XW, CN = 100, 108, 116
    k(f"s_lshr_b32 s{sT}, s{sCP}, 4\ns_lshl_b32 s{sT}, s{sT}, 2\ns_add_u32 s{sT}, s{sT}, {C_XT}\ns_lshl_b32 s{sO1}, s{sT}, 7")
    k(f"v_and_b32 v50, 3, v0\nv_lshlrev_b32 v50, 7, v50\nv_lshl_add_u32 v51, s{sWV}, 6, v0\nv_lshlrev_b32 v52, 5, v51\nv_lshlrev_b32 v51, 4, v51\nv_add_u32 v{UW}, {L_U+480}, v51")
    k(f"s_mov_b32 s{sT}, {STATS}\ns_mov_b32 s{sT2}, {STATS+4096}\ns_mov_b32 s{sSP}, 0")
    l = k.lab("xp"); o = k.lab("xpo")
    k(f"{l}:")
    k(f"buffer_load_dword v{CN}, v50, {S(sWS,4)}, s{sO1} offen sc1")
    k(f"buffer_load_dwordx4 {V(SV,4)}, v51, {S(sWS,4)}, s{sT} offen sc1\nbuffer_load_dwordx4 {V(SV+4,4)}, v51, {S(sWS,4)}, s{sT2} offen sc1")
    k(f"s_add_u32 s{sSP}, s{sSP}, 1")
    k.wait(vm="*")
    k(f"v_lshrrev_b32 v{CN}, 4, v{CN}")
    for i in range(4): k(f"v_min3_u32 v{CN}, v{CN}, v{SV+2*i}, v{SV+2*i+1}")
    k(f"v_cmp_eq_u32 vcc, 0, v{CN}\ns_cmp_gt_u32 s{sSP}, {SPIN}\ns_cbranch_scc1 {o}\ns_cbranch_vccnz {l}")
    k(f"{o}:")
    k(f"s_lshl_b32 s{sT}, s{sCP}, 13\ns_add_u32 s{sT}, s{sT}, {XT}")
    k(f"buffer_load_dwordx4 {V(XW,4)}, v52, {S(sWS,4)}, s{sT} offen sc1\nbuffer_load_dwordx4 {V(XW+4,4)}, v52, {S(sWS,4)}, s{sT} offen offset:16 sc1")
    stamp(k, cfg, 5)
    MM, RR, XF = 120, 128, 136
    for i in range(8): k(f"v_and_b32 v{RR+i}, 0xffff0000, v{SV+i}\nv_lshlrev_b32 v{MM+i}, 16, v{SV+i}")
    for i in range(8): k(f"v_rcp_f32 v{RR+i}, v{RR+i}")
    k.wait(vm="*")
    for ch in (0, 1):
        for i in range(4): k(f"v_lshlrev_b32 v{XF+2*i}, 16, v{XW+4*ch+i}\nv_and_b32 v{XF+2*i+1}, 0xffff0000, v{XW+4*ch+i}")
        for i in range(4): k(f"v_pk_add_f32 {V(XF+2*i,2)}, {V(XF+2*i,2)}, {V(MM+2*i,2)} neg_lo:[0,1] neg_hi:[0,1]")
        for i in range(4): k(f"v_pk_mul_f32 {V(XF+2*i,2)}, {V(XF+2*i,2)}, {V(RR+2*i,2)}")
        for i in range(4): k(f"v_cvt_pk_bf16_f32 v{XW+4*ch+i}, v{XF+2*i}, v{XF+2*i+1}")
        k(f"ds_write_b128 v{UW}, {V(XW+4*ch,4)} offset:{4576*ch}")
    lds_signal(k, VSY, 0, VONE)
    Y, FS = 68, [100, 164]
    def a_reads(r, F):
        return [[f"ds_read_b64 {V(F+4*a+2*e,2)}, v{CA} offset:{(7-a)*512 + (3-r)*64 + 8*e}" for e in (0, 1)] for a in range(8)]
    def b_reads(r, F):
        return [[f"ds_read_b128 {V(F+32+4*c,4)}, v{CBA} offset:{c*512 + (3-r)*64}"] for c in range(8)]
    for g in a_reads(0, FS[0]): k("\n".join(g))
    lds_spin(k, VSY, 0, 4, 50, sT, sSP)
    stamp(k, cfg, 6)
    for c, g in enumerate(b_reads(0, FS[0])): k("\n".join(g), f"b{c}")
    for r in range(4):
        F = FS[r & 1]; nxt = []
        if r < 3:
            A_, B_ = a_reads(r+1, FS[(r+1) & 1]), b_reads(r+1, FS[(r+1) & 1])
            nxt = [x for g in A_ for x in g] + [x for g in B_ for x in g]
        n = 0
        if r > 0: k.wait(lg="*")
        if r == 3: lds_signal(k, VSY, 4, VONE)
        for c in range(8):
            if r == 0: k.wait(lg=f"b{c}")
            for a in range(8 - c):
                J = a + c
                k(f"v_mfma_f32_16x16x32_bf16 {V(Y+4*J,4)}, {V(F+4*a,4)}, {V(F+32+4*c,4)}, {'0' if (r == 0 and c == 0) else V(Y+4*J,4)}")
                if n < len(nxt) and not (r == 0 and c == 0): k(nxt[n]); n += 1
        assert n == len(nxt)
    stamp(k, cfg, 7)
    EX, YS = 100, 116
    k(f"s_lshl_b32 s{sT}, s{sWV}, 12\ns_add_u32 s{sT}, s{sT}, {L_KC}\nv_lshl_add_u32 v51, v0, 4, s{sT}\nv_xor_b32 v52, 0x1000, v51")
    k(f"v_bfe_u32 v53, v0, 4, 1\nv_lshlrev_b32 v53, 9, v53\nv_and_b32 v54, 15, v0\nv_lshl_add_u32 v53, v54, 5, v53\nv_lshrrev_b32 v54, 5, v0\nv_lshl_add_u32 v53, v54, 4, v53")
    k(f"v_lshl_add_u32 v55, s{sCS}, 2, v{VSY}")
    lds_spin(k, VSY, 4, 4, 50, sT, sSP)
    l1 = k.lab("h1"); l2 = k.lab("hj")
    k(f"s_cmp_eq_u32 s{sHH}, 1\ns_cbranch_scc1 {l1}")
    for i in range(4): k(f"ds_write_b128 v51, {V(Y+16+4*i,4)} offset:{1024*i}")
    k(f"s_branch {l2}")
    k(f"{l1}:")
    for i in range(4): k(f"ds_write_b128 v51, {V(Y+4*i,4)} offset:{1024*i}")
    k("s_nop 1")
    for i in range(8): k(f"v_pk_mul_f32 {V(Y+2*i,2)}, {V(Y+16+2*i,2)}, 1.0 op_sel_hi:[1,0]")
    k(f"{l2}:")
    lds_signal(k, 55, 8, VONE)
    k(f"s_lshl_b32 s{sO1}, s{sCP}, 1\ns_add_u32 s{sO1}, s{sO1}, s{sCS}")
    k(f"s_lshr_b32 s{sT}, s{sO1}, 6\ns_lshl_b32 s{sT}, s{sT}, 1\ns_add_u32 s{sT}, s{sT}, s{sHH}\ns_lshl_b32 s{sT}, s{sT}, 2\ns_bfe_u32 s{sT2}, s{sO1}, 0x20004")
    k(f"s_add_u32 s{sT}, s{sT}, s{sT2}\ns_add_u32 s{sT}, s{sT}, {C_ST}\ns_lshl_b32 s{sO2}, s{sT}, 7")
    k(f"s_lshl_b32 s{sO1}, s{sO1}, 12\ns_lshl_b32 s{sT}, s{sHH}, 11\ns_add_u32 s{sO1}, s{sO1}, s{sT}\ns_add_u32 s{sO1}, s{sO1}, {ST}")
    lds_spin(k, 55, 8, 2, 50, sT, sSP)
    for i in range(4): k(f"ds_read_b128 {V(EX+4*i,4)}, v52 offset:{1024*i}", f"e{i}")
    for i in range(4):
        k.wait(lg=f"e{i}")
        for e in (0, 1): k(f"v_pk_add_f32 {V(Y+4*i+2*e,2)}, {V(Y+4*i+2*e,2)}, {V(EX+4*i+2*e,2)}")
        for e in (0, 1): k(f"v_cvt_pk_bf16_f32 v{YS+2*i+e}, v{Y+4*i+2*e}, v{Y+4*i+2*e+1}")
    for g in (0, 1):
        for e in (0, 1): k(f"v_permlane16_swap_b32 v{YS+4*g+e}, v{YS+4*g+2+e}")
        k(f"buffer_store_dwordx4 {V(YS+4*g,4)}, v53, {S(sWS,4)}, s{sO1} offen offset:{1024*g} sc1", "sts")
    XE, SE, OA, RA = 100, 108, 64, 68
    k(f"s_lshl_b32 s{sRB}, s{sXCD}, 2\ns_add_u32 s{sRB}, s{sRB}, s{sR}")
    k(f"v_lshrrev_b32 v50, 3, v0\nv_and_b32 v51, 7, v0\nv_mul_u32_u24 v52, 896, v50\nv_lshl_add_u32 v{OA}, v51, 4, v52")
    k(f"s_lshl_b32 s{sT}, s{sRB}, 2\ns_add_u32 s{sT}, s{sT}, s{sWV}\ns_mul_i32 s{sG32}, s{sT}, {16*896}\ns_lshl_b32 s{sT}, s{sC}, 7\ns_add_u32 s{sG32}, s{sG32}, s{sT}\ns_add_u32 s{sKAP}, s{sG32}, {8*896}")
    k.wait(vm="sts")
    atomic_inc(k, sWS, f"s{sO2}", 52)
    stamp(k, cfg, 8)
    k(f"buffer_load_dwordx4 {V(XE,4)}, v{OA}, {S(sX,4)}, s{sG32} offen\nbuffer_load_dwordx4 {V(XE+4,4)}, v{OA}, {S(sX,4)}, s{sKAP} offen")
    k(f"v_lshlrev_b32 v52, 1, v51\nv_xor_b32 v52, v52, v50\nv_lshlrev_b32 v52, 4, v52\nv_lshl_add_u32 v52, v50, 8, v52\ns_lshl_b32 s{sT}, s{sWV}, 14")
    k(f"v_add_u32 v{RA}, s{sT}, v52\nv_xor_b32 v{RA+1}, 16, v{RA}\nv_xor_b32 v{RA+2}, 0x880, v{RA}\nv_xor_b32 v{RA+3}, 0x890, v{RA}")
    k(f"v_lshlrev_b32 v53, 12, v50\nv_lshl_add_u32 v53, v51, 4, v53")
    k(f"s_lshl_b32 s{sT}, s{sWV}, 1\nv_xor_b32 v54, s{sT}, v51\nv_lshlrev_b32 v54, 4, v54\nv_lshl_add_u32 v54, v51, 10, v54\nv_lshl_add_u32 v54, v50, 1, v54\nv_add_u32 v54, {L_U}, v54\nv_xor_b32 v56, 16, v54")
    k(f"v_xor_b32 v57, s{sT}, v51\nv_lshlrev_b32 v57, 4, v57\nv_lshl_add_u32 v57, v50, 7, v57\ns_lshl_b32 s{sT}, s{sWV}, 11\ns_add_u32 s{sT}, s{sT}, {L_U}\nv_add_u32 v57, s{sT}, v57\nv_xor_b32 v58, 16, v57")
    k(f"s_lshl_b32 s{sT}, s{sC}, 1\ns_lshr_b32 s{sT2}, s{sRB}, 4\ns_add_u32 s{sT}, s{sT}, s{sT2}\ns_lshl_b32 s{sT}, s{sT}, 2\ns_add_u32 s{sT}, s{sT}, {C_ST}\ns_lshl_b32 s{sO1}, s{sT}, 7")
    k(f"s_lshl_b32 s{sT}, s{sC}, 2\ns_add_u32 s{sT}, s{sT}, s{sWV}\ns_lshl_b32 s{sT}, s{sT}, 16\ns_lshl_b32 s{sT2}, s{sRB}, 7\ns_add_u32 s{sT}, s{sT}, s{sT2}\ns_add_u32 s{sO2}, s{sT}, {ST}\ns_add_u32 s{sFC}, s{sO2}, 32768")
    k(f"s_lshl_b32 s{sT}, s{sWV}, 7\ns_add_u32 s{sO1}, s{sO1}, s{sT}\ns_mov_b32 s{sSP}, 0")
    l = k.lab("sp"); o = k.lab("spo")
    k(f"{l}:")
    k(f"buffer_load_dword v59, off, {S(sWS,4)}, s{sO1} sc1\ns_add_u32 s{sSP}, s{sSP}, 1")
    k.wait(vm="*")
    k(f"v_readfirstlane_b32 s{sT}, v59\ns_cmp_gt_u32 s{sSP}, {SPIN}\ns_cbranch_scc1 {o}\ns_cmp_lt_u32 s{sT}, 16\ns_cbranch_scc1 {l}")
    k(f"{o}:")
    k(f"buffer_load_dwordx4 {V(SE,4)}, v53, {S(sWS,4)}, s{sO2} offen sc1\nbuffer_load_dwordx4 {V(SE+4,4)}, v53, {S(sWS,4)}, s{sFC} offen sc1")
    XU, SU = 120, 136
    for i in range(8): k(f"v_lshlrev_b32 v{XU+2*i}, 16, v{XE+i}\nv_and_b32 v{XU+2*i+1}, 0xffff0000, v{XE+i}")
    k.wait(vm="*")
    stamp(k, cfg, 9)
    for i in (0, 1):
        for e in range(8): k(f"ds_write_b16{'_d16_hi' if e & 1 else ''} v{54+2*i}, v{SE+4*i+(e>>1)} offset:{128*e}")
    lds_signal(k, VSY, 0, VONE)
    lds_spin(k, VSY, 0, 8, 50, sT, sSP)
    k(f"ds_read_b128 {V(SE,4)}, v57\nds_read_b128 {V(SE+4,4)}, v58 offset:1024")
    k.wait(lg="*")
    for i in range(8): k(f"v_lshlrev_b32 v{SU+2*i}, 16, v{SE+i}\nv_and_b32 v{SU+2*i+1}, 0xffff0000, v{SE+i}")
    k(f"s_mov_b32 s{sT}, {fbits(-LOG2E)}\ns_setprio 3")
    k("s_barrier")
    stamp(k, cfg, 10)
    PR, T = 160, 224
    for p in (0, 1):
        for w in range(4):
            for e in (0, 1): k(f"ds_read_b128 {V(PR+32*p+8*w+4*e,4)}, v{RA+2*p+e} offset:{4096*w}", f"p{p}{w}")
    for p in (0, 1):
        b = PR + 32*p
        k.wait(lg=f"p{p}1")
        for i in range(4): k(f"v_pk_add_f32 {V(b+2*i,2)}, {V(b+2*i,2)}, {V(b+8+2*i,2)}")
        k.wait(lg=f"p{p}3")
        for i in range(4): k(f"v_pk_add_f32 {V(b+16+2*i,2)}, {V(b+16+2*i,2)}, {V(b+24+2*i,2)}")
        for i in range(4): k(f"v_pk_add_f32 {V(b+2*i,2)}, {V(b+2*i,2)}, {V(b+16+2*i,2)}")
        for i in range(8): k(f"v_mul_f32 v{T+i}, s{sT}, v{b+i}")
        for i in range(8): k(f"v_exp_f32 v{T+i}, v{T+i}")
        for i in range(4): k(f"v_pk_mul_f32 {V(b+2*i,2)}, {V(b+2*i,2)}, {V(SU+8*p+2*i,2)}")
        for i in range(4): k(f"v_pk_add_f32 {V(T+2*i,2)}, {V(T+2*i,2)}, 1.0 op_sel_hi:[1,0]")
        for i in range(8): k(f"v_rcp_f32 v{T+i}, v{T+i}")
        for i in range(4): k(f"v_pk_fma_f32 {V(b+2*i,2)}, {V(b+2*i,2)}, {V(T+2*i,2)}, {V(XU+8*p+2*i,2)}")
        for i in range(4): k(f"v_cvt_pk_bf16_f32 v{b+8+i}, v{b+2*i}, v{b+2*i+1}")
        k(f"buffer_store_dwordx4 {V(b+8,4)}, v{OA}, {S(sOUT,4)}, s{sG32 if p == 0 else sKAP} offen")
    stamp(k, cfg, 11)
    prof_dump(k, cfg)
    k("s_endpgm")

def gen_helper(k, cfg):
    k.reset()
    k("L_helper:")
    sHB, sT, sT2 = 62, 63, 64
    k(f"s_lshl_b32 s{sHB}, s{sXCD}, 2\ns_add_u32 s{sHB}, s{sHB}, s{sJ}")
    k(f"s_lshl_b32 s{sT}, s{sHB}, 3\ns_add_u32 s{sT}, s{sT}, s3\ns_mul_i32 s65, s{sT}, {8*896}")
    k(f"v_lshrrev_b32 v1, 3, v0\nv_and_b32 v2, 7, v0\nv_mul_u32_u24 v3, 896, v1\nv_lshl_add_u32 v3, v2, 4, v3")
    k(f"v_lshlrev_b32 v4, 4, v0\nv_and_b32 v5, 1, v0\nv_lshlrev_b32 v5, 12, v5\nv_lshrrev_b32 v6, 1, v0\nv_lshl_add_u32 v5, v6, 4, v5")
    for i in range(4): k(f"v_mov_b32 v{8+i}, 0")
    k(f"s_lshl_b32 s66, s{sHB}, 10\ns_lshl_b32 s67, s{sHB}, 7\ns_add_u32 s67, s67, {STATS}")
    srd_const(k, sAUX, 256)
    k("s_waitcnt lgkmcnt(0)")
    srd(k, sX, pX); srd(k, sWS, pWS); srd(k, sAUX, pDBG)
    l0 = k.lab("h0")
    k(f"s_cmp_lg_u32 s3, 0\ns_cbranch_scc1 {l0}")
    k(f"buffer_store_dwordx4 v[8:11], v4, {S(sWS,4)}, s66 offen sc1")
    k(f"s_mov_b64 exec, 0xffff\nbuffer_store_dwordx4 v[8:11], v5, {S(sWS,4)}, s67 offen sc1\ns_mov_b64 exec, -1")
    k(f"{l0}:")
    k.reset()
    for i in range(7): k(f"buffer_load_dwordx4 {V(16+4*i,4)}, v3, {S(sX,4)}, s65 offen offset:{128*i}", f"x{i}")
    k("v_mov_b32 v12, 0\nv_mov_b32 v13, 0\ns_mov_b32 s68, 0x3f803f80")
    l1 = k.lab("h1")
    k(f"s_cmp_lg_u32 s3, 0\ns_cbranch_scc1 {l1}")
    k("s_waitcnt vmcnt(7)")
    sv = list(k.vm); atomic_inc(k, sAUX, "0", 14); k.vm = sv
    k("s_waitcnt vmcnt(1)")
    k(f"{l1}:")
    for i in range(7):
        k.wait(vm=f"x{i}")
        for e in range(4): k(f"v_dot2c_f32_bf16 v12, s68, v{16+4*i+e}\nv_dot2c_f32_bf16 v13, v{16+4*i+e}, v{16+4*i+e}")
    for m in ("quad_perm:[1,0,3,2]", "quad_perm:[2,3,0,1]", "row_half_mirror"):
        for r in (12, 13): k(f"v_add_f32_dpp v{r}, v{r}, v{r} {m} row_mask:0xf bank_mask:0xf")
    k(f"v_mul_f32 v12, {fbits(1/448)}, v12\nv_mul_f32 v13, {fbits(1/448)}, v13\nv_fma_f32 v13, -v12, v12, v13\nv_max_f32 v13, 0, v13")
    k(f"v_cvt_pk_bf16_f32 v13, v13, v13\nv_and_b32 v13, 0xffff0000, v13\nv_add_f32 v13, {fbits(1e-5)}, v13\nv_cvt_pk_bf16_f32 v13, v13, v13\nv_and_b32 v13, 0xffff0000, v13")
    k(f"v_sqrt_f32 v13, v13\nv_lshl_add_u32 v14, s3, 3, v1\nv_lshlrev_b32 v14, 2, v14\nv_cvt_pk_bf16_f32 v12, v12, v13")
    k("ds_write_b32 v14, v12")
    k.wait(lg="*")
    k("s_barrier")
    k(f"s_cmp_lg_u32 s3, 0\ns_cbranch_scc1 L_hend")
    k("s_mov_b64 exec, 0xffff\nds_read_b128 v[8:11], v4")
    k.wait(lg="*")
    k(f"buffer_store_dwordx4 v[8:11], v5, {S(sWS,4)}, s67 offen sc1\ns_mov_b64 exec, -1")
    k("L_hend:")
    stamp(k, cfg, 1)
    prof_dump(k, cfg)
    k("L_end:")
    k("s_endpgm")

HEADER = open("recurrent_scan__ssm_conv_s4__dense_activation_mish__prompt.s.ref").read().split("; Override launch")[0] if __name__ == "__main__" else ""
def build(cfg, header=""):
    k = K()
    prologue(k, cfg); gen_G(k, cfg); gen_S(k, cfg); gen_helper(k, cfg)
    return file_wrap([(KNAME, 256, 512, L_TOT)], [kernel_wrap(KNAME, k.text(), 256)], header), k

if __name__ == "__main__":
    cfg = Cfg()
    for a in sys.argv[2:]:
        n, v = a.split("="); setattr(cfg, n, eval(v))
    txt, k = build(cfg, HEADER)
    open(sys.argv[1], "w").write(txt)
    print("instructions", len(k.ins), "padded states", k.padded)
```

```python
import sys, struct
from kasm import *
from asmlib import KNAME, kernel_wrap, file_wrap

def fbits(x): return "0x%08x" % struct.unpack("<I", struct.pack("<f", x))[0]
LOG2E = 1.4426950408889634

CNT, STATS, PROF, XT, ST, ACT, KDBG, WSN = 0, 0x8000, 0x10000, 0x100000, 0x300000, 0x500000, 0xD00000, 0x2000000
C_ACT, C_XT, C_ST = 0, 128, 184
L_X, L_W, L_E, L_KC, L_U, L_SY, L_TOT = 0, 49152, 98304, 114688, 149504, 162816, 163840
sX, sW1, sW2, sWS, sAUX, sOUT = 4, 8, 12, 16, 20, 24
pX, pARE, pLDT, pDSK, pW1, pB1, pW2, pOUT, pDBG, pWS = 28, 30, 42, 44, 48, 50, 52, 54, 56, 58
sXCD, sJ, sR, sC, sRB, sFC, sKAP = 60, 61, 62, 63, 64, 65, 66
SPIN = 200000

class Cfg:
    prof = False
    kdbg = False
    span = False
    thr = [60, 230, 320, 410, 500, 590, 680]
    pk = [False, False]
    xtat = 4
    depth = 8
    rot = True
    stpoll = ('s', 8)
    actsleep = 1

def srd(k, d, ptr): k(f"s_mov_b64 {S(d,2)}, {S(ptr,2)}")
def srd_const(k, d, n): k(f"s_mov_b32 s{d+2}, {n}\ns_mov_b32 s{d+3}, 0x20000")

def stamp(k, cfg, i, mode=1):
    if (cfg.span and i == 0) or cfg.prof and (int(cfg.prof) == mode or i == 0): k(f"s_memrealtime {S(78+2*i,2)}")
def cstamp(k, cfg, i, mode=2):
    if int(cfg.prof) == mode: k(f"s_memtime {S(78+2*i,2)}")
def prof_dump(k, cfg, last=False):
    if cfg.span == 2 and last:
        k("L_pad:\ns_memrealtime s[80:81]\ns_waitcnt lgkmcnt(0)\ns_sub_u32 s80, s80, s78\ns_cmp_lt_u32 s80, 4000\ns_cbranch_scc1 L_pad")
    if cfg.span == 1 and last:
        k("s_memrealtime s[80:81]\ns_waitcnt lgkmcnt(0)\ns_not_b32 s78, s78\nv_mov_b32 v4, s78\nv_mov_b32 v5, s80\ns_mov_b64 exec, 1")
        k("s_cmp_lg_u32 s3, 4\ns_cbranch_scc1 L_end")
        k(f"buffer_atomic_umax v4, off, {S(sAUX,4)}, 0 offset:8\nbuffer_atomic_umax v5, off, {S(sAUX,4)}, 0 offset:12")
    if not cfg.prof: return
    k("s_waitcnt lgkmcnt(0)")
    k("s_lshl_b32 s76, s2, 3\ns_add_u32 s76, s76, s3\ns_lshl_b32 s76, s76, 6\ns_add_u32 s76, s76, %d" % PROF)
    k("s_mov_b64 exec, 1")
    for q in range(3):
        for e in range(4): k(f"v_mov_b32 v{4+e}, s{78+2*(4*q+e)}")
        k(f"buffer_store_dwordx4 v[4:7], off, {S(sWS,4)}, s76 offset:{16*q}")
    k("s_mov_b64 exec, -1")

def atomic_inc(k, srdreg, soff, vt):
    k(f"v_mov_b32 v{vt}, 1\ns_mov_b64 exec, 1")
    k(f"buffer_atomic_add v{vt}, off, {S(srdreg,4)}, {soff} sc1", "atom")
    k("s_mov_b64 exec, -1")

def s_inc(k, ptr, soff, st):
    k(f"s_mov_b32 s{st}, 1\ns_atomic_add s{st}, {S(ptr,2)}, {soff}")
def s_poll(k, ptr, soffs, want, st, sc, sleep=0):
    l = k.lab("sp"); o = k.lab("spo")
    k(f"s_mov_b32 s{sc}, 0")
    k(f"{l}:")
    for i, so in enumerate(soffs): k(f"s_load_dword s{st+i}, {S(ptr,2)}, {so} glc")
    k(f"s_add_u32 s{sc}, s{sc}, 1")
    k.wait(lg="*")
    k(f"s_cmp_gt_u32 s{sc}, {SPIN}\ns_cbranch_scc1 {o}")
    for i in range(1, len(soffs)): k(f"s_min_u32 s{st}, s{st}, s{st+i}")
    if sleep: k(f"s_cmp_ge_u32 s{st}, {want}\ns_cbranch_scc1 {o}\ns_sleep {sleep}\ns_branch {l}")
    else: k(f"s_cmp_lt_u32 s{st}, {want}\ns_cbranch_scc1 {l}")
    k(f"{o}:")
def v_poll(k, load, vt, want, sc, sleep=0, first=True, tag="*"):
    l = k.lab("vp"); o = k.lab("vpo")
    if first: k(load)
    k(f"s_mov_b32 s{sc}, 0")
    k.wait(vm=tag)
    k(f"{l}:")
    k(f"v_cmp_gt_u32 vcc, {want}, v{vt}\ns_add_u32 s{sc}, s{sc}, 1\ns_cmp_gt_u32 s{sc}, {SPIN}\ns_cbranch_scc1 {o}\ns_cbranch_vccz {o}")
    if sleep: k(f"s_sleep {sleep}")
    sv = list(k.vm); k(load); k("s_waitcnt vmcnt(0)"); k.vm = sv
    k(f"s_branch {l}")
    k(f"{o}:")

def lds_signal(k, vaddr, off, vone):
    k("s_mov_b64 exec, 1")
    k(f"ds_add_u32 v{vaddr}, v{vone} offset:{off}", "sig")
    k("s_mov_b64 exec, -1")
def lds_spin(k, vaddr, off, want, vt, st, sc, sleep=0):
    l = k.lab("spin"); o = k.lab("spun")
    k(f"s_mov_b32 s{sc}, 0")
    k(f"{l}:")
    k(f"ds_read_b32 v{vt}, v{vaddr} offset:{off}\ns_add_u32 s{sc}, s{sc}, 1")
    k.wait(lg="*")
    k(f"v_readfirstlane_b32 s{st}, v{vt}\ns_cmp_gt_u32 s{sc}, {SPIN}\ns_cbranch_scc1 {o}")
    if sleep: k(f"s_cmp_ge_u32 s{st}, {want}\ns_cbranch_scc1 {o}\ns_sleep {sleep}\ns_branch {l}")
    else: k(f"s_cmp_lt_u32 s{st}, {want}\ns_cbranch_scc1 {l}")
    k(f"{o}:")

def prologue(k, cfg):
    stamp(k, cfg, 0)
    k("s_load_dwordx16 s[28:43], s[0:1], 0\ns_load_dwordx16 s[44:59], s[0:1], 64")
    k("s_cmp_ge_u32 s2, 256\ns_cbranch_scc1 L_end")
    k("v_lshrrev_b32 v1, 6, v0\nv_and_b32 v0, 63, v0\nv_readfirstlane_b32 s3, v1")
    k(f"s_and_b32 s{sXCD}, s2, 7\ns_lshr_b32 s{sJ}, s2, 3")
    srd_const(k, sWS, WSN); srd_const(k, sX, 1835008)
    k(f"s_cmp_lt_u32 s{sJ}, 4\ns_cbranch_scc1 L_helper")
    k(f"s_sub_u32 s{sJ}, s{sJ}, 4")
    k(f"s_cmp_ge_u32 s3, 4\ns_cbranch_scc1 L_S")

def main_ids(k, cfg):
    k(f"s_mul_i32 s{sR}, s{sJ}, 37\ns_lshr_b32 s{sR}, s{sR}, 8\ns_mul_i32 s{sC}, s{sR}, 7\ns_sub_u32 s{sC}, s{sJ}, s{sC}")
    k(f"s_lshr_b32 s{sRB}, s{sXCD}, 1\ns_lshl_b32 s{sRB}, s{sRB}, 2\ns_add_u32 s{sRB}, s{sRB}, s{sR}")
    k(f"s_and_b32 s{sFC}, s{sXCD}, 1\ns_mul_i32 s{sFC}, s{sFC}, 7\ns_add_u32 s{sFC}, s{sFC}, s{sC}")
    k(f"s_lshl_b32 s{sKAP}, s{sR}, 1\ns_add_u32 s{sKAP}, s{sKAP}, s{sC}")
    k(f"s_sub_u32 s67, s{sKAP}, 7\ns_cmp_ge_u32 s{sKAP}, 7\ns_cselect_b32 s{sKAP}, s67, s{sKAP}")

def gen_G(k, cfg):
    ACC, W2R, RING = 16, 80, 192
    FA, FB = 80, 96
    XD, WD, XA, WA, EXA, B1, STT, AUG, CS, SEL = 112, 116, 120, 124, 126, 128, 130, 132, 140, 144
    W2D, W2A, L16 = 1, 5, 9
    sXO, sWO, sM, sONE, sT, sT2, sA2, sB2, sSP = 68, 69, 70, 71, 72, 73, 74, 75, 77
    k("s_setprio 2")
    main_ids(k, cfg)
    srd_const(k, sW1, 1605632)
    k(f"v_lshrrev_b32 v10, 3, v0\nv_and_b32 v11, 7, v0\nv_lshrrev_b32 v12, 4, v0")
    k(f"v_xor_b32 v13, v11, v12\ns_lshl_b32 s{sT}, s3, 5\nv_add_u32 v14, s{sT}, v10\nv_mul_u32_u24 v14, 896, v14")
    k(f"v_lshl_add_u32 v{XD}, v13, 4, v14\nv_xor_b32 v13, 64, v{XD}")
    k(f"v_add_u32 v{XD+1}, 6144, v13\nv_add_u32 v{XD+2}, {2*6144}, v{XD}\nv_add_u32 v{XD+3}, {3*6144}, v13")
    k(f"v_and_b32 v13, 15, v0\nv_lshlrev_b32 v14, 2, v12\nv_xor_b32 v13, v13, v14")
    k(f"s_lshl_b32 s{sT}, s3, 4\nv_add_u32 v14, s{sT}, v12\nv_mul_u32_u24 v14, 3584, v14\nv_lshl_add_u32 v{WD}, v13, 4, v14")
    for n in (1,2,3): k(f"v_add_u32 v{WD+n}, {n*13312}, v{WD}")
    k(f"s_mul_i32 s{sXO}, s{sRB}, 114688\ns_lshl_b32 s{sT}, s{sKAP}, 7\ns_add_u32 s{sXO}, s{sXO}, s{sT}")
    k(f"s_mul_i32 s{sWO}, s{sKAP}, 229376\ns_lshl_b32 s{sT}, s{sFC}, 8\ns_add_u32 s{sWO}, s{sWO}, s{sT}")
    k(f"s_lshl_b32 s{sM}, s3, 12")
    def dma_list(c):
        sl = c % 3; out = []
        out.append([f"s_add_u32 m0, s{sM}, {L_X + sl*16384}", f"buffer_load_dwordx4 v{XD}, {S(sX,4)}, s{sXO} offen lds"])
        for n in (1,2,3): out.append([f"buffer_load_dwordx4 v{XD+n}, {S(sX,4)}, s{sXO} offen offset:{n*1024} lds"])
        out.append([f"s_add_u32 m0, s{sM}, {L_W + sl*16384}", f"s_add_u32 s{sXO}, s{sXO}, 128", f"buffer_load_dwordx4 v{WD}, {S(sW1,4)}, s{sWO} offen lds"])
        for n in (1,2,3): out.append([f"buffer_load_dwordx4 v{WD+n}, {S(sW1,4)}, s{sWO} offen offset:{n*1024} lds"])
        if c < 6:
            out[-1] += [f"s_add_u32 s{sWO}, s{sWO}, 229376", f"s_cmp_ge_u32 s{sWO}, 1605632", f"s_cselect_b32 s{sT}, 896, 0",
                        f"s_cselect_b32 s{sT2}, 1605632, 0", f"s_sub_u32 s{sXO}, s{sXO}, s{sT}", f"s_sub_u32 s{sWO}, s{sWO}, s{sT2}"]
        return [(g, f"c{c}") for g in out]
    k("s_waitcnt lgkmcnt(0)")
    srd(k, sX, pX); srd(k, sW1, pW1)
    for g, t in dma_list(0): k("\n".join(g), t)
    srd(k, sWS, pWS); srd(k, sW2, pW2); srd(k, sAUX, pB1); srd_const(k, sW2, 1605632); srd_const(k, sAUX, 3584)
    k(f"s_lshl_b32 s{sT}, s3, 6\ns_lshl_b32 s{sT2}, s{sFC}, 8\ns_add_u32 s{sT}, s{sT}, s{sT2}\ns_xor_b32 s{sT2}, s{sT}, 64")
    k(f"v_lshrrev_b32 v15, 5, v0\nv_and_b32 v14, 31, v0\nv_lshlrev_b32 v13, 1, v14\nv_lshl_add_u32 v13, v15, 12, v13")
    k(f"buffer_load_ushort v{AUG+5}, v13, {S(sAUX,4)}, s{sT} offen\nbuffer_load_ushort v{AUG+7}, v13, {S(sAUX,4)}, s{sT2} offen", "b1")
    for g, t in dma_list(1): k("\n".join(g), t)
    k(f"s_and_b32 s{sT}, s3, 1\ns_lshl_b32 s{sT}, s{sT}, 13")
    k(f"v_bfe_u32 v13, v0, 1, 3\nv_xor_b32 v13, v13, v15\nv_lshlrev_b32 v13, 4, v13\nv_lshl_add_u32 v13, v14, 7, v13\nv_add_u32 v{XA}, s{sT}, v13")
    for s in (1,2,3): k(f"v_xor_b32 v{XA+s}, {32*s}, v{XA}")
    k(f"v_bfe_u32 v10, v0, 2, 2\nv_and_b32 v11, 3, v0\nv_lshlrev_b32 v11, 3, v11\nv_and_b32 v12, 16, v0\nv_lshl_add_u32 v11, v12, 1, v11")
    k(f"v_xor_b32 v12, s3, v10\nv_lshl_add_u32 v12, v12, 6, v11")
    k(f"v_lshl_add_u32 v13, v15, 3, v10\nv_lshl_add_u32 v12, v13, 8, v12\nv_add_u32 v{WA}, {L_W}, v12\nv_xor_b32 v{WA+1}, 64, v{WA}")
    k(f"v_lshl_add_u32 v13, v15, 2, v10\nv_lshl_add_u32 v12, v13, 7, v11\nv_lshrrev_b32 v13, 1, v10\nv_lshl_add_u32 v12, v13, 6, v12")
    k(f"v_add_u32 v{W2A}, s{sM}, v12\nv_xor_b32 v{W2A+1}, 64, v{W2A}\nv_add_u32 v{W2A+2}, 65536, v{W2A}\nv_add_u32 v{W2A+3}, 65536, v{W2A+1}")
    k(f"v_lshrrev_b32 v10, 3, v0\nv_and_b32 v11, 7, v0\nv_bfe_u32 v12, v0, 4, 1\nv_lshlrev_b32 v12, 2, v12\nv_xor_b32 v11, v11, v12")
    k(f"v_mul_u32_u24 v10, 896, v10\nv_lshl_add_u32 v{W2D}, v11, 4, v10")
    for n in (1,2,3): k(f"v_add_u32 v{W2D+n}, {n*6144}, v{W2D}")
    k(f"v_lshlrev_b32 v{L16}, 4, v0")
    k(f"v_and_b32 v10, 15, v0\nv_lshrrev_b32 v11, 4, v0\nv_lshlrev_b32 v11, 2, v11\nv_mov_b32 v12, 0xbf80bf80\nv_cmp_eq_u32 vcc, v10, v11")
    k(f"s_add_u32 s{sT}, s{sM}, {L_E}\nv_lshl_add_u32 v{EXA}, v0, 2, s{sT}\nv_xor_b32 v{EXA+1}, 0x1000, v{EXA}")
    for e in range(4): k(f"v_cndmask_b32 v{SEL+e}, 0, v12, vcc")
    k(f"v_bfe_u32 v10, v0, 2, 1\nv_lshlrev_b32 v10, 12, v10\nv_bfe_u32 v11, v0, 3, 2\nv_lshl_add_u32 v10, v11, 4, v10\nv_and_b32 v11, 3, v0\nv_lshl_add_u32 v10, v11, 2, v10")
    k(f"s_mul_i32 s{sA2}, s3, {448*896}\ns_lshl_b32 s{sT}, s{sC}, 7\ns_add_u32 s{sA2}, s{sA2}, s{sT}\ns_add_u32 s{sB2}, s{sA2}, {224*896}")
    if cfg.rot:
        k(f"s_bitcmp1_b32 s{sC}, 0\ns_cselect_b32 s{sT}, s{sB2}, s{sA2}\ns_cselect_b32 s{sB2}, s{sA2}, s{sB2}\ns_mov_b32 s{sA2}, s{sT}")
    LOC = [1, 4, 2, 5, 0, 3, 6]
    def w2dma(b):
        base = sA2 if b < 7 else sB2
        out = [[f"s_add_u32 m0, s{sM}, {LOC[b%7]*16384}", f"s_add_u32 s{sT}, s{base}, {(b%7)*32*896}", f"buffer_load_dwordx4 v{W2D}, {S(sW2,4)}, s{sT} offen lds"]]
        for n in (1,2,3): out.append([f"buffer_load_dwordx4 v{W2D+n}, {S(sW2,4)}, s{sT} offen offset:{n*1024} lds"])
        return [(g, f"w2_{b}") for g in out]
    def w2read(step, dst_step):
        b = step // 2; loc = LOC[b % 7]*16384 + (step & 1)*2048; hi = 2 if loc >= 65536 else 0; loc -= hi*32768
        out = []
        for d2 in (0, 1):
            for rd in (0, 1):
                out.append(f"ds_read_b64_tr_b16 {V(W2R + dst_step*8 + d2*4 + rd*2, 2)}, v{W2A+hi+d2} offset:{loc + rd*1024}")
        return out
    def reads(c, s, F):
        sl = (c % 3)*16384
        for tt in (0, 1): k(f"ds_read_b128 {V(F+4*tt,4)}, v{XA+s} offset:{sl + tt*4096}", f"f{F}")
        for ft in (0, 1):
            for rd in (0, 1): k(f"ds_read_b64_tr_b16 {V(F+8+4*ft+2*rd,2)}, v{WA+ft} offset:{sl + s*4096 + rd*1024}", f"f{F}")
    first = [True]
    def group(F, fill, tail=None):
        k(f"v_mfma_f32_16x16x32_bf16 {V(CS,4)}, {V(SEL,4)}, {V(F+8,4)}, {'0' if first[0] else V(CS,4)}")
        for m in range(4):
            ft, tt = m >> 1, m & 1; a = ACC + 16*m
            k(f"v_mfma_f32_32x32x16_bf16 {V(a,16)}, {V(F+8+4*ft,4)}, {V(F+4*tt,4)}, {'0' if first[0] else V(a,16)}")
            if m in (0, 2) and fill:
                g, t = fill[m//2]; k("\n".join(g), t)
            if tail: tail(m)
        first[0] = False
    sSTO = 67
    k(f"s_lshl_b32 s{sSTO}, s{sRB}, 1\ns_and_b32 s{sT}, s3, 1\ns_add_u32 s{sSTO}, s{sSTO}, s{sT}")
    k(f"s_lshl_b32 s76, s{sSTO}, 7\ns_add_u32 s76, s76, {STATS}")
    statl = [f"buffer_load_dword v{STT}, v10, {S(sWS,4)}, s76 offen sc1", f"buffer_load_dword v{STT+1}, v10, {S(sWS,4)}, s76 offen offset:64 sc1"]
    stamp(k, cfg, 1)
    for c in range(7):
        k.wait(vm=f"c{c}")
        k("s_barrier")
        if c == 0: stamp(k, cfg, 2); cstamp(k, cfg, 10)
        stamp(k, cfg, 1+c, 2)
        if c <= 4: d = dma_list(c+2)
        elif c == 5: d = w2dma(0) + w2dma(1); k("\n".join(statl), "st")
        else: d = w2dma(2) + w2dma(3)
        reads(c, 0, FA)
        if c > 0: group(FB, d[0:2])
        else:
            for g, t in d[0:2]: k("\n".join(g), t)
        reads(c, 1, FB); k.wait(lg=f"f{FA}"); group(FA, d[2:4])
        reads(c, 2, FA); k.wait(lg=f"f{FB}"); group(FB, d[4:6])
        reads(c, 3, FB); k.wait(lg=f"f{FA}"); group(FA, d[6:8])
        k.wait(lg="*")
    RC, RL, T, P = 192, 196, 200, 208
    def tail(m):
        if m == 0:
            k.wait(vm="st")
            l = k.lab("st"); o = k.lab("sto")
            k(f"s_mov_b32 s{sSP}, 0")
            k(f"{l}:")
            k(f"v_min_u32 v11, v{STT}, v{STT+1}\ns_add_u32 s{sSP}, s{sSP}, 1\nv_cmp_eq_u32 vcc, 0, v11\ns_cmp_gt_u32 s{sSP}, {SPIN}\ns_cbranch_scc1 {o}\ns_cbranch_vccz {o}")
            sv = list(k.vm); k("\n".join(statl)); k("s_waitcnt vmcnt(0)"); k.vm = sv
            k(f"s_branch {l}")
            k(f"{o}:")
        if m == 1:
            k(f"v_cvt_pk_bf16_f32 v11, v{CS}, v{CS}\nv_and_b32 v11, 0xffff0000, v11\nv_sub_f32 v11, v{CS}, v11")
            k(f"v_cvt_pk_bf16_f32 v{AUG+4}, v{CS}, v11\nds_write_b32 v{EXA+1}, v{AUG+4}\ns_mov_b32 s{sT}, 0x01000100")
        if m >= 2:
            tt = m - 2
            k(f"v_and_b32 v11, 0xffff0000, v{STT+tt}\nv_rcp_f32 v{RC+2*tt}, v11")
            k(f"v_perm_b32 v{AUG+2*tt}, v{STT+tt}, v{STT+tt}, s{sT}\nv_lshrrev_b32 v{AUG+2*tt+1}, 16, v{STT+tt}")
            k(f"v_mul_f32 v{RC+2*tt+1}, -2.0, v{RC+2*tt}\nv_mul_f32 v{RL+tt}, {fbits(LOG2E)}, v{RC+2*tt}")
        if m == 2:
            k.wait(lg="*")
            k("s_barrier")
            k(f"ds_read_b32 v{AUG+6}, v{EXA}")
            stamp(k, cfg, 3); stamp(k, cfg, 8, 2); cstamp(k, cfg, 11)
    group(FB, [], tail)
    for m in range(4):
        ft, tt = m >> 1, m & 1; a = ACC + 16*m
        if m == 2: k.wait(lg="*")
        k(f"v_mfma_f32_32x32x8_bf16 {V(a,16)}, {V(AUG+4+2*ft,2)}, {V(AUG+2*tt,2)}, {V(a,16)}")
    k(f"s_lshl_b32 s{sXO}, s{sFC}, 1\ns_lshr_b32 s{sT}, s3, 1\ns_add_u32 s{sXO}, s{sXO}, s{sT}")
    k(f"s_mul_i32 s{sWO}, s{sXO}, 37\ns_lshr_b32 s{sWO}, s{sWO}, 8\ns_lshl_b32 s{sT}, s{sSTO}, 2\ns_add_u32 s{sWO}, s{sWO}, s{sT}\ns_lshl_b32 s{sWO}, s{sWO}, 7")
    k(f"s_lshl_b32 s{sXO}, s{sXO}, 13\ns_mul_i32 s{sT}, s{sSTO}, 229376\ns_add_u32 s{sXO}, s{sXO}, s{sT}\ns_add_u32 s{sXO}, s{sXO}, {ACT}\ns_and_b32 s{sT}, s{sM}, 4096\ns_add_u32 s{sXO}, s{sXO}, s{sT}\ns_xor_b32 s76, s{sXO}, 4096")
    k(f"v_mov_b32 v12, {L_SY}\nv_mov_b32 v13, 1")
    stamp(k, cfg, 4)
    for g in range(8):
        m, sp = g >> 1, g & 1; ft, tt = m >> 1, m & 1; a = ACC + 16*m + 8*sp; p = P + 4*(g & 1)
        d = w2dma(4 + g//2) if g in (1, 3, 5) else [([], None)]*4
        for i in range(4): k(f"v_pk_mul_f32 {V(T+2*i,2)}, {V(a+2*i,2)}, {V(RL,2)} op_sel:[0,{tt}] op_sel_hi:[1,{tt}]")
        k("\n".join(d[0][0]), d[0][1])
        for i in range(8): k(f"v_exp_f32 v{T+i}, v{T+i}")
        k("\n".join(d[1][0]), d[1][1])
        for i in range(4): k(f"v_pk_add_f32 {V(T+2*i,2)}, {V(T+2*i,2)}, 1.0 op_sel_hi:[1,0]")
        for i in range(4): k(f"v_pk_fma_f32 {V(T+2*i,2)}, {V(T+2*i,2)}, {V(T+2*i,2)}, 1.0 op_sel_hi:[1,1,0]")
        k("\n".join(d[2][0]), d[2][1])
        for i in range(8): k(f"v_rcp_f32 v{T+i}, v{T+i}")
        k("\n".join(d[3][0]), d[3][1])
        for i in range(4): k(f"v_pk_fma_f32 {V(T+2*i,2)}, {V(T+2*i,2)}, {V(RC+2*tt,2)}, {V(RC+2*tt,2)} op_sel:[0,1,0] op_sel_hi:[1,1,0]")
        for i in range(4): k(f"v_pk_mul_f32 {V(T+2*i,2)}, {V(T+2*i,2)}, {V(a+2*i,2)}")
        for i in range(4): k(f"v_cvt_pk_bf16_f32 v{p+i}, v{T+2*i}, v{T+2*i+1}")
        k(f"buffer_store_dwordx4 {V(p,4)}, v{L16}, {S(sWS,4)}, s{sXO if ft == 0 else 76} offen offset:{sp*2048 + tt*1024} sc1", "act")
    lds_signal(k, 12, 12, 13)
    stamp(k, cfg, 5)
    k("s_setprio 0")
    def stage(b):
        k.wait(vm=f"w2_{b}")
        for s in (0, 1):
            for r in w2read(2*b+s, 2*b+s): k(r, "w2r")
        if b < 2: k.wait(lg="*")
        else:
            k("ds_read_b32 v11, v12"); k.wait(lg="w2r")
        for g, t in w2dma(7+b): k("\n".join(g), t)
    stage(0); stage(1)
    k.wait(vm="act")
    s_inc(k, pWS, f"s{sWO}", sONE)
    stamp(k, cfg, 6)
    for b in range(2, 7): stage(b)
    k(f"s_lshl_b32 s{sSTO}, s{sXCD}, 2\ns_add_u32 s{sSTO}, s{sSTO}, s{sR}")
    k(f"s_lshl_b32 s{sWO}, s{sSTO}, 2\ns_add_u32 s{sWO}, s{sWO}, s3\ns_lshl_b32 s{sWO}, s{sWO}, 7")
    k(f"s_mul_i32 s{sA2}, s{sSTO}, 229376\ns_mul_i32 s{sT}, s3, 57344\ns_add_u32 s{sA2}, s{sA2}, s{sT}\ns_add_u32 s{sA2}, s{sA2}, {ACT}\ns_add_u32 s{sB2}, s{sA2}, 28672")
    if cfg.rot:
        k(f"s_bitcmp1_b32 s{sC}, 0\ns_cselect_b32 s{sT}, s{sB2}, s{sA2}\ns_cselect_b32 s{sB2}, s{sA2}, s{sB2}\ns_mov_b32 s{sA2}, s{sT}")
    stamp(k, cfg, 7)
    s_poll(k, pWS, [f"s{sWO}"], 7, sT, sSP, cfg.actsleep)
    k("s_setprio 2")
    stamp(k, cfg, 8)
    D = cfg.depth
    def actload(s):
        out = []
        if s % 2 == 0: out.append(f"s_add_u32 s{sT}, s{sA2 if s < 14 else sB2}, {(s % 14)*2048}")
        for tt in (0, 1): out.append(f"buffer_load_dwordx4 {V(RING + (s % D)*8 + 4*tt, 4)}, v{L16}, {S(sWS,4)}, s{sT} offen offset:{(s & 1)*2048 + tt*1024} sc1")
        return out
    for s in range(D): k("\n".join(actload(s)), f"a{s}")
    DA = [1, 2, 3, 4, 10, 11, 12, 13]
    k(f"v_and_b32 v14, 15, v0\nv_lshrrev_b32 v15, 5, v0\nv_xor_b32 v15, v15, v14\nv_lshlrev_b32 v15, 4, v15\nv_lshl_add_u32 v15, v14, 8, v15")
    k(f"v_bfe_u32 v14, v0, 4, 1\nv_lshl_add_u32 v15, v14, 14, v15\nv_add_u32 v{DA[0]}, s{sM}, v15")
    for i in range(1, 8): k(f"v_xor_b32 v{DA[i]}, {32*i}, v{DA[0]}")
    for s in range(28):
        k.wait(vm=f"a{s}", lg=f"r{s}" if s >= 14 else None)
        w = W2R + (s % 14)*8; x = RING + (s % D)*8
        rd = w2read(s + 13, s - 1) if 1 <= s <= 14 else []
        ld = actload(s - 1 + D) if (s >= 1 and s - 1 + D < 28) else []
        for m in range(4):
            d2, tt = m >> 1, m & 1; a = ACC + 16*m
            k(f"v_mfma_f32_32x32x16_bf16 {V(a,16)}, {V(w+4*d2,4)}, {V(x+4*tt,4)}, {'0' if s == 0 else V(a,16)}")
            if m == 0 and ld: k("\n".join(ld[:-1]), f"a{s-1+D}")
            if m == 2 and ld: k(ld[-1], f"a{s-1+D}")
            if m in (1, 3) and rd: k("\n".join(rd[m-1:m+1]), f"r{s+13}")
    stamp(k, cfg, 9)
    for m in range(4):
        d2, tt = m >> 1, m & 1
        for jj in range(4): k(f"ds_write_b128 v{DA[4*d2+jj]}, {V(ACC+16*m+4*jj,4)} offset:{tt*32768}")
    k.wait(lg="*")
    k("s_barrier")
    stamp(k, cfg, 10)
    prof_dump(k, cfg)
    k("s_endpgm")

def cmul(k, z, a, w, t, pk=True):
    if not pk:
        assert z != a and z != w
        k(f"v_mul_f32 v{z}, v{a}, v{w}\nv_mul_f32 v{z+1}, v{a+1}, v{w}\nv_fma_f32 v{z}, -v{a+1}, v{w+1}, v{z}\nv_fmac_f32 v{z+1}, v{a}, v{w+1}")
        return
    k(f"v_pk_mul_f32 {V(t,2)}, {V(a,2)}, {V(w,2)} op_sel_hi:[1,0]")
    k(f"v_pk_fma_f32 {V(z,2)}, {V(a,2)}, {V(w,2)}, {V(t,2)} op_sel:[1,1,0] op_sel_hi:[0,1,1] neg_lo:[0,1,0]")

def gen_S(k, cfg):
    k.reset()
    k("L_S:")
    sWV, sCP, sT, sT2, sHH, sCS, sG32, sSP, sO1, sO2 = 67, 68, 69, 70, 71, 72, 73, 74, 75, 76
    PRM, GA = 2, 8
    k("s_setprio 3")
    k(f"s_mul_i32 s{sCP}, s{sXCD}, 28\ns_add_u32 s{sCP}, s{sCP}, s{sJ}")
    k(f"s_lshl_b32 s{sT}, s{sCP}, 2\ns_add_u32 s{sT2}, s{sT}, s3\ns_sub_u32 s{sT2}, s{sT2}, 4\ns_lshl_b32 s{sT2}, s{sT2}, 8")
    k(f"v_lshl_add_u32 v1, v0, 2, s{sT2}")
    k("s_waitcnt lgkmcnt(0)")
    for i in range(6): k(f"global_load_dword v{PRM+i}, v1, {S(pARE+2*i,2)}", "prm")
    k(f"s_load_dword s{sO1}, {S(pLDT,2)}, s{sT}\ns_load_dword s{sO2}, {S(pDSK,2)}, s{sT}")
    k("s_setprio 0")
    main_ids(k, cfg)
    k(f"s_sub_u32 s{sWV}, s3, 4\ns_and_b32 s{sHH}, s3, 1\ns_bfe_u32 s{sCS}, s3, 0x10001")
    srd(k, sX, pX); srd(k, sWS, pWS); srd(k, sAUX, pDBG); srd(k, sOUT, pOUT); srd_const(k, sAUX, 256); srd_const(k, sOUT, 1835008)
    ZERO, VSY, VONE = 30, 34, 35
    for i in range(4): k(f"v_mov_b32 v{ZERO+i}, 0")
    k(f"v_mov_b32 v{VSY}, {L_SY}\nv_mov_b32 v{VONE}, 1")
    k(f"v_lshlrev_b32 v36, 3, v0\ns_mul_i32 s{sT}, s{sWV}, 3328\ns_add_u32 s{sT}, s{sT}, {L_U}\nv_lshl_add_u32 v38, v0, 2, s{sT}")
    k(f"ds_write_b32 v38, v{ZERO}\nds_write_b128 v{VSY}, {V(ZERO,4)}\nds_write_b128 v{VSY}, {V(ZERO,4)} offset:16")
    k(f"s_lshl_b32 s{sT}, s{sHH}, 10\ns_sub_u32 s{sT}, 2047, s{sT}\nv_sub_u32 v36, s{sT}, v36")
    k(f"s_mul_i32 s{sT}, s{sCS}, {2*3328//4}\ns_add_u32 s{sT}, s{sT}, {(L_U+256)//4 - 0x4300}")
    k(f"v_cvt_f32_i32 v37, v36\nv_add_u32 v36, s{sT}, v36\ns_sub_u32 s{sT2}, s{sT}, 1\nv_mov_b32 v38, s{sT2}\ns_add_u32 s{sT}, s{sT}, 128\ns_mov_b32 s{sT2}, {fbits(128.0)}")
    idx = [(p, i) for p in (0, 1) for i in range(11)]
    for n in range(0, 22, 2):
        for e in (0, 1):
            p, i = idx[n+e]; dl = 512*p + i
            k(f"v_subrev_f32 v{40+e}, {fbits(float(dl))}, v37\nv_max_f32 v{40+e}, s{sT2}, v{40+e}")
            k(f"v_subrev_u32 v{42+e}, {dl}, v36\nv_med3_i32 v{42+e}, v{42+e}, v38, s{sT}")
        k(f"v_cvt_pk_bf16_f32 v40, v40, v41\nv_lshrrev_b32 v41, 16, v40\nv_and_b32 v40, 0xffff, v40")
        k(f"v_add_lshl_u32 v{GA+n}, v40, v42, 2\nv_add_lshl_u32 v{GA+n+1}, v41, v43, 2")
    KW, KR, XTA, XTS, PA, DSK, DT = 36, 37, 38, 40, 41, 45, 46
    k(f"s_mul_i32 s{sT}, s{sWV}, 8704\ns_add_u32 s{sT}, s{sT}, {L_KC}\nv_lshl_add_u32 v{KW}, v0, 2, s{sT}")
    KWG = [KW] + list(range(229, 236))
    for i in range(1, 8): k(f"v_add_u32 v{KWG[i]}, {1088*i}, v{KW}")
    k(f"v_and_b32 v50, 31, v0\nv_lshrrev_b32 v51, 5, v0\nv_mul_u32_u24 v52, 272, v50\nv_lshl_add_u32 v52, v51, 4, v52\nv_add_u32 v{KR}, s{sT}, v52")
    k(f"s_mul_i32 s{sT}, s{sWV}, 3328\ns_add_u32 s{sT}, s{sT}, {L_U+256}")
    k(f"v_lshlrev_b32 v52, 5, v50\nv_lshl_add_u32 v52, v51, 4, v52\nv_add_u32 v{PA}, s{sT}, v52")
    k(f"v_sub_u32 v52, 4, v51\nv_lshlrev_b32 v52, v52, v50\nv_lshl_add_u32 v52, v51, 9, v52\nv_add_u32 v{PA+1}, s{sT}, v52")
    k(f"v_mul_u32_u24 v52, 248, v51\nv_add_u32 v{PA+2}, v52, v{PA+1}")
    k(f"v_lshlrev_b32 v52, 2, v50\nv_lshl_add_u32 v52, v51, 9, v52\nv_add_u32 v{PA+3}, s{sT}, v52")
    k(f"s_and_b32 s{sT}, s{sXCD}, 1\ns_lshl_b32 s{sG32}, s{sKAP}, 1\ns_add_u32 s{sG32}, s{sG32}, s{sT}\ns_lshl_b32 s{sT}, s{sT}, 2")
    k(f"v_lshrrev_b32 v50, 4, v0\nv_bfe_u32 v51, v0, 2, 2\nv_lshl_add_u32 v52, v50, 3, v51")
    k(f"v_bfe_u32 v53, v0, 1, 1\nv_or_b32 v53, s{sT}, v53\nv_bfe_u32 v54, v52, 1, 3\nv_xor_b32 v53, v53, v54\nv_lshlrev_b32 v53, 4, v53")
    k(f"v_lshl_add_u32 v53, v52, 7, v53\nv_and_b32 v54, 1, v0\nv_lshl_add_u32 v53, v54, 3, v53\ns_lshl_b32 s{sT}, s{sWV}, 12\nv_add_u32 v{XTA}, s{sT}, v53\nv_xor_b32 v{XTA+1}, 32, v{XTA}")
    k(f"v_bfe_u32 v53, v0, 1, 3\nv_lshlrev_b32 v53, 13, v53\nv_lshl_add_u32 v53, v50, 5, v53\nv_lshl_add_u32 v{XTS}, v54, 4, v53")
    k("s_waitcnt lgkmcnt(0)"); k.lg = []
    k(f"s_lshl_b32 s{sT}, s{sCS}, 4\ns_lshr_b32 s{sO1}, s{sO1}, s{sT}\ns_lshl_b32 s{sO1}, s{sO1}, 16\ns_lshr_b32 s{sO2}, s{sO2}, s{sT}\ns_lshl_b32 s{sO2}, s{sO2}, 16")
    k(f"s_cmp_eq_u32 s{sHH}, 0\ns_cselect_b32 s{sO2}, s{sO2}, 0")
    Lhi = struct.unpack("<f", struct.pack("<f", LOG2E))[0]; Llo = LOG2E - Lhi
    k(f"v_mov_b32 v50, {fbits(Lhi)}\nv_mul_f32 v51, s{sO1}, v50\nv_fma_f32 v52, s{sO1}, v50, -v51\nv_mov_b32 v53, {fbits(Llo)}\nv_fmac_f32 v52, s{sO1}, v53")
    k(f"v_exp_f32 v51, v51\nv_mul_f32 v52, {fbits(0.6931471805599453)}, v52\nv_fmac_f32 v51, v51, v52\nv_cvt_pk_bf16_f32 v51, v51, v51\nv_and_b32 v{DT+2}, 0xffff0000, v51")
    k(f"v_mul_f32 v{DT}, v50, v{DT+2}\nv_mul_f32 v{DT+1}, 0.15915494, v{DT+2}")
    k(f"v_mov_b32 v50, s{sO2}\nv_cmp_eq_u32 vcc, 0, v0\nv_cndmask_b32 v{DSK}, 0, v50, vcc")
    k(f"s_mov_b32 s{sO1}, {fbits(8.0)}\ns_mov_b32 s{sO2}, {fbits(256.0)}")
    k(f"s_lshl_b32 s{sT}, s{sG32}, 17\ns_lshl_b32 s{sT2}, s{sRB}, 9\ns_add_u32 s{sT}, s{sT}, s{sT2}\ns_lshl_b32 s{sT2}, s{sWV}, 7\ns_add_u32 s{sT}, s{sT}, s{sT2}\ns_add_u32 s{pX}, s{sT}, {XT}\ns_add_u32 s{pX+1}, s{pX}, 65536")
    stamp(k, cfg, 1)
    XR = 56
    clrl = f"buffer_load_dword v49, off, {S(sAUX,4)}, 0 sc1"
    st = dict(nb=0, base=len(k.ins), pend=None)
    def xt_store():
        k.wait(lg="xt")
        for g in (0, 1): k(f"buffer_store_dwordx4 {V(XR+4*g,4)}, v{XTS}, {S(sWS,4)}, s{pX+g} offen sc1", "xts")
        st["pend"] = None
    def bar():
        if st["pend"] is not None: xt_store()
        if st["nb"] == cfg.xtat:
            v_poll(k, clrl, 49, 32, sSP, first=False)
            k(f"s_lshl_b32 s{sT}, s{sG32}, 2\ns_add_u32 s{sT}, s{sT}, s{sWV}\ns_add_u32 s{sT}, s{sT}, {C_XT}\ns_lshl_b32 s{sT}, s{sT}, 7")
            k.wait(vm="*")
            atomic_inc(k, sWS, f"s{sT}", 50)
        stamp(k, cfg, 1+st["nb"], 2)
        k("s_barrier"); st["nb"] += 1
        if st["nb"] == cfg.xtat - 1: k(clrl)
        if st["nb"] == 1:
            k(f"ds_read_b64_tr_b16 {V(XR,2)}, v{XTA}\nds_read_b64_tr_b16 {V(XR+2,2)}, v{XTA+1} offset:512", "xt")
            k(f"ds_read_b64_tr_b16 {V(XR+4,2)}, v{XTA+1}\nds_read_b64_tr_b16 {V(XR+6,2)}, v{XTA} offset:512", "xt")
            st["pend"] = len(k.ins) + 16
    def tick():
        if st["pend"] is not None and len(k.ins) >= st["pend"]: xt_store()
        if st["nb"] < len(cfg.thr) and len(k.ins) - st["base"] >= cfg.thr[st["nb"]]: bar()
    assert 2 <= cfg.xtat <= 5
    AB, BB, CB, X1, X8, X256, W1, W8, W256, W2, W4, TT, PK = 64, 66, 68, 70, 72, 74, 76, 78, 80, 82, 84, 86, 96
    ZA, ZB = [88, 90], [92, 94]
    VF, UF, KA = 100, 132, 164
    k.wait(vm="prm")
    stamp(k, cfg, 2)
    def put(z, row, neg, last=False):
        p = PK + row % 4
        if z is not None: k(f"v_cvt_pk_bf16_f32 v{p}, v{z}, {'-' if neg else ''}v{z+1}")
        if row & 1: k(f"ds_write2_b32 v{KWG[row//4]}, v{p-1}, v{p} offset0:{68*((row-1)%4)} offset1:{68*(row%4)}")
        elif last: k(f"ds_write_b32 v{KW}, v{p} offset:{272*row}")
        tick()
    def kmfma(p):
        k.wait(lg="uf")
        for s in range(8): k(f"v_mfma_f32_32x32x16_bf16 {V(KA,16)}, {V(UF+4*s,4)}, {V(VF+4*s,4)}, {'0' if (p == 0 and s == 0) else V(KA,16)}")
    for p in (0, 1):
        pk = cfg.pk[p]
        for i in range(6):
            k(f"v_lshlrev_b32 v{AB+i}, 16, v{PRM+i}" if p == 0 else f"v_and_b32 v{AB+i}, 0xffff0000, v{PRM+i}")
        k(f"v_mul_f32 v{X1}, v{AB}, v{DT}\nv_mul_f32 v{X1+1}, v{AB+1}, v{DT+1}")
        k(f"v_mul_f32 v{X8}, s{sO1}, v{X1}\nv_mul_f32 v{X8+1}, s{sO1}, v{X1+1}\nv_mul_f32 v{X256}, s{sO2}, v{X1}\nv_mul_f32 v{X256+1}, s{sO2}, v{X1+1}")
        for x in (X8, X1, X256): k(f"v_fract_f32 v{x+1}, v{x+1}")
        for x, w in ((X8, W8), (X1, W1), (X256, W256)):
            k(f"v_exp_f32 v{x}, v{x}\nv_cos_f32 v{w}, v{x+1}\nv_sin_f32 v{w+1}, v{x+1}")
        k(f"v_mov_b32 v{PK}, 0x3f80")
        for x, w in ((X8, W8), (X1, W1), (X256, W256)):
            k(f"v_mul_f32 v{w}, v{w}, v{x}\nv_mul_f32 v{w+1}, v{w+1}, v{x}")
        mf = []
        if p == 1:
            k.wait(lg="uf")
            mf = [f"v_mfma_f32_32x32x16_bf16 {V(KA,16)}, {V(UF+4*s,4)}, {V(VF+4*s,4)}, {'0' if s == 0 else V(KA,16)}" for s in range(8)]
            if pk: k("\n".join(mf)); mf = []
        put(W8, 1, False)
        prev = W8
        for b in range(2, 32):
            z = ZA[b & 1]
            cmul(k, z, prev, W8, TT, pk); prev = z
            if mf and b % 2 == 0: k(mf.pop(0))
            put(z, b, False)
        for s in range(8): k(f"ds_read_b128 {V(VF+4*s,4)}, v{KR} offset:{32*s}", "vf")
        cmul(k, ZB[0], BB, CB, TT, pk)
        k(f"v_mul_f32 v{ZB[0]}, v{ZB[0]}, v{DT+2}\nv_mul_f32 v{ZB[0]+1}, v{ZB[0]+1}, v{DT+2}")
        put(ZB[0], 0, True)
        cmul(k, W2, W1, W1, TT, pk); cmul(k, W4, W2, W2, TT, pk)
        ib = 0; prev = ZB[0]
        for a in range(1, 21):
            if a in (8, 12, 14) or a >= 16:
                cmul(k, ZB[1-ib], ZB[ib], W256, TT, pk); ib = 1 - ib; prev = ZB[ib]
            else:
                z = ZA[a & 1]
                cmul(k, z, prev, W1 if a < 8 else (W2 if a < 12 else W4), TT, pk); prev = z
            put(prev, a, True, a == 20)
        for s in range(8): k(f"ds_read_b128 {V(UF+4*s,4)}, v{KR} offset:{32*s}", "uf")
    st["kgen_len"] = len(k.ins) - st["base"]
    kmfma(1)
    EW, CA, CBA, UW = 64, 65, 66, 67
    k(f"s_mul_i32 s{sT}, s{sCS}, 16640\ns_add_u32 s{sT}, s{sT}, {L_KC}\ns_lshl_b32 s{sT2}, s{sHH}, 11\ns_add_u32 s{sT2}, s{sT2}, s{sT}\nv_lshl_add_u32 v{EW}, v0, 4, s{sT2}")
    k(f"v_and_b32 v50, 3, v0\nv_sub_u32 v50, 3, v50\nv_mul_u32_u24 v50, 4160, v50\nv_bfe_u32 v51, v0, 2, 2\nv_lshlrev_b32 v51, 3, v51\nv_sub_u32 v50, v50, v51")
    k(f"v_lshrrev_b32 v51, 4, v0\nv_lshl_add_u32 v50, v51, 4, v50\ns_lshl_b32 s{sT2}, s{sHH}, 8\ns_sub_u32 s{sO1}, s{sT}, s{sT2}\ns_add_u32 s{sO1}, s{sO1}, 280\nv_add_u32 v{CA}, s{sO1}, v50")
    k(f"v_bfe_u32 v52, v0, 1, 2\nv_mul_u32_u24 v52, 4160, v52\nv_and_b32 v53, 1, v0\nv_lshl_add_u32 v52, v53, 4, v52\nv_add_u32 v54, s{sT}, v52")
    k(f"s_mul_i32 s{sT}, s{sCS}, 4576\ns_add_u32 s{sT}, s{sT}, {L_U+256}\ns_sub_u32 s{sT}, s{sT}, s{sT2}")
    k(f"v_and_b32 v50, 15, v0\nv_lshlrev_b32 v50, 5, v50\nv_lshl_add_u32 v50, v51, 4, v50\nv_add_u32 v{CBA}, s{sT}, v50")
    k(f"v_add_f32 v{KA}, v{KA}, v{DSK}")
    k(f"ds_write_b128 v{PA}, {V(KA,4)}\nds_write_b64 v{PA+1}, {V(KA+4,2)} offset:1024\nds_write_b64 v{PA+2}, {V(KA+6,2)} offset:1032")
    for e in range(4): k(f"ds_write_b32 v{PA+3}, v{KA+8+e} offset:{2048+128*e}")
    lds_signal(k, VSY, 0, VONE)
    stamp(k, cfg, 3)
    while st["nb"] < 8: bar()
    lds_spin(k, VSY, 0, 4, 50, sT, sSP)
    G0, XV, CP = 100, 148, 164
    for n in range(22): k(f"ds_read2st64_b32 {V(G0+2*n,2)}, v{GA+n} offset1:13", f"g{n//11}")
    k(f"ds_write_b128 v54, {V(ZERO,4)} offset:4096")
    for p in (0, 1):
        k.wait(lg=f"g{p}")
        if p == 1: lds_signal(k, VSY, 4, VONE)
        for i in range(11): k(f"v_add_f32 v{XV+i}, v{G0+22*p+2*i}, v{G0+22*p+2*i+1}")
        for sg in range(4):
            c = CP + 16*p + 4*sg
            for jj in range(4): k(f"v_cvt_pk_bf16_f32 v{c+jj}, v{XV+sg+2*jj}, v{XV+sg+2*jj+1}")
            k(f"ds_write_b128 v{EW}, {V(c,4)} offset:{sg*4160 + p*1024}")
    stamp(k, cfg, 4)
    SV, XW, CN = 100, 108, 116
    k(f"s_lshr_b32 s{sT}, s{sCP}, 4\ns_lshl_b32 s{sT}, s{sT}, 2\ns_add_u32 s{sT}, s{sT}, {C_XT}\ns_lshl_b32 s{sT2}, s{sT}, 7\nv_and_b32 v50, 3, v0\nv_lshlrev_b32 v50, 7, v50")
    k(f"v_lshl_add_u32 v51, s{sWV}, 6, v0\nv_lshlrev_b32 v52, 5, v51\nv_lshlrev_b32 v51, 4, v51\nv_add_u32 v{UW}, {L_U+480}, v51")
    k(f"s_mov_b32 s{sO1}, {STATS}\ns_mov_b32 s{sO2}, {STATS+4096}")
    stl = f"buffer_load_dwordx4 {V(SV,4)}, v51, {S(sWS,4)}, s{sO1} offen sc1\nbuffer_load_dwordx4 {V(SV+4,4)}, v51, {S(sWS,4)}, s{sO2} offen sc1"
    xcl = f"buffer_load_dword v{CN}, v50, {S(sWS,4)}, s{sT2} offen sc1"
    k(xcl, "xc")
    k(stl, "st")
    v_poll(k, xcl, CN, 16, sSP, 2, first=False, tag="xc")
    k(f"s_lshl_b32 s{sT}, s{sCP}, 13\ns_add_u32 s{sT}, s{sT}, {XT}\ns_mov_b32 s{sSP}, 0")
    k(f"buffer_load_dwordx4 {V(XW,4)}, v52, {S(sWS,4)}, s{sT} offen sc1\nbuffer_load_dwordx4 {V(XW+4,4)}, v52, {S(sWS,4)}, s{sT} offen offset:16 sc1")
    k.wait(vm="st")
    l = k.lab("xp"); o = k.lab("xpo")
    k(f"{l}:")
    k(f"v_min_u32 v{CN}, v{SV}, v{SV+1}\ns_add_u32 s{sSP}, s{sSP}, 1")
    for i in range(1, 4): k(f"v_min3_u32 v{CN}, v{CN}, v{SV+2*i}, v{SV+2*i+1}")
    k(f"v_cmp_eq_u32 vcc, 0, v{CN}\ns_cmp_gt_u32 s{sSP}, {SPIN}\ns_cbranch_scc1 {o}\ns_cbranch_vccz {o}")
    k(stl); k("s_waitcnt vmcnt(0)")
    k(f"s_branch {l}")
    k(f"{o}:")
    stamp(k, cfg, 5)
    MM, RR, XF = 120, 128, 136
    for i in range(8): k(f"v_and_b32 v{RR+i}, 0xffff0000, v{SV+i}\nv_lshlrev_b32 v{MM+i}, 16, v{SV+i}")
    for i in range(8): k(f"v_rcp_f32 v{RR+i}, v{RR+i}")
    lds_spin(k, VSY, 4, 4, 50, sT, sSP)
    k(f"v_min_u32 v50, 29, v0\nv_lshlrev_b32 v50, 4, v50\nv_add_u32 v50, {L_U}, v50")
    k(f"ds_write_b128 v50, {V(ZERO,4)}\nds_write_b128 v50, {V(ZERO,4)} offset:4576")
    k.wait(vm="*")
    for ch in (0, 1):
        for i in range(4): k(f"v_lshlrev_b32 v{XF+2*i}, 16, v{XW+4*ch+i}\nv_and_b32 v{XF+2*i+1}, 0xffff0000, v{XW+4*ch+i}")
        for i in range(4): k(f"v_pk_add_f32 {V(XF+2*i,2)}, {V(XF+2*i,2)}, {V(MM+2*i,2)} neg_lo:[0,1] neg_hi:[0,1]")
        for i in range(4): k(f"v_pk_mul_f32 {V(XF+2*i,2)}, {V(XF+2*i,2)}, {V(RR+2*i,2)}")
        for i in range(4): k(f"v_cvt_pk_bf16_f32 v{XW+4*ch+i}, v{XF+2*i}, v{XF+2*i+1}")
        k(f"ds_write_b128 v{UW}, {V(XW+4*ch,4)} offset:{4576*ch}")
    lds_signal(k, VSY, 12, VONE)
    Y, FS = 68, [100, 164]
    def a_reads(r, F):
        return [[f"ds_read_b64 {V(F+4*a+2*e,2)}, v{CA} offset:{(7-a)*512 + (3-r)*64 + 8*e}" for e in (0, 1)] for a in range(8)]
    def b_reads(r, F):
        return [[f"ds_read_b128 {V(F+32+4*c,4)}, v{CBA} offset:{c*512 + (3-r)*64}"] for c in range(8)]
    lds_spin(k, VSY, 12, 8, 50, sT, sSP, 1)
    stamp(k, cfg, 6)
    for g in a_reads(0, FS[0]): k("\n".join(g))
    for c, g in enumerate(b_reads(0, FS[0])): k("\n".join(g), f"b{c}")
    for r in range(4):
        F = FS[r & 1]; nxt = []
        if r < 3:
            A_, B_ = a_reads(r+1, FS[(r+1) & 1]), b_reads(r+1, FS[(r+1) & 1])
            nxt = [x for g in A_ for x in g] + [x for g in B_ for x in g]
        n = 0
        if r > 0: k.wait(lg="*")
        if r == 3: lds_signal(k, VSY, 8, VONE)
        for c in range(8):
            if r == 0: k.wait(lg=f"b{c}")
            for a in range(8 - c):
                J = a + c
                k(f"v_mfma_f32_16x16x32_bf16 {V(Y+4*J,4)}, {V(F+4*a,4)}, {V(F+32+4*c,4)}, {'0' if (r == 0 and c == 0) else V(Y+4*J,4)}")
                if n < len(nxt) and not (r == 0 and c == 0): k(nxt[n]); n += 1
        assert n == len(nxt)
    stamp(k, cfg, 7)
    EX, YS = 100, 116
    k(f"s_lshl_b32 s{sT}, s{sWV}, 12\ns_add_u32 s{sT}, s{sT}, {L_KC}\nv_lshl_add_u32 v51, v0, 4, s{sT}\nv_xor_b32 v52, 0x1000, v51")
    k(f"v_bfe_u32 v53, v0, 4, 1\nv_lshlrev_b32 v53, 9, v53\nv_and_b32 v54, 15, v0\nv_lshl_add_u32 v53, v54, 5, v53\nv_lshrrev_b32 v54, 5, v0\nv_lshl_add_u32 v53, v54, 4, v53")
    k(f"v_lshl_add_u32 v55, s{sCS}, 2, v{VSY}")
    lds_spin(k, VSY, 8, 4, 50, sT, sSP)
    l1 = k.lab("h1"); l2 = k.lab("hj")
    k(f"s_cmp_eq_u32 s{sHH}, 1\ns_cbranch_scc1 {l1}")
    for i in range(4): k(f"ds_write_b128 v51, {V(Y+16+4*i,4)} offset:{1024*i}")
    k(f"s_branch {l2}")
    k(f"{l1}:")
    for i in range(4): k(f"ds_write_b128 v51, {V(Y+4*i,4)} offset:{1024*i}")
    k("s_nop 1")
    for i in range(8): k(f"v_pk_mul_f32 {V(Y+2*i,2)}, {V(Y+16+2*i,2)}, 1.0 op_sel_hi:[1,0]")
    k(f"{l2}:")
    lds_signal(k, 55, 16, VONE)
    k(f"s_lshl_b32 s{sO1}, s{sCP}, 1\ns_add_u32 s{sO1}, s{sO1}, s{sCS}")
    k(f"s_lshr_b32 s{sT}, s{sO1}, 6\ns_lshl_b32 s{sT}, s{sT}, 1\ns_add_u32 s{sT}, s{sT}, s{sHH}\ns_lshl_b32 s{sT}, s{sT}, 2\ns_bfe_u32 s{sT2}, s{sO1}, 0x20004")
    k(f"s_add_u32 s{sT}, s{sT}, s{sT2}\ns_add_u32 s{sT}, s{sT}, {C_ST}\ns_lshl_b32 s{sO2}, s{sT}, 7")
    k(f"s_lshl_b32 s{sO1}, s{sO1}, 12\ns_lshl_b32 s{sT}, s{sHH}, 11\ns_add_u32 s{sO1}, s{sO1}, s{sT}\ns_add_u32 s{sO1}, s{sO1}, {ST}")
    lds_spin(k, 55, 16, 2, 50, sT, sSP)
    for i in range(4): k(f"ds_read_b128 {V(EX+4*i,4)}, v52 offset:{1024*i}", f"e{i}")
    for i in range(4):
        k.wait(lg=f"e{i}")
        for e in (0, 1): k(f"v_pk_add_f32 {V(Y+4*i+2*e,2)}, {V(Y+4*i+2*e,2)}, {V(EX+4*i+2*e,2)}")
        for e in (0, 1): k(f"v_cvt_pk_bf16_f32 v{YS+2*i+e}, v{Y+4*i+2*e}, v{Y+4*i+2*e+1}")
    for g in (0, 1):
        for e in (0, 1): k(f"v_permlane16_swap_b32 v{YS+4*g+e}, v{YS+4*g+2+e}")
        k(f"buffer_store_dwordx4 {V(YS+4*g,4)}, v53, {S(sWS,4)}, s{sO1} offen offset:{1024*g} sc1", "sts")
    XE, SE, OA, RA = 100, 108, 64, 68
    k(f"s_lshl_b32 s{sRB}, s{sXCD}, 2\ns_add_u32 s{sRB}, s{sRB}, s{sR}")
    k(f"v_lshrrev_b32 v50, 3, v0\nv_and_b32 v51, 7, v0\nv_mul_u32_u24 v52, 896, v50\nv_lshl_add_u32 v{OA}, v51, 4, v52")
    k(f"s_lshl_b32 s{sT}, s{sRB}, 2\ns_add_u32 s{sT}, s{sT}, s{sWV}\ns_mul_i32 s{sG32}, s{sT}, {16*896}\ns_lshl_b32 s{sT}, s{sC}, 7\ns_add_u32 s{sG32}, s{sG32}, s{sT}\ns_add_u32 s{sKAP}, s{sG32}, {8*896}")
    k.wait(vm="sts")
    s_inc(k, pWS, f"s{sO2}", sHH)
    stamp(k, cfg, 8)
    k(f"buffer_load_dwordx4 {V(XE,4)}, v{OA}, {S(sX,4)}, s{sG32} offen\nbuffer_load_dwordx4 {V(XE+4,4)}, v{OA}, {S(sX,4)}, s{sKAP} offen")
    k(f"v_lshlrev_b32 v52, 1, v51\nv_xor_b32 v52, v52, v50\nv_lshlrev_b32 v52, 4, v52\nv_lshl_add_u32 v52, v50, 8, v52\ns_lshl_b32 s{sT}, s{sWV}, 14")
    k(f"v_add_u32 v{RA}, s{sT}, v52\nv_xor_b32 v{RA+1}, 16, v{RA}\nv_xor_b32 v{RA+2}, 0x880, v{RA}\nv_xor_b32 v{RA+3}, 0x890, v{RA}")
    k(f"v_lshlrev_b32 v53, 12, v50\nv_lshl_add_u32 v53, v51, 4, v53")
    k(f"s_lshl_b32 s{sT}, s{sWV}, 1\nv_xor_b32 v54, s{sT}, v51\nv_lshlrev_b32 v54, 4, v54\nv_lshl_add_u32 v54, v51, 10, v54\nv_lshl_add_u32 v54, v50, 1, v54\nv_add_u32 v54, {L_U}, v54\nv_xor_b32 v56, 16, v54")
    k(f"v_xor_b32 v57, s{sT}, v51\nv_lshlrev_b32 v57, 4, v57\nv_lshl_add_u32 v57, v50, 7, v57\ns_lshl_b32 s{sT}, s{sWV}, 11\ns_add_u32 s{sT}, s{sT}, {L_U}\nv_add_u32 v57, s{sT}, v57\nv_xor_b32 v58, 16, v57")
    k(f"s_lshl_b32 s{sT}, s{sC}, 1\ns_lshr_b32 s{sT2}, s{sRB}, 4\ns_add_u32 s{sT}, s{sT}, s{sT2}\ns_lshl_b32 s{sT}, s{sT}, 2\ns_add_u32 s{sT}, s{sT}, {C_ST}\ns_lshl_b32 s{sO1}, s{sT}, 7")
    k(f"s_lshl_b32 s{sT}, s{sC}, 2\ns_add_u32 s{sT}, s{sT}, s{sWV}\ns_lshl_b32 s{sT}, s{sT}, 16\ns_lshl_b32 s{sT2}, s{sRB}, 7\ns_add_u32 s{sT}, s{sT}, s{sT2}\ns_add_u32 s{sO2}, s{sT}, {ST}\ns_add_u32 s{sFC}, s{sO2}, 32768")
    k(f"s_lshl_b32 s{sT}, s{sWV}, 7\ns_add_u32 s{sO1}, s{sO1}, s{sT}\ns_mov_b32 s{sSP}, 0")
    if cfg.stpoll[0] == "s": s_poll(k, pWS, [f"s{sO1}"], 16, sT, sSP, cfg.stpoll[1])
    else: v_poll(k, f"buffer_load_dword v59, off, {S(sWS,4)}, s{sO1} sc1", 59, 16, sSP, cfg.stpoll[1])
    k(f"buffer_load_dwordx4 {V(SE,4)}, v53, {S(sWS,4)}, s{sO2} offen sc1\nbuffer_load_dwordx4 {V(SE+4,4)}, v53, {S(sWS,4)}, s{sFC} offen sc1")
    XU, SU = 120, 136
    k("s_waitcnt vmcnt(2)")
    for i in range(8): k(f"v_lshlrev_b32 v{XU+2*i}, 16, v{XE+i}\nv_and_b32 v{XU+2*i+1}, 0xffff0000, v{XE+i}")
    k.wait(vm="*")
    stamp(k, cfg, 9)
    for i in (0, 1):
        for e in range(8): k(f"ds_write_b16{'_d16_hi' if e & 1 else ''} v{54+2*i}, v{SE+4*i+(e>>1)} offset:{128*e}")
    lds_signal(k, VSY, 24, VONE)
    lds_spin(k, VSY, 24, 4, 50, sT, sSP)
    k(f"ds_read_b128 {V(SE,4)}, v57\nds_read_b128 {V(SE+4,4)}, v58 offset:1024")
    k.wait(lg="*")
    for i in range(8): k(f"v_lshlrev_b32 v{SU+2*i}, 16, v{SE+i}\nv_and_b32 v{SU+2*i+1}, 0xffff0000, v{SE+i}")
    k(f"s_mov_b32 s{sT}, {fbits(-LOG2E)}\ns_setprio 3")
    k("s_barrier")
    stamp(k, cfg, 10)
    PR, T = 160, 224
    for p in (0, 1):
        for w in range(4):
            for e in (0, 1): k(f"ds_read_b128 {V(PR+32*p+8*w+4*e,4)}, v{RA+2*p+e} offset:{4096*w}", f"p{p}{w}")
    for p in (0, 1):
        b = PR + 32*p
        k.wait(lg=f"p{p}1")
        for i in range(4): k(f"v_pk_add_f32 {V(b+2*i,2)}, {V(b+2*i,2)}, {V(b+8+2*i,2)}")
        k.wait(lg=f"p{p}3")
        for i in range(4): k(f"v_pk_add_f32 {V(b+16+2*i,2)}, {V(b+16+2*i,2)}, {V(b+24+2*i,2)}")
        for i in range(4): k(f"v_pk_add_f32 {V(b+2*i,2)}, {V(b+2*i,2)}, {V(b+16+2*i,2)}")
        for i in range(8): k(f"v_mul_f32 v{T+i}, s{sT}, v{b+i}")
        for i in range(8): k(f"v_exp_f32 v{T+i}, v{T+i}")
        for i in range(4): k(f"v_pk_mul_f32 {V(b+2*i,2)}, {V(b+2*i,2)}, {V(SU+8*p+2*i,2)}")
        for i in range(4): k(f"v_pk_add_f32 {V(T+2*i,2)}, {V(T+2*i,2)}, 1.0 op_sel_hi:[1,0]")
        for i in range(8): k(f"v_rcp_f32 v{T+i}, v{T+i}")
        for i in range(4): k(f"v_pk_fma_f32 {V(b+2*i,2)}, {V(b+2*i,2)}, {V(T+2*i,2)}, {V(XU+8*p+2*i,2)}")
        for i in range(4): k(f"v_cvt_pk_bf16_f32 v{b+8+i}, v{b+2*i}, v{b+2*i+1}")
        k(f"buffer_store_dwordx4 {V(b+8,4)}, v{OA}, {S(sOUT,4)}, s{sG32 if p == 0 else sKAP} offen")
    stamp(k, cfg, 11)
    prof_dump(k, cfg, True)
    k("s_endpgm")
    k.kgen_len = st["kgen_len"]

def gen_helper(k, cfg):
    k.reset()
    k("L_helper:")
    sHB, sT, sT2 = 62, 63, 64
    k(f"s_lshl_b32 s{sHB}, s{sXCD}, 2\ns_add_u32 s{sHB}, s{sHB}, s{sJ}")
    k(f"s_lshl_b32 s{sT}, s{sHB}, 3\ns_add_u32 s{sT}, s{sT}, s3\ns_mul_i32 s65, s{sT}, {8*896}")
    k(f"v_lshrrev_b32 v1, 3, v0\nv_and_b32 v2, 7, v0\nv_mul_u32_u24 v3, 896, v1\nv_lshl_add_u32 v3, v2, 4, v3")
    k(f"v_lshlrev_b32 v4, 4, v0\nv_and_b32 v5, 1, v0\nv_lshlrev_b32 v5, 12, v5\nv_lshrrev_b32 v6, 1, v0\nv_lshl_add_u32 v5, v6, 4, v5")
    for i in range(4): k(f"v_mov_b32 v{8+i}, 0")
    k(f"s_lshl_b32 s66, s{sHB}, 10\ns_lshl_b32 s67, s{sHB}, 7\ns_add_u32 s67, s67, {STATS}")
    srd_const(k, sAUX, 256)
    k("s_waitcnt lgkmcnt(0)")
    srd(k, sX, pX); srd(k, sWS, pWS); srd(k, sAUX, pDBG)
    l0 = k.lab("h0")
    k(f"s_cmp_lg_u32 s3, 0\ns_cbranch_scc1 {l0}")
    k(f"buffer_store_dwordx4 v[8:11], v4, {S(sWS,4)}, s66 offen sc1")
    k(f"s_mov_b64 exec, 0xffff\nbuffer_store_dwordx4 v[8:11], v5, {S(sWS,4)}, s67 offen sc1\ns_mov_b64 exec, -1")
    k(f"{l0}:")
    k.reset()
    for i in range(7): k(f"buffer_load_dwordx4 {V(16+4*i,4)}, v3, {S(sX,4)}, s65 offen offset:{128*i}", f"x{i}")
    k("v_mov_b32 v12, 0\nv_mov_b32 v13, 0\ns_mov_b32 s68, 0x3f803f80")
    l1 = k.lab("h1")
    k(f"s_cmp_lg_u32 s3, 0\ns_cbranch_scc1 {l1}")
    k("s_waitcnt vmcnt(7)")
    sv = list(k.vm); atomic_inc(k, sAUX, "0", 14); k.vm = sv
    k("s_waitcnt vmcnt(1)")
    k(f"{l1}:")
    for i in range(7):
        k.wait(vm=f"x{i}")
        for e in range(4): k(f"v_dot2c_f32_bf16 v12, s68, v{16+4*i+e}\nv_dot2c_f32_bf16 v13, v{16+4*i+e}, v{16+4*i+e}")
    for m in ("quad_perm:[1,0,3,2]", "quad_perm:[2,3,0,1]", "row_half_mirror"):
        for r in (12, 13): k(f"v_add_f32_dpp v{r}, v{r}, v{r} {m} row_mask:0xf bank_mask:0xf")
    k(f"v_mul_f32 v12, {fbits(1/448)}, v12\nv_mul_f32 v13, {fbits(1/448)}, v13\nv_fma_f32 v13, -v12, v12, v13\nv_max_f32 v13, 0, v13")
    k(f"v_cvt_pk_bf16_f32 v13, v13, v13\nv_and_b32 v13, 0xffff0000, v13\nv_add_f32 v13, {fbits(1e-5)}, v13\nv_cvt_pk_bf16_f32 v13, v13, v13\nv_and_b32 v13, 0xffff0000, v13")
    k(f"v_sqrt_f32 v13, v13\nv_lshl_add_u32 v14, s3, 3, v1\nv_lshlrev_b32 v14, 2, v14\nv_cvt_pk_bf16_f32 v12, v12, v13")
    k("ds_write_b32 v14, v12")
    k.wait(lg="*")
    k("s_barrier")
    k(f"s_cmp_lg_u32 s3, 0\ns_cbranch_scc1 L_hend")
    k("s_mov_b64 exec, 0xffff\nds_read_b128 v[8:11], v4")
    k.wait(lg="*")
    k(f"buffer_store_dwordx4 v[8:11], v5, {S(sWS,4)}, s67 offen sc1\ns_mov_b64 exec, -1")
    k("L_hend:")
    stamp(k, cfg, 1)
    prof_dump(k, cfg)
    k("L_end:")
    k("s_endpgm")

HEADER = open("recurrent_scan__ssm_conv_s4__dense_activation_mish__prompt.s.ref").read().split("; Override launch")[0] if __name__ == "__main__" else ""
def build(cfg, header=""):
    k = K()
    prologue(k, cfg); gen_G(k, cfg); gen_S(k, cfg); gen_helper(k, cfg)
    return file_wrap([(KNAME, 256, 512, L_TOT)], [kernel_wrap(KNAME, k.text(), 256)], header), k

if __name__ == "__main__":
    cfg = Cfg()
    for a in sys.argv[2:]:
        n, v = a.split("="); setattr(cfg, n, eval(v))
    txt, k = build(cfg, HEADER)
    open(sys.argv[1], "w").write(txt)
    print("instructions", len(k.ins), "padded states", k.padded, "kgen", k.kgen_len)
```

```python
import sys, struct
from kasm import *
from asmlib import KNAME, kernel_wrap, file_wrap

def fbits(x): return "0x%08x" % struct.unpack("<I", struct.pack("<f", x))[0]
LOG2E = 1.4426950408889634

AUGW = 0xA000
CNT, STATS, PROF, XT, ST, ACT, KDBG, WSN = 0, 0x8000, 0x10000, 0x100000, 0x300000, 0x500000, 0xD00000, 0x2000000
C_ACT, C_XT, C_ST = 0, 128, 184
L_WS, L_XS = [81920, 98304, 0], [49152, 65536, 16384]
L_GB, L_KC, L_U, L_SY, L_TOT = 49152, 14336, 0, 13312, 163840
L_PART, L_PCH, L_GS = 84480, 6864, L_U + 9216
sX, sW1, sW2, sWS, sAUX, sOUT = 4, 8, 12, 16, 20, 24
pX, pARE, pLDT, pDSK, pW1, pB1, pW2, pOUT, pDBG, pWS = 28, 30, 42, 44, 48, 50, 52, 54, 56, 58
sXCD, sJ, sR, sC, sRB, sFC, sKAP = 60, 61, 62, 63, 64, 65, 66
SPIN = 200000

class Cfg:
    prof = False
    kdbg = False
    span = False
    cyc = False
    depth = 8
    rot = True
    stpoll = ('s', 8)
    actsleep = 1
    c1at = [14, 22, 30, 38]
    statstep = 20
    pace2 = 20
    pace = 7
    w2pf = 1
    codepf = True
    outmod = ""
    pbar = True
    flagat = 2
    cut = [3, 4]
    early = 0
    touch = False
    xtearly = True
    gc1early = True
    w2from = 22
    rdlag = 4
    pwgap = 0
    gblk = 4
    x_noside = False
    x_nodma = False
    x_nobar = False
    x_nokw = False
    x_acthit = False
    x_nos2 = False
    ssleep = 0
    stat = [0,1,2,3,4,5,6,7]
    actmod = 'sc1'
    x_noc01 = False
    kbar = False
    kdelay = False
    kprio = 0
    denorm = 3

def srd(k, d, ptr): k(f"s_mov_b64 {S(d,2)}, {S(ptr,2)}")
def srd_const(k, d, n): k(f"s_mov_b32 s{d+2}, {n}\ns_mov_b32 s{d+3}, 0x20000")

def stamp(k, cfg, i, mode=1):
    if cfg.cyc and cfg.prof and (mode == int(cfg.prof) or i == 0):
        k(f"s_memtime {S(78+2*i,2)}"); return
    if (cfg.span and i == 0) or cfg.prof and (int(cfg.prof) == mode or i == 0): k(f"s_memrealtime {S(78+2*i,2)}")
def cstamp(k, cfg, i, mode=2):
    if int(cfg.prof) == mode: k(f"s_memtime {S(78+2*i,2)}")
def prof_dump(k, cfg, last=False):
    if cfg.span == 2 and last:
        k("L_pad:\ns_memrealtime s[80:81]\ns_waitcnt lgkmcnt(0)\ns_sub_u32 s80, s80, s78\ns_cmp_lt_u32 s80, 4000\ns_cbranch_scc1 L_pad")
    if cfg.span == 1 and last:
        k("s_memrealtime s[80:81]\ns_waitcnt lgkmcnt(0)\ns_not_b32 s78, s78\nv_mov_b32 v4, s78\nv_mov_b32 v5, s80\ns_mov_b64 exec, 1")
        k("s_cmp_lg_u32 s3, 4\ns_cbranch_scc1 L_end")
        k(f"buffer_atomic_umax v4, off, {S(sAUX,4)}, 0 offset:8\nbuffer_atomic_umax v5, off, {S(sAUX,4)}, 0 offset:12")
    if not cfg.prof: return
    k("s_waitcnt lgkmcnt(0)")
    k("s_lshl_b32 s76, s2, 3\ns_add_u32 s76, s76, s3\ns_lshl_b32 s76, s76, 6\ns_add_u32 s76, s76, %d" % PROF)
    k("s_mov_b64 exec, 1")
    for q in range(3):
        for e in range(4): k(f"v_mov_b32 v{4+e}, s{78+2*(4*q+e)}")
        k(f"buffer_store_dwordx4 v[4:7], off, {S(sWS,4)}, s76 offset:{16*q}")
    k("s_mov_b64 exec, -1")

def atomic_inc(k, srdreg, soff, vt):
    k(f"v_mov_b32 v{vt}, 1\ns_mov_b64 exec, 1")
    k(f"buffer_atomic_add v{vt}, off, {S(srdreg,4)}, {soff} sc1", "atom")
    k("s_mov_b64 exec, -1")

def s_inc(k, ptr, soff, st):
    k(f"s_mov_b32 s{st}, 1\ns_atomic_add s{st}, {S(ptr,2)}, {soff}")
def s_poll(k, ptr, soffs, want, st, sc, sleep=0):
    l = k.lab("sp"); o = k.lab("spo")
    k(f"s_mov_b32 s{sc}, 0")
    k(f"{l}:")
    for i, so in enumerate(soffs): k(f"s_load_dword s{st+i}, {S(ptr,2)}, {so} glc")
    k(f"s_add_u32 s{sc}, s{sc}, 1")
    k.wait(lg="*")
    k(f"s_cmp_gt_u32 s{sc}, {SPIN}\ns_cbranch_scc1 {o}")
    for i in range(1, len(soffs)): k(f"s_min_u32 s{st}, s{st}, s{st+i}")
    if sleep: k(f"s_cmp_ge_u32 s{st}, {want}\ns_cbranch_scc1 {o}\ns_sleep {sleep}\ns_branch {l}")
    else: k(f"s_cmp_lt_u32 s{st}, {want}\ns_cbranch_scc1 {l}")
    k(f"{o}:")
def v_poll(k, load, vt, want, sc, sleep=0, first=True, tag="*"):
    l = k.lab("vp"); o = k.lab("vpo")
    if first: k(load)
    k(f"s_mov_b32 s{sc}, 0")
    k.wait(vm=tag)
    k(f"{l}:")
    k(f"v_cmp_gt_u32 vcc, {want}, v{vt}\ns_add_u32 s{sc}, s{sc}, 1\ns_cmp_gt_u32 s{sc}, {SPIN}\ns_cbranch_scc1 {o}\ns_cbranch_vccz {o}")
    if sleep: k(f"s_sleep {sleep}")
    sv = list(k.vm); k(load); k("s_waitcnt vmcnt(0)"); k.vm = sv
    k(f"s_branch {l}")
    k(f"{o}:")

def lds_signal(k, vaddr, off, vone):
    k("s_mov_b64 exec, 1")
    k(f"ds_add_u32 v{vaddr}, v{vone} offset:{off}", "sig")
    k("s_mov_b64 exec, -1")
def lds_spin(k, vaddr, off, want, vt, st, sc, sleep=0):
    l = k.lab("spin"); o = k.lab("spun")
    k(f"s_mov_b32 s{sc}, 0")
    k(f"{l}:")
    k(f"ds_read_b32 v{vt}, v{vaddr} offset:{off}\ns_add_u32 s{sc}, s{sc}, 1")
    k.wait(lg="*")
    k(f"v_readfirstlane_b32 s{st}, v{vt}\ns_cmp_gt_u32 s{sc}, {SPIN}\ns_cbranch_scc1 {o}")
    if sleep: k(f"s_cmp_ge_u32 s{st}, {want}\ns_cbranch_scc1 {o}\ns_sleep {sleep}\ns_branch {l}")
    else: k(f"s_cmp_lt_u32 s{st}, {want}\ns_cbranch_scc1 {l}")
    k(f"{o}:")

sCP, sCS, sCOL, sM, sT, sT2, sSP, sO1, sO2, sDO, sDM = 67, 68, 69, 70, 71, 72, 73, 74, 75, 76, 77
sXO, sWO, sA2, sB2, sDT, sDT2, sE0, sE1, sE2, sE3 = 30, 31, 32, 33, 34, 35, 36, 37, 38, 39
sHH, sG32, sKM = 40, 41, 46
sRX, sRW, gXD = 40, 41, 240
AB, BB, CB, X1, X8, X256, W1, W8, W256, W2, W4, TT, Z0, Z1, PK = 100, 102, 104, 106, 108, 110, 112, 114, 116, 118, 120, 122, 124, 126, 128
KWG, KR, PA, DSK, DT, VD, VF, UF, KA = 132, 140, 141, 145, 146, 150, 160, 192, 224
LOC = [4, 6, 1, 0, 3, 5, 2]
SY_GS, SY_RING, SY_RD, SY_U, SY_PAIR, SY_S, SY_W2, SY_M = 0, 4, 8, 12, 16, 24, 32, 48

def x_offsets(k, d):
    k(f"v_lshrrev_b32 v154, 3, v0\nv_and_b32 v155, 7, v0\nv_lshrrev_b32 v156, 4, v0\nv_xor_b32 v155, v155, v156")
    k(f"v_lshl_add_u32 v154, s{sCOL}, 5, v154\nv_mul_u32_u24 v154, 896, v154\nv_lshl_add_u32 v{d}, v155, 4, v154\nv_xor_b32 v155, 64, v{d}")
    k(f"v_add_u32 v{d+1}, 6144, v155\nv_add_u32 v{d+2}, {2*6144}, v{d}\nv_add_u32 v{d+3}, {3*6144}, v155")
def w1_offsets(k, d):
    k(f"v_lshrrev_b32 v154, 4, v0\nv_and_b32 v155, 15, v0\nv_lshlrev_b32 v156, 2, v154\nv_xor_b32 v155, v155, v156")
    k(f"v_lshl_add_u32 v154, s{sCOL}, 4, v154\nv_mul_u32_u24 v154, 3584, v154\nv_lshl_add_u32 v{d}, v155, 4, v154")
    for n in (1,2,3): k(f"v_add_u32 v{d+n}, {n*13312}, v{d}")
def w2_offsets(k, d):
    k(f"v_lshrrev_b32 v154, 3, v0\nv_and_b32 v155, 7, v0\nv_bfe_u32 v156, v0, 4, 1\nv_lshlrev_b32 v156, 2, v156\nv_xor_b32 v155, v155, v156")
    k(f"v_mul_u32_u24 v154, 896, v154\nv_lshl_add_u32 v{d}, v155, 4, v154")
    for n in (1,2,3): k(f"v_add_u32 v{d+n}, {n*6144}, v{d}")
def w2_bases(k, cfg):
    k(f"s_mul_i32 s{sA2}, s{sCOL}, {448*896}\ns_lshl_b32 s{sT}, s{sC}, 7\ns_add_u32 s{sA2}, s{sA2}, s{sT}\ns_add_u32 s{sB2}, s{sA2}, {224*896}")
    if cfg.rot:
        k(f"s_bitcmp1_b32 s{sC}, 0\ns_cselect_b32 s{sT}, s{sB2}, s{sA2}\ns_cselect_b32 s{sB2}, s{sA2}, s{sB2}\ns_mov_b32 s{sA2}, s{sT}")
def w2dma(b, d):
    base = sA2 if b < 7 else sB2
    out = [f"s_add_u32 m0, s{sM}, {LOC[b%7]*16384}\ns_add_u32 s{sDT}, s{base}, {(b%7)*32*896}\nbuffer_load_dwordx4 v{d}, {S(sW2,4)}, s{sDT} offen lds"]
    for n in (1,2,3): out.append(f"buffer_load_dwordx4 v{d+n}, {S(sW2,4)}, s{sDT} offen offset:{n*1024} lds")
    return [(g, f"w2_{b}") for g in out]
def cmul(k, z, a, w, t):
    k(f"v_pk_mul_f32 {V(t,2)}, {V(a,2)}, {V(w,2)} op_sel_hi:[1,0]")
    k(f"v_pk_fma_f32 {V(z,2)}, {V(a,2)}, {V(w,2)}, {V(t,2)} op_sel:[1,1,0] op_sel_hi:[0,1,1] neg_lo:[0,1,0]")

gW2D, gW2A, gL16, gSY, gONE, gXA, gWA, gSTA, gAGA, gAUG, gSTT, gH = 1, 5, 9, 12, 13, 80, 84, 88, 89, 90, 98, 14
sPW = 22
sGA, ZERO, VSY, VONE, WD, sW2D, XTA, XTS, EW, CA, CBA, UW, TZ = 8, 30, 34, 35, 36, 40, 44, 46, 64, 65, 66, 67, 48

XR = 56
CLRL = f"buffer_load_dword v49, off, {S(sAUX,4)}, 0 sc1"
def front(k, cfg):
    stamp(k, cfg, 0)
    k("s_load_dwordx16 s[28:43], s[0:1], 0\ns_load_dwordx16 s[44:59], s[0:1], 64")
    k("s_cmp_ge_u32 s2, 256\ns_cbranch_scc1 L_end")
    k("v_lshrrev_b32 v1, 6, v0\nv_and_b32 v0, 63, v0\nv_readfirstlane_b32 s3, v1")
    k(f"s_and_b32 s{sXCD}, s2, 7\ns_lshr_b32 s{sJ}, s2, 3")
    k(f"s_cmp_lt_u32 s{sJ}, 4\ns_cbranch_scc1 L_helper")
    k(f"s_sub_u32 s{sJ}, s{sJ}, 4")
    k(f"s_mul_i32 s{sR}, s{sJ}, 37\ns_lshr_b32 s{sR}, s{sR}, 8\ns_mul_i32 s{sC}, s{sR}, 7\ns_sub_u32 s{sC}, s{sJ}, s{sC}")
    k(f"s_lshr_b32 s{sRB}, s{sXCD}, 1\ns_lshl_b32 s{sRB}, s{sRB}, 2\ns_add_u32 s{sRB}, s{sRB}, s{sR}")
    k(f"s_and_b32 s{sFC}, s{sXCD}, 1\ns_mul_i32 s{sFC}, s{sFC}, 7\ns_add_u32 s{sFC}, s{sFC}, s{sC}")
    k(f"s_lshl_b32 s{sKAP}, s{sR}, 1\ns_add_u32 s{sKAP}, s{sKAP}, s{sC}")
    k(f"s_sub_u32 s{sT}, s{sKAP}, 7\ns_cmp_ge_u32 s{sKAP}, 7\ns_cselect_b32 s{sKAP}, s{sT}, s{sKAP}")
    k(f"s_mul_i32 s{sCP}, s{sXCD}, 28\ns_add_u32 s{sCP}, s{sCP}, s{sJ}\ns_bfe_u32 s{sCS}, s3, 0x10001\ns_and_b32 s{sCOL}, s3, 3\ns_lshl_b32 s{sM}, s{sCOL}, 12\ns_add_u32 s{sM}, s{sM}, {L_GB}")
    k(f"s_lshl_b32 s{sT}, s{sCP}, 1\ns_add_u32 s{sT}, s{sT}, s{sCS}\ns_lshl_b32 s{sT}, s{sT}, 1\ns_lshr_b32 s{sT2}, s3, 2\ns_add_u32 s{sT}, s{sT}, s{sT2}")
    k(f"s_lshl_b32 s{sT}, s{sT}, 1\ns_and_b32 s{sT2}, s3, 1\ns_add_u32 s{sT}, s{sT}, s{sT2}\ns_lshl_b32 s{sT}, s{sT}, 7\nv_lshl_add_u32 v1, v0, 1, s{sT}")
    for i in range(6): k(f"v_mov_b32 v{AB+i}, 0")
    k(f"s_mov_b32 s{sW1+3}, 0x20000\ns_lshl_b32 s{sSP}, s{sCP}, 2")
    k("s_cmp_lt_u32 s3, 4\ns_cbranch_scc1 L_f_s")
    w1_offsets(k, VD)
    k(f"s_mul_i32 s{sDO}, s{sKAP}, 229376\ns_lshl_b32 s{sT}, s{sFC}, 8\ns_add_u32 s{sDO}, s{sDO}, s{sT}\ns_add_u32 s{sDM}, s{sM}, {L_WS[0]}\ns_mov_b32 s{sW1+2}, 1605632")
    k(f"s_cmp_eq_u32 s{sKAP}, 6\ns_cselect_b32 s{sT2}, {-6*229376}, 229376" .replace(", 229376", f", s{sT2}").replace("s_cmp_eq", f"s_mov_b32 s{sT2}, 229376\ns_cmp_eq"))
    k("s_waitcnt lgkmcnt(0)")
    srd(k, sW1, pW1)
    k("s_branch L_f_j")
    k("L_f_s:")
    x_offsets(k, VD)
    k(f"s_mul_i32 s{sDO}, s{sRB}, 114688\ns_lshl_b32 s{sT}, s{sKAP}, 7\ns_add_u32 s{sDO}, s{sDO}, s{sT}\ns_add_u32 s{sDM}, s{sM}, {L_XS[0]}\ns_mov_b32 s{sW1+2}, 1835008")
    k(f"s_movk_i32 s{sT2}, 128\ns_cmp_eq_u32 s{sKAP}, 6\ns_cselect_b32 s{sT2}, {-6*128}, s{sT2}")
    k("s_waitcnt lgkmcnt(0)")
    srd(k, sW1, pX)
    k("L_f_j:")
    stamp(k, cfg, 1, 3)
    for i in range(6): k(f"global_load_short_d16_hi v{AB+i}, v1, {S(pARE+2*i,2)}", "prm")
    k(f"s_mov_b32 m0, s{sDM}")
    if cfg.pbar: k("s_barrier")
    k(f"s_load_dword s{sO1}, {S(pLDT,2)}, s{sSP}\ns_load_dword s{sO2}, {S(pDSK,2)}, s{sSP}")
    dma = lambda n: "s_nop 0" if cfg.x_noc01 else f"buffer_load_dwordx4 v{VD+n}, {S(sW1,4)}, s{sDO} offen offset:{n*1024} lds"
    for n in range(4): k(dma(n), "c0")
    stamp(k, cfg, 2, 3)
    k(f"s_add_u32 s{sDO}, s{sDO}, s{sT2}")
    srd(k, sWS, pWS); srd(k, sW2, pW2); srd_const(k, sWS, WSN); srd_const(k, sW2, 1605632)
    w2_bases(k, cfg)
    k(f"s_xor_b32 s{sKM}, s3, 4\ns_mul_i32 s{sKM}, s{sKM}, 8704\ns_mov_b32 m0, s{sKM}\ns_add_u32 s{sT}, s{sKM}, {L_KC}")
    k(f"v_and_b32 v154, 31, v0\nv_lshrrev_b32 v155, 5, v0\nv_mul_u32_u24 v156, 272, v154\nv_lshl_add_u32 v156, v155, 4, v156\nv_add_u32 v{KR}, s{sT}, v156")
    k(f"s_mul_i32 s{sE3}, s{sCS}, {L_PCH}\ns_and_b32 s{sT}, s3, 1\ns_mul_i32 s{sT}, s{sT}, 3328\ns_add_u32 s{sE3}, s{sE3}, s{sT}\ns_add_u32 s{sE3}, s{sE3}, {L_PART}\nv_lshl_add_u32 v{PA}, v0, 4, s{sE3}")
    k("s_cmp_ge_u32 s3, 4\ns_cbranch_scc1 L_f_s2")
    setup_G(k, cfg)
    k("s_branch L_f_j2")
    k("L_f_s2:")
    setup_S(k, cfg)
    k("L_f_j2:")
    stamp(k, cfg, 3, 3)
    k("s_waitcnt lgkmcnt(0)"); k.lg = []
    k(f"s_lshl_b32 s{sT}, s{sCS}, 4\ns_lshr_b32 s{sO1}, s{sO1}, s{sT}\ns_lshl_b32 s{sO1}, s{sO1}, 16\ns_lshr_b32 s{sO2}, s{sO2}, s{sT}\ns_lshl_b32 s{sO2}, s{sO2}, 16")
    k(f"s_and_b32 s{sT}, s3, 5\ns_cselect_b32 s{sO2}, 0, s{sO2}")
    Lhi = struct.unpack("<f", struct.pack("<f", LOG2E))[0]; Llo = LOG2E - Lhi
    k(f"v_mov_b32 v154, {fbits(Lhi)}\nv_mul_f32 v155, s{sO1}, v154\nv_fma_f32 v156, s{sO1}, v154, -v155\nv_mov_b32 v157, {fbits(Llo)}\nv_fmac_f32 v156, s{sO1}, v157")
    k(f"v_exp_f32 v155, v155\nv_mul_f32 v156, {fbits(0.6931471805599453)}, v156\nv_fmac_f32 v155, v155, v156\nv_cvt_pk_bf16_f32 v155, v155, v155\nv_and_b32 v{DT+2}, 0xffff0000, v155")
    k(f"v_mul_f32 v{DT}, v154, v{DT+2}\nv_mul_f32 v{DT+1}, 0.15915494, v{DT+2}")
    k(f"v_mov_b32 v154, s{sO2}\nv_cmp_eq_u32 vcc, 0, v0\nv_cndmask_b32 v{DSK}, 0, v154, vcc")
    k(f"s_mov_b32 s{sO1}, {fbits(8.0)}\ns_mov_b32 s{sO2}, {fbits(256.0)}\nv_mov_b32 v{PK}, 0x3f80")
    k(f"ds_write_addtid_b32 v{PK} offset:{L_KC}")
    stamp(k, cfg, 1)
    if cfg.kprio:
        o = k.lab("kp"); k(f"s_cmp_lt_u32 s3, 4\ns_cbranch_scc1 {o}\ns_setprio {cfg.kprio}\n{o}:")
    stamp(k, cfg, 4, 3)
    k.wait(vm="prm")
    stamp(k, cfg, 2); stamp(k, cfg, 5, 3)
    nv = [0]; pend = []
    def put(z, row, neg, last=False):
        p = PK + row % 4
        k(f"v_cvt_pk_bf16_f32 v{p}, v{z}, {'-' if neg else ''}v{z+1}")
        w = f"ds_write_addtid_b32 v{p} offset:{L_KC + 272*row}"
        if cfg.kdelay:
            if pend: k(pend.pop())
            pend.append(w)
            if last or row == 31: k(pend.pop())
        elif not cfg.x_nokw: k(w)
        nv[0] += 1
    k(f"v_pk_mul_f32 {V(X1,2)}, {V(AB,2)}, {V(DT,2)}")
    k(f"v_pk_mul_f32 {V(X8,2)}, {V(X1,2)}, {S(sO1,2)} op_sel_hi:[1,0]\nv_pk_mul_f32 {V(X256,2)}, {V(X1,2)}, {S(sO1,2)} op_sel:[0,1] op_sel_hi:[1,1]")
    for x in (X8, X1, X256): k(f"v_fract_f32 v{x+1}, v{x+1}")
    for x, w in ((X8, W8), (X1, W1), (X256, W256)):
        k(f"v_exp_f32 v{x}, v{x}\nv_cos_f32 v{w}, v{x+1}\nv_sin_f32 v{w+1}, v{x+1}")
    for x, w in ((X8, W8), (X1, W1), (X256, W256)):
        k(f"v_pk_mul_f32 {V(w,2)}, {V(w,2)}, {V(x,2)} op_sel_hi:[1,0]")
    if cfg.kbar: k("s_barrier")
    stamp(k, cfg, 6, 3)
    put(W8, 1, False)
    prev = W8
    for b in range(2, 32):
        cmul(k, Z0, prev, W8, TT); prev = Z0; put(Z0, b, False)
    stamp(k, cfg, 7, 3)
    for s in range(8): k(f"ds_read_b128 {V(VF+4*s,4)}, v{KR} offset:{32*s}", "vf")
    cmul(k, Z1, BB, CB, TT)
    k(f"v_pk_mul_f32 {V(Z1,2)}, {V(Z1,2)}, {V(DT+2,2)} op_sel_hi:[1,0]")
    put(Z1, 0, True)
    cmul(k, W2, W1, W1, TT); cmul(k, W4, W2, W2, TT)
    prev = Z1
    for a in range(1, 21):
        if a in (8, 12, 14) or a >= 16: cmul(k, Z1, Z1, W256, TT); prev = Z1
        else: cmul(k, Z0, prev, W1 if a < 8 else (W2 if a < 12 else W4), TT); prev = Z0
        put(prev, a, True, a == 20)
    stamp(k, cfg, 8, 3)
    for s in range(8): k(f"ds_read_b128 {V(UF+4*s,4)}, v{KR} offset:{32*s}", f"uf{s}")
    k(f"s_add_u32 m0, s{sDM}, 16384")
    o = k.lab("xt"); sl = list(k.lg); sv = list(k.vm)
    k(f"s_cmp_ge_u32 s3, 4\ns_cbranch_scc1 {o}")
    k.wait(vm="c0")
    k(f"ds_read_b64_tr_b16 {V(XR,2)}, v{XTA}\nds_read_b64_tr_b16 {V(XR+2,2)}, v{XTA+1} offset:512", "xt")
    k(f"ds_read_b64_tr_b16 {V(XR+4,2)}, v{XTA+1}\nds_read_b64_tr_b16 {V(XR+6,2)}, v{XTA} offset:512", "xt")
    k.wait(lg="*")
    xts = "\n".join(f"buffer_store_dwordx4 {V(XR+4*g,4)}, v{XTS}, {S(sWS,4)}, s{sE1+g} offen sc1" for g in (0, 1))
    if cfg.xtearly: k(xts)
    if cfg.gc1early:
        for n in range(4): k(dma(n))
    k(f"{o}:"); k.lg = sl; k.vm = sv
    k("s_barrier")
    o = k.lab("c1")
    k(f"s_cmp_lt_u32 s3, 4\ns_cbranch_scc1 {o}")
    for n in range(4): k(dma(n), "c1")
    k(f"{o}:")
    for s in range(8):
        k.wait(lg=f"uf{s}")
        k(f"v_mfma_f32_32x32x16_bf16 {V(KA,16)}, {V(UF+4*s,4)}, {V(VF+4*s,4)}, {'0' if s == 0 else V(KA,16)}")
    stamp(k, cfg, 9, 3)
    k("s_cmp_ge_u32 s3, 4\ns_cbranch_scc1 L_S")
    k(f"v_add_f32 v{KA}, v{KA}, v{DSK}")
    for r in (1, 2, 0): k(f"ds_write_b128 v{PA}, {V(KA+4*r,4)} offset:{1024*r}")
    sv = list(k.vm)
    if not cfg.gc1early:
        for n in range(4): k(dma(n))
    k.vm = sv
    if not cfg.xtearly: k(xts)
    stamp(k, cfg, 3)
    k.wait(lg="*")
    stamp(k, cfg, 10, 3)
    k("s_barrier")
    stamp(k, cfg, 11, 3)

sCW, sCX, sXD = 48, 53, 44
def chunk_offsets(k, step, sCH, sDO):
    for c in range(2, 7):
        prev = sDO if c == 2 else sCH + c - 3
        k(f"s_add_u32 s{sCH+c-2}, s{prev}, {step}\ns_sub_u32 s{sT}, s{prev}, {6*step}\ns_cmp_eq_u32 s{sKAP}, {7-c}\ns_cselect_b32 s{sCH+c-2}, s{sT}, s{sCH+c-2}")
def chunk(cfg, c):
    out = []
    for vd, srdr, so, slots in ((sXD, sX, sCX, L_XS), (VD, sW1, sCW, L_WS)):
        o = [f"buffer_load_dwordx4 v{vd+n}, {S(srdr,4)}, s{so+c-2} offen offset:{n*1024} lds" for n in range(4)]
        o[0] = f"s_add_u32 m0, s{sM}, {slots[c % 3]}\n" + o[0]
        out += o
    if cfg.x_nodma: out = ["s_nop 0"]*8
    return [(g, f"c{c}") for g in out]

def setup_G(k, cfg):
    if cfg.touch:
        k(f"v_lshrrev_b32 v2, 1, v0\nv_lshl_add_u32 v2, s{sCOL}, 5, v2\nv_mul_u32_u24 v2, 896, v2\nv_and_b32 v3, 1, v0\nv_lshl_add_u32 v2, v3, 6, v2")
        k(f"buffer_load_dword v159, v2, {S(sW1,4)}, s{sDO} offen", "touch")
    w2_offsets(k, gW2D)
    k(f"s_and_b32 s{sT}, s{sXCD}, 1\ns_lshl_b32 s{sG32}, s{sKAP}, 1\ns_add_u32 s{sG32}, s{sG32}, s{sT}\ns_lshl_b32 s{sT}, s{sT}, 2")
    k(f"v_lshrrev_b32 v50, 4, v0\nv_bfe_u32 v51, v0, 2, 2\nv_lshl_add_u32 v52, v50, 3, v51")
    k(f"v_bfe_u32 v53, v0, 1, 1\nv_or_b32 v53, s{sT}, v53\nv_bfe_u32 v54, v52, 1, 3\nv_xor_b32 v53, v53, v54\nv_lshlrev_b32 v53, 4, v53")
    k(f"v_lshl_add_u32 v53, v52, 7, v53\nv_and_b32 v54, 1, v0\nv_lshl_add_u32 v53, v54, 3, v53\nv_add_u32 v{XTA}, s{sDM}, v53\nv_xor_b32 v{XTA+1}, 32, v{XTA}")
    k(f"v_bfe_u32 v53, v0, 1, 3\nv_lshlrev_b32 v53, 13, v53\nv_lshl_add_u32 v53, v50, 4, v53\nv_lshl_add_u32 v{XTS}, v54, 6, v53")
    k(f"s_lshl_b32 s{sT}, s{sG32}, 17\ns_lshl_b32 s{sT2}, s{sRB}, 9\ns_add_u32 s{sT}, s{sT}, s{sT2}\ns_lshl_b32 s{sT2}, s{sCOL}, 7\ns_add_u32 s{sT}, s{sT}, s{sT2}\ns_add_u32 s{sE1}, s{sT}, {XT}\ns_add_u32 s{sE2}, s{sE1}, 65536")
    k(f"v_lshrrev_b32 v{gH}, 5, v0\nv_and_b32 v15, 31, v0\ns_and_b32 s{sT}, s3, 1\ns_lshl_b32 s{sT}, s{sT}, 13\ns_add_u32 s{sT}, s{sT}, {L_GB+L_XS[2]}")
    k(f"v_bfe_u32 v13, v0, 1, 3\nv_xor_b32 v13, v13, v{gH}\nv_lshlrev_b32 v13, 4, v13\nv_lshl_add_u32 v13, v15, 7, v13\nv_add_u32 v{gXA}, s{sT}, v13")
    for s in (1,2,3): k(f"v_xor_b32 v{gXA+s}, {32*s}, v{gXA}")
    k(f"s_and_b32 s{sT}, s3, 2\ns_mul_i32 s{sT}, s{sT}, 384\ns_add_u32 s{sT}, s{sT}, {L_GS}\nv_lshl_add_u32 v13, v15, 3, s{sT}\nv_mov_b32 v12, {L_U}\nv_cmp_eq_u32 vcc, 0, v{gH}")
    k(f"s_and_b32 s{sT}, s3, 1\ns_mul_i32 s{sT}, s{sT}, 768\ns_add_u32 s{sT}, s{sT}, {L_GS+256}\nv_cndmask_b32 v{gAGA}, v12, v13, vcc\nv_lshl_add_u32 v{gSTA}, v15, 2, s{sT}")
    k(f"v_bfe_u32 v10, v0, 2, 2\nv_and_b32 v11, 3, v0\nv_lshlrev_b32 v11, 3, v11\nv_and_b32 v12, 16, v0\nv_lshl_add_u32 v11, v12, 1, v11")
    k(f"s_and_b32 s{sT}, s3, 2\nv_xor_b32 v12, s{sT}, v10\nv_lshl_add_u32 v12, v12, 6, v11")
    k(f"v_lshl_add_u32 v13, v{gH}, 3, v10\nv_lshl_add_u32 v12, v13, 8, v12\nv_add_u32 v{gWA}, {L_GB+L_WS[0]}, v12\nv_xor_b32 v{gWA+1}, 64, v{gWA}\nv_add_u32 v{gWA+2}, {L_GB+L_WS[2]}, v12\nv_xor_b32 v{gWA+3}, 64, v{gWA+2}")
    k(f"v_lshl_add_u32 v13, v{gH}, 2, v10\nv_lshl_add_u32 v12, v13, 7, v11\nv_lshrrev_b32 v13, 1, v10\nv_lshl_add_u32 v12, v13, 6, v12")
    k(f"v_add_u32 v{gW2A}, s{sM}, v12\nv_xor_b32 v{gW2A+1}, 64, v{gW2A}\nv_add_u32 v{gW2A+2}, 65536, v{gW2A}\nv_add_u32 v{gW2A+3}, 65536, v{gW2A+1}")
    k(f"v_lshlrev_b32 v{gL16}, 4, v0\nv_mov_b32 v{gSY}, {L_SY}\nv_mov_b32 v{gONE}, 1\nv_lshl_add_u32 v10, s{sCOL}, 2, v{gSY}")
    k(f"s_lshl_b32 s{sE0}, s{sRB}, 1\ns_and_b32 s{sT}, s3, 1\ns_add_u32 s{sE0}, s{sE0}, s{sT}")
    k(f"s_lshl_b32 s{sXO}, s{sFC}, 1\ns_lshr_b32 s{sT}, s3, 1\ns_add_u32 s{sXO}, s{sXO}, s{sT}")
    k(f"s_mul_i32 s{sWO}, s{sXO}, 37\ns_lshr_b32 s{sWO}, s{sWO}, 8\ns_lshl_b32 s{sT}, s{sE0}, 2\ns_add_u32 s{sWO}, s{sWO}, s{sT}\ns_lshl_b32 s{sWO}, s{sWO}, 7")
    k(f"s_lshl_b32 s{sXO}, s{sXO}, 13\ns_mul_i32 s{sT}, s{sE0}, 229376\ns_add_u32 s{sXO}, s{sXO}, s{sT}\ns_add_u32 s{sXO}, s{sXO}, {ACT}\ns_add_u32 s{sE3}, s{sXO}, 4096")

def gather_addresses(k, part):
    if part == 1:
        k(f"s_mul_i32 s{sDT}, s{sCS}, {L_PCH//132*32}\ns_add_u32 s{sDT}, s{sDT}, {L_PART//132*32}")
        k(f"v_lshl_add_u32 v50, s{sHH}, 6, v0\ns_add_u32 s{sT}, s{sDT}, {255+384}\nv_sub_u32 v2, s{sT}, v50\nv_add_u32 v3, 1, v2\nv_cmp_eq_u32 vcc, 127, v50")
        k(f"v_lshlrev_b32 v50, 3, v50\nv_sub_u32 v50, 1023, v50\nv_subbrev_co_u32 v4, vcc, 0, v2, vcc")
        for e in range(3): k(f"v_lshrrev_b32 v5, 5, v{2+e}\nv_add_lshl_u32 v{sGA+11+e}, v{2+e}, v5, 2")
        k(f"s_sub_u32 s{sT}, s{sDT}, 0x4300")
        k(f"v_cvt_f32_i32 v51, v50\nv_add_u32 v50, s{sT}, v50\ns_sub_u32 s{sT2}, s{sT}, 1\nv_mov_b32 v52, s{sT2}\ns_add_u32 s{sT}, s{sT}, 128\ns_mov_b32 s{sT2}, {fbits(128.0)}")
    for n in {0: [], 1: [0, 2], 2: [4, 6, 8, 10]}[part]:
        es = (0, 1) if n < 10 else (0,)
        for e in es:
            k(f"v_subrev_f32 v{2+e}, {fbits(float(n+e))}, v51\nv_max_f32 v{2+e}, s{sT2}, v{2+e}\nv_subrev_u32 v{4+e}, {n+e}, v50\nv_med3_i32 v{4+e}, v{4+e}, v52, s{sT}")
        k(f"v_cvt_pk_bf16_f32 v2, v2, v3")
        for e in es:
            k(f"v_add_u32_sdwa v{4+e}, v{4+e}, v2 dst_sel:DWORD dst_unused:UNUSED_PAD src0_sel:DWORD src1_sel:WORD_{e}")
            k(f"v_lshrrev_b32 v3, 5, v{4+e}\nv_add_lshl_u32 v{sGA+n+e}, v{4+e}, v3, 2")
    if part == 0:
        k(f"v_and_b32 v50, 31, v0\nv_lshrrev_b32 v51, 5, v0")
        k(f"v_lshlrev_b32 v2, 3, v50\nv_lshl_add_u32 v2, v51, 2, v2\nv_sub_u32 v3, 2, v51\nv_lshlrev_b32 v3, v3, v50\nv_lshl_add_u32 v3, v51, 7, v3\nv_add_u32 v3, 256, v3")
        k(f"v_lshl_add_u32 v4, v51, 7, v50\nv_add_u32 v4, 512, v4")
        for e, d in ((0, 0), (1, 1), (2, 3)): k(f"v_lshrrev_b32 v5, 5, v{2+e}\nv_add_u32 v5, v5, v{2+e}\nv_lshl_add_u32 v{sPW+d}, v5, 2, s{sE3}")
        k(f"v_lshl_add_u32 v{sPW+2}, v51, 8, v{sPW+1}")

vXC, vST, vXW, vODD, vGA, vGW, vSC = 26, 27, 28, 29, 36, 37, 38
def S_addresses(k, part):
    sWV = sCOL
    if part < 3: gather_addresses(k, part)
    if part == 3:
        k(f"s_mul_i32 s{sT}, s{sCS}, 16640\ns_add_u32 s{sT}, s{sT}, {L_KC}\ns_lshl_b32 s{sT2}, s{sHH}, 10\ns_add_u32 s{sT2}, s{sT2}, s{sT}\nv_lshl_add_u32 v{EW}, v0, 4, s{sT2}")
        k(f"v_bfe_u32 v2, v0, 1, 2\nv_mul_u32_u24 v2, 4160, v2\nv_and_b32 v{vODD}, 1, v0\nv_lshl_add_u32 v2, v{vODD}, 4, v2\nv_add_u32 v{TZ}, s{sT}, v2")
        k(f"s_lshr_b32 s{sT}, s{sCP}, 4\ns_lshl_b32 s{sT}, s{sT}, 2\ns_add_u32 s{sT}, s{sT}, {C_XT}\ns_lshl_b32 s{sT}, s{sT}, 7\nv_and_b32 v2, 3, v0\nv_lshl_add_u32 v{vXC}, v2, 7, s{sT}")
        k(f"s_lshl_b32 s{sT}, s{sCP}, 13\ns_add_u32 s{sT}, s{sT}, {XT}\nv_lshl_add_u32 v2, s{sWV}, 6, v0\nv_and_b32 v3, 0xfc, v2\nv_add_u32 v3, v3, v2\nv_lshl_add_u32 v{vXW}, v3, 4, s{sT}\nv_lshlrev_b32 v{vST}, 4, v2\nv_add_u32 v{UW}, {L_U+480}, v{vST}")
        k(f"s_mov_b32 s{sXO}, {STATS}\ns_mov_b32 s{sWO}, {STATS+4096}")
    if part == 4:
        k(f"s_lshl_b32 s{sT}, s{sFC}, 2\ns_add_u32 s{sT}, s{sT}, s{sWV}\ns_lshl_b32 s{sT}, s{sT}, 8\ns_add_u32 s{sT}, s{sT}, {AUGW}\nv_lshl_add_u32 v3, v0, 4, s{sT}")
        k(f"s_lshl_b32 s{sT}, s{sRB}, 2\ns_add_u32 s{sT}, s{sT}, s{sWV}\ns_lshl_b32 s{sT}, s{sT}, 6\ns_add_u32 s{sT}, s{sT}, {STATS}\nv_lshl_add_u32 v4, v{vODD}, 12, s{sT}")
        k(f"v_bfe_u32 v2, v0, 1, 2\nv_lshl_add_u32 v4, v2, 4, v4\nv_cmp_gt_u32 vcc, 16, v0\ns_mul_i32 s{sE0}, s{sWV}, 384\ns_add_u32 s{sE0}, s{sE0}, {L_GS}\nv_cndmask_b32 v{vGA}, v4, v3, vcc")
        k(f"v_min_u32 v2, 23, v0\nv_lshl_add_u32 v{vGW}, v2, 4, s{sE0}")
        w2_offsets(k, sW2D)
    if part == 5:
        k(f"s_mul_i32 s{sT}, s{sCS}, 16640\ns_add_u32 s{sT}, s{sT}, {L_KC+280}\ns_lshl_b32 s{sT2}, s{sHH}, 8\ns_sub_u32 s{sT}, s{sT}, s{sT2}")
        k(f"v_and_b32 v2, 3, v0\nv_sub_u32 v2, 3, v2\nv_mul_u32_u24 v2, 4160, v2\nv_bfe_u32 v3, v0, 2, 2\nv_lshlrev_b32 v3, 3, v3\nv_sub_u32 v2, v2, v3")
        k(f"v_lshrrev_b32 v3, 4, v0\nv_lshl_add_u32 v2, v3, 4, v2\nv_add_u32 v{CA}, s{sT}, v2")
        k(f"s_mul_i32 s{sT}, s{sCS}, 4576\ns_add_u32 s{sT}, s{sT}, {L_U+256}\ns_sub_u32 s{sT}, s{sT}, s{sT2}")
        k(f"v_and_b32 v2, 15, v0\nv_lshlrev_b32 v2, 5, v2\nv_lshl_add_u32 v2, v3, 4, v2\nv_add_u32 v{CBA}, s{sT}, v2")
        k(f"v_lshl_add_u32 v{vSC}, s{sWV}, 2, v{VSY}")

def setup_S(k, cfg):
    sWV = sCOL
    if cfg.touch:
        k(f"v_lshrrev_b32 v2, 2, v0\nv_lshl_add_u32 v2, s{sCOL}, 4, v2\nv_mul_u32_u24 v2, 3584, v2\nv_and_b32 v3, 3, v0\nv_lshl_add_u32 v2, v3, 6, v2")
        sv = list(k.vm); k(f"buffer_load_dword v159, v2, {S(sW1,4)}, s{sDO} offen"); k.vm = sv
    k(f"s_and_b32 s{sHH}, s3, 1")
    srd(k, sX, pX); srd(k, sAUX, pDBG); srd(k, sOUT, pOUT); srd_const(k, sAUX, 256); srd_const(k, sOUT, 1835008); srd_const(k, sX, 1835008)
    for i in range(4): k(f"v_mov_b32 v{ZERO+i}, 0")
    k(f"v_mov_b32 v{VSY}, {L_SY}\nv_mov_b32 v{VONE}, 1")
    k(f"v_min_u32 v53, 29, v0\nv_lshlrev_b32 v53, 4, v53\nv_add_u32 v53, {L_U}, v53")
    k(f"ds_write_b128 v53, {V(ZERO,4)}\nds_write_b128 v53, {V(ZERO,4)} offset:4576\nds_write_b128 v53, {V(ZERO,4)} offset:{L_SY-L_U}")
    k(f"s_sub_u32 s{sT}, s{sE3}, 16\nv_mov_b32 v2, s{sT}\nds_write_b128 v2, {V(ZERO,4)}")
    k(f"s_and_b32 s{sT}, s{sXCD}, 1\ns_lshl_b32 s{sG32}, s{sKAP}, 1\ns_add_u32 s{sG32}, s{sG32}, s{sT}")
    chunk_offsets(k, 229376, sCW, sDO)
    k(f"s_add_u32 s{sT2}, s{sKAP}, 1\ns_cmp_eq_u32 s{sKAP}, 6\ns_cselect_b32 s{sT2}, 0, s{sT2}\ns_lshl_b32 s{sT2}, s{sT2}, 7\ns_mul_i32 s{sT}, s{sRB}, 114688\ns_add_u32 s{sT2}, s{sT2}, s{sT}")
    chunk_offsets(k, 128, sCX, sT2)
    x_offsets(k, sXD)
    for part in range(cfg.early): S_addresses(k, part)

def gen_G(k, cfg):
    ACC, W2R, RING = 16, 80, 192
    FS = [100, 116, 132]
    W2D, W2A, L16, XA, WA, AUG, STT = gW2D, gW2A, gL16, gXA, gWA, gAUG, gSTT
    RC, RL, T, P = 192, 196, 200, 208
    k("s_setprio 2")
    stamp(k, cfg, 1, 2); cstamp(k, cfg, 10)
    def w2read(step, dst_step):
        b = step // 2; loc = LOC[b % 7]*16384 + (step & 1)*2048; hi = 2 if loc >= 65536 else 0; loc -= hi*32768
        out = []
        for d2 in (0, 1):
            for rd in (0, 1):
                out.append(f"ds_read_b64_tr_b16 {V(W2R + dst_step*8 + d2*4 + rd*2, 2)}, v{W2A+hi+d2} offset:{loc + rd*1024}")
        return out
    def reads(i):
        c, s, F = i // 4, i % 4, FS[i % 3]; sl = c % 3
        wa, wo = (WA, L_WS[sl] - L_WS[0]) if sl < 2 else (WA + 2, 0)
        w = lambda ft: [f"ds_read_b64_tr_b16 {V(F+8+4*ft+2*rd,2)}, v{wa+ft} offset:{wo + s*4096 + rd*1024}" for rd in (0, 1)]
        x = [f"ds_read_b128 {V(F+4*tt,4)}, v{XA+s} offset:{L_XS[sl] - L_XS[2] + tt*4096}" for tt in (0, 1)]
        return w(0) + x + w(1)
    dq = []
    for i in (0, 1):
        for r in reads(i): k(r, f"f{i}")
    for i in range(28):
        F = FS[i % 3]
        rd = reads(i+2) if i + 2 < 28 else []
        edge = rd and (i + 2) % 4 == 0
        gaps = [[], rd[:3], rd[3:], []] if edge else [rd[:2], rd[2:4], rd[4:], []]
        k.wait(lg=f"f{i}")
        for m in range(4):
            ft, tt = m >> 1, m & 1; a = ACC + 16*m
            k(f"v_mfma_f32_32x32x16_bf16 {V(a,16)}, {V(F+8+4*ft,4)}, {V(F+4*tt,4)}, {'0' if i == 0 else V(a,16)}")
            if edge and m == 1:
                c = (i+2)//4
                k.wait(vm="*" if c == 1 else None, lg="*")
                if not cfg.x_nobar: k("s_barrier")
                stamp(k, cfg, 1 + c, 2)
                dq += [x for b in (2*c-10, 2*c-9) if 0 <= b < cfg.gblk for x in w2dma(b, W2D)]
            if dq and i >= cfg.w2from and m in (3, 0 if (edge or i >= 26) else 1): g, t = dq.pop(0); k(g, t)
            for r in gaps[m]: k(r, f"f{i+2}")
            if i == 26 and m == 1:
                k.wait(lg="*"); k("s_barrier")
                for tt in (0, 1): k(f"ds_read_b32 v{STT+tt}, v{gSTA} offset:{384*tt}", "st")
            if i == 26 and m == 2:
                for ft in (0, 1): k(f"ds_read_b64 {V(AUG+4+2*ft,2)}, v{gAGA} offset:{384*ft}", "ag")
            if i == 27 and m == 1: k.wait(lg="*")
            if i == 27 and m in (1, 2):
                tt = m - 1
                k(f"s_mov_b32 s{sT}, 0x01000100\nv_and_b32 v11, 0xffff0000, v{STT+tt}\nv_rcp_f32 v{RC+2*tt}, v11")
                k(f"v_perm_b32 v{AUG+2*tt}, v{STT+tt}, v{STT+tt}, s{sT}\nv_lshrrev_b32 v{AUG+2*tt+1}, 16, v{STT+tt}")
            if i == 27 and m == 3:
                for tt in (0, 1): k(f"v_mul_f32 v{RC+2*tt+1}, -2.0, v{RC+2*tt}\nv_mul_f32 v{RL+tt}, {fbits(LOG2E)}, v{RC+2*tt}")
    for m in range(4):
        ft, tt = m >> 1, m & 1; a = ACC + 16*m
        k(f"v_mfma_f32_32x32x8_bf16 {V(a,16)}, {V(AUG+4+2*ft,2)}, {V(AUG+2*tt,2)}, {V(a,16)}")
        if dq: g, t = dq.pop(0); k(g, t)
    assert not dq
    stamp(k, cfg, 4); stamp(k, cfg, 8, 2); cstamp(k, cfg, 11)
    stq = []
    for g in range(8):
        m, sp = g >> 1, g & 1; ft, tt = m >> 1, m & 1; a = ACC + 16*m + 8*sp; p = P + 4*(g & 1)
        for i in range(4): k(f"v_pk_mul_f32 {V(T+2*i,2)}, {V(a+2*i,2)}, {V(RL,2)} op_sel:[0,{tt}] op_sel_hi:[1,{tt}]")
        for i in range(8): k(f"v_exp_f32 v{T+i}, v{T+i}")
        for i in range(4): k(f"v_pk_add_f32 {V(T+2*i,2)}, {V(T+2*i,2)}, 1.0 op_sel_hi:[1,0]")
        for i in range(4): k(f"v_pk_fma_f32 {V(T+2*i,2)}, {V(T+2*i,2)}, {V(T+2*i,2)}, 1.0 op_sel_hi:[1,1,0]")
        for i in range(8): k(f"v_rcp_f32 v{T+i}, v{T+i}")
        for i in range(4): k(f"v_pk_fma_f32 {V(T+2*i,2)}, {V(T+2*i,2)}, {V(RC+2*tt,2)}, {V(RC+2*tt,2)} op_sel:[0,1,0] op_sel_hi:[1,1,0]")
        for i in range(4): k(f"v_pk_mul_f32 {V(T+2*i,2)}, {V(T+2*i,2)}, {V(a+2*i,2)}")
        if g == 7: lds_signal(k, 10, SY_M, gONE)
        p = a
        for i in range(4): k(f"v_cvt_pk_bf16_f32 v{p+i}, v{T+2*i}, v{T+2*i+1}")
        stq.append(f"buffer_store_dwordx4 {V(p,4)}, v{L16}, {S(sWS,4)}, s{sXO if ft == 0 else sE3} offen offset:{sp*2048 + tt*1024} sc1")
        if g in cfg.stat:
            while stq: k(stq.pop(0), "act")
    stamp(k, cfg, 5)
    k.wait(vm=f"w2_{cfg.gblk-1}")
    def rdblk(b):
        for s in (0, 1):
            for r in w2read(2*b+s, 2*b+s): k(r, f"w2r{b}")
    sSTO = sE0
    k(f"s_lshl_b32 s{sSTO}, s{sXCD}, 2\ns_add_u32 s{sSTO}, s{sSTO}, s{sR}")
    k(f"s_lshl_b32 s{sE1}, s{sSTO}, 2\ns_add_u32 s{sE1}, s{sE1}, s3\ns_lshl_b32 s{sE1}, s{sE1}, 7")
    rdblk(0)
    for b in range(7):
        if b == cfg.gblk - 2: k(f"ds_read_b32 v11, v10 offset:{SY_W2}", f"w2r{b}")
        if b == cfg.gblk - 1:
            o = k.lab("wl"); sl = list(k.lg)
            k(f"v_readfirstlane_b32 s{sT}, v11\ns_cmp_ge_u32 s{sT}, 1\ns_cbranch_scc1 {o}")
            lds_spin(k, 10, SY_W2, 1, 11, sT, sSP)
            k(f"{o}:"); k.lg = sl
        if b < 6: rdblk(b+1)
        else: k(f"ds_read_b32 v11, v{gSY}\nds_read_b32 v11, v{gSY}")
        k.wait(lg=f"w2r{b}")
        for g, t in w2dma(7+b, W2D): k(g, t)
        if b == cfg.flagat:
            k.wait(vm="act")
            s_inc(k, pWS, f"s{sWO}", sT2)
            stamp(k, cfg, 6)
        if b == 5: k(f"s_load_dword s{sE2}, {S(pWS,2)}, s{sE1} glc")
    k(f"s_mul_i32 s{sA2}, s{sSTO}, 229376\ns_mul_i32 s{sT}, s3, 57344\ns_add_u32 s{sA2}, s{sA2}, s{sT}\ns_add_u32 s{sA2}, s{sA2}, {ACT}\ns_add_u32 s{sB2}, s{sA2}, 28672")
    if cfg.rot:
        k(f"s_bitcmp1_b32 s{sC}, 0\ns_cselect_b32 s{sT}, s{sB2}, s{sA2}\ns_cselect_b32 s{sB2}, s{sA2}, s{sB2}\ns_mov_b32 s{sA2}, s{sT}")
    stamp(k, cfg, 7)
    o = k.lab("ar")
    k.wait(lg="*")
    k(f"s_cmp_ge_u32 s{sE2}, 7\ns_cbranch_scc1 {o}")
    s_poll(k, pWS, [f"s{sE1}"], 7, sT, sSP, cfg.actsleep)
    k(f"{o}:")
    stamp(k, cfg, 8)
    D = cfg.depth
    def actload(s):
        out = []
        if s % 2 == 0: out.append(f"s_add_u32 s{sT}, s{sA2 if s < 14 else sB2}, {(s % 14)*2048}" + (f"\ns_and_b32 s{sT}, s{sT}, 0xfffff" if cfg.x_acthit else ""))
        for tt in (0, 1): out.append(f"buffer_load_dwordx4 {V(RING + (s % D)*8 + 4*tt, 4)}, v{L16}, {S(sW2 if cfg.x_acthit else sWS,4)}, s{sT} offen offset:{(s & 1)*2048 + tt*1024} {cfg.actmod}")
        return out
    for s in range(D): k("\n".join(actload(s)), f"a{s}")
    DA = [1, 2, 3, 4, 10, 11, 12, 13]
    k(f"v_and_b32 v14, 15, v0\nv_lshrrev_b32 v15, 5, v0\nv_xor_b32 v15, v15, v14\nv_lshlrev_b32 v15, 4, v15\nv_lshl_add_u32 v15, v14, 8, v15")
    k(f"v_bfe_u32 v14, v0, 4, 1\nv_lshl_add_u32 v15, v14, 14, v15\nv_add_u32 v{DA[0]}, s{sM}, v15")
    for i in range(1, 8): k(f"v_xor_b32 v{DA[i]}, {32*i}, v{DA[0]}")
    for s in range(28):
        k.wait(vm=f"a{s}", lg=f"r{s}" if s >= 14 else None)
        w = W2R + (s % 14)*8; x = RING + (s % D)*8
        rs = s - cfg.rdlag
        rd = w2read(rs + 13, rs - 1) if 1 <= rs <= 14 else []
        ld = actload(s - 1 + D) if (s >= 1 and s - 1 + D < 28) else []
        for m in range(4):
            d2, tt = m >> 1, m & 1; a = ACC + 16*m
            k(f"v_mfma_f32_32x32x16_bf16 {V(a,16)}, {V(w+4*d2,4)}, {V(x+4*tt,4)}, {'0' if s == 0 else V(a,16)}")
            if m == 0 and ld: k("\n".join(ld[:-1]), f"a{s-1+D}")
            if m == 2 and ld: k(ld[-1], f"a{s-1+D}")
            if m in (1, 3) and rd: k("\n".join(rd[m-1:m+1]), f"r{rs+13}")
    stamp(k, cfg, 9)
    for m in range(4):
        d2, tt = m >> 1, m & 1
        for jj in range(4): k(f"ds_write_b128 v{DA[4*d2+jj]}, {V(ACC+16*m+4*jj,4)} offset:{tt*32768}")
    k.wait(lg="*")
    k("s_barrier")
    stamp(k, cfg, 10)
    prof_dump(k, cfg)
    k("s_endpgm")

class Pacer:
    def __init__(self, k, pace): self.k, self.pace, self.q, self.n = k, pace, [], 0
    def __call__(self, text, tag=None):
        for ln in text.split("\n"):
            self.k(ln, tag)
            self.n += 11 if "ds_write_b128" in ln else 5 if "ds_write" in ln else 2 if ("ds_read" in ln or "v_rcp" in ln) else 1
            if self.q and self.n >= self.pace: self.pop()
    def pop(self):
        g, t = self.q.pop(0); self.k(g, t); self.n = 0
    def flush(self):
        while self.q: self.pop()

def gen_S(k, cfg, vm0):
    k.reset(); k.vm = [t for t in vm0 if t in ('c0', 'c1')]
    k("L_S:")
    sWV, GA, XD = sCOL, sGA, VD
    p = Pacer(k, cfg.pace)
    def bar(c, lg="*"):
        p.flush()
        k.wait(vm=f"c{c}", lg=lg)
        stamp(k, cfg, 1+c, 2)
        if not cfg.x_nobar: k("s_barrier")
    G0, XV, CP = 160, 192, 208
    SV, XW, CN, MM, RR, XF, GS = 100, 108, 116, 120, 128, 136, 144
    def copies(x, off, sgs):
        for sg in sgs:
            c = CP + 4*sg
            for jj in range(4): p(f"v_cvt_pk_bf16_f32 v{c+jj}, v{x[sg+2*jj]}, v{x[sg+2*jj+1]}")
            p(f"ds_write_b128 v{EW}, {V(c,4)} offset:{sg*4160 + off}")
    stamp(k, cfg, 3)
    k("s_setprio 0")
    k(CLRL, "clr")
    k.wait(vm="c0")
    k("s_barrier")
    late = lambda part: S_addresses(p, part) if part >= cfg.early else None
    def ring(c):
        p.q = chunk(cfg, c); p.pop()
    stl = f"buffer_load_dwordx4 {V(SV,4)}, v{vST}, {S(sWS,4)}, s{sXO} offen sc1\nbuffer_load_dwordx4 {V(SV+4,4)}, v{vST}, {S(sWS,4)}, s{sWO} offen sc1"
    xcl = f"buffer_load_dword v{CN}, v{vXC}, {S(sWS,4)}, 0 offen sc1"
    gsl = f"s_mov_b32 m0, s{sE0}\ns_mov_b64 exec, 0xffffff\nbuffer_load_dwordx4 v{vGA}, {S(sWS,4)}, 0 offen sc1 lds\ns_mov_b64 exec, -1"
    pw = [f"ds_write2_b32 v{sPW+a}, v{KA+r}, v{KA+r+1} offset0:{o0} offset1:{o1}" for a, r, o0, o1 in
          ((0, 0, 0, 1), (0, 2, 2, 3), (1, 4, 0, 1), (2, 6, 2, 3), (3, 8, 0, 33), (3, 10, 66, 99))]
    for r in range(3): k(f"ds_read_b128 {V(G0+4*r,4)}, v{PA} offset:{1024*r}")
    ring(2)
    late(0)
    bar(1)
    v_poll(k, CLRL, 49, 32, sSP, first=False, tag="clr")
    k(f"s_lshl_b32 s{sT}, s{sG32}, 2\ns_add_u32 s{sT}, s{sT}, s{sWV}\ns_add_u32 s{sT}, s{sT}, {C_XT}\ns_lshl_b32 s{sT}, s{sT}, 7")
    s_inc(k, pWS, f"s{sT}", sE3)
    ring(3)
    for i in range(12): p(f"v_add_f32 v{KA+i}, v{KA+i}, v{G0+i}")
    late(3)
    bar(2, None)
    ring(4)
    late(1)
    bar(3, None)
    ring(5)
    late(2)
    bar(4, None)
    stamp(k, cfg, 4)
    k(xcl, "xc")
    ring(6)
    late(4); late(5)
    bar(5, None)
    k("\n".join(pw))
    v_poll(k, xcl, CN, 16, sSP, 2, first=False, tag="xc")
    k.wait(lg="*")
    k(gsl, "gs"); k(stl, "st")
    k(f"buffer_load_dwordx4 {V(XW,4)}, v{vXW}, {S(sWS,4)}, 0 offen sc1\nbuffer_load_dwordx4 {V(XW+4,4)}, v{vXW}, {S(sWS,4)}, 0 offen offset:64 sc1", "xw")
    bar(6)
    stamp(k, cfg, 5)
    for i in list(range(11, 14)) + list(range(11)): k(f"ds_read2st64_b32 {V(G0+2*i,2)}, v{GA+i} offset1:13", "ga" if i > 10 else "gb")
    def cvts(ps, x):
        for sg in range(4):
            for jj in range(4): k(f"v_cvt_pk_bf16_f32 v{CP+16*ps+4*sg+jj}, v{x[sg+2*jj]}, v{x[sg+2*jj+1]}")
    k.wait(lg="ga")
    for i in range(11, 14): k(f"v_add_f32 v{XV+i}, v{G0+2*i}, v{G0+2*i+1}")
    k(f"v_cmp_eq_u32 vcc, 1, v{vODD}\nv_cndmask_b32 v{XV+14}, v{XV+12}, v{XV+11}, vcc")
    cvts(0, [XV+12]*3 + [XV+14] + [XV+11]*6 + [XV+13])
    k.wait(vm="st")
    k(f"s_mov_b32 s{sSP}, 0")
    l = k.lab("xp"); o = k.lab("xpo")
    k(f"{l}:")
    k(f"ds_read_b128 {V(GS,4)}, v{vGW}")
    k(f"v_min_u32 v{CN}, v{SV}, v{SV+1}\ns_add_u32 s{sSP}, s{sSP}, 1")
    for i in range(1, 4): k(f"v_min3_u32 v{CN}, v{CN}, v{SV+2*i}, v{SV+2*i+1}")
    for i in range(8): k(f"v_and_b32 v{RR+i}, 0xffff0000, v{SV+i}")
    k.wait(lg="*")
    k(f"v_min3_u32 v{CN}, v{CN}, v{GS+1}, v{GS+3}")
    k(f"v_cmp_eq_u32 vcc, 0, v{CN}\ns_cmp_gt_u32 s{sSP}, {SPIN}\ns_cbranch_scc1 {o}\ns_cbranch_vccz {o}")
    sv = list(k.vm); k(stl); k(gsl); k("s_waitcnt vmcnt(0)"); k.vm = sv
    k(f"s_branch {l}")
    k(f"{o}:")
    stamp(k, cfg, 8, 2)
    k("s_barrier")
    for i in range(11): k(f"v_add_f32 v{XV+i}, v{G0+2*i}, v{G0+2*i+1}")
    cvts(1, [XV+i for i in range(11)])
    for i in range(8): k(f"v_rcp_f32 v{RR+i}, v{RR+i}\nv_lshlrev_b32 v{MM+i}, 16, v{SV+i}")
    k("s_setprio 3")
    k.wait(vm="xw")
    for ch in (0, 1):
        for i in range(4): k(f"v_lshlrev_b32 v{XF+2*i}, 16, v{XW+4*ch+i}\nv_and_b32 v{XF+2*i+1}, 0xffff0000, v{XW+4*ch+i}")
        if ch == 0:
            for i in range(4): k(f"v_pk_mul_f32 {V(MM+2*i,2)}, {V(MM+2*i,2)}, {V(RR+2*i,2)}")
        for i in range(4): k(f"v_pk_fma_f32 {V(XF+2*i,2)}, {V(XF+2*i,2)}, {V(RR+2*i,2)}, {V(MM+2*i,2)} neg_lo:[0,0,1] neg_hi:[0,0,1]")
        for i in range(4): k(f"v_cvt_pk_bf16_f32 v{XW+4*ch+i}, v{XF+2*i}, v{XF+2*i+1}")
    stamp(k, cfg, 9, 2)
    for ch in (0, 1): k(f"ds_write_b128 v{UW}, {V(XW+4*ch,4)} offset:{4576*ch}")
    for ps in (0, 1):
        for sg in range(4): k(f"ds_write_b128 v{EW}, {V(CP+16*ps+4*sg,4)} offset:{sg*4160 + ps*2048}")
    k(f"ds_write_b128 v{TZ}, {V(ZERO,4)} offset:4096")
    lds_signal(k, VSY, SY_U, VONE)
    lds_spin(k, VSY, SY_U, 4, 50, sT, sSP, 1)
    p.q = [(g + (f'\ns_sleep {cfg.ssleep}' if cfg.ssleep else ''), t) for b in range(cfg.gblk, 7) for g, t in w2dma(b, sW2D)]; p.pace = 4; p.pop()
    Y, FS = 68, [100, 164]
    def a_reads(r, F):
        return [[f"ds_read_b64 {V(F+4*a+2*e,2)}, v{CA} offset:{(7-a)*512 + (3-r)*64 + 8*e}" for e in (0, 1)] for a in range(8)]
    def b_reads(r, F):
        return [[f"ds_read_b128 {V(F+32+4*c,4)}, v{CBA} offset:{c*512 + (3-r)*64}"] for c in range(8)]
    for g in a_reads(0, FS[0]) + b_reads(0, FS[0]): p("\n".join(g))
    p.flush()
    k.wait(vm="*")
    lds_signal(k, vSC, SY_W2, VONE)
    stamp(k, cfg, 10, 2)
    lds_spin(k, vSC, SY_M, 1, 50, sT, sSP, 1)
    k("s_setprio 3")
    stamp(k, cfg, 6); stamp(k, cfg, 11, 2)
    for r in range(4):
        F = FS[r & 1]; nxt = []
        if r < 3:
            A_, B_ = a_reads(r+1, FS[(r+1) & 1]), b_reads(r+1, FS[(r+1) & 1])
            nxt = [x for g in A_ for x in g] + [x for g in B_ for x in g]
        n = 0
        if r > 0: k.wait(lg="*")
        if r == 3: lds_signal(k, VSY, 8, VONE)
        for c in range(8):
            for a in range(8 - c):
                J = a + c
                k(f"v_mfma_f32_16x16x32_bf16 {V(Y+4*J,4)}, {V(F+4*a,4)}, {V(F+32+4*c,4)}, {'0' if (r == 0 and c == 0) else V(Y+4*J,4)}")
                if n < len(nxt): k(nxt[n]); n += 1
        assert n == len(nxt)
    stamp(k, cfg, 7)
    if cfg.x_nos2:
        k("s_barrier"); prof_dump(k, cfg, True); k("s_endpgm"); return
    EX, YS = 100, 116
    k(f"s_lshl_b32 s{sT}, s{sWV}, 12\ns_add_u32 s{sT}, s{sT}, 16384\nv_lshl_add_u32 v51, v0, 4, s{sT}\nv_xor_b32 v52, 0x1000, v51")
    k(f"v_bfe_u32 v53, v0, 4, 1\nv_lshlrev_b32 v53, 9, v53\nv_and_b32 v54, 15, v0\nv_lshl_add_u32 v53, v54, 5, v53\nv_lshrrev_b32 v54, 5, v0\nv_lshl_add_u32 v53, v54, 4, v53")
    k(f"v_lshl_add_u32 v55, s{sCS}, 2, v{VSY}")
    lds_spin(k, VSY, 8, 4, 50, sT, sSP)
    l1 = k.lab("h1"); l2 = k.lab("hj")
    k(f"s_cmp_eq_u32 s{sHH}, 1\ns_cbranch_scc1 {l1}")
    for i in range(4): k(f"ds_write_b128 v51, {V(Y+16+4*i,4)} offset:{1024*i}")
    k(f"s_branch {l2}")
    k(f"{l1}:")
    for i in range(4): k(f"ds_write_b128 v51, {V(Y+4*i,4)} offset:{1024*i}")
    k("s_nop 1")
    for i in range(16): k(f"v_mov_b32 v{Y+i}, v{Y+16+i}")
    k(f"{l2}:")
    lds_signal(k, 55, 16, VONE)
    k(f"s_lshl_b32 s{sO1}, s{sCP}, 1\ns_add_u32 s{sO1}, s{sO1}, s{sCS}")
    k(f"s_lshr_b32 s{sT}, s{sO1}, 6\ns_lshl_b32 s{sT}, s{sT}, 1\ns_add_u32 s{sT}, s{sT}, s{sHH}\ns_lshl_b32 s{sT}, s{sT}, 2\ns_bfe_u32 s{sT2}, s{sO1}, 0x20004")
    k(f"s_add_u32 s{sT}, s{sT}, s{sT2}\ns_add_u32 s{sT}, s{sT}, {C_ST}\ns_lshl_b32 s{sO2}, s{sT}, 7")
    k(f"s_lshl_b32 s{sO1}, s{sO1}, 12\ns_lshl_b32 s{sT}, s{sHH}, 11\ns_add_u32 s{sO1}, s{sO1}, s{sT}\ns_add_u32 s{sO1}, s{sO1}, {ST}")
    lds_spin(k, 55, 16, 2, 50, sT, sSP)
    for i in range(4): k(f"ds_read_b128 {V(EX+4*i,4)}, v52 offset:{1024*i}", f"e{i}")
    for i in range(4):
        k.wait(lg=f"e{i}")
        for e in range(4): k(f"v_add_f32 v{Y+4*i+e}, v{Y+4*i+e}, v{EX+4*i+e}")
        for e in (0, 1): k(f"v_cvt_pk_bf16_f32 v{YS+2*i+e}, v{Y+4*i+2*e}, v{Y+4*i+2*e+1}")
    for g in (0, 1):
        for e in (0, 1): k(f"v_permlane16_swap_b32 v{YS+4*g+e}, v{YS+4*g+2+e}")
        k(f"buffer_store_dwordx4 {V(YS+4*g,4)}, v53, {S(sWS,4)}, s{sO1} offen offset:{1024*g} sc1", "sts")
    XE, SE, OA, RA = 100, 108, 64, 68
    k(f"s_lshl_b32 s{sRB}, s{sXCD}, 2\ns_add_u32 s{sRB}, s{sRB}, s{sR}")
    k(f"v_lshrrev_b32 v50, 3, v0\nv_and_b32 v51, 7, v0\nv_mul_u32_u24 v52, 896, v50\nv_lshl_add_u32 v{OA}, v51, 4, v52")
    k(f"s_lshl_b32 s{sT}, s{sRB}, 2\ns_add_u32 s{sT}, s{sT}, s{sWV}\ns_mul_i32 s{sG32}, s{sT}, {16*896}\ns_lshl_b32 s{sT}, s{sC}, 7\ns_add_u32 s{sG32}, s{sG32}, s{sT}\ns_add_u32 s{sKAP}, s{sG32}, {8*896}")
    k.wait(vm="sts")
    s_inc(k, pWS, f"s{sO2}", sHH)
    stamp(k, cfg, 8)
    k(f"buffer_load_dwordx4 {V(XE,4)}, v{OA}, {S(sX,4)}, s{sG32} offen\nbuffer_load_dwordx4 {V(XE+4,4)}, v{OA}, {S(sX,4)}, s{sKAP} offen")
    k(f"v_lshlrev_b32 v52, 1, v51\nv_xor_b32 v52, v52, v50\nv_lshlrev_b32 v52, 4, v52\nv_lshl_add_u32 v52, v50, 8, v52\ns_lshl_b32 s{sT}, s{sWV}, 14\ns_add_u32 s{sT}, s{sT}, {L_GB}")
    k(f"v_add_u32 v{RA}, s{sT}, v52\nv_xor_b32 v{RA+1}, 16, v{RA}\nv_xor_b32 v{RA+2}, 0x880, v{RA}\nv_xor_b32 v{RA+3}, 0x890, v{RA}")
    k(f"v_lshlrev_b32 v53, 12, v50\nv_lshl_add_u32 v53, v51, 4, v53")
    k(f"s_lshl_b32 s{sT}, s{sWV}, 1\nv_xor_b32 v54, s{sT}, v51\nv_lshlrev_b32 v54, 4, v54\nv_lshl_add_u32 v54, v51, 10, v54\nv_lshl_add_u32 v54, v50, 1, v54\nv_add_u32 v54, {L_U}, v54\nv_xor_b32 v56, 16, v54")
    k(f"v_xor_b32 v57, s{sT}, v51\nv_lshlrev_b32 v57, 4, v57\nv_lshl_add_u32 v57, v50, 7, v57\ns_lshl_b32 s{sT}, s{sWV}, 11\ns_add_u32 s{sT}, s{sT}, {L_U}\nv_add_u32 v57, s{sT}, v57\nv_xor_b32 v58, 16, v57")
    k(f"s_lshl_b32 s{sT}, s{sC}, 1\ns_lshr_b32 s{sT2}, s{sRB}, 4\ns_add_u32 s{sT}, s{sT}, s{sT2}\ns_lshl_b32 s{sT}, s{sT}, 2\ns_add_u32 s{sT}, s{sT}, {C_ST}\ns_lshl_b32 s{sO1}, s{sT}, 7")
    k(f"s_lshl_b32 s{sT}, s{sC}, 2\ns_add_u32 s{sT}, s{sT}, s{sWV}\ns_lshl_b32 s{sT}, s{sT}, 16\ns_lshl_b32 s{sT2}, s{sRB}, 7\ns_add_u32 s{sT}, s{sT}, s{sT2}\ns_add_u32 s{sO2}, s{sT}, {ST}\ns_add_u32 s{sFC}, s{sO2}, 32768")
    k(f"s_lshl_b32 s{sT}, s{sWV}, 7\ns_add_u32 s{sO1}, s{sO1}, s{sT}\ns_mov_b32 s{sSP}, 0")
    if cfg.stpoll[0] == "s": s_poll(k, pWS, [f"s{sO1}"], 16, sT, sSP, cfg.stpoll[1])
    else: v_poll(k, f"buffer_load_dword v59, off, {S(sWS,4)}, s{sO1} sc1", 59, 16, sSP, cfg.stpoll[1])
    k(f"buffer_load_dwordx4 {V(SE,4)}, v53, {S(sWS,4)}, s{sO2} offen sc1\nbuffer_load_dwordx4 {V(SE+4,4)}, v53, {S(sWS,4)}, s{sFC} offen sc1")
    XU, SU = 120, 136
    k("s_waitcnt vmcnt(2)")
    for i in range(8): k(f"v_lshlrev_b32 v{XU+2*i}, 16, v{XE+i}\nv_and_b32 v{XU+2*i+1}, 0xffff0000, v{XE+i}")
    k.wait(vm="*")
    stamp(k, cfg, 9)
    for i in (0, 1):
        for e in range(8): k(f"ds_write_b16{'_d16_hi' if e & 1 else ''} v{54+2*i}, v{SE+4*i+(e>>1)} offset:{128*e}")
    lds_signal(k, VSY, 24, VONE)
    lds_spin(k, VSY, 24, 4, 50, sT, sSP)
    k(f"ds_read_b128 {V(SE,4)}, v57\nds_read_b128 {V(SE+4,4)}, v58 offset:1024")
    k.wait(lg="*")
    for i in range(8): k(f"v_lshlrev_b32 v{SU+2*i}, 16, v{SE+i}\nv_and_b32 v{SU+2*i+1}, 0xffff0000, v{SE+i}")
    k(f"s_mov_b32 s{sT}, {fbits(-LOG2E)}\ns_setprio 3")
    k("s_barrier")
    stamp(k, cfg, 10)
    PR, T = 160, 224
    for p in (0, 1):
        for w in range(4):
            for e in (0, 1): k(f"ds_read_b128 {V(PR+32*p+8*w+4*e,4)}, v{RA+2*p+e} offset:{4096*w}", f"p{p}{w}")
    for p in (0, 1):
        b = PR + 32*p
        k.wait(lg=f"p{p}1")
        for i in range(4): k(f"v_pk_add_f32 {V(b+2*i,2)}, {V(b+2*i,2)}, {V(b+8+2*i,2)}")
        k.wait(lg=f"p{p}3")
        for i in range(4): k(f"v_pk_add_f32 {V(b+16+2*i,2)}, {V(b+16+2*i,2)}, {V(b+24+2*i,2)}")
        for i in range(4): k(f"v_pk_add_f32 {V(b+2*i,2)}, {V(b+2*i,2)}, {V(b+16+2*i,2)}")
        for i in range(8): k(f"v_mul_f32 v{T+i}, s{sT}, v{b+i}")
        for i in range(8): k(f"v_exp_f32 v{T+i}, v{T+i}")
        for i in range(4): k(f"v_pk_mul_f32 {V(b+2*i,2)}, {V(b+2*i,2)}, {V(SU+8*p+2*i,2)}")
        for i in range(4): k(f"v_pk_add_f32 {V(T+2*i,2)}, {V(T+2*i,2)}, 1.0 op_sel_hi:[1,0]")
        for i in range(8): k(f"v_rcp_f32 v{T+i}, v{T+i}")
        for i in range(4): k(f"v_pk_fma_f32 {V(b+2*i,2)}, {V(b+2*i,2)}, {V(T+2*i,2)}, {V(XU+8*p+2*i,2)}")
        for i in range(4): k(f"v_cvt_pk_bf16_f32 v{b+8+i}, v{b+2*i}, v{b+2*i+1}")
        k(f"buffer_store_dwordx4 {V(b+8,4)}, v{OA}, {S(sOUT,4)}, s{sG32 if p == 0 else sKAP} offen {cfg.outmod}")
    stamp(k, cfg, 11)
    prof_dump(k, cfg, True)
    k("s_endpgm")

def gen_helper(k, cfg):
    k.reset()
    k("L_helper:")
    sHB, sIH, sST = 62, 63, 64
    if cfg.codepf:
        lp = k.lab("pc")
        k(f"s_getpc_b64 s[72:73]\n{lp}:\ns_sub_u32 s72, s72, {lp}-{KNAME}\ns_subb_u32 s73, s73, 0")
        k(f"s_lshl_b32 s{sT}, s{sJ}, 3\ns_add_u32 s{sT}, s{sT}, s3\ns_lshl_b32 s{sT}, s{sT}, 10\nv_and_b32 v1, 15, v0\nv_lshl_add_u32 v1, v1, 6, s{sT}")
        k(f"v_min_u32 v1, L_end-{KNAME}, v1\nv_mov_b32 v3, s73\nv_add_co_u32 v2, vcc, s72, v1\nv_addc_co_u32 v3, vcc, 0, v3, vcc\nglobal_load_dword v7, v[2:3], off")
    k(f"s_lshl_b32 s{sHB}, s{sXCD}, 2\ns_add_u32 s{sHB}, s{sHB}, s{sJ}")
    k(f"s_lshr_b32 s{sIH}, s{sXCD}, 1\ns_lshl_b32 s{sIH}, s{sIH}, 2\ns_add_u32 s{sIH}, s{sIH}, s{sJ}\ns_and_b32 s{sST}, s{sXCD}, 1\ns_mul_i32 s{sST}, s{sST}, 14\ns_add_u32 s{sST}, s{sST}, s{sIH}")
    k(f"s_lshl_b32 s{sT}, s{sHB}, 3\ns_add_u32 s{sT}, s{sT}, s3\ns_mul_i32 s65, s{sT}, {8*896}")
    k(f"v_lshrrev_b32 v1, 3, v0\nv_and_b32 v2, 7, v0\nv_mul_u32_u24 v3, 896, v1\nv_lshl_add_u32 v3, v2, 4, v3")
    k(f"v_lshlrev_b32 v4, 4, v0\nv_and_b32 v5, 1, v0\nv_lshlrev_b32 v5, 12, v5\nv_lshrrev_b32 v6, 1, v0\nv_lshl_add_u32 v5, v6, 4, v5")
    k(f"v_mul_u32_u24 v15, 3584, v1\nv_lshl_add_u32 v15, v2, 4, v15")
    for i in range(4): k(f"v_mov_b32 v{8+i}, 0")
    k(f"s_lshl_b32 s66, s{sHB}, 10\ns_lshl_b32 s67, s{sHB}, 7\ns_add_u32 s67, s67, {STATS}")
    k(f"s_lshl_b32 s69, s{sST}, 9\ns_add_u32 s69, s69, {AUGW}\ns_mul_i32 s70, s3, {56*3584}\ns_lshl_b32 s74, s{sST}, 7\ns_add_u32 s70, s70, s74")
    srd_const(k, sAUX, 256); srd_const(k, sWS, WSN); srd_const(k, sX, 1835008); srd_const(k, sW1, 1605632); srd_const(k, sW2, 1605632); srd_const(k, sOUT, 3584)
    k(f"s_cmp_lt_u32 s{sIH}, 14\ns_cselect_b32 s69, s69, {WSN}\ns_cselect_b32 s70, s70, {WSN}")
    k("s_waitcnt lgkmcnt(0)")
    srd(k, sX, pX); srd(k, sWS, pWS); srd(k, sAUX, pDBG); srd(k, sW1, pW1); srd(k, sW2, pW2); srd(k, sOUT, pB1)
    l0 = k.lab("h0")
    k(f"s_cmp_lg_u32 s3, 0\ns_cbranch_scc1 {l0}")
    k(f"buffer_store_dwordx4 v[8:11], v4, {S(sWS,4)}, s66 offen sc1")
    k(f"s_mov_b64 exec, 0xffff\nbuffer_store_dwordx4 v[8:11], v5, {S(sWS,4)}, s67 offen sc1\ns_mov_b64 exec, -1\nv_lshlrev_b32 v12, 3, v0\nbuffer_store_dwordx2 v[8:9], v12, {S(sWS,4)}, s69 offen sc1")
    k(f"{l0}:")
    k.reset()
    for i in range(7): k(f"buffer_load_dwordx4 {V(16+4*i,4)}, v3, {S(sX,4)}, s65 offen offset:{128*i}", f"x{i}")
    l1 = k.lab("h1")
    k(f"s_cmp_lg_u32 s3, 0\ns_cbranch_scc1 {l1}")
    k("s_waitcnt vmcnt(7)")
    s_inc(k, pDBG, "0", 75)
    k(f"{l1}:")
    for i in range(7): k(f"s_add_u32 s75, s70, {i*8*3584}\nbuffer_load_dwordx4 {V(44+4*i,4)}, v15, {S(sW1,4)}, s75 offen".replace("s75", "s76"), f"w{i}")
    k(f"v_lshlrev_b32 v6, 1, v0\nbuffer_load_ushort v81, v6, {S(sOUT,4)}, s74 offen", "b1")
    k("v_mov_b32 v12, 0\nv_mov_b32 v13, 0\ns_mov_b32 s68, 0x3f803f80")
    for i in range(7):
        k.wait(vm=f"x{i}")
        for e in range(4): k(f"v_dot2c_f32_bf16 v12, s68, v{16+4*i+e}\nv_dot2c_f32_bf16 v13, v{16+4*i+e}, v{16+4*i+e}")
    for m in ("quad_perm:[1,0,3,2]", "quad_perm:[2,3,0,1]", "row_half_mirror"):
        for r in (12, 13): k(f"v_add_f32_dpp v{r}, v{r}, v{r} {m} row_mask:0xf bank_mask:0xf")
    k(f"v_mul_f32 v12, {fbits(1/448)}, v12\nv_mul_f32 v13, {fbits(1/448)}, v13\nv_fma_f32 v13, -v12, v12, v13\nv_max_f32 v13, 0, v13")
    k(f"v_cvt_pk_bf16_f32 v13, v13, v13\nv_and_b32 v13, 0xffff0000, v13\nv_add_f32 v13, {fbits(1e-5)}, v13\nv_cvt_pk_bf16_f32 v13, v13, v13\nv_and_b32 v13, 0xffff0000, v13")
    k(f"v_sqrt_f32 v13, v13\nv_lshl_add_u32 v14, s3, 3, v1\nv_lshlrev_b32 v14, 2, v14\nv_cvt_pk_bf16_f32 v12, v12, v13")
    k("ds_write_b32 v14, v12")
    k("v_and_b32 v12, 1, v0\nv_lshlrev_b32 v12, 4, v12\nv_mov_b32 v13, 0xbf80\nv_lshlrev_b32 v13, v12, v13\nv_bfe_u32 v12, v0, 1, 2")
    for e in range(4): k(f"v_cmp_eq_u32 vcc, {e}, v12\nv_cndmask_b32 v{72+e}, 0, v13, vcc")
    k.wait(lg="*")
    k("s_barrier")
    l2 = k.lab("h2")
    k(f"s_cmp_lg_u32 s3, 0\ns_cbranch_scc1 {l2}")
    k("s_mov_b64 exec, 0xffff\nds_read_b128 v[8:11], v4")
    k.wait(lg="*")
    sv = list(k.vm); k(f"buffer_store_dwordx4 v[8:11], v5, {S(sWS,4)}, s67 offen sc1\ns_mov_b64 exec, -1\ns_waitcnt vmcnt(1)"); k.vm = sv
    k(f"{l2}:")
    stamp(k, cfg, 1)
    pf = []
    k(f"v_lshlrev_b32 v14, 7, v0\ns_mul_i32 s76, s{sJ}, 401408\ns_mul_i32 s77, s{sXCD}, 49\ns_lshr_b32 s77, s77, 3\ns_add_u32 s77, s77, s3")
    for i in range(cfg.w2pf):
        k(f"s_sub_u32 s71, s77, 49\ns_cmp_ge_u32 s77, 49\ns_cselect_b32 s77, s71, s77\ns_lshl_b32 s71, s77, 13\ns_add_u32 s71, s71, s76\ns_add_u32 s77, s77, 8")
        if i > 0: k(f"buffer_load_dword v{90+i}, v14, {S(sW2,4)}, s71 offen", "pf")
        if i == 0:
            for j in range(7):
                k.wait(vm=f"w{j}")
                k(f"v_mfma_f32_16x16x32_bf16 v[76:79], {V(44+4*j,4)}, v[72:75], {'0' if j == 0 else 'v[76:79]'}")
            k(f"v_lshrrev_b32 v12, 5, v0\nv_lshl_add_u32 v12, s3, 1, v12\nv_lshlrev_b32 v12, 8, v12\nv_bfe_u32 v13, v0, 4, 1\nv_lshl_add_u32 v12, v13, 7, v12\nv_lshl_add_u32 v12, v2, 2, v12\nv_add_u32 v12, 1024, v12")
            k("ds_write2_b32 v12, v76, v77 offset0:0 offset1:8\nds_write2_b32 v12, v78, v79 offset0:16 offset1:24")
            k.wait(vm="b1", lg="*")
            k(f"buffer_load_dword v{90+i}, v14, {S(sW2,4)}, s71 offen", "pf")
            k("s_barrier")
            l3 = k.lab("h3")
            k(f"s_cmp_lg_u32 s3, 0\ns_cbranch_scc1 {l3}")
            k("v_lshlrev_b32 v12, 2, v0")
            for j in range(8): k(f"ds_read2st64_b32 {V(16+2*j,2)}, v12 offset0:{4+2*j} offset1:{5+2*j}")
            k.wait(lg="*")
            for st_ in (1, 2, 4, 8):
                for j in range(0, 16, 2*st_): k(f"v_add_f32 v{16+j}, v{16+j}, v{16+j+st_}")
            k(f"v_cvt_pk_bf16_f32 v12, v16, v16\nv_and_b32 v12, 0xffff0000, v12\nv_sub_f32 v12, v16, v12\nv_cvt_pk_bf16_f32 v80, v16, v12\nv_or_b32 v81, 0x10000, v81\nv_lshlrev_b32 v12, 3, v0")
            k(f"buffer_store_dwordx2 v[80:81], v12, {S(sWS,4)}, s69 offen sc1")
            k(f"{l3}:")
            stamp(k, cfg, 2)
    k("s_waitcnt vmcnt(0)")
    stamp(k, cfg, 3)
    prof_dump(k, cfg)
    k("L_end:")
    k("s_endpgm")

HEADER = open("recurrent_scan__ssm_conv_s4__dense_activation_mish__prompt.s.ref").read().split("; Override launch")[0] if __name__ == "__main__" else ""
def build(cfg, header=""):
    k = K()
    front(k, cfg); vm0 = list(k.vm); gen_G(k, cfg); gen_S(k, cfg, vm0); gen_helper(k, cfg)
    return file_wrap([(KNAME, 256, 512, L_TOT)], [kernel_wrap(KNAME, k.text(), 256).replace('denorm_mode_32 3', f'denorm_mode_32 {cfg.denorm}')], header), k

if __name__ == "__main__":
    cfg = Cfg()
    for a in sys.argv[2:]:
        n, v = a.split("="); setattr(cfg, n, eval(v))
    txt, k = build(cfg, HEADER)
    open(sys.argv[1], "w").write(txt)
    print("instructions", len(k.ins), "padded states", k.padded)
```

```python
import sys, struct
from kasm import *
from asmlib import KNAME, kernel_wrap, file_wrap

def fbits(x): return "0x%08x" % struct.unpack("<I", struct.pack("<f", x))[0]
LOG2E = 1.4426950408889634

AUGW = 0xA000
CNT, STATS, PROF, XT, ST, ACT, KDBG, WSN = 0, 0x8000, 0x10000, 0x100000, 0x300000, 0x500000, 0xD00000, 0x2000000
C_ACT, C_XT, C_ST = 0, 128, 184
L_WS, L_XS = [81920, 98304, 0], [49152, 65536, 16384]
L_GB, L_KC, L_U, L_SY, L_TOT = 49152, 14336, 0, 13312, 163840
L_PART, L_PCH, L_GS = 84480, 6864, L_U + 9216
sX, sW1, sW2, sWS, sAUX, sOUT = 4, 8, 12, 16, 20, 24
pX, pARE, pLDT, pDSK, pW1, pB1, pW2, pOUT, pDBG, pWS = 28, 30, 42, 44, 48, 50, 52, 54, 56, 58
sXCD, sJ, sR, sC, sRB, sFC, sKAP = 60, 61, 62, 63, 64, 65, 66
SPIN = 200000

class Cfg:
    prof = False
    kdbg = False
    span = False
    cyc = False
    depth = 6
    rot = False
    stpoll = ('s', 8)
    actsleep = 1
    c1at = [14, 22, 30, 38]
    statstep = 20
    pace2 = 20
    pace = 7
    actpf = 0
    w2pf = 1
    codepf = True
    outmod = ""
    pbar = False
    flagat = 1
    cut = [3, 4]
    early = 0
    touch = 1
    xtearly = True
    gc1early = True
    w2from = 22
    rdlag = 4
    pollat = 6
    cvprio = 1
    g2prio = 0
    finsleep = 0
    psplit = True
    xtbar = 1
    hxfirst = True
    gearly = 1
    c0late = 1
    r2cut = 8
    sblk = True
    split = 'r'
    x_noconv = False
    cvfree = 3
    tailn = 8
    gblk = 4
    x_noside = False
    x_nodma = False
    x_nobar = False
    x_nokw = False
    x_acthit = False
    x_nos2 = False
    ssleep = 0
    stat = [0,1,2,3,4,5,6,7]
    actmod = 'sc1'
    x_noc01 = False
    kbar = False
    kdelay = False
    kprio = 0
    denorm = 3

def srd(k, d, ptr): k(f"s_mov_b64 {S(d,2)}, {S(ptr,2)}")
def srd_const(k, d, n): k(f"s_mov_b32 s{d+2}, {n}\ns_mov_b32 s{d+3}, 0x20000")

def stamp(k, cfg, i, mode=1):
    if cfg.cyc and cfg.prof and (mode == int(cfg.prof) or i == 0):
        k(f"s_memtime {S(78+2*i,2)}"); return
    if (cfg.span and i == 0) or cfg.prof and (int(cfg.prof) == mode or i == 0): k(f"s_memrealtime {S(78+2*i,2)}")
def cstamp(k, cfg, i, mode=2):
    if int(cfg.prof) == mode: k(f"s_memtime {S(78+2*i,2)}")
def prof_dump(k, cfg, last=False):
    if cfg.span == 2 and last:
        k("L_pad:\ns_memrealtime s[80:81]\ns_waitcnt lgkmcnt(0)\ns_sub_u32 s80, s80, s78\ns_cmp_lt_u32 s80, 4000\ns_cbranch_scc1 L_pad")
    if cfg.span == 1 and last:
        k("s_memrealtime s[80:81]\ns_waitcnt lgkmcnt(0)\ns_not_b32 s78, s78\nv_mov_b32 v4, s78\nv_mov_b32 v5, s80\ns_mov_b64 exec, 1")
        k("s_cmp_lg_u32 s3, 4\ns_cbranch_scc1 L_end")
        k(f"buffer_atomic_umax v4, off, {S(sAUX,4)}, 0 offset:8\nbuffer_atomic_umax v5, off, {S(sAUX,4)}, 0 offset:12")
    if not cfg.prof: return
    k("s_waitcnt lgkmcnt(0)")
    k("s_lshl_b32 s76, s2, 3\ns_add_u32 s76, s76, s3\ns_lshl_b32 s76, s76, 6\ns_add_u32 s76, s76, %d" % PROF)
    k("s_mov_b64 exec, 1")
    for q in range(3):
        for e in range(4): k(f"v_mov_b32 v{4+e}, s{78+2*(4*q+e)}")
        k(f"buffer_store_dwordx4 v[4:7], off, {S(sWS,4)}, s76 offset:{16*q}")
    k("s_mov_b64 exec, -1")

def atomic_inc(k, srdreg, soff, vt):
    k(f"v_mov_b32 v{vt}, 1\ns_mov_b64 exec, 1")
    k(f"buffer_atomic_add v{vt}, off, {S(srdreg,4)}, {soff} sc1", "atom")
    k("s_mov_b64 exec, -1")

def s_inc(k, ptr, soff, st):
    k(f"s_mov_b32 s{st}, 1\ns_atomic_add s{st}, {S(ptr,2)}, {soff}")
def s_poll(k, ptr, soffs, want, st, sc, sleep=0):
    l = k.lab("sp"); o = k.lab("spo")
    k(f"s_mov_b32 s{sc}, 0")
    k(f"{l}:")
    for i, so in enumerate(soffs): k(f"s_load_dword s{st+i}, {S(ptr,2)}, {so} glc")
    k(f"s_add_u32 s{sc}, s{sc}, 1")
    k.wait(lg="*")
    k(f"s_cmp_gt_u32 s{sc}, {SPIN}\ns_cbranch_scc1 {o}")
    for i in range(1, len(soffs)): k(f"s_min_u32 s{st}, s{st}, s{st+i}")
    if sleep: k(f"s_cmp_ge_u32 s{st}, {want}\ns_cbranch_scc1 {o}\ns_sleep {sleep}\ns_branch {l}")
    else: k(f"s_cmp_lt_u32 s{st}, {want}\ns_cbranch_scc1 {l}")
    k(f"{o}:")
def v_poll(k, load, vt, want, sc, sleep=0, first=True, tag="*"):
    l = k.lab("vp"); o = k.lab("vpo")
    if first: k(load)
    k(f"s_mov_b32 s{sc}, 0")
    k.wait(vm=tag)
    k(f"{l}:")
    k(f"v_cmp_gt_u32 vcc, {want}, v{vt}\ns_add_u32 s{sc}, s{sc}, 1\ns_cmp_gt_u32 s{sc}, {SPIN}\ns_cbranch_scc1 {o}\ns_cbranch_vccz {o}")
    if sleep: k(f"s_sleep {sleep}")
    sv = list(k.vm); k(load); k("s_waitcnt vmcnt(0)"); k.vm = sv
    k(f"s_branch {l}")
    k(f"{o}:")

def lds_signal(k, vaddr, off, vone):
    k("s_mov_b64 exec, 1")
    k(f"ds_add_u32 v{vaddr}, v{vone} offset:{off}", "sig")
    k("s_mov_b64 exec, -1")
def lds_spin(k, vaddr, off, want, vt, st, sc, sleep=0):
    l = k.lab("spin"); o = k.lab("spun")
    k(f"s_mov_b32 s{sc}, 0")
    k(f"{l}:")
    k(f"ds_read_b32 v{vt}, v{vaddr} offset:{off}\ns_add_u32 s{sc}, s{sc}, 1")
    k.wait(lg="*")
    k(f"v_readfirstlane_b32 s{st}, v{vt}\ns_cmp_gt_u32 s{sc}, {SPIN}\ns_cbranch_scc1 {o}")
    if sleep: k(f"s_cmp_ge_u32 s{st}, {want}\ns_cbranch_scc1 {o}\ns_sleep {sleep}\ns_branch {l}")
    else: k(f"s_cmp_lt_u32 s{st}, {want}\ns_cbranch_scc1 {l}")
    k(f"{o}:")

sCP, sCS, sCOL, sM, sT, sT2, sSP, sO1, sO2, sDO, sDM = 67, 68, 69, 70, 71, 72, 73, 74, 75, 76, 77
sXO, sWO, sA2, sB2, sDT, sDT2, sE0, sE1, sE2, sE3 = 30, 31, 32, 33, 34, 35, 36, 37, 38, 39
sHH, sG32, sKM = 40, 41, 46
sRX, sRW, gXD = 40, 41, 240
AB, BB, CB, X1, X8, X256, W1, W8, W256, W2, W4, TT, Z0, Z1, PK = 100, 102, 104, 106, 108, 110, 112, 114, 116, 118, 120, 122, 124, 126, 128
KWG, KR, PA, DSK, DT, VD, VF, UF, KA = 132, 140, 141, 145, 146, 150, 160, 192, 224
LOC = [4, 6, 1, 0, 3, 5, 2]
SY_GS, SY_RING, SY_RD, SY_U, SY_PAIR, SY_S, SY_W2, SY_M = 0, 4, 8, 12, 16, 24, 32, 48

def x_offsets(k, d):
    k(f"v_lshrrev_b32 v154, 3, v0\nv_and_b32 v155, 7, v0\nv_lshrrev_b32 v156, 4, v0\nv_xor_b32 v155, v155, v156")
    k(f"v_lshl_add_u32 v154, s{sCOL}, 5, v154\nv_mul_u32_u24 v154, 896, v154\nv_lshl_add_u32 v{d}, v155, 4, v154\nv_xor_b32 v155, 64, v{d}")
    k(f"v_add_u32 v{d+1}, 6144, v155\nv_add_u32 v{d+2}, {2*6144}, v{d}\nv_add_u32 v{d+3}, {3*6144}, v155")
def w1_offsets(k, d):
    k(f"v_lshrrev_b32 v154, 4, v0\nv_and_b32 v155, 15, v0\nv_lshlrev_b32 v156, 2, v154\nv_xor_b32 v155, v155, v156")
    k(f"v_lshl_add_u32 v154, s{sCOL}, 4, v154\nv_mul_u32_u24 v154, 3584, v154\nv_lshl_add_u32 v{d}, v155, 4, v154")
    for n in (1,2,3): k(f"v_add_u32 v{d+n}, {n*13312}, v{d}")
def w2_offsets(k, d):
    k(f"v_lshrrev_b32 v154, 3, v0\nv_and_b32 v155, 7, v0\nv_bfe_u32 v156, v0, 4, 1\nv_lshlrev_b32 v156, 2, v156\nv_xor_b32 v155, v155, v156")
    k(f"v_mul_u32_u24 v154, 896, v154\nv_lshl_add_u32 v{d}, v155, 4, v154")
    for n in (1,2,3): k(f"v_add_u32 v{d+n}, {n*6144}, v{d}")
def w2_bases(k, cfg):
    k(f"s_mul_i32 s{sA2}, s{sCOL}, {448*896}\ns_lshl_b32 s{sT}, s{sC}, 7\ns_add_u32 s{sA2}, s{sA2}, s{sT}\ns_add_u32 s{sB2}, s{sA2}, {224*896}")
    if cfg.rot:
        k(f"s_bitcmp1_b32 s{sC}, 0\ns_cselect_b32 s{sT}, s{sB2}, s{sA2}\ns_cselect_b32 s{sB2}, s{sA2}, s{sB2}\ns_mov_b32 s{sA2}, s{sT}")
def w2dma(b, d):
    base = sA2 if b < 7 else sB2
    out = [f"s_add_u32 m0, s{sM}, {LOC[b%7]*16384}\ns_add_u32 s{sDT}, s{base}, {(b%7)*32*896}\nbuffer_load_dwordx4 v{d}, {S(sW2,4)}, s{sDT} offen lds"]
    for n in (1,2,3): out.append(f"buffer_load_dwordx4 v{d+n}, {S(sW2,4)}, s{sDT} offen offset:{n*1024} lds")
    return [(g, f"w2_{b}") for g in out]
def cmul(k, z, a, w, t):
    k(f"v_pk_mul_f32 {V(t,2)}, {V(a,2)}, {V(w,2)} op_sel_hi:[1,0]")
    k(f"v_pk_fma_f32 {V(z,2)}, {V(a,2)}, {V(w,2)}, {V(t,2)} op_sel:[1,1,0] op_sel_hi:[0,1,1] neg_lo:[0,1,0]")

gW2D, gW2A, gL16, gSY, gONE, gXA, gWA, gSTA, gAGA, gAUG, gSTT, gH = 1, 5, 9, 12, 13, 80, 84, 88, 89, 90, 98, 14
sPW = 22
sGA, ZERO, VSY, VONE, WD, sW2D, XTA, XTS, EW, CA, CBA, UW, TZ = 8, 30, 34, 35, 36, 40, 44, 46, 64, 65, 66, 67, 48

XR = 56
CLRL = f"buffer_load_dword v49, off, {S(sAUX,4)}, 0 sc1"
class Cap:
    def __init__(self): self.l = []
    def __call__(self, text, tag=None): self.l += [x for x in text.split("\n") if x.strip()]

def front(k, cfg):
    stamp(k, cfg, 0)
    k("s_load_dwordx16 s[28:43], s[0:1], 0\ns_load_dwordx16 s[44:59], s[0:1], 64")
    k("s_cmpk_ge_u32 s2, 256\ns_cbranch_scc1 L_end")
    k(f"s_lshr_b32 s{sJ}, s2, 3")
    if cfg.codepf:
        lp = k.lab("pc")
        k(f"s_getpc_b64 s[72:73]\n{lp}:\nv_and_b32 v2, 15, v0\nv_lshl_add_u32 v2, s{sJ}, 4, v2\nv_min_u32 v2, (L_end-{lp})/64, v2\nv_mov_b32 v3, 0")
        k(f"v_lshlrev_b32 v2, 6, v2\nv_lshl_add_u64 v[2:3], v[2:3], 0, s[72:73]\nglobal_load_dword v159, v[2:3], off", "code")
    k(f"s_sub_u32 s{sCP}, s2, 32\ns_cbranch_scc1 L_helper")
    k(f"v_and_b32 v1, 0xff, v0\nv_lshl_add_u32 v1, s{sCP}, 8, v1\nv_lshlrev_b32 v1, 2, v1\ns_lshl_b32 s{sSP}, s{sCP}, 2")
    k("s_waitcnt lgkmcnt(0)")
    stamp(k, cfg, 1, 3)
    for i in range(6): k(f"global_load_dword v{AB+i}, v1, {S(pARE+2*i,2)}", "prm" if (i < 2 or not cfg.psplit) else "prm2")
    k(f"s_load_dword s{sO1}, {S(pLDT,2)}, s{sSP}\ns_load_dword s{sO2}, {S(pDSK,2)}, s{sSP}")
    k("v_lshrrev_b32 v1, 6, v0\nv_and_b32 v0, 63, v0\nv_readfirstlane_b32 s3, v1")
    k(f"s_and_b32 s{sXCD}, s2, 7\ns_sub_u32 s{sJ}, s{sJ}, 4")
    k(f"s_mul_i32 s{sR}, s{sJ}, 37\ns_lshr_b32 s{sR}, s{sR}, 8\ns_mul_i32 s{sC}, s{sR}, 7\ns_sub_u32 s{sC}, s{sJ}, s{sC}")
    k(f"s_lshr_b32 s{sRB}, s{sXCD}, 1\ns_lshl_b32 s{sRB}, s{sRB}, 2\ns_add_u32 s{sRB}, s{sRB}, s{sR}")
    k(f"s_and_b32 s{sFC}, s{sXCD}, 1\ns_mul_i32 s{sFC}, s{sFC}, 7\ns_add_u32 s{sFC}, s{sFC}, s{sC}")
    k(f"s_lshl_b32 s{sKAP}, s{sR}, 1\ns_add_u32 s{sKAP}, s{sKAP}, s{sC}")
    k(f"s_sub_u32 s{sT}, s{sKAP}, 7\ns_cselect_b32 s{sKAP}, s{sKAP}, s{sT}")
    k(f"s_bfe_u32 s{sCS}, s3, 0x10001\ns_and_b32 s{sCOL}, s3, 3\ns_lshl_b32 s{sM}, s{sCOL}, 12\ns_add_u32 s{sM}, s{sM}, {L_GB}")
    k(f"s_mov_b32 s{sW1+3}, 0x20000")
    k("s_cmp_lt_u32 s3, 4\ns_cbranch_scc1 L_f_s")
    w1_offsets(k, VD)
    k(f"s_mul_i32 s{sDO}, s{sKAP}, 229376\ns_lshl_b32 s{sT}, s{sFC}, 8\ns_add_u32 s{sDO}, s{sDO}, s{sT}\ns_add_u32 s{sDM}, s{sM}, {L_WS[0]}\ns_mov_b32 s{sW1+2}, 1605632")
    k(f"s_mov_b32 s{sT2}, 229376\ns_cmp_eq_u32 s{sKAP}, 6\ns_cselect_b32 s{sT2}, {-6*229376}, s{sT2}\ns_mov_b32 s47, 0x03020c0c\ns_mov_b32 s1, 1")
    srd(k, sW1, pW1)
    k("s_branch L_f_j")
    k("L_f_s:")
    x_offsets(k, VD)
    k(f"s_mul_i32 s{sDO}, s{sRB}, 114688\ns_lshl_b32 s{sT}, s{sKAP}, 7\ns_add_u32 s{sDO}, s{sDO}, s{sT}\ns_add_u32 s{sDM}, s{sM}, {L_XS[0]}\ns_mov_b32 s{sW1+2}, 1835008")
    k(f"s_movk_i32 s{sT2}, 128\ns_cmp_eq_u32 s{sKAP}, 6\ns_cselect_b32 s{sT2}, {-6*128}, s{sT2}\ns_mov_b32 s47, 0x01000c0c\ns_mov_b32 s1, 0")
    srd(k, sW1, pX)
    k("L_f_j:")
    k(f"s_mov_b32 m0, s{sDM}")
    if cfg.pbar: k("s_barrier")
    dma = lambda n: "s_nop 0" if cfg.x_noc01 else f"buffer_load_dwordx4 v{VD+n}, {S(sW1,4)}, s{sDO} offen offset:{n*1024} lds"
    if not cfg.c0late:
        for n in range(4): k(dma(n), "c0")
    stamp(k, cfg, 2, 3)
    k(f"s_mov_b32 s0, s{sDO}\ns_add_u32 s{sDO}, s{sDO}, s{sT2}")
    srd(k, sWS, pWS); srd(k, sW2, pW2); srd_const(k, sWS, WSN); srd_const(k, sW2, 1605632)
    srd(k, sX, pX); srd(k, sAUX, pDBG); srd(k, sOUT, pOUT); srd_const(k, sAUX, 256); srd_const(k, sOUT, 1835008); srd_const(k, sX, 1835008)
    w2_bases(k, cfg)
    k(f"s_xor_b32 s{sKM}, s3, 4\ns_mul_i32 s{sKM}, s{sKM}, 8704\ns_mov_b32 m0, s{sKM}\ns_add_u32 s{sT}, s{sKM}, {L_KC}")
    k(f"v_and_b32 v154, 31, v0\nv_lshrrev_b32 v155, 5, v0\nv_mul_u32_u24 v156, 272, v154\nv_lshl_add_u32 v156, v155, 4, v156\nv_add_u32 v{KR}, s{sT}, v156")
    k(f"s_mul_i32 s{sE3}, s{sCS}, {L_PCH}\ns_and_b32 s{sT}, s3, 1\ns_mul_i32 s{sT}, s{sT}, 3328\ns_add_u32 s{sE3}, s{sE3}, s{sT}\ns_add_u32 s{sE3}, s{sE3}, {L_PART}\nv_lshl_add_u32 v{PA}, v0, 4, s{sE3}")
    for i in range(4): k(f"v_mov_b32 v{ZERO+i}, 0")
    k(f"s_mul_i32 s{sT}, s3, 4576\ns_cmp_ge_u32 s3, 2\ns_cselect_b32 s{sT}, {L_SY}, s{sT}\ns_sub_u32 s{sT2}, s{sE3}, 16\ns_cmp_ge_u32 s3, 4\ns_cselect_b32 s{sT}, s{sT2}, s{sT}\ns_cselect_b32 s{sT2}, 0, 29")
    k(f"v_min_u32 v156, s{sT2}, v0\nv_lshl_add_u32 v156, v156, 4, s{sT}\nds_write_b128 v156, {V(ZERO,4)}")
    if cfg.gearly:
        k("s_cmp_eq_u32 s1, 1\ns_cbranch_scc1 L_f_j2")
        setup_G(k, cfg, 0)
        if cfg.gearly == 2: assert not cfg.touch; setup_G(k, cfg, 1)
        k("L_f_j2:")
    def c0issue():
        k(f"s_mov_b32 m0, s{sDM}")
        for n in range(4): k(dma(n).replace(f"s{sDO} offen", "s0 offen"), "c0")
        k(f"s_mov_b32 m0, s{sKM}")
    if cfg.c0late == 1: c0issue()
    stamp(k, cfg, 3, 3)
    k("s_waitcnt lgkmcnt(0)"); k.lg = []
    k(f"s_lshl_b32 s{sT}, s{sCS}, 4\ns_lshr_b32 s{sO1}, s{sO1}, s{sT}\ns_lshl_b32 s{sO1}, s{sO1}, 16\ns_lshr_b32 s{sO2}, s{sO2}, s{sT}\ns_lshl_b32 s{sO2}, s{sO2}, 16")
    k(f"s_and_b32 s{sT}, s3, 5\ns_cselect_b32 s{sO2}, 0, s{sO2}")
    Lhi = struct.unpack("<f", struct.pack("<f", LOG2E))[0]; Llo = LOG2E - Lhi
    k(f"v_mov_b32 v154, {fbits(Lhi)}\nv_mul_f32 v155, s{sO1}, v154\nv_fma_f32 v156, s{sO1}, v154, -v155\nv_mov_b32 v157, {fbits(Llo)}\nv_fmac_f32 v156, s{sO1}, v157")
    k(f"v_exp_f32 v155, v155\nv_mul_f32 v156, {fbits(0.6931471805599453)}, v156\nv_fmac_f32 v155, v155, v156\nv_cvt_pk_bf16_f32 v155, v155, v155\nv_and_b32 v{DT+2}, 0xffff0000, v155")
    k(f"v_mul_f32 v{DT}, v154, v{DT+2}\nv_mul_f32 v{DT+1}, 0.15915494, v{DT+2}")
    k(f"v_mov_b32 v154, s{sO2}\nv_cmp_eq_u32 vcc, 0, v0\nv_cndmask_b32 v{DSK}, 0, v154, vcc")
    k(f"s_mov_b32 s{sO1}, {fbits(8.0)}\ns_mov_b32 s{sO2}, {fbits(256.0)}\nv_mov_b32 v{PK}, 0x3f80")
    k(f"ds_write_addtid_b32 v{PK} offset:{L_KC}")
    stamp(k, cfg, 1)
    if cfg.kprio:
        o = k.lab("kp"); k(f"s_cmp_eq_u32 s1, 0\ns_cbranch_scc1 {o}\ns_setprio {cfg.kprio}\n{o}:")
    stamp(k, cfg, 4, 3)
    k.wait(vm="prm")
    stamp(k, cfg, 2); stamp(k, cfg, 5, 3)
    if cfg.c0late == 2: c0issue()
    def touch():
        o = k.lab("tc"); sv = list(k.vm)
        k(f"s_cmp_eq_u32 s1, 1\ns_cbranch_scc1 {o}")
        k(f"buffer_load_dword v159, v47, {S(sX,4)}, s{sE0} offen")
        k(f"{o}:"); k.vm = sv
    nv = [0]; pend = []
    def put(z, row, neg, last=False):
        p = PK + row % 4
        k(f"v_cvt_pk_bf16_f32 v{p}, v{z}, {'-' if neg else ''}v{z+1}")
        w = f"ds_write_addtid_b32 v{p} offset:{L_KC + 272*row}"
        if cfg.kdelay:
            if pend: k(pend.pop())
            pend.append(w)
            if last or row == 31: k(pend.pop())
        elif not cfg.x_nokw: k(w)
        nv[0] += 1
        if cfg.touch > 1 and nv[0] == cfg.touch: touch()
    for i in (0, 1): k(f"v_perm_b32 v{AB+i}, v{AB+i}, v{AB+i}, s47")
    k(f"v_pk_mul_f32 {V(X1,2)}, {V(AB,2)}, {V(DT,2)}")
    k(f"v_pk_mul_f32 {V(X8,2)}, {V(X1,2)}, {S(sO1,2)} op_sel_hi:[1,0]\nv_pk_mul_f32 {V(X256,2)}, {V(X1,2)}, {S(sO1,2)} op_sel:[0,1] op_sel_hi:[1,1]")
    for x in (X8, X1, X256): k(f"v_fract_f32 v{x+1}, v{x+1}")
    for x, w in ((X8, W8), (X1, W1), (X256, W256)):
        k(f"v_exp_f32 v{x}, v{x}\nv_cos_f32 v{w}, v{x+1}\nv_sin_f32 v{w+1}, v{x+1}")
    for x, w in ((X8, W8), (X1, W1), (X256, W256)):
        k(f"v_pk_mul_f32 {V(w,2)}, {V(w,2)}, {V(x,2)} op_sel_hi:[1,0]")
    if cfg.kbar: k("s_barrier")
    stamp(k, cfg, 6, 3)
    put(W8, 1, False)
    prev = W8
    for b in range(2, 32):
        cmul(k, Z0, prev, W8, TT); prev = Z0; put(Z0, b, False)
    stamp(k, cfg, 7, 3)
    for s in range(8): k(f"ds_read_b128 {V(VF+4*s,4)}, v{KR} offset:{32*s}", "vf")
    k.wait(vm="prm2")
    if cfg.touch == 1: touch()
    for i in range(2, 6): k(f"v_perm_b32 v{AB+i}, v{AB+i}, v{AB+i}, s47")
    cmul(k, Z1, BB, CB, TT)
    k(f"v_pk_mul_f32 {V(Z1,2)}, {V(Z1,2)}, {V(DT+2,2)} op_sel_hi:[1,0]")
    put(Z1, 0, True)
    cmul(k, W2, W1, W1, TT); cmul(k, W4, W2, W2, TT)
    prev = Z1
    for a in range(1, 21):
        if a in (8, 12, 14) or a >= 16: cmul(k, Z1, Z1, W256, TT); prev = Z1
        else: cmul(k, Z0, prev, W1 if a < 8 else (W2 if a < 12 else W4), TT); prev = Z0
        put(prev, a, True, a == 20)
    stamp(k, cfg, 8, 3)
    for s in range(8): k(f"ds_read_b128 {V(UF+4*s,4)}, v{KR} offset:{32*s}", f"uf{s}")
    k(f"s_add_u32 m0, s{sDM}, 16384")
    kmf = lambda s: f"v_mfma_f32_32x32x16_bf16 {V(KA,16)}, {V(UF+4*s,4)}, {V(VF+4*s,4)}, {'0' if s == 0 else V(KA,16)}"
    o = k.lab("c1"); sl = list(k.lg); sv = list(k.vm)
    k(f"s_cmp_eq_u32 s1, 0\ns_cbranch_scc1 {o}")
    cap = Cap(); setup_S(cap, cfg)
    for _ in range(16): k(cap.l.pop(0))
    for s in range(8):
        k.wait(lg=f"uf{s}")
        k(kmf(s))
        if s % 2 == 1: k(dma(s//2), "c1")
        else:
            for _ in range(6): k(cap.l.pop(0))
    stamp(k, cfg, 9, 3)
    k.rest = cap.l; k.vmS = list(k.vm)
    k("s_branch L_S")
    k(f"{o}:"); k.lg = sl; k.vm = sv
    cap = Cap(); setup_G(cap, cfg, 1)
    for _ in range(12): k(cap.l.pop(0))
    for s in range(8):
        k.wait(lg=f"uf{s}")
        k(kmf(s))
        for _ in range(5): k(cap.l.pop(0))
    stamp(k, cfg, 9, 3)
    for _ in range(8): k(cap.l.pop(0))
    k(f"v_add_f32 v{KA}, v{KA}, v{DSK}")
    for r in (1, 2, 0): k(f"ds_write_b128 v{PA}, {V(KA+4*r,4)} offset:{1024*r}")
    while cap.l: k(cap.l.pop(0))
    if cfg.touch: k.vm.append("touch")
    k.wait(vm="c0")
    k(f"ds_read_b64_tr_b16 {V(XR,2)}, v{XTA}\nds_read_b64_tr_b16 {V(XR+2,2)}, v{XTA+1} offset:512", "xt")
    k(f"ds_read_b64_tr_b16 {V(XR+4,2)}, v{XTA+1}\nds_read_b64_tr_b16 {V(XR+6,2)}, v{XTA} offset:512", "xt")
    xts = "\n".join(f"buffer_store_dwordx4 {V(XR+4*g,4)}, v{XTS}, {S(sWS,4)}, s{sE1+g} offen sc1" for g in (0, 1))
    if cfg.xtearly: k.wait(lg="*"); k(xts, "xts")
    for n in range(4): k(dma(n), "c1")
    if not cfg.xtearly: k.wait(lg="*"); k(xts, "xts")
    stamp(k, cfg, 3)
    stamp(k, cfg, 10, 3)
    k("s_barrier")
    stamp(k, cfg, 11, 3)

sCW, sCX, sXD = 48, 53, 44
def chunk_offsets(k, step, sCH, sDO):
    for c in range(2, 7):
        prev = sDO if c == 2 else sCH + c - 3
        k(f"s_add_u32 s{sCH+c-2}, s{prev}, {step}\ns_sub_u32 s{sT}, s{prev}, {6*step}\ns_cmp_eq_u32 s{sKAP}, {7-c}\ns_cselect_b32 s{sCH+c-2}, s{sT}, s{sCH+c-2}")
def chunk(cfg, c):
    out = []
    for vd, srdr, so, slots in ((sXD, sX, sCX, L_XS), (VD, sW1, sCW, L_WS)):
        o = [f"buffer_load_dwordx4 v{vd+n}, {S(srdr,4)}, s{so+c-2} offen offset:{n*1024} lds" for n in range(4)]
        o[0] = f"s_add_u32 m0, s{sM}, {slots[c % 3]}\n" + o[0]
        out += o
    if cfg.x_nodma: out = ["s_nop 0"]*8
    return [(g, f"c{c}") for g in out]

def setup_G(k, cfg, part):
    if part == 0:
        if cfg.touch:
            srd(k, sX, pW1); k(f"s_mov_b32 s{sX+2}, 1605632")
            k(f"v_lshrrev_b32 v47, 2, v0\nv_lshl_add_u32 v47, s{sCOL}, 4, v47\nv_mul_u32_u24 v47, 3584, v47\nv_and_b32 v48, 3, v0\nv_lshl_add_u32 v47, v48, 6, v47")
            k(f"s_add_u32 s{sE0}, s{sKAP}, 1\ns_cmp_eq_u32 s{sKAP}, 6\ns_cselect_b32 s{sE0}, 0, s{sE0}\ns_mul_i32 s{sE0}, s{sE0}, 229376\ns_lshl_b32 s{sT}, s{sFC}, 8\ns_add_u32 s{sE0}, s{sE0}, s{sT}")
        k(f"s_and_b32 s{sT}, s{sXCD}, 1\ns_lshl_b32 s{sG32}, s{sKAP}, 1\ns_add_u32 s{sG32}, s{sG32}, s{sT}\ns_lshl_b32 s{sT}, s{sT}, 2")
        k(f"v_lshrrev_b32 v50, 4, v0\nv_bfe_u32 v51, v0, 2, 2\nv_lshl_add_u32 v52, v50, 3, v51")
        k(f"v_bfe_u32 v53, v0, 1, 1\nv_or_b32 v53, s{sT}, v53\nv_bfe_u32 v54, v52, 1, 3\nv_xor_b32 v53, v53, v54\nv_lshlrev_b32 v53, 4, v53")
        k(f"v_lshl_add_u32 v53, v52, 7, v53\nv_and_b32 v54, 1, v0\nv_lshl_add_u32 v53, v54, 3, v53\nv_add_u32 v{XTA}, s{sDM}, v53\nv_xor_b32 v{XTA+1}, 32, v{XTA}")
        k(f"v_bfe_u32 v53, v0, 1, 3\nv_lshlrev_b32 v53, 13, v53\nv_lshl_add_u32 v53, v50, 4, v53\nv_lshl_add_u32 v{XTS}, v54, 6, v53")
        k(f"s_lshl_b32 s{sT}, s{sG32}, 17\ns_lshl_b32 s{sT2}, s{sRB}, 9\ns_add_u32 s{sT}, s{sT}, s{sT2}\ns_lshl_b32 s{sT2}, s{sCOL}, 7\ns_add_u32 s{sT}, s{sT}, s{sT2}\ns_add_u32 s{sE1}, s{sT}, {XT}\ns_add_u32 s{sE2}, s{sE1}, 65536")
        return
    w2_offsets(k, gW2D)
    k(f"v_lshrrev_b32 v{gH}, 5, v0\nv_and_b32 v15, 31, v0\ns_and_b32 s{sT}, s3, 1\ns_lshl_b32 s{sT}, s{sT}, 13\ns_add_u32 s{sT}, s{sT}, {L_GB+L_XS[2]}")
    k(f"v_bfe_u32 v13, v0, 1, 3\nv_xor_b32 v13, v13, v{gH}\nv_lshlrev_b32 v13, 4, v13\nv_lshl_add_u32 v13, v15, 7, v13\nv_add_u32 v{gXA}, s{sT}, v13")
    for s in (1,2,3): k(f"v_xor_b32 v{gXA+s}, {32*s}, v{gXA}")
    k(f"s_and_b32 s{sT}, s3, 2\ns_mul_i32 s{sT}, s{sT}, 384\ns_add_u32 s{sT}, s{sT}, {L_GS}\nv_lshl_add_u32 v13, v15, 3, s{sT}\nv_mov_b32 v12, {L_U}\nv_cmp_eq_u32 vcc, 0, v{gH}")
    k(f"s_and_b32 s{sT}, s3, 1\ns_mul_i32 s{sT}, s{sT}, 768\ns_add_u32 s{sT}, s{sT}, {L_GS+256}\nv_cndmask_b32 v{gAGA}, v12, v13, vcc\nv_lshl_add_u32 v{gSTA}, v15, 2, s{sT}")
    k(f"v_bfe_u32 v10, v0, 2, 2\nv_and_b32 v11, 3, v0\nv_lshlrev_b32 v11, 3, v11\nv_and_b32 v12, 16, v0\nv_lshl_add_u32 v11, v12, 1, v11")
    k(f"s_and_b32 s{sT}, s3, 2\nv_xor_b32 v12, s{sT}, v10\nv_lshl_add_u32 v12, v12, 6, v11")
    k(f"v_lshl_add_u32 v13, v{gH}, 3, v10\nv_lshl_add_u32 v12, v13, 8, v12\nv_add_u32 v{gWA}, {L_GB+L_WS[0]}, v12\nv_xor_b32 v{gWA+1}, 64, v{gWA}\nv_add_u32 v{gWA+2}, {L_GB+L_WS[2]}, v12\nv_xor_b32 v{gWA+3}, 64, v{gWA+2}")
    k(f"v_lshl_add_u32 v13, v{gH}, 2, v10\nv_lshl_add_u32 v12, v13, 7, v11\nv_lshrrev_b32 v13, 1, v10\nv_lshl_add_u32 v12, v13, 6, v12")
    k(f"v_add_u32 v{gW2A}, s{sM}, v12\nv_xor_b32 v{gW2A+1}, 64, v{gW2A}\nv_add_u32 v{gW2A+2}, 65536, v{gW2A}\nv_add_u32 v{gW2A+3}, 65536, v{gW2A+1}")
    k(f"v_lshlrev_b32 v{gL16}, 4, v0\nv_mov_b32 v{gSY}, {L_SY}\nv_mov_b32 v{gONE}, 1\nv_lshl_add_u32 v10, s{sCOL}, 2, v{gSY}")
    k(f"s_lshl_b32 s{sE0}, s{sRB}, 1\ns_and_b32 s{sT}, s3, 1\ns_add_u32 s{sE0}, s{sE0}, s{sT}")
    k(f"s_lshl_b32 s{sXO}, s{sFC}, 1\ns_lshr_b32 s{sT}, s3, 1\ns_add_u32 s{sXO}, s{sXO}, s{sT}")
    k(f"s_mul_i32 s{sWO}, s{sXO}, 37\ns_lshr_b32 s{sWO}, s{sWO}, 8\ns_lshl_b32 s{sT}, s{sE0}, 2\ns_add_u32 s{sWO}, s{sWO}, s{sT}\ns_lshl_b32 s{sWO}, s{sWO}, 7")
    k(f"s_lshl_b32 s{sXO}, s{sXO}, 13\ns_mul_i32 s{sT}, s{sE0}, 229376\ns_add_u32 s{sXO}, s{sXO}, s{sT}\ns_add_u32 s{sXO}, s{sXO}, {ACT}\ns_add_u32 s{sE3}, s{sXO}, 4096")

def gather_addresses(k, part):
    if part == 1:
        k(f"s_mul_i32 s{sDT}, s{sCS}, {L_PCH//132*32}\ns_add_u32 s{sDT}, s{sDT}, {L_PART//132*32}")
        k(f"v_lshl_add_u32 v50, s{sHH}, 6, v0\ns_add_u32 s{sT}, s{sDT}, {255+384}\nv_sub_u32 v2, s{sT}, v50\nv_add_u32 v3, 1, v2\nv_cmp_eq_u32 vcc, 127, v50")
        k(f"v_lshlrev_b32 v50, 3, v50\nv_sub_u32 v50, 1023, v50\nv_subbrev_co_u32 v4, vcc, 0, v2, vcc")
        for e in range(3): k(f"v_lshrrev_b32 v5, 5, v{2+e}\nv_add_lshl_u32 v{sGA+11+e}, v{2+e}, v5, 2")
        k(f"s_sub_u32 s{sT}, s{sDT}, 0x4300")
        k(f"v_cvt_f32_i32 v51, v50\nv_add_u32 v50, s{sT}, v50\ns_sub_u32 s{sT2}, s{sT}, 1\nv_mov_b32 v52, s{sT2}\ns_add_u32 s{sT}, s{sT}, 128\ns_mov_b32 s{sT2}, {fbits(128.0)}")
    for n in {0: [], 1: [0, 2], 2: [4, 6, 8, 10]}[part]:
        es = (0, 1) if n < 10 else (0,)
        for e in es:
            k(f"v_subrev_f32 v{2+e}, {fbits(float(n+e))}, v51\nv_max_f32 v{2+e}, s{sT2}, v{2+e}\nv_subrev_u32 v{4+e}, {n+e}, v50\nv_med3_i32 v{4+e}, v{4+e}, v52, s{sT}")
        k(f"v_cvt_pk_bf16_f32 v2, v2, v3")
        for e in es:
            k(f"v_add_u32_sdwa v{4+e}, v{4+e}, v2 dst_sel:DWORD dst_unused:UNUSED_PAD src0_sel:DWORD src1_sel:WORD_{e}")
            k(f"v_lshrrev_b32 v3, 5, v{4+e}\nv_add_lshl_u32 v{sGA+n+e}, v{4+e}, v3, 2")
    if part == 0:
        k(f"v_and_b32 v50, 31, v0\nv_lshrrev_b32 v51, 5, v0")
        k(f"v_lshlrev_b32 v2, 3, v50\nv_lshl_add_u32 v2, v51, 2, v2\nv_sub_u32 v3, 2, v51\nv_lshlrev_b32 v3, v3, v50\nv_lshl_add_u32 v3, v51, 7, v3\nv_add_u32 v3, 256, v3")
        k(f"v_lshl_add_u32 v4, v51, 7, v50\nv_add_u32 v4, 512, v4")
        for e, d in ((0, 0), (1, 1), (2, 3)): k(f"v_lshrrev_b32 v5, 5, v{2+e}\nv_add_u32 v5, v5, v{2+e}\nv_lshl_add_u32 v{sPW+d}, v5, 2, s{sE3}")
        k(f"v_lshl_add_u32 v{sPW+2}, v51, 8, v{sPW+1}")

RS = [0]
vXC, vST, vXW, vODD, vGA, vGW, vSC = 26, 27, 28, 29, 36, 37, 38
def S_addresses(k, part):
    sWV = sCOL
    if part < 3: gather_addresses(k, part)
    if part == 3:
        k(f"s_mul_i32 s{sT}, s{sCS}, 16640\ns_add_u32 s{sT}, s{sT}, {L_KC}\ns_lshl_b32 s{sT2}, s{sHH}, 10\ns_add_u32 s{sT2}, s{sT2}, s{sT}\nv_lshl_add_u32 v{EW}, v0, 4, s{sT2}")
        k(f"v_bfe_u32 v2, v0, 1, 2\nv_mul_u32_u24 v2, 4160, v2\nv_and_b32 v{vODD}, 1, v0\nv_lshl_add_u32 v2, v{vODD}, 4, v2\nv_add_u32 v{TZ}, s{sT}, v2")
        k(f"s_lshr_b32 s{sT}, s{sCP}, 4\ns_lshl_b32 s{sT}, s{sT}, 2\ns_add_u32 s{sT}, s{sT}, {C_XT}\ns_lshl_b32 s{sT}, s{sT}, 7\nv_and_b32 v2, 3, v0\nv_lshl_add_u32 v{vXC}, v2, 7, s{sT}")
        k(f"s_lshl_b32 s{sT}, s{sCP}, 13\ns_add_u32 s{sT}, s{sT}, {XT}\nv_lshl_add_u32 v2, s{sWV}, 6, v0\nv_and_b32 v3, 0xfc, v2\nv_add_u32 v3, v3, v2\nv_lshl_add_u32 v{vXW}, v3, 4, s{sT}\nv_lshlrev_b32 v{vST}, 4, v2\nv_add_u32 v{UW}, {L_U+480}, v{vST}")
        k(f"s_mov_b32 s{sXO}, {STATS}\ns_mov_b32 s{sWO}, {STATS+4096}")
    if part == 4:
        k(f"s_lshl_b32 s{sT}, s{sFC}, 2\ns_add_u32 s{sT}, s{sT}, s{sWV}\ns_lshl_b32 s{sT}, s{sT}, 8\ns_add_u32 s{sT}, s{sT}, {AUGW}\nv_lshl_add_u32 v3, v0, 4, s{sT}")
        k(f"s_lshl_b32 s{sT}, s{sRB}, 2\ns_add_u32 s{sT}, s{sT}, s{sWV}\ns_lshl_b32 s{sT}, s{sT}, 6\ns_add_u32 s{sT}, s{sT}, {STATS}\nv_lshl_add_u32 v4, v{vODD}, 12, s{sT}")
        k(f"v_bfe_u32 v2, v0, 1, 2\nv_lshl_add_u32 v4, v2, 4, v4\nv_cmp_gt_u32 vcc, 16, v0\ns_mul_i32 s{sE0}, s{sWV}, 384\ns_add_u32 s{sE0}, s{sE0}, {L_GS}\nv_cndmask_b32 v{vGA}, v4, v3, vcc")
        k(f"v_min_u32 v2, 23, v0\nv_lshl_add_u32 v{vGW}, v2, 4, s{sE0}")
        w2_offsets(k, sW2D)
    if part == 5:
        k(f"s_mul_i32 s{sT}, s{sCS}, 16640\ns_add_u32 s{sT}, s{sT}, {L_KC+24}" + (f"\ns_lshl_b32 s{sT2}, s{sHH}, 8\ns_sub_u32 s{sT}, s{sT}, s{sT2}" if RS[0] else ""))
        k(f"v_and_b32 v2, 3, v0\nv_sub_u32 v2, 3, v2\nv_mul_u32_u24 v2, 4160, v2\nv_bfe_u32 v3, v0, 2, 2\nv_lshlrev_b32 v3, 3, v3\nv_sub_u32 v2, v2, v3")
        k(f"v_lshrrev_b32 v3, 4, v0\nv_lshl_add_u32 v2, v3, 4, v2\nv_add_u32 v{CA}, s{sT}, v2")
        k(f"s_mul_i32 s{sT}, s{sCS}, 4576\ns_add_u32 s{sT}, s{sT}, {L_U+256*RS[0]}" + (f"\ns_sub_u32 s{sT}, s{sT}, s{sT2}" if RS[0] else ""))
        k(f"v_and_b32 v2, 15, v0\nv_lshlrev_b32 v2, 5, v2\nv_lshl_add_u32 v2, v3, 4, v2\nv_add_u32 v{CBA}, s{sT}, v2")
        k(f"v_lshl_add_u32 v{vSC}, s{sWV}, 2, v{VSY}")

def setup_S(k, cfg):
    a, b = Cap(), Cap()
    x_offsets(k, sXD)
    k(f"s_add_u32 s{sT2}, s{sKAP}, 1\ns_cmp_eq_u32 s{sKAP}, 6\ns_cselect_b32 s{sT2}, 0, s{sT2}\ns_lshl_b32 s{sT2}, s{sT2}, 7\ns_mul_i32 s{sT}, s{sRB}, 114688\ns_add_u32 s{sT2}, s{sT2}, s{sT}")
    chunk_offsets(a, 128, sCX, sT2); chunk_offsets(b, 229376, sCW, sDO)
    k("\n".join(a.l[:4] + b.l[:4]))
    k(f"s_and_b32 s{sHH}, s3, 1\nv_mov_b32 v{VSY}, {L_SY}\nv_mov_b32 v{VONE}, 1")
    k(f"s_and_b32 s{sT}, s{sXCD}, 1\ns_lshl_b32 s{sG32}, s{sKAP}, 1\ns_add_u32 s{sG32}, s{sG32}, s{sT}\ns_nop 0")
    for c in range(1, 5): k("\n".join(a.l[4*c:4*c+4] + b.l[4*c:4*c+4]))

def gen_G(k, cfg):
    ACC, W2R, RING = 16, 80, 192
    FS = [100, 116, 132]
    W2D, W2A, L16, XA, WA, AUG, STT = gW2D, gW2A, gL16, gXA, gWA, gAUG, gSTT
    RC, RL, T, P = 192, 196, 200, 208
    k("s_setprio 2")
    stamp(k, cfg, 1, 2); cstamp(k, cfg, 10)
    def w2read(step, dst_step):
        b = step // 2; loc = LOC[b % 7]*16384 + (step & 1)*2048; hi = 2 if loc >= 65536 else 0; loc -= hi*32768
        out = []
        for d2 in (0, 1):
            for rd in (0, 1):
                out.append(f"ds_read_b64_tr_b16 {V(W2R + dst_step*8 + d2*4 + rd*2, 2)}, v{W2A+hi+d2} offset:{loc + rd*1024}")
        return out
    def reads(i):
        c, s, F = i // 4, i % 4, FS[i % 3]; sl = c % 3
        wa, wo = (WA, L_WS[sl] - L_WS[0]) if sl < 2 else (WA + 2, 0)
        w = lambda ft: [f"ds_read_b64_tr_b16 {V(F+8+4*ft+2*rd,2)}, v{wa+ft} offset:{wo + s*4096 + rd*1024}" for rd in (0, 1)]
        x = [f"ds_read_b128 {V(F+4*tt,4)}, v{XA+s} offset:{L_XS[sl] - L_XS[2] + tt*4096}" for tt in (0, 1)]
        return w(0) + x + w(1)
    dq = []
    for i in (0, 1):
        for r in reads(i): k(r, f"f{i}")
    for i in range(28):
        F = FS[i % 3]
        rd = reads(i+2) if i + 2 < 28 else []
        edge = rd and (i + 2) % 4 == 0
        gaps = [[], rd[:3], rd[3:], []] if edge else [rd[:2], rd[2:4], rd[4:], []]
        k.wait(lg=f"f{i}")
        for m in range(4):
            ft, tt = m >> 1, m & 1; a = ACC + 16*m
            k(f"v_mfma_f32_32x32x16_bf16 {V(a,16)}, {V(F+8+4*ft,4)}, {V(F+4*tt,4)}, {'0' if i == 0 else V(a,16)}")
            if edge and m == 1:
                c = (i+2)//4
                k.wait(vm={1: "c1", cfg.xtbar: "*"}.get(c), lg="*")
                if not cfg.x_nobar: k("s_barrier")
                stamp(k, cfg, 1 + c, 2)
                dq += [x for b in (2*c-10, 2*c-9) if int(cfg.sblk) <= b < cfg.gblk for x in w2dma(b, W2D)]
            if dq and i >= cfg.w2from and m in (3, 0 if (edge or i >= 26) else 1): g, t = dq.pop(0); k(g, t)
            for r in gaps[m]: k(r, f"f{i+2}")
            if i == 26 and m == 1:
                k.wait(lg="*"); k("s_barrier")
                if cfg.sblk: dq += w2dma(4, W2D)
                for tt in (0, 1): k(f"ds_read_b32 v{STT+tt}, v{gSTA} offset:{384*tt}", "st")
            if i == 26 and m == 2:
                for ft in (0, 1): k(f"ds_read_b64 {V(AUG+4+2*ft,2)}, v{gAGA} offset:{384*ft}", "ag")
            if i == 27 and m == 1: k.wait(lg="*")
            if i == 27 and m in (1, 2):
                tt = m - 1
                k(f"s_mov_b32 s{sT}, 0x01000100\nv_and_b32 v11, 0xffff0000, v{STT+tt}\nv_rcp_f32 v{RC+2*tt}, v11")
                k(f"v_perm_b32 v{AUG+2*tt}, v{STT+tt}, v{STT+tt}, s{sT}\nv_lshrrev_b32 v{AUG+2*tt+1}, 16, v{STT+tt}")
            if i == 27 and m == 3:
                for tt in (0, 1): k(f"v_mul_f32 v{RC+2*tt+1}, -2.0, v{RC+2*tt}\nv_mul_f32 v{RL+tt}, {fbits(LOG2E)}, v{RC+2*tt}")
    for m in range(4):
        ft, tt = m >> 1, m & 1; a = ACC + 16*m
        k(f"v_mfma_f32_32x32x8_bf16 {V(a,16)}, {V(AUG+4+2*ft,2)}, {V(AUG+2*tt,2)}, {V(a,16)}")
        if dq: g, t = dq.pop(0); k(g, t)
    assert not dq
    stamp(k, cfg, 4); stamp(k, cfg, 8, 2); cstamp(k, cfg, 11)
    stq = []
    for g in range(8):
        m, sp = g >> 1, g & 1; ft, tt = m >> 1, m & 1; a = ACC + 16*m + 8*sp; p = P + 4*(g & 1)
        for i in range(4): k(f"v_pk_mul_f32 {V(T+2*i,2)}, {V(a+2*i,2)}, {V(RL,2)} op_sel:[0,{tt}] op_sel_hi:[1,{tt}]")
        for i in range(8): k(f"v_exp_f32 v{T+i}, v{T+i}")
        for i in range(4): k(f"v_pk_add_f32 {V(T+2*i,2)}, {V(T+2*i,2)}, 1.0 op_sel_hi:[1,0]")
        for i in range(4): k(f"v_pk_fma_f32 {V(T+2*i,2)}, {V(T+2*i,2)}, {V(T+2*i,2)}, 1.0 op_sel_hi:[1,1,0]")
        for i in range(8): k(f"v_rcp_f32 v{T+i}, v{T+i}")
        for i in range(4): k(f"v_pk_fma_f32 {V(T+2*i,2)}, {V(T+2*i,2)}, {V(RC+2*tt,2)}, {V(RC+2*tt,2)} op_sel:[0,1,0] op_sel_hi:[1,1,0]")
        for i in range(4): k(f"v_pk_mul_f32 {V(T+2*i,2)}, {V(T+2*i,2)}, {V(a+2*i,2)}")
        if g == 7:
            lds_signal(k, 10, SY_M, gONE)
            if cfg.sblk: k(f"ds_read_b32 v11, v{gSY} offset:{SY_U}", "w2r1")
        p = a
        for i in range(4): k(f"v_cvt_pk_bf16_f32 v{p+i}, v{T+2*i}, v{T+2*i+1}")
        stq.append(f"buffer_store_dwordx4 {V(p,4)}, v{L16}, {S(sWS,4)}, s{sXO if ft == 0 else sE3} offen offset:{sp*2048 + tt*1024} sc1")
        if g in cfg.stat:
            while stq: k(stq.pop(0), "act")
    stamp(k, cfg, 5)
    k.wait(vm="w2_4" if cfg.sblk else "w2_3")
    def rdblk(b):
        for s in (0, 1):
            for r in w2read(2*b+s, 2*b+s): k(r, f"w2r{b}")
    sSTO = sE0
    k(f"s_lshl_b32 s{sSTO}, s{sXCD}, 2\ns_add_u32 s{sSTO}, s{sSTO}, s{sR}")
    k(f"s_lshl_b32 s{sE1}, s{sSTO}, 2\ns_add_u32 s{sE1}, s{sE1}, s3\ns_lshl_b32 s{sE1}, s{sE1}, 7")
    blk = lambda b: [(r, f"w2r{b}") for s in (0, 1) for r in w2read(2*b+s, 2*b+s)]
    assert cfg.gblk == 4
    order = [4, 5, 7, 6, 8, 9, 10, 11, 12, 13]
    rq = blk(0) + blk(1) + blk(2) + blk(3)
    if cfg.sblk: order = [6, 7, 8, 9, 10, 11, 12, 13]; rq += blk(4) + blk(5)
    for n, b in enumerate(order):
        if b == 7 and not cfg.sblk: k(f"ds_read_b32 v11, v{gSY} offset:{SY_U}", "w2r1")
        if b == 6:
            k.wait(lg="w2r1")
            o = k.lab("wl"); sl = list(k.lg)
            k(f"v_readfirstlane_b32 s{sT}, v11\ns_cmp_ge_u32 s{sT}, 4\ns_cbranch_scc1 {o}")
            lds_spin(k, gSY, SY_U, 4, 11, sT, sSP)
            k(f"{o}:"); k.lg = sl
        if b in (9, 10, 11) and (b == 11 or not cfg.sblk):
            k.wait(vm=f"w2_{b-5}"); rq += blk(b-5)
        if b == 13: k(f"ds_read_b32 v11, v{gSY}\nds_read_b32 v11, v{gSY}")
        if b >= 7: k.wait(lg=f"w2r{b-7}")
        for g, t in w2dma(b, W2D):
            k(g, t)
            for _ in range(4 if (cfg.sblk and n == 0) else 2):
                if rq: k(*rq.pop(0))
        if n == cfg.flagat:
            k.wait(vm="act")
            s_inc(k, pWS, f"s{sWO}", sT2)
            stamp(k, cfg, 6)
        if n == cfg.pollat: k(f"s_load_dword s{sE2}, {S(pWS,2)}, s{sE1} glc")
    assert not rq
    k(f"s_mul_i32 s{sA2}, s{sSTO}, 229376\ns_mul_i32 s{sT}, s3, 57344\ns_add_u32 s{sA2}, s{sA2}, s{sT}\ns_add_u32 s{sA2}, s{sA2}, {ACT}\ns_add_u32 s{sB2}, s{sA2}, 28672")
    if cfg.rot:
        k(f"s_bitcmp1_b32 s{sC}, 0\ns_cselect_b32 s{sT}, s{sB2}, s{sA2}\ns_cselect_b32 s{sB2}, s{sA2}, s{sB2}\ns_mov_b32 s{sA2}, s{sT}")
    stamp(k, cfg, 7)
    o = k.lab("ar")
    k.wait(lg="*")
    k(f"s_cmp_ge_u32 s{sE2}, 7\ns_cbranch_scc1 {o}")
    s_poll(k, pWS, [f"s{sE1}"], 7, sT, sSP, cfg.actsleep)
    k(f"{o}:")
    stamp(k, cfg, 8)
    k(f"s_setprio {cfg.g2prio}")
    D = 2*cfg.depth; n0 = 28 - cfg.tailn
    seq = [(s, tt) for s in range(n0) for tt in (0, 1)] + [(s, tt) for tt in (0, 1) for s in range(n0, 28)]
    cur = [None]
    def actload(j):
        s, tt = seq[j]; out = []
        if cur[0] != s//2:
            cur[0] = s//2
            out.append(f"s_add_u32 s{sT}, s{sA2 if s < 14 else sB2}, {(s % 14)//2*4096}" + (f"\ns_and_b32 s{sT}, s{sT}, 0xfffff" if cfg.x_acthit else ""))
        out.append(f"buffer_load_dwordx4 {V(RING + (j % D)*4, 4)}, v{L16}, {S(sW2 if cfg.x_acthit else sWS,4)}, s{sT} offen offset:{(s & 1)*2048 + tt*1024} {cfg.actmod}")
        return "\n".join(out)
    stamp(k, cfg, 1, 5)
    for j in range(D): k(actload(j), f"a{j}")
    stamp(k, cfg, 2, 5)
    DA = [1, 2, 3, 4, 10, 11, 14, 15]
    k(f"v_and_b32 v14, 15, v0\nv_lshrrev_b32 v15, 5, v0\nv_xor_b32 v15, v15, v14\nv_lshlrev_b32 v15, 4, v15\nv_lshl_add_u32 v15, v14, 8, v15")
    k(f"v_bfe_u32 v14, v0, 4, 1\nv_lshl_add_u32 v15, v14, 14, v15\nv_add_u32 v{DA[0]}, s{sM}, v15")
    for i in range(1, 8): k(f"v_xor_b32 v{DA[i]}, {32*i}, v{DA[0]}")
    dump = lambda tt: [f"ds_write_b128 v{DA[4*d2+jj]}, {V(ACC+16*(2*d2+tt)+4*jj,4)} offset:{tt*32768}" for d2 in (0, 1) for jj in range(4)]
    d0 = dump(0); jlast0 = max(j for j in range(56) if seq[j][1] == 0)
    assert 14 + cfg.rdlag < n0
    for j, (s, tt) in enumerate(seq):
        k.wait(vm=f"a{j}", lg=f"r{s}" if s >= 14 else None)
        if j % 8 == 0: stamp(k, cfg, 3 + j//8, 5)
        w = W2R + (s % 14)*8; x = RING + (j % D)*4
        rs = s - cfg.rdlag
        rd = w2read(rs + 13, rs - 1)[2*tt:2*tt+2] if 1 <= rs <= 14 else []
        for d2 in (0, 1):
            a = ACC + 16*(2*d2 + tt)
            k(f"v_mfma_f32_32x32x16_bf16 {V(a,16)}, {V(w+4*d2,4)}, {V(x,4)}, {'0' if s == 0 else V(a,16)}")
            if d2 == 0 and j >= 1 and j - 1 + D < 56: k(actload(j - 1 + D), f"a{j-1+D}")
            if d2 == 1 and rd: k("\n".join(rd), f"r{rs+13}")
            if j > jlast0 + 1 and d0 and (d2 == 1 or j > 53): k(d0.pop(0))
    while d0: k(d0.pop(0))
    lds_signal(k, gSY, SY_GS, gONE)
    stamp(k, cfg, 9); stamp(k, cfg, 10, 5)
    for x in dump(1): k(x)
    k.wait(lg="*")
    stamp(k, cfg, 11, 5)
    k("s_barrier")
    stamp(k, cfg, 10)
    prof_dump(k, cfg)
    k("s_endpgm")

class Pacer:
    def __init__(self, k, pace): self.k, self.pace, self.q, self.n = k, pace, [], 0
    def __call__(self, text, tag=None):
        for ln in text.split("\n"):
            self.k(ln, tag)
            self.n += 11 if "ds_write_b128" in ln else 5 if "ds_write" in ln else 2 if ("ds_read" in ln or "v_rcp" in ln) else 1
            if self.q and self.n >= self.pace: self.pop()
    def pop(self):
        g, t = self.q.pop(0); self.k(g, t); self.n = 0
    def flush(self):
        while self.q: self.pop()

def gen_S(k, cfg, vm0):
    k.reset(); k.vm = list(k.vmS)
    k("L_S:")
    sWV, GA, XD = sCOL, sGA, VD
    p = Pacer(k, cfg.pace)
    def bar(c, lg="*"):
        p.flush()
        k.wait(vm=f"c{c}", lg=lg)
        stamp(k, cfg, 1+c, 2)
        if not cfg.x_nobar: k("s_barrier")
    G0, XV, CP = 160, 192, 208
    SV, XW, CN, MM, RR, XF, GS = 100, 108, 116, 120, 128, 136, 144
    def copies(x, off, sgs):
        for sg in sgs:
            c = CP + 4*sg
            for jj in range(4): p(f"v_cvt_pk_bf16_f32 v{c+jj}, v{x[sg+2*jj]}, v{x[sg+2*jj+1]}")
            p(f"ds_write_b128 v{EW}, {V(c,4)} offset:{sg*4160 + off}")
    stamp(k, cfg, 3)
    k("s_setprio 0")
    k(CLRL, "clr")
    k.wait(vm="c0")
    k("s_barrier")
    held = []
    late = lambda part: S_addresses(p, part) if part >= cfg.early else None
    def ring(c):
        ch = chunk(cfg, c); p.q = held + ch[:cfg.r2cut]; held[:] = ch[cfg.r2cut:]; p.pop()
    stl = f"buffer_load_dwordx4 {V(SV,4)}, v{vST}, {S(sWS,4)}, s{sXO} offen sc1\nbuffer_load_dwordx4 {V(SV+4,4)}, v{vST}, {S(sWS,4)}, s{sWO} offen sc1"
    xcl = f"buffer_load_dword v{CN}, v{vXC}, {S(sWS,4)}, 0 offen sc1"
    gsl = f"s_mov_b32 m0, s{sE0}\ns_mov_b64 exec, 0xffffff\nbuffer_load_dwordx4 v{vGA}, {S(sWS,4)}, 0 offen sc1 lds\ns_mov_b64 exec, -1"
    pw = [f"ds_write2_b32 v{sPW+a}, v{KA+r}, v{KA+r+1} offset0:{o0} offset1:{o1}" for a, r, o0, o1 in
          ((0, 0, 0, 1), (0, 2, 2, 3), (1, 4, 0, 1), (2, 6, 2, 3), (3, 8, 0, 33), (3, 10, 66, 99))]
    ring(2)
    assert len(k.rest) % 4 == 0
    for i in range(0, len(k.rest), 4):
        k("\n".join(k.rest[i:i+4]))
        if i % 8 == 4: p.pop()
    late(0)
    bar(1, None)
    for r in range(3): k(f"ds_read_b128 {V(G0+4*r,4)}, v{PA} offset:{1024*r}", "raw")
    k(f"ds_read_b32 v50, v{VSY}")
    def xtflag():
        v_poll(k, CLRL, 49, 4, sSP, 2, first=False, tag="clr")
        k(f"s_lshl_b32 s{sT}, s{sG32}, 2\ns_add_u32 s{sT}, s{sT}, s{sWV}\ns_add_u32 s{sT}, s{sT}, {C_XT}\ns_lshl_b32 s{sT}, s{sT}, 7")
        s_inc(k, pWS, f"s{sT}", sE3)
    if cfg.xtbar == 1: xtflag()
    ring(3)
    late(3)
    k.wait(lg="raw")
    for i in range(12): p(f"v_add_f32 v{KA+i}, v{KA+i}, v{G0+i}")
    bar(2, None)
    if cfg.xtbar == 2: xtflag()
    ring(4)
    late(1)
    bar(3, None)
    ring(5)
    late(2)
    bar(4, None)
    stamp(k, cfg, 4)
    k(xcl, "xc")
    ring(6)
    late(4); late(5)
    bar(5, None)
    p.q = list(held); p.flush()
    v_poll(k, xcl, CN, 16, sSP, 2, first=False, tag="xc")
    k(stl, "st")
    for e in (0, 1): k(f"buffer_load_dwordx4 {V(XW+4*e,4)}, v{vXW}, {S(sWS,4)}, 0 offen offset:{64*e} sc1", "xw")
    k(gsl, "gs")
    if cfg.sblk:
        for g, t in w2dma(0, sW2D): k(g, t)
    bar(6, None)
    stamp(k, cfg, 5)
    k.wait(vm="gs")
    k(f"s_mov_b32 s{sSP}, 0")
    l = k.lab("xp"); o = k.lab("xpo")
    k(f"{l}:")
    k(f"ds_read_b128 {V(GS,4)}, v{vGW}")
    k(f"v_min_u32 v{CN}, v{SV}, v{SV+1}\ns_add_u32 s{sSP}, s{sSP}, 1")
    for i in range(1, 4): k(f"v_min3_u32 v{CN}, v{CN}, v{SV+2*i}, v{SV+2*i+1}")
    for i in range(8): k(f"v_and_b32 v{RR+i}, 0xffff0000, v{SV+i}")
    k.wait(lg="*")
    k(f"v_min3_u32 v{CN}, v{CN}, v{GS+1}, v{GS+3}")
    k(f"v_cmp_eq_u32 vcc, 0, v{CN}\ns_cmp_gt_u32 s{sSP}, {SPIN}\ns_cbranch_scc1 {o}\ns_cbranch_vccz {o}")
    sv = list(k.vm); k(stl); k(gsl); k("s_waitcnt vmcnt(0)"); k.vm = sv
    k(f"s_branch {l}")
    k(f"{o}:")
    stamp(k, cfg, 8, 2)
    k("s_barrier")
    for i in range(8): k(f"v_rcp_f32 v{RR+i}, v{RR+i}\nv_lshlrev_b32 v{MM+i}, 16, v{SV+i}")
    for i in range(8): k(f"v_mul_f32 v{MM+i}, v{MM+i}, v{RR+i}")
    for ch in (0, 1):
        if ch: k("s_setprio 3")
        for i in range(4): k(f"v_lshlrev_b32 v{XF+2*i}, 16, v{XW+4*ch+i}\nv_and_b32 v{XF+2*i+1}, 0xffff0000, v{XW+4*ch+i}")
        for i in range(8): k(f"v_fma_f32 v{XF+i}, v{XF+i}, v{RR+i}, -v{MM+i}")
        for i in range(4): k(f"v_cvt_pk_bf16_f32 v{XW+4*ch+i}, v{XF+2*i}, v{XF+2*i+1}")
    stamp(k, cfg, 9, 2)
    k(f"v_lshl_add_u32 v55, s{sCS}, 2, v{VSY}")
    if cfg.sblk:
        for g, t in w2dma(5, sW2D): k(g, t)
    k("\n".join(pw))
    lds_signal(k, 55, SY_PAIR, VONE)
    for ch in (0, 1): k(f"ds_write_b128 v{UW}, {V(XW+4*ch,4)} offset:{4576*ch}")
    k(f"ds_write_b128 v{TZ}, {V(ZERO,4)} offset:4096")
    lds_spin(k, 55, SY_PAIR, 2, 50, sT, sSP)
    for i in list(range(11, 14)) + list(range(11)): k(f"ds_read2st64_b32 {V(G0+2*i,2)}, v{GA+i} offset1:13", "ga" if i > 10 else "gb")
    for ps, x in enumerate(([XV+12]*3 + [XV+14] + [XV+11]*6 + [XV+13], [XV+i for i in range(11)])):
        k.wait(lg="gb" if ps else "ga")
        for i in (range(11) if ps else range(11, 14)): k(f"v_add_f32 v{XV+i}, v{G0+2*i}, v{G0+2*i+1}")
        if ps == 0: k(f"v_cmp_eq_u32 vcc, 1, v{vODD}\nv_cndmask_b32 v{XV+14}, v{XV+12}, v{XV+11}, vcc")
        for sg in range(4):
            for jj in range(4): k(f"v_cvt_pk_bf16_f32 v{CP+16*ps+4*sg+jj}, v{x[sg+2*jj]}, v{x[sg+2*jj+1]}")
            k(f"ds_write_b128 v{EW}, {V(CP+16*ps+4*sg,4)} offset:{sg*4160 + ps*2048}")
    k.wait(vm="*")
    lds_signal(k, VSY, SY_U, VONE)
    lds_spin(k, VSY, SY_U, 4, 50, sT, sSP, 1)
    Y, FS, YS = 68, [100, 164], 228
    def a_read(r, F, a): return [f"ds_read_b64 {V(F+4*a+2*e,2)}, v{CA} offset:{(7-a)*512 + (7-r)*64 + 8*e}" for e in (0, 1)]
    def b_read(r, F, c): return [f"ds_read_b128 {V(F+32+4*c,4)}, v{CBA} offset:{c*512 + (7-r)*64 - 256*RS[0]}"]
    for i in range(8): p("\n".join(a_read(0, FS[0], i) + b_read(0, FS[0], i)))
    p.flush()
    k(f"v_bfe_u32 v53, v0, 2, 2\nv_lshlrev_b32 v53, 7, v53\nv_and_b32 v54, 3, v0\nv_lshl_add_u32 v53, v54, 4, v53\nv_lshrrev_b32 v54, 5, v0\nv_lshl_add_u32 v53, v54, 6, v53")
    k(f"v_bfe_u32 v54, v0, 4, 1\nv_lshl_add_u32 v54, v54, 9, v53")
    k(f"s_lshl_b32 s{sO1}, s{sCP}, 1\ns_add_u32 s{sO1}, s{sO1}, s{sCS}")
    k(f"s_lshr_b32 s{sT}, s{sO1}, 6\ns_lshl_b32 s{sT}, s{sT}, 1\ns_add_u32 s{sT}, s{sT}, s{sHH}\ns_lshl_b32 s{sT}, s{sT}, 2\ns_bfe_u32 s{sT2}, s{sO1}, 0x20004")
    k(f"s_add_u32 s{sT}, s{sT}, s{sT2}\ns_add_u32 s{sT}, s{sT}, {C_ST}\ns_lshl_b32 s{sO2}, s{sT}, 7")
    k(f"s_lshl_b32 s{sO1}, s{sO1}, 12\ns_add_u32 s{sO1}, s{sO1}, {ST}")
    stamp(k, cfg, 10, 2)
    lds_spin(k, vSC, SY_M, 1, 50, sT, sSP, 1)
    k(f"s_setprio {cfg.cvprio}")
    stamp(k, cfg, 6); stamp(k, cfg, 11, 2)
    if cfg.split == 'r':
        ms = [(a + c, a) for c in range(8) for a in range(8 - c)]
        for r in range(4):
            F = FS[r & 1]; N = FS[(r+1) & 1]; nxt = []
            if r < 3:
                for i in range(8): nxt += a_read(r+1, N, i) + b_read(r+1, N, i)
            if r > 0: k.wait(lg="*")
            if r == 3:
                lds_signal(k, VSY, SY_RD, VONE)
                nxt = f"s_lshl_b32 s{sT}, s{sWV}, 12\ns_add_u32 s{sT}, s{sT}, 16384\nv_lshl_add_u32 v51, v0, 4, s{sT}\nv_xor_b32 v52, 0x1000, v51\ns_lshl_b32 s{sT}, s{sHH}, 11\ns_add_u32 s{sO1}, s{sO1}, s{sT}".split("\n")
            n = 0
            for i, (J, a) in enumerate(ms):
                k(f"v_mfma_f32_16x16x32_bf16 {V(Y+4*J,4)}, {V(F+4*a,4)}, {V(F+32+4*(J-a),4)}, {'0' if (r == 0 and J == a) else V(Y+4*J,4)}")
                if n < len(nxt): k(nxt[n]); n += 1
                if r == 3 and i == 28: k(f"ds_read_b32 v50, v{VSY} offset:{SY_RD}")
        stamp(k, cfg, 7); stamp(k, cfg, 1, 5)
        k("s_setprio 3")
        o = k.lab("rd")
        k.wait(lg="*")
        k(f"v_readfirstlane_b32 s{sT}, v50\ns_cmp_ge_u32 s{sT}, 4\ns_cbranch_scc1 {o}")
        lds_spin(k, VSY, SY_RD, 4, 50, sT, sSP)
        k(f"{o}:")
        l1 = k.lab("h1"); l2 = k.lab("hj"); EX = 100
        k(f"s_cmp_eq_u32 s{sHH}, 1\ns_cbranch_scc1 {l1}\ns_nop 3")
        for i in range(4): k(f"ds_write_b128 v51, {V(Y+16+4*i,4)} offset:{1024*i}")
        lds_signal(k, 55, SY_PAIR, VONE)
        k(f"s_branch {l2}")
        k(f"{l1}:")
        for i in range(4): k(f"ds_write_b128 v51, {V(Y+4*i,4)} offset:{1024*i}")
        lds_signal(k, 55, SY_PAIR, VONE)
        for i in range(16): k(f"v_mov_b32 v{Y+i}, v{Y+16+i}")
        k(f"{l2}:")
        lds_spin(k, 55, SY_PAIR, 4, 50, sT, sSP)
        for i in range(4): k(f"ds_read_b128 {V(EX+4*i,4)}, v52 offset:{1024*i}", f"e{i}")
        for g in (0, 1):
            for i in (2*g, 2*g+1):
                k.wait(lg=f"e{i}")
                for e in range(4): k(f"v_add_f32 v{Y+4*i+e}, v{Y+4*i+e}, v{EX+4*i+e}")
                for e in (0, 1): k(f"v_cvt_pk_bf16_f32 v{YS+2*i+e}, v{Y+4*i+2*e}, v{Y+4*i+2*e+1}")
            for e in (0, 1): k(f"v_permlane16_swap_b32 v{YS+4*g+e}, v{YS+4*g+2+e}")
            k(f"buffer_store_dwordx4 {V(YS+4*g,4)}, v54, {S(sWS,4)}, s{sO1} offen offset:{1024*g} sc1", "sts")
    else:
        lB = k.lab("cvB"); lJ = k.lab("cvJ")
        k(f"s_cmp_eq_u32 s{sHH}, 1\ns_cbranch_scc1 {lB}")
        for Js in ([7, 6, 0], [5, 4, 3, 2, 1]):
            top = max(Js)
            ms = [(J, a) for a in range(top+1) for J in Js if a <= J]
            for r in range(7 if cfg.x_noconv else 0, 8):
                F = FS[r & 1]; N = FS[(r+1) & 1]; nxt = []
                if r < 7:
                    for i in range(top+1): nxt += a_read(r+1, N, i) + b_read(r+1, N, top-i)
                if r > 0: k.wait(lg="*")
                if r == 7: lds_signal(k, VSY, SY_RD, VONE)
                n = 0; slots = len(ms) - cfg.cvfree
                for i, (J, a) in enumerate(ms):
                    k(f"v_mfma_f32_16x16x32_bf16 {V(Y+4*J,4)}, {V(F+4*a,4)}, {V(F+32+4*(J-a),4)}, {'0' if (r == 0 and a == 0) else V(Y+4*J,4)}")
                    while n < len(nxt) and n*slots < (i+1)*len(nxt): k(nxt[n]); n += 1
                assert n == len(nxt)
            stamp(k, cfg, 7); stamp(k, cfg, 1, 5)
            groups = [(Js[-1], Js[-1])] + [(Js[i+1], Js[i]) for i in range(len(Js)-3, -1, -2)]
            for g, (lo, hi) in enumerate(groups):
                y = YS + 4*g
                for q, J in enumerate((lo, hi)):
                    for e in (0, 1): k(f"v_cvt_pk_bf16_f32 v{y+2*q+e}, v{Y+4*J+2*e}, v{Y+4*J+2*e+1}")
                for e in (0, 1): k(f"v_permlane16_swap_b32 v{y+e}, v{y+2+e}")
                k(f"buffer_store_dwordx4 {V(y,4)}, v{53 if lo == hi else 54}, {S(sWS,4)}, s{sO1} offen offset:{512*lo} sc1", "sts")
            if top == 7:
                k(f"s_branch {lJ}"); k(f"{lB}:"); k.reset()
        k(f"{lJ}:")
    if cfg.x_nos2:
        k("s_barrier"); prof_dump(k, cfg, True); k("s_endpgm"); return
    XE, OA, RA, SA, XU, SU = 100, 64, 68, 70, 120, 136
    k(f"s_lshl_b32 s{sRB}, s{sXCD}, 2\ns_add_u32 s{sRB}, s{sRB}, s{sR}")
    k(f"v_lshrrev_b32 v50, 3, v0\nv_and_b32 v51, 7, v0\nv_mul_u32_u24 v52, 896, v50\nv_lshl_add_u32 v{OA}, v51, 4, v52")
    k(f"s_lshl_b32 s{sT}, s{sRB}, 3\ns_add_u32 s{sT}, s{sT}, s{sWV}\ns_mul_i32 s{sG32}, s{sT}, {8*896}\ns_lshl_b32 s{sT}, s{sC}, 7\ns_add_u32 s{sG32}, s{sG32}, s{sT}\ns_add_u32 s{sKAP}, s{sG32}, {32*896}")
    k(f"v_lshl_add_u32 v55, s{sHH}, 3, v50\nv_lshlrev_b32 v52, 1, v51\nv_xor_b32 v52, v52, v55\nv_lshlrev_b32 v52, 4, v52\nv_lshl_add_u32 v52, v55, 8, v52")
    k(f"s_lshl_b32 s{sT}, s{sCS}, 14\ns_add_u32 s{sT}, s{sT}, {L_GB}\nv_add_u32 v{RA}, s{sT}, v52\nv_xor_b32 v{RA+1}, 16, v{RA}")
    k(f"s_lshl_b32 s{sT}, s{sHH}, 2\ns_add_u32 s{sT}, s{sT}, s{sCS}\nv_xor_b32 v52, s{sT}, v51\nv_lshlrev_b32 v52, 4, v52\nv_lshl_add_u32 v52, v51, 10, v52\nv_lshl_add_u32 v{SA}, v50, 1, v52\nv_xor_b32 v{SA+1}, 32, v{SA}")
    assert L_U == 0
    k(f"s_lshl_b32 s{sT}, s{sWV}, 1\nv_xor_b32 v56, s{sT}, v51\nv_lshlrev_b32 v56, 4, v56\nv_lshl_add_u32 v56, v50, 12, v56\nv_xor_b32 v57, 16, v56\nv_add_u32 v57, {32768-1024}, v57")
    k.wait(vm="*")
    s_inc(k, pWS, f"s{sO2}", sE3)
    stamp(k, cfg, 8); stamp(k, cfg, 2, 5)
    k(f"buffer_load_dwordx4 {V(XE,4)}, v{OA}, {S(sX,4)}, s{sG32} offen\nbuffer_load_dwordx4 {V(XE+4,4)}, v{OA}, {S(sX,4)}, s{sKAP} offen")
    k(f"s_lshr_b32 s{sT2}, s{sRB}, 2\ns_lshr_b32 s{sT2}, {0xf0 if RS[0] else 0x3e}, s{sT2}\ns_and_b32 s{sT2}, s{sT2}, 1")
    k(f"s_lshl_b32 s{sT}, s{sC}, 1\ns_add_u32 s{sT}, s{sT}, s{sT2}\ns_lshl_b32 s{sT}, s{sT}, 2\ns_add_u32 s{sT}, s{sT}, s{sWV}\ns_add_u32 s{sT}, s{sT}, {C_ST}\ns_lshl_b32 s{sO1}, s{sT}, 7")
    k(f"s_lshl_b32 s{sT}, s{sC}, 2\ns_add_u32 s{sT}, s{sT}, s{sWV}\ns_lshl_b32 s{sT}, s{sT}, 16\ns_lshl_b32 s{sT2}, s{sRB}, 7\ns_add_u32 s{sT}, s{sT}, s{sT2}\ns_add_u32 s{sO2}, s{sT}, {ST}")
    for i in range(16): k(f"v_mov_b32 v{SU+i}, 0")
    k(f"s_lshl_b32 m0, s{sWV}, 11")
    if not RS[0]: lds_spin(k, VSY, SY_RD, 4, 50, sT, sSP, 1)
    s_poll(k, pWS, [f"s{sO1}"], 16, sT, sSP, cfg.stpoll[1])
    stamp(k, cfg, 3, 5)
    k(f"buffer_load_dwordx4 v56, {S(sWS,4)}, s{sO2} offen sc1 lds\nbuffer_load_dwordx4 v57, {S(sWS,4)}, s{sO2} offen offset:1024 sc1 lds")
    k("s_waitcnt vmcnt(2)")
    for i in range(8): k(f"v_lshlrev_b32 v{XU+2*i}, 16, v{XE+i}\nv_and_b32 v{XU+2*i+1}, 0xffff0000, v{XE+i}")
    k.wait(vm="*")
    stamp(k, cfg, 9); stamp(k, cfg, 4, 5)
    lds_signal(k, VSY, SY_S, VONE)
    lds_spin(k, VSY, SY_S, 4, 50, sT, sSP)
    for ps in (0, 1):
        for e in range(8): k(f"ds_read_u16_d16_hi v{SU+8*ps+e}, v{SA+ps} offset:{128*e}")
    k(f"s_mov_b32 s{sO1}, {fbits(-LOG2E)}")
    PR, T = 160, 224
    for ps in (0, 1):
        b = PR + 32*ps
        if ps == 0:
            stamp(k, cfg, 5, 5); lds_spin(k, VSY, SY_GS, 4, 50, sT, sSP, cfg.finsleep); stamp(k, cfg, 6, 5)
        else:
            stamp(k, cfg, 7, 5); k("s_barrier"); stamp(k, cfg, 10); stamp(k, cfg, 8, 5)
        for w in range(4):
            for e in (0, 1): k(f"ds_read_b128 {V(b+8*w+4*e,4)}, v{RA+e} offset:{32768*ps + 4096*w}", f"p{w}")
        k.wait(lg="p1")
        for i in range(4): k(f"v_pk_add_f32 {V(b+2*i,2)}, {V(b+2*i,2)}, {V(b+8+2*i,2)}")
        k.wait(lg="p3")
        for i in range(4): k(f"v_pk_add_f32 {V(b+16+2*i,2)}, {V(b+16+2*i,2)}, {V(b+24+2*i,2)}")
        for i in range(4): k(f"v_pk_add_f32 {V(b+2*i,2)}, {V(b+2*i,2)}, {V(b+16+2*i,2)}")
        for i in range(4): k(f"v_pk_mul_f32 {V(T+2*i,2)}, {V(b+2*i,2)}, {S(sO1,2)} op_sel_hi:[1,0]")
        for i in range(8): k(f"v_exp_f32 v{T+i}, v{T+i}")
        for i in range(4): k(f"v_pk_mul_f32 {V(b+2*i,2)}, {V(b+2*i,2)}, {V(SU+8*ps+2*i,2)}")
        for i in range(4): k(f"v_pk_add_f32 {V(T+2*i,2)}, {V(T+2*i,2)}, 1.0 op_sel_hi:[1,0]")
        for i in range(8): k(f"v_rcp_f32 v{T+i}, v{T+i}")
        for i in range(4): k(f"v_pk_fma_f32 {V(b+2*i,2)}, {V(b+2*i,2)}, {V(T+2*i,2)}, {V(XU+8*ps+2*i,2)}")
        for i in range(4): k(f"v_cvt_pk_bf16_f32 v{b+8+i}, v{b+2*i}, v{b+2*i+1}")
        k(f"buffer_store_dwordx4 {V(b+8,4)}, v{OA}, {S(sOUT,4)}, s{sG32 if ps == 0 else sKAP} offen {cfg.outmod}")
    stamp(k, cfg, 11); stamp(k, cfg, 9, 5)
    prof_dump(k, cfg, True)
    k("s_endpgm")

def gen_helper(k, cfg):
    k.reset()
    k("L_helper:")
    sHB, sIH, sST = 62, 63, 64
    k(f"v_lshrrev_b32 v1, 6, v0\nv_and_b32 v0, 63, v0\nv_readfirstlane_b32 s3, v1\ns_and_b32 s{sXCD}, s2, 7")
    k(f"s_lshl_b32 s{sHB}, s{sXCD}, 2\ns_add_u32 s{sHB}, s{sHB}, s{sJ}")
    k(f"s_lshr_b32 s{sIH}, s{sXCD}, 1\ns_lshl_b32 s{sIH}, s{sIH}, 2\ns_add_u32 s{sIH}, s{sIH}, s{sJ}\ns_and_b32 s{sST}, s{sXCD}, 1\ns_mul_i32 s{sST}, s{sST}, 14\ns_add_u32 s{sST}, s{sST}, s{sIH}")
    k(f"s_lshl_b32 s{sT}, s{sHB}, 3\ns_add_u32 s{sT}, s{sT}, s3\ns_mul_i32 s65, s{sT}, {8*896}")
    k(f"v_lshrrev_b32 v1, 3, v0\nv_and_b32 v2, 7, v0\nv_mul_u32_u24 v3, 896, v1\nv_lshl_add_u32 v3, v2, 4, v3")
    k(f"v_lshlrev_b32 v4, 4, v0\nv_and_b32 v5, 1, v0\nv_lshlrev_b32 v5, 12, v5\nv_lshrrev_b32 v6, 1, v0\nv_lshl_add_u32 v5, v6, 4, v5")
    k(f"v_mul_u32_u24 v15, 3584, v1\nv_lshl_add_u32 v15, v2, 4, v15")
    k(f"s_lshl_b32 s67, s{sHB}, 7\ns_add_u32 s67, s67, {STATS}")
    k(f"s_lshl_b32 s69, s{sST}, 9\ns_add_u32 s69, s69, {AUGW}\ns_mul_i32 s70, s3, {56*3584}\ns_lshl_b32 s74, s{sST}, 7\ns_add_u32 s70, s70, s74")
    srd_const(k, sAUX, 256); srd_const(k, sWS, WSN); srd_const(k, sX, 1835008); srd_const(k, sW1, 1605632); srd_const(k, sW2, 1605632); srd_const(k, sOUT, 3584)
    k("s_waitcnt lgkmcnt(0)")
    srd(k, sW1, pW1); srd(k, sX, pX); srd(k, sWS, pWS); srd(k, sAUX, pDBG); srd(k, sW2, pW2); srd(k, sOUT, pB1)
    stamp(k, cfg, 5)
    l0 = k.lab("h0")
    k(f"s_cmp_lt_u32 s{sIH}, 14\ns_cbranch_scc1 {l0}")
    for i in range(4): k(f"v_mov_b32 v{8+i}, 0")
    k(f"s_and_b32 s66, s{sXCD}, 1\ns_lshl_b32 s66, s66, 1\ns_and_b32 s{sT}, s{sJ}, 1\ns_add_u32 s66, s66, s{sT}\ns_lshl_b32 s66, s66, 3\ns_add_u32 s66, s66, s3\ns_lshl_b32 s66, s66, 11")
    k(f"buffer_store_dwordx4 v[8:11], v4, {S(sWS,4)}, s66 offen sc1\nbuffer_store_dwordx4 v[8:11], v4, {S(sWS,4)}, s66 offen offset:1024 sc1")
    k(f"s_mov_b32 s69, {WSN}\ns_mov_b32 s70, {WSN}\ns_waitcnt vmcnt(0)\ns_barrier\ns_cmp_lg_u32 s3, 7\ns_cbranch_scc1 {l0}")
    s_inc(k, pDBG, "0", 75)
    k(f"{l0}:")
    stamp(k, cfg, 4)
    k.reset()
    if cfg.hxfirst:
        for i in range(7): k(f"buffer_load_dwordx4 {V(16+4*i,4)}, v3, {S(sX,4)}, s65 offen offset:{128*i}", f"x{i}")
    for i in range(7): k(f"s_add_u32 s76, s70, {i*8*3584}\nbuffer_load_dwordx4 {V(44+4*i,4)}, v15, {S(sW1,4)}, s76 offen", f"w{i}")
    k(f"v_lshlrev_b32 v6, 1, v0\nbuffer_load_ushort v81, v6, {S(sOUT,4)}, s74 offen", "b1")
    k("v_and_b32 v12, 1, v0\nv_lshlrev_b32 v12, 4, v12\nv_mov_b32 v13, 0xbf80\nv_lshlrev_b32 v13, v12, v13\nv_bfe_u32 v12, v0, 1, 2")
    for e in range(4): k(f"v_cmp_eq_u32 vcc, {e}, v12\nv_cndmask_b32 v{72+e}, 0, v13, vcc")
    k(f"v_lshrrev_b32 v82, 5, v0\nv_lshl_add_u32 v82, s3, 1, v82\nv_lshlrev_b32 v82, 8, v82\nv_bfe_u32 v13, v0, 4, 1\nv_lshl_add_u32 v82, v13, 7, v82\nv_lshl_add_u32 v82, v2, 2, v82\nv_add_u32 v82, 1024, v82")
    k("v_mov_b32 v12, 0\nv_mov_b32 v13, 0\ns_mov_b32 s68, 0x3f803f80")
    if not cfg.hxfirst:
        for i in range(7): k(f"buffer_load_dwordx4 {V(16+4*i,4)}, v3, {S(sX,4)}, s65 offen offset:{128*i}", f"x{i}")
    hclr = f"buffer_load_dword v83, off, {S(sAUX,4)}, 0 sc1"
    k(hclr, "clr")
    for j in range(7):
        k.wait(vm=f"w{j}")
        k(f"v_mfma_f32_16x16x32_bf16 v[76:79], {V(44+4*j,4)}, v[72:75], {'0' if j == 0 else 'v[76:79]'}")
    k("ds_write2_b32 v82, v76, v77 offset0:0 offset1:8\nds_write2_b32 v82, v78, v79 offset0:16 offset1:24")
    for i in range(7):
        k.wait(vm=f"x{i}")
        for e in range(4): k(f"v_dot2c_f32_bf16 v12, s68, v{16+4*i+e}\nv_dot2c_f32_bf16 v13, v{16+4*i+e}, v{16+4*i+e}")
    stamp(k, cfg, 6)
    for m in ("quad_perm:[1,0,3,2]", "quad_perm:[2,3,0,1]", "row_half_mirror"):
        for r in (12, 13): k(f"v_add_f32_dpp v{r}, v{r}, v{r} {m} row_mask:0xf bank_mask:0xf")
    k(f"v_mul_f32 v12, {fbits(1/448)}, v12\nv_mul_f32 v13, {fbits(1/448)}, v13\nv_fma_f32 v13, -v12, v12, v13\nv_max_f32 v13, 0, v13")
    k(f"v_cvt_pk_bf16_f32 v13, v13, v13\nv_and_b32 v13, 0xffff0000, v13\nv_add_f32 v13, {fbits(1e-5)}, v13\nv_cvt_pk_bf16_f32 v13, v13, v13\nv_and_b32 v13, 0xffff0000, v13")
    k(f"v_sqrt_f32 v13, v13\nv_lshl_add_u32 v14, s3, 3, v1\nv_lshlrev_b32 v14, 2, v14\nv_cvt_pk_bf16_f32 v12, v12, v13")
    k("ds_write_b32 v14, v12")
    stamp(k, cfg, 7)
    v_poll(k, hclr, 83, 4, 73, 2, first=False)
    stamp(k, cfg, 8)
    k.wait(lg="*")
    k("s_barrier")
    stamp(k, cfg, 1)
    l2 = k.lab("h2"); l3 = k.lab("h3")
    k(f"s_cmp_lg_u32 s3, 0\ns_cbranch_scc1 {l2}")
    k("s_mov_b64 exec, 0xffff\nds_read_b128 v[8:11], v4")
    k.wait(lg="*")
    k(f"buffer_store_dwordx4 v[8:11], v5, {S(sWS,4)}, s67 offen sc1\ns_mov_b64 exec, -1")
    k(f"{l2}:")
    k(f"s_cmp_lg_u32 s3, 1\ns_cbranch_scc1 {l3}")
    k("v_lshlrev_b32 v12, 2, v0")
    for j in range(8): k(f"ds_read2st64_b32 {V(16+2*j,2)}, v12 offset0:{4+2*j} offset1:{5+2*j}")
    k.wait(lg="*")
    for st_ in (1, 2, 4, 8):
        for j in range(0, 16, 2*st_): k(f"v_add_f32 v{16+j}, v{16+j}, v{16+j+st_}")
    k(f"v_cvt_pk_bf16_f32 v12, v16, v16\nv_and_b32 v12, 0xffff0000, v12\nv_sub_f32 v12, v16, v12\nv_cvt_pk_bf16_f32 v80, v16, v12\nv_or_b32 v81, 0x10000, v81\nv_lshlrev_b32 v12, 3, v0")
    k(f"buffer_store_dwordx2 v[80:81], v12, {S(sWS,4)}, s69 offen sc1")
    k(f"{l3}:")
    k("s_barrier")
    stamp(k, cfg, 2)
    k(f"v_lshlrev_b32 v14, 7, v0\ns_mul_i32 s76, s{sJ}, 401408\ns_mul_i32 s77, s{sXCD}, 35\ns_lshr_b32 s77, s77, 3\ns_add_u32 s77, s77, s3\ns_add_u32 s77, s77, 12")
    for i in range(cfg.w2pf):
        k(f"s_sub_u32 s71, s77, 35\ns_cmp_ge_u32 s77, 49\ns_cselect_b32 s77, s71, s77\ns_mov_b32 s71, s77")
        if i == 0: k(f"s_lshl_b32 s72, s{sXCD}, 1\ns_add_u32 s72, s72, s3\ns_cmp_lt_u32 s3, 2\ns_cselect_b32 s71, s72, s71")
        k(f"s_lshl_b32 s71, s71, 13\ns_add_u32 s71, s71, s76\ns_add_u32 s77, s77, 8")
        k(f"buffer_load_dword v{90+i}, v14, {S(sW2,4)}, s71 offen", "pf")
    if cfg.actpf:
        k(f"buffer_load_dword v16, off, {S(sAUX,4)}, 0 sc1", "clr")
        k(f"s_lshr_b32 s71, s3, 1\ns_lshl_b32 s72, s{sHB}, 2\ns_add_u32 s72, s72, s71\ns_mul_i32 s76, s72, 57344\ns_lshl_b32 s72, s72, 7")
        k(f"s_and_b32 s71, s3, 1\ns_lshl_b32 s71, s71, 13\ns_add_u32 s76, s76, s71\ns_add_u32 s76, s76, {ACT}")
        v_poll(k, f"buffer_load_dword v16, off, {S(sAUX,4)}, 0 sc1", 16, 4, 73, 2, first=False, tag="clr")
        s_poll(k, pWS, ["s72"], 7, 74, 73, cfg.actpf)
        for i in range(4):
            if i == 3: k("s_bitcmp1_b32 s3, 0\ns_cbranch_scc1 L_hfin")
            k(f"buffer_load_dword v{100+i}, v14, {S(sWS,4)}, s76 offen sc1\ns_add_u32 s76, s76, 16384")
        k("L_hfin:")
    k("s_waitcnt vmcnt(0)")
    stamp(k, cfg, 3)
    prof_dump(k, cfg)
    k("L_end:")
    k("s_endpgm")

HEADER = open("recurrent_scan__ssm_conv_s4__dense_activation_mish__prompt.s.ref").read().split("; Override launch")[0] if __name__ == "__main__" else ""
def build(cfg, header=""):
    k = K(); RS[0] = int(cfg.split == 'r')
    front(k, cfg); vm0 = list(k.vm); gen_G(k, cfg); gen_S(k, cfg, vm0); gen_helper(k, cfg)
    return file_wrap([(KNAME, 256, 512, L_TOT)], [kernel_wrap(KNAME, k.text(), 256).replace('denorm_mode_32 3', f'denorm_mode_32 {cfg.denorm}')], header), k

if __name__ == "__main__":
    cfg = Cfg()
    for a in sys.argv[2:]:
        n, v = a.split("="); setattr(cfg, n, eval(v))
    txt, k = build(cfg, HEADER)
    open(sys.argv[1], "w").write(txt)
    print("instructions", len(k.ins), "padded states", k.padded)
```

```python
import sys, struct
from kasm import *
from asmlib import KNAME, kernel_wrap, file_wrap

def fbits(x): return "0x%08x" % struct.unpack("<I", struct.pack("<f", x))[0]
LOG2E = 1.4426950408889634

AUGW, ACNT = 0xA000, 0x10000
CNT, STATS, PROF, XT, ST, ACT, KDBG, WSN = 0, 0x8000, 0x20000, 0x100000, 0x300000, 0x500000, 0xD00000, 0x2000000
C_ACT, C_XT, C_ST = 0, 128, 184
L_WS, L_XS = [81920, 98304, 0], [49152, 65536, 16384]
L_GB, L_KC, L_U, L_SY, L_TOT = 49152, 14336, 0, 13312, 163840
L_PART, L_PCH, L_GS = 84480, 6864, L_U + 9216
sX, sW1, sW2, sWS, sAUX, sOUT = 4, 8, 12, 16, 20, 24
pX, pARE, pLDT, pDSK, pW1, pB1, pW2, pOUT, pDBG, pWS = 28, 30, 42, 44, 48, 50, 52, 54, 56, 58
sXCD, sJ, sR, sC, sRB, sFC, sKAP = 60, 61, 62, 63, 64, 65, 66
SPIN, LSPIN = 1000000, 30000000

class Cfg:
    prof = False
    kdbg = False
    span = False
    cyc = False
    depth = 6
    rot = False
    stpoll = ('s', 4)
    actsleep = 1
    c1at = [14, 22, 30, 38]
    statstep = 20
    pace2 = 9
    pace = 8
    actpf = 0
    w2pf = 1
    codepf = True
    outmod = ""
    pbar = False
    flagat = 1
    cut = [3, 4]
    early = [0, 6]
    xtat = [46, 50]
    touch = 36
    w2touch = 0
    tlb = False
    ord = [2, 3, 4, 5, 0, 1, 6]
    s45 = True
    jbal = 2
    partner = 1
    pmask2 = 0x400
    xtearly = True
    gc1early = True
    w2from = 22
    rdlag = 1
    p0plain = False
    pollat = 6
    cvprio = 2
    nprio = 0
    tailq = 6
    usleep = 0
    mbar = 1
    hearly = False
    hdelay = 0
    hsplit = True
    sall = None
    b8at = 14
    pbar2 = 0
    cvpre = 12
    g2prio = 0
    finsleep = 0
    bclate = True
    own = True
    aspread = 4
    gc0 = True
    c0x = 2
    c0w = 2
    gat = dict(xr=46, xs=50, touch=36)
    xtbar = 1
    hxfirst = True
    gearly = 1
    c0late = 2
    r2cut = 8
    sblk = True
    split = 'J'
    x_noconv = False
    cvfree = 3
    tailn = 12
    gblk = 4
    x_noside = False
    x_nodma = False
    x_nobar = False
    x_nokw = False
    x_acthit = False
    x_nos2 = False
    ssleep = 0
    stat = [1,2,3,4,5,6,7]
    actmod = 'sc1'
    x_noc01 = False
    kbar = False
    kdelay = False
    kprio = 0
    denorm = 3

def srd(k, d, ptr): k(f"s_mov_b64 {S(d,2)}, {S(ptr,2)}")
def srd_const(k, d, n): k(f"s_mov_b32 s{d+2}, {n}\ns_mov_b32 s{d+3}, 0x20000")

def stamp(k, cfg, i, mode=1):
    if cfg.cyc and cfg.prof and (mode == int(cfg.prof) or i == 0):
        k(f"s_memtime {S(78+2*i,2)}"); return
    if (cfg.span and i == 0) or cfg.prof and (int(cfg.prof) == mode or i == 0): k(f"s_memrealtime {S(78+2*i,2)}")
def cstamp(k, cfg, i, mode=2):
    if int(cfg.prof) == mode: k(f"s_memtime {S(78+2*i,2)}")
def prof_dump(k, cfg, last=False):
    if cfg.span == 2 and last:
        k("L_pad:\ns_memrealtime s[80:81]\ns_waitcnt lgkmcnt(0)\ns_sub_u32 s80, s80, s78\ns_cmp_lt_u32 s80, 4000\ns_cbranch_scc1 L_pad")
    if cfg.span == 1 and last:
        k("s_memrealtime s[80:81]\ns_waitcnt lgkmcnt(0)\ns_not_b32 s78, s78\nv_mov_b32 v4, s78\nv_mov_b32 v5, s80\ns_mov_b64 exec, 1")
        k("s_cmp_lg_u32 s3, 4\ns_cbranch_scc1 L_end")
        k(f"buffer_atomic_umax v4, off, {S(sAUX,4)}, 0 offset:8\nbuffer_atomic_umax v5, off, {S(sAUX,4)}, 0 offset:12")
    if not cfg.prof: return
    k("s_waitcnt lgkmcnt(0)")
    k("s_lshl_b32 s76, s2, 3\ns_add_u32 s76, s76, s3\ns_lshl_b32 s76, s76, 6\ns_add_u32 s76, s76, %d" % PROF)
    k("s_mov_b64 exec, 1")
    for q in range(3):
        for e in range(4): k(f"v_mov_b32 v{4+e}, s{78+2*(4*q+e)}")
        k(f"buffer_store_dwordx4 v[4:7], off, {S(sWS,4)}, s76 offset:{16*q}")
    k("s_mov_b64 exec, -1")

def atomic_inc(k, srdreg, soff, vt):
    k(f"v_mov_b32 v{vt}, 1\ns_mov_b64 exec, 1")
    k(f"buffer_atomic_add v{vt}, off, {S(srdreg,4)}, {soff} sc1", "atom")
    k("s_mov_b64 exec, -1")

def s_inc(k, ptr, soff, st):
    k(f"s_mov_b32 s{st}, 1\ns_atomic_add s{st}, {S(ptr,2)}, {soff}")
def s_poll(k, ptr, soffs, want, st, sc, sleep=0):
    l = k.lab("sp"); o = k.lab("spo")
    k(f"s_mov_b32 s{sc}, 0")
    k(f"{l}:")
    for i, so in enumerate(soffs): k(f"s_load_dword s{st+i}, {S(ptr,2)}, {so} glc")
    k(f"s_add_u32 s{sc}, s{sc}, 1")
    k.wait(lg="*")
    k(f"s_cmp_gt_u32 s{sc}, {SPIN}\ns_cbranch_scc1 {o}")
    for i in range(1, len(soffs)): k(f"s_min_u32 s{st}, s{st}, s{st+i}")
    if sleep: k(f"s_cmp_ge_u32 s{st}, {want}\ns_cbranch_scc1 {o}\ns_sleep {sleep}\ns_branch {l}")
    else: k(f"s_cmp_lt_u32 s{st}, {want}\ns_cbranch_scc1 {l}")
    k(f"{o}:")
def v_poll(k, load, vt, want, sc, sleep=0, first=True, tag="*"):
    l = k.lab("vp"); o = k.lab("vpo")
    if first: k(load)
    k(f"s_mov_b32 s{sc}, 0")
    k.wait(vm=tag)
    k(f"{l}:")
    k(f"v_cmp_gt_u32 vcc, {want}, v{vt}\ns_add_u32 s{sc}, s{sc}, 1\ns_cmp_gt_u32 s{sc}, {SPIN}\ns_cbranch_scc1 {o}\ns_cbranch_vccz {o}")
    if sleep: k(f"s_sleep {sleep}")
    sv = list(k.vm); k(load); k("s_waitcnt vmcnt(0)"); k.vm = sv
    k(f"s_branch {l}")
    k(f"{o}:")

def lds_signal(k, vaddr, off, vone):
    k("s_mov_b64 exec, 1")
    k(f"ds_add_u32 v{vaddr}, v{vone} offset:{off}", "sig")
    k("s_mov_b64 exec, -1")
def lds_spin(k, vaddr, off, want, vt, st, sc, sleep=0):
    l = k.lab("spin"); o = k.lab("spun")
    k(f"s_mov_b32 s{sc}, 0")
    k(f"{l}:")
    k(f"ds_read_b32 v{vt}, v{vaddr} offset:{off}\ns_add_u32 s{sc}, s{sc}, 1")
    k.wait(lg="*")
    k(f"v_readfirstlane_b32 s{st}, v{vt}\ns_cmp_gt_u32 s{sc}, {LSPIN}\ns_cbranch_scc1 {o}")
    if sleep: k(f"s_cmp_ge_u32 s{st}, {want}\ns_cbranch_scc1 {o}\ns_sleep {sleep}\ns_branch {l}")
    else: k(f"s_cmp_lt_u32 s{st}, {want}\ns_cbranch_scc1 {l}")
    k(f"{o}:")

sCP, sCS, sCOL, sM, sT, sT2, sSP, sO1, sO2, sDO, sDM = 67, 68, 69, 70, 71, 72, 73, 74, 75, 76, 77
sXO, sWO, sA2, sB2, sDT, sDT2, sE0, sE1, sE2, sE3 = 30, 31, 32, 33, 34, 35, 36, 37, 38, 39
sHH, sG32, sKM = 40, 41, 46
sRW = 40
AB, BB, CB, X1, X8, X256, W1, W8, W256, W2, W4, TT, Z0, Z1, PK = 100, 102, 104, 106, 108, 110, 112, 114, 116, 118, 120, 122, 124, 126, 128
KWG, KR, PA, DSK, DT, VD, VF, UF, KA = 132, 140, 141, 145, 146, 150, 160, 192, 224
LOCT = [4, 6, 1, 0, 3, 5, 2]
ORD = list(range(7))
LOC = list(LOCT)
SY_GS, SY_RING, SY_RD, SY_U, SY_PAIR, SY_S, SY_W2, SY_M = 0, 4, 8, 12, 16, 24, 32, 48

def x_offsets(k, d):
    k(f"v_lshrrev_b32 v154, 3, v0\nv_and_b32 v155, 7, v0\nv_lshrrev_b32 v156, 4, v0\nv_xor_b32 v155, v155, v156")
    k(f"v_lshl_add_u32 v154, s{sCOL}, 5, v154\nv_mul_u32_u24 v154, 896, v154\nv_lshl_add_u32 v{d}, v155, 4, v154\nv_xor_b32 v155, 64, v{d}")
    k(f"v_add_u32 v{d+1}, 6144, v155\nv_add_u32 v{d+2}, {2*6144}, v{d}\nv_add_u32 v{d+3}, {3*6144}, v155")
def w1_offsets(k, d):
    k(f"v_lshrrev_b32 v154, 4, v0\nv_and_b32 v155, 15, v0\nv_lshlrev_b32 v156, 2, v154\nv_xor_b32 v155, v155, v156")
    k(f"v_lshl_add_u32 v154, s{sCOL}, 4, v154\nv_mul_u32_u24 v154, 3584, v154\nv_lshl_add_u32 v{d}, v155, 4, v154")
    for n in (1,2,3): k(f"v_add_u32 v{d+n}, {n*13312}, v{d}")
def w2_offsets(k, d):
    k(f"v_lshrrev_b32 v154, 3, v0\nv_and_b32 v155, 7, v0\nv_bfe_u32 v156, v0, 4, 1\nv_lshlrev_b32 v156, 2, v156\nv_xor_b32 v155, v155, v156")
    k(f"v_mul_u32_u24 v154, 896, v154\nv_lshl_add_u32 v{d}, v155, 4, v154")
    for n in (1,2,3): k(f"v_add_u32 v{d+n}, {n*6144}, v{d}")
sC0, sCE = 42, 43
def piece_bases(k, unit):
    k(f"s_add_u32 s{sB2}, s{sA2}, {unit}\ns_mul_i32 s{sC0}, s{sCE}, {unit}\ns_add_u32 s{sC0}, s{sC0}, s{sA2}")
def piece(n, unit, extra, d):
    if n == 0: return f"s_add_u32 s{d}, s{sC0}, {extra}"
    return f"s_cmp_le_u32 s{sCE}, {n-1}\ns_cselect_b32 s{d}, s{sB2}, s{sA2}\ns_add_u32 s{d}, s{d}, {(n-1)*unit + extra}"
def w2_bases(k, cfg):
    k(f"s_xor_b32 s{sT}, s3, s{sXCD}\ns_bitcmp1_b32 s{sT}, 0\ns_cselect_b32 s{sCE}, 0, s{sC}")
    k(f"s_and_b32 s{sT}, s3, 1\ns_mul_i32 s{sT}, s{sT}, 14\ns_add_u32 s{sT}, s{sT}, s{sCS}\ns_mul_i32 s{sA2}, s{sT}, {64*896}\ns_lshl_b32 s{sT}, s{sKAP}, 7\ns_add_u32 s{sA2}, s{sA2}, s{sT}")
    piece_bases(k, 114688)
def w2dma(b, d):
    out = [f"s_add_u32 m0, s{sM}, {LOC[b%7]*16384}\n" + piece(b//2, 114688, (b & 1)*28672, sDT) + f"\nbuffer_load_dwordx4 v{d}, {S(sW2,4)}, s{sDT} offen lds"]
    for n in (1,2,3): out.append(f"buffer_load_dwordx4 v{d+n}, {S(sW2,4)}, s{sDT} offen offset:{n*1024} lds")
    return [(g, f"w2_{b}") for g in out]
def cmul(k, z, a, w, t):
    k(f"v_pk_mul_f32 {V(t,2)}, {V(a,2)}, {V(w,2)} op_sel_hi:[1,0]")
    k(f"v_pk_fma_f32 {V(z,2)}, {V(a,2)}, {V(w,2)}, {V(t,2)} op_sel:[1,1,0] op_sel_hi:[0,1,1] neg_lo:[0,1,0]")

gW2D, gW2A, gL16, gSY, gONE, gXA, gWA, gSTA, gAGA, gAUG, gSTT, gH = 1, 5, 9, 12, 13, 80, 84, 88, 89, 90, 98, 14
sPW = 22
sGA, ZERO, VSY, VONE, _WD, sW2D, XTA, XTS, EW, CA, CBA, UW, TZ = 8, 30, 34, 35, 36, 40, 44, 46, 64, 65, 66, 67, 48

XR = 56
CLRL = f"buffer_load_dword v49, off, {S(sAUX,4)}, 0 sc1"
class Cap:
    def __init__(self): self.l = []
    def __call__(self, text, tag=None): self.l += [x for x in text.split("\n") if x.strip()]

def front(k, cfg):
    stamp(k, cfg, 0)
    k("s_load_dwordx16 s[28:43], s[0:1], 0\ns_load_dwordx16 s[44:59], s[0:1], 64")
    k("s_cmpk_ge_u32 s2, 256\ns_cbranch_scc1 L_end")
    k(f"s_lshr_b32 s{sJ}, s2, 3")
    if cfg.codepf:
        lp = k.lab("pc")
        k(f"s_getpc_b64 s[72:73]\n{lp}:\nv_and_b32 v2, 15, v0\nv_lshl_add_u32 v2, s{sJ}, 4, v2\nv_min_u32 v2, (L_end-{lp})/64, v2\nv_mov_b32 v3, 0")
        k(f"v_lshlrev_b32 v2, 6, v2\nv_lshl_add_u64 v[2:3], v[2:3], 0, s[72:73]\nglobal_load_dword v159, v[2:3], off", "code")
    k(f"s_sub_u32 s{sCP}, s2, 32\ns_cbranch_scc1 L_helper")
    k(f"v_and_b32 v1, 0xff, v0\nv_lshl_add_u32 v1, s{sCP}, 8, v1\nv_lshlrev_b32 v1, 2, v1\ns_lshl_b32 s{sSP}, s{sCP}, 2")
    k("s_waitcnt lgkmcnt(0)")
    stamp(k, cfg, 1, 3)
    for i in range(2): k(f"global_load_dword v{AB+i}, v1, {S(pARE+2*i,2)}", "prm")
    k(f"s_load_dword s{sO1}, {S(pLDT,2)}, s{sSP}\ns_load_dword s{sO2}, {S(pDSK,2)}, s{sSP}")
    if cfg.partner:
        k("v_xor_b32 v3, 0x1000, v1")
        if cfg.pmask2: k(f"v_lshrrev_b32 v2, 8, v0\nv_mul_u32_u24 v2, {cfg.pmask2}, v2\nv_xor_b32 v3, v2, v3")
        for i in range(2): k(f"global_load_dword v{157+i}, v3, {S(pARE+2*i,2)}", "pp")
    k("v_lshrrev_b32 v2, 6, v0\nv_and_b32 v0, 63, v0\nv_readfirstlane_b32 s3, v2")
    k(f"s_and_b32 s{sXCD}, s2, 7\ns_sub_u32 s{sJ}, s{sJ}, 4")
    k(f"s_mul_i32 s{sR}, s{sJ}, 37\ns_lshr_b32 s{sR}, s{sR}, 8\ns_mul_i32 s{sC}, s{sR}, 7\ns_sub_u32 s{sC}, s{sJ}, s{sC}")
    k(f"s_lshr_b32 s{sRB}, s{sXCD}, 1\ns_lshl2_add_u32 s{sRB}, s{sRB}, s{sR}")
    k(f"s_and_b32 s{sXH}, s{sXCD}, 1\ns_mul_i32 s{sFC}, s{sXH}, 7\ns_add_u32 s{sFC}, s{sFC}, s{sC}")
    k(f"s_lshl1_add_u32 s{sKAP}, s{sR}, s{sC}\ns_sub_u32 s{sT}, s{sKAP}, 7\ns_cselect_b32 s{sKAP}, s{sKAP}, s{sT}")
    k(f"s_bfe_u32 s{sCS}, s3, 0x10001\ns_and_b32 s{sCOL}, s3, 3\ns_lshl_b32 s{sM}, s{sCOL}, 12\ns_add_u32 s{sM}, s{sM}, {L_GB}")
    for i in range(2, 6): k(f"global_load_dword v{AB+i}, v1, {S(pARE+2*i,2)}", "prm2")
    if cfg.partner == 2:
        for i in range(2, 6): k(f"global_load_dword v157, v3, {S(pARE+2*i,2)}", "pp2")
    stamp(k, cfg, 2, 3)
    x_offsets(k, XD); w1_offsets(k, WD)
    srd(k, sX, pX); srd(k, sW1, pW1); srd_const(k, sX, 1835008); srd_const(k, sW1, 1605632)
    k(f"s_mul_i32 s{sDO}, s{sRB}, 114688\ns_lshl_b32 s{sT}, s{sKAP}, 7\ns_add_u32 s{sDO}, s{sDO}, s{sT}")
    k(f"s_mul_i32 s{sDM}, s{sKAP}, 229376\ns_lshl_b32 s{sT}, s{sFC}, 8\ns_add_u32 s{sDM}, s{sDM}, s{sT}")
    k(f"s_xor_b32 s{sKM}, s3, 4\ns_mul_i32 s{sKM}, s{sKM}, 8704\ns_mov_b32 s47, 0x03020c0c")
    k(f"s_cmp_lt_u32 s3, 4\ns_cselect_b32 s47, 0x01000c0c, s47\ns_cselect_b32 s1, 0, 1")
    def c0issue():
        o = k.lab("c0")
        k(f"s_cmp_eq_u32 s1, 1\ns_cbranch_scc1 {o}")
        stamp(k, cfg, 1, 7)
        for n, (g, t) in enumerate(chunk(cfg, 0, False)): k(g, "c0x" if n < 4 else t)
        stamp(k, cfg, 2, 7)
        k(f"{o}:\ns_mov_b32 m0, s{sKM}\n{ADV}")
    def role_wait(tag, n_s):
        o = k.lab("rw")
        k(f"s_cmp_eq_u32 s1, 0\ns_cbranch_scc1 {o}\ns_waitcnt vmcnt({n_s})\n{o}:")
        k.wait(vm=tag)
    if cfg.c0x == 1: c0issue()
    else: k(f"s_mov_b32 m0, s{sKM}")
    k(f"s_add_u32 s{sT}, s{sKM}, {L_KC}\nv_and_b32 v154, 31, v0\nv_lshrrev_b32 v155, 5, v0\nv_mul_u32_u24 v156, 272, v154\nv_lshl_add_u32 v156, v155, 4, v156\nv_add_u32 v{KR}, s{sT}, v156")
    k(f"s_mov_b32 s44, {fbits(8.0)}\ns_mov_b32 s45, {fbits(256.0)}\nv_mov_b32 v{PK}, 0x3f80\nds_write_addtid_b32 v{PK} offset:{L_KC}")
    k(f"s_mul_i32 s{sE3}, s{sCS}, {L_PCH}\ns_and_b32 s{sHH}, s3, 1\ns_mul_i32 s{sT}, s{sHH}, 3328\ns_add_u32 s{sE3}, s{sE3}, s{sT}\ns_add_u32 s{sE3}, s{sE3}, {L_PART}\nv_lshl_add_u32 v{PA}, v0, 4, s{sE3}")
    srd(k, sWS, pWS); srd_const(k, sWS, WSN)
    k(f"s_lshl1_add_u32 s{sG32}, s{sKAP}, s{sXH}")
    for i in range(4): k(f"v_mov_b32 v{ZERO+i}, 0")
    o = k.lab("g0"); j = k.lab("g1")
    k(f"s_cmp_eq_u32 s1, 1\ns_cbranch_scc1 {o}")
    setup_G(k, cfg, 0)
    k(f"s_branch {j}\n{o}:")
    for part in cfg.early: S_addresses(k, part)
    k(f"{j}:")
    Lhi = struct.unpack("<f", struct.pack("<f", LOG2E))[0]; Llo = LOG2E - Lhi
    k(f"v_mov_b32 v154, {fbits(Lhi)}\nv_mov_b32 v149, {fbits(Llo)}\ns_lshl_b32 s{sT}, s{sCS}, 4")
    stamp(k, cfg, 3, 3)
    k("s_waitcnt lgkmcnt(0)"); k.lg = []
    k(f"s_lshr_b32 s{sO1}, s{sO1}, s{sT}\ns_lshl_b32 s{sO1}, s{sO1}, 16")
    k(f"v_mul_f32 v155, s{sO1}, v154\nv_fma_f32 v156, s{sO1}, v154, -v155\nv_fmac_f32 v156, s{sO1}, v149")
    k(f"v_exp_f32 v155, v155\nv_mul_f32 v156, {fbits(0.6931471805599453)}, v156\nv_fmac_f32 v155, v155, v156\nv_cvt_pk_bf16_f32 v155, v155, v155\nv_and_b32 v{DT+2}, 0xffff0000, v155")
    k(f"v_mul_f32 v{DT}, v154, v{DT+2}\nv_mul_f32 v{DT+1}, 0.15915494, v{DT+2}")
    stamp(k, cfg, 1); stamp(k, cfg, 4, 3)
    if cfg.c0x == 1: role_wait("prm", (4, 6, 10)[cfg.partner])
    else: k.wait(vm="prm")
    stamp(k, cfg, 2); stamp(k, cfg, 5, 3)
    if cfg.c0x == 2: c0issue()
    def xt_read():
        stamp(k, cfg, 3, 7)
        k.wait(vm="c0x")
        stamp(k, cfg, 4, 7)
        k(f"ds_read_b64_tr_b16 {V(XR,2)}, v{XTA}\nds_read_b64_tr_b16 {V(XR+2,2)}, v{XTA+1} offset:512")
        k(f"ds_read_b64_tr_b16 {V(XR+4,2)}, v{XTA+1}\nds_read_b64_tr_b16 {V(XR+6,2)}, v{XTA} offset:512")
    def xt_store():
        for g in (0, 1): k(f"buffer_store_dwordx4 {V(XR+4*g,4)}, v{XTS}, {S(sWS,4)}, s{sE1+g} offen sc1", "xts")
    nv = [0]; pend = []
    def put(z, row, neg, last=False):
        p = PK + row % 4
        k(f"v_cvt_pk_bf16_f32 v{p}, v{z}, {'-' if neg else ''}v{z+1}")
        w = f"ds_write_addtid_b32 v{p} offset:{L_KC + 272*row}"
        if cfg.kdelay:
            if pend: k(pend.pop())
            pend.append(w)
            if last or row == 31: k(pend.pop())
        elif not cfg.x_nokw: k(w)
        nv[0] += 1
        if nv[0] in cfg.xtat:
            o = k.lab("g"); sl = list(k.lg)
            k(f"s_cmp_eq_u32 s1, 1\ns_cbranch_scc1 {o}")
            if nv[0] == cfg.xtat[0]: xt_read(); sl[-1] = "xt"
            else: k.wait(lg="xt"); xt_store()
            k(f"{o}:"); k.lg = sl
        if nv[0] == cfg.touch:
            o = k.lab("g")
            k(f"s_cmp_eq_u32 s1, 1\ns_cbranch_scc1 {o}")
            for n in range(4): k(f"buffer_load_dword v159, v{WD+n}, {S(sW1,4)}, s{sDM} offen offset:{n*1024}", "touch")
            if cfg.w2touch == 3:
                srd(k, sW2, pW2); srd_const(k, sW2, 1605632)
                k(f"s_lshl2_add_u32 s{sT}, s{sCP}, s{sCOL}\ns_mul_i32 s{sT}, s{sT}, 1792\nv_mul_u32_u24 v158, 28, v0\nbuffer_load_dword v159, v158, {S(sW2,4)}, s{sT} offen", "touch")
            k(f"{o}:")
    for i in (0, 1): k(f"v_perm_b32 v{AB+i}, v{AB+i}, v{AB+i}, s47")
    k(f"v_pk_mul_f32 {V(X1,2)}, {V(AB,2)}, {V(DT,2)}")
    k(f"v_pk_mul_f32 {V(X8,2)}, {V(X1,2)}, s[44:45] op_sel_hi:[1,0]\nv_pk_mul_f32 {V(X256,2)}, {V(X1,2)}, s[44:45] op_sel:[0,1] op_sel_hi:[1,1]")
    for x in (X8, X1, X256): k(f"v_fract_f32 v{x+1}, v{x+1}")
    for x, w in ((X8, W8), (X1, W1), (X256, W256)):
        k(f"v_exp_f32 v{x}, v{x}\nv_cos_f32 v{w}, v{x+1}\nv_sin_f32 v{w+1}, v{x+1}")
    for x, w in ((X8, W8), (X1, W1), (X256, W256)):
        k(f"v_pk_mul_f32 {V(w,2)}, {V(w,2)}, {V(x,2)} op_sel_hi:[1,0]")
    if cfg.kbar: k("s_barrier")
    stamp(k, cfg, 6, 3)
    put(W8, 1, False)
    prev = W8
    for b in range(2, 32):
        cmul(k, Z0, prev, W8, TT); prev = Z0; put(Z0, b, False)
    stamp(k, cfg, 7, 3)
    for s in range(8): k(f"ds_read_b128 {V(VF+4*s,4)}, v{KR} offset:{32*s}", "vf")
    role_wait("prm2", 4 if cfg.partner == 2 else 0)
    for i in range(2, 6): k(f"v_perm_b32 v{AB+i}, v{AB+i}, v{AB+i}, s47")
    cmul(k, Z1, BB, CB, TT)
    k(f"v_pk_mul_f32 {V(Z1,2)}, {V(Z1,2)}, {V(DT+2,2)} op_sel_hi:[1,0]")
    put(Z1, 0, True)
    cmul(k, W2, W1, W1, TT); cmul(k, W4, W2, W2, TT)
    prev = Z1
    for a in range(1, 21):
        if a in (8, 12, 14) or a >= 16: cmul(k, Z1, Z1, W256, TT); prev = Z1
        else: cmul(k, Z0, prev, W1 if a < 8 else (W2 if a < 12 else W4), TT); prev = Z0
        put(prev, a, True, a == 20)
    stamp(k, cfg, 8, 3)
    for s in range(8): k(f"ds_read_b128 {V(UF+4*s,4)}, v{KR} offset:{32*s}", f"uf{s}")
    kmf = lambda s: f"v_mfma_f32_32x32x16_bf16 {V(KA,16)}, {V(UF+4*s,4)}, {V(VF+4*s,4)}, {'0' if s == 0 else V(KA,16)}"
    c1 = chunk(cfg, 1)
    o = k.lab("c1"); sl = list(k.lg); sv = list(k.vm)
    k(f"s_cmp_eq_u32 s1, 0\ns_cbranch_scc1 {o}")
    k.vm = []
    for s in range(8):
        k.wait(lg=f"uf{s}")
        k(kmf(s))
        if s % 2 == 0: k(*c1[4 + s//2])
        if s == 1: srd(k, sAUX, pDBG); srd_const(k, sAUX, 256)
        if s == 3: k(f"v_mov_b32 v{VSY}, {L_SY}\nv_mov_b32 v{VONE}, 1\ns_movk_i32 s50, 128\ns_mov_b32 s51, 229376")
    stamp(k, cfg, 9, 3); stamp(k, cfg, 3); stamp(k, cfg, 7, 7)
    k("s_barrier")
    k.vmS = list(k.vm)
    k("s_branch L_S")
    k(f"{o}:"); k.lg = sl; k.vm = sv
    cap = Cap(); setup_G(cap, cfg, 1)
    for _ in range(12): k(cap.l.pop(0))
    for s in range(8):
        k.wait(lg=f"uf{s}")
        k(kmf(s))
        for _ in range(5): k(cap.l.pop(0))
    stamp(k, cfg, 9, 3)
    for _ in range(8): k(cap.l.pop(0))
    k(f"v_add_f32 v{KA}, v{KA}, v{DSK}")
    for r in (1, 2, 0): k(f"ds_write_b128 v{PA}, {V(KA+4*r,4)} offset:{1024*r}")
    while cap.l: k(cap.l.pop(0))
    if cfg.xtat[0] > 52: xt_read(); k.wait(lg="*"); xt_store()
    stamp(k, cfg, 5, 7)
    for n in range(4): k(*c1[n])
    stamp(k, cfg, 6, 7)
    k.wait(vm="c0")
    stamp(k, cfg, 7, 7)
    stamp(k, cfg, 3)
    stamp(k, cfg, 10, 3)
    k("s_barrier")
    stamp(k, cfg, 11, 3); stamp(k, cfg, 8, 7)

XD, WD, sXH = 150, 132, 0
ADV = (f"s_add_u32 s{sDO}, s{sDO}, 128\ns_add_u32 s{sDM}, s{sDM}, 229376\ns_cmp_ge_u32 s{sDM}, 1605632\ns_cselect_b32 s{sDT}, 896, 0\n"
       f"s_cselect_b32 s{sDT2}, 1605632, 0\ns_sub_u32 s{sDO}, s{sDO}, s{sDT}\ns_sub_u32 s{sDM}, s{sDM}, s{sDT2}")
def chunk(cfg, c, adv=True):
    out = []
    for vd, srdr, so, slots in ((XD, sX, sDO, L_XS), (WD, sW1, sDM, L_WS)):
        o = [f"buffer_load_dwordx4 v{vd+n}, {S(srdr,4)}, s{so} offen offset:{n*1024} lds" for n in range(4)]
        o[0] = f"s_add_u32 m0, s{sM}, {slots[c % 3]}\n" + o[0]
        out += o
    if adv and c == 1: out[-1] += "\n" + ADV
    if adv and 1 < c < 6:
        out[4] += f"\ns_cmp_ge_u32 s{sDM}, {6*229376}\ns_cselect_b32 s{sDT}, -768, s50\ns_cselect_b32 s{sDT2}, {-6*229376}, s51\ns_add_u32 s{sDO}, s{sDO}, s{sDT}"
        out[7] += f"\ns_add_u32 s{sDM}, s{sDM}, s{sDT2}"
    return [(g, f"c{c}") for g in out]

def setup_G(k, cfg, part):
    if part == 0:
        k(f"v_lshrrev_b32 v{gH}, 5, v0\nv_and_b32 v15, 31, v0")
        k(f"s_lshl_b32 s{sT}, s{sHH}, 13\ns_add_u32 s{sT}, s{sT}, {L_GB+L_XS[2]}")
        k(f"v_bfe_u32 v13, v0, 1, 3\nv_xor_b32 v12, v13, v{gH}\nv_lshlrev_b32 v12, 4, v12\nv_lshl_add_u32 v12, v15, 7, v12\nv_add_u32 v{gXA}, s{sT}, v12")
        for s in (1,2,3): k(f"v_xor_b32 v{gXA+s}, {32*s}, v{gXA}")
        k(f"v_lshrrev_b32 v50, 4, v0\nv_and_b32 v54, 1, v0\nv_lshlrev_b32 v53, 13, v13\nv_lshl_add_u32 v53, v50, 4, v53\nv_lshl_add_u32 v{XTS}, v54, 6, v53")
        k(f"v_bfe_u32 v10, v0, 2, 2\nv_and_b32 v11, 3, v0\nv_lshlrev_b32 v11, 3, v11\nv_and_b32 v12, 16, v0\nv_lshl_add_u32 v11, v12, 1, v11")
        k(f"s_and_b32 s{sT}, s3, 2\nv_xor_b32 v12, s{sT}, v10\nv_lshl_add_u32 v12, v12, 6, v11")
        k(f"v_lshl_add_u32 v13, v{gH}, 3, v10\nv_lshl_add_u32 v12, v13, 8, v12\nv_add_u32 v{gWA}, {L_GB+L_WS[0]}, v12\nv_xor_b32 v{gWA+1}, 64, v{gWA}\nv_add_u32 v{gWA+2}, {L_GB+L_WS[2]}, v12\nv_xor_b32 v{gWA+3}, 64, v{gWA+2}")
        k(f"s_lshl_b32 s{sT}, s{sXH}, 2\nv_lshl_add_u32 v52, v50, 3, v10")
        k(f"v_bfe_u32 v53, v0, 1, 1\nv_or_b32 v53, s{sT}, v53\nv_bfe_u32 v51, v52, 1, 3\nv_xor_b32 v53, v53, v51\nv_lshlrev_b32 v53, 4, v53")
        k(f"s_add_u32 s{sT}, s{sM}, {L_XS[0]}\nv_lshl_add_u32 v53, v52, 7, v53\nv_lshl_add_u32 v53, v54, 3, v53\nv_add_u32 v{XTA}, s{sT}, v53\nv_xor_b32 v{XTA+1}, 32, v{XTA}")
        k(f"s_lshl_b32 s{sT}, s{sG32}, 8\ns_add_u32 s{sT}, s{sT}, s{sRB}\ns_lshl2_add_u32 s{sT}, s{sT}, s{sCOL}\ns_lshl_b32 s{sT}, s{sT}, 7\ns_add_u32 s{sE1}, s{sT}, {XT}\ns_add_u32 s{sE2}, s{sE1}, 65536")
        k(f"s_mul_i32 s{sT}, s3, 4576\ns_cmp_ge_u32 s3, 2\ns_cselect_b32 s{sT}, {L_SY}, s{sT}\ns_sub_u32 s{sT2}, s{sE3}, 16")
        k(f"v_min_u32 v156, 29, v0\nv_lshl_add_u32 v156, v156, 4, s{sT}\nv_mov_b32 v155, s{sT2}\nv_cmp_eq_u32 vcc, 0, v{gH}\ns_nop 1\nv_cndmask_b32 v156, v155, v156, vcc\nds_write_b128 v156, {V(ZERO,4)}")
        return
    k(f"s_lshl_b32 s{sT}, s{sCS}, 4\ns_lshr_b32 s{sO2}, s{sO2}, s{sT}\ns_lshl_b32 s{sO2}, s{sO2}, 16\ns_cmp_eq_u32 s{sHH}, 0\ns_cselect_b32 s{sO2}, s{sO2}, 0")
    k(f"v_mov_b32 v154, s{sO2}\nv_cmp_eq_u32 vcc, 0, v0")
    srd(k, sW2, pW2); srd_const(k, sW2, 1605632)
    k(f"v_cndmask_b32 v{DSK}, 0, v154, vcc")
    w2_bases(k, cfg); w2_offsets(k, gW2D)
    k(f"v_lshl_add_u32 v13, v{gH}, 2, v10\nv_lshl_add_u32 v12, v13, 7, v11\nv_lshrrev_b32 v13, 1, v10\nv_lshl_add_u32 v12, v13, 6, v12")
    k(f"v_add_u32 v{gW2A}, s{sM}, v12\nv_xor_b32 v{gW2A+1}, 64, v{gW2A}\nv_add_u32 v{gW2A+2}, 65536, v{gW2A}\nv_add_u32 v{gW2A+3}, 65536, v{gW2A+1}")
    k(f"s_mul_i32 s{sT}, s{sCS}, 768\ns_add_u32 s{sT}, s{sT}, {L_GS}\nv_lshl_add_u32 v13, v15, 3, s{sT}\nv_cmp_eq_u32 vcc, 0, v{gH}")
    k(f"s_mul_i32 s{sT}, s{sHH}, 768\ns_add_u32 s{sT}, s{sT}, {L_GS+256}\nv_cndmask_b32 v{gAGA}, 0, v13, vcc\nv_lshl_add_u32 v{gSTA}, v15, 2, s{sT}")
    k(f"v_lshlrev_b32 v{gL16}, 4, v0\nv_mov_b32 v{gSY}, {L_SY}\nv_mov_b32 v{gONE}, 1\nv_lshl_add_u32 v10, s{sCOL}, 2, v{gSY}")
    k(f"s_lshl1_add_u32 s{sE0}, s{sRB}, s{sHH}\ns_lshl1_add_u32 s{sXO}, s{sFC}, s{sCS}")
    k(f"s_lshl1_add_u32 s{sWO}, s{sE0}, s{sCS}\ns_lshl1_add_u32 s{sWO}, s{sWO}, s{sXH}\ns_lshr_b32 s{sT}, s{sC}, {1 if cfg.aspread == 4 else 3}\ns_lshl2_add_u32 s{sWO}, s{sWO}, s{sT}\ns_lshl_b32 s{sWO}, s{sWO}, 7\ns_add_u32 s{sWO}, s{sWO}, {ACNT}")
    k(f"s_lshl_b32 s{sXO}, s{sXO}, 13\ns_mul_i32 s{sT}, s{sE0}, 229376\ns_add_u32 s{sXO}, s{sXO}, s{sT}\ns_add_u32 s{sXO}, s{sXO}, {ACT}\ns_add_u32 s{sE3}, s{sXO}, 4096")

def gather_addresses(k, part):
    if part == 1:
        k(f"s_mul_i32 s48, s{sCS}, {L_PCH//132*32}\ns_add_u32 s48, s48, {L_PART//132*32}")
        k(f"v_lshl_add_u32 v50, s{sHH}, 6, v0\ns_add_u32 s{sT}, s48, {255+384}\nv_sub_u32 v2, s{sT}, v50\nv_add_u32 v3, 1, v2\nv_cmp_eq_u32 vcc, 127, v50")
        k(f"v_lshlrev_b32 v50, 3, v50\nv_sub_u32 v50, 1023, v50\nv_subbrev_co_u32 v4, vcc, 0, v2, vcc")
        for e in range(3): k(f"v_lshrrev_b32 v5, 5, v{2+e}\nv_add_lshl_u32 v{sGA+11+e}, v{2+e}, v5, 2")
        k(f"s_sub_u32 s{sT}, s48, 0x4300")
        k(f"v_cvt_f32_i32 v51, v50\nv_add_u32 v50, s{sT}, v50\ns_sub_u32 s{sT2}, s{sT}, 1\nv_mov_b32 v52, s{sT2}\ns_add_u32 s{sT}, s{sT}, 128\ns_mov_b32 s{sT2}, {fbits(128.0)}")
    for n in {0: [], 1: [0, 2], 2: [4, 6, 8, 10]}[part]:
        es = (0, 1) if n < 10 else (0,)
        for e in es:
            k(f"v_subrev_f32 v{2+e}, {fbits(float(n+e))}, v51\nv_max_f32 v{2+e}, s{sT2}, v{2+e}\nv_subrev_u32 v{4+e}, {n+e}, v50\nv_med3_i32 v{4+e}, v{4+e}, v52, s{sT}")
        k(f"v_cvt_pk_bf16_f32 v2, v2, v3")
        for e in es:
            k(f"v_add_u32_sdwa v{4+e}, v{4+e}, v2 dst_sel:DWORD dst_unused:UNUSED_PAD src0_sel:DWORD src1_sel:WORD_{e}")
            k(f"v_lshrrev_b32 v3, 5, v{4+e}\nv_add_lshl_u32 v{sGA+n+e}, v{4+e}, v3, 2")
    if part == 0:
        k(f"v_and_b32 v50, 31, v0\nv_lshrrev_b32 v51, 5, v0")
        k(f"v_lshlrev_b32 v2, 3, v50\nv_lshl_add_u32 v2, v51, 2, v2\nv_sub_u32 v3, 2, v51\nv_lshlrev_b32 v3, v3, v50\nv_lshl_add_u32 v3, v51, 7, v3\nv_add_u32 v3, 256, v3")
        k(f"v_lshl_add_u32 v4, v51, 7, v50\nv_add_u32 v4, 512, v4")
        for e, d in ((0, 0), (1, 1), (2, 3)): k(f"v_lshrrev_b32 v5, 5, v{2+e}\nv_add_u32 v5, v5, v{2+e}\nv_lshl_add_u32 v{sPW+d}, v5, 2, s{sE3}")
        k(f"v_lshl_add_u32 v{sPW+2}, v51, 8, v{sPW+1}")

RS = [0]
JSETS = (([7, 6, 0], [5, 4, 3, 2, 1]), ([7, 6, 1], [5, 4, 3, 2, 0]), ([7, 6, 2], [5, 4, 1, 0, 3]))
vXC, vST, vXW, vODD, vGA, vGW, vSC = 26, 27, 28, 29, 36, 37, 38
def S_addresses(k, part):
    sWV = sCOL
    if part < 3: gather_addresses(k, part)
    if part == 3:
        k(f"s_mul_i32 s{sT}, s{sCS}, 16640\ns_add_u32 s{sT}, s{sT}, {L_KC}\ns_lshl_b32 s{sT2}, s{sHH}, 10\ns_add_u32 s{sT2}, s{sT2}, s{sT}\nv_lshl_add_u32 v{EW}, v0, 4, s{sT2}")
        k(f"v_bfe_u32 v2, v0, 1, 2\nv_mul_u32_u24 v2, 4160, v2\nv_and_b32 v{vODD}, 1, v0\nv_lshl_add_u32 v2, v{vODD}, 4, v2\nv_add_u32 v{TZ}, s{sT}, v2")
        k(f"s_lshr_b32 s{sT}, s{sCP}, 4\ns_lshl_b32 s{sT}, s{sT}, 2\ns_add_u32 s{sT}, s{sT}, {C_XT}\ns_lshl_b32 s{sT}, s{sT}, 7\nv_and_b32 v2, 3, v0\nv_lshl_add_u32 v{vXC}, v2, 7, s{sT}")
        k(f"s_lshl_b32 s{sT}, s{sCP}, 13\ns_add_u32 s{sT}, s{sT}, {XT}\nv_lshl_add_u32 v2, s{sWV}, 6, v0\nv_and_b32 v3, 0xfc, v2\nv_add_u32 v3, v3, v2\nv_lshl_add_u32 v{vXW}, v3, 4, s{sT}\nv_lshlrev_b32 v{vST}, 4, v2\nv_add_u32 v{UW}, {L_U+480}, v{vST}")
        k(f"s_mov_b32 s{sXO}, {STATS}\ns_mov_b32 s{sWO}, {STATS+4096}")
    if part == 4:
        k(f"s_lshl_b32 s{sT}, s{sFC}, 2\ns_add_u32 s{sT}, s{sT}, s{sWV}\ns_lshl_b32 s{sT}, s{sT}, 8\ns_add_u32 s{sT}, s{sT}, {AUGW}\nv_lshl_add_u32 v3, v0, 4, s{sT}")
        k(f"s_lshl_b32 s{sT}, s{sRB}, 2\ns_add_u32 s{sT}, s{sT}, s{sWV}\ns_lshl_b32 s{sT}, s{sT}, 6\ns_add_u32 s{sT}, s{sT}, {STATS}\nv_lshl_add_u32 v4, v{vODD}, 12, s{sT}")
        k(f"v_bfe_u32 v2, v0, 1, 2\nv_lshl_add_u32 v4, v2, 4, v4\nv_cmp_gt_u32 vcc, 16, v0\ns_mul_i32 s{sE0}, s{sWV}, 384\ns_add_u32 s{sE0}, s{sE0}, {L_GS}\nv_cndmask_b32 v{vGA}, v4, v3, vcc")
        k(f"v_min_u32 v2, 23, v0\nv_lshl_add_u32 v{vGW}, v2, 4, s{sE0}")
        w2_offsets(k, sW2D)
    if part == 7:
        k(f"v_bfe_u32 v53, v0, 2, 2\nv_lshlrev_b32 v53, 7, v53\nv_and_b32 v54, 3, v0\nv_lshl_add_u32 v53, v54, 4, v53\nv_lshrrev_b32 v54, 5, v0\nv_lshl_add_u32 v53, v54, 6, v53")
        k(f"v_bfe_u32 v54, v0, 4, 1\nv_lshl_add_u32 v54, v54, 9, v53")
        k(f"s_lshl_b32 s{sO1}, s{sCP}, 1\ns_add_u32 s{sO1}, s{sO1}, s{sCS}")
        k(f"s_lshr_b32 s{sT}, s{sO1}, 6\ns_lshl_b32 s{sT}, s{sT}, 1\ns_add_u32 s{sT}, s{sT}, s{sHH}\ns_lshl_b32 s{sT}, s{sT}, 2\ns_bfe_u32 s{sT2}, s{sO1}, 0x20004")
        k(f"s_add_u32 s{sT}, s{sT}, s{sT2}\ns_add_u32 s{sT}, s{sT}, {C_ST}\ns_lshl_b32 s{sO2}, s{sT}, 7")
        k(f"s_lshl_b32 s{sO1}, s{sO1}, 12\ns_add_u32 s{sO1}, s{sO1}, {ST}")
    if part == 6:
        srd(k, sW2, pW2); srd_const(k, sW2, 1605632); srd(k, sOUT, pOUT); srd_const(k, sOUT, 1835008)
        w2_bases(k, None)
    if part == 5:
        k(f"s_mul_i32 s{sT}, s{sCS}, 16640\ns_add_u32 s{sT}, s{sT}, {L_KC+24}" + (f"\ns_lshl_b32 s{sT2}, s{sHH}, 8\ns_sub_u32 s{sT}, s{sT}, s{sT2}" if RS[0] else ""))
        k(f"v_and_b32 v2, 3, v0\nv_sub_u32 v2, 3, v2\nv_mul_u32_u24 v2, 4160, v2\nv_bfe_u32 v3, v0, 2, 2\nv_lshlrev_b32 v3, 3, v3\nv_sub_u32 v2, v2, v3")
        k(f"v_lshrrev_b32 v3, 4, v0\nv_lshl_add_u32 v2, v3, 4, v2\nv_add_u32 v{CA}, s{sT}, v2")
        k(f"s_mul_i32 s{sT}, s{sCS}, 4576\ns_add_u32 s{sT}, s{sT}, {L_U+256*RS[0]}" + (f"\ns_sub_u32 s{sT}, s{sT}, s{sT2}" if RS[0] else ""))
        k(f"v_and_b32 v2, 15, v0\nv_lshlrev_b32 v2, 5, v2\nv_lshl_add_u32 v2, v3, 4, v2\nv_add_u32 v{CBA}, s{sT}, v2")
        k(f"v_lshl_add_u32 v{vSC}, s{sWV}, 2, v{VSY}")

def gen_G(k, cfg):
    ACC, W2R, RING = 16, 80, 192
    FS = [100, 116, 132]
    W2D, W2A, L16, XA, WA, AUG, STT = gW2D, gW2A, gL16, gXA, gWA, gAUG, gSTT
    RC, RL, T, P = 240, 244, 248, 208
    assert cfg.depth <= 6
    k("s_setprio 2")
    stamp(k, cfg, 1, 2); cstamp(k, cfg, 10)
    def w2read(step, dst_step):
        b = step // 2; loc = LOC[b % 7]*16384 + (step & 1)*2048; hi = 2 if loc >= 65536 else 0; loc -= hi*32768
        out = []
        for d2 in (0, 1):
            for rd in (0, 1):
                out.append(f"ds_read_b64_tr_b16 {V(W2R + dst_step*8 + d2*4 + rd*2, 2)}, v{W2A+hi+d2} offset:{loc + rd*1024}")
        return out
    def reads(i):
        c, s, F = i // 4, i % 4, FS[i % 3]; sl = c % 3
        wa, wo = (WA, L_WS[sl] - L_WS[0]) if sl < 2 else (WA + 2, 0)
        w = lambda ft: [f"ds_read_b64_tr_b16 {V(F+8+4*ft+2*rd,2)}, v{wa+ft} offset:{wo + s*4096 + rd*1024}" for rd in (0, 1)]
        x = [f"ds_read_b128 {V(F+4*tt,4)}, v{XA+s} offset:{L_XS[sl] - L_XS[2] + tt*4096}" for tt in (0, 1)]
        return w(0) + x + w(1)
    dq = []
    cap = Cap()
    for i in (0, 1):
        for r in reads(i): k(r, f"f{i}")
    for i in range(28):
        F = FS[i % 3]
        rd = reads(i+2) if i + 2 < 28 else []
        edge = rd and (i + 2) % 4 == 0
        gaps = [[], rd[:3], rd[3:], []] if edge else [rd[:2], rd[2:4], rd[4:], []]
        k.wait(lg=f"f{i}")
        for m in range(4):
            ft, tt = m >> 1, m & 1; a = ACC + 16*m
            k(f"v_mfma_f32_32x32x16_bf16 {V(a,16)}, {V(F+8+4*ft,4)}, {V(F+4*tt,4)}, {'0' if i == 0 else V(a,16)}")
            if edge and m == 1:
                c = (i+2)//4
                if c == 1: stamp(k, cfg, 9, 7)
                k.wait(vm={1: "c1", cfg.xtbar: "*"}.get(c), lg="*")
                if c == 1: stamp(k, cfg, 10, 7)
                if not cfg.x_nobar: k("s_barrier")
                stamp(k, cfg, 1 + c, 2)
                if c == 1: stamp(k, cfg, 11, 7)
                dq += [x for b in (2*c-10, 2*c-9) if int(cfg.sblk) <= b < cfg.gblk and not cfg.sall for x in w2dma(ORD[b], W2D)]
            if dq and i >= cfg.w2from and m in (3, 0 if (edge or i >= 26) else 1): g, t = dq.pop(0); k(g, t)
            for r in gaps[m]: k(r, f"f{i+2}")
            if m == 3:
                for _ in range(4):
                    if cap.l: k(cap.l.pop(0))
                assert i < 18 or not cap.l
            if i == 26 and m == 1:
                k.wait(lg="*"); k("s_barrier")
                if cfg.sblk and not cfg.s45: dq += w2dma(ORD[4], W2D)
                for tt in (0, 1): k(f"ds_read_b32 v{STT+tt}, v{gSTA} offset:{384*tt}", "st")
            if i == 26 and m == 2:
                for ft in (0, 1): k(f"ds_read_b64 {V(AUG+4+2*ft,2)}, v{gAGA} offset:{384*ft}", "ag")
            if i == 27 and m == 1: k.wait(lg="*")
            if i == 27 and m in (1, 2):
                tt = m - 1
                k(f"s_mov_b32 s{sT}, 0x01000100\nv_and_b32 v11, 0xffff0000, v{STT+tt}\nv_rcp_f32 v{RC+2*tt}, v11")
                k(f"v_perm_b32 v{AUG+2*tt}, v{STT+tt}, v{STT+tt}, s{sT}\nv_lshrrev_b32 v{AUG+2*tt+1}, 16, v{STT+tt}")
            if i == 27 and m == 3:
                for tt in (0, 1): k(f"v_mul_f32 v{RC+2*tt+1}, -2.0, v{RC+2*tt}\nv_mul_f32 v{RL+tt}, {fbits(LOG2E)}, v{RC+2*tt}")
    for m in range(4):
        ft, tt = m >> 1, m & 1; a = ACC + 16*m
        k(f"v_mfma_f32_32x32x8_bf16 {V(a,16)}, {V(AUG+4+2*ft,2)}, {V(AUG+2*tt,2)}, {V(a,16)}")
        if dq: g, t = dq.pop(0); k(g, t)
    assert not dq
    stamp(k, cfg, 4); stamp(k, cfg, 8, 2); cstamp(k, cfg, 11)
    stq = []
    for g in range(8):
        if (cfg.mbar == 2 and 2*g == cfg.b8at) or (g and 2*g == cfg.pbar2): k("s_barrier")
        stamp(k, cfg, 1 + g, 6)
        m, sp = g >> 1, g & 1; ft, tt = m >> 1, m & 1; a = ACC + 16*m + 8*sp; p = P + 4*(g & 1)
        for i in range(4): k(f"v_pk_mul_f32 {V(T+2*i,2)}, {V(a+2*i,2)}, {V(RL,2)} op_sel:[0,{tt}] op_sel_hi:[1,{tt}]")
        for i in range(8): k(f"v_exp_f32 v{T+i}, v{T+i}")
        for i in range(4): k(f"v_pk_add_f32 {V(T+2*i,2)}, {V(T+2*i,2)}, 1.0 op_sel_hi:[1,0]")
        for i in range(4): k(f"v_pk_fma_f32 {V(T+2*i,2)}, {V(T+2*i,2)}, {V(T+2*i,2)}, 1.0 op_sel_hi:[1,1,0]")
        if (cfg.mbar == 2 and 2*g + 1 == cfg.b8at) or 2*g + 1 == cfg.pbar2: k("s_barrier")
        for i in range(8): k(f"v_rcp_f32 v{T+i}, v{T+i}")
        for i in range(4): k(f"v_pk_fma_f32 {V(T+2*i,2)}, {V(T+2*i,2)}, {V(RC+2*tt,2)}, {V(RC+2*tt,2)} op_sel:[0,1,0] op_sel_hi:[1,1,0]")
        for i in range(4): k(f"v_pk_mul_f32 {V(T+2*i,2)}, {V(T+2*i,2)}, {V(a+2*i,2)}")
        if g == 7 and cfg.mbar: k("s_barrier")
        if g == 7 and not cfg.mbar:
            lds_signal(k, 10, SY_M, gONE)
            if cfg.sblk: k(f"ds_read_b32 v11, v{gSY} offset:{SY_U}", "w2r1")
        p = RING + 4*(2*(2*ft + sp) + tt)
        for i in range(4): k(f"v_cvt_pk_bf16_f32 v{p+i}, v{T+2*i}, v{T+2*i+1}")
        stq.append(f"buffer_store_dwordx4 {V(p,4)}, v{L16}, {S(sWS,4)}, s{sXO if ft == 0 else sE3} offen offset:{sp*2048 + tt*1024} sc1")
        if g in cfg.stat:
            while stq: k(stq.pop(0), "act")
    stamp(k, cfg, 5); stamp(k, cfg, 9, 6)
    k("s_setprio 3")
    k.wait(vm=f"w2_{ORD[3 if cfg.s45 else 4]}" if cfg.sblk else "w2_3")
    def rdblk(b):
        for s in (0, 1):
            for r in w2read(2*b+s, 2*b+s): k(r, f"w2r{b}")
    sSTO = sE0
    k(f"s_lshl_b32 s{sSTO}, s{sRB}, 1\ns_and_b32 s{sT}, s{sXCD}, 1\ns_add_u32 s{sSTO}, s{sSTO}, s{sT}")
    k(f"s_lshl_b32 s{sE1}, s{sSTO}, 2\ns_add_u32 s{sE1}, s{sE1}, s3\ns_lshl_b32 s{sE1}, s{sE1}, 9\ns_add_u32 s{sE1}, s{sE1}, {ACNT}\ns_add_u32 s48, s{pWS}, s{sE1}\ns_addc_u32 s49, s{pWS+1}, 0")
    apoll = "\n".join(f"s_load_dword s{52+i}, s[48:49], {128*i} glc" for i in range(cfg.aspread))
    asum = "".join(f"s_add_u32 s52, s52, s{52+i}\n" for i in range(1, cfg.aspread))
    blk = lambda b: [(r, f"w2r{b}") for s in (0, 1) for r in w2read(2*b+s, 2*b+s)]
    assert cfg.gblk == 4
    order = [4, 5, 7, 6, 8, 9, 10, 11, 12, 13]
    rq = blk(0) + blk(1) + blk(2) + blk(3)
    if cfg.sblk: order = [6, 7, 8, 9, 10, 11, 12, 13]; rq += blk(4) + blk(5)
    for n, b in enumerate(order):
        if b == 7 and not cfg.sblk: k(f"ds_read_b32 v11, v{gSY} offset:{SY_U}", "w2r1")
        if b == 6 and not cfg.mbar:
            k.wait(lg="w2r1")
            o = k.lab("wl"); sl = list(k.lg)
            k(f"v_readfirstlane_b32 s{sT}, v11\ns_cmp_ge_u32 s{sT}, 4\ns_cbranch_scc1 {o}")
            lds_spin(k, gSY, SY_U, 4, 11, sT, sSP)
            k(f"{o}:"); k.lg = sl
        if b in (9, 10, 11) and (b == 11 or not cfg.sblk):
            k.wait(vm=f"w2_{b-5}"); rq += blk(b-5)
        if b == 12: k(f"ds_read_b32 v11, v{gSY}"); k.wait(lg="w2r6")
        if b >= 7: k.wait(lg=f"w2r{b-7}")
        for g, t in w2dma(b, W2D):
            k(g, t)
            for _ in range(4 if (cfg.sblk and n == 0) else 2):
                if rq: k(*rq.pop(0))
        if n == cfg.flagat:
            k.wait(vm="act")
            s_inc(k, pWS, f"s{sWO}", sT2)
            stamp(k, cfg, 6)
        if n == cfg.pollat: k(apoll)
    assert not rq
    assert order[cfg.pollat] >= 12
    k(f"s_and_b32 s{sT}, s3, 1\ns_mul_i32 s{sT}, s{sT}, 14\ns_add_u32 s{sT}, s{sT}, s{sCS}\ns_lshl_b32 s{sT}, s{sT}, 13\ns_mul_i32 s{sA2}, s{sSTO}, 229376\ns_add_u32 s{sA2}, s{sA2}, s{sT}\ns_add_u32 s{sA2}, s{sA2}, {ACT}")
    piece_bases(k, 16384)
    stamp(k, cfg, 7)
    l = k.lab("ap"); o = k.lab("ar")
    k(f"s_mov_b32 s{sSP}, 0\n{l}:")
    k.wait(lg="*")
    k(f"{asum}s_add_u32 s{sSP}, s{sSP}, 1\ns_cmp_ge_u32 s52, 7\ns_cbranch_scc1 {o}\ns_cmp_gt_u32 s{sSP}, {SPIN}\ns_cbranch_scc1 {o}")
    if cfg.actsleep: k(f"s_sleep {cfg.actsleep}")
    k(f"{apoll}\ns_branch {l}\n{o}:")
    stamp(k, cfg, 8)
    k(f"s_setprio {cfg.g2prio}")
    D = 2*cfg.depth; n0 = 28 - cfg.tailn
    seq = [(s, tt) for s in range(n0) for tt in (0, 1)] + [(s, tt) for tt in (0, 1) for s in range(n0, 28)]
    cur = [None]
    def actload(j):
        s, tt = seq[j]; out = []
        if cur[0] != s//2:
            cur[0] = s//2
            out.append(piece(s//4, 16384, (s & 2)*2048, sT) + (f"\ns_and_b32 s{sT}, s{sT}, 0xfffff" if cfg.x_acthit else ""))
        out.append(f"buffer_load_dwordx4 {V(RING + (j % D)*4, 4)}, v{L16}, {S(sW2 if cfg.x_acthit else sWS,4)}, s{sT} offen offset:{(s & 1)*2048 + tt*1024} {cfg.actmod}")
        return "\n".join(out)
    stamp(k, cfg, 1, 5)
    o = k.lab("own")
    if cfg.own: k(f"s_xor_b32 s{sT}, s3, s{sXCD}\ns_bitcmp0_b32 s{sT}, 0\ns_cbranch_scc1 {o}")
    k(f"s_setprio {cfg.nprio}")
    for j in range(D):
        if j == 8: k(f"{o}:")
        k(actload(j), f"a{j}")
    stamp(k, cfg, 2, 5)
    DA = [1, 2, 3, 4, 10, 11, 14, 15]
    k(f"v_and_b32 v14, 15, v0\nv_lshrrev_b32 v15, 5, v0\nv_xor_b32 v15, v15, v14\nv_lshlrev_b32 v15, 4, v15\nv_lshl_add_u32 v15, v14, 8, v15")
    k(f"v_bfe_u32 v14, v0, 4, 1\nv_lshl_add_u32 v15, v14, 14, v15\nv_add_u32 v{DA[0]}, s{sM}, v15")
    for i in range(1, 8): k(f"v_xor_b32 v{DA[i]}, {32*i}, v{DA[0]}")
    dump = lambda tt, d2s: [f"ds_write_b128 v{DA[4*d2+jj]}, {V(ACC+16*(2*d2+tt)+4*jj,4)} offset:{tt*32768}" for d2 in d2s for jj in range(4)]
    jlast0 = max(j for j in range(56) if seq[j][1] == 0)
    assert 14 + cfg.rdlag < n0 and cfg.tailq <= min(D, cfg.tailn)
    q0 = 56 - cfg.tailq
    ops = [(j, d2) for j in range(q0) for d2 in (0, 1)] + [(j, d2) for d2 in (0, 1) for j in range(q0, 56)]
    d0 = dump(0, (0, 1)); d1 = dump(1, (0, 1)); i0 = ops.index((jlast0, 1)); i1 = ops.index((55, 0)); sig = [False]
    for i, (j, d2) in enumerate(ops):
        s, tt = seq[j]
        if d2 == 0:
            k.wait(vm=f"a{j}", lg=f"r{s}" if s >= 14 else None)
            if j % 8 == 0: stamp(k, cfg, 3 + j//8, 5)
        w = W2R + (s % 14)*8; x = RING + (j % D)*4; a = ACC + 16*(2*d2 + tt)
        rs = s - cfg.rdlag
        k(f"v_mfma_f32_32x32x16_bf16 {V(a,16)}, {V(w+4*d2,4)}, {V(x,4)}, {'0' if s == 0 else V(a,16)}")
        if d2 == 0 and j >= 1 and j - 1 + D < 56: k(actload(j - 1 + D), f"a{j-1+D}")
        if d2 == 1 and 1 <= rs <= 14: k("\n".join(w2read(rs + 13, rs - 1)[2*tt:2*tt+2]), f"r{rs+13}")
        if i >= i0 + 2 and d0 and ((i - i0) % 2 == 0 or len(d0) >= len(ops) - i): k(d0.pop(0))
        elif not d0 and not sig[0]: lds_signal(k, gSY, SY_GS, gONE); sig[0] = True
        elif cfg.tailq and sig[0] and i >= i1 + 2 and len(d1) > 4 and (i - i1) % 2 == 0: k(d1.pop(0))
    while d0: k(d0.pop(0))
    if not sig[0]: lds_signal(k, gSY, SY_GS, gONE)
    stamp(k, cfg, 9); stamp(k, cfg, 10, 5)
    for x in d1: k(x)
    k.wait(lg="*")
    stamp(k, cfg, 11, 5)
    k("s_barrier")
    stamp(k, cfg, 10)
    prof_dump(k, cfg)
    k("s_endpgm")

class Pacer:
    def __init__(self, k, pace): self.k, self.pace, self.q, self.n = k, pace, [], 0
    def __call__(self, text, tag=None):
        lines = text.split("\n")
        for i, ln in enumerate(lines):
            self.k(ln, tag)
            if i + 1 < len(lines) and lines[i+1].startswith(("s_cselect", "s_addc", "s_cbranch")): continue
            self.n += 11 if "ds_write_b128" in ln else 5 if "ds_write" in ln else 2 if ("ds_read" in ln or "v_rcp" in ln) else 1
            if self.q and self.n >= self.pace: self.pop()
    def pop(self):
        g, t = self.q.pop(0); self.k(g, t); self.n = 0
    def flush(self):
        while self.q: self.pop()

def gen_S(k, cfg, vm0):
    k.reset(); k.vm = list(k.vmS)
    k("L_S:")
    sWV, GA = sCOL, sGA
    p = Pacer(k, cfg.pace)
    def bar(c, lg="*"):
        p.flush()
        if c == 1: stamp(k, cfg, 9, 7)
        k.wait(vm=f"c{c}", lg=lg)
        if c == 1: stamp(k, cfg, 10, 7)
        stamp(k, cfg, 1+c, 2)
        if not cfg.x_nobar: k("s_barrier")
    G0, XV, CP = 160, 192, 208
    SV, XW, CN, MM, RR, XF, GS = 100, 108, 116, 120, 128, 136, 144
    def copies(x, off, sgs):
        for sg in sgs:
            c = CP + 4*sg
            for jj in range(4): p(f"v_cvt_pk_bf16_f32 v{c+jj}, v{x[sg+2*jj]}, v{x[sg+2*jj+1]}")
            p(f"ds_write_b128 v{EW}, {V(c,4)} offset:{sg*4160 + off}")
    k("s_setprio 0")
    k(CLRL, "clr")
    w2t = f"s_lshl2_add_u32 s{sT}, s{sCP}, s{sCOL}\ns_mul_i32 s{sT}, s{sT}, 1792\nv_mul_u32_u24 v62, 28, v0\nbuffer_load_dword v62, v62, {S(sW2,4)}, s{sT} offen"
    if cfg.w2touch == 1: assert 6 in cfg.early; k(w2t)
    held = []
    late = lambda part: S_addresses(p, part) if part not in cfg.early else None
    def ring(c):
        ch = chunk(cfg, c); p.q = held + ch[:cfg.r2cut]; held[:] = ch[cfg.r2cut:]; p.pop()
    stl = f"buffer_load_dwordx4 {V(SV,4)}, v{vST}, {S(sWS,4)}, s{sXO} offen sc1\nbuffer_load_dwordx4 {V(SV+4,4)}, v{vST}, {S(sWS,4)}, s{sWO} offen sc1"
    xcl = f"buffer_load_dword v{CN}, v{vXC}, {S(sWS,4)}, 0 offen sc1"
    gsl = f"s_mov_b32 m0, s{sE0}\ns_mov_b64 exec, 0xffffff\nbuffer_load_dwordx4 v{vGA}, {S(sWS,4)}, 0 offen sc1 lds\ns_mov_b64 exec, -1"
    pw = [f"ds_write2_b32 v{sPW+a}, v{KA+r}, v{KA+r+1} offset0:{o0} offset1:{o1}" for a, r, o0, o1 in
          ((0, 0, 0, 1), (0, 2, 2, 3), (1, 4, 0, 1), (2, 6, 2, 3), (3, 8, 0, 33), (3, 10, 66, 99))]
    ring(2)
    p(f"v_lshrrev_b32 v50, 1, v0\nv_and_b32 v52, 1, v0\nv_lshl_add_u32 v52, s{sWV}, 1, v52\nv_bfe_u32 v51, v0, 2, 3\nv_xor_b32 v51, v51, v52\nv_lshlrev_b32 v51, 4, v51\nv_lshl_add_u32 v51, v50, 7, v51")
    p(f"s_and_b32 s{sT}, s{sXCD}, 1\ns_lshl_b32 s{sT}, s{sT}, 13\ns_add_u32 s{sT}, s{sT}, {L_GB+L_XS[0]}\nv_add_u32 v51, s{sT}, v51")
    p(f"ds_read_b128 v[248:251], v51\nds_read_b128 v[252:255], v51 offset:4096")
    late(6); late(3)
    if cfg.w2touch == 2: p.flush(); k(w2t)
    bar(1)
    def xtflag():
        v_poll(k, CLRL, 49, 4, sSP, 2, first=False, tag="clr")
        o = k.lab("xf")
        k(f"s_lshl_b32 s{sT}, s{sG32}, 2\ns_add_u32 s{sT}, s{sT}, s{sR}\ns_add_u32 s{sT}, s{sT}, {C_XT}\ns_lshl_b32 s{sT}, s{sT}, 7\ns_cmp_lg_u32 s{sCOL}, 0\ns_cbranch_scc1 {o}")
        s_inc(k, pWS, f"s{sT}", sE2)
        k(f"{o}:")
    ring(3)
    if cfg.xtbar == 1: p.pop(); xtflag(); p.pop(); p.pop()
    late(0); late(5)
    for r in range(3): p(f"ds_read_b128 {V(G0+4*r,4)}, v{PA} offset:{1024*r}", "raw")
    bar(2, None)
    if cfg.xtbar == 2: xtflag()
    ring(4)
    late(1)
    bar(3, None)
    ring(5)
    late(2)
    bar(4, None)
    stamp(k, cfg, 4)
    if cfg.r2cut == 8: k(xcl, "xc")
    ring(6)
    for _ in range(8 - cfg.r2cut - 1): p.pop()
    if cfg.r2cut < 8: k(xcl, "xc")
    k.wait(lg="*")
    for i in range(12): p(f"v_add_f32 v{KA+i}, v{KA+i}, v{G0+i}")
    late(4)
    bar(5, None)
    p.q = list(held); p.flush()
    v_poll(k, xcl, CN, 4, sSP, 2, first=False, tag="xc")
    k(stl, "st")
    for e in (0, 1): k(f"buffer_load_dwordx4 {V(XW+4*e,4)}, v{vXW}, {S(sWS,4)}, 0 offen offset:{64*e} sc1", "xw")
    k(gsl, "gs")
    if cfg.sall:
        n1, n2 = cfg.sall
        assert n1 <= 8 and n2 % 4 == 0 and n2 <= 16
        wq = [x for b in range(6) for x in w2dma(ORD[b], sW2D)]
        p.q = wq[:n1]
        bar(6, None)
        p.q = wq[n1:n2]; p.pop()
        late(7); p.flush()
    else:
        p.q = w2dma(ORD[0], sW2D); p.pop()
        late(7)
        bar(6, None)
    stamp(k, cfg, 5)
    k.wait(vm="gs")
    k(f"s_mov_b32 s{sSP}, 0")
    l = k.lab("xp"); o = k.lab("xpo")
    k(f"{l}:")
    k(f"ds_read_b128 {V(GS,4)}, v{vGW}")
    k(f"v_min_u32 v{CN}, v{SV}, v{SV+1}\ns_add_u32 s{sSP}, s{sSP}, 1")
    for i in range(1, 4): k(f"v_min3_u32 v{CN}, v{CN}, v{SV+2*i}, v{SV+2*i+1}")
    for i in range(8): k(f"v_and_b32 v{RR+i}, 0xffff0000, v{SV+i}")
    k.wait(lg="*")
    k(f"v_min3_u32 v{CN}, v{CN}, v{GS+1}, v{GS+3}")
    k(f"v_cmp_eq_u32 vcc, 0, v{CN}\ns_cmp_gt_u32 s{sSP}, {SPIN}\ns_cbranch_scc1 {o}\ns_cbranch_vccz {o}")
    sv = list(k.vm); k(stl); k(gsl); k("s_waitcnt vmcnt(0)"); k.vm = sv
    k(f"s_branch {l}")
    k(f"{o}:")
    stamp(k, cfg, 8, 2)
    k("s_barrier")
    stamp(k, cfg, 1, 6)
    if cfg.sall: p.q = wq[n2:]; p.pace = cfg.pace2; p.pop()
    for i in range(8): p(f"v_rcp_f32 v{RR+i}, v{RR+i}\nv_lshlrev_b32 v{MM+i}, 16, v{SV+i}")
    for i in range(8): p(f"v_mul_f32 v{MM+i}, v{MM+i}, v{RR+i}")
    for ch in (0, 1):
        if ch: k("s_setprio 3")
        for i in range(4): p(f"v_lshlrev_b32 v{XF+2*i}, 16, v{XW+4*ch+i}\nv_and_b32 v{XF+2*i+1}, 0xffff0000, v{XW+4*ch+i}")
        for i in range(8): p(f"v_fma_f32 v{XF+i}, v{XF+i}, v{RR+i}, -v{MM+i}")
        for i in range(4): p(f"v_cvt_pk_bf16_f32 v{XW+4*ch+i}, v{XF+2*i}, v{XF+2*i+1}")
    stamp(k, cfg, 9, 2); stamp(k, cfg, 2, 6)
    k(f"v_lshl_add_u32 v55, s{sCS}, 2, v{VSY}")
    p.flush()
    if cfg.sblk and not cfg.sall:
        for g, t in (w2dma(ORD[4], sW2D) if cfg.s45 else []) + w2dma(ORD[5], sW2D): k(g, t)
    stamp(k, cfg, 3, 6)
    k("\n".join(pw))
    if not cfg.pbar2: lds_signal(k, 55, SY_PAIR, VONE)
    stamp(k, cfg, 4, 6)
    stamp(k, cfg, 5, 6)
    if cfg.pbar2: assert cfg.split == 'J'; k.wait(lg="*"); k("s_barrier")
    else: lds_spin(k, 55, SY_PAIR, 2, 50, sT, sSP)
    stamp(k, cfg, 6, 6)
    for i in list(range(11, 14)) + list(range(11)): k(f"ds_read2st64_b32 {V(G0+2*i,2)}, v{GA+i} offset1:13", "ga" if i > 10 else "gb")
    for ch in (0, 1): k(f"ds_write_b128 v{UW}, {V(XW+4*ch,4)} offset:{4576*ch}")
    k(f"ds_write_b128 v{TZ}, {V(ZERO,4)} offset:4096")
    for ps, x in enumerate(([XV+12]*3 + [XV+14] + [XV+11]*6 + [XV+13], [XV+i for i in range(11)])):
        k.wait(lg="gb" if ps else "ga")
        stamp(k, cfg, 7 + ps, 6)
        for i in (range(11) if ps else range(11, 14)): k(f"v_add_f32 v{XV+i}, v{G0+2*i}, v{G0+2*i+1}")
        if ps == 0: k(f"v_cmp_eq_u32 vcc, 1, v{vODD}\nv_cndmask_b32 v{XV+14}, v{XV+12}, v{XV+11}, vcc")
        for sg in range(4):
            for jj in range(4): k(f"v_cvt_pk_bf16_f32 v{CP+16*ps+4*sg+jj}, v{x[sg+2*jj]}, v{x[sg+2*jj+1]}")
            k(f"ds_write_b128 v{EW}, {V(CP+16*ps+4*sg,4)} offset:{sg*4160 + ps*2048}")
    stamp(k, cfg, 9, 6)
    if cfg.mbar:
        k.wait(vm="*", lg="*"); k("s_barrier")
    else:
        k.wait(vm="*")
        lds_signal(k, VSY, SY_U, VONE)
        lds_spin(k, VSY, SY_U, 4, 50, sT, sSP, cfg.usleep)
    stamp(k, cfg, 10, 6)
    Y, FS, YS = 68, [100, 164], 228
    def a_read(r, F, a): return [f"ds_read_b64 {V(F+4*a+2*e,2)}, v{CA} offset:{(7-a)*512 + (7-r)*64 + 8*e}" for e in (0, 1)]
    def b_read(r, F, c): return [f"ds_read_b128 {V(F+32+4*c,4)}, v{CBA} offset:{c*512 + (7-r)*64 - 256*RS[0]}"]
    def first(ms):
        seen = []
        for J, a in ms:
            for t in (("a", a), ("b", J - a)):
                if t not in seen: seen.append(t)
        rd = [(x, f"z{t[0]}{t[1]}") for t in seen for x in (a_read if t[0] == "a" else b_read)(0, FS[0], t[1])]
        for x in rd[:cfg.cvpre]: k(*x)
        stamp(k, cfg, 10, 2)
        if cfg.mbar == 2: k("s_barrier")
        if not cfg.mbar: lds_spin(k, vSC, SY_M, 1, 50, sT, sSP, cfg.usleep)
        k(f"s_setprio {cfg.cvprio}")
        stamp(k, cfg, 6); stamp(k, cfg, 11, 2); stamp(k, cfg, 11, 6)
        return rd[cfg.cvpre:]
    if cfg.split == 'r':
        ms = [(a + c, a) for c in range(8) for a in range(8 - c)]
        cfg.cvpre = 24; first(ms); k.wait(lg='*')
        for r in range(4):
            F = FS[r & 1]; N = FS[(r+1) & 1]; nxt = []
            if r < 3:
                for i in range(8): nxt += a_read(r+1, N, i) + b_read(r+1, N, i)
            if r > 0: k.wait(lg="*")
            if r == 3:
                lds_signal(k, VSY, SY_RD, VONE)
                nxt = f"s_lshl_b32 s{sT}, s{sWV}, 12\ns_add_u32 s{sT}, s{sT}, 16384\nv_lshl_add_u32 v51, v0, 4, s{sT}\nv_xor_b32 v52, 0x1000, v51\ns_lshl_b32 s{sT}, s{sHH}, 11\ns_add_u32 s{sO1}, s{sO1}, s{sT}".split("\n")
            n = 0
            for i, (J, a) in enumerate(ms):
                k(f"v_mfma_f32_16x16x32_bf16 {V(Y+4*J,4)}, {V(F+4*a,4)}, {V(F+32+4*(J-a),4)}, {'0' if (r == 0 and J == a) else V(Y+4*J,4)}")
                if n < len(nxt): k(nxt[n]); n += 1
                if r == 3 and i == 28: k(f"ds_read_b32 v50, v{VSY} offset:{SY_RD}")
        stamp(k, cfg, 7); stamp(k, cfg, 1, 5)
        k("s_setprio 3")
        o = k.lab("rd")
        k.wait(lg="*")
        k(f"v_readfirstlane_b32 s{sT}, v50\ns_cmp_ge_u32 s{sT}, 4\ns_cbranch_scc1 {o}")
        lds_spin(k, VSY, SY_RD, 4, 50, sT, sSP)
        k(f"{o}:")
        l1 = k.lab("h1"); l2 = k.lab("hj"); EX = 100
        k(f"s_cmp_eq_u32 s{sHH}, 1\ns_cbranch_scc1 {l1}\ns_nop 3")
        for i in range(4): k(f"ds_write_b128 v51, {V(Y+16+4*i,4)} offset:{1024*i}")
        lds_signal(k, 55, SY_PAIR, VONE)
        k(f"s_branch {l2}")
        k(f"{l1}:")
        for i in range(4): k(f"ds_write_b128 v51, {V(Y+4*i,4)} offset:{1024*i}")
        lds_signal(k, 55, SY_PAIR, VONE)
        for i in range(16): k(f"v_mov_b32 v{Y+i}, v{Y+16+i}")
        k(f"{l2}:")
        lds_spin(k, 55, SY_PAIR, 4, 50, sT, sSP)
        for i in range(4): k(f"ds_read_b128 {V(EX+4*i,4)}, v52 offset:{1024*i}", f"e{i}")
        for g in (0, 1):
            for i in (2*g, 2*g+1):
                k.wait(lg=f"e{i}")
                for e in range(4): k(f"v_add_f32 v{Y+4*i+e}, v{Y+4*i+e}, v{EX+4*i+e}")
                for e in (0, 1): k(f"v_cvt_pk_bf16_f32 v{YS+2*i+e}, v{Y+4*i+2*e}, v{Y+4*i+2*e+1}")
            for e in (0, 1): k(f"v_permlane16_swap_b32 v{YS+4*g+e}, v{YS+4*g+2+e}")
            k(f"buffer_store_dwordx4 {V(YS+4*g,4)}, v54, {S(sWS,4)}, s{sO1} offen offset:{1024*g} sc1", "sts")
    else:
        lB = k.lab("cvB"); lJ = k.lab("cvJ")
        k(f"s_cmp_eq_u32 s{sHH}, 1\ns_cbranch_scc1 {lB}")
        for Js in JSETS[cfg.jbal]:
            top = max(Js)
            ms = [(J, a) for a in range(top+1) for J in Js if a <= J]
            rest = first(ms)
            for r in range(8):
                F = FS[r & 1]; N = FS[(r+1) & 1]; nxt = list(rest); rest = []
                if r < 7:
                    for i in range(top+1): nxt += [(x, None) for x in a_read(r+1, N, i) + b_read(r+1, N, top-i)]
                if r > 0: k.wait(lg="*")
                if r == 7: lds_signal(k, VSY, SY_RD, VONE)
                n = 0; slots = len(ms) - cfg.cvfree
                for i, (J, a) in enumerate(ms):
                    if r == 0:
                        for t in (f"za{a}", f"zb{J-a}"):
                            assert t not in [y[1] for y in nxt[n:]]
                            k.wait(lg=t)
                    k(f"v_mfma_f32_16x16x32_bf16 {V(Y+4*J,4)}, {V(F+4*a,4)}, {V(F+32+4*(J-a),4)}, {'0' if (r == 0 and a == 0) else V(Y+4*J,4)}")
                    while n < len(nxt) and n*slots < (i+1)*len(nxt): k(*nxt[n]); n += 1
                assert n == len(nxt)
            stamp(k, cfg, 7); stamp(k, cfg, 1, 5)
            groups = [(Js[-1], Js[-1])] + [(Js[i+1], Js[i]) for i in range(len(Js)-3, -1, -2)]
            for g, (lo, hi) in enumerate(groups):
                y = YS + 4*g
                for q, J in enumerate((lo, hi)):
                    for e in (0, 1): k(f"v_cvt_pk_bf16_f32 v{y+2*q+e}, v{Y+4*J+2*e}, v{Y+4*J+2*e+1}")
                for e in (0, 1): k(f"v_permlane16_swap_b32 v{y+e}, v{y+2+e}")
                k(f"buffer_store_dwordx4 {V(y,4)}, v{53 if lo == hi else 54}, {S(sWS,4)}, s{sO1} offen offset:{512*lo} sc1", "sts")
            if top == 7:
                k(f"s_branch {lJ}"); k(f"{lB}:"); k.reset()
        k(f"{lJ}:")
    if cfg.x_nos2:
        k("s_barrier"); prof_dump(k, cfg, True); k("s_endpgm"); return
    XE, OA, RA, SA, XU, SU = 248, 64, 68, 70, 120, 136
    k(f"s_lshl1_add_u32 s{sRB}, s{sRB}, s{sXH}\ns_mov_b32 s{sC}, s{sKAP}")
    k(f"v_lshrrev_b32 v50, 1, v0\nv_mul_u32_u24 v52, 896, v50\nv_lshl_add_u32 v{OA}, v{vODD}, 4, v52")
    k(f"s_mul_i32 s{sG32}, s{sRB}, {64*896}\ns_lshl2_add_u32 s{sT}, s{sC}, s{sWV}\ns_lshl_b32 s{sT}, s{sT}, 5\ns_add_u32 s{sG32}, s{sG32}, s{sT}\ns_add_u32 s{sKAP}, s{sG32}, {32*896}")
    k(f"v_lshl_add_u32 v51, s{sWV}, 1, v{vODD}\nv_and_b32 v55, 15, v50\nv_lshlrev_b32 v52, 1, v51\nv_xor_b32 v52, v52, v55\nv_lshlrev_b32 v52, 4, v52\nv_lshl_add_u32 v52, v55, 8, v52")
    k(f"v_lshrrev_b32 v55, 5, v0\nv_lshl_add_u32 v52, v55, 14, v52\nv_add_u32 v{RA}, {L_GB}, v52\nv_xor_b32 v{RA+1}, 16, v{RA}")
    k(f"v_bfe_u32 v52, v0, 4, 1\nv_lshl_add_u32 v52, v52, 2, v55\nv_xor_b32 v52, v52, v51\nv_lshlrev_b32 v52, 4, v52\nv_lshl_add_u32 v52, v51, 10, v52\nv_and_b32 v55, 14, v0\nv_add_u32 v{SA}, v55, v52\nv_xor_b32 v{SA+1}, 32, v{SA}")
    assert L_U == 0
    k(f"v_lshrrev_b32 v50, 3, v0\nv_and_b32 v51, 7, v0\ns_lshl_b32 s{sT}, s{sWV}, 1\nv_xor_b32 v56, s{sT}, v51\nv_lshlrev_b32 v56, 4, v56\nv_lshl_add_u32 v56, v50, 12, v56\nv_xor_b32 v57, 16, v56\nv_add_u32 v57, {32768-1024}, v57")
    k.wait(vm="*")
    s_inc(k, pWS, f"s{sO2}", sE3)
    stamp(k, cfg, 8); stamp(k, cfg, 2, 5)
    for i in range(8): k(f"v_lshlrev_b32 v{XU+2*i}, 16, v{XE+i}\nv_and_b32 v{XU+2*i+1}, 0xffff0000, v{XE+i}")
    k(f"s_lshr_b32 s{sT2}, s{sRB}, 2\ns_lshr_b32 s{sT2}, {0xf0 if RS[0] else sum(1 << J for J in JSETS[cfg.jbal][1])}, s{sT2}\ns_and_b32 s{sT2}, s{sT2}, 1")
    k(f"s_lshl_b32 s{sT}, s{sC}, 1\ns_add_u32 s{sT}, s{sT}, s{sT2}\ns_lshl_b32 s{sT}, s{sT}, 2\ns_add_u32 s{sT}, s{sT}, s{sWV}\ns_add_u32 s{sT}, s{sT}, {C_ST}\ns_lshl_b32 s{sO1}, s{sT}, 7")
    k(f"s_lshl_b32 s{sT}, s{sC}, 2\ns_add_u32 s{sT}, s{sT}, s{sWV}\ns_lshl_b32 s{sT}, s{sT}, 16\ns_lshl_b32 s{sT2}, s{sRB}, 7\ns_add_u32 s{sT}, s{sT}, s{sT2}\ns_add_u32 s{sO2}, s{sT}, {ST}")
    for i in range(16): k(f"v_mov_b32 v{SU+i}, 0")
    k(f"s_lshl_b32 m0, s{sWV}, 11")
    if not RS[0]: lds_spin(k, VSY, SY_RD, 4, 50, sT, sSP, 1)
    s_poll(k, pWS, [f"s{sO1}"], 16, sT, sSP, cfg.stpoll[1])
    stamp(k, cfg, 3, 5)
    k(f"buffer_load_dwordx4 v56, {S(sWS,4)}, s{sO2} offen sc1 lds\nbuffer_load_dwordx4 v57, {S(sWS,4)}, s{sO2} offen offset:1024 sc1 lds")
    k.wait(vm="*")
    stamp(k, cfg, 9); stamp(k, cfg, 4, 5)
    for ps in (0, 1):
        for e in range(8): k(f"ds_read_u16_d16_hi v{SU+8*ps+e}, v{SA+ps} offset:{128*e}")
    k(f"s_mov_b32 s{sO1}, {fbits(-LOG2E)}")
    PR, T = 160, 224
    for ps in (0, 1):
        b = PR + 32*ps
        if ps == 0:
            stamp(k, cfg, 5, 5); lds_spin(k, VSY, SY_GS, 4, 50, sT, sSP, cfg.finsleep); stamp(k, cfg, 6, 5)
        else:
            stamp(k, cfg, 7, 5); k("s_barrier"); stamp(k, cfg, 10); stamp(k, cfg, 8, 5)
        for w in range(4):
            for e in (0, 1): k(f"ds_read_b128 {V(b+8*w+4*e,4)}, v{RA+e} offset:{32768*ps + 4096*w}", f"p{w}")
        def add(x, y):
            if ps == 0 and cfg.p0plain:
                for i in range(8): k(f"v_add_f32 v{x+i}, v{x+i}, v{y+i}")
            else:
                for i in range(4): k(f"v_pk_add_f32 {V(x+2*i,2)}, {V(x+2*i,2)}, {V(y+2*i,2)}")
        k.wait(lg="p1")
        add(b, b+8)
        k.wait(lg="p3")
        add(b+16, b+24); add(b, b+16)
        for i in range(4): k(f"v_pk_mul_f32 {V(T+2*i,2)}, {V(b+2*i,2)}, {S(sO1,2)} op_sel_hi:[1,0]")
        for i in range(8): k(f"v_exp_f32 v{T+i}, v{T+i}")
        for i in range(4): k(f"v_pk_mul_f32 {V(b+2*i,2)}, {V(b+2*i,2)}, {V(SU+8*ps+2*i,2)}")
        for i in range(4): k(f"v_pk_add_f32 {V(T+2*i,2)}, {V(T+2*i,2)}, 1.0 op_sel_hi:[1,0]")
        for i in range(8): k(f"v_rcp_f32 v{T+i}, v{T+i}")
        for i in range(4): k(f"v_pk_fma_f32 {V(b+2*i,2)}, {V(b+2*i,2)}, {V(T+2*i,2)}, {V(XU+8*ps+2*i,2)}")
        for i in range(4): k(f"v_cvt_pk_bf16_f32 v{b+8+i}, v{b+2*i}, v{b+2*i+1}")
        k(f"buffer_store_dwordx4 {V(b+8,4)}, v{OA}, {S(sOUT,4)}, s{sG32 if ps == 0 else sKAP} offen {cfg.outmod}")
    if cfg.prof: k("s_waitcnt vmcnt(0)")
    stamp(k, cfg, 11); stamp(k, cfg, 9, 5)
    prof_dump(k, cfg, True)
    k("s_endpgm")

def gen_helper(k, cfg):
    k.reset()
    k("L_helper:")
    sHB, sIH, sST = 62, 63, 64
    k(f"v_lshrrev_b32 v1, 6, v0\nv_and_b32 v0, 63, v0\nv_readfirstlane_b32 s3, v1\ns_and_b32 s{sXCD}, s2, 7")
    k(f"s_lshl_b32 s{sHB}, s{sXCD}, 2\ns_add_u32 s{sHB}, s{sHB}, s{sJ}")
    k(f"s_lshr_b32 s{sIH}, s{sXCD}, 1\ns_lshl_b32 s{sIH}, s{sIH}, 2\ns_add_u32 s{sIH}, s{sIH}, s{sJ}\ns_and_b32 s{sST}, s{sXCD}, 1\ns_mul_i32 s{sST}, s{sST}, 14\ns_add_u32 s{sST}, s{sST}, s{sIH}")
    k(f"s_lshl_b32 s{sT}, s{sHB}, 3\ns_add_u32 s{sT}, s{sT}, s3\ns_mul_i32 s65, s{sT}, {8*896}")
    k(f"v_lshrrev_b32 v1, 3, v0\nv_and_b32 v2, 7, v0\nv_mul_u32_u24 v3, 896, v1\nv_lshl_add_u32 v3, v2, 4, v3")
    k(f"v_lshlrev_b32 v4, 4, v0\nv_and_b32 v5, 1, v0\nv_lshlrev_b32 v5, 12, v5\nv_lshrrev_b32 v6, 1, v0\nv_lshl_add_u32 v5, v6, 4, v5")
    k(f"v_mul_u32_u24 v15, 3584, v1\nv_lshl_add_u32 v15, v2, 4, v15")
    k(f"s_lshl_b32 s67, s{sHB}, 7\ns_add_u32 s67, s67, {STATS}")
    k(f"s_lshl_b32 s69, s{sST}, 9\ns_add_u32 s69, s69, {AUGW}\ns_mul_i32 s70, s3, {56*3584}\ns_lshl_b32 s74, s{sST}, 7\ns_add_u32 s70, s70, s74")
    srd_const(k, sAUX, 256); srd_const(k, sWS, WSN); srd_const(k, sX, 1835008); srd_const(k, sW1, 1605632); srd_const(k, sW2, 1605632); srd_const(k, sOUT, 3584)
    k("s_waitcnt lgkmcnt(0)")
    srd(k, sW1, pW1); srd(k, sX, pX); srd(k, sWS, pWS); srd(k, sAUX, pDBG); srd(k, sW2, pW2); srd(k, sOUT, pB1)
    stamp(k, cfg, 5)
    if cfg.tlb:
        k(f"s_lshl_b32 s72, s3, 21\ns_load_dword s30, {S(pWS,2)}, s72\ns_load_dword s31, {S(pW2,2)}, 0\ns_load_dword s32, {S(pOUT,2)}, 0\ns_load_dword s33, {S(pW1,2)}, 0\ns_load_dword s34, {S(pDBG,2)}, 128")
    l0 = k.lab("h0")
    k(f"s_cmp_lt_u32 s{sIH}, 14\ns_cbranch_scc1 {l0}")
    for i in range(4): k(f"v_mov_b32 v{8+i}, 0")
    k(f"s_and_b32 s66, s{sXCD}, 1\ns_lshl_b32 s66, s66, 1\ns_and_b32 s{sT}, s{sJ}, 1\ns_add_u32 s66, s66, s{sT}\ns_lshl_b32 s66, s66, 3\ns_add_u32 s66, s66, s3\ns_lshl_b32 s66, s66, 12")
    for n in range(4): k(f"buffer_store_dwordx4 v[8:11], v4, {S(sWS,4)}, s66 offen offset:{1024*n} sc1")
    k(f"s_mov_b32 s69, {WSN}\ns_mov_b32 s70, {WSN}\ns_waitcnt vmcnt(0)\ns_barrier\ns_cmp_lg_u32 s3, 7\ns_cbranch_scc1 {l0}")
    s_inc(k, pDBG, "0", 75)
    k(f"{l0}:")
    stamp(k, cfg, 4)
    if cfg.hdelay: k(f"s_sleep {cfg.hdelay}")
    k.reset()
    if cfg.hxfirst:
        for i in range(7): k(f"buffer_load_dwordx4 {V(16+4*i,4)}, v3, {S(sX,4)}, s65 offen offset:{128*i}", f"x{i}")
    if cfg.hsplit: k("s_barrier")
    for i in range(7): k(f"s_add_u32 s76, s70, {i*8*3584}\nbuffer_load_dwordx4 {V(44+4*i,4)}, v15, {S(sW1,4)}, s76 offen", f"w{i}")
    k(f"v_lshlrev_b32 v6, 1, v0\nbuffer_load_ushort v81, v6, {S(sOUT,4)}, s74 offen", "b1")
    k("v_and_b32 v12, 1, v0\nv_lshlrev_b32 v12, 4, v12\nv_mov_b32 v13, 0xbf80\nv_lshlrev_b32 v13, v12, v13\nv_bfe_u32 v12, v0, 1, 2")
    for e in range(4): k(f"v_cmp_eq_u32 vcc, {e}, v12\nv_cndmask_b32 v{72+e}, 0, v13, vcc")
    k(f"v_lshrrev_b32 v82, 5, v0\nv_lshl_add_u32 v82, s3, 1, v82\nv_lshlrev_b32 v82, 8, v82\nv_bfe_u32 v13, v0, 4, 1\nv_lshl_add_u32 v82, v13, 7, v82\nv_lshl_add_u32 v82, v2, 2, v82\nv_add_u32 v82, 1024, v82")
    k("v_mov_b32 v12, 0\nv_mov_b32 v13, 0\ns_mov_b32 s68, 0x3f803f80")
    if not cfg.hxfirst:
        for i in range(7): k(f"buffer_load_dwordx4 {V(16+4*i,4)}, v3, {S(sX,4)}, s65 offen offset:{128*i}", f"x{i}")
    hclr = f"buffer_load_dword v83, off, {S(sAUX,4)}, 0 sc1"
    k(hclr, "clr")
    if int(cfg.prof) == 8:
        stamp(k, cfg, 1, 8)
        for i, t in enumerate(("x0", "x3", "x6", "w0", "w3", "w6")):
            sv = list(k.vm); k.wait(vm=t); k.vm = sv; stamp(k, cfg, 2 + i, 8)
    if cfg.hearly:
        k(f"s_lshr_b32 s71, s{sHB}, 4\ns_mul_i32 s71, s71, {512*896}\ns_lshl3_add_u32 s72, s{sHB}, s3\ns_mul_i32 s72, s72, {3*896}\ns_add_u32 s71, s71, s72")
        k(f"v_min_u32 v84, 20, v0\nv_lshlrev_b32 v84, 7, v84\nbuffer_load_dword v84, v84, {S(sW2,4)}, s71 offen", "pf0")
    for i in range(7):
        k.wait(vm=f"x{i}")
        for e in range(4): k(f"v_dot2c_f32_bf16 v12, s68, v{16+4*i+e}\nv_dot2c_f32_bf16 v13, v{16+4*i+e}, v{16+4*i+e}")
    stamp(k, cfg, 6)
    for m in ("quad_perm:[1,0,3,2]", "quad_perm:[2,3,0,1]", "row_half_mirror"):
        for r in (12, 13): k(f"v_add_f32_dpp v{r}, v{r}, v{r} {m} row_mask:0xf bank_mask:0xf")
    k(f"v_mul_f32 v12, {fbits(1/448)}, v12\nv_mul_f32 v13, {fbits(1/448)}, v13\nv_fma_f32 v13, -v12, v12, v13\nv_max_f32 v13, 0, v13")
    k(f"v_cvt_pk_bf16_f32 v13, v13, v13\nv_and_b32 v13, 0xffff0000, v13\nv_add_f32 v13, {fbits(1e-5)}, v13\nv_cvt_pk_bf16_f32 v13, v13, v13\nv_and_b32 v13, 0xffff0000, v13")
    k(f"v_sqrt_f32 v13, v13\nv_lshl_add_u32 v14, s3, 3, v1\nv_lshlrev_b32 v14, 2, v14\nv_cvt_pk_bf16_f32 v12, v12, v13")
    k("ds_write_b32 v14, v12")
    for j in range(7):
        k.wait(vm=f"w{j}")
        k(f"v_mfma_f32_16x16x32_bf16 v[76:79], {V(44+4*j,4)}, v[72:75], {'0' if j == 0 else 'v[76:79]'}")
    k("ds_write2_b32 v82, v76, v77 offset0:0 offset1:8\nds_write2_b32 v82, v78, v79 offset0:16 offset1:24")
    stamp(k, cfg, 7)
    v_poll(k, hclr, 83, 4, 73, 2, first=False, tag="clr")
    stamp(k, cfg, 8)
    k.wait(lg="*")
    k("s_barrier")
    stamp(k, cfg, 1)
    l2 = k.lab("h2"); l3 = k.lab("h3")
    k(f"s_cmp_lg_u32 s3, 0\ns_cbranch_scc1 {l2}")
    k("s_mov_b64 exec, 0xffff\nds_read_b128 v[8:11], v4")
    k.wait(lg="*")
    k(f"buffer_store_dwordx4 v[8:11], v5, {S(sWS,4)}, s67 offen sc1\ns_mov_b64 exec, -1")
    k(f"{l2}:")
    k(f"s_cmp_lg_u32 s3, 1\ns_cbranch_scc1 {l3}")
    k("v_lshlrev_b32 v12, 2, v0")
    for j in range(8): k(f"ds_read2st64_b32 {V(16+2*j,2)}, v12 offset0:{4+2*j} offset1:{5+2*j}")
    k.wait(lg="*")
    for st_ in (1, 2, 4, 8):
        for j in range(0, 16, 2*st_): k(f"v_add_f32 v{16+j}, v{16+j}, v{16+j+st_}")
    k(f"v_cvt_pk_bf16_f32 v12, v16, v16\nv_and_b32 v12, 0xffff0000, v12\nv_sub_f32 v12, v16, v12\nv_cvt_pk_bf16_f32 v80, v16, v12\nv_or_b32 v81, 0x10000, v81\nv_lshlrev_b32 v12, 3, v0")
    k(f"buffer_store_dwordx2 v[80:81], v12, {S(sWS,4)}, s69 offen sc1")
    k(f"{l3}:")
    k("s_barrier")
    stamp(k, cfg, 2)
    k(f"v_lshlrev_b32 v14, 7, v0\ns_mul_i32 s76, s{sJ}, 401408\ns_mul_i32 s77, s{sXCD}, 49\ns_lshr_b32 s77, s77, 3\ns_add_u32 s77, s77, s3")
    for i in range(cfg.w2pf):
        k(f"s_sub_u32 s71, s77, 49\ns_cmp_ge_u32 s77, 49\ns_cselect_b32 s77, s71, s77\ns_lshl_b32 s71, s77, 13\ns_add_u32 s71, s71, s76\ns_add_u32 s77, s77, 8")
        k(f"buffer_load_dword v{90+i}, v14, {S(sW2,4)}, s71 offen", "pf")
    k("s_waitcnt vmcnt(0)")
    stamp(k, cfg, 3)
    prof_dump(k, cfg)
    k("L_end:")
    k("s_endpgm")

HEADER = open("recurrent_scan__ssm_conv_s4__dense_activation_mish__prompt.s.ref").read().split("; Override launch")[0] if __name__ == "__main__" else ""
def build(cfg, header=""):
    ORD[:] = cfg.ord; LOC[:] = [LOCT[ORD.index(b)] for b in range(7)]; assert ORD[6] == 6
    k = K(); RS[0] = int(cfg.split == 'r')
    front(k, cfg); vm0 = list(k.vm); gen_G(k, cfg); gen_S(k, cfg, vm0); gen_helper(k, cfg)
    return file_wrap([(KNAME, 256, 512, L_TOT)], [kernel_wrap(KNAME, k.text(), 256).replace('denorm_mode_32 3', f'denorm_mode_32 {cfg.denorm}')], header), k

if __name__ == "__main__":
    cfg = Cfg()
    for a in sys.argv[2:]:
        n, v = a.split("=", 1); setattr(cfg, n, eval(v))
    txt, k = build(cfg, HEADER)
    open(sys.argv[1], "w").write(txt)
    print("instructions", len(k.ins), "padded states", k.padded)
```

```python
import sys, struct
from kasm import *
from asmlib import KNAME, kernel_wrap, file_wrap

def fbits(x): return "0x%08x" % struct.unpack("<I", struct.pack("<f", x))[0]
LOG2E = 1.4426950408889634

AUGW, ACNT = 0xA000, 0x10000
CNT, STATS, PROF, XT, ST, ACT, KDBG, WSN = 0, 0x8000, 0x20000, 0x100000, 0x300000, 0x500000, 0xD00000, 0x2000000
C_ACT, C_XT, C_ST = 0, 128, 184
L_WS, L_XS = [81920, 98304, 0], [49152, 65536, 16384]
L_GB, L_KC, L_U, L_SY, L_TOT = 49152, 14336, 0, 13312, 163840
L_PART, L_PCH, L_GS = 84480, 6864, L_U + 9216
sX, sW1, sW2, sWS, sAUX, sOUT = 4, 8, 12, 16, 20, 24
pX, pARE, pLDT, pDSK, pW1, pB1, pW2, pOUT, pDBG, pWS = 28, 30, 42, 44, 48, 50, 52, 54, 56, 58
sXCD, sJ, sR, sC, sRB, sFC, sKAP = 60, 61, 62, 63, 64, 65, 66
SPIN, LSPIN = 1000000, 30000000

class Cfg:
    prof = False
    kdbg = False
    span = False
    probe = None
    probewg = None
    cyc = False
    depth = 6
    rot = False
    stpoll = ('s', 4)
    actsleep = 1
    c1at = [14, 22, 30, 38]
    statstep = 20
    pace2 = 9
    pace = 8
    actpf = 0
    w2pf = 1
    codepf = True
    outmod = ""
    pbar = False
    flagat = 1
    cut = [3, 4]
    early = [0, 6]
    xtat = [46, 50]
    touch = 36
    w2touch = 0
    tlb = False
    ord = [2, 3, 4, 5, 0, 1, 6]
    s45 = True
    jbal = 2
    partner = 1
    pmask2 = 0x400
    xtearly = True
    gc1early = True
    w2from = 22
    rdlag = 1
    p0plain = False
    pollat = 6
    cvprio = 2
    nprio = 0
    tailq = 6
    usleep = 0
    mbar = 1
    hearly = False
    hdelay = 0
    hsplit = True
    sall = None
    b8at = 14
    pbar2 = 0
    cvpre = 12
    g2prio = 0
    finsleep = 0
    bclate = True
    own = True
    aspread = 4
    gc0 = True
    c0x = 2
    c0w = 2
    gat = dict(xr=46, xs=50, touch=36)
    xtbar = 1
    hxfirst = True
    gearly = 1
    c0late = 2
    r2cut = 8
    sblk = True
    split = 'J'
    x_noconv = False
    cvfree = 3
    tailn = 12
    gblk = 4
    x_noside = False
    x_nodma = False
    x_nobar = False
    x_nokw = False
    x_acthit = False
    x_nos2 = False
    ssleep = 0
    stat = [1,2,3,4,5,6,7]
    actmod = 'sc1'
    x_noc01 = False
    kbar = False
    kdelay = False
    kprio = 0
    denorm = 3

def srd(k, d, ptr): k(f"s_mov_b64 {S(d,2)}, {S(ptr,2)}")
def srd_const(k, d, n): k(f"s_mov_b32 s{d+2}, {n}\ns_mov_b32 s{d+3}, 0x20000")

def stamp(k, cfg, i, mode=1):
    if cfg.probe:
        if i == 0 or (mode, i) == cfg.probe[1:]: k(f"s_memrealtime {S(78+2*i,2)}")
        return
    if cfg.cyc and cfg.prof and (mode == int(cfg.prof) or i == 0):
        k(f"s_memtime {S(78+2*i,2)}"); return
    if (cfg.span and i == 0) or cfg.prof and (int(cfg.prof) == mode or i == 0): k(f"s_memrealtime {S(78+2*i,2)}")
def cstamp(k, cfg, i, mode=2):
    if int(cfg.prof) == mode: k(f"s_memtime {S(78+2*i,2)}")
def prof_dump(k, cfg, last=False, role=None):
    if cfg.probe:
        if role == cfg.probe[0]:
            l = k.lab("pad"); i = cfg.probe[2]
            k(f"s_waitcnt lgkmcnt(0)\ns_sub_u32 s76, s{78+2*i}, s78\ns_lshl_b32 s76, s76, 2\ns_add_u32 s76, s76, 3000\ns_min_u32 s76, s76, 20000")
            if cfg.probewg is not None: k(f"s_cmp_lg_u32 s2, {cfg.probewg}\ns_cselect_b32 s76, 0, s76")
            k(f"{l}:\ns_memrealtime s[74:75]\ns_waitcnt lgkmcnt(0)\ns_sub_u32 s74, s74, s78\ns_cmp_lt_u32 s74, s76\ns_cbranch_scc1 {l}")
        return
    if cfg.span == 2 and last:
        k("L_pad:\ns_memrealtime s[80:81]\ns_waitcnt lgkmcnt(0)\ns_sub_u32 s80, s80, s78\ns_cmp_lt_u32 s80, 4000\ns_cbranch_scc1 L_pad")
    if cfg.span == 1 and last:
        k("s_memrealtime s[80:81]\ns_waitcnt lgkmcnt(0)\ns_not_b32 s78, s78\nv_mov_b32 v4, s78\nv_mov_b32 v5, s80\ns_mov_b64 exec, 1")
        k("s_cmp_lg_u32 s3, 4\ns_cbranch_scc1 L_end")
        k(f"buffer_atomic_umax v4, off, {S(sAUX,4)}, 0 offset:8\nbuffer_atomic_umax v5, off, {S(sAUX,4)}, 0 offset:12")
    if not cfg.prof: return
    k("s_waitcnt lgkmcnt(0)")
    k("s_lshl_b32 s76, s2, 3\ns_add_u32 s76, s76, s3\ns_lshl_b32 s76, s76, 6\ns_add_u32 s76, s76, %d" % PROF)
    k("s_mov_b64 exec, 1")
    for q in range(3):
        for e in range(4): k(f"v_mov_b32 v{4+e}, s{78+2*(4*q+e)}")
        k(f"buffer_store_dwordx4 v[4:7], off, {S(sWS,4)}, s76 offset:{16*q}")
    k("s_mov_b64 exec, -1")

def atomic_inc(k, srdreg, soff, vt):
    k(f"v_mov_b32 v{vt}, 1\ns_mov_b64 exec, 1")
    k(f"buffer_atomic_add v{vt}, off, {S(srdreg,4)}, {soff} sc1", "atom")
    k("s_mov_b64 exec, -1")

def s_inc(k, ptr, soff, st):
    k(f"s_mov_b32 s{st}, 1\ns_atomic_add s{st}, {S(ptr,2)}, {soff}")
def s_poll(k, ptr, soffs, want, st, sc, sleep=0):
    l = k.lab("sp"); o = k.lab("spo")
    k(f"s_mov_b32 s{sc}, 0")
    k(f"{l}:")
    for i, so in enumerate(soffs): k(f"s_load_dword s{st+i}, {S(ptr,2)}, {so} glc")
    k(f"s_add_u32 s{sc}, s{sc}, 1")
    k.wait(lg="*")
    k(f"s_cmp_gt_u32 s{sc}, {SPIN}\ns_cbranch_scc1 {o}")
    for i in range(1, len(soffs)): k(f"s_min_u32 s{st}, s{st}, s{st+i}")
    if sleep: k(f"s_cmp_ge_u32 s{st}, {want}\ns_cbranch_scc1 {o}\ns_sleep {sleep}\ns_branch {l}")
    else: k(f"s_cmp_lt_u32 s{st}, {want}\ns_cbranch_scc1 {l}")
    k(f"{o}:")
def v_poll(k, load, vt, want, sc, sleep=0, first=True, tag="*"):
    l = k.lab("vp"); o = k.lab("vpo")
    if first: k(load)
    k(f"s_mov_b32 s{sc}, 0")
    k.wait(vm=tag)
    k(f"{l}:")
    k(f"v_cmp_gt_u32 vcc, {want}, v{vt}\ns_add_u32 s{sc}, s{sc}, 1\ns_cmp_gt_u32 s{sc}, {SPIN}\ns_cbranch_scc1 {o}\ns_cbranch_vccz {o}")
    if sleep: k(f"s_sleep {sleep}")
    sv = list(k.vm); k(load); k("s_waitcnt vmcnt(0)"); k.vm = sv
    k(f"s_branch {l}")
    k(f"{o}:")

def lds_signal(k, vaddr, off, vone):
    k("s_mov_b64 exec, 1")
    k(f"ds_add_u32 v{vaddr}, v{vone} offset:{off}", "sig")
    k("s_mov_b64 exec, -1")
def lds_spin(k, vaddr, off, want, vt, st, sc, sleep=0):
    l = k.lab("spin"); o = k.lab("spun")
    k(f"s_mov_b32 s{sc}, 0")
    k(f"{l}:")
    k(f"ds_read_b32 v{vt}, v{vaddr} offset:{off}\ns_add_u32 s{sc}, s{sc}, 1")
    k.wait(lg="*")
    k(f"v_readfirstlane_b32 s{st}, v{vt}\ns_cmp_gt_u32 s{sc}, {LSPIN}\ns_cbranch_scc1 {o}")
    if sleep: k(f"s_cmp_ge_u32 s{st}, {want}\ns_cbranch_scc1 {o}\ns_sleep {sleep}\ns_branch {l}")
    else: k(f"s_cmp_lt_u32 s{st}, {want}\ns_cbranch_scc1 {l}")
    k(f"{o}:")

sCP, sCS, sCOL, sM, sT, sT2, sSP, sO1, sO2, sDO, sDM = 67, 68, 69, 70, 71, 72, 73, 74, 75, 76, 77
sXO, sWO, sA2, sB2, sDT, sDT2, sE0, sE1, sE2, sE3 = 30, 31, 32, 33, 34, 35, 36, 37, 38, 39
sHH, sG32, sKM = 40, 41, 46
sRW = 40
AB, BB, CB, X1, X8, X256, W1, W8, W256, W2, W4, TT, Z0, Z1, PK = 100, 102, 104, 106, 108, 110, 112, 114, 116, 118, 120, 122, 124, 126, 128
KWG, KR, PA, DSK, DT, VD, VF, UF, KA = 132, 140, 141, 145, 146, 150, 160, 192, 224
LOCT = [4, 6, 1, 0, 3, 5, 2]
ORD = list(range(7))
LOC = list(LOCT)
SY_GS, SY_RING, SY_RD, SY_U, SY_PAIR, SY_S, SY_W2, SY_M = 0, 4, 8, 12, 16, 24, 32, 48

def x_offsets(k, d):
    k(f"v_lshrrev_b32 v154, 3, v0\nv_and_b32 v155, 7, v0\nv_lshrrev_b32 v156, 4, v0\nv_xor_b32 v155, v155, v156")
    k(f"v_lshl_add_u32 v154, s{sCOL}, 5, v154\nv_mul_u32_u24 v154, 896, v154\nv_lshl_add_u32 v{d}, v155, 4, v154\nv_xor_b32 v155, 64, v{d}")
    k(f"v_add_u32 v{d+1}, 6144, v155\nv_add_u32 v{d+2}, {2*6144}, v{d}\nv_add_u32 v{d+3}, {3*6144}, v155")
def w1_offsets(k, d):
    k(f"v_lshrrev_b32 v154, 4, v0\nv_and_b32 v155, 15, v0\nv_lshlrev_b32 v156, 2, v154\nv_xor_b32 v155, v155, v156")
    k(f"v_lshl_add_u32 v154, s{sCOL}, 4, v154\nv_mul_u32_u24 v154, 3584, v154\nv_lshl_add_u32 v{d}, v155, 4, v154")
    for n in (1,2,3): k(f"v_add_u32 v{d+n}, {n*13312}, v{d}")
def w2_offsets(k, d):
    k(f"v_lshrrev_b32 v154, 3, v0\nv_and_b32 v155, 7, v0\nv_bfe_u32 v156, v0, 4, 1\nv_lshlrev_b32 v156, 2, v156\nv_xor_b32 v155, v155, v156")
    k(f"v_mul_u32_u24 v154, 896, v154\nv_lshl_add_u32 v{d}, v155, 4, v154")
    for n in (1,2,3): k(f"v_add_u32 v{d+n}, {n*6144}, v{d}")
sC0, sCE = 42, 43
def piece_bases(k, unit):
    k(f"s_add_u32 s{sB2}, s{sA2}, {unit}\ns_mul_i32 s{sC0}, s{sCE}, {unit}\ns_add_u32 s{sC0}, s{sC0}, s{sA2}")
def piece(n, unit, extra, d):
    if n == 0: return f"s_add_u32 s{d}, s{sC0}, {extra}"
    return f"s_cmp_le_u32 s{sCE}, {n-1}\ns_cselect_b32 s{d}, s{sB2}, s{sA2}\ns_add_u32 s{d}, s{d}, {(n-1)*unit + extra}"
def w2_bases(k, cfg):
    k(f"s_xor_b32 s{sT}, s3, s{sXCD}\ns_bitcmp1_b32 s{sT}, 0\ns_cselect_b32 s{sCE}, 0, s{sC}")
    k(f"s_and_b32 s{sT}, s3, 1\ns_mul_i32 s{sT}, s{sT}, 14\ns_add_u32 s{sT}, s{sT}, s{sCS}\ns_mul_i32 s{sA2}, s{sT}, {64*896}\ns_lshl_b32 s{sT}, s{sKAP}, 7\ns_add_u32 s{sA2}, s{sA2}, s{sT}")
    piece_bases(k, 114688)
def w2dma(b, d):
    out = [f"s_add_u32 m0, s{sM}, {LOC[b%7]*16384}\n" + piece(b//2, 114688, (b & 1)*28672, sDT) + f"\nbuffer_load_dwordx4 v{d}, {S(sW2,4)}, s{sDT} offen lds"]
    for n in (1,2,3): out.append(f"buffer_load_dwordx4 v{d+n}, {S(sW2,4)}, s{sDT} offen offset:{n*1024} lds")
    return [(g, f"w2_{b}") for g in out]
def cmul(k, z, a, w, t):
    k(f"v_pk_mul_f32 {V(t,2)}, {V(a,2)}, {V(w,2)} op_sel_hi:[1,0]")
    k(f"v_pk_fma_f32 {V(z,2)}, {V(a,2)}, {V(w,2)}, {V(t,2)} op_sel:[1,1,0] op_sel_hi:[0,1,1] neg_lo:[0,1,0]")

gW2D, gW2A, gL16, gSY, gONE, gXA, gWA, gSTA, gAGA, gAUG, gSTT, gH = 1, 5, 9, 12, 13, 80, 84, 88, 89, 90, 98, 14
sPW = 22
sGA, ZERO, VSY, VONE, _WD, sW2D, XTA, XTS, EW, CA, CBA, UW, TZ = 8, 30, 34, 35, 36, 40, 44, 46, 64, 65, 66, 67, 48

XR = 56
CLRL = f"buffer_load_dword v49, off, {S(sAUX,4)}, 0 sc1"
class Cap:
    def __init__(self): self.l = []
    def __call__(self, text, tag=None): self.l += [x for x in text.split("\n") if x.strip()]

def front(k, cfg):
    stamp(k, cfg, 0)
    k("s_load_dwordx16 s[28:43], s[0:1], 0\ns_load_dwordx16 s[44:59], s[0:1], 64")
    k("s_cmpk_ge_u32 s2, 256\ns_cbranch_scc1 L_end")
    k(f"s_lshr_b32 s{sJ}, s2, 3")
    if cfg.codepf:
        lp = k.lab("pc")
        k(f"s_getpc_b64 s[72:73]\n{lp}:\nv_and_b32 v2, 15, v0\nv_lshl_add_u32 v2, s{sJ}, 4, v2\nv_min_u32 v2, (L_end-{lp})/64, v2\nv_mov_b32 v3, 0")
        k(f"v_lshlrev_b32 v2, 6, v2\nv_lshl_add_u64 v[2:3], v[2:3], 0, s[72:73]\nglobal_load_dword v159, v[2:3], off", "code")
    k(f"s_sub_u32 s{sCP}, s2, 32\ns_cbranch_scc1 L_helper")
    k(f"v_and_b32 v1, 0xff, v0\nv_lshl_add_u32 v1, s{sCP}, 8, v1\nv_lshlrev_b32 v1, 2, v1\ns_lshl_b32 s{sSP}, s{sCP}, 2")
    k("s_waitcnt lgkmcnt(0)")
    stamp(k, cfg, 1, 3)
    for i in range(2): k(f"global_load_dword v{AB+i}, v1, {S(pARE+2*i,2)}", "prm")
    k(f"s_load_dword s{sO1}, {S(pLDT,2)}, s{sSP}\ns_load_dword s{sO2}, {S(pDSK,2)}, s{sSP}")
    if cfg.partner:
        k("v_xor_b32 v3, 0x1000, v1")
        if cfg.pmask2: k(f"v_lshrrev_b32 v2, 8, v0\nv_mul_u32_u24 v2, {cfg.pmask2}, v2\nv_xor_b32 v3, v2, v3")
        for i in range(2): k(f"global_load_dword v{157+i}, v3, {S(pARE+2*i,2)}", "pp")
    k("v_lshrrev_b32 v2, 6, v0\nv_and_b32 v0, 63, v0\nv_readfirstlane_b32 s3, v2")
    k(f"s_and_b32 s{sXCD}, s2, 7\ns_sub_u32 s{sJ}, s{sJ}, 4")
    k(f"s_mul_i32 s{sR}, s{sJ}, 37\ns_lshr_b32 s{sR}, s{sR}, 8\ns_mul_i32 s{sC}, s{sR}, 7\ns_sub_u32 s{sC}, s{sJ}, s{sC}")
    k(f"s_lshr_b32 s{sRB}, s{sXCD}, 1\ns_lshl2_add_u32 s{sRB}, s{sRB}, s{sR}")
    k(f"s_and_b32 s{sXH}, s{sXCD}, 1\ns_mul_i32 s{sFC}, s{sXH}, 7\ns_add_u32 s{sFC}, s{sFC}, s{sC}")
    k(f"s_lshl1_add_u32 s{sKAP}, s{sR}, s{sC}\ns_sub_u32 s{sT}, s{sKAP}, 7\ns_cselect_b32 s{sKAP}, s{sKAP}, s{sT}")
    k(f"s_bfe_u32 s{sCS}, s3, 0x10001\ns_and_b32 s{sCOL}, s3, 3\ns_lshl_b32 s{sM}, s{sCOL}, 12\ns_add_u32 s{sM}, s{sM}, {L_GB}")
    for i in range(2, 6): k(f"global_load_dword v{AB+i}, v1, {S(pARE+2*i,2)}", "prm2")
    if cfg.partner == 2:
        for i in range(2, 6): k(f"global_load_dword v157, v3, {S(pARE+2*i,2)}", "pp2")
    stamp(k, cfg, 2, 3)
    x_offsets(k, XD); w1_offsets(k, WD)
    srd(k, sX, pX); srd(k, sW1, pW1); srd_const(k, sX, 1835008); srd_const(k, sW1, 1605632)
    k(f"s_mul_i32 s{sDO}, s{sRB}, 114688\ns_lshl_b32 s{sT}, s{sKAP}, 7\ns_add_u32 s{sDO}, s{sDO}, s{sT}")
    k(f"s_mul_i32 s{sDM}, s{sKAP}, 229376\ns_lshl_b32 s{sT}, s{sFC}, 8\ns_add_u32 s{sDM}, s{sDM}, s{sT}")
    k(f"s_xor_b32 s{sKM}, s3, 4\ns_mul_i32 s{sKM}, s{sKM}, 8704\ns_mov_b32 s47, 0x03020c0c")
    k(f"s_cmp_lt_u32 s3, 4\ns_cselect_b32 s47, 0x01000c0c, s47\ns_cselect_b32 s1, 0, 1")
    def c0issue():
        o = k.lab("c0")
        k(f"s_cmp_eq_u32 s1, 1\ns_cbranch_scc1 {o}")
        stamp(k, cfg, 1, 7)
        for n, (g, t) in enumerate(chunk(cfg, 0, False)): k(g, "c0x" if n < 4 else t)
        stamp(k, cfg, 2, 7)
        k(f"{o}:\ns_mov_b32 m0, s{sKM}\n{ADV}")
    def role_wait(tag, n_s):
        o = k.lab("rw")
        k(f"s_cmp_eq_u32 s1, 0\ns_cbranch_scc1 {o}\ns_waitcnt vmcnt({n_s})\n{o}:")
        k.wait(vm=tag)
    if cfg.c0x == 1: c0issue()
    else: k(f"s_mov_b32 m0, s{sKM}")
    k(f"s_add_u32 s{sT}, s{sKM}, {L_KC}\nv_and_b32 v154, 31, v0\nv_lshrrev_b32 v155, 5, v0\nv_mul_u32_u24 v156, 272, v154\nv_lshl_add_u32 v156, v155, 4, v156\nv_add_u32 v{KR}, s{sT}, v156")
    k(f"s_mov_b32 s44, {fbits(8.0)}\ns_mov_b32 s45, {fbits(256.0)}\nv_mov_b32 v{PK}, 0x3f80\nds_write_addtid_b32 v{PK} offset:{L_KC}")
    k(f"s_mul_i32 s{sE3}, s{sCS}, {L_PCH}\ns_and_b32 s{sHH}, s3, 1\ns_mul_i32 s{sT}, s{sHH}, 3328\ns_add_u32 s{sE3}, s{sE3}, s{sT}\ns_add_u32 s{sE3}, s{sE3}, {L_PART}\nv_lshl_add_u32 v{PA}, v0, 4, s{sE3}")
    srd(k, sWS, pWS); srd_const(k, sWS, WSN)
    k(f"s_lshl1_add_u32 s{sG32}, s{sKAP}, s{sXH}")
    for i in range(4): k(f"v_mov_b32 v{ZERO+i}, 0")
    o = k.lab("g0"); j = k.lab("g1")
    k(f"s_cmp_eq_u32 s1, 1\ns_cbranch_scc1 {o}")
    setup_G(k, cfg, 0)
    k(f"s_branch {j}\n{o}:")
    for part in cfg.early: S_addresses(k, part)
    k(f"{j}:")
    Lhi = struct.unpack("<f", struct.pack("<f", LOG2E))[0]; Llo = LOG2E - Lhi
    k(f"v_mov_b32 v154, {fbits(Lhi)}\nv_mov_b32 v149, {fbits(Llo)}\ns_lshl_b32 s{sT}, s{sCS}, 4")
    stamp(k, cfg, 3, 3)
    k("s_waitcnt lgkmcnt(0)"); k.lg = []
    k(f"s_lshr_b32 s{sO1}, s{sO1}, s{sT}\ns_lshl_b32 s{sO1}, s{sO1}, 16")
    k(f"v_mul_f32 v155, s{sO1}, v154\nv_fma_f32 v156, s{sO1}, v154, -v155\nv_fmac_f32 v156, s{sO1}, v149")
    k(f"v_exp_f32 v155, v155\nv_mul_f32 v156, {fbits(0.6931471805599453)}, v156\nv_fmac_f32 v155, v155, v156\nv_cvt_pk_bf16_f32 v155, v155, v155\nv_and_b32 v{DT+2}, 0xffff0000, v155")
    k(f"v_mul_f32 v{DT}, v154, v{DT+2}\nv_mul_f32 v{DT+1}, 0.15915494, v{DT+2}")
    stamp(k, cfg, 1); stamp(k, cfg, 4, 3)
    if cfg.c0x == 1: role_wait("prm", (4, 6, 10)[cfg.partner])
    else: k.wait(vm="prm")
    stamp(k, cfg, 2); stamp(k, cfg, 5, 3)
    if cfg.c0x == 2: c0issue()
    def xt_read():
        stamp(k, cfg, 3, 7)
        k.wait(vm="c0x")
        stamp(k, cfg, 4, 7)
        k(f"ds_read_b64_tr_b16 {V(XR,2)}, v{XTA}\nds_read_b64_tr_b16 {V(XR+2,2)}, v{XTA+1} offset:512")
        k(f"ds_read_b64_tr_b16 {V(XR+4,2)}, v{XTA+1}\nds_read_b64_tr_b16 {V(XR+6,2)}, v{XTA} offset:512")
    def xt_store():
        for g in (0, 1): k(f"buffer_store_dwordx4 {V(XR+4*g,4)}, v{XTS}, {S(sWS,4)}, s{sE1+g} offen sc1", "xts")
    nv = [0]; pend = []
    def put(z, row, neg, last=False):
        p = PK + row % 4
        k(f"v_cvt_pk_bf16_f32 v{p}, v{z}, {'-' if neg else ''}v{z+1}")
        w = f"ds_write_addtid_b32 v{p} offset:{L_KC + 272*row}"
        if cfg.kdelay:
            if pend: k(pend.pop())
            pend.append(w)
            if last or row == 31: k(pend.pop())
        elif not cfg.x_nokw: k(w)
        nv[0] += 1
        if nv[0] in cfg.xtat:
            o = k.lab("g"); sl = list(k.lg)
            k(f"s_cmp_eq_u32 s1, 1\ns_cbranch_scc1 {o}")
            if nv[0] == cfg.xtat[0]: xt_read(); sl[-1] = "xt"
            else: k.wait(lg="xt"); xt_store()
            k(f"{o}:"); k.lg = sl
        if nv[0] == cfg.touch:
            o = k.lab("g")
            k(f"s_cmp_eq_u32 s1, 1\ns_cbranch_scc1 {o}")
            for n in range(4): k(f"buffer_load_dword v159, v{WD+n}, {S(sW1,4)}, s{sDM} offen offset:{n*1024}", "touch")
            if cfg.w2touch == 3:
                srd(k, sW2, pW2); srd_const(k, sW2, 1605632)
                k(f"s_lshl2_add_u32 s{sT}, s{sCP}, s{sCOL}\ns_mul_i32 s{sT}, s{sT}, 1792\nv_mul_u32_u24 v158, 28, v0\nbuffer_load_dword v159, v158, {S(sW2,4)}, s{sT} offen", "touch")
            k(f"{o}:")
    for i in (0, 1): k(f"v_perm_b32 v{AB+i}, v{AB+i}, v{AB+i}, s47")
    k(f"v_pk_mul_f32 {V(X1,2)}, {V(AB,2)}, {V(DT,2)}")
    k(f"v_pk_mul_f32 {V(X8,2)}, {V(X1,2)}, s[44:45] op_sel_hi:[1,0]\nv_pk_mul_f32 {V(X256,2)}, {V(X1,2)}, s[44:45] op_sel:[0,1] op_sel_hi:[1,1]")
    for x in (X8, X1, X256): k(f"v_fract_f32 v{x+1}, v{x+1}")
    for x, w in ((X8, W8), (X1, W1), (X256, W256)):
        k(f"v_exp_f32 v{x}, v{x}\nv_cos_f32 v{w}, v{x+1}\nv_sin_f32 v{w+1}, v{x+1}")
    for x, w in ((X8, W8), (X1, W1), (X256, W256)):
        k(f"v_pk_mul_f32 {V(w,2)}, {V(w,2)}, {V(x,2)} op_sel_hi:[1,0]")
    if cfg.kbar: k("s_barrier")
    stamp(k, cfg, 6, 3)
    put(W8, 1, False)
    prev = W8
    for b in range(2, 32):
        cmul(k, Z0, prev, W8, TT); prev = Z0; put(Z0, b, False)
    stamp(k, cfg, 7, 3)
    for s in range(8): k(f"ds_read_b128 {V(VF+4*s,4)}, v{KR} offset:{32*s}", "vf")
    role_wait("prm2", 4 if cfg.partner == 2 else 0)
    for i in range(2, 6): k(f"v_perm_b32 v{AB+i}, v{AB+i}, v{AB+i}, s47")
    cmul(k, Z1, BB, CB, TT)
    k(f"v_pk_mul_f32 {V(Z1,2)}, {V(Z1,2)}, {V(DT+2,2)} op_sel_hi:[1,0]")
    put(Z1, 0, True)
    cmul(k, W2, W1, W1, TT); cmul(k, W4, W2, W2, TT)
    prev = Z1
    for a in range(1, 21):
        if a in (8, 12, 14) or a >= 16: cmul(k, Z1, Z1, W256, TT); prev = Z1
        else: cmul(k, Z0, prev, W1 if a < 8 else (W2 if a < 12 else W4), TT); prev = Z0
        put(prev, a, True, a == 20)
    stamp(k, cfg, 8, 3)
    for s in range(8): k(f"ds_read_b128 {V(UF+4*s,4)}, v{KR} offset:{32*s}", f"uf{s}")
    kmf = lambda s: f"v_mfma_f32_32x32x16_bf16 {V(KA,16)}, {V(UF+4*s,4)}, {V(VF+4*s,4)}, {'0' if s == 0 else V(KA,16)}"
    c1 = chunk(cfg, 1)
    o = k.lab("c1"); sl = list(k.lg); sv = list(k.vm)
    k(f"s_cmp_eq_u32 s1, 0\ns_cbranch_scc1 {o}")
    k.vm = []
    for s in range(8):
        k.wait(lg=f"uf{s}")
        k(kmf(s))
        if s % 2 == 0: k(*c1[4 + s//2])
        if s == 1: srd(k, sAUX, pDBG); srd_const(k, sAUX, 256)
        if s == 3: k(f"v_mov_b32 v{VSY}, {L_SY}\nv_mov_b32 v{VONE}, 1\ns_movk_i32 s50, 128\ns_mov_b32 s51, 229376")
    stamp(k, cfg, 9, 3); stamp(k, cfg, 3); stamp(k, cfg, 7, 7)
    k("s_barrier")
    k.vmS = list(k.vm)
    k("s_branch L_S")
    k(f"{o}:"); k.lg = sl; k.vm = sv
    cap = Cap(); setup_G(cap, cfg, 1)
    for _ in range(12): k(cap.l.pop(0))
    for s in range(8):
        k.wait(lg=f"uf{s}")
        k(kmf(s))
        for _ in range(5): k(cap.l.pop(0))
    stamp(k, cfg, 9, 3)
    for _ in range(8): k(cap.l.pop(0))
    k(f"v_add_f32 v{KA}, v{KA}, v{DSK}")
    for r in (1, 2, 0): k(f"ds_write_b128 v{PA}, {V(KA+4*r,4)} offset:{1024*r}")
    while cap.l: k(cap.l.pop(0))
    if cfg.xtat[0] > 52: xt_read(); k.wait(lg="*"); xt_store()
    stamp(k, cfg, 5, 7)
    for n in range(4): k(*c1[n])
    stamp(k, cfg, 6, 7)
    k.wait(vm="c0")
    stamp(k, cfg, 7, 7)
    stamp(k, cfg, 3)
    stamp(k, cfg, 10, 3)
    k("s_barrier")
    stamp(k, cfg, 11, 3); stamp(k, cfg, 8, 7)

XD, WD, sXH = 150, 132, 0
ADV = (f"s_add_u32 s{sDO}, s{sDO}, 128\ns_add_u32 s{sDM}, s{sDM}, 229376\ns_cmp_ge_u32 s{sDM}, 1605632\ns_cselect_b32 s{sDT}, 896, 0\n"
       f"s_cselect_b32 s{sDT2}, 1605632, 0\ns_sub_u32 s{sDO}, s{sDO}, s{sDT}\ns_sub_u32 s{sDM}, s{sDM}, s{sDT2}")
def chunk(cfg, c, adv=True):
    out = []
    for vd, srdr, so, slots in ((XD, sX, sDO, L_XS), (WD, sW1, sDM, L_WS)):
        o = [f"buffer_load_dwordx4 v{vd+n}, {S(srdr,4)}, s{so} offen offset:{n*1024} lds" for n in range(4)]
        o[0] = f"s_add_u32 m0, s{sM}, {slots[c % 3]}\n" + o[0]
        out += o
    if adv and c == 1: out[-1] += "\n" + ADV
    if adv and 1 < c < 6:
        out[4] += f"\ns_cmp_ge_u32 s{sDM}, {6*229376}\ns_cselect_b32 s{sDT}, -768, s50\ns_cselect_b32 s{sDT2}, {-6*229376}, s51\ns_add_u32 s{sDO}, s{sDO}, s{sDT}"
        out[7] += f"\ns_add_u32 s{sDM}, s{sDM}, s{sDT2}"
    return [(g, f"c{c}") for g in out]

def setup_G(k, cfg, part):
    if part == 0:
        k(f"v_lshrrev_b32 v{gH}, 5, v0\nv_and_b32 v15, 31, v0")
        k(f"s_lshl_b32 s{sT}, s{sHH}, 13\ns_add_u32 s{sT}, s{sT}, {L_GB+L_XS[2]}")
        k(f"v_bfe_u32 v13, v0, 1, 3\nv_xor_b32 v12, v13, v{gH}\nv_lshlrev_b32 v12, 4, v12\nv_lshl_add_u32 v12, v15, 7, v12\nv_add_u32 v{gXA}, s{sT}, v12")
        for s in (1,2,3): k(f"v_xor_b32 v{gXA+s}, {32*s}, v{gXA}")
        k(f"v_lshrrev_b32 v50, 4, v0\nv_and_b32 v54, 1, v0\nv_lshlrev_b32 v53, 13, v13\nv_lshl_add_u32 v53, v50, 4, v53\nv_lshl_add_u32 v{XTS}, v54, 6, v53")
        k(f"v_bfe_u32 v10, v0, 2, 2\nv_and_b32 v11, 3, v0\nv_lshlrev_b32 v11, 3, v11\nv_and_b32 v12, 16, v0\nv_lshl_add_u32 v11, v12, 1, v11")
        k(f"s_and_b32 s{sT}, s3, 2\nv_xor_b32 v12, s{sT}, v10\nv_lshl_add_u32 v12, v12, 6, v11")
        k(f"v_lshl_add_u32 v13, v{gH}, 3, v10\nv_lshl_add_u32 v12, v13, 8, v12\nv_add_u32 v{gWA}, {L_GB+L_WS[0]}, v12\nv_xor_b32 v{gWA+1}, 64, v{gWA}\nv_add_u32 v{gWA+2}, {L_GB+L_WS[2]}, v12\nv_xor_b32 v{gWA+3}, 64, v{gWA+2}")
        k(f"s_lshl_b32 s{sT}, s{sXH}, 2\nv_lshl_add_u32 v52, v50, 3, v10")
        k(f"v_bfe_u32 v53, v0, 1, 1\nv_or_b32 v53, s{sT}, v53\nv_bfe_u32 v51, v52, 1, 3\nv_xor_b32 v53, v53, v51\nv_lshlrev_b32 v53, 4, v53")
        k(f"s_add_u32 s{sT}, s{sM}, {L_XS[0]}\nv_lshl_add_u32 v53, v52, 7, v53\nv_lshl_add_u32 v53, v54, 3, v53\nv_add_u32 v{XTA}, s{sT}, v53\nv_xor_b32 v{XTA+1}, 32, v{XTA}")
        k(f"s_lshl_b32 s{sT}, s{sG32}, 8\ns_add_u32 s{sT}, s{sT}, s{sRB}\ns_lshl2_add_u32 s{sT}, s{sT}, s{sCOL}\ns_lshl_b32 s{sT}, s{sT}, 7\ns_add_u32 s{sE1}, s{sT}, {XT}\ns_add_u32 s{sE2}, s{sE1}, 65536")
        k(f"s_mul_i32 s{sT}, s3, 4576\ns_cmp_ge_u32 s3, 2\ns_cselect_b32 s{sT}, {L_SY}, s{sT}\ns_sub_u32 s{sT2}, s{sE3}, 16")
        k(f"v_min_u32 v156, 29, v0\nv_lshl_add_u32 v156, v156, 4, s{sT}\nv_mov_b32 v155, s{sT2}\nv_cmp_eq_u32 vcc, 0, v{gH}\ns_nop 1\nv_cndmask_b32 v156, v155, v156, vcc\nds_write_b128 v156, {V(ZERO,4)}")
        return
    k(f"s_lshl_b32 s{sT}, s{sCS}, 4\ns_lshr_b32 s{sO2}, s{sO2}, s{sT}\ns_lshl_b32 s{sO2}, s{sO2}, 16\ns_cmp_eq_u32 s{sHH}, 0\ns_cselect_b32 s{sO2}, s{sO2}, 0")
    k(f"v_mov_b32 v154, s{sO2}\nv_cmp_eq_u32 vcc, 0, v0")
    srd(k, sW2, pW2); srd_const(k, sW2, 1605632)
    k(f"v_cndmask_b32 v{DSK}, 0, v154, vcc")
    w2_bases(k, cfg); w2_offsets(k, gW2D)
    k(f"v_lshl_add_u32 v13, v{gH}, 2, v10\nv_lshl_add_u32 v12, v13, 7, v11\nv_lshrrev_b32 v13, 1, v10\nv_lshl_add_u32 v12, v13, 6, v12")
    k(f"v_add_u32 v{gW2A}, s{sM}, v12\nv_xor_b32 v{gW2A+1}, 64, v{gW2A}\nv_add_u32 v{gW2A+2}, 65536, v{gW2A}\nv_add_u32 v{gW2A+3}, 65536, v{gW2A+1}")
    k(f"s_mul_i32 s{sT}, s{sCS}, 768\ns_add_u32 s{sT}, s{sT}, {L_GS}\nv_lshl_add_u32 v13, v15, 3, s{sT}\nv_cmp_eq_u32 vcc, 0, v{gH}")
    k(f"s_mul_i32 s{sT}, s{sHH}, 768\ns_add_u32 s{sT}, s{sT}, {L_GS+256}\nv_cndmask_b32 v{gAGA}, 0, v13, vcc\nv_lshl_add_u32 v{gSTA}, v15, 2, s{sT}")
    k(f"v_lshlrev_b32 v{gL16}, 4, v0\nv_mov_b32 v{gSY}, {L_SY}\nv_mov_b32 v{gONE}, 1\nv_lshl_add_u32 v10, s{sCOL}, 2, v{gSY}")
    k(f"s_lshl1_add_u32 s{sE0}, s{sRB}, s{sHH}\ns_lshl1_add_u32 s{sXO}, s{sFC}, s{sCS}")
    k(f"s_lshl1_add_u32 s{sWO}, s{sE0}, s{sCS}\ns_lshl1_add_u32 s{sWO}, s{sWO}, s{sXH}\ns_lshr_b32 s{sT}, s{sC}, {1 if cfg.aspread == 4 else 3}\ns_lshl2_add_u32 s{sWO}, s{sWO}, s{sT}\ns_lshl_b32 s{sWO}, s{sWO}, 7\ns_add_u32 s{sWO}, s{sWO}, {ACNT}")
    k(f"s_lshl_b32 s{sXO}, s{sXO}, 13\ns_mul_i32 s{sT}, s{sE0}, 229376\ns_add_u32 s{sXO}, s{sXO}, s{sT}\ns_add_u32 s{sXO}, s{sXO}, {ACT}\ns_add_u32 s{sE3}, s{sXO}, 4096")

def gather_addresses(k, part):
    if part == 1:
        k(f"s_mul_i32 s48, s{sCS}, {L_PCH//132*32}\ns_add_u32 s48, s48, {L_PART//132*32}")
        k(f"v_lshl_add_u32 v50, s{sHH}, 6, v0\ns_add_u32 s{sT}, s48, {255+384}\nv_sub_u32 v2, s{sT}, v50\nv_add_u32 v3, 1, v2\nv_cmp_eq_u32 vcc, 127, v50")
        k(f"v_lshlrev_b32 v50, 3, v50\nv_sub_u32 v50, 1023, v50\nv_subbrev_co_u32 v4, vcc, 0, v2, vcc")
        for e in range(3): k(f"v_lshrrev_b32 v5, 5, v{2+e}\nv_add_lshl_u32 v{sGA+11+e}, v{2+e}, v5, 2")
        k(f"s_sub_u32 s{sT}, s48, 0x4300")
        k(f"v_cvt_f32_i32 v51, v50\nv_add_u32 v50, s{sT}, v50\ns_sub_u32 s{sT2}, s{sT}, 1\nv_mov_b32 v52, s{sT2}\ns_add_u32 s{sT}, s{sT}, 128\ns_mov_b32 s{sT2}, {fbits(128.0)}")
    for n in {0: [], 1: [0, 2], 2: [4, 6, 8, 10]}[part]:
        es = (0, 1) if n < 10 else (0,)
        for e in es:
            k(f"v_subrev_f32 v{2+e}, {fbits(float(n+e))}, v51\nv_max_f32 v{2+e}, s{sT2}, v{2+e}\nv_subrev_u32 v{4+e}, {n+e}, v50\nv_med3_i32 v{4+e}, v{4+e}, v52, s{sT}")
        k(f"v_cvt_pk_bf16_f32 v2, v2, v3")
        for e in es:
            k(f"v_add_u32_sdwa v{4+e}, v{4+e}, v2 dst_sel:DWORD dst_unused:UNUSED_PAD src0_sel:DWORD src1_sel:WORD_{e}")
            k(f"v_lshrrev_b32 v3, 5, v{4+e}\nv_add_lshl_u32 v{sGA+n+e}, v{4+e}, v3, 2")
    if part == 0:
        k(f"v_and_b32 v50, 31, v0\nv_lshrrev_b32 v51, 5, v0")
        k(f"v_lshlrev_b32 v2, 3, v50\nv_lshl_add_u32 v2, v51, 2, v2\nv_sub_u32 v3, 2, v51\nv_lshlrev_b32 v3, v3, v50\nv_lshl_add_u32 v3, v51, 7, v3\nv_add_u32 v3, 256, v3")
        k(f"v_lshl_add_u32 v4, v51, 7, v50\nv_add_u32 v4, 512, v4")
        for e, d in ((0, 0), (1, 1), (2, 3)): k(f"v_lshrrev_b32 v5, 5, v{2+e}\nv_add_u32 v5, v5, v{2+e}\nv_lshl_add_u32 v{sPW+d}, v5, 2, s{sE3}")
        k(f"v_lshl_add_u32 v{sPW+2}, v51, 8, v{sPW+1}")

RS = [0]
JSETS = (([7, 6, 0], [5, 4, 3, 2, 1]), ([7, 6, 1], [5, 4, 3, 2, 0]), ([7, 6, 2], [5, 4, 1, 0, 3]))
vXC, vST, vXW, vODD, vGA, vGW, vSC = 26, 27, 28, 29, 36, 37, 38
def S_addresses(k, part):
    sWV = sCOL
    if part < 3: gather_addresses(k, part)
    if part == 3:
        k(f"s_mul_i32 s{sT}, s{sCS}, 16640\ns_add_u32 s{sT}, s{sT}, {L_KC}\ns_lshl_b32 s{sT2}, s{sHH}, 10\ns_add_u32 s{sT2}, s{sT2}, s{sT}\nv_lshl_add_u32 v{EW}, v0, 4, s{sT2}")
        k(f"v_bfe_u32 v2, v0, 1, 2\nv_mul_u32_u24 v2, 4160, v2\nv_and_b32 v{vODD}, 1, v0\nv_lshl_add_u32 v2, v{vODD}, 4, v2\nv_add_u32 v{TZ}, s{sT}, v2")
        k(f"s_lshr_b32 s{sT}, s{sCP}, 4\ns_lshl_b32 s{sT}, s{sT}, 2\ns_add_u32 s{sT}, s{sT}, {C_XT}\ns_lshl_b32 s{sT}, s{sT}, 7\nv_and_b32 v2, 3, v0\nv_lshl_add_u32 v{vXC}, v2, 7, s{sT}")
        k(f"s_lshl_b32 s{sT}, s{sCP}, 13\ns_add_u32 s{sT}, s{sT}, {XT}\nv_lshl_add_u32 v2, s{sWV}, 6, v0\nv_and_b32 v3, 0xfc, v2\nv_add_u32 v3, v3, v2\nv_lshl_add_u32 v{vXW}, v3, 4, s{sT}\nv_lshlrev_b32 v{vST}, 4, v2\nv_add_u32 v{UW}, {L_U+480}, v{vST}")
        k(f"s_mov_b32 s{sXO}, {STATS}\ns_mov_b32 s{sWO}, {STATS+4096}")
    if part == 4:
        k(f"s_lshl_b32 s{sT}, s{sFC}, 2\ns_add_u32 s{sT}, s{sT}, s{sWV}\ns_lshl_b32 s{sT}, s{sT}, 8\ns_add_u32 s{sT}, s{sT}, {AUGW}\nv_lshl_add_u32 v3, v0, 4, s{sT}")
        k(f"s_lshl_b32 s{sT}, s{sRB}, 2\ns_add_u32 s{sT}, s{sT}, s{sWV}\ns_lshl_b32 s{sT}, s{sT}, 6\ns_add_u32 s{sT}, s{sT}, {STATS}\nv_lshl_add_u32 v4, v{vODD}, 12, s{sT}")
        k(f"v_bfe_u32 v2, v0, 1, 2\nv_lshl_add_u32 v4, v2, 4, v4\nv_cmp_gt_u32 vcc, 16, v0\ns_mul_i32 s{sE0}, s{sWV}, 384\ns_add_u32 s{sE0}, s{sE0}, {L_GS}\nv_cndmask_b32 v{vGA}, v4, v3, vcc")
        k(f"v_min_u32 v2, 23, v0\nv_lshl_add_u32 v{vGW}, v2, 4, s{sE0}")
        w2_offsets(k, sW2D)
    if part == 7:
        k(f"v_bfe_u32 v53, v0, 2, 2\nv_lshlrev_b32 v53, 7, v53\nv_and_b32 v54, 3, v0\nv_lshl_add_u32 v53, v54, 4, v53\nv_lshrrev_b32 v54, 5, v0\nv_lshl_add_u32 v53, v54, 6, v53")
        k(f"v_bfe_u32 v54, v0, 4, 1\nv_lshl_add_u32 v54, v54, 9, v53")
        k(f"s_lshl_b32 s{sO1}, s{sCP}, 1\ns_add_u32 s{sO1}, s{sO1}, s{sCS}")
        k(f"s_lshr_b32 s{sT}, s{sO1}, 6\ns_lshl_b32 s{sT}, s{sT}, 1\ns_add_u32 s{sT}, s{sT}, s{sHH}\ns_lshl_b32 s{sT}, s{sT}, 2\ns_bfe_u32 s{sT2}, s{sO1}, 0x20004")
        k(f"s_add_u32 s{sT}, s{sT}, s{sT2}\ns_add_u32 s{sT}, s{sT}, {C_ST}\ns_lshl_b32 s{sO2}, s{sT}, 7")
        k(f"s_lshl_b32 s{sO1}, s{sO1}, 12\ns_add_u32 s{sO1}, s{sO1}, {ST}")
    if part == 6:
        srd(k, sW2, pW2); srd_const(k, sW2, 1605632); srd(k, sOUT, pOUT); srd_const(k, sOUT, 1835008)
        w2_bases(k, None)
    if part == 5:
        k(f"s_mul_i32 s{sT}, s{sCS}, 16640\ns_add_u32 s{sT}, s{sT}, {L_KC+24}" + (f"\ns_lshl_b32 s{sT2}, s{sHH}, 8\ns_sub_u32 s{sT}, s{sT}, s{sT2}" if RS[0] else ""))
        k(f"v_and_b32 v2, 3, v0\nv_sub_u32 v2, 3, v2\nv_mul_u32_u24 v2, 4160, v2\nv_bfe_u32 v3, v0, 2, 2\nv_lshlrev_b32 v3, 3, v3\nv_sub_u32 v2, v2, v3")
        k(f"v_lshrrev_b32 v3, 4, v0\nv_lshl_add_u32 v2, v3, 4, v2\nv_add_u32 v{CA}, s{sT}, v2")
        k(f"s_mul_i32 s{sT}, s{sCS}, 4576\ns_add_u32 s{sT}, s{sT}, {L_U+256*RS[0]}" + (f"\ns_sub_u32 s{sT}, s{sT}, s{sT2}" if RS[0] else ""))
        k(f"v_and_b32 v2, 15, v0\nv_lshlrev_b32 v2, 5, v2\nv_lshl_add_u32 v2, v3, 4, v2\nv_add_u32 v{CBA}, s{sT}, v2")
        k(f"v_lshl_add_u32 v{vSC}, s{sWV}, 2, v{VSY}")

def gen_G(k, cfg):
    ACC, W2R, RING = 16, 80, 192
    FS = [100, 116, 132]
    W2D, W2A, L16, XA, WA, AUG, STT = gW2D, gW2A, gL16, gXA, gWA, gAUG, gSTT
    RC, RL, T, P = 240, 244, 248, 208
    assert cfg.depth <= 6
    k("s_setprio 2")
    stamp(k, cfg, 1, 2); cstamp(k, cfg, 10)
    def w2read(step, dst_step):
        b = step // 2; loc = LOC[b % 7]*16384 + (step & 1)*2048; hi = 2 if loc >= 65536 else 0; loc -= hi*32768
        out = []
        for d2 in (0, 1):
            for rd in (0, 1):
                out.append(f"ds_read_b64_tr_b16 {V(W2R + dst_step*8 + d2*4 + rd*2, 2)}, v{W2A+hi+d2} offset:{loc + rd*1024}")
        return out
    def reads(i):
        c, s, F = i // 4, i % 4, FS[i % 3]; sl = c % 3
        wa, wo = (WA, L_WS[sl] - L_WS[0]) if sl < 2 else (WA + 2, 0)
        w = lambda ft: [f"ds_read_b64_tr_b16 {V(F+8+4*ft+2*rd,2)}, v{wa+ft} offset:{wo + s*4096 + rd*1024}" for rd in (0, 1)]
        x = [f"ds_read_b128 {V(F+4*tt,4)}, v{XA+s} offset:{L_XS[sl] - L_XS[2] + tt*4096}" for tt in (0, 1)]
        return w(0) + x + w(1)
    dq = []
    cap = Cap()
    for i in (0, 1):
        for r in reads(i): k(r, f"f{i}")
    for i in range(28):
        F = FS[i % 3]
        rd = reads(i+2) if i + 2 < 28 else []
        edge = rd and (i + 2) % 4 == 0
        gaps = [[], rd[:3], rd[3:], []] if edge else [rd[:2], rd[2:4], rd[4:], []]
        k.wait(lg=f"f{i}")
        for m in range(4):
            ft, tt = m >> 1, m & 1; a = ACC + 16*m
            k(f"v_mfma_f32_32x32x16_bf16 {V(a,16)}, {V(F+8+4*ft,4)}, {V(F+4*tt,4)}, {'0' if i == 0 else V(a,16)}")
            if edge and m == 1:
                c = (i+2)//4
                if c == 1: stamp(k, cfg, 9, 7)
                k.wait(vm={1: "c1", cfg.xtbar: "*"}.get(c), lg="*")
                if c == 1: stamp(k, cfg, 10, 7)
                if not cfg.x_nobar: k("s_barrier")
                stamp(k, cfg, 1 + c, 2)
                if c == 1: stamp(k, cfg, 11, 7)
                dq += [x for b in (2*c-10, 2*c-9) if int(cfg.sblk) <= b < cfg.gblk and not cfg.sall for x in w2dma(ORD[b], W2D)]
            if dq and i >= cfg.w2from and m in (3, 0 if (edge or i >= 26) else 1): g, t = dq.pop(0); k(g, t)
            for r in gaps[m]: k(r, f"f{i+2}")
            if m == 3:
                for _ in range(4):
                    if cap.l: k(cap.l.pop(0))
                assert i < 18 or not cap.l
            if i == 26 and m == 1:
                k.wait(lg="*"); k("s_barrier")
                if cfg.sblk and not cfg.s45: dq += w2dma(ORD[4], W2D)
                for tt in (0, 1): k(f"ds_read_b32 v{STT+tt}, v{gSTA} offset:{384*tt}", "st")
            if i == 26 and m == 2:
                for ft in (0, 1): k(f"ds_read_b64 {V(AUG+4+2*ft,2)}, v{gAGA} offset:{384*ft}", "ag")
            if i == 27 and m == 1: k.wait(lg="*")
            if i == 27 and m in (1, 2):
                tt = m - 1
                k(f"s_mov_b32 s{sT}, 0x01000100\nv_and_b32 v11, 0xffff0000, v{STT+tt}\nv_rcp_f32 v{RC+2*tt}, v11")
                k(f"v_perm_b32 v{AUG+2*tt}, v{STT+tt}, v{STT+tt}, s{sT}\nv_lshrrev_b32 v{AUG+2*tt+1}, 16, v{STT+tt}")
            if i == 27 and m == 3:
                for tt in (0, 1): k(f"v_mul_f32 v{RC+2*tt+1}, -2.0, v{RC+2*tt}\nv_mul_f32 v{RL+tt}, {fbits(LOG2E)}, v{RC+2*tt}")
    for m in range(4):
        ft, tt = m >> 1, m & 1; a = ACC + 16*m
        k(f"v_mfma_f32_32x32x8_bf16 {V(a,16)}, {V(AUG+4+2*ft,2)}, {V(AUG+2*tt,2)}, {V(a,16)}")
        if dq: g, t = dq.pop(0); k(g, t)
    assert not dq
    stamp(k, cfg, 4); stamp(k, cfg, 8, 2); cstamp(k, cfg, 11)
    stq = []
    for g in range(8):
        if (cfg.mbar == 2 and 2*g == cfg.b8at) or (g and 2*g == cfg.pbar2): k("s_barrier")
        stamp(k, cfg, 1 + g, 6)
        m, sp = g >> 1, g & 1; ft, tt = m >> 1, m & 1; a = ACC + 16*m + 8*sp; p = P + 4*(g & 1)
        for i in range(4): k(f"v_pk_mul_f32 {V(T+2*i,2)}, {V(a+2*i,2)}, {V(RL,2)} op_sel:[0,{tt}] op_sel_hi:[1,{tt}]")
        for i in range(8): k(f"v_exp_f32 v{T+i}, v{T+i}")
        for i in range(4): k(f"v_pk_add_f32 {V(T+2*i,2)}, {V(T+2*i,2)}, 1.0 op_sel_hi:[1,0]")
        for i in range(4): k(f"v_pk_fma_f32 {V(T+2*i,2)}, {V(T+2*i,2)}, {V(T+2*i,2)}, 1.0 op_sel_hi:[1,1,0]")
        if (cfg.mbar == 2 and 2*g + 1 == cfg.b8at) or 2*g + 1 == cfg.pbar2: k("s_barrier")
        for i in range(8): k(f"v_rcp_f32 v{T+i}, v{T+i}")
        for i in range(4): k(f"v_pk_fma_f32 {V(T+2*i,2)}, {V(T+2*i,2)}, {V(RC+2*tt,2)}, {V(RC+2*tt,2)} op_sel:[0,1,0] op_sel_hi:[1,1,0]")
        for i in range(4): k(f"v_pk_mul_f32 {V(T+2*i,2)}, {V(T+2*i,2)}, {V(a+2*i,2)}")
        if g == 7 and cfg.mbar: k("s_barrier")
        if g == 7 and not cfg.mbar:
            lds_signal(k, 10, SY_M, gONE)
            if cfg.sblk: k(f"ds_read_b32 v11, v{gSY} offset:{SY_U}", "w2r1")
        p = RING + 4*(2*(2*ft + sp) + tt)
        for i in range(4): k(f"v_cvt_pk_bf16_f32 v{p+i}, v{T+2*i}, v{T+2*i+1}")
        stq.append(f"buffer_store_dwordx4 {V(p,4)}, v{L16}, {S(sWS,4)}, s{sXO if ft == 0 else sE3} offen offset:{sp*2048 + tt*1024} sc1")
        if g in cfg.stat:
            while stq: k(stq.pop(0), "act")
    stamp(k, cfg, 5); stamp(k, cfg, 9, 6)
    k("s_setprio 3")
    k.wait(vm=f"w2_{ORD[3 if cfg.s45 else 4]}" if cfg.sblk else "w2_3")
    def rdblk(b):
        for s in (0, 1):
            for r in w2read(2*b+s, 2*b+s): k(r, f"w2r{b}")
    sSTO = sE0
    k(f"s_lshl_b32 s{sSTO}, s{sRB}, 1\ns_and_b32 s{sT}, s{sXCD}, 1\ns_add_u32 s{sSTO}, s{sSTO}, s{sT}")
    k(f"s_lshl_b32 s{sE1}, s{sSTO}, 2\ns_add_u32 s{sE1}, s{sE1}, s3\ns_lshl_b32 s{sE1}, s{sE1}, 9\ns_add_u32 s{sE1}, s{sE1}, {ACNT}\ns_add_u32 s48, s{pWS}, s{sE1}\ns_addc_u32 s49, s{pWS+1}, 0")
    apoll = "\n".join(f"s_load_dword s{52+i}, s[48:49], {128*i} glc" for i in range(cfg.aspread))
    asum = "".join(f"s_add_u32 s52, s52, s{52+i}\n" for i in range(1, cfg.aspread))
    blk = lambda b: [(r, f"w2r{b}") for s in (0, 1) for r in w2read(2*b+s, 2*b+s)]
    assert cfg.gblk == 4
    order = [4, 5, 7, 6, 8, 9, 10, 11, 12, 13]
    rq = blk(0) + blk(1) + blk(2) + blk(3)
    if cfg.sblk: order = [6, 7, 8, 9, 10, 11, 12, 13]; rq += blk(4) + blk(5)
    for n, b in enumerate(order):
        if b == 7 and not cfg.sblk: k(f"ds_read_b32 v11, v{gSY} offset:{SY_U}", "w2r1")
        if b == 6 and not cfg.mbar:
            k.wait(lg="w2r1")
            o = k.lab("wl"); sl = list(k.lg)
            k(f"v_readfirstlane_b32 s{sT}, v11\ns_cmp_ge_u32 s{sT}, 4\ns_cbranch_scc1 {o}")
            lds_spin(k, gSY, SY_U, 4, 11, sT, sSP)
            k(f"{o}:"); k.lg = sl
        if b in (9, 10, 11) and (b == 11 or not cfg.sblk):
            k.wait(vm=f"w2_{b-5}"); rq += blk(b-5)
        if b == 12: k(f"ds_read_b32 v11, v{gSY}"); k.wait(lg="w2r6")
        if b >= 7: k.wait(lg=f"w2r{b-7}")
        for g, t in w2dma(b, W2D):
            k(g, t)
            for _ in range(4 if (cfg.sblk and n == 0) else 2):
                if rq: k(*rq.pop(0))
        if n == cfg.flagat:
            k.wait(vm="act")
            s_inc(k, pWS, f"s{sWO}", sT2)
            stamp(k, cfg, 6)
        if n == cfg.pollat: k(apoll)
    assert not rq
    assert order[cfg.pollat] >= 12
    k(f"s_and_b32 s{sT}, s3, 1\ns_mul_i32 s{sT}, s{sT}, 14\ns_add_u32 s{sT}, s{sT}, s{sCS}\ns_lshl_b32 s{sT}, s{sT}, 13\ns_mul_i32 s{sA2}, s{sSTO}, 229376\ns_add_u32 s{sA2}, s{sA2}, s{sT}\ns_add_u32 s{sA2}, s{sA2}, {ACT}")
    piece_bases(k, 16384)
    stamp(k, cfg, 7)
    l = k.lab("ap"); o = k.lab("ar")
    k(f"s_mov_b32 s{sSP}, 0\n{l}:")
    k.wait(lg="*")
    k(f"{asum}s_add_u32 s{sSP}, s{sSP}, 1\ns_cmp_ge_u32 s52, 7\ns_cbranch_scc1 {o}\ns_cmp_gt_u32 s{sSP}, {SPIN}\ns_cbranch_scc1 {o}")
    if cfg.actsleep: k(f"s_sleep {cfg.actsleep}")
    k(f"{apoll}\ns_branch {l}\n{o}:")
    stamp(k, cfg, 8)
    k(f"s_setprio {cfg.g2prio}")
    D = 2*cfg.depth; n0 = 28 - cfg.tailn
    seq = [(s, tt) for s in range(n0) for tt in (0, 1)] + [(s, tt) for tt in (0, 1) for s in range(n0, 28)]
    cur = [None]
    def actload(j):
        s, tt = seq[j]; out = []
        if cur[0] != s//2:
            cur[0] = s//2
            out.append(piece(s//4, 16384, (s & 2)*2048, sT) + (f"\ns_and_b32 s{sT}, s{sT}, 0xfffff" if cfg.x_acthit else ""))
        out.append(f"buffer_load_dwordx4 {V(RING + (j % D)*4, 4)}, v{L16}, {S(sW2 if cfg.x_acthit else sWS,4)}, s{sT} offen offset:{(s & 1)*2048 + tt*1024} {cfg.actmod}")
        return "\n".join(out)
    stamp(k, cfg, 1, 5)
    o = k.lab("own")
    if cfg.own: k(f"s_xor_b32 s{sT}, s3, s{sXCD}\ns_bitcmp0_b32 s{sT}, 0\ns_cbranch_scc1 {o}")
    k(f"s_setprio {cfg.nprio}")
    for j in range(D):
        if j == 8: k(f"{o}:")
        k(actload(j), f"a{j}")
    stamp(k, cfg, 2, 5)
    DA = [1, 2, 3, 4, 10, 11, 14, 15]
    k(f"v_and_b32 v14, 15, v0\nv_lshrrev_b32 v15, 5, v0\nv_xor_b32 v15, v15, v14\nv_lshlrev_b32 v15, 4, v15\nv_lshl_add_u32 v15, v14, 8, v15")
    k(f"v_bfe_u32 v14, v0, 4, 1\nv_lshl_add_u32 v15, v14, 14, v15\nv_add_u32 v{DA[0]}, s{sM}, v15")
    for i in range(1, 8): k(f"v_xor_b32 v{DA[i]}, {32*i}, v{DA[0]}")
    dump = lambda tt, d2s: [f"ds_write_b128 v{DA[4*d2+jj]}, {V(ACC+16*(2*d2+tt)+4*jj,4)} offset:{tt*32768}" for d2 in d2s for jj in range(4)]
    jlast0 = max(j for j in range(56) if seq[j][1] == 0)
    assert 14 + cfg.rdlag < n0 and cfg.tailq <= min(D, cfg.tailn)
    q0 = 56 - cfg.tailq
    ops = [(j, d2) for j in range(q0) for d2 in (0, 1)] + [(j, d2) for d2 in (0, 1) for j in range(q0, 56)]
    d0 = dump(0, (0, 1)); d1 = dump(1, (0, 1)); i0 = ops.index((jlast0, 1)); i1 = ops.index((55, 0)); sig = [False]
    for i, (j, d2) in enumerate(ops):
        s, tt = seq[j]
        if d2 == 0:
            k.wait(vm=f"a{j}", lg=f"r{s}" if s >= 14 else None)
            if j % 8 == 0: stamp(k, cfg, 3 + j//8, 5)
        w = W2R + (s % 14)*8; x = RING + (j % D)*4; a = ACC + 16*(2*d2 + tt)
        rs = s - cfg.rdlag
        k(f"v_mfma_f32_32x32x16_bf16 {V(a,16)}, {V(w+4*d2,4)}, {V(x,4)}, {'0' if s == 0 else V(a,16)}")
        if d2 == 0 and j >= 1 and j - 1 + D < 56: k(actload(j - 1 + D), f"a{j-1+D}")
        if d2 == 1 and 1 <= rs <= 14: k("\n".join(w2read(rs + 13, rs - 1)[2*tt:2*tt+2]), f"r{rs+13}")
        if i >= i0 + 2 and d0 and ((i - i0) % 2 == 0 or len(d0) >= len(ops) - i): k(d0.pop(0))
        elif not d0 and not sig[0]: lds_signal(k, gSY, SY_GS, gONE); sig[0] = True
        elif cfg.tailq and sig[0] and i >= i1 + 2 and len(d1) > 4 and (i - i1) % 2 == 0: k(d1.pop(0))
    while d0: k(d0.pop(0))
    if not sig[0]: lds_signal(k, gSY, SY_GS, gONE)
    stamp(k, cfg, 9); stamp(k, cfg, 10, 5)
    for x in d1: k(x)
    k.wait(lg="*")
    stamp(k, cfg, 11, 5)
    k("s_barrier")
    stamp(k, cfg, 10)
    prof_dump(k, cfg, role="G")
    k("s_endpgm")

class Pacer:
    def __init__(self, k, pace): self.k, self.pace, self.q, self.n = k, pace, [], 0
    def __call__(self, text, tag=None):
        lines = text.split("\n")
        for i, ln in enumerate(lines):
            self.k(ln, tag)
            if i + 1 < len(lines) and lines[i+1].startswith(("s_cselect", "s_addc", "s_cbranch")): continue
            self.n += 11 if "ds_write_b128" in ln else 5 if "ds_write" in ln else 2 if ("ds_read" in ln or "v_rcp" in ln) else 1
            if self.q and self.n >= self.pace: self.pop()
    def pop(self):
        g, t = self.q.pop(0); self.k(g, t); self.n = 0
    def flush(self):
        while self.q: self.pop()

def gen_S(k, cfg, vm0):
    k.reset(); k.vm = list(k.vmS)
    k("L_S:")
    sWV, GA = sCOL, sGA
    p = Pacer(k, cfg.pace)
    def bar(c, lg="*"):
        p.flush()
        if c == 1: stamp(k, cfg, 9, 7)
        k.wait(vm=f"c{c}", lg=lg)
        if c == 1: stamp(k, cfg, 10, 7)
        stamp(k, cfg, 1+c, 2)
        if not cfg.x_nobar: k("s_barrier")
    G0, XV, CP = 160, 192, 208
    SV, XW, CN, MM, RR, XF, GS = 100, 108, 116, 120, 128, 136, 144
    def copies(x, off, sgs):
        for sg in sgs:
            c = CP + 4*sg
            for jj in range(4): p(f"v_cvt_pk_bf16_f32 v{c+jj}, v{x[sg+2*jj]}, v{x[sg+2*jj+1]}")
            p(f"ds_write_b128 v{EW}, {V(c,4)} offset:{sg*4160 + off}")
    k("s_setprio 0")
    k(CLRL, "clr")
    w2t = f"s_lshl2_add_u32 s{sT}, s{sCP}, s{sCOL}\ns_mul_i32 s{sT}, s{sT}, 1792\nv_mul_u32_u24 v62, 28, v0\nbuffer_load_dword v62, v62, {S(sW2,4)}, s{sT} offen"
    if cfg.w2touch == 1: assert 6 in cfg.early; k(w2t)
    held = []
    late = lambda part: S_addresses(p, part) if part not in cfg.early else None
    def ring(c):
        ch = chunk(cfg, c); p.q = held + ch[:cfg.r2cut]; held[:] = ch[cfg.r2cut:]; p.pop()
    stl = f"buffer_load_dwordx4 {V(SV,4)}, v{vST}, {S(sWS,4)}, s{sXO} offen sc1\nbuffer_load_dwordx4 {V(SV+4,4)}, v{vST}, {S(sWS,4)}, s{sWO} offen sc1"
    xcl = f"buffer_load_dword v{CN}, v{vXC}, {S(sWS,4)}, 0 offen sc1"
    gsl = f"s_mov_b32 m0, s{sE0}\ns_mov_b64 exec, 0xffffff\nbuffer_load_dwordx4 v{vGA}, {S(sWS,4)}, 0 offen sc1 lds\ns_mov_b64 exec, -1"
    pw = [f"ds_write2_b32 v{sPW+a}, v{KA+r}, v{KA+r+1} offset0:{o0} offset1:{o1}" for a, r, o0, o1 in
          ((0, 0, 0, 1), (0, 2, 2, 3), (1, 4, 0, 1), (2, 6, 2, 3), (3, 8, 0, 33), (3, 10, 66, 99))]
    ring(2)
    p(f"v_lshrrev_b32 v50, 1, v0\nv_and_b32 v52, 1, v0\nv_lshl_add_u32 v52, s{sWV}, 1, v52\nv_bfe_u32 v51, v0, 2, 3\nv_xor_b32 v51, v51, v52\nv_lshlrev_b32 v51, 4, v51\nv_lshl_add_u32 v51, v50, 7, v51")
    p(f"s_and_b32 s{sT}, s{sXCD}, 1\ns_lshl_b32 s{sT}, s{sT}, 13\ns_add_u32 s{sT}, s{sT}, {L_GB+L_XS[0]}\nv_add_u32 v51, s{sT}, v51")
    p(f"ds_read_b128 v[248:251], v51\nds_read_b128 v[252:255], v51 offset:4096")
    late(6); late(3)
    if cfg.w2touch == 2: p.flush(); k(w2t)
    bar(1)
    def xtflag():
        v_poll(k, CLRL, 49, 4, sSP, 2, first=False, tag="clr")
        o = k.lab("xf")
        k(f"s_lshl_b32 s{sT}, s{sG32}, 2\ns_add_u32 s{sT}, s{sT}, s{sR}\ns_add_u32 s{sT}, s{sT}, {C_XT}\ns_lshl_b32 s{sT}, s{sT}, 7\ns_cmp_lg_u32 s{sCOL}, 0\ns_cbranch_scc1 {o}")
        s_inc(k, pWS, f"s{sT}", sE2)
        k(f"{o}:")
    ring(3)
    if cfg.xtbar == 1: p.pop(); xtflag(); p.pop(); p.pop()
    late(0); late(5)
    for r in range(3): p(f"ds_read_b128 {V(G0+4*r,4)}, v{PA} offset:{1024*r}", "raw")
    bar(2, None)
    if cfg.xtbar == 2: xtflag()
    ring(4)
    late(1)
    bar(3, None)
    ring(5)
    late(2)
    bar(4, None)
    stamp(k, cfg, 4)
    if cfg.r2cut == 8: k(xcl, "xc")
    ring(6)
    for _ in range(8 - cfg.r2cut - 1): p.pop()
    if cfg.r2cut < 8: k(xcl, "xc")
    k.wait(lg="*")
    for i in range(12): p(f"v_add_f32 v{KA+i}, v{KA+i}, v{G0+i}")
    late(4)
    bar(5, None)
    p.q = list(held); p.flush()
    v_poll(k, xcl, CN, 4, sSP, 2, first=False, tag="xc")
    k(stl, "st")
    for e in (0, 1): k(f"buffer_load_dwordx4 {V(XW+4*e,4)}, v{vXW}, {S(sWS,4)}, 0 offen offset:{64*e} sc1", "xw")
    k(gsl, "gs")
    if cfg.sall:
        n1, n2 = cfg.sall
        assert n1 <= 8 and n2 % 4 == 0 and n2 <= 16
        wq = [x for b in range(6) for x in w2dma(ORD[b], sW2D)]
        p.q = wq[:n1]
        bar(6, None)
        p.q = wq[n1:n2]; p.pop()
        late(7); p.flush()
    else:
        p.q = w2dma(ORD[0], sW2D); p.pop()
        late(7)
        bar(6, None)
    stamp(k, cfg, 5)
    k.wait(vm="gs")
    k(f"s_mov_b32 s{sSP}, 0")
    l = k.lab("xp"); o = k.lab("xpo")
    k(f"{l}:")
    k(f"ds_read_b128 {V(GS,4)}, v{vGW}")
    k(f"v_min_u32 v{CN}, v{SV}, v{SV+1}\ns_add_u32 s{sSP}, s{sSP}, 1")
    for i in range(1, 4): k(f"v_min3_u32 v{CN}, v{CN}, v{SV+2*i}, v{SV+2*i+1}")
    for i in range(8): k(f"v_and_b32 v{RR+i}, 0xffff0000, v{SV+i}")
    k.wait(lg="*")
    k(f"v_min3_u32 v{CN}, v{CN}, v{GS+1}, v{GS+3}")
    k(f"v_cmp_eq_u32 vcc, 0, v{CN}\ns_cmp_gt_u32 s{sSP}, {SPIN}\ns_cbranch_scc1 {o}\ns_cbranch_vccz {o}")
    sv = list(k.vm); k(stl); k(gsl); k("s_waitcnt vmcnt(0)"); k.vm = sv
    k(f"s_branch {l}")
    k(f"{o}:")
    stamp(k, cfg, 8, 2)
    k("s_barrier")
    stamp(k, cfg, 1, 6)
    if cfg.sall: p.q = wq[n2:]; p.pace = cfg.pace2; p.pop()
    for i in range(8): p(f"v_rcp_f32 v{RR+i}, v{RR+i}\nv_lshlrev_b32 v{MM+i}, 16, v{SV+i}")
    for i in range(8): p(f"v_mul_f32 v{MM+i}, v{MM+i}, v{RR+i}")
    for ch in (0, 1):
        if ch: k("s_setprio 3")
        for i in range(4): p(f"v_lshlrev_b32 v{XF+2*i}, 16, v{XW+4*ch+i}\nv_and_b32 v{XF+2*i+1}, 0xffff0000, v{XW+4*ch+i}")
        for i in range(8): p(f"v_fma_f32 v{XF+i}, v{XF+i}, v{RR+i}, -v{MM+i}")
        for i in range(4): p(f"v_cvt_pk_bf16_f32 v{XW+4*ch+i}, v{XF+2*i}, v{XF+2*i+1}")
    stamp(k, cfg, 9, 2); stamp(k, cfg, 2, 6)
    k(f"v_lshl_add_u32 v55, s{sCS}, 2, v{VSY}")
    p.flush()
    if cfg.sblk and not cfg.sall:
        for g, t in (w2dma(ORD[4], sW2D) if cfg.s45 else []) + w2dma(ORD[5], sW2D): k(g, t)
    stamp(k, cfg, 3, 6)
    k("\n".join(pw))
    if not cfg.pbar2: lds_signal(k, 55, SY_PAIR, VONE)
    stamp(k, cfg, 4, 6)
    stamp(k, cfg, 5, 6)
    if cfg.pbar2: assert cfg.split == 'J'; k.wait(lg="*"); k("s_barrier")
    else: lds_spin(k, 55, SY_PAIR, 2, 50, sT, sSP)
    stamp(k, cfg, 6, 6)
    for i in list(range(11, 14)) + list(range(11)): k(f"ds_read2st64_b32 {V(G0+2*i,2)}, v{GA+i} offset1:13", "ga" if i > 10 else "gb")
    for ch in (0, 1): k(f"ds_write_b128 v{UW}, {V(XW+4*ch,4)} offset:{4576*ch}")
    k(f"ds_write_b128 v{TZ}, {V(ZERO,4)} offset:4096")
    for ps, x in enumerate(([XV+12]*3 + [XV+14] + [XV+11]*6 + [XV+13], [XV+i for i in range(11)])):
        k.wait(lg="gb" if ps else "ga")
        stamp(k, cfg, 7 + ps, 6)
        for i in (range(11) if ps else range(11, 14)): k(f"v_add_f32 v{XV+i}, v{G0+2*i}, v{G0+2*i+1}")
        if ps == 0: k(f"v_cmp_eq_u32 vcc, 1, v{vODD}\nv_cndmask_b32 v{XV+14}, v{XV+12}, v{XV+11}, vcc")
        for sg in range(4):
            for jj in range(4): k(f"v_cvt_pk_bf16_f32 v{CP+16*ps+4*sg+jj}, v{x[sg+2*jj]}, v{x[sg+2*jj+1]}")
            k(f"ds_write_b128 v{EW}, {V(CP+16*ps+4*sg,4)} offset:{sg*4160 + ps*2048}")
    stamp(k, cfg, 9, 6)
    if cfg.mbar:
        k.wait(vm="*", lg="*"); k("s_barrier")
    else:
        k.wait(vm="*")
        lds_signal(k, VSY, SY_U, VONE)
        lds_spin(k, VSY, SY_U, 4, 50, sT, sSP, cfg.usleep)
    stamp(k, cfg, 10, 6)
    Y, FS, YS = 68, [100, 164], 228
    def a_read(r, F, a): return [f"ds_read_b64 {V(F+4*a+2*e,2)}, v{CA} offset:{(7-a)*512 + (7-r)*64 + 8*e}" for e in (0, 1)]
    def b_read(r, F, c): return [f"ds_read_b128 {V(F+32+4*c,4)}, v{CBA} offset:{c*512 + (7-r)*64 - 256*RS[0]}"]
    def first(ms):
        seen = []
        for J, a in ms:
            for t in (("a", a), ("b", J - a)):
                if t not in seen: seen.append(t)
        rd = [(x, f"z{t[0]}{t[1]}") for t in seen for x in (a_read if t[0] == "a" else b_read)(0, FS[0], t[1])]
        for x in rd[:cfg.cvpre]: k(*x)
        stamp(k, cfg, 10, 2)
        if cfg.mbar == 2: k("s_barrier")
        if not cfg.mbar: lds_spin(k, vSC, SY_M, 1, 50, sT, sSP, cfg.usleep)
        k(f"s_setprio {cfg.cvprio}")
        stamp(k, cfg, 6); stamp(k, cfg, 11, 2); stamp(k, cfg, 11, 6)
        return rd[cfg.cvpre:]
    if cfg.split == 'r':
        ms = [(a + c, a) for c in range(8) for a in range(8 - c)]
        cfg.cvpre = 24; first(ms); k.wait(lg='*')
        for r in range(4):
            F = FS[r & 1]; N = FS[(r+1) & 1]; nxt = []
            if r < 3:
                for i in range(8): nxt += a_read(r+1, N, i) + b_read(r+1, N, i)
            if r > 0: k.wait(lg="*")
            if r == 3:
                lds_signal(k, VSY, SY_RD, VONE)
                nxt = f"s_lshl_b32 s{sT}, s{sWV}, 12\ns_add_u32 s{sT}, s{sT}, 16384\nv_lshl_add_u32 v51, v0, 4, s{sT}\nv_xor_b32 v52, 0x1000, v51\ns_lshl_b32 s{sT}, s{sHH}, 11\ns_add_u32 s{sO1}, s{sO1}, s{sT}".split("\n")
            n = 0
            for i, (J, a) in enumerate(ms):
                k(f"v_mfma_f32_16x16x32_bf16 {V(Y+4*J,4)}, {V(F+4*a,4)}, {V(F+32+4*(J-a),4)}, {'0' if (r == 0 and J == a) else V(Y+4*J,4)}")
                if n < len(nxt): k(nxt[n]); n += 1
                if r == 3 and i == 28: k(f"ds_read_b32 v50, v{VSY} offset:{SY_RD}")
        stamp(k, cfg, 7); stamp(k, cfg, 1, 5)
        k("s_setprio 3")
        o = k.lab("rd")
        k.wait(lg="*")
        k(f"v_readfirstlane_b32 s{sT}, v50\ns_cmp_ge_u32 s{sT}, 4\ns_cbranch_scc1 {o}")
        lds_spin(k, VSY, SY_RD, 4, 50, sT, sSP)
        k(f"{o}:")
        l1 = k.lab("h1"); l2 = k.lab("hj"); EX = 100
        k(f"s_cmp_eq_u32 s{sHH}, 1\ns_cbranch_scc1 {l1}\ns_nop 3")
        for i in range(4): k(f"ds_write_b128 v51, {V(Y+16+4*i,4)} offset:{1024*i}")
        lds_signal(k, 55, SY_PAIR, VONE)
        k(f"s_branch {l2}")
        k(f"{l1}:")
        for i in range(4): k(f"ds_write_b128 v51, {V(Y+4*i,4)} offset:{1024*i}")
        lds_signal(k, 55, SY_PAIR, VONE)
        for i in range(16): k(f"v_mov_b32 v{Y+i}, v{Y+16+i}")
        k(f"{l2}:")
        lds_spin(k, 55, SY_PAIR, 4, 50, sT, sSP)
        for i in range(4): k(f"ds_read_b128 {V(EX+4*i,4)}, v52 offset:{1024*i}", f"e{i}")
        for g in (0, 1):
            for i in (2*g, 2*g+1):
                k.wait(lg=f"e{i}")
                for e in range(4): k(f"v_add_f32 v{Y+4*i+e}, v{Y+4*i+e}, v{EX+4*i+e}")
                for e in (0, 1): k(f"v_cvt_pk_bf16_f32 v{YS+2*i+e}, v{Y+4*i+2*e}, v{Y+4*i+2*e+1}")
            for e in (0, 1): k(f"v_permlane16_swap_b32 v{YS+4*g+e}, v{YS+4*g+2+e}")
            k(f"buffer_store_dwordx4 {V(YS+4*g,4)}, v54, {S(sWS,4)}, s{sO1} offen offset:{1024*g} sc1", "sts")
    else:
        lB = k.lab("cvB"); lJ = k.lab("cvJ")
        k(f"s_cmp_eq_u32 s{sHH}, 1\ns_cbranch_scc1 {lB}")
        for Js in JSETS[cfg.jbal]:
            top = max(Js)
            ms = [(J, a) for a in range(top+1) for J in Js if a <= J]
            rest = first(ms)
            for r in range(8):
                F = FS[r & 1]; N = FS[(r+1) & 1]; nxt = list(rest); rest = []
                if r < 7:
                    for i in range(top+1): nxt += [(x, None) for x in a_read(r+1, N, i) + b_read(r+1, N, top-i)]
                if r > 0: k.wait(lg="*")
                if r == 7: lds_signal(k, VSY, SY_RD, VONE)
                n = 0; slots = len(ms) - cfg.cvfree
                for i, (J, a) in enumerate(ms):
                    if r == 0:
                        for t in (f"za{a}", f"zb{J-a}"):
                            assert t not in [y[1] for y in nxt[n:]]
                            k.wait(lg=t)
                    k(f"v_mfma_f32_16x16x32_bf16 {V(Y+4*J,4)}, {V(F+4*a,4)}, {V(F+32+4*(J-a),4)}, {'0' if (r == 0 and a == 0) else V(Y+4*J,4)}")
                    while n < len(nxt) and n*slots < (i+1)*len(nxt): k(*nxt[n]); n += 1
                assert n == len(nxt)
            stamp(k, cfg, 7); stamp(k, cfg, 1, 5)
            groups = [(Js[-1], Js[-1])] + [(Js[i+1], Js[i]) for i in range(len(Js)-3, -1, -2)]
            for g, (lo, hi) in enumerate(groups):
                y = YS + 4*g
                for q, J in enumerate((lo, hi)):
                    for e in (0, 1): k(f"v_cvt_pk_bf16_f32 v{y+2*q+e}, v{Y+4*J+2*e}, v{Y+4*J+2*e+1}")
                for e in (0, 1): k(f"v_permlane16_swap_b32 v{y+e}, v{y+2+e}")
                k(f"buffer_store_dwordx4 {V(y,4)}, v{53 if lo == hi else 54}, {S(sWS,4)}, s{sO1} offen offset:{512*lo} sc1", "sts")
            if top == 7:
                k(f"s_branch {lJ}"); k(f"{lB}:"); k.reset()
        k(f"{lJ}:")
    if cfg.x_nos2:
        k("s_barrier"); prof_dump(k, cfg, True); k("s_endpgm"); return
    XE, OA, RA, SA, XU, SU = 248, 64, 68, 70, 120, 136
    k(f"s_lshl1_add_u32 s{sRB}, s{sRB}, s{sXH}\ns_mov_b32 s{sC}, s{sKAP}")
    k(f"v_lshrrev_b32 v50, 1, v0\nv_mul_u32_u24 v52, 896, v50\nv_lshl_add_u32 v{OA}, v{vODD}, 4, v52")
    k(f"s_mul_i32 s{sG32}, s{sRB}, {64*896}\ns_lshl2_add_u32 s{sT}, s{sC}, s{sWV}\ns_lshl_b32 s{sT}, s{sT}, 5\ns_add_u32 s{sG32}, s{sG32}, s{sT}\ns_add_u32 s{sKAP}, s{sG32}, {32*896}")
    k(f"v_lshl_add_u32 v51, s{sWV}, 1, v{vODD}\nv_and_b32 v55, 15, v50\nv_lshlrev_b32 v52, 1, v51\nv_xor_b32 v52, v52, v55\nv_lshlrev_b32 v52, 4, v52\nv_lshl_add_u32 v52, v55, 8, v52")
    k(f"v_lshrrev_b32 v55, 5, v0\nv_lshl_add_u32 v52, v55, 14, v52\nv_add_u32 v{RA}, {L_GB}, v52\nv_xor_b32 v{RA+1}, 16, v{RA}")
    k(f"v_bfe_u32 v52, v0, 4, 1\nv_lshl_add_u32 v52, v52, 2, v55\nv_xor_b32 v52, v52, v51\nv_lshlrev_b32 v52, 4, v52\nv_lshl_add_u32 v52, v51, 10, v52\nv_and_b32 v55, 14, v0\nv_add_u32 v{SA}, v55, v52\nv_xor_b32 v{SA+1}, 32, v{SA}")
    assert L_U == 0
    k(f"v_lshrrev_b32 v50, 3, v0\nv_and_b32 v51, 7, v0\ns_lshl_b32 s{sT}, s{sWV}, 1\nv_xor_b32 v56, s{sT}, v51\nv_lshlrev_b32 v56, 4, v56\nv_lshl_add_u32 v56, v50, 12, v56\nv_xor_b32 v57, 16, v56\nv_add_u32 v57, {32768-1024}, v57")
    k.wait(vm="*")
    s_inc(k, pWS, f"s{sO2}", sE3)
    stamp(k, cfg, 8); stamp(k, cfg, 2, 5)
    for i in range(8): k(f"v_lshlrev_b32 v{XU+2*i}, 16, v{XE+i}\nv_and_b32 v{XU+2*i+1}, 0xffff0000, v{XE+i}")
    k(f"s_lshr_b32 s{sT2}, s{sRB}, 2\ns_lshr_b32 s{sT2}, {0xf0 if RS[0] else sum(1 << J for J in JSETS[cfg.jbal][1])}, s{sT2}\ns_and_b32 s{sT2}, s{sT2}, 1")
    k(f"s_lshl_b32 s{sT}, s{sC}, 1\ns_add_u32 s{sT}, s{sT}, s{sT2}\ns_lshl_b32 s{sT}, s{sT}, 2\ns_add_u32 s{sT}, s{sT}, s{sWV}\ns_add_u32 s{sT}, s{sT}, {C_ST}\ns_lshl_b32 s{sO1}, s{sT}, 7")
    k(f"s_lshl_b32 s{sT}, s{sC}, 2\ns_add_u32 s{sT}, s{sT}, s{sWV}\ns_lshl_b32 s{sT}, s{sT}, 16\ns_lshl_b32 s{sT2}, s{sRB}, 7\ns_add_u32 s{sT}, s{sT}, s{sT2}\ns_add_u32 s{sO2}, s{sT}, {ST}")
    for i in range(16): k(f"v_mov_b32 v{SU+i}, 0")
    k(f"s_lshl_b32 m0, s{sWV}, 11")
    if not RS[0]: lds_spin(k, VSY, SY_RD, 4, 50, sT, sSP, 1)
    s_poll(k, pWS, [f"s{sO1}"], 16, sT, sSP, cfg.stpoll[1])
    stamp(k, cfg, 3, 5)
    k(f"buffer_load_dwordx4 v56, {S(sWS,4)}, s{sO2} offen sc1 lds\nbuffer_load_dwordx4 v57, {S(sWS,4)}, s{sO2} offen offset:1024 sc1 lds")
    k.wait(vm="*")
    stamp(k, cfg, 9); stamp(k, cfg, 4, 5)
    for ps in (0, 1):
        for e in range(8): k(f"ds_read_u16_d16_hi v{SU+8*ps+e}, v{SA+ps} offset:{128*e}")
    k(f"s_mov_b32 s{sO1}, {fbits(-LOG2E)}")
    PR, T = 160, 224
    for ps in (0, 1):
        b = PR + 32*ps
        if ps == 0:
            stamp(k, cfg, 5, 5); lds_spin(k, VSY, SY_GS, 4, 50, sT, sSP, cfg.finsleep); stamp(k, cfg, 6, 5)
        else:
            stamp(k, cfg, 7, 5); k("s_barrier"); stamp(k, cfg, 10); stamp(k, cfg, 8, 5)
        for w in range(4):
            for e in (0, 1): k(f"ds_read_b128 {V(b+8*w+4*e,4)}, v{RA+e} offset:{32768*ps + 4096*w}", f"p{w}")
        def add(x, y):
            if ps == 0 and cfg.p0plain:
                for i in range(8): k(f"v_add_f32 v{x+i}, v{x+i}, v{y+i}")
            else:
                for i in range(4): k(f"v_pk_add_f32 {V(x+2*i,2)}, {V(x+2*i,2)}, {V(y+2*i,2)}")
        k.wait(lg="p1")
        add(b, b+8)
        k.wait(lg="p3")
        add(b+16, b+24); add(b, b+16)
        for i in range(4): k(f"v_pk_mul_f32 {V(T+2*i,2)}, {V(b+2*i,2)}, {S(sO1,2)} op_sel_hi:[1,0]")
        for i in range(8): k(f"v_exp_f32 v{T+i}, v{T+i}")
        for i in range(4): k(f"v_pk_mul_f32 {V(b+2*i,2)}, {V(b+2*i,2)}, {V(SU+8*ps+2*i,2)}")
        for i in range(4): k(f"v_pk_add_f32 {V(T+2*i,2)}, {V(T+2*i,2)}, 1.0 op_sel_hi:[1,0]")
        for i in range(8): k(f"v_rcp_f32 v{T+i}, v{T+i}")
        for i in range(4): k(f"v_pk_fma_f32 {V(b+2*i,2)}, {V(b+2*i,2)}, {V(T+2*i,2)}, {V(XU+8*ps+2*i,2)}")
        for i in range(4): k(f"v_cvt_pk_bf16_f32 v{b+8+i}, v{b+2*i}, v{b+2*i+1}")
        k(f"buffer_store_dwordx4 {V(b+8,4)}, v{OA}, {S(sOUT,4)}, s{sG32 if ps == 0 else sKAP} offen {cfg.outmod}")
    if cfg.prof or cfg.probe: k("s_waitcnt vmcnt(0)")
    stamp(k, cfg, 11); stamp(k, cfg, 9, 5)
    prof_dump(k, cfg, True, role="S")
    k("s_endpgm")

def gen_helper(k, cfg):
    k.reset()
    k("L_helper:")
    sHB, sIH, sST = 62, 63, 64
    k(f"v_lshrrev_b32 v1, 6, v0\nv_and_b32 v0, 63, v0\nv_readfirstlane_b32 s3, v1\ns_and_b32 s{sXCD}, s2, 7")
    k(f"s_lshl_b32 s{sHB}, s{sXCD}, 2\ns_add_u32 s{sHB}, s{sHB}, s{sJ}")
    k(f"s_lshr_b32 s{sIH}, s{sXCD}, 1\ns_lshl_b32 s{sIH}, s{sIH}, 2\ns_add_u32 s{sIH}, s{sIH}, s{sJ}\ns_and_b32 s{sST}, s{sXCD}, 1\ns_mul_i32 s{sST}, s{sST}, 14\ns_add_u32 s{sST}, s{sST}, s{sIH}")
    k(f"s_lshl_b32 s{sT}, s{sHB}, 3\ns_add_u32 s{sT}, s{sT}, s3\ns_mul_i32 s65, s{sT}, {8*896}")
    k(f"v_lshrrev_b32 v1, 3, v0\nv_and_b32 v2, 7, v0\nv_mul_u32_u24 v3, 896, v1\nv_lshl_add_u32 v3, v2, 4, v3")
    k(f"v_lshlrev_b32 v4, 4, v0\nv_and_b32 v5, 1, v0\nv_lshlrev_b32 v5, 12, v5\nv_lshrrev_b32 v6, 1, v0\nv_lshl_add_u32 v5, v6, 4, v5")
    k(f"v_mul_u32_u24 v15, 3584, v1\nv_lshl_add_u32 v15, v2, 4, v15")
    k(f"s_lshl_b32 s67, s{sHB}, 7\ns_add_u32 s67, s67, {STATS}")
    k(f"s_lshl_b32 s69, s{sST}, 9\ns_add_u32 s69, s69, {AUGW}\ns_mul_i32 s70, s3, {56*3584}\ns_lshl_b32 s74, s{sST}, 7\ns_add_u32 s70, s70, s74")
    srd_const(k, sAUX, 256); srd_const(k, sWS, WSN); srd_const(k, sX, 1835008); srd_const(k, sW1, 1605632); srd_const(k, sW2, 1605632); srd_const(k, sOUT, 3584)
    k("s_waitcnt lgkmcnt(0)")
    srd(k, sW1, pW1); srd(k, sX, pX); srd(k, sWS, pWS); srd(k, sAUX, pDBG); srd(k, sW2, pW2); srd(k, sOUT, pB1)
    stamp(k, cfg, 5)
    if cfg.tlb:
        k(f"s_lshl_b32 s72, s3, 21\ns_load_dword s30, {S(pWS,2)}, s72\ns_load_dword s31, {S(pW2,2)}, 0\ns_load_dword s32, {S(pOUT,2)}, 0\ns_load_dword s33, {S(pW1,2)}, 0\ns_load_dword s34, {S(pDBG,2)}, 128")
    l0 = k.lab("h0")
    k(f"s_cmp_lt_u32 s{sIH}, 14\ns_cbranch_scc1 {l0}")
    for i in range(4): k(f"v_mov_b32 v{8+i}, 0")
    k(f"s_and_b32 s66, s{sXCD}, 1\ns_lshl_b32 s66, s66, 1\ns_and_b32 s{sT}, s{sJ}, 1\ns_add_u32 s66, s66, s{sT}\ns_lshl_b32 s66, s66, 3\ns_add_u32 s66, s66, s3\ns_lshl_b32 s66, s66, 12")
    for n in range(4): k(f"buffer_store_dwordx4 v[8:11], v4, {S(sWS,4)}, s66 offen offset:{1024*n} sc1")
    k(f"s_mov_b32 s69, {WSN}\ns_mov_b32 s70, {WSN}\ns_waitcnt vmcnt(0)\ns_barrier\ns_cmp_lg_u32 s3, 7\ns_cbranch_scc1 {l0}")
    s_inc(k, pDBG, "0", 75)
    k(f"{l0}:")
    stamp(k, cfg, 4)
    if cfg.hdelay: k(f"s_sleep {cfg.hdelay}")
    k.reset()
    if cfg.hxfirst:
        for i in range(7): k(f"buffer_load_dwordx4 {V(16+4*i,4)}, v3, {S(sX,4)}, s65 offen offset:{128*i}", f"x{i}")
    if cfg.hsplit: k("s_barrier")
    for i in range(7): k(f"s_add_u32 s76, s70, {i*8*3584}\nbuffer_load_dwordx4 {V(44+4*i,4)}, v15, {S(sW1,4)}, s76 offen", f"w{i}")
    k(f"v_lshlrev_b32 v6, 1, v0\nbuffer_load_ushort v81, v6, {S(sOUT,4)}, s74 offen", "b1")
    k("v_and_b32 v12, 1, v0\nv_lshlrev_b32 v12, 4, v12\nv_mov_b32 v13, 0xbf80\nv_lshlrev_b32 v13, v12, v13\nv_bfe_u32 v12, v0, 1, 2")
    for e in range(4): k(f"v_cmp_eq_u32 vcc, {e}, v12\nv_cndmask_b32 v{72+e}, 0, v13, vcc")
    k(f"v_lshrrev_b32 v82, 5, v0\nv_lshl_add_u32 v82, s3, 1, v82\nv_lshlrev_b32 v82, 8, v82\nv_bfe_u32 v13, v0, 4, 1\nv_lshl_add_u32 v82, v13, 7, v82\nv_lshl_add_u32 v82, v2, 2, v82\nv_add_u32 v82, 1024, v82")
    k("v_mov_b32 v12, 0\nv_mov_b32 v13, 0\ns_mov_b32 s68, 0x3f803f80")
    if not cfg.hxfirst:
        for i in range(7): k(f"buffer_load_dwordx4 {V(16+4*i,4)}, v3, {S(sX,4)}, s65 offen offset:{128*i}", f"x{i}")
    hclr = f"buffer_load_dword v83, off, {S(sAUX,4)}, 0 sc1"
    k(hclr, "clr")
    if int(cfg.prof) == 8:
        stamp(k, cfg, 1, 8)
        for i, t in enumerate(("x0", "x3", "x6", "w0", "w3", "w6")):
            sv = list(k.vm); k.wait(vm=t); k.vm = sv; stamp(k, cfg, 2 + i, 8)
    if cfg.hearly:
        k(f"s_lshr_b32 s71, s{sHB}, 4\ns_mul_i32 s71, s71, {512*896}\ns_lshl3_add_u32 s72, s{sHB}, s3\ns_mul_i32 s72, s72, {3*896}\ns_add_u32 s71, s71, s72")
        k(f"v_min_u32 v84, 20, v0\nv_lshlrev_b32 v84, 7, v84\nbuffer_load_dword v84, v84, {S(sW2,4)}, s71 offen", "pf0")
    for i in range(7):
        k.wait(vm=f"x{i}")
        for e in range(4): k(f"v_dot2c_f32_bf16 v12, s68, v{16+4*i+e}\nv_dot2c_f32_bf16 v13, v{16+4*i+e}, v{16+4*i+e}")
    stamp(k, cfg, 6)
    for m in ("quad_perm:[1,0,3,2]", "quad_perm:[2,3,0,1]", "row_half_mirror"):
        for r in (12, 13): k(f"v_add_f32_dpp v{r}, v{r}, v{r} {m} row_mask:0xf bank_mask:0xf")
    k(f"v_mul_f32 v12, {fbits(1/448)}, v12\nv_mul_f32 v13, {fbits(1/448)}, v13\nv_fma_f32 v13, -v12, v12, v13\nv_max_f32 v13, 0, v13")
    k(f"v_cvt_pk_bf16_f32 v13, v13, v13\nv_and_b32 v13, 0xffff0000, v13\nv_add_f32 v13, {fbits(1e-5)}, v13\nv_cvt_pk_bf16_f32 v13, v13, v13\nv_and_b32 v13, 0xffff0000, v13")
    k(f"v_sqrt_f32 v13, v13\nv_lshl_add_u32 v14, s3, 3, v1\nv_lshlrev_b32 v14, 2, v14\nv_cvt_pk_bf16_f32 v12, v12, v13")
    k("ds_write_b32 v14, v12")
    for j in range(7):
        k.wait(vm=f"w{j}")
        k(f"v_mfma_f32_16x16x32_bf16 v[76:79], {V(44+4*j,4)}, v[72:75], {'0' if j == 0 else 'v[76:79]'}")
    k("ds_write2_b32 v82, v76, v77 offset0:0 offset1:8\nds_write2_b32 v82, v78, v79 offset0:16 offset1:24")
    stamp(k, cfg, 7)
    v_poll(k, hclr, 83, 4, 73, 2, first=False, tag="clr")
    stamp(k, cfg, 8)
    k.wait(lg="*")
    k("s_barrier")
    stamp(k, cfg, 1)
    l2 = k.lab("h2"); l3 = k.lab("h3")
    k(f"s_cmp_lg_u32 s3, 0\ns_cbranch_scc1 {l2}")
    k("s_mov_b64 exec, 0xffff\nds_read_b128 v[8:11], v4")
    k.wait(lg="*")
    k(f"buffer_store_dwordx4 v[8:11], v5, {S(sWS,4)}, s67 offen sc1\ns_mov_b64 exec, -1")
    k(f"{l2}:")
    k(f"s_cmp_lg_u32 s3, 1\ns_cbranch_scc1 {l3}")
    k("v_lshlrev_b32 v12, 2, v0")
    for j in range(8): k(f"ds_read2st64_b32 {V(16+2*j,2)}, v12 offset0:{4+2*j} offset1:{5+2*j}")
    k.wait(lg="*")
    for st_ in (1, 2, 4, 8):
        for j in range(0, 16, 2*st_): k(f"v_add_f32 v{16+j}, v{16+j}, v{16+j+st_}")
    k(f"v_cvt_pk_bf16_f32 v12, v16, v16\nv_and_b32 v12, 0xffff0000, v12\nv_sub_f32 v12, v16, v12\nv_cvt_pk_bf16_f32 v80, v16, v12\nv_or_b32 v81, 0x10000, v81\nv_lshlrev_b32 v12, 3, v0")
    k(f"buffer_store_dwordx2 v[80:81], v12, {S(sWS,4)}, s69 offen sc1")
    k(f"{l3}:")
    k("s_barrier")
    stamp(k, cfg, 2)
    k(f"v_lshlrev_b32 v14, 7, v0\ns_mul_i32 s76, s{sJ}, 401408\ns_mul_i32 s77, s{sXCD}, 49\ns_lshr_b32 s77, s77, 3\ns_add_u32 s77, s77, s3")
    for i in range(cfg.w2pf):
        k(f"s_sub_u32 s71, s77, 49\ns_cmp_ge_u32 s77, 49\ns_cselect_b32 s77, s71, s77\ns_lshl_b32 s71, s77, 13\ns_add_u32 s71, s71, s76\ns_add_u32 s77, s77, 8")
        k(f"buffer_load_dword v{90+i}, v14, {S(sW2,4)}, s71 offen", "pf")
    k("s_waitcnt vmcnt(0)")
    stamp(k, cfg, 3)
    prof_dump(k, cfg, role="H")
    k("L_end:")
    k("s_endpgm")

HEADER = open("recurrent_scan__ssm_conv_s4__dense_activation_mish__prompt.s.ref").read().split("; Override launch")[0] if __name__ == "__main__" else ""
def build(cfg, header=""):
    ORD[:] = cfg.ord; LOC[:] = [LOCT[ORD.index(b)] for b in range(7)]; assert ORD[6] == 6
    k = K(); RS[0] = int(cfg.split == 'r')
    front(k, cfg); vm0 = list(k.vm); gen_G(k, cfg); gen_S(k, cfg, vm0); gen_helper(k, cfg)
    return file_wrap([(KNAME, 256, 512, L_TOT)], [kernel_wrap(KNAME, k.text(), 256).replace('denorm_mode_32 3', f'denorm_mode_32 {cfg.denorm}')], header), k

if __name__ == "__main__":
    cfg = Cfg()
    for a in sys.argv[2:]:
        n, v = a.split("=", 1); setattr(cfg, n, eval(v))
    txt, k = build(cfg, HEADER)
    open(sys.argv[1], "w").write(txt)
    print("instructions", len(k.ins), "padded states", k.padded)
```

```python
import re
TRANS = ("v_exp_f32","v_log_f32","v_rcp_f32","v_rsq_f32","v_sqrt_f32","v_sin_f32","v_cos_f32")
MOD_RE = re.compile(r"\s+(op_sel|op_sel_hi|neg_lo|neg_hi|quad_perm):\[[^\]]*\]|\s+(offset|offset0|offset1|row_mask|bank_mask|row_shr|row_shl|row_ror|bitop3|bound_ctrl|cbsz|abid|dst_sel|dst_unused|src0_sel|src1_sel):\S+|\s+(offen|idxen|lds|sc0|sc1|nt|glc|row_half_mirror|row_mirror|clamp)\b")
def regs(op):
    op = op.strip()
    if op.startswith("-"): op = op[1:]
    if op.startswith("abs("): op = op[4:-1]
    if op.startswith("|"): op = op.strip("|")
    m = re.fullmatch(r"([vsa])(\d+)", op)
    if m: return {(m.group(1), int(m.group(2)))}
    m = re.fullmatch(r"([vsa])\[(\d+):(\d+)\]", op)
    if m: return {(m.group(1), i) for i in range(int(m.group(2)), int(m.group(3))+1)}
    if op in ("vcc","exec","m0"): return {("x", op)}
    if op in ("vcc_lo","vcc_hi"): return {("x","vcc")}
    return set()
class Ins:
    def __init__(self, text):
        self.text = text
        t = text.split(";")[0].strip()
        self.label = t.endswith(":")
        self.mn = t.split()[0] if t and not self.label else ""
        self.dst = set(); self.src = set(); self.A = self.B = self.C = set()
        self.kind = "other"
        if self.label or not t or self.mn.startswith("."): self.kind = "none"; return
        rest = t[len(self.mn):]
        self.lds = bool(re.search(r"\blds\b", rest)) or "_lds_" in self.mn
        self.dpp = "_dpp" in self.mn or "quad_perm" in rest or "row_" in rest
        rest = MOD_RE.sub("", rest)
        ops = [o.strip() for o in rest.split(",")] if rest.strip() else []
        R = [regs(o) for o in ops]
        mn = self.mn
        allr = set().union(*R) if R else set()
        if mn.startswith("v_mfma"):
            self.kind = "mfma"; self.dst = R[0]; self.A, self.B, self.C = R[1], R[2], R[3]; self.src = R[1]|R[2]|R[3]
            self.passes = 8 if ("32x32" in mn or "_4b_" in mn) else 4
        elif mn.startswith("v_"):
            self.kind = "valu"; self.dst = set(R[0]); self.src = set().union(*R[1:]) if len(R) > 1 else set()
            if "_co_" in mn: self.dst |= R[1]; self.src = set().union(*R[2:])
            if mn.startswith(("v_fmac","v_dot2c","v_pk_fmac")): self.src |= R[0]
            if "permlane" in mn and "swap" in mn: self.src |= R[0]; self.dst |= R[1]
            if self.dpp: self.src |= R[0]
        elif mn.startswith("ds_"):
            self.kind = "ds"
            if mn.startswith("ds_read") or "_rtn" in mn or "permute" in mn or "swizzle" in mn:
                self.dst = R[0]; self.src = set().union(*R[1:]) if len(R) > 1 else set()
            else: self.src = allr
            if "addtid" in mn: self.src |= {("x","m0")}
            if "d16" in mn: self.src |= R[0]
        elif mn.startswith(("buffer_","global_")):
            self.kind = "vm"
            if "load" in mn and not self.lds:
                self.dst = R[0]; self.src = set().union(*R[1:])
            else: self.src = allr
            if self.lds: self.src |= {("x","m0")}
            self.wide = ("store" in mn and ("x3" in mn or "x4" in mn))
            self.data = (R[0] if mn.startswith("buffer") else R[1]) if self.wide else set()
        elif mn.startswith(("s_load","s_memtime","s_memrealtime","s_buffer_load")):
            self.kind = "smem"; self.dst = R[0]; self.src = set().union(*R[1:]) if len(R) > 1 else set()
        elif mn.startswith("s_"):
            self.kind = "salu"
            if mn.startswith(("s_cmp","s_bitcmp","s_waitcnt","s_barrier","s_cbranch","s_branch","s_nop","s_sleep","s_endpgm","s_setprio")):
                self.src = allr
            else:
                self.dst = set(R[0]) if R else set(); self.src = set().union(*R[1:]) if len(R) > 1 else set()
                if "saveexec" in mn: self.dst |= {("x","exec")}
    def states(self):
        if self.kind == "none": return 0
        if self.mn == "s_nop": return int(self.text.split()[1]) + 1
        return 1
def vonly(s): return {r for r in s if r[0] in "va"}
def sonly(s): return {r for r in s if r[0] == "s" or r == ("x","vcc")}
def need(p, c):
    n = 0
    if p.kind == "valu":
        pv = vonly(p.dst); ps = sonly(p.dst)
        isdot = p.mn.startswith("v_dot")
        if c.kind == "mfma" and pv & c.src: n = max(n, 3 if isdot else 2)
        if c.kind == "valu":
            if p.mn.startswith(TRANS) and not c.mn.startswith(TRANS) and pv & c.src: n = max(n, 1)
            if c.dpp and pv & c.src: n = max(n, 2)
            if "permlane" in c.mn and pv & c.src: n = max(n, 2)
            if c.mn.startswith(("v_readfirstlane","v_readlane")) and pv & c.src: n = max(n, 1)
            if ps & c.src: n = max(n, 4 if c.mn.startswith(("v_readlane","v_writelane")) else 2)
            if isdot:
                if c.mn != p.mn and pv & (c.src | c.dst): n = max(n, 3)
                if c.mn == p.mn and pv & (c.src - c.dst): n = max(n, 3)
        if isdot and c.kind in ("ds","vm") and pv & c.src: n = max(n, 3)
        if p.mn.startswith(TRANS) and c.kind in ("ds","vm") and pv & c.src: n = max(n, 1)
        if c.kind == "vm" and ps & c.src: n = max(n, 5)
    if p.kind == "mfma":
        big = {4: 8, 8: 12}[p.passes]
        if c.kind == "mfma":
            if p.dst & (c.A | c.B): n = max(n, big)
            if p.dst & c.C and not (p.dst == c.C and p.passes == c.passes): n = max(n, big - 2)
            if p.dst & c.dst and not (p.dst & c.C): n = max(n, big)
        elif c.kind in ("valu","ds","vm"):
            if p.dst & (c.src | c.dst): n = max(n, big)
            if c.kind == "valu" and p.C & c.dst: n = max(n, p.passes - 1)
    if p.kind == "salu" and ("x","m0") in p.dst and c.kind in ("vm","ds") and ("x","m0") in c.src: n = max(n, 1)
    if p.kind == "vm" and p.wide and p.data & c.dst: n = max(n, 2)
    return n
class K:
    def __init__(self):
        self.ins = []; self.vm = []; self.lg = []; self.nlabel = 0; self.padded = 0
    def __call__(self, text, tag=None):
        for ln in text.split("\n"):
            ln = ln.strip()
            if not ln: continue
            i = Ins(ln)
            dist = 0; req = 0
            for p in reversed(self.ins):
                if dist >= 14: break
                if p.mn in ("s_branch","s_endpgm") and not getattr(p, "soft", False): break
                r = need(p, i) - dist
                req = max(req, r)
                dist += p.states()
            if req > 0:
                self.ins.append(Ins(f"s_nop {req-1}")); self.padded += req
            self.ins.append(i)
            if i.kind == "vm": self.vm.append(tag)
            if i.kind == "ds": self.lg.append(tag)
    def page(self, name, jump=True):
        if jump:
            self(f"s_branch L_{name}"); self.ins[-1].soft = True
        self(".p2align 12")
        self(f"L_pad_{name}:")
        i = Ins(f"s_branch L_ret_{name}"); i.kind = "none"; i.mn = ""; i.padof = name; self.ins.append(i)
        self(f"L_{name}:")
    def warm(self, name):
        self(f"s_branch L_pad_{name}"); self.ins[-1].soft = True
        self(f"L_ret_{name}:")
        self.warmed = getattr(self, "warmed", set()) | {name}
    def lab(self, base):
        self.nlabel += 1; return f"L_{base}_{self.nlabel}"
    def cnt(self, lst, tag):
        idx = [i for i, t in enumerate(lst) if t == tag]
        if not idx: return None
        return len(lst) - 1 - idx[-1]
    def wait(self, vm=None, lg=None):
        parts = []
        if vm is not None:
            n = 0 if vm == "*" else self.cnt(self.vm, vm)
            if n is not None:
                n = min(n, 63); parts.append(f"vmcnt({n})"); self.vm = self.vm[len(self.vm)-n:] if n else []
        if lg is not None:
            n = 0 if lg == "*" else self.cnt(self.lg, lg)
            if n is not None:
                n = min(n, 15); parts.append(f"lgkmcnt({n})"); self.lg = self.lg[len(self.lg)-n:] if n else []
        if parts: self("s_waitcnt " + " ".join(parts))
    def reset(self): self.vm = []; self.lg = []
    def text(self):
        self.ins = [i for i in self.ins if getattr(i, "padof", None) is None or i.padof in getattr(self, "warmed", set())]
        return "\n".join(i.text if i.label else "    " + i.text for i in self.ins) + "\n"
def V(a, n=1): return f"v{a}" if n == 1 else f"v[{a}:{a+n-1}]"
def S(a, n=1): return f"s{a}" if n == 1 else f"s[{a}:{a+n-1}]"
```

```python
import sys, struct
from kasm import *
from asmlib import KNAME, kernel_wrap, file_wrap

def fbits(x): return "0x%08x" % struct.unpack("<I", struct.pack("<f", x))[0]
LOG2E = 1.4426950408889634

AUGW, ACNT = 0xA000, 0x10000
CNT, STATS, PROF, XT, ST, ACT, KDBG, WSN = 0, 0x8000, 0x20000, 0x100000, 0x300000, 0x500000, 0xD00000, 0x2000000
C_ACT, C_XT, C_ST = 0, 128, 184
L_WS, L_XS = [81920, 98304, 0], [49152, 65536, 16384]
L_GB, L_KC, L_U, L_SY, L_TOT = 49152, 14336, 0, 13312, 163840
L_PART, L_PCH, L_GS = 84480, 6864, L_U + 9216
sX, sW1, sW2, sWS, sAUX, sOUT = 4, 8, 12, 16, 20, 24
pX, pARE, pLDT, pDSK, pW1, pB1, pW2, pOUT, pDBG, pWS = 28, 30, 42, 44, 48, 50, 52, 54, 56, 58
sXCD, sJ, sR, sC, sRB, sFC, sKAP = 60, 61, 62, 63, 64, 65, 66
SPIN, LSPIN = 1000000, 30000000

class Cfg:
    prof = False
    kdbg = False
    span = False
    probe = None
    probewg = None
    probemin = False
    cyc = False
    depth = 6
    rot = False
    stpoll = ('s', 4)
    actsleep = 1
    c1at = [14, 22, 30, 38]
    statstep = 20
    pace2 = 9
    pace = 8
    actpf = 0
    apf0 = 3
    apfwait = 60
    w2pf = 1
    codepf = True
    outmod = ""
    pbar = False
    flagat = 1
    cut = [3, 4]
    early = [0, 6]
    xtat = [46, 50]
    touch = 36
    w2touch = 0
    tlb = False
    ord = [2, 3, 4, 5, 0, 1, 6]
    s45 = True
    jbal = 2
    partner = 1
    pmask2 = 0x400
    xtearly = True
    gc1early = True
    w2from = 22
    rdlag = 1
    p0plain = 0
    pollat = 6
    cvprio = 2
    nprio = 0
    tailq = 6
    usleep = 0
    mbar = 1
    hearly = False
    hdelay = 0
    hsplit = True
    pmod = ('', 'nt')
    rshare = True
    pdump = False
    pages = True
    prew = 1
    lead = 0xD00
    warm = ('g1', 'mish', 'cvA', 'cvB')
    sall = None
    b8at = 14
    pbar2 = 0
    cvpre = 12
    g2prio = 0
    finsleep = 0
    bclate = True
    own = True
    aspread = 4
    gc0 = True
    c0x = 2
    c0w = 2
    gat = dict(xr=46, xs=50, touch=36)
    xtbar = 1
    hxfirst = True
    gearly = 1
    c0late = 2
    r2cut = 8
    sblk = True
    split = 'J'
    x_noconv = False
    cvfree = 3
    tailn = 12
    gblk = 4
    x_noside = False
    x_nodma = False
    x_nobar = False
    x_nokw = False
    x_acthit = False
    x_nos2 = False
    ssleep = 0
    stat = [1,2,3,4,5,6,7]
    actmod = 'sc1'
    x_noc01 = False
    kbar = False
    kdelay = False
    kprio = 0
    denorm = 3

def srd(k, d, ptr): k(f"s_mov_b64 {S(d,2)}, {S(ptr,2)}")
def srd_const(k, d, n): k(f"s_mov_b32 s{d+2}, {n}\ns_mov_b32 s{d+3}, 0x20000")

def stamp(k, cfg, i, mode=1):
    if cfg.probe:
        if i == 0 or (mode, i) == cfg.probe[1:]: k(f"s_memrealtime {S(78+2*i,2)}")
        return
    if cfg.cyc and cfg.prof and (mode == int(cfg.prof) or i == 0):
        k(f"s_memtime {S(78+2*i,2)}"); return
    if (cfg.span and i == 0) or cfg.prof and (int(cfg.prof) == mode or i == 0): k(f"s_memrealtime {S(78+2*i,2)}")
def cstamp(k, cfg, i, mode=2):
    if int(cfg.prof) == mode: k(f"s_memtime {S(78+2*i,2)}")
def prof_dump(k, cfg, last=False, role=None):
    if cfg.probe:
        if role == cfg.probe[0]:
            l = k.lab("pad"); i = cfg.probe[2]
            k(f"s_waitcnt lgkmcnt(0)\ns_sub_u32 s76, s{78+2*i}, s78\ns_lshl_b32 s76, s76, 4\ns_min_u32 s76, s76, 27000\n" + ("s_add_u32 s76, s76, 3000" if not cfg.probemin else "s_sub_u32 s76, 30000, s76"))
            if cfg.probewg is not None: k(f"s_cmp_lg_u32 s2, {cfg.probewg}\ns_cselect_b32 s76, 0, s76")
            k(f"{l}:\ns_memrealtime s[74:75]\ns_waitcnt lgkmcnt(0)\ns_sub_u32 s74, s74, s78\ns_cmp_lt_u32 s74, s76\ns_cbranch_scc1 {l}")
        return
    if cfg.span == 2 and last:
        k("L_pad:\ns_memrealtime s[80:81]\ns_waitcnt lgkmcnt(0)\ns_sub_u32 s80, s80, s78\ns_cmp_lt_u32 s80, 4000\ns_cbranch_scc1 L_pad")
    if cfg.span == 1 and last:
        k("s_memrealtime s[80:81]\ns_waitcnt lgkmcnt(0)\ns_not_b32 s78, s78\nv_mov_b32 v4, s78\nv_mov_b32 v5, s80\ns_mov_b64 exec, 1")
        k("s_cmp_lg_u32 s3, 4\ns_cbranch_scc1 L_end")
        k(f"buffer_atomic_umax v4, off, {S(sAUX,4)}, 0 offset:8\nbuffer_atomic_umax v5, off, {S(sAUX,4)}, 0 offset:12")
    if not cfg.prof: return
    k("s_waitcnt lgkmcnt(0)")
    k("s_lshl_b32 s76, s2, 3\ns_add_u32 s76, s76, s3\ns_lshl_b32 s76, s76, 6\ns_add_u32 s76, s76, %d" % PROF)
    k("s_mov_b64 exec, 1")
    for q in range(3):
        for e in range(4): k(f"v_mov_b32 v{4+e}, s{78+2*(4*q+e)}")
        k(f"buffer_store_dwordx4 v[4:7], off, {S(sWS,4)}, s76 offset:{16*q}")
    k("s_mov_b64 exec, -1")

def atomic_inc(k, srdreg, soff, vt):
    k(f"v_mov_b32 v{vt}, 1\ns_mov_b64 exec, 1")
    k(f"buffer_atomic_add v{vt}, off, {S(srdreg,4)}, {soff} sc1", "atom")
    k("s_mov_b64 exec, -1")

def s_inc(k, ptr, soff, st):
    k(f"s_mov_b32 s{st}, 1\ns_atomic_add s{st}, {S(ptr,2)}, {soff}")
def s_poll(k, ptr, soffs, want, st, sc, sleep=0):
    l = k.lab("sp"); o = k.lab("spo")
    k(f"s_mov_b32 s{sc}, 0")
    k(f"{l}:")
    for i, so in enumerate(soffs): k(f"s_load_dword s{st+i}, {S(ptr,2)}, {so} glc")
    k(f"s_add_u32 s{sc}, s{sc}, 1")
    k.wait(lg="*")
    k(f"s_cmp_gt_u32 s{sc}, {SPIN}\ns_cbranch_scc1 {o}")
    for i in range(1, len(soffs)): k(f"s_min_u32 s{st}, s{st}, s{st+i}")
    if sleep: k(f"s_cmp_ge_u32 s{st}, {want}\ns_cbranch_scc1 {o}\ns_sleep {sleep}\ns_branch {l}")
    else: k(f"s_cmp_lt_u32 s{st}, {want}\ns_cbranch_scc1 {l}")
    k(f"{o}:")
def v_poll(k, load, vt, want, sc, sleep=0, first=True, tag="*"):
    l = k.lab("vp"); o = k.lab("vpo")
    if first: k(load)
    k(f"s_mov_b32 s{sc}, 0")
    k.wait(vm=tag)
    k(f"{l}:")
    k(f"v_cmp_gt_u32 vcc, {want}, v{vt}\ns_add_u32 s{sc}, s{sc}, 1\ns_cmp_gt_u32 s{sc}, {SPIN}\ns_cbranch_scc1 {o}\ns_cbranch_vccz {o}")
    if sleep: k(f"s_sleep {sleep}")
    sv = list(k.vm); k(load); k("s_waitcnt vmcnt(0)"); k.vm = sv
    k(f"s_branch {l}")
    k(f"{o}:")

def lds_signal(k, vaddr, off, vone):
    k("s_mov_b64 exec, 1")
    k(f"ds_add_u32 v{vaddr}, v{vone} offset:{off}", "sig")
    k("s_mov_b64 exec, -1")
def lds_spin(k, vaddr, off, want, vt, st, sc, sleep=0):
    l = k.lab("spin"); o = k.lab("spun")
    k(f"s_mov_b32 s{sc}, 0")
    k(f"{l}:")
    k(f"ds_read_b32 v{vt}, v{vaddr} offset:{off}\ns_add_u32 s{sc}, s{sc}, 1")
    k.wait(lg="*")
    k(f"v_readfirstlane_b32 s{st}, v{vt}\ns_cmp_gt_u32 s{sc}, {LSPIN}\ns_cbranch_scc1 {o}")
    if sleep: k(f"s_cmp_ge_u32 s{st}, {want}\ns_cbranch_scc1 {o}\ns_sleep {sleep}\ns_branch {l}")
    else: k(f"s_cmp_lt_u32 s{st}, {want}\ns_cbranch_scc1 {l}")
    k(f"{o}:")

sCP, sCS, sCOL, sM, sT, sT2, sSP, sO1, sO2, sDO, sDM = 67, 68, 69, 70, 71, 72, 73, 74, 75, 76, 77
sXO, sWO, sA2, sB2, sDT, sDT2, sE0, sE1, sE2, sE3 = 30, 31, 32, 33, 34, 35, 36, 37, 38, 39
sHH, sG32, sKM = 40, 41, 46
sRW = 40
AB, BB, CB, X1, X8, X256, W1, W8, W256, W2, W4, TT, Z0, Z1, PK = 100, 102, 104, 106, 108, 110, 112, 114, 116, 118, 120, 122, 124, 126, 128
KWG, KR, PA, DSK, DT, VD, VF, UF, KA = 132, 140, 141, 145, 146, 150, 160, 192, 224
LOCT = [4, 6, 1, 0, 3, 5, 2]
ORD = list(range(7))
LOC = list(LOCT)
SY_GS, SY_RING, SY_RD, SY_U, SY_PAIR, SY_S, SY_W2, SY_M = 0, 4, 8, 12, 16, 24, 32, 48

def x_offsets(k, d):
    k(f"v_lshrrev_b32 v154, 3, v0\nv_and_b32 v155, 7, v0\nv_lshrrev_b32 v156, 4, v0\nv_xor_b32 v155, v155, v156")
    k(f"v_lshl_add_u32 v154, s{sCOL}, 5, v154\nv_mul_u32_u24 v154, 896, v154\nv_lshl_add_u32 v{d}, v155, 4, v154\nv_xor_b32 v155, 64, v{d}")
    k(f"v_add_u32 v{d+1}, 6144, v155\nv_add_u32 v{d+2}, {2*6144}, v{d}\nv_add_u32 v{d+3}, {3*6144}, v155")
def w1_offsets(k, d):
    k(f"v_lshrrev_b32 v154, 4, v0\nv_and_b32 v155, 15, v0\nv_lshlrev_b32 v156, 2, v154\nv_xor_b32 v155, v155, v156")
    k(f"v_lshl_add_u32 v154, s{sCOL}, 4, v154\nv_mul_u32_u24 v154, 3584, v154\nv_lshl_add_u32 v{d}, v155, 4, v154")
    for n in (1,2,3): k(f"v_add_u32 v{d+n}, {n*13312}, v{d}")
def w2_offsets(k, d):
    k(f"v_lshrrev_b32 v154, 3, v0\nv_and_b32 v155, 7, v0\nv_bfe_u32 v156, v0, 4, 1\nv_lshlrev_b32 v156, 2, v156\nv_xor_b32 v155, v155, v156")
    k(f"v_mul_u32_u24 v154, 896, v154\nv_lshl_add_u32 v{d}, v155, 4, v154")
    for n in (1,2,3): k(f"v_add_u32 v{d+n}, {n*6144}, v{d}")
sC0, sCE = 42, 43
def piece_bases(k, unit):
    k(f"s_add_u32 s{sB2}, s{sA2}, {unit}\ns_mul_i32 s{sC0}, s{sCE}, {unit}\ns_add_u32 s{sC0}, s{sC0}, s{sA2}")
def piece(n, unit, extra, d):
    if n == 0: return f"s_add_u32 s{d}, s{sC0}, {extra}"
    return f"s_cmp_le_u32 s{sCE}, {n-1}\ns_cselect_b32 s{d}, s{sB2}, s{sA2}\ns_add_u32 s{d}, s{d}, {(n-1)*unit + extra}"
def w2_bases(k, cfg):
    k(f"s_xor_b32 s{sT}, s3, s{sXCD}\ns_bitcmp1_b32 s{sT}, 0\ns_cselect_b32 s{sCE}, 0, s{sC}")
    k(f"s_and_b32 s{sT}, s3, 1\ns_mul_i32 s{sT}, s{sT}, 14\ns_add_u32 s{sT}, s{sT}, s{sCS}\ns_mul_i32 s{sA2}, s{sT}, {64*896}\ns_lshl_b32 s{sT}, s{sKAP}, 7\ns_add_u32 s{sA2}, s{sA2}, s{sT}")
    piece_bases(k, 114688)
def w2dma(b, d):
    out = [f"s_add_u32 m0, s{sM}, {LOC[b%7]*16384}\n" + piece(b//2, 114688, (b & 1)*28672, sDT) + f"\nbuffer_load_dwordx4 v{d}, {S(sW2,4)}, s{sDT} offen lds"]
    for n in (1,2,3): out.append(f"buffer_load_dwordx4 v{d+n}, {S(sW2,4)}, s{sDT} offen offset:{n*1024} lds")
    return [(g, f"w2_{b}") for g in out]
def cmul(k, z, a, w, t):
    k(f"v_pk_mul_f32 {V(t,2)}, {V(a,2)}, {V(w,2)} op_sel_hi:[1,0]")
    k(f"v_pk_fma_f32 {V(z,2)}, {V(a,2)}, {V(w,2)}, {V(t,2)} op_sel:[1,1,0] op_sel_hi:[0,1,1] neg_lo:[0,1,0]")

gW2D, gW2A, gL16, gSY, gONE, gXA, gWA, gSTA, gAGA, gAUG, gSTT, gH = 1, 5, 9, 12, 13, 80, 84, 88, 89, 90, 98, 14
sPW = 22
sGA, ZERO, VSY, VONE, _WD, sW2D, XTA, XTS, EW, CA, CBA, UW, TZ = 8, 30, 34, 35, 36, 40, 44, 46, 64, 65, 66, 67, 48

XR = 56
CLRL = f"buffer_load_dword v49, off, {S(sAUX,4)}, 0 sc1"
class Cap:
    def __init__(self): self.l = []
    def __call__(self, text, tag=None): self.l += [x for x in text.split("\n") if x.strip()]

def front(k, cfg):
    stamp(k, cfg, 0)
    k("s_load_dwordx16 s[28:43], s[0:1], 0\ns_load_dwordx16 s[44:59], s[0:1], 64")
    k("s_cmpk_ge_u32 s2, 256\ns_cbranch_scc1 L_end")
    k(f"s_lshr_b32 s{sJ}, s2, 3")
    if cfg.codepf:
        lp = k.lab("pc")
        k(f"s_getpc_b64 s[72:73]\n{lp}:\nv_and_b32 v2, 15, v0\nv_lshl_add_u32 v2, s{sJ}, 4, v2\nv_min_u32 v2, (L_end-{lp})/64, v2\nv_mov_b32 v3, 0")
        k(f"v_lshlrev_b32 v2, 6, v2\nv_lshl_add_u64 v[2:3], v[2:3], 0, s[72:73]\nglobal_load_dword v159, v[2:3], off", "code")
    k(f"s_sub_u32 s{sCP}, s2, 32\ns_cbranch_scc1 L_helper")
    k(f"v_and_b32 v1, 0xff, v0\nv_lshl_add_u32 v1, s{sCP}, 8, v1\nv_lshlrev_b32 v1, 2, v1\ns_lshl_b32 s{sSP}, s{sCP}, 2")
    if cfg.partner:
        k("v_xor_b32 v3, 0x1000, v1")
        if cfg.pmask2: k(f"v_lshrrev_b32 v2, 8, v0\nv_mul_u32_u24 v2, {cfg.pmask2}, v2\nv_xor_b32 v3, v2, v3")
    def ids():
        k("v_lshrrev_b32 v2, 6, v0\nv_and_b32 v0, 63, v0\nv_readfirstlane_b32 s3, v2")
        k(f"s_and_b32 s{sXCD}, s2, 7\ns_sub_u32 s{sJ}, s{sJ}, 4")
        k(f"s_mul_i32 s{sR}, s{sJ}, 37\ns_lshr_b32 s{sR}, s{sR}, 8\ns_mul_i32 s{sC}, s{sR}, 7\ns_sub_u32 s{sC}, s{sJ}, s{sC}")
        k(f"s_lshr_b32 s{sRB}, s{sXCD}, 1\ns_lshl2_add_u32 s{sRB}, s{sRB}, s{sR}")
        k(f"s_and_b32 s{sXH}, s{sXCD}, 1\ns_mul_i32 s{sFC}, s{sXH}, 7\ns_add_u32 s{sFC}, s{sFC}, s{sC}")
        k(f"s_lshl1_add_u32 s{sKAP}, s{sR}, s{sC}\ns_sub_u32 s{sT}, s{sKAP}, 7\ns_cselect_b32 s{sKAP}, s{sKAP}, s{sT}")
        k(f"s_bfe_u32 s{sCS}, s3, 0x10001\ns_and_b32 s{sCOL}, s3, 3\ns_lshl_b32 s{sM}, s{sCOL}, 12\ns_add_u32 s{sM}, s{sM}, {L_GB}")
    def offs(): x_offsets(k, XD); w1_offsets(k, WD)
    if cfg.prew >= 1: ids()
    if cfg.prew >= 2: offs()
    k("s_waitcnt lgkmcnt(0)")
    stamp(k, cfg, 1, 3)
    for i in range(2): k(f"global_load_dword v{AB+i}, v1, {S(pARE+2*i,2)} {cfg.pmod[0]}", "prm")
    k(f"s_load_dword s{sO1}, {S(pLDT,2)}, s{sSP}\ns_load_dword s{sO2}, {S(pDSK,2)}, s{sSP}")
    if cfg.partner:
        for i in range(2): k(f"global_load_dword v{157+i}, v3, {S(pARE+2*i,2)}", "pp")
    if cfg.prew < 1: ids()
    if cfg.prew == 1: offs()
    for i in range(2, 6): k(f"global_load_dword v{AB+i}, v1, {S(pARE+2*i,2)} {cfg.pmod[1]}", "prm2")
    if cfg.partner == 2:
        for i in range(2, 6): k(f"global_load_dword v157, v3, {S(pARE+2*i,2)}", "pp2")
    stamp(k, cfg, 2, 3)
    if cfg.prew < 1: offs()
    srd(k, sX, pX); srd(k, sW1, pW1); srd_const(k, sX, 1835008); srd_const(k, sW1, 1605632)
    k(f"s_mul_i32 s{sDO}, s{sRB}, 114688\ns_lshl_b32 s{sT}, s{sKAP}, 7\ns_add_u32 s{sDO}, s{sDO}, s{sT}")
    k(f"s_mul_i32 s{sDM}, s{sKAP}, 229376\ns_lshl_b32 s{sT}, s{sFC}, 8\ns_add_u32 s{sDM}, s{sDM}, s{sT}")
    k(f"s_xor_b32 s{sKM}, s3, 4\ns_mul_i32 s{sKM}, s{sKM}, 8704\ns_mov_b32 s47, 0x03020c0c")
    k(f"s_cmp_lt_u32 s3, 4\ns_cselect_b32 s47, 0x01000c0c, s47\ns_cselect_b32 s1, 0, 1")
    def c0issue():
        o = k.lab("c0")
        k(f"s_cmp_eq_u32 s1, 1\ns_cbranch_scc1 {o}")
        stamp(k, cfg, 1, 7)
        for n, (g, t) in enumerate(chunk(cfg, 0, False)): k(g, "c0x" if n < 4 else t)
        stamp(k, cfg, 2, 7)
        k(f"{o}:\ns_mov_b32 m0, s{sKM}\n{ADV}")
    def role_wait(tag, n_s):
        o = k.lab("rw")
        k(f"s_cmp_eq_u32 s1, 0\ns_cbranch_scc1 {o}\ns_waitcnt vmcnt({n_s})\n{o}:")
        k.wait(vm=tag)
    if cfg.c0x == 1: c0issue()
    else: k(f"s_mov_b32 m0, s{sKM}")
    k(f"s_add_u32 s{sT}, s{sKM}, {L_KC}\nv_and_b32 v154, 31, v0\nv_lshrrev_b32 v155, 5, v0\nv_mul_u32_u24 v156, 272, v154\nv_lshl_add_u32 v156, v155, 4, v156\nv_add_u32 v{KR}, s{sT}, v156")
    k(f"s_mov_b32 s44, {fbits(8.0)}\ns_mov_b32 s45, {fbits(256.0)}\nv_mov_b32 v{PK}, 0x3f80\nds_write_addtid_b32 v{PK} offset:{L_KC}")
    k(f"s_mul_i32 s{sE3}, s{sCS}, {L_PCH}\ns_and_b32 s{sHH}, s3, 1\ns_mul_i32 s{sT}, s{sHH}, 3328\ns_add_u32 s{sE3}, s{sE3}, s{sT}\ns_add_u32 s{sE3}, s{sE3}, {L_PART}\nv_lshl_add_u32 v{PA}, v0, 4, s{sE3}")
    srd(k, sWS, pWS); srd_const(k, sWS, WSN)
    k(f"s_lshl1_add_u32 s{sG32}, s{sKAP}, s{sXH}")
    for i in range(4): k(f"v_mov_b32 v{ZERO+i}, 0")
    o = k.lab("g0"); j = k.lab("g1")
    k(f"s_cmp_eq_u32 s1, 1\ns_cbranch_scc1 {o}")
    setup_G(k, cfg, 0)
    k(f"s_branch {j}\n{o}:")
    for part in cfg.early: S_addresses(k, part)
    k(f"{j}:")
    Lhi = struct.unpack("<f", struct.pack("<f", LOG2E))[0]; Llo = LOG2E - Lhi
    k(f"v_mov_b32 v154, {fbits(Lhi)}\nv_mov_b32 v149, {fbits(Llo)}\ns_lshl_b32 s{sT}, s{sCS}, 4")
    stamp(k, cfg, 3, 3)
    k("s_waitcnt lgkmcnt(0)"); k.lg = []
    k(f"s_lshr_b32 s{sO1}, s{sO1}, s{sT}\ns_lshl_b32 s{sO1}, s{sO1}, 16")
    k(f"v_mul_f32 v155, s{sO1}, v154\nv_fma_f32 v156, s{sO1}, v154, -v155\nv_fmac_f32 v156, s{sO1}, v149")
    k(f"v_exp_f32 v155, v155\nv_mul_f32 v156, {fbits(0.6931471805599453)}, v156\nv_fmac_f32 v155, v155, v156\nv_cvt_pk_bf16_f32 v155, v155, v155\nv_and_b32 v{DT+2}, 0xffff0000, v155")
    k(f"v_mul_f32 v{DT}, v154, v{DT+2}\nv_mul_f32 v{DT+1}, 0.15915494, v{DT+2}")
    stamp(k, cfg, 1); stamp(k, cfg, 4, 3)
    if cfg.c0x == 1: role_wait("prm", (4, 6, 10)[cfg.partner])
    else: k.wait(vm="prm")
    stamp(k, cfg, 2); stamp(k, cfg, 5, 3)
    if cfg.c0x == 2: c0issue()
    def xt_read():
        stamp(k, cfg, 3, 7)
        k.wait(vm="c0x")
        stamp(k, cfg, 4, 7)
        k(f"ds_read_b64_tr_b16 {V(XR,2)}, v{XTA}\nds_read_b64_tr_b16 {V(XR+2,2)}, v{XTA+1} offset:512")
        k(f"ds_read_b64_tr_b16 {V(XR+4,2)}, v{XTA+1}\nds_read_b64_tr_b16 {V(XR+6,2)}, v{XTA} offset:512")
    def xt_store():
        for g in (0, 1): k(f"buffer_store_dwordx4 {V(XR+4*g,4)}, v{XTS}, {S(sWS,4)}, s{sE1+g} offen sc1", "xts")
    nv = [0]; pend = []
    def put(z, row, neg, last=False):
        p = PK + row % 4
        k(f"v_cvt_pk_bf16_f32 v{p}, v{z}, {'-' if neg else ''}v{z+1}")
        w = f"ds_write_addtid_b32 v{p} offset:{L_KC + 272*row}"
        if cfg.kdelay:
            if pend: k(pend.pop())
            pend.append(w)
            if last or row == 31: k(pend.pop())
        elif not cfg.x_nokw: k(w)
        nv[0] += 1
        if nv[0] in cfg.xtat:
            o = k.lab("g"); sl = list(k.lg)
            k(f"s_cmp_eq_u32 s1, 1\ns_cbranch_scc1 {o}")
            if nv[0] == cfg.xtat[0]: xt_read(); sl[-1] = "xt"
            else: k.wait(lg="xt"); xt_store()
            k(f"{o}:"); k.lg = sl
        if nv[0] == cfg.touch:
            o = k.lab("g")
            k(f"s_cmp_eq_u32 s1, 1\ns_cbranch_scc1 {o}")
            for n in range(4): k(f"buffer_load_dword v159, v{WD+n}, {S(sW1,4)}, s{sDM} offen offset:{n*1024}", "touch")
            if cfg.w2touch == 3:
                srd(k, sW2, pW2); srd_const(k, sW2, 1605632)
                k(f"s_lshl2_add_u32 s{sT}, s{sCP}, s{sCOL}\ns_mul_i32 s{sT}, s{sT}, 1792\nv_mul_u32_u24 v158, 28, v0\nbuffer_load_dword v159, v158, {S(sW2,4)}, s{sT} offen", "touch")
            k(f"{o}:")
    for i in (0, 1): k(f"v_perm_b32 v{AB+i}, v{AB+i}, v{AB+i}, s47")
    k(f"v_pk_mul_f32 {V(X1,2)}, {V(AB,2)}, {V(DT,2)}")
    k(f"v_pk_mul_f32 {V(X8,2)}, {V(X1,2)}, s[44:45] op_sel_hi:[1,0]\nv_pk_mul_f32 {V(X256,2)}, {V(X1,2)}, s[44:45] op_sel:[0,1] op_sel_hi:[1,1]")
    for x in (X8, X1, X256): k(f"v_fract_f32 v{x+1}, v{x+1}")
    for x, w in ((X8, W8), (X1, W1), (X256, W256)):
        k(f"v_exp_f32 v{x}, v{x}\nv_cos_f32 v{w}, v{x+1}\nv_sin_f32 v{w+1}, v{x+1}")
    for x, w in ((X8, W8), (X1, W1), (X256, W256)):
        k(f"v_pk_mul_f32 {V(w,2)}, {V(w,2)}, {V(x,2)} op_sel_hi:[1,0]")
    if cfg.kbar: k("s_barrier")
    stamp(k, cfg, 6, 3)
    put(W8, 1, False)
    prev = W8
    for b in range(2, 32):
        cmul(k, Z0, prev, W8, TT); prev = Z0; put(Z0, b, False)
    stamp(k, cfg, 7, 3)
    for s in range(8): k(f"ds_read_b128 {V(VF+4*s,4)}, v{KR} offset:{32*s}", "vf")
    role_wait("prm2", 4 if cfg.partner == 2 else 0)
    for i in range(2, 6): k(f"v_perm_b32 v{AB+i}, v{AB+i}, v{AB+i}, s47")
    cmul(k, Z1, BB, CB, TT)
    k(f"v_pk_mul_f32 {V(Z1,2)}, {V(Z1,2)}, {V(DT+2,2)} op_sel_hi:[1,0]")
    put(Z1, 0, True)
    cmul(k, W2, W1, W1, TT); cmul(k, W4, W2, W2, TT)
    prev = Z1
    for a in range(1, 21):
        if a in (8, 12, 14) or a >= 16: cmul(k, Z1, Z1, W256, TT); prev = Z1
        else: cmul(k, Z0, prev, W1 if a < 8 else (W2 if a < 12 else W4), TT); prev = Z0
        put(prev, a, True, a == 20)
    stamp(k, cfg, 8, 3)
    for s in range(8): k(f"ds_read_b128 {V(UF+4*s,4)}, v{KR} offset:{32*s}", f"uf{s}")
    kmf = lambda s: f"v_mfma_f32_32x32x16_bf16 {V(KA,16)}, {V(UF+4*s,4)}, {V(VF+4*s,4)}, {'0' if s == 0 else V(KA,16)}"
    c1 = chunk(cfg, 1)
    o = k.lab("c1"); sl = list(k.lg); sv = list(k.vm)
    k("s_cmp_eq_u32 s1, 1\ns_cbranch_scc1 L_S")
    def s_tail():
        k.lg = list(sl); k.vm = []
        for s in range(8):
            k.wait(lg=f"uf{s}")
            k(kmf(s))
            if s % 2 == 0: k(*c1[4 + s//2])
            if s == 1: srd(k, sAUX, pDBG); srd_const(k, sAUX, 256)
            if s == 3: k(f"v_mov_b32 v{VSY}, {L_SY}\nv_mov_b32 v{VONE}, 1\ns_movk_i32 s50, 128\ns_mov_b32 s51, 229376")
        stamp(k, cfg, 9, 3); stamp(k, cfg, 3); stamp(k, cfg, 7, 7)
        if cfg.pages and "g1" in cfg.warm: k.warm("g1")
        k("s_barrier")
    k.s_tail = s_tail
    cap = Cap(); setup_G(cap, cfg, 1)
    for _ in range(12): k(cap.l.pop(0))
    for s in range(8):
        k.wait(lg=f"uf{s}")
        k(kmf(s))
        if s == 7 and cfg.pages: k.page("g1")
        for _ in range(5): k(cap.l.pop(0))
    stamp(k, cfg, 9, 3)
    for _ in range(8): k(cap.l.pop(0))
    k(f"v_add_f32 v{KA}, v{KA}, v{DSK}")
    for r in (1, 2, 0): k(f"ds_write_b128 v{PA}, {V(KA+4*r,4)} offset:{1024*r}")
    if cfg.xtat[0] > 52: xt_read(); k.wait(lg="*"); xt_store()
    stamp(k, cfg, 5, 7)
    for n in range(4): k(*c1[n])
    stamp(k, cfg, 6, 7)
    while cap.l: k(cap.l.pop(0))
    k.wait(vm="c0")
    stamp(k, cfg, 7, 7)
    stamp(k, cfg, 3)
    stamp(k, cfg, 10, 3)
    k("s_barrier")
    stamp(k, cfg, 11, 3); stamp(k, cfg, 8, 7)

XD, WD, sXH = 150, 132, sJ
ADV = (f"s_add_u32 s{sDO}, s{sDO}, 128\ns_add_u32 s{sDM}, s{sDM}, 229376\ns_cmp_ge_u32 s{sDM}, 1605632\ns_cselect_b32 s{sDT}, 896, 0\n"
       f"s_cselect_b32 s{sDT2}, 1605632, 0\ns_sub_u32 s{sDO}, s{sDO}, s{sDT}\ns_sub_u32 s{sDM}, s{sDM}, s{sDT2}")
def chunk(cfg, c, adv=True):
    out = []
    for vd, srdr, so, slots in ((XD, sX, sDO, L_XS), (WD, sW1, sDM, L_WS)):
        o = [f"buffer_load_dwordx4 v{vd+n}, {S(srdr,4)}, s{so} offen offset:{n*1024} lds" for n in range(4)]
        o[0] = f"s_add_u32 m0, s{sM}, {slots[c % 3]}\n" + o[0]
        out += o
    if adv and c == 1: out[-1] += "\n" + ADV
    if adv and 1 < c < 6:
        out[4] += f"\ns_cmp_ge_u32 s{sDM}, {6*229376}\ns_cselect_b32 s{sDT}, -768, s50\ns_cselect_b32 s{sDT2}, {-6*229376}, s51\ns_add_u32 s{sDO}, s{sDO}, s{sDT}"
        out[7] += f"\ns_add_u32 s{sDM}, s{sDM}, s{sDT2}"
    return [(g, f"c{c}") for g in out]

def setup_G(k, cfg, part):
    if part == 0:
        k(f"v_lshrrev_b32 v{gH}, 5, v0\nv_and_b32 v15, 31, v0")
        k(f"s_lshl_b32 s{sT}, s{sHH}, 13\ns_add_u32 s{sT}, s{sT}, {L_GB+L_XS[2]}")
        k(f"v_bfe_u32 v13, v0, 1, 3\nv_xor_b32 v12, v13, v{gH}\nv_lshlrev_b32 v12, 4, v12\nv_lshl_add_u32 v12, v15, 7, v12\nv_add_u32 v{gXA}, s{sT}, v12")
        for s in (1,2,3): k(f"v_xor_b32 v{gXA+s}, {32*s}, v{gXA}")
        k(f"v_lshrrev_b32 v50, 4, v0\nv_and_b32 v54, 1, v0\nv_lshlrev_b32 v53, 13, v13\nv_lshl_add_u32 v53, v50, 4, v53\nv_lshl_add_u32 v{XTS}, v54, 6, v53")
        k(f"v_bfe_u32 v10, v0, 2, 2\nv_and_b32 v11, 3, v0\nv_lshlrev_b32 v11, 3, v11\nv_and_b32 v12, 16, v0\nv_lshl_add_u32 v11, v12, 1, v11")
        k(f"s_and_b32 s{sT}, s3, 2\nv_xor_b32 v12, s{sT}, v10\nv_lshl_add_u32 v12, v12, 6, v11")
        k(f"v_lshl_add_u32 v13, v{gH}, 3, v10\nv_lshl_add_u32 v12, v13, 8, v12\nv_add_u32 v{gWA}, {L_GB+L_WS[0]}, v12\nv_xor_b32 v{gWA+1}, 64, v{gWA}\nv_add_u32 v{gWA+2}, {L_GB+L_WS[2]}, v12\nv_xor_b32 v{gWA+3}, 64, v{gWA+2}")
        k(f"s_lshl_b32 s{sT}, s{sXH}, 2\nv_lshl_add_u32 v52, v50, 3, v10")
        k(f"v_bfe_u32 v53, v0, 1, 1\nv_or_b32 v53, s{sT}, v53\nv_bfe_u32 v51, v52, 1, 3\nv_xor_b32 v53, v53, v51\nv_lshlrev_b32 v53, 4, v53")
        k(f"s_add_u32 s{sT}, s{sM}, {L_XS[0]}\nv_lshl_add_u32 v53, v52, 7, v53\nv_lshl_add_u32 v53, v54, 3, v53\nv_add_u32 v{XTA}, s{sT}, v53\nv_xor_b32 v{XTA+1}, 32, v{XTA}")
        k(f"s_lshl_b32 s{sT}, s{sG32}, 8\ns_add_u32 s{sT}, s{sT}, s{sRB}\ns_lshl2_add_u32 s{sT}, s{sT}, s{sCOL}\ns_lshl_b32 s{sT}, s{sT}, 7\ns_add_u32 s{sE1}, s{sT}, {XT}\ns_add_u32 s{sE2}, s{sE1}, 65536")
        k(f"s_mul_i32 s{sT}, s3, 4576\ns_cmp_ge_u32 s3, 2\ns_cselect_b32 s{sT}, {L_SY}, s{sT}\ns_sub_u32 s{sT2}, s{sE3}, 16")
        k(f"v_min_u32 v156, 29, v0\nv_lshl_add_u32 v156, v156, 4, s{sT}\nv_mov_b32 v155, s{sT2}\nv_cmp_eq_u32 vcc, 0, v{gH}\ns_nop 1\nv_cndmask_b32 v156, v155, v156, vcc\nds_write_b128 v156, {V(ZERO,4)}")
        return
    k(f"s_lshl_b32 s{sT}, s{sCS}, 4\ns_lshr_b32 s{sO2}, s{sO2}, s{sT}\ns_lshl_b32 s{sO2}, s{sO2}, 16\ns_cmp_eq_u32 s{sHH}, 0\ns_cselect_b32 s{sO2}, s{sO2}, 0")
    k(f"v_mov_b32 v154, s{sO2}\nv_cmp_eq_u32 vcc, 0, v0")
    srd(k, sW2, pW2); srd_const(k, sW2, 1605632)
    k(f"v_cndmask_b32 v{DSK}, 0, v154, vcc")
    w2_bases(k, cfg); w2_offsets(k, gW2D)
    k(f"v_lshl_add_u32 v13, v{gH}, 2, v10\nv_lshl_add_u32 v12, v13, 7, v11\nv_lshrrev_b32 v13, 1, v10\nv_lshl_add_u32 v12, v13, 6, v12")
    k(f"v_add_u32 v{gW2A}, s{sM}, v12\nv_xor_b32 v{gW2A+1}, 64, v{gW2A}\nv_add_u32 v{gW2A+2}, 65536, v{gW2A}\nv_add_u32 v{gW2A+3}, 65536, v{gW2A+1}")
    k(f"s_mul_i32 s{sT}, s{sCS}, 768\ns_add_u32 s{sT}, s{sT}, {L_GS}\nv_lshl_add_u32 v13, v15, 3, s{sT}\nv_cmp_eq_u32 vcc, 0, v{gH}")
    k(f"s_mul_i32 s{sT}, s{sHH}, 768\ns_add_u32 s{sT}, s{sT}, {L_GS+256}\nv_cndmask_b32 v{gAGA}, 0, v13, vcc\nv_lshl_add_u32 v{gSTA}, v15, 2, s{sT}")
    k(f"v_lshlrev_b32 v{gL16}, 4, v0\nv_mov_b32 v{gSY}, {L_SY}\nv_mov_b32 v{gONE}, 1\nv_lshl_add_u32 v10, s{sCOL}, 2, v{gSY}")
    k(f"s_lshl1_add_u32 s{sE0}, s{sRB}, s{sHH}\ns_lshl1_add_u32 s{sXO}, s{sFC}, s{sCS}")
    k(f"s_lshl1_add_u32 s{sWO}, s{sE0}, s{sCS}\ns_lshl1_add_u32 s{sWO}, s{sWO}, s{sXH}\ns_lshr_b32 s{sT}, s{sC}, {1 if cfg.aspread == 4 else 3}\ns_lshl2_add_u32 s{sWO}, s{sWO}, s{sT}\ns_lshl_b32 s{sWO}, s{sWO}, 7\ns_add_u32 s{sWO}, s{sWO}, {ACNT}")
    k(f"s_lshl_b32 s{sXO}, s{sXO}, 13\ns_mul_i32 s{sT}, s{sE0}, 229376\ns_add_u32 s{sXO}, s{sXO}, s{sT}\ns_add_u32 s{sXO}, s{sXO}, {ACT}\ns_add_u32 s{sE3}, s{sXO}, 4096")

def gather_addresses(k, part):
    if part == 1:
        k(f"s_mul_i32 s48, s{sCS}, {L_PCH//132*32}\ns_add_u32 s48, s48, {L_PART//132*32}")
        k(f"v_lshl_add_u32 v50, s{sHH}, 6, v0\ns_add_u32 s{sT}, s48, {255+384}\nv_sub_u32 v2, s{sT}, v50\nv_add_u32 v3, 1, v2\nv_cmp_eq_u32 vcc, 127, v50")
        k(f"v_lshlrev_b32 v50, 3, v50\nv_sub_u32 v50, 1023, v50\nv_subbrev_co_u32 v4, vcc, 0, v2, vcc")
        for e in range(3): k(f"v_lshrrev_b32 v5, 5, v{2+e}\nv_add_lshl_u32 v{sGA+11+e}, v{2+e}, v5, 2")
        k(f"s_sub_u32 s{sT}, s48, 0x4300")
        k(f"v_cvt_f32_i32 v51, v50\nv_add_u32 v50, s{sT}, v50\ns_sub_u32 s{sT2}, s{sT}, 1\nv_mov_b32 v52, s{sT2}\ns_add_u32 s{sT}, s{sT}, 128\ns_mov_b32 s{sT2}, {fbits(128.0)}")
    for n in {0: [], 1: [0, 2], 2: [4, 6, 8, 10]}[part]:
        es = (0, 1) if n < 10 else (0,)
        for e in es:
            k(f"v_subrev_f32 v{2+e}, {fbits(float(n+e))}, v51\nv_max_f32 v{2+e}, s{sT2}, v{2+e}\nv_subrev_u32 v{4+e}, {n+e}, v50\nv_med3_i32 v{4+e}, v{4+e}, v52, s{sT}")
        k(f"v_cvt_pk_bf16_f32 v2, v2, v3")
        for e in es:
            k(f"v_add_u32_sdwa v{4+e}, v{4+e}, v2 dst_sel:DWORD dst_unused:UNUSED_PAD src0_sel:DWORD src1_sel:WORD_{e}")
            k(f"v_lshrrev_b32 v3, 5, v{4+e}\nv_add_lshl_u32 v{sGA+n+e}, v{4+e}, v3, 2")
    if part == 0:
        k(f"v_and_b32 v50, 31, v0\nv_lshrrev_b32 v51, 5, v0")
        k(f"v_lshlrev_b32 v2, 3, v50\nv_lshl_add_u32 v2, v51, 2, v2\nv_sub_u32 v3, 2, v51\nv_lshlrev_b32 v3, v3, v50\nv_lshl_add_u32 v3, v51, 7, v3\nv_add_u32 v3, 256, v3")
        k(f"v_lshl_add_u32 v4, v51, 7, v50\nv_add_u32 v4, 512, v4")
        for e, d in ((0, 0), (1, 1), (2, 3)): k(f"v_lshrrev_b32 v5, 5, v{2+e}\nv_add_u32 v5, v5, v{2+e}\nv_lshl_add_u32 v{sPW+d}, v5, 2, s{sE3}")
        k(f"v_lshl_add_u32 v{sPW+2}, v51, 8, v{sPW+1}")

RS = [0]
JSETS = (([7, 6, 0], [5, 4, 3, 2, 1]), ([7, 6, 1], [5, 4, 3, 2, 0]), ([7, 6, 2], [5, 4, 1, 0, 3]))
vXC, vST, vXW, vODD, vGA, vGW, vSC = 26, 27, 28, 29, 36, 37, 38
def S_addresses(k, part):
    sWV = sCOL
    if part < 3: gather_addresses(k, part)
    if part == 3:
        k(f"s_mul_i32 s{sT}, s{sCS}, 16640\ns_add_u32 s{sT}, s{sT}, {L_KC}\ns_lshl_b32 s{sT2}, s{sHH}, 10\ns_add_u32 s{sT2}, s{sT2}, s{sT}\nv_lshl_add_u32 v{EW}, v0, 4, s{sT2}")
        k(f"v_bfe_u32 v2, v0, 1, 2\nv_mul_u32_u24 v2, 4160, v2\nv_and_b32 v{vODD}, 1, v0\nv_lshl_add_u32 v2, v{vODD}, 4, v2\nv_add_u32 v{TZ}, s{sT}, v2")
        k(f"s_lshr_b32 s{sT}, s{sCP}, 4\ns_lshl_b32 s{sT}, s{sT}, 2\ns_add_u32 s{sT}, s{sT}, {C_XT}\ns_lshl_b32 s{sT}, s{sT}, 7\nv_and_b32 v2, 3, v0\nv_lshl_add_u32 v{vXC}, v2, 7, s{sT}")
        k(f"s_lshl_b32 s{sT}, s{sCP}, 13\ns_add_u32 s{sT}, s{sT}, {XT}\nv_lshl_add_u32 v2, s{sWV}, 6, v0\nv_and_b32 v3, 0xfc, v2\nv_add_u32 v3, v3, v2\nv_lshl_add_u32 v{vXW}, v3, 4, s{sT}\nv_lshlrev_b32 v{vST}, 4, v2\nv_add_u32 v{UW}, {L_U+480}, v{vST}")
        k(f"s_mov_b32 s{sXO}, {STATS}\ns_mov_b32 s{sWO}, {STATS+4096}")
    if part == 4:
        k(f"s_lshl_b32 s{sT}, s{sFC}, 2\ns_add_u32 s{sT}, s{sT}, s{sWV}\ns_lshl_b32 s{sT}, s{sT}, 8\ns_add_u32 s{sT}, s{sT}, {AUGW}\nv_lshl_add_u32 v3, v0, 4, s{sT}")
        k(f"s_lshl_b32 s{sT}, s{sRB}, 2\ns_add_u32 s{sT}, s{sT}, s{sWV}\ns_lshl_b32 s{sT}, s{sT}, 6\ns_add_u32 s{sT}, s{sT}, {STATS}\nv_lshl_add_u32 v4, v{vODD}, 12, s{sT}")
        k(f"v_bfe_u32 v2, v0, 1, 2\nv_lshl_add_u32 v4, v2, 4, v4\nv_cmp_gt_u32 vcc, 16, v0\ns_mul_i32 s{sE0}, s{sWV}, 384\ns_add_u32 s{sE0}, s{sE0}, {L_GS}\nv_cndmask_b32 v{vGA}, v4, v3, vcc")
        k(f"v_min_u32 v2, 23, v0\nv_lshl_add_u32 v{vGW}, v2, 4, s{sE0}")
        w2_offsets(k, sW2D)
    if part == 7:
        k(f"v_bfe_u32 v53, v0, 2, 2\nv_lshlrev_b32 v53, 7, v53\nv_and_b32 v54, 3, v0\nv_lshl_add_u32 v53, v54, 4, v53\nv_lshrrev_b32 v54, 5, v0\nv_lshl_add_u32 v53, v54, 6, v53")
        k(f"v_bfe_u32 v54, v0, 4, 1\nv_lshl_add_u32 v54, v54, 9, v53")
        k(f"s_lshl_b32 s{sO1}, s{sCP}, 1\ns_add_u32 s{sO1}, s{sO1}, s{sCS}")
        k(f"s_lshr_b32 s{sT}, s{sO1}, 6\ns_lshl_b32 s{sT}, s{sT}, 1\ns_add_u32 s{sT}, s{sT}, s{sHH}\ns_lshl_b32 s{sT}, s{sT}, 2\ns_bfe_u32 s{sT2}, s{sO1}, 0x20004")
        k(f"s_add_u32 s{sT}, s{sT}, s{sT2}\ns_add_u32 s{sT}, s{sT}, {C_ST}\ns_lshl_b32 s{sO2}, s{sT}, 7")
        k(f"s_lshl_b32 s{sO1}, s{sO1}, 12\ns_add_u32 s{sO1}, s{sO1}, {ST}")
    if part == 6:
        srd(k, sW2, pW2); srd_const(k, sW2, 1605632); srd(k, sOUT, pOUT); srd_const(k, sOUT, 1835008)
        w2_bases(k, None)
    if part == 5:
        k(f"s_mul_i32 s{sT}, s{sCS}, 16640\ns_add_u32 s{sT}, s{sT}, {L_KC+24}" + (f"\ns_lshl_b32 s{sT2}, s{sHH}, 8\ns_sub_u32 s{sT}, s{sT}, s{sT2}" if RS[0] else ""))
        k(f"v_and_b32 v2, 3, v0\nv_sub_u32 v2, 3, v2\nv_mul_u32_u24 v2, 4160, v2\nv_bfe_u32 v3, v0, 2, 2\nv_lshlrev_b32 v3, 3, v3\nv_sub_u32 v2, v2, v3")
        k(f"v_lshrrev_b32 v3, 4, v0\nv_lshl_add_u32 v2, v3, 4, v2\nv_add_u32 v{CA}, s{sT}, v2")
        k(f"s_mul_i32 s{sT}, s{sCS}, 4576\ns_add_u32 s{sT}, s{sT}, {L_U+256*RS[0]}" + (f"\ns_sub_u32 s{sT}, s{sT}, s{sT2}" if RS[0] else ""))
        k(f"v_and_b32 v2, 15, v0\nv_lshlrev_b32 v2, 5, v2\nv_lshl_add_u32 v2, v3, 4, v2\nv_add_u32 v{CBA}, s{sT}, v2")
        k(f"v_lshl_add_u32 v{vSC}, s{sWV}, 2, v{VSY}")

def gen_G(k, cfg):
    ACC, W2R, RING = 16, 80, 192
    FS = [100, 116, 132]
    W2D, W2A, L16, XA, WA, AUG, STT = gW2D, gW2A, gL16, gXA, gWA, gAUG, gSTT
    RC, RL, T, P = 240, 244, 248, 208
    assert cfg.depth <= 6
    k("s_setprio 2")
    stamp(k, cfg, 1, 2); cstamp(k, cfg, 10)
    def w2read(step, dst_step):
        b = step // 2; loc = LOC[b % 7]*16384 + (step & 1)*2048; hi = 2 if loc >= 65536 else 0; loc -= hi*32768
        out = []
        for d2 in (0, 1):
            for rd in (0, 1):
                out.append(f"ds_read_b64_tr_b16 {V(W2R + dst_step*8 + d2*4 + rd*2, 2)}, v{W2A+hi+d2} offset:{loc + rd*1024}")
        return out
    def reads(i):
        c, s, F = i // 4, i % 4, FS[i % 3]; sl = c % 3
        wa, wo = (WA, L_WS[sl] - L_WS[0]) if sl < 2 else (WA + 2, 0)
        w = lambda ft: [f"ds_read_b64_tr_b16 {V(F+8+4*ft+2*rd,2)}, v{wa+ft} offset:{wo + s*4096 + rd*1024}" for rd in (0, 1)]
        x = [f"ds_read_b128 {V(F+4*tt,4)}, v{XA+s} offset:{L_XS[sl] - L_XS[2] + tt*4096}" for tt in (0, 1)]
        return w(0) + x + w(1)
    dq = []
    cap = Cap()
    for i in (0, 1):
        for r in reads(i): k(r, f"f{i}")
    for i in range(28):
        F = FS[i % 3]
        rd = reads(i+2) if i + 2 < 28 else []
        edge = rd and (i + 2) % 4 == 0
        gaps = [[], rd[:3], rd[3:], []] if edge else [rd[:2], rd[2:4], rd[4:], []]
        k.wait(lg=f"f{i}")
        for m in range(4):
            ft, tt = m >> 1, m & 1; a = ACC + 16*m
            k(f"v_mfma_f32_32x32x16_bf16 {V(a,16)}, {V(F+8+4*ft,4)}, {V(F+4*tt,4)}, {'0' if i == 0 else V(a,16)}")
            if edge and m == 1:
                c = (i+2)//4
                if c == 1: stamp(k, cfg, 9, 7)
                k.wait(vm={1: "c1", cfg.xtbar: "*"}.get(c), lg="*")
                if c == 1: stamp(k, cfg, 10, 7)
                if not cfg.x_nobar: k("s_barrier")
                stamp(k, cfg, 1 + c, 2)
                if c == 1: stamp(k, cfg, 11, 7)
                dq += [x for b in (2*c-10, 2*c-9) if int(cfg.sblk) <= b < cfg.gblk and not cfg.sall for x in w2dma(ORD[b], W2D)]
            if dq and i >= cfg.w2from and m in (3, 0 if (edge or i >= 26) else 1): g, t = dq.pop(0); k(g, t)
            for r in gaps[m]: k(r, f"f{i+2}")
            if m == 3:
                for _ in range(4):
                    if cap.l: k(cap.l.pop(0))
                assert i < 18 or not cap.l
            if i == 26 and m == 1:
                k.wait(lg="*"); k("s_barrier")
                if cfg.sblk and not cfg.s45: dq += w2dma(ORD[4], W2D)
                for tt in (0, 1): k(f"ds_read_b32 v{STT+tt}, v{gSTA} offset:{384*tt}", "st")
            if i == 26 and m == 2:
                for ft in (0, 1): k(f"ds_read_b64 {V(AUG+4+2*ft,2)}, v{gAGA} offset:{384*ft}", "ag")
            if i == 27 and m == 0: k(f"s_mov_b32 s50, {fbits(-15.0)}\ns_mov_b32 s44, {fbits(2.0**-15)}\ns_mov_b32 s45, {fbits(2.0**-30)}")
            if i == 27 and m == 1: k.wait(lg="*")
            if i == 27 and m in (1, 2):
                tt = m - 1
                k(f"s_mov_b32 s{sT}, 0x01000100\nv_and_b32 v11, 0xffff0000, v{STT+tt}\nv_rcp_f32 v{RC+2*tt}, v11")
                k(f"v_perm_b32 v{AUG+2*tt}, v{STT+tt}, v{STT+tt}, s{sT}\nv_lshrrev_b32 v{AUG+2*tt+1}, 16, v{STT+tt}")
            if i == 27 and m == 3:
                for tt in (0, 1): k(f"v_mul_f32 v{RC+2*tt+1}, {fbits(-2.0**-29) if cfg.rshare else '-2.0'}, v{RC+2*tt}\nv_mul_f32 v{RL+tt}, {fbits(LOG2E)}, v{RC+2*tt}")
    for m in range(4):
        ft, tt = m >> 1, m & 1; a = ACC + 16*m
        k(f"v_mfma_f32_32x32x8_bf16 {V(a,16)}, {V(AUG+4+2*ft,2)}, {V(AUG+2*tt,2)}, {V(a,16)}")
        if dq: g, t = dq.pop(0); k(g, t)
    assert not dq
    if cfg.pages: k.page("mish")
    stamp(k, cfg, 4); stamp(k, cfg, 8, 2); cstamp(k, cfg, 11)
    stq = []
    assert cfg.b8at % 2 == 0 and cfg.pbar2 == 0
    for g in range(8):
        if (cfg.mbar == 2 and 2*g == cfg.b8at) or (g and 2*g == cfg.pbar2): k("s_barrier")
        stamp(k, cfg, 1 + g, 6)
        m, sp = g >> 1, g & 1; ft, tt = m >> 1, m & 1; a = ACC + 16*m + 8*sp; p = P + 4*(g & 1)
        if cfg.rshare:
            U = 224; t = lambda i: V(T+2*i, 2); u = lambda i: V(U+2*i, 2)
            for i in range(4): k(f"v_pk_fma_f32 {t(i)}, {V(a+2*i,2)}, {V(RL,2)}, s[50:51] op_sel:[0,{tt},0] op_sel_hi:[1,{tt},0]")
            for i in range(8): k(f"v_exp_f32 v{T+i}, v{T+i} clamp")
            for i in range(4): k(f"v_pk_add_f32 {t(i)}, {t(i)}, s[44:45] op_sel_hi:[1,0]")
            for i in range(4): k(f"v_pk_fma_f32 {t(i)}, {t(i)}, {t(i)}, s[44:45] op_sel:[0,0,1] op_sel_hi:[1,1,1]")
            k(f"v_pk_mul_f32 {u(0)}, {t(0)}, {t(1)}\nv_pk_mul_f32 {u(1)}, {t(2)}, {t(3)}\nv_pk_mul_f32 {u(2)}, {u(0)}, {u(1)}")
            k(f"v_rcp_f32 v{U+4}, v{U+4}\nv_rcp_f32 v{U+5}, v{U+5}")
            for i in (0, 1): k(f"v_pk_mul_f32 {u(i)}, {u(i)}, {V(RC+2*tt,2)} op_sel:[0,1] op_sel_hi:[1,1]") if False else None
            k(f"v_pk_mul_f32 {u(2)}, {u(2)}, {V(RC+2*tt,2)} op_sel:[0,1] op_sel_hi:[1,1]")
            k(f"v_pk_mul_f32 {u(1)}, {u(1)}, {u(2)}\nv_pk_mul_f32 {u(0)}, {u(0)}, {u(2)}")
            for i in range(4): k(f"v_pk_fma_f32 {t(i)}, {t(i)}, {u(1 - (i >> 1))}, {V(RC+2*tt,2)} op_sel_hi:[1,1,0]")
        else:
            for i in range(4): k(f"v_pk_mul_f32 {V(T+2*i,2)}, {V(a+2*i,2)}, {V(RL,2)} op_sel:[0,{tt}] op_sel_hi:[1,{tt}]")
            for i in range(8): k(f"v_exp_f32 v{T+i}, v{T+i}")
            for i in range(4): k(f"v_pk_add_f32 {V(T+2*i,2)}, {V(T+2*i,2)}, 1.0 op_sel_hi:[1,0]")
            for i in range(4): k(f"v_pk_fma_f32 {V(T+2*i,2)}, {V(T+2*i,2)}, {V(T+2*i,2)}, 1.0 op_sel_hi:[1,1,0]")
            if (cfg.mbar == 2 and 2*g + 1 == cfg.b8at) or 2*g + 1 == cfg.pbar2: k("s_barrier")
            for i in range(8): k(f"v_rcp_f32 v{T+i}, v{T+i}")
            for i in range(4): k(f"v_pk_fma_f32 {V(T+2*i,2)}, {V(T+2*i,2)}, {V(RC+2*tt,2)}, {V(RC+2*tt,2)} op_sel:[0,1,0] op_sel_hi:[1,1,0]")
        sw = 1 if cfg.rshare else 0
        for i in range(4): k(f"v_pk_mul_f32 {V(T+2*i,2)}, {V(T+2*i,2)}, {V(a+2*(i^sw),2)}")
        if g == 7 and cfg.mbar: k("s_barrier")
        if g == 7 and not cfg.mbar:
            lds_signal(k, 10, SY_M, gONE)
            if cfg.sblk: k(f"ds_read_b32 v11, v{gSY} offset:{SY_U}", "w2r1")
        p = RING + 4*(2*(2*ft + sp) + tt)
        for i in range(4): k(f"v_cvt_pk_bf16_f32 v{p+(i^sw)}, v{T+2*i}, v{T+2*i+1}")
        stq.append(f"buffer_store_dwordx4 {V(p,4)}, v{L16}, {S(sWS,4)}, s{sXO if ft == 0 else sE3} offen offset:{sp*2048 + tt*1024} sc1")
        if g in cfg.stat:
            while stq: k(stq.pop(0), "act")
    stamp(k, cfg, 5); stamp(k, cfg, 9, 6)
    k("s_setprio 3")
    k.wait(vm=f"w2_{ORD[3 if cfg.s45 else 4]}" if cfg.sblk else "w2_3")
    def rdblk(b):
        for s in (0, 1):
            for r in w2read(2*b+s, 2*b+s): k(r, f"w2r{b}")
    sSTO = sE0
    k(f"s_lshl_b32 s{sSTO}, s{sRB}, 1\ns_and_b32 s{sT}, s{sXCD}, 1\ns_add_u32 s{sSTO}, s{sSTO}, s{sT}")
    k(f"s_lshl_b32 s{sE1}, s{sSTO}, 2\ns_add_u32 s{sE1}, s{sE1}, s3\ns_lshl_b32 s{sE1}, s{sE1}, 9\ns_add_u32 s{sE1}, s{sE1}, {ACNT}\ns_add_u32 s48, s{pWS}, s{sE1}\ns_addc_u32 s49, s{pWS+1}, 0")
    apoll = "\n".join(f"s_load_dword s{52+i}, s[48:49], {128*i} glc" for i in range(cfg.aspread))
    asum = "".join(f"s_add_u32 s52, s52, s{52+i}\n" for i in range(1, cfg.aspread))
    blk = lambda b: [(r, f"w2r{b}") for s in (0, 1) for r in w2read(2*b+s, 2*b+s)]
    assert cfg.gblk == 4
    order = [4, 5, 7, 6, 8, 9, 10, 11, 12, 13]
    rq = blk(0) + blk(1) + blk(2) + blk(3)
    if cfg.sblk: order = [6, 7, 8, 9, 10, 11, 12, 13]; rq += blk(4) + blk(5)
    for n, b in enumerate(order):
        if b == 7 and not cfg.sblk: k(f"ds_read_b32 v11, v{gSY} offset:{SY_U}", "w2r1")
        if b == 6 and not cfg.mbar:
            k.wait(lg="w2r1")
            o = k.lab("wl"); sl = list(k.lg)
            k(f"v_readfirstlane_b32 s{sT}, v11\ns_cmp_ge_u32 s{sT}, 4\ns_cbranch_scc1 {o}")
            lds_spin(k, gSY, SY_U, 4, 11, sT, sSP)
            k(f"{o}:"); k.lg = sl
        if b in (9, 10, 11) and (b == 11 or not cfg.sblk):
            k.wait(vm=f"w2_{b-5}"); rq += blk(b-5)
        if b == 12: k(f"ds_read_b32 v11, v{gSY}"); k.wait(lg="w2r6")
        if b >= 7: k.wait(lg=f"w2r{b-7}")
        for g, t in w2dma(b, W2D):
            k(g, t)
            for _ in range(4 if (cfg.sblk and n == 0) else 2):
                if rq: k(*rq.pop(0))
        if n == cfg.flagat:
            k.wait(vm="act")
            s_inc(k, pWS, f"s{sWO}", sT2)
            stamp(k, cfg, 6)
        if n == cfg.pollat: k(apoll)
    assert not rq
    assert order[cfg.pollat] >= 12
    k(f"s_and_b32 s{sT}, s3, 1\ns_mul_i32 s{sT}, s{sT}, 14\ns_add_u32 s{sT}, s{sT}, s{sCS}\ns_lshl_b32 s{sT}, s{sT}, 13\ns_mul_i32 s{sA2}, s{sSTO}, 229376\ns_add_u32 s{sA2}, s{sA2}, s{sT}\ns_add_u32 s{sA2}, s{sA2}, {ACT}")
    piece_bases(k, 16384)
    stamp(k, cfg, 7)
    if cfg.pages: k.page("g2")
    l = k.lab("ap"); o = k.lab("ar")
    k(f"s_mov_b32 s{sSP}, 0\n{l}:")
    k.wait(lg="*")
    k(f"{asum}s_add_u32 s{sSP}, s{sSP}, 1\ns_cmp_ge_u32 s52, 7\ns_cbranch_scc1 {o}\ns_cmp_gt_u32 s{sSP}, {SPIN}\ns_cbranch_scc1 {o}")
    if cfg.actsleep: k(f"s_sleep {cfg.actsleep}")
    k(f"{apoll}\ns_branch {l}\n{o}:")
    stamp(k, cfg, 8)
    k(f"s_setprio {cfg.g2prio}")
    D = 2*cfg.depth; n0 = 28 - cfg.tailn
    seq = [(s, tt) for s in range(n0) for tt in (0, 1)] + [(s, tt) for tt in (0, 1) for s in range(n0, 28)]
    cur = [None]
    def actload(j):
        s, tt = seq[j]; out = []
        if cur[0] != s//2:
            cur[0] = s//2
            out.append(piece(s//4, 16384, (s & 2)*2048, sT) + (f"\ns_and_b32 s{sT}, s{sT}, 0xfffff" if cfg.x_acthit else ""))
        out.append(f"buffer_load_dwordx4 {V(RING + (j % D)*4, 4)}, v{L16}, {S(sW2 if cfg.x_acthit else sWS,4)}, s{sT} offen offset:{(s & 1)*2048 + tt*1024} {cfg.actmod}")
        return "\n".join(out)
    stamp(k, cfg, 1, 5)
    o = k.lab("own")
    if cfg.own: k(f"s_xor_b32 s{sT}, s3, s{sXCD}\ns_bitcmp0_b32 s{sT}, 0\ns_cbranch_scc1 {o}")
    k(f"s_setprio {cfg.nprio}")
    for j in range(D):
        if j == 8: k(f"{o}:")
        k(actload(j), f"a{j}")
    stamp(k, cfg, 2, 5)
    DA = [1, 2, 3, 4, 10, 11, 14, 15]
    if cfg.pdump:
        k(f"v_and_b32 v14, 7, v0\nv_lshrrev_b32 v15, 5, v0\nv_xor_b32 v15, v15, v14\nv_lshlrev_b32 v15, 4, v15\nv_and_b32 v14, 31, v0\nv_lshl_add_u32 v15, v14, 7, v15\nv_add_u32 v{DA[0]}, s{sM}, v15")
        for i in range(1, 4): k(f"v_xor_b32 v{DA[i]}, {32*i}, v{DA[0]}")
        def dump(tt, d2s):
            out = []
            for d2 in d2s:
                r = [ACC + 16*(2*d2+tt) + 8*jp for jp in (0, 1)]
                out += ["\n".join(f"v_cvt_pk_bf16_f32 v{x+i}, v{x+2*i}, v{x+2*i+1}" for i in range(4)) for x in r]
                out += [f"v_permlane32_swap_b32 v{x}, v{x+2}\nv_permlane32_swap_b32 v{x+1}, v{x+3}\nds_write_b128 v{DA[2*d2+jp]}, {V(x,4)} offset:{tt*16384}" for jp, x in enumerate(r)]
            return out
    else:
        k(f"v_and_b32 v14, 15, v0\nv_lshrrev_b32 v15, 5, v0\nv_xor_b32 v15, v15, v14\nv_lshlrev_b32 v15, 4, v15\nv_lshl_add_u32 v15, v14, 8, v15")
        k(f"v_bfe_u32 v14, v0, 4, 1\nv_lshl_add_u32 v15, v14, 14, v15\nv_add_u32 v{DA[0]}, s{sM}, v15")
        for i in range(1, 8): k(f"v_xor_b32 v{DA[i]}, {32*i}, v{DA[0]}")
        dump = lambda tt, d2s: [f"ds_write_b128 v{DA[4*d2+jj]}, {V(ACC+16*(2*d2+tt)+4*jj,4)} offset:{tt*32768}" for d2 in d2s for jj in range(4)]
    jlast0 = max(j for j in range(56) if seq[j][1] == 0)
    assert 14 + cfg.rdlag < n0 and cfg.tailq <= min(D, cfg.tailn)
    q0 = 56 - cfg.tailq
    ops = [(j, d2) for j in range(q0) for d2 in (0, 1)] + [(j, d2) for d2 in (0, 1) for j in range(q0, 56)]
    d0 = dump(0, (0, 1)); d1 = dump(1, (0, 1)); i0 = ops.index((jlast0, 1)); i1 = ops.index((55, 0)); sig = [False]
    for i, (j, d2) in enumerate(ops):
        s, tt = seq[j]
        if d2 == 0:
            k.wait(vm=f"a{j}", lg=f"r{s}" if s >= 14 else None)
            if j % 8 == 0: stamp(k, cfg, 3 + j//8, 5)
        w = W2R + (s % 14)*8; x = RING + (j % D)*4; a = ACC + 16*(2*d2 + tt)
        rs = s - cfg.rdlag
        k(f"v_mfma_f32_32x32x16_bf16 {V(a,16)}, {V(w+4*d2,4)}, {V(x,4)}, {'0' if s == 0 else V(a,16)}")
        if d2 == 0 and j >= 1 and j - 1 + D < 56: k(actload(j - 1 + D), f"a{j-1+D}")
        if d2 == 1 and 1 <= rs <= 14: k("\n".join(w2read(rs + 13, rs - 1)[2*tt:2*tt+2]), f"r{rs+13}")
        if i >= i0 + 2 and d0 and (cfg.pdump or (i - i0) % 2 == 0 or len(d0) >= len(ops) - i): k(d0.pop(0))
        elif not d0 and not sig[0]: lds_signal(k, gSY, SY_GS, gONE); sig[0] = True
        elif cfg.tailq and sig[0] and i >= i1 + 2 and len(d1) > 4 and (cfg.pdump or (i - i1) % 2 == 0): k(d1.pop(0))
    while d0: k(d0.pop(0))
    if not sig[0]: lds_signal(k, gSY, SY_GS, gONE)
    stamp(k, cfg, 9); stamp(k, cfg, 10, 5)
    for x in d1: k(x)
    k.wait(lg="*")
    stamp(k, cfg, 11, 5)
    k("s_barrier")
    stamp(k, cfg, 10)
    prof_dump(k, cfg, role="G")
    k("s_endpgm")

class Pacer:
    def __init__(self, k, pace): self.k, self.pace, self.q, self.n = k, pace, [], 0
    def __call__(self, text, tag=None):
        lines = text.split("\n")
        for i, ln in enumerate(lines):
            self.k(ln, tag)
            if i + 1 < len(lines) and lines[i+1].startswith(("s_cselect", "s_addc", "s_cbranch")): continue
            self.n += 11 if "ds_write_b128" in ln else 5 if "ds_write" in ln else 2 if ("ds_read" in ln or "v_rcp" in ln) else 1
            if self.q and self.n >= self.pace: self.pop()
    def pop(self):
        g, t = self.q.pop(0); self.k(g, t); self.n = 0
    def flush(self):
        while self.q: self.pop()

def gen_S(k, cfg, vm0):
    k.reset()
    if cfg.pages: k(".p2align 12")
    k("L_S:")
    k.s_tail()
    sWV, GA = sCOL, sGA
    p = Pacer(k, cfg.pace)
    def bar(c, lg="*"):
        p.flush()
        if c == 1: stamp(k, cfg, 9, 7)
        k.wait(vm=f"c{c}", lg=lg)
        if c == 1: stamp(k, cfg, 10, 7)
        stamp(k, cfg, 1+c, 2)
        if not cfg.x_nobar: k("s_barrier")
    G0, XV, CP = 160, 192, 208
    SV, XW, CN, MM, RR, XF, GS = 100, 108, 116, 120, 128, 136, 144
    def copies(x, off, sgs):
        for sg in sgs:
            c = CP + 4*sg
            for jj in range(4): p(f"v_cvt_pk_bf16_f32 v{c+jj}, v{x[sg+2*jj]}, v{x[sg+2*jj+1]}")
            p(f"ds_write_b128 v{EW}, {V(c,4)} offset:{sg*4160 + off}")
    k("s_setprio 0")
    k(CLRL, "clr")
    w2t = f"s_lshl2_add_u32 s{sT}, s{sCP}, s{sCOL}\ns_mul_i32 s{sT}, s{sT}, 1792\nv_mul_u32_u24 v62, 28, v0\nbuffer_load_dword v62, v62, {S(sW2,4)}, s{sT} offen"
    if cfg.w2touch == 1: assert 6 in cfg.early; k(w2t)
    held = []
    late = lambda part: S_addresses(p, part) if part not in cfg.early else None
    def ring(c):
        ch = chunk(cfg, c); p.q = held + ch[:cfg.r2cut]; held[:] = ch[cfg.r2cut:]; p.pop()
    stl = f"buffer_load_dwordx4 {V(SV,4)}, v{vST}, {S(sWS,4)}, s{sXO} offen sc1\nbuffer_load_dwordx4 {V(SV+4,4)}, v{vST}, {S(sWS,4)}, s{sWO} offen sc1"
    xcl = f"buffer_load_dword v{CN}, v{vXC}, {S(sWS,4)}, 0 offen sc1"
    gsl = f"s_mov_b32 m0, s{sE0}\ns_mov_b64 exec, 0xffffff\nbuffer_load_dwordx4 v{vGA}, {S(sWS,4)}, 0 offen sc1 lds\ns_mov_b64 exec, -1"
    pw = [f"ds_write2_b32 v{sPW+a}, v{KA+r}, v{KA+r+1} offset0:{o0} offset1:{o1}" for a, r, o0, o1 in
          ((0, 0, 0, 1), (0, 2, 2, 3), (1, 4, 0, 1), (2, 6, 2, 3), (3, 8, 0, 33), (3, 10, 66, 99))]
    ring(2)
    p(f"v_lshrrev_b32 v50, 1, v0\nv_and_b32 v52, 1, v0\nv_lshl_add_u32 v52, s{sWV}, 1, v52\nv_bfe_u32 v51, v0, 2, 3\nv_xor_b32 v51, v51, v52\nv_lshlrev_b32 v51, 4, v51\nv_lshl_add_u32 v51, v50, 7, v51")
    p(f"s_and_b32 s{sT}, s{sXCD}, 1\ns_lshl_b32 s{sT}, s{sT}, 13\ns_add_u32 s{sT}, s{sT}, {L_GB+L_XS[0]}\nv_add_u32 v51, s{sT}, v51")
    p(f"ds_read_b128 v[248:251], v51\nds_read_b128 v[252:255], v51 offset:4096")
    late(6); late(3)
    if cfg.w2touch == 2: p.flush(); k(w2t)
    bar(1)
    def xtflag():
        v_poll(k, CLRL, 49, 4, sSP, 2, first=False, tag="clr")
        o = k.lab("xf")
        k(f"s_lshl_b32 s{sT}, s{sG32}, 2\ns_add_u32 s{sT}, s{sT}, s{sR}\ns_add_u32 s{sT}, s{sT}, {C_XT}\ns_lshl_b32 s{sT}, s{sT}, 7\ns_cmp_lg_u32 s{sCOL}, 0\ns_cbranch_scc1 {o}")
        s_inc(k, pWS, f"s{sT}", sE2)
        k(f"{o}:")
    ring(3)
    if cfg.xtbar == 1: p.pop(); xtflag(); p.pop(); p.pop()
    late(0); late(5)
    for r in range(3): p(f"ds_read_b128 {V(G0+4*r,4)}, v{PA} offset:{1024*r}", "raw")
    bar(2, None)
    if cfg.xtbar == 2: xtflag()
    ring(4)
    late(1)
    bar(3, None)
    ring(5)
    late(2)
    bar(4, None)
    stamp(k, cfg, 4)
    if cfg.r2cut == 8: k(xcl, "xc")
    ring(6)
    for _ in range(8 - cfg.r2cut - 1): p.pop()
    if cfg.r2cut < 8: k(xcl, "xc")
    k.wait(lg="*")
    for i in range(12): p(f"v_add_f32 v{KA+i}, v{KA+i}, v{G0+i}")
    late(4)
    bar(5, None)
    p.q = list(held); p.flush()
    v_poll(k, xcl, CN, 4, sSP, 2, first=False, tag="xc")
    k(stl, "st")
    for e in (0, 1): k(f"buffer_load_dwordx4 {V(XW+4*e,4)}, v{vXW}, {S(sWS,4)}, 0 offen offset:{64*e} sc1", "xw")
    k(gsl, "gs")
    if cfg.sall:
        n1, n2 = cfg.sall
        assert n1 <= 8 and n2 % 4 == 0 and n2 <= 16
        wq = [x for b in range(6) for x in w2dma(ORD[b], sW2D)]
        p.q = wq[:n1]
        bar(6, None)
        p.q = wq[n1:n2]; p.pop()
        late(7); p.flush()
    else:
        p.q = w2dma(ORD[0], sW2D); p.pop()
        late(7)
        bar(6, None)
    stamp(k, cfg, 5)
    if cfg.pages:
        o = k.lab("wm")
        for n, name in enumerate(("cvA", "cvB", "mish")):
            if name not in cfg.warm: continue
            o2 = k.lab("wn")
            k(f"s_cmp_lg_u32 s{sWV}, {n}\ns_cbranch_scc1 {o2}"); k.warm(name); k(f"{o2}:")
    k.wait(vm="gs")
    k(f"s_mov_b32 s{sSP}, 0")
    l = k.lab("xp"); o = k.lab("xpo")
    k(f"{l}:")
    k(f"ds_read_b128 {V(GS,4)}, v{vGW}")
    k(f"v_min_u32 v{CN}, v{SV}, v{SV+1}\ns_add_u32 s{sSP}, s{sSP}, 1")
    for i in range(1, 4): k(f"v_min3_u32 v{CN}, v{CN}, v{SV+2*i}, v{SV+2*i+1}")
    for i in range(8): k(f"v_and_b32 v{RR+i}, 0xffff0000, v{SV+i}")
    k.wait(lg="*")
    k(f"v_min3_u32 v{CN}, v{CN}, v{GS+1}, v{GS+3}")
    k(f"v_cmp_eq_u32 vcc, 0, v{CN}\ns_cmp_gt_u32 s{sSP}, {SPIN}\ns_cbranch_scc1 {o}\ns_cbranch_vccz {o}")
    sv = list(k.vm); k(stl); k(gsl); k("s_waitcnt vmcnt(0)"); k.vm = sv
    k(f"s_branch {l}")
    k(f"{o}:")
    stamp(k, cfg, 8, 2)
    k("s_barrier")
    stamp(k, cfg, 1, 6)
    if cfg.sall: p.q = wq[n2:]; p.pace = cfg.pace2; p.pop()
    for i in range(8): p(f"v_rcp_f32 v{RR+i}, v{RR+i}\nv_lshlrev_b32 v{MM+i}, 16, v{SV+i}")
    for i in range(8): p(f"v_mul_f32 v{MM+i}, v{MM+i}, v{RR+i}")
    for ch in (0, 1):
        if ch: k("s_setprio 3")
        for i in range(4): p(f"v_lshlrev_b32 v{XF+2*i}, 16, v{XW+4*ch+i}\nv_and_b32 v{XF+2*i+1}, 0xffff0000, v{XW+4*ch+i}")
        for i in range(8): p(f"v_fma_f32 v{XF+i}, v{XF+i}, v{RR+i}, -v{MM+i}")
        for i in range(4): p(f"v_cvt_pk_bf16_f32 v{XW+4*ch+i}, v{XF+2*i}, v{XF+2*i+1}")
    stamp(k, cfg, 9, 2); stamp(k, cfg, 2, 6)
    k(f"v_lshl_add_u32 v55, s{sCS}, 2, v{VSY}")
    p.flush()
    if cfg.sblk and not cfg.sall:
        for g, t in (w2dma(ORD[4], sW2D) if cfg.s45 else []) + w2dma(ORD[5], sW2D): k(g, t)
    stamp(k, cfg, 3, 6)
    k("\n".join(pw))
    if not cfg.pbar2: lds_signal(k, 55, SY_PAIR, VONE)
    stamp(k, cfg, 4, 6)
    stamp(k, cfg, 5, 6)
    if cfg.pbar2: assert cfg.split == 'J'; k.wait(lg="*"); k("s_barrier")
    else: lds_spin(k, 55, SY_PAIR, 2, 50, sT, sSP)
    stamp(k, cfg, 6, 6)
    for i in list(range(11, 14)) + list(range(11)): k(f"ds_read2st64_b32 {V(G0+2*i,2)}, v{GA+i} offset1:13", "ga" if i > 10 else "gb")
    for ch in (0, 1): k(f"ds_write_b128 v{UW}, {V(XW+4*ch,4)} offset:{4576*ch}")
    k(f"ds_write_b128 v{TZ}, {V(ZERO,4)} offset:4096")
    for ps, x in enumerate(([XV+12]*3 + [XV+14] + [XV+11]*6 + [XV+13], [XV+i for i in range(11)])):
        k.wait(lg="gb" if ps else "ga")
        stamp(k, cfg, 7 + ps, 6)
        for i in (range(11) if ps else range(11, 14)): k(f"v_add_f32 v{XV+i}, v{G0+2*i}, v{G0+2*i+1}")
        if ps == 0: k(f"v_cmp_eq_u32 vcc, 1, v{vODD}\nv_cndmask_b32 v{XV+14}, v{XV+12}, v{XV+11}, vcc")
        for sg in range(4):
            for jj in range(4): k(f"v_cvt_pk_bf16_f32 v{CP+16*ps+4*sg+jj}, v{x[sg+2*jj]}, v{x[sg+2*jj+1]}")
            k(f"ds_write_b128 v{EW}, {V(CP+16*ps+4*sg,4)} offset:{sg*4160 + ps*2048}")
    stamp(k, cfg, 9, 6)
    if cfg.mbar:
        k.wait(vm="*", lg="*"); k("s_barrier")
    else:
        k.wait(vm="*")
        lds_signal(k, VSY, SY_U, VONE)
        lds_spin(k, VSY, SY_U, 4, 50, sT, sSP, cfg.usleep)
    stamp(k, cfg, 10, 6)
    Y, FS, YS = 68, [100, 164], 228
    def a_read(r, F, a): return [f"ds_read_b64 {V(F+4*a+2*e,2)}, v{CA} offset:{(7-a)*512 + (7-r)*64 + 8*e}" for e in (0, 1)]
    def b_read(r, F, c): return [f"ds_read_b128 {V(F+32+4*c,4)}, v{CBA} offset:{c*512 + (7-r)*64 - 256*RS[0]}"]
    def first(ms):
        seen = []
        for J, a in ms:
            for t in (("a", a), ("b", J - a)):
                if t not in seen: seen.append(t)
        rd = [(x, f"z{t[0]}{t[1]}") for t in seen for x in (a_read if t[0] == "a" else b_read)(0, FS[0], t[1])]
        for x in rd[:cfg.cvpre]: k(*x)
        stamp(k, cfg, 10, 2)
        if cfg.mbar == 2: k("s_barrier")
        if not cfg.mbar: lds_spin(k, vSC, SY_M, 1, 50, sT, sSP, cfg.usleep)
        k(f"s_setprio {cfg.cvprio}")
        stamp(k, cfg, 6); stamp(k, cfg, 11, 2); stamp(k, cfg, 11, 6)
        return rd[cfg.cvpre:]
    if cfg.split == 'r':
        ms = [(a + c, a) for c in range(8) for a in range(8 - c)]
        cfg.cvpre = 24; first(ms); k.wait(lg='*')
        for r in range(4):
            F = FS[r & 1]; N = FS[(r+1) & 1]; nxt = []
            if r < 3:
                for i in range(8): nxt += a_read(r+1, N, i) + b_read(r+1, N, i)
            if r > 0: k.wait(lg="*")
            if r == 3:
                lds_signal(k, VSY, SY_RD, VONE)
                nxt = f"s_lshl_b32 s{sT}, s{sWV}, 12\ns_add_u32 s{sT}, s{sT}, 16384\nv_lshl_add_u32 v51, v0, 4, s{sT}\nv_xor_b32 v52, 0x1000, v51\ns_lshl_b32 s{sT}, s{sHH}, 11\ns_add_u32 s{sO1}, s{sO1}, s{sT}".split("\n")
            n = 0
            for i, (J, a) in enumerate(ms):
                k(f"v_mfma_f32_16x16x32_bf16 {V(Y+4*J,4)}, {V(F+4*a,4)}, {V(F+32+4*(J-a),4)}, {'0' if (r == 0 and J == a) else V(Y+4*J,4)}")
                if n < len(nxt): k(nxt[n]); n += 1
                if r == 3 and i == 28: k(f"ds_read_b32 v50, v{VSY} offset:{SY_RD}")
        stamp(k, cfg, 7); stamp(k, cfg, 1, 5)
        k("s_setprio 3")
        o = k.lab("rd")
        k.wait(lg="*")
        k(f"v_readfirstlane_b32 s{sT}, v50\ns_cmp_ge_u32 s{sT}, 4\ns_cbranch_scc1 {o}")
        lds_spin(k, VSY, SY_RD, 4, 50, sT, sSP)
        k(f"{o}:")
        l1 = k.lab("h1"); l2 = k.lab("hj"); EX = 100
        k(f"s_cmp_eq_u32 s{sHH}, 1\ns_cbranch_scc1 {l1}\ns_nop 3")
        for i in range(4): k(f"ds_write_b128 v51, {V(Y+16+4*i,4)} offset:{1024*i}")
        lds_signal(k, 55, SY_PAIR, VONE)
        k(f"s_branch {l2}")
        k(f"{l1}:")
        for i in range(4): k(f"ds_write_b128 v51, {V(Y+4*i,4)} offset:{1024*i}")
        lds_signal(k, 55, SY_PAIR, VONE)
        for i in range(16): k(f"v_mov_b32 v{Y+i}, v{Y+16+i}")
        k(f"{l2}:")
        lds_spin(k, 55, SY_PAIR, 4, 50, sT, sSP)
        for i in range(4): k(f"ds_read_b128 {V(EX+4*i,4)}, v52 offset:{1024*i}", f"e{i}")
        for g in (0, 1):
            for i in (2*g, 2*g+1):
                k.wait(lg=f"e{i}")
                for e in range(4): k(f"v_add_f32 v{Y+4*i+e}, v{Y+4*i+e}, v{EX+4*i+e}")
                for e in (0, 1): k(f"v_cvt_pk_bf16_f32 v{YS+2*i+e}, v{Y+4*i+2*e}, v{Y+4*i+2*e+1}")
            for e in (0, 1): k(f"v_permlane16_swap_b32 v{YS+4*g+e}, v{YS+4*g+2+e}")
            k(f"buffer_store_dwordx4 {V(YS+4*g,4)}, v54, {S(sWS,4)}, s{sO1} offen offset:{1024*g} sc1", "sts")
    else:
        lB = "L_cvB"; lJ = "L_epi"
        k(f"s_cmp_eq_u32 s{sHH}, 1\ns_cbranch_scc1 {lB}")
        if cfg.pages: k.page("cvA")
        for Js in JSETS[cfg.jbal]:
            top = max(Js)
            ms = [(J, a) for a in range(top+1) for J in Js if a <= J]
            rest = first(ms)
            for r in range(8):
                F = FS[r & 1]; N = FS[(r+1) & 1]; nxt = list(rest); rest = []
                if r < 7:
                    for i in range(top+1): nxt += [(x, None) for x in a_read(r+1, N, i) + b_read(r+1, N, top-i)]
                if r > 0: k.wait(lg="*")
                if r == 7: lds_signal(k, VSY, SY_RD, VONE)
                n = 0; slots = len(ms) - cfg.cvfree
                for i, (J, a) in enumerate(ms):
                    if r == 0:
                        for t in (f"za{a}", f"zb{J-a}"):
                            assert t not in [y[1] for y in nxt[n:]]
                            k.wait(lg=t)
                    k(f"v_mfma_f32_16x16x32_bf16 {V(Y+4*J,4)}, {V(F+4*a,4)}, {V(F+32+4*(J-a),4)}, {'0' if (r == 0 and a == 0) else V(Y+4*J,4)}")
                    while n < len(nxt) and n*slots < (i+1)*len(nxt): k(*nxt[n]); n += 1
                assert n == len(nxt)
            stamp(k, cfg, 7); stamp(k, cfg, 1, 5)
            groups = [(Js[-1], Js[-1])] + [(Js[i+1], Js[i]) for i in range(len(Js)-3, -1, -2)]
            for g, (lo, hi) in enumerate(groups):
                y = YS + 4*g
                for q, J in enumerate((lo, hi)):
                    for e in (0, 1): k(f"v_cvt_pk_bf16_f32 v{y+2*q+e}, v{Y+4*J+2*e}, v{Y+4*J+2*e+1}")
                for e in (0, 1): k(f"v_permlane16_swap_b32 v{y+e}, v{y+2+e}")
                k(f"buffer_store_dwordx4 {V(y,4)}, v{53 if lo == hi else 54}, {S(sWS,4)}, s{sO1} offen offset:{512*lo} sc1", "sts")
            if top == 7:
                k(f"s_branch {lJ}")
                if cfg.pages: k.page("cvB", False)
                else: k(f"{lB}:")
                k.reset()
        if cfg.pages: k.page("epi")
        else: k(f"{lJ}:")
    if cfg.x_nos2:
        k("s_barrier"); prof_dump(k, cfg, True); k("s_endpgm"); return
    XE, OA, RA, SA, XU, SU = 248, 64, 68, 70, 120, 136
    k(f"s_lshl1_add_u32 s{sRB}, s{sRB}, s{sXH}\ns_mov_b32 s{sC}, s{sKAP}")
    k(f"v_lshrrev_b32 v50, 1, v0\nv_mul_u32_u24 v52, 896, v50\nv_lshl_add_u32 v{OA}, v{vODD}, 4, v52")
    k(f"s_mul_i32 s{sG32}, s{sRB}, {64*896}\ns_lshl2_add_u32 s{sT}, s{sC}, s{sWV}\ns_lshl_b32 s{sT}, s{sT}, 5\ns_add_u32 s{sG32}, s{sG32}, s{sT}\ns_add_u32 s{sKAP}, s{sG32}, {32*896}")
    k(f"v_lshl_add_u32 v51, s{sWV}, 1, v{vODD}\nv_and_b32 v55, 15, v50\nv_lshlrev_b32 v52, 1, v51\nv_xor_b32 v52, v52, v55\nv_lshlrev_b32 v52, 4, v52\nv_lshl_add_u32 v52, v55, 8, v52")
    k(f"v_lshrrev_b32 v55, 5, v0\nv_lshl_add_u32 v52, v55, 14, v52\nv_add_u32 v{RA}, {L_GB}, v52\nv_xor_b32 v{RA+1}, 16, v{RA}")
    if cfg.pdump: k(f"v_and_b32 v52, 7, v50\nv_xor_b32 v52, v52, v51\nv_lshlrev_b32 v52, 4, v52\nv_lshl_add_u32 v52, v50, 7, v52\nv_add_u32 v{RA}, {L_GB}, v52")
    k(f"v_bfe_u32 v52, v0, 4, 1\nv_lshl_add_u32 v52, v52, 2, v55\nv_xor_b32 v52, v52, v51\nv_lshlrev_b32 v52, 4, v52\nv_lshl_add_u32 v52, v51, 10, v52\nv_and_b32 v55, 14, v0\nv_add_u32 v{SA}, v55, v52\nv_xor_b32 v{SA+1}, 32, v{SA}")
    assert L_U == 0
    k(f"v_lshrrev_b32 v50, 3, v0\nv_and_b32 v51, 7, v0\ns_lshl_b32 s{sT}, s{sWV}, 1\nv_xor_b32 v56, s{sT}, v51\nv_lshlrev_b32 v56, 4, v56\nv_lshl_add_u32 v56, v50, 12, v56\nv_xor_b32 v57, 16, v56\nv_add_u32 v57, {32768-1024}, v57")
    k.wait(vm="*")
    s_inc(k, pWS, f"s{sO2}", sE3)
    stamp(k, cfg, 8); stamp(k, cfg, 2, 5)
    for i in range(8): k(f"v_lshlrev_b32 v{XU+2*i}, 16, v{XE+i}\nv_and_b32 v{XU+2*i+1}, 0xffff0000, v{XE+i}")
    k(f"s_lshr_b32 s{sT2}, s{sRB}, 2\ns_lshr_b32 s{sT2}, {0xf0 if RS[0] else sum(1 << J for J in JSETS[cfg.jbal][1])}, s{sT2}\ns_and_b32 s{sT2}, s{sT2}, 1")
    k(f"s_lshl_b32 s{sT}, s{sC}, 1\ns_add_u32 s{sT}, s{sT}, s{sT2}\ns_lshl_b32 s{sT}, s{sT}, 2\ns_add_u32 s{sT}, s{sT}, s{sWV}\ns_add_u32 s{sT}, s{sT}, {C_ST}\ns_lshl_b32 s{sO1}, s{sT}, 7")
    k(f"s_lshl_b32 s{sT}, s{sC}, 2\ns_add_u32 s{sT}, s{sT}, s{sWV}\ns_lshl_b32 s{sT}, s{sT}, 16\ns_lshl_b32 s{sT2}, s{sRB}, 7\ns_add_u32 s{sT}, s{sT}, s{sT2}\ns_add_u32 s{sO2}, s{sT}, {ST}")
    for i in range(16): k(f"v_mov_b32 v{SU+i}, 0")
    k(f"s_lshl_b32 m0, s{sWV}, 11")
    if not RS[0]: lds_spin(k, VSY, SY_RD, 4, 50, sT, sSP, 1)
    s_poll(k, pWS, [f"s{sO1}"], 16, sT, sSP, cfg.stpoll[1])
    stamp(k, cfg, 3, 5)
    k(f"buffer_load_dwordx4 v56, {S(sWS,4)}, s{sO2} offen sc1 lds\nbuffer_load_dwordx4 v57, {S(sWS,4)}, s{sO2} offen offset:1024 sc1 lds")
    k.wait(vm="*")
    stamp(k, cfg, 9); stamp(k, cfg, 4, 5)
    for ps in (0, 1):
        for e in range(8): k(f"ds_read_u16_d16_hi v{SU+8*ps+e}, v{SA+ps} offset:{128*e}")
    k(f"s_mov_b32 s{sO1}, {fbits(-LOG2E)}\ns_movk_i32 s50, 0x3f80\ns_mov_b32 s51, 0x3f800000")
    PR, T = 160, 224
    for ps in (0, 1):
        b = PR + 32*ps; plain = ps == 0 and cfg.p0plain
        if ps == 0:
            stamp(k, cfg, 5, 5); lds_spin(k, VSY, SY_GS, 4, 50, sT, sSP, cfg.finsleep); stamp(k, cfg, 6, 5)
        else:
            stamp(k, cfg, 7, 5); k("s_barrier"); stamp(k, cfg, 10); stamp(k, cfg, 8, 5)
        if cfg.pdump:
            for w in range(4): k(f"ds_read_b128 {V(b+8+4*w,4)}, v{RA} offset:{16384*ps + 4096*w}", f"p{w}")
            for w in range(4):
                k.wait(lg=f"p{w}")
                for i in range(4):
                    x = b + 8 + 4*w + i
                    if w == 0: k(f"v_lshlrev_b32 v{b+2*i}, 16, v{x}\nv_and_b32 v{b+2*i+1}, 0xffff0000, v{x}")
                    elif plain: k(f"v_lshlrev_b32 v{T}, 16, v{x}\nv_and_b32 v{x}, 0xffff0000, v{x}\nv_add_f32 v{b+2*i}, v{b+2*i}, v{T}\nv_add_f32 v{b+2*i+1}, v{b+2*i+1}, v{x}")
                    else: k(f"v_dot2c_f32_bf16 v{b+2*i}, s50, v{x}\nv_dot2c_f32_bf16 v{b+2*i+1}, s51, v{x}")
        else:
            for w in range(4):
                for e in (0, 1): k(f"ds_read_b128 {V(b+8*w+4*e,4)}, v{RA+e} offset:{32768*ps + 4096*w}", f"p{w}")
            def add(x, y):
                if ps == 0 and cfg.p0plain:
                    for i in range(8): k(f"v_add_f32 v{x+i}, v{x+i}, v{y+i}")
                else:
                    for i in range(4): k(f"v_pk_add_f32 {V(x+2*i,2)}, {V(x+2*i,2)}, {V(y+2*i,2)}")
            k.wait(lg="p1")
            add(b, b+8)
            k.wait(lg="p3")
            add(b+16, b+24); add(b, b+16)
        if plain and cfg.p0plain == 2:
            for i in range(8): k(f"v_mul_f32 v{T+i}, s{sO1}, v{b+i}")
            for i in range(8): k(f"v_exp_f32 v{T+i}, v{T+i}")
            for i in range(8): k(f"v_mul_f32 v{b+i}, v{b+i}, v{SU+i}")
            for i in range(8): k(f"v_add_f32 v{T+i}, 1.0, v{T+i}")
            for i in range(8): k(f"v_rcp_f32 v{T+i}, v{T+i}")
            for i in range(8): k(f"v_fma_f32 v{b+i}, v{b+i}, v{T+i}, v{XU+i}")
        else:
            for i in range(4): k(f"v_pk_mul_f32 {V(T+2*i,2)}, {V(b+2*i,2)}, {S(sO1,2)} op_sel_hi:[1,0]")
            for i in range(8): k(f"v_exp_f32 v{T+i}, v{T+i}")
            for i in range(4): k(f"v_pk_mul_f32 {V(b+2*i,2)}, {V(b+2*i,2)}, {V(SU+8*ps+2*i,2)}")
            for i in range(4): k(f"v_pk_add_f32 {V(T+2*i,2)}, {V(T+2*i,2)}, 1.0 op_sel_hi:[1,0]")
            for i in range(8): k(f"v_rcp_f32 v{T+i}, v{T+i}")
            for i in range(4): k(f"v_pk_fma_f32 {V(b+2*i,2)}, {V(b+2*i,2)}, {V(T+2*i,2)}, {V(XU+8*ps+2*i,2)}")
        for i in range(4): k(f"v_cvt_pk_bf16_f32 v{b+8+i}, v{b+2*i}, v{b+2*i+1}")
        k(f"buffer_store_dwordx4 {V(b+8,4)}, v{OA}, {S(sOUT,4)}, s{sG32 if ps == 0 else sKAP} offen {cfg.outmod}")
    if cfg.prof or cfg.probe: k("s_waitcnt vmcnt(0)")
    stamp(k, cfg, 11); stamp(k, cfg, 9, 5)
    prof_dump(k, cfg, True, role="S")
    k("s_endpgm")

def gen_helper(k, cfg):
    k.reset()
    k("L_helper:")
    sHB, sIH, sST = 62, 63, 64
    k(f"v_lshrrev_b32 v1, 6, v0\nv_and_b32 v0, 63, v0\nv_readfirstlane_b32 s3, v1\ns_and_b32 s{sXCD}, s2, 7")
    k(f"s_lshl_b32 s{sHB}, s{sXCD}, 2\ns_add_u32 s{sHB}, s{sHB}, s{sJ}")
    k(f"s_lshr_b32 s{sIH}, s{sXCD}, 1\ns_lshl_b32 s{sIH}, s{sIH}, 2\ns_add_u32 s{sIH}, s{sIH}, s{sJ}\ns_and_b32 s{sST}, s{sXCD}, 1\ns_mul_i32 s{sST}, s{sST}, 14\ns_add_u32 s{sST}, s{sST}, s{sIH}")
    k(f"s_lshl_b32 s{sT}, s{sHB}, 3\ns_add_u32 s{sT}, s{sT}, s3\ns_mul_i32 s65, s{sT}, {8*896}")
    k(f"v_lshrrev_b32 v1, 3, v0\nv_and_b32 v2, 7, v0\nv_mul_u32_u24 v3, 896, v1\nv_lshl_add_u32 v3, v2, 4, v3")
    k(f"v_lshlrev_b32 v4, 4, v0\nv_and_b32 v5, 1, v0\nv_lshlrev_b32 v5, 12, v5\nv_lshrrev_b32 v6, 1, v0\nv_lshl_add_u32 v5, v6, 4, v5")
    k(f"v_mul_u32_u24 v15, 3584, v1\nv_lshl_add_u32 v15, v2, 4, v15")
    k(f"s_lshl_b32 s67, s{sHB}, 7\ns_add_u32 s67, s67, {STATS}")
    k(f"s_lshl_b32 s69, s{sST}, 9\ns_add_u32 s69, s69, {AUGW}\ns_mul_i32 s70, s3, {56*3584}\ns_lshl_b32 s74, s{sST}, 7\ns_add_u32 s70, s70, s74")
    srd_const(k, sAUX, 256); srd_const(k, sWS, WSN); srd_const(k, sX, 1835008); srd_const(k, sW1, 1605632); srd_const(k, sW2, 1605632); srd_const(k, sOUT, 3584)
    k("s_waitcnt lgkmcnt(0)")
    srd(k, sW1, pW1); srd(k, sX, pX); srd(k, sWS, pWS); srd(k, sAUX, pDBG); srd(k, sW2, pW2); srd(k, sOUT, pB1)
    stamp(k, cfg, 5)
    if cfg.tlb:
        k(f"s_lshl_b32 s72, s3, 21\ns_load_dword s30, {S(pWS,2)}, s72\ns_load_dword s31, {S(pW2,2)}, 0\ns_load_dword s32, {S(pOUT,2)}, 0\ns_load_dword s33, {S(pW1,2)}, 0\ns_load_dword s34, {S(pDBG,2)}, 128")
    l0 = k.lab("h0")
    k(f"s_cmp_lt_u32 s{sIH}, 14\ns_cbranch_scc1 {l0}")
    for i in range(4): k(f"v_mov_b32 v{8+i}, 0")
    k(f"s_and_b32 s66, s{sXCD}, 1\ns_lshl_b32 s66, s66, 1\ns_and_b32 s{sT}, s{sJ}, 1\ns_add_u32 s66, s66, s{sT}\ns_lshl_b32 s66, s66, 3\ns_add_u32 s66, s66, s3\ns_lshl_b32 s66, s66, 12")
    for n in range(4): k(f"buffer_store_dwordx4 v[8:11], v4, {S(sWS,4)}, s66 offen offset:{1024*n} sc1")
    k(f"s_mov_b32 s69, {WSN}\ns_mov_b32 s70, {WSN}\ns_waitcnt vmcnt(0)\ns_barrier\ns_cmp_lg_u32 s3, 7\ns_cbranch_scc1 {l0}")
    s_inc(k, pDBG, "0", 75)
    k(f"{l0}:")
    stamp(k, cfg, 4)
    if cfg.hdelay: k(f"s_sleep {cfg.hdelay}")
    k.reset()
    if cfg.hxfirst:
        for i in range(7): k(f"buffer_load_dwordx4 {V(16+4*i,4)}, v3, {S(sX,4)}, s65 offen offset:{128*i}", f"x{i}")
    if cfg.hsplit: k("s_barrier")
    for i in range(7): k(f"s_add_u32 s76, s70, {i*8*3584}\nbuffer_load_dwordx4 {V(44+4*i,4)}, v15, {S(sW1,4)}, s76 offen", f"w{i}")
    k(f"v_lshlrev_b32 v6, 1, v0\nbuffer_load_ushort v81, v6, {S(sOUT,4)}, s74 offen", "b1")
    k("v_and_b32 v12, 1, v0\nv_lshlrev_b32 v12, 4, v12\nv_mov_b32 v13, 0xbf80\nv_lshlrev_b32 v13, v12, v13\nv_bfe_u32 v12, v0, 1, 2")
    for e in range(4): k(f"v_cmp_eq_u32 vcc, {e}, v12\nv_cndmask_b32 v{72+e}, 0, v13, vcc")
    k(f"v_lshrrev_b32 v82, 5, v0\nv_lshl_add_u32 v82, s3, 1, v82\nv_lshlrev_b32 v82, 8, v82\nv_bfe_u32 v13, v0, 4, 1\nv_lshl_add_u32 v82, v13, 7, v82\nv_lshl_add_u32 v82, v2, 2, v82\nv_add_u32 v82, 1024, v82")
    k("v_mov_b32 v12, 0\nv_mov_b32 v13, 0\ns_mov_b32 s68, 0x3f803f80")
    if not cfg.hxfirst:
        for i in range(7): k(f"buffer_load_dwordx4 {V(16+4*i,4)}, v3, {S(sX,4)}, s65 offen offset:{128*i}", f"x{i}")
    hclr = f"buffer_load_dword v83, off, {S(sAUX,4)}, 0 sc1"
    k(hclr, "clr")
    if int(cfg.prof) == 8:
        stamp(k, cfg, 1, 8)
        for i, t in enumerate(("x0", "x3", "x6", "w0", "w3", "w6")):
            sv = list(k.vm); k.wait(vm=t); k.vm = sv; stamp(k, cfg, 2 + i, 8)
    if cfg.hearly:
        k(f"s_lshr_b32 s71, s{sHB}, 4\ns_mul_i32 s71, s71, {512*896}\ns_lshl3_add_u32 s72, s{sHB}, s3\ns_mul_i32 s72, s72, {3*896}\ns_add_u32 s71, s71, s72")
        k(f"v_min_u32 v84, 20, v0\nv_lshlrev_b32 v84, 7, v84\nbuffer_load_dword v84, v84, {S(sW2,4)}, s71 offen", "pf0")
    for i in range(7):
        k.wait(vm=f"x{i}")
        for e in range(4): k(f"v_dot2c_f32_bf16 v12, s68, v{16+4*i+e}\nv_dot2c_f32_bf16 v13, v{16+4*i+e}, v{16+4*i+e}")
    stamp(k, cfg, 6)
    for m in ("quad_perm:[1,0,3,2]", "quad_perm:[2,3,0,1]", "row_half_mirror"):
        for r in (12, 13): k(f"v_add_f32_dpp v{r}, v{r}, v{r} {m} row_mask:0xf bank_mask:0xf")
    k(f"v_mul_f32 v12, {fbits(1/448)}, v12\nv_mul_f32 v13, {fbits(1/448)}, v13\nv_fma_f32 v13, -v12, v12, v13\nv_max_f32 v13, 0, v13")
    k(f"v_cvt_pk_bf16_f32 v13, v13, v13\nv_and_b32 v13, 0xffff0000, v13\nv_add_f32 v13, {fbits(1e-5)}, v13\nv_cvt_pk_bf16_f32 v13, v13, v13\nv_and_b32 v13, 0xffff0000, v13")
    k(f"v_sqrt_f32 v13, v13\nv_lshl_add_u32 v14, s3, 3, v1\nv_lshlrev_b32 v14, 2, v14\nv_cvt_pk_bf16_f32 v12, v12, v13")
    k("ds_write_b32 v14, v12")
    for j in range(7):
        k.wait(vm=f"w{j}")
        k(f"v_mfma_f32_16x16x32_bf16 v[76:79], {V(44+4*j,4)}, v[72:75], {'0' if j == 0 else 'v[76:79]'}")
    k("ds_write2_b32 v82, v76, v77 offset0:0 offset1:8\nds_write2_b32 v82, v78, v79 offset0:16 offset1:24")
    stamp(k, cfg, 7)
    v_poll(k, hclr, 83, 4, 73, 2, first=False, tag="clr")
    stamp(k, cfg, 8)
    k.wait(lg="*")
    k("s_barrier")
    stamp(k, cfg, 1)
    l2 = k.lab("h2"); l3 = k.lab("h3")
    k(f"s_cmp_lg_u32 s3, 0\ns_cbranch_scc1 {l2}")
    k("s_mov_b64 exec, 0xffff\nds_read_b128 v[8:11], v4")
    k.wait(lg="*")
    k(f"buffer_store_dwordx4 v[8:11], v5, {S(sWS,4)}, s67 offen sc1\ns_mov_b64 exec, -1")
    k(f"{l2}:")
    k(f"s_cmp_lg_u32 s3, 1\ns_cbranch_scc1 {l3}")
    k("v_lshlrev_b32 v12, 2, v0")
    for j in range(8): k(f"ds_read2st64_b32 {V(16+2*j,2)}, v12 offset0:{4+2*j} offset1:{5+2*j}")
    k.wait(lg="*")
    for st_ in (1, 2, 4, 8):
        for j in range(0, 16, 2*st_): k(f"v_add_f32 v{16+j}, v{16+j}, v{16+j+st_}")
    k(f"v_cvt_pk_bf16_f32 v12, v16, v16\nv_and_b32 v12, 0xffff0000, v12\nv_sub_f32 v12, v16, v12\nv_cvt_pk_bf16_f32 v80, v16, v12\nv_or_b32 v81, 0x10000, v81\nv_lshlrev_b32 v12, 3, v0")
    k(f"buffer_store_dwordx2 v[80:81], v12, {S(sWS,4)}, s69 offen sc1")
    k(f"{l3}:")
    k("s_barrier")
    stamp(k, cfg, 2)
    k(f"v_lshlrev_b32 v14, 7, v0\ns_mul_i32 s76, s{sJ}, 401408\ns_mul_i32 s77, s{sXCD}, 49\ns_lshr_b32 s77, s77, 3\ns_add_u32 s77, s77, s3")
    for i in range(cfg.w2pf):
        k(f"s_sub_u32 s71, s77, 49\ns_cmp_ge_u32 s77, 49\ns_cselect_b32 s77, s71, s77\ns_lshl_b32 s71, s77, 13\ns_add_u32 s71, s71, s76\ns_add_u32 s77, s77, 8")
        k(f"buffer_load_dword v{90+i}, v14, {S(sW2,4)}, s71 offen", "pf")
    if cfg.actpf:
        k(f"s_lshl1_add_u32 s71, s{sIH}, 0\ns_and_b32 s72, s{sXCD}, 1\ns_add_u32 s71, s71, s72\ns_lshr_b32 s72, s3, 1\ns_lshl2_add_u32 s74, s71, s72\ns_lshl_b32 s74, s74, 9\ns_add_u32 s74, s74, {ACNT}")
        k(f"s_add_u32 s48, s{pWS}, s74\ns_addc_u32 s49, s{pWS+1}, 0")
        k(f"s_and_b32 s74, s72, 1\ns_mul_i32 s74, s74, 7\ns_and_b32 s75, s3, 1\ns_add_u32 s74, s74, s75\ns_lshr_b32 s72, s72, 1\ns_lshl1_add_u32 s74, s74, s72\ns_lshl_b32 s74, s74, 13")
        k(f"s_mul_i32 s76, s71, 229376\ns_add_u32 s76, s76, s74\ns_add_u32 s76, s76, {ACT + cfg.apf0*16384}\ns_mov_b32 s73, 0\ns_sleep {cfg.apfwait}")
        l = k.lab("hp"); o = k.lab("hpo")
        k(f"{l}:\ns_sleep {cfg.actpf}")
        for i in range(4): k(f"s_load_dword s{52+i}, s[48:49], {128*i} glc")
        k(f"s_add_u32 s73, s73, 1\ns_waitcnt lgkmcnt(0)\ns_cmp_gt_u32 s73, {SPIN}\ns_cbranch_scc1 L_end\ns_add_u32 s52, s52, s53\ns_add_u32 s54, s54, s55\ns_add_u32 s52, s52, s54\ns_cmp_lt_u32 s52, 7\ns_cbranch_scc1 {l}")
        for i in range((7 - cfg.apf0)//2): k(f"buffer_load_dword v{100+i}, v14, {S(sWS,4)}, s76 offen sc1\ns_add_u32 s76, s76, 32768")
    k("s_waitcnt vmcnt(0)")
    stamp(k, cfg, 3)
    prof_dump(k, cfg, role="H")
    k("L_end:")
    k("s_endpgm")

HEADER = open("recurrent_scan__ssm_conv_s4__dense_activation_mish__prompt.s.ref").read().split("; Override launch")[0] if __name__ == "__main__" else ""
def build(cfg, header=""):
    ORD[:] = cfg.ord; LOC[:] = [LOCT[ORD.index(b)] for b in range(7)]; assert ORD[6] == 6
    k = K(); RS[0] = int(cfg.split == 'r')
    front(k, cfg); vm0 = list(k.vm); gen_G(k, cfg); gen_S(k, cfg, vm0); gen_helper(k, cfg)
    return file_wrap([(KNAME, 256, 512, L_TOT)], [kernel_wrap(KNAME, k.text(), 256).replace(".text\n", f".text\n.p2align 12\n.fill {cfg.lead//4}, 4, 0xbf800000\n" if cfg.lead is not None else ".text\n", 1).replace('denorm_mode_32 3', f'denorm_mode_32 {cfg.denorm}')], header), k

if __name__ == "__main__":
    cfg = Cfg()
    for a in sys.argv[2:]:
        n, v = a.split("=", 1); setattr(cfg, n, eval(v))
    txt, k = build(cfg, HEADER)
    open(sys.argv[1], "w").write(txt)
    print("instructions", len(k.ins), "padded states", k.padded)
```

```python
import sys, struct
from kasm import *
from asmlib import KNAME, kernel_wrap, file_wrap

def fbits(x): return "0x%08x" % struct.unpack("<I", struct.pack("<f", x))[0]
LOG2E = 1.4426950408889634

AUGW, ACNT = 0xA000, 0x10000
CNT, STATS, PROF, XT, ST, ACT, KDBG, WSN = 0, 0x8000, 0x20000, 0x100000, 0x300000, 0x500000, 0xD00000, 0x2000000
C_ACT, C_XT, C_ST = 0, 128, 184
L_WS, L_XS = [81920, 98304, 0], [49152, 65536, 16384]
L_GB, L_KC, L_U, L_SY, L_TOT = 49152, 14336, 0, 13312, 163840
L_PART, L_PCH, L_GS = 84480, 6864, L_U + 9216
sX, sW1, sW2, sWS, sAUX, sOUT = 4, 8, 12, 16, 20, 24
pX, pARE, pLDT, pDSK, pW1, pB1, pW2, pOUT, pDBG, pWS = 28, 30, 42, 44, 48, 50, 52, 54, 56, 58
sXCD, sJ, sR, sC, sRB, sFC, sKAP = 60, 61, 62, 63, 64, 65, 66
SPIN, LSPIN = 1000000, 30000000

class Cfg:
    prof = False
    kdbg = False
    span = False
    probe = None
    probewg = None
    probemin = False
    probe2 = None
    cyc = False
    depth = 6
    rot = False
    stpoll = ('s', 4)
    actsleep = 1
    c1at = [14, 22, 30, 38]
    statstep = 20
    pace2 = 9
    pace = 8
    actpf = 0
    apf0 = 3
    apfwait = 60
    w2pf = 1
    codepf = True
    outmod = ""
    pbar = False
    flagat = 1
    cut = [3, 4]
    early = [0, 6]
    xtat = [46, 50]
    touch = 36
    w2touch = 0
    tlb = False
    ord = [2, 3, 4, 5, 0, 1, 6]
    s45 = True
    jbal = 2
    partner = 1
    pmask2 = 0x400
    xtearly = True
    gc1early = True
    w2from = 22
    rdlag = 1
    p0plain = 0
    pollat = 6
    cvprio = 2
    nprio = 0
    tailq = 6
    usleep = 0
    mbar = 1
    hearly = False
    hdelay = 0
    hsplit = True
    pmod = ('', 'nt')
    rshare = True
    pdump = False
    pages = True
    prew = 1
    lead = 0xD00
    warm = ('g1', 'mish', 'cvA', 'cvB')
    sall = None
    b8at = 14
    pbar2 = 0
    cvpre = 12
    g2prio = 0
    finsleep = 0
    bclate = True
    own = True
    aspread = 4
    gc0 = True
    c0x = 2
    c0w = 2
    gat = dict(xr=46, xs=50, touch=36)
    xtbar = 1
    hxfirst = True
    gearly = 1
    c0late = 2
    r2cut = 8
    sblk = True
    split = 'J'
    x_noconv = False
    cvfree = 3
    tailn = 12
    gblk = 4
    x_noside = False
    x_nodma = False
    x_nobar = False
    x_nokw = False
    x_acthit = False
    x_nos2 = False
    ssleep = 0
    stat = [1,2,3,4,5,6,7]
    actmod = 'sc1'
    x_noc01 = False
    kbar = False
    kdelay = False
    kprio = 0
    denorm = 3

def srd(k, d, ptr): k(f"s_mov_b64 {S(d,2)}, {S(ptr,2)}")
def srd_const(k, d, n): k(f"s_mov_b32 s{d+2}, {n}\ns_mov_b32 s{d+3}, 0x20000")

def stamp(k, cfg, i, mode=1):
    if cfg.probe:
        if i == 0 or (mode, i) == cfg.probe[1:]: k(f"s_memrealtime {S(78+2*i,2)}")
        return
    if cfg.cyc and cfg.prof and (mode == int(cfg.prof) or i == 0):
        k(f"s_memtime {S(78+2*i,2)}"); return
    if (cfg.span and i == 0) or cfg.prof and (int(cfg.prof) == mode or i == 0): k(f"s_memrealtime {S(78+2*i,2)}")
def cstamp(k, cfg, i, mode=2):
    if int(cfg.prof) == mode: k(f"s_memtime {S(78+2*i,2)}")
def prof_dump(k, cfg, last=False, role=None):
    if cfg.probe:
        if role == cfg.probe[0]:
            l = k.lab("pad"); i = cfg.probe[2]
            if cfg.probe2:
                k(f"s_waitcnt lgkmcnt(0)\ns_cmp_lg_u32 s{sCOL}, 0\ns_cbranch_scc1 L_end")
                srd(k, sAUX, pDBG); srd_const(k, sAUX, 256)
                k(f"s_not_b32 s76, s78\nv_mov_b32 v4, s76\nv_mov_b32 v5, s78\nv_mov_b32 v6, s{78+2*i}\ns_mov_b64 exec, 1")
                for n in range(3): k(f"buffer_atomic_umax v{4+n}, off, {S(sAUX,4)}, 0 offset:{128+4*n}")
                k(f"s_cmp_lg_u32 s2, 40\ns_cbranch_scc1 L_end")
                l2 = k.lab("pw")
                k(f"{l2}:\ns_memrealtime s[74:75]\ns_waitcnt lgkmcnt(0)\ns_sub_u32 s74, s74, s78\ns_cmp_lt_u32 s74, 8000\ns_cbranch_scc1 {l2}")
                k(f"buffer_load_dwordx3 v[4:6], off, {S(sAUX,4)}, 0 offset:128 sc1\ns_waitcnt vmcnt(0)\nv_readfirstlane_b32 s72, v4\nv_readfirstlane_b32 s73, v5\nv_readfirstlane_b32 s76, v6\ns_not_b32 s72, s72")
                k({"first": "s_sub_u32 s76, s76, s72", "last": "s_sub_u32 s76, s76, s73"}[cfg.probe2])
                k(f"s_lshl_b32 s76, s76, 4\ns_min_u32 s76, s76, 30000\ns_add_u32 s76, s76, 10000")
                k(f"{l}:\ns_memrealtime s[74:75]\ns_waitcnt lgkmcnt(0)\ns_sub_u32 s74, s74, s72\ns_cmp_lt_u32 s74, s76\ns_cbranch_scc1 {l}")
                return
            k(f"s_waitcnt lgkmcnt(0)\ns_sub_u32 s76, s{78+2*i}, s78\ns_lshl_b32 s76, s76, 4\ns_min_u32 s76, s76, 27000\n" + ("s_add_u32 s76, s76, 3000" if not cfg.probemin else "s_sub_u32 s76, 30000, s76"))
            if cfg.probewg is not None: k(f"s_cmp_lg_u32 s2, {cfg.probewg}\ns_cselect_b32 s76, 0, s76")
            k(f"{l}:\ns_memrealtime s[74:75]\ns_waitcnt lgkmcnt(0)\ns_sub_u32 s74, s74, s78\ns_cmp_lt_u32 s74, s76\ns_cbranch_scc1 {l}")
        return
    if cfg.span == 2 and last:
        k("L_pad:\ns_memrealtime s[80:81]\ns_waitcnt lgkmcnt(0)\ns_sub_u32 s80, s80, s78\ns_cmp_lt_u32 s80, 4000\ns_cbranch_scc1 L_pad")
    if cfg.span == 1 and last:
        k("s_memrealtime s[80:81]\ns_waitcnt lgkmcnt(0)\ns_not_b32 s78, s78\nv_mov_b32 v4, s78\nv_mov_b32 v5, s80\ns_mov_b64 exec, 1")
        k("s_cmp_lg_u32 s3, 4\ns_cbranch_scc1 L_end")
        k(f"buffer_atomic_umax v4, off, {S(sAUX,4)}, 0 offset:8\nbuffer_atomic_umax v5, off, {S(sAUX,4)}, 0 offset:12")
    if not cfg.prof: return
    k("s_waitcnt lgkmcnt(0)")
    k("s_lshl_b32 s76, s2, 3\ns_add_u32 s76, s76, s3\ns_lshl_b32 s76, s76, 6\ns_add_u32 s76, s76, %d" % PROF)
    k("s_mov_b64 exec, 1")
    for q in range(3):
        for e in range(4): k(f"v_mov_b32 v{4+e}, s{78+2*(4*q+e)}")
        k(f"buffer_store_dwordx4 v[4:7], off, {S(sWS,4)}, s76 offset:{16*q}")
    k("s_mov_b64 exec, -1")

def atomic_inc(k, srdreg, soff, vt):
    k(f"v_mov_b32 v{vt}, 1\ns_mov_b64 exec, 1")
    k(f"buffer_atomic_add v{vt}, off, {S(srdreg,4)}, {soff} sc1", "atom")
    k("s_mov_b64 exec, -1")

def s_inc(k, ptr, soff, st):
    k(f"s_mov_b32 s{st}, 1\ns_atomic_add s{st}, {S(ptr,2)}, {soff}")
def s_poll(k, ptr, soffs, want, st, sc, sleep=0):
    l = k.lab("sp"); o = k.lab("spo")
    k(f"s_mov_b32 s{sc}, 0")
    k(f"{l}:")
    for i, so in enumerate(soffs): k(f"s_load_dword s{st+i}, {S(ptr,2)}, {so} glc")
    k(f"s_add_u32 s{sc}, s{sc}, 1")
    k.wait(lg="*")
    k(f"s_cmp_gt_u32 s{sc}, {SPIN}\ns_cbranch_scc1 {o}")
    for i in range(1, len(soffs)): k(f"s_min_u32 s{st}, s{st}, s{st+i}")
    if sleep: k(f"s_cmp_ge_u32 s{st}, {want}\ns_cbranch_scc1 {o}\ns_sleep {sleep}\ns_branch {l}")
    else: k(f"s_cmp_lt_u32 s{st}, {want}\ns_cbranch_scc1 {l}")
    k(f"{o}:")
def v_poll(k, load, vt, want, sc, sleep=0, first=True, tag="*"):
    l = k.lab("vp"); o = k.lab("vpo")
    if first: k(load)
    k(f"s_mov_b32 s{sc}, 0")
    k.wait(vm=tag)
    k(f"{l}:")
    k(f"v_cmp_gt_u32 vcc, {want}, v{vt}\ns_add_u32 s{sc}, s{sc}, 1\ns_cmp_gt_u32 s{sc}, {SPIN}\ns_cbranch_scc1 {o}\ns_cbranch_vccz {o}")
    if sleep: k(f"s_sleep {sleep}")
    sv = list(k.vm); k(load); k("s_waitcnt vmcnt(0)"); k.vm = sv
    k(f"s_branch {l}")
    k(f"{o}:")

def lds_signal(k, vaddr, off, vone):
    k("s_mov_b64 exec, 1")
    k(f"ds_add_u32 v{vaddr}, v{vone} offset:{off}", "sig")
    k("s_mov_b64 exec, -1")
def lds_spin(k, vaddr, off, want, vt, st, sc, sleep=0):
    l = k.lab("spin"); o = k.lab("spun")
    k(f"s_mov_b32 s{sc}, 0")
    k(f"{l}:")
    k(f"ds_read_b32 v{vt}, v{vaddr} offset:{off}\ns_add_u32 s{sc}, s{sc}, 1")
    k.wait(lg="*")
    k(f"v_readfirstlane_b32 s{st}, v{vt}\ns_cmp_gt_u32 s{sc}, {LSPIN}\ns_cbranch_scc1 {o}")
    if sleep: k(f"s_cmp_ge_u32 s{st}, {want}\ns_cbranch_scc1 {o}\ns_sleep {sleep}\ns_branch {l}")
    else: k(f"s_cmp_lt_u32 s{st}, {want}\ns_cbranch_scc1 {l}")
    k(f"{o}:")

sCP, sCS, sCOL, sM, sT, sT2, sSP, sO1, sO2, sDO, sDM = 67, 68, 69, 70, 71, 72, 73, 74, 75, 76, 77
sXO, sWO, sA2, sB2, sDT, sDT2, sE0, sE1, sE2, sE3 = 30, 31, 32, 33, 34, 35, 36, 37, 38, 39
sHH, sG32, sKM = 40, 41, 46
sRW = 40
AB, BB, CB, X1, X8, X256, W1, W8, W256, W2, W4, TT, Z0, Z1, PK = 100, 102, 104, 106, 108, 110, 112, 114, 116, 118, 120, 122, 124, 126, 128
KWG, KR, PA, DSK, DT, VD, VF, UF, KA = 132, 140, 141, 145, 146, 150, 160, 192, 224
LOCT = [4, 6, 1, 0, 3, 5, 2]
ORD = list(range(7))
LOC = list(LOCT)
SY_GS, SY_RING, SY_RD, SY_U, SY_PAIR, SY_S, SY_W2, SY_M = 0, 4, 8, 12, 16, 24, 32, 48

def x_offsets(k, d):
    k(f"v_lshrrev_b32 v154, 3, v0\nv_and_b32 v155, 7, v0\nv_lshrrev_b32 v156, 4, v0\nv_xor_b32 v155, v155, v156")
    k(f"v_lshl_add_u32 v154, s{sCOL}, 5, v154\nv_mul_u32_u24 v154, 896, v154\nv_lshl_add_u32 v{d}, v155, 4, v154\nv_xor_b32 v155, 64, v{d}")
    k(f"v_add_u32 v{d+1}, 6144, v155\nv_add_u32 v{d+2}, {2*6144}, v{d}\nv_add_u32 v{d+3}, {3*6144}, v155")
def w1_offsets(k, d):
    k(f"v_lshrrev_b32 v154, 4, v0\nv_and_b32 v155, 15, v0\nv_lshlrev_b32 v156, 2, v154\nv_xor_b32 v155, v155, v156")
    k(f"v_lshl_add_u32 v154, s{sCOL}, 4, v154\nv_mul_u32_u24 v154, 3584, v154\nv_lshl_add_u32 v{d}, v155, 4, v154")
    for n in (1,2,3): k(f"v_add_u32 v{d+n}, {n*13312}, v{d}")
def w2_offsets(k, d):
    k(f"v_lshrrev_b32 v154, 3, v0\nv_and_b32 v155, 7, v0\nv_bfe_u32 v156, v0, 4, 1\nv_lshlrev_b32 v156, 2, v156\nv_xor_b32 v155, v155, v156")
    k(f"v_mul_u32_u24 v154, 896, v154\nv_lshl_add_u32 v{d}, v155, 4, v154")
    for n in (1,2,3): k(f"v_add_u32 v{d+n}, {n*6144}, v{d}")
sC0, sCE = 42, 43
def piece_bases(k, unit):
    k(f"s_add_u32 s{sB2}, s{sA2}, {unit}\ns_mul_i32 s{sC0}, s{sCE}, {unit}\ns_add_u32 s{sC0}, s{sC0}, s{sA2}")
def piece(n, unit, extra, d):
    if n == 0: return f"s_add_u32 s{d}, s{sC0}, {extra}"
    return f"s_cmp_le_u32 s{sCE}, {n-1}\ns_cselect_b32 s{d}, s{sB2}, s{sA2}\ns_add_u32 s{d}, s{d}, {(n-1)*unit + extra}"
def w2_bases(k, cfg):
    k(f"s_xor_b32 s{sT}, s3, s{sXCD}\ns_bitcmp1_b32 s{sT}, 0\ns_cselect_b32 s{sCE}, 0, s{sC}")
    k(f"s_and_b32 s{sT}, s3, 1\ns_mul_i32 s{sT}, s{sT}, 14\ns_add_u32 s{sT}, s{sT}, s{sCS}\ns_mul_i32 s{sA2}, s{sT}, {64*896}\ns_lshl_b32 s{sT}, s{sKAP}, 7\ns_add_u32 s{sA2}, s{sA2}, s{sT}")
    piece_bases(k, 114688)
def w2dma(b, d):
    out = [f"s_add_u32 m0, s{sM}, {LOC[b%7]*16384}\n" + piece(b//2, 114688, (b & 1)*28672, sDT) + f"\nbuffer_load_dwordx4 v{d}, {S(sW2,4)}, s{sDT} offen lds"]
    for n in (1,2,3): out.append(f"buffer_load_dwordx4 v{d+n}, {S(sW2,4)}, s{sDT} offen offset:{n*1024} lds")
    return [(g, f"w2_{b}") for g in out]
def cmul(k, z, a, w, t):
    k(f"v_pk_mul_f32 {V(t,2)}, {V(a,2)}, {V(w,2)} op_sel_hi:[1,0]")
    k(f"v_pk_fma_f32 {V(z,2)}, {V(a,2)}, {V(w,2)}, {V(t,2)} op_sel:[1,1,0] op_sel_hi:[0,1,1] neg_lo:[0,1,0]")

gW2D, gW2A, gL16, gSY, gONE, gXA, gWA, gSTA, gAGA, gAUG, gSTT, gH = 1, 5, 9, 12, 13, 80, 84, 88, 89, 90, 98, 14
sPW = 22
sGA, ZERO, VSY, VONE, _WD, sW2D, XTA, XTS, EW, CA, CBA, UW, TZ = 8, 30, 34, 35, 36, 40, 44, 46, 64, 65, 66, 67, 48

XR = 56
CLRL = f"buffer_load_dword v49, off, {S(sAUX,4)}, 0 sc1"
class Cap:
    def __init__(self): self.l = []
    def __call__(self, text, tag=None): self.l += [x for x in text.split("\n") if x.strip()]

def front(k, cfg):
    stamp(k, cfg, 0)
    k("s_load_dwordx16 s[28:43], s[0:1], 0\ns_load_dwordx16 s[44:59], s[0:1], 64")
    k("s_cmpk_ge_u32 s2, 256\ns_cbranch_scc1 L_end")
    k(f"s_lshr_b32 s{sJ}, s2, 3")
    if cfg.codepf:
        lp = k.lab("pc")
        k(f"s_getpc_b64 s[72:73]\n{lp}:\nv_and_b32 v2, 15, v0\nv_lshl_add_u32 v2, s{sJ}, 4, v2\nv_min_u32 v2, (L_end-{lp})/64, v2\nv_mov_b32 v3, 0")
        k(f"v_lshlrev_b32 v2, 6, v2\nv_lshl_add_u64 v[2:3], v[2:3], 0, s[72:73]\nglobal_load_dword v159, v[2:3], off", "code")
    k(f"s_sub_u32 s{sCP}, s2, 32\ns_cbranch_scc1 L_helper")
    k(f"v_and_b32 v1, 0xff, v0\nv_lshl_add_u32 v1, s{sCP}, 8, v1\nv_lshlrev_b32 v1, 2, v1\ns_lshl_b32 s{sSP}, s{sCP}, 2")
    if cfg.partner:
        k("v_xor_b32 v3, 0x1000, v1")
        if cfg.pmask2: k(f"v_lshrrev_b32 v2, 8, v0\nv_mul_u32_u24 v2, {cfg.pmask2}, v2\nv_xor_b32 v3, v2, v3")
    def ids():
        k("v_lshrrev_b32 v2, 6, v0\nv_and_b32 v0, 63, v0\nv_readfirstlane_b32 s3, v2")
        k(f"s_and_b32 s{sXCD}, s2, 7\ns_sub_u32 s{sJ}, s{sJ}, 4")
        k(f"s_mul_i32 s{sR}, s{sJ}, 37\ns_lshr_b32 s{sR}, s{sR}, 8\ns_mul_i32 s{sC}, s{sR}, 7\ns_sub_u32 s{sC}, s{sJ}, s{sC}")
        k(f"s_lshr_b32 s{sRB}, s{sXCD}, 1\ns_lshl2_add_u32 s{sRB}, s{sRB}, s{sR}")
        k(f"s_and_b32 s{sXH}, s{sXCD}, 1\ns_mul_i32 s{sFC}, s{sXH}, 7\ns_add_u32 s{sFC}, s{sFC}, s{sC}")
        k(f"s_lshl1_add_u32 s{sKAP}, s{sR}, s{sC}\ns_sub_u32 s{sT}, s{sKAP}, 7\ns_cselect_b32 s{sKAP}, s{sKAP}, s{sT}")
        k(f"s_bfe_u32 s{sCS}, s3, 0x10001\ns_and_b32 s{sCOL}, s3, 3\ns_lshl_b32 s{sM}, s{sCOL}, 12\ns_add_u32 s{sM}, s{sM}, {L_GB}")
    def offs(): x_offsets(k, XD); w1_offsets(k, WD)
    if cfg.prew >= 1: ids()
    if cfg.prew >= 2: offs()
    k("s_waitcnt lgkmcnt(0)")
    stamp(k, cfg, 1, 3)
    for i in range(2): k(f"global_load_dword v{AB+i}, v1, {S(pARE+2*i,2)} {cfg.pmod[0]}", "prm")
    k(f"s_load_dword s{sO1}, {S(pLDT,2)}, s{sSP}\ns_load_dword s{sO2}, {S(pDSK,2)}, s{sSP}")
    if cfg.partner:
        for i in range(2): k(f"global_load_dword v{157+i}, v3, {S(pARE+2*i,2)}", "pp")
    if cfg.prew < 1: ids()
    if cfg.prew == 1: offs()
    for i in range(2, 6): k(f"global_load_dword v{AB+i}, v1, {S(pARE+2*i,2)} {cfg.pmod[1]}", "prm2")
    if cfg.partner == 2:
        for i in range(2, 6): k(f"global_load_dword v157, v3, {S(pARE+2*i,2)}", "pp2")
    stamp(k, cfg, 2, 3)
    if cfg.prew < 1: offs()
    srd(k, sX, pX); srd(k, sW1, pW1); srd_const(k, sX, 1835008); srd_const(k, sW1, 1605632)
    k(f"s_mul_i32 s{sDO}, s{sRB}, 114688\ns_lshl_b32 s{sT}, s{sKAP}, 7\ns_add_u32 s{sDO}, s{sDO}, s{sT}")
    k(f"s_mul_i32 s{sDM}, s{sKAP}, 229376\ns_lshl_b32 s{sT}, s{sFC}, 8\ns_add_u32 s{sDM}, s{sDM}, s{sT}")
    k(f"s_xor_b32 s{sKM}, s3, 4\ns_mul_i32 s{sKM}, s{sKM}, 8704\ns_mov_b32 s47, 0x03020c0c")
    k(f"s_cmp_lt_u32 s3, 4\ns_cselect_b32 s47, 0x01000c0c, s47\ns_cselect_b32 s1, 0, 1")
    def c0issue():
        o = k.lab("c0")
        k(f"s_cmp_eq_u32 s1, 1\ns_cbranch_scc1 {o}")
        stamp(k, cfg, 1, 7)
        for n, (g, t) in enumerate(chunk(cfg, 0, False)): k(g, "c0x" if n < 4 else t)
        stamp(k, cfg, 2, 7)
        k(f"{o}:\ns_mov_b32 m0, s{sKM}\n{ADV}")
    def role_wait(tag, n_s):
        o = k.lab("rw")
        k(f"s_cmp_eq_u32 s1, 0\ns_cbranch_scc1 {o}\ns_waitcnt vmcnt({n_s})\n{o}:")
        k.wait(vm=tag)
    if cfg.c0x == 1: c0issue()
    else: k(f"s_mov_b32 m0, s{sKM}")
    k(f"s_add_u32 s{sT}, s{sKM}, {L_KC}\nv_and_b32 v154, 31, v0\nv_lshrrev_b32 v155, 5, v0\nv_mul_u32_u24 v156, 272, v154\nv_lshl_add_u32 v156, v155, 4, v156\nv_add_u32 v{KR}, s{sT}, v156")
    k(f"s_mov_b32 s44, {fbits(8.0)}\ns_mov_b32 s45, {fbits(256.0)}\nv_mov_b32 v{PK}, 0x3f80\nds_write_addtid_b32 v{PK} offset:{L_KC}")
    k(f"s_mul_i32 s{sE3}, s{sCS}, {L_PCH}\ns_and_b32 s{sHH}, s3, 1\ns_mul_i32 s{sT}, s{sHH}, 3328\ns_add_u32 s{sE3}, s{sE3}, s{sT}\ns_add_u32 s{sE3}, s{sE3}, {L_PART}\nv_lshl_add_u32 v{PA}, v0, 4, s{sE3}")
    srd(k, sWS, pWS); srd_const(k, sWS, WSN)
    k(f"s_lshl1_add_u32 s{sG32}, s{sKAP}, s{sXH}")
    for i in range(4): k(f"v_mov_b32 v{ZERO+i}, 0")
    o = k.lab("g0"); j = k.lab("g1")
    k(f"s_cmp_eq_u32 s1, 1\ns_cbranch_scc1 {o}")
    setup_G(k, cfg, 0)
    k(f"s_branch {j}\n{o}:")
    for part in cfg.early: S_addresses(k, part)
    k(f"{j}:")
    Lhi = struct.unpack("<f", struct.pack("<f", LOG2E))[0]; Llo = LOG2E - Lhi
    k(f"v_mov_b32 v154, {fbits(Lhi)}\nv_mov_b32 v149, {fbits(Llo)}\ns_lshl_b32 s{sT}, s{sCS}, 4")
    stamp(k, cfg, 3, 3)
    k("s_waitcnt lgkmcnt(0)"); k.lg = []
    k(f"s_lshr_b32 s{sO1}, s{sO1}, s{sT}\ns_lshl_b32 s{sO1}, s{sO1}, 16")
    k(f"v_mul_f32 v155, s{sO1}, v154\nv_fma_f32 v156, s{sO1}, v154, -v155\nv_fmac_f32 v156, s{sO1}, v149")
    k(f"v_exp_f32 v155, v155\nv_mul_f32 v156, {fbits(0.6931471805599453)}, v156\nv_fmac_f32 v155, v155, v156\nv_cvt_pk_bf16_f32 v155, v155, v155\nv_and_b32 v{DT+2}, 0xffff0000, v155")
    k(f"v_mul_f32 v{DT}, v154, v{DT+2}\nv_mul_f32 v{DT+1}, 0.15915494, v{DT+2}")
    stamp(k, cfg, 1); stamp(k, cfg, 4, 3)
    if cfg.c0x == 1: role_wait("prm", (4, 6, 10)[cfg.partner])
    else: k.wait(vm="prm")
    stamp(k, cfg, 2); stamp(k, cfg, 5, 3)
    if cfg.c0x == 2: c0issue()
    def xt_read():
        stamp(k, cfg, 3, 7)
        k.wait(vm="c0x")
        stamp(k, cfg, 4, 7)
        k(f"ds_read_b64_tr_b16 {V(XR,2)}, v{XTA}\nds_read_b64_tr_b16 {V(XR+2,2)}, v{XTA+1} offset:512")
        k(f"ds_read_b64_tr_b16 {V(XR+4,2)}, v{XTA+1}\nds_read_b64_tr_b16 {V(XR+6,2)}, v{XTA} offset:512")
    def xt_store():
        for g in (0, 1): k(f"buffer_store_dwordx4 {V(XR+4*g,4)}, v{XTS}, {S(sWS,4)}, s{sE1+g} offen sc1", "xts")
    nv = [0]; pend = []
    def put(z, row, neg, last=False):
        p = PK + row % 4
        k(f"v_cvt_pk_bf16_f32 v{p}, v{z}, {'-' if neg else ''}v{z+1}")
        w = f"ds_write_addtid_b32 v{p} offset:{L_KC + 272*row}"
        if cfg.kdelay:
            if pend: k(pend.pop())
            pend.append(w)
            if last or row == 31: k(pend.pop())
        elif not cfg.x_nokw: k(w)
        nv[0] += 1
        if nv[0] in cfg.xtat:
            o = k.lab("g"); sl = list(k.lg)
            k(f"s_cmp_eq_u32 s1, 1\ns_cbranch_scc1 {o}")
            if nv[0] == cfg.xtat[0]: xt_read(); sl[-1] = "xt"
            else: k.wait(lg="xt"); xt_store()
            k(f"{o}:"); k.lg = sl
        if nv[0] == cfg.touch:
            o = k.lab("g")
            k(f"s_cmp_eq_u32 s1, 1\ns_cbranch_scc1 {o}")
            for n in range(4): k(f"buffer_load_dword v159, v{WD+n}, {S(sW1,4)}, s{sDM} offen offset:{n*1024}", "touch")
            if cfg.w2touch == 3:
                srd(k, sW2, pW2); srd_const(k, sW2, 1605632)
                k(f"s_lshl2_add_u32 s{sT}, s{sCP}, s{sCOL}\ns_mul_i32 s{sT}, s{sT}, 1792\nv_mul_u32_u24 v158, 28, v0\nbuffer_load_dword v159, v158, {S(sW2,4)}, s{sT} offen", "touch")
            k(f"{o}:")
    for i in (0, 1): k(f"v_perm_b32 v{AB+i}, v{AB+i}, v{AB+i}, s47")
    k(f"v_pk_mul_f32 {V(X1,2)}, {V(AB,2)}, {V(DT,2)}")
    k(f"v_pk_mul_f32 {V(X8,2)}, {V(X1,2)}, s[44:45] op_sel_hi:[1,0]\nv_pk_mul_f32 {V(X256,2)}, {V(X1,2)}, s[44:45] op_sel:[0,1] op_sel_hi:[1,1]")
    for x in (X8, X1, X256): k(f"v_fract_f32 v{x+1}, v{x+1}")
    for x, w in ((X8, W8), (X1, W1), (X256, W256)):
        k(f"v_exp_f32 v{x}, v{x}\nv_cos_f32 v{w}, v{x+1}\nv_sin_f32 v{w+1}, v{x+1}")
    for x, w in ((X8, W8), (X1, W1), (X256, W256)):
        k(f"v_pk_mul_f32 {V(w,2)}, {V(w,2)}, {V(x,2)} op_sel_hi:[1,0]")
    if cfg.kbar: k("s_barrier")
    stamp(k, cfg, 6, 3)
    put(W8, 1, False)
    prev = W8
    for b in range(2, 32):
        cmul(k, Z0, prev, W8, TT); prev = Z0; put(Z0, b, False)
    stamp(k, cfg, 7, 3)
    for s in range(8): k(f"ds_read_b128 {V(VF+4*s,4)}, v{KR} offset:{32*s}", "vf")
    role_wait("prm2", 4 if cfg.partner == 2 else 0)
    for i in range(2, 6): k(f"v_perm_b32 v{AB+i}, v{AB+i}, v{AB+i}, s47")
    cmul(k, Z1, BB, CB, TT)
    k(f"v_pk_mul_f32 {V(Z1,2)}, {V(Z1,2)}, {V(DT+2,2)} op_sel_hi:[1,0]")
    put(Z1, 0, True)
    cmul(k, W2, W1, W1, TT); cmul(k, W4, W2, W2, TT)
    prev = Z1
    for a in range(1, 21):
        if a in (8, 12, 14) or a >= 16: cmul(k, Z1, Z1, W256, TT); prev = Z1
        else: cmul(k, Z0, prev, W1 if a < 8 else (W2 if a < 12 else W4), TT); prev = Z0
        put(prev, a, True, a == 20)
    stamp(k, cfg, 8, 3)
    for s in range(8): k(f"ds_read_b128 {V(UF+4*s,4)}, v{KR} offset:{32*s}", f"uf{s}")
    kmf = lambda s: f"v_mfma_f32_32x32x16_bf16 {V(KA,16)}, {V(UF+4*s,4)}, {V(VF+4*s,4)}, {'0' if s == 0 else V(KA,16)}"
    c1 = chunk(cfg, 1)
    o = k.lab("c1"); sl = list(k.lg); sv = list(k.vm)
    k("s_cmp_eq_u32 s1, 1\ns_cbranch_scc1 L_S")
    def s_tail():
        k.lg = list(sl); k.vm = []
        for s in range(8):
            k.wait(lg=f"uf{s}")
            k(kmf(s))
            if s % 2 == 0: k(*c1[4 + s//2])
            if s == 1: srd(k, sAUX, pDBG); srd_const(k, sAUX, 256)
            if s == 3: k(f"v_mov_b32 v{VSY}, {L_SY}\nv_mov_b32 v{VONE}, 1\ns_movk_i32 s50, 128\ns_mov_b32 s51, 229376")
        stamp(k, cfg, 9, 3); stamp(k, cfg, 3); stamp(k, cfg, 7, 7)
        if cfg.pages and "g1" in cfg.warm: k.warm("g1")
        k("s_barrier")
    k.s_tail = s_tail
    cap = Cap(); setup_G(cap, cfg, 1)
    for _ in range(12): k(cap.l.pop(0))
    for s in range(8):
        k.wait(lg=f"uf{s}")
        k(kmf(s))
        if s == 7 and cfg.pages: k.page("g1")
        for _ in range(5): k(cap.l.pop(0))
    stamp(k, cfg, 9, 3)
    for _ in range(8): k(cap.l.pop(0))
    k(f"v_add_f32 v{KA}, v{KA}, v{DSK}")
    for r in (1, 2, 0): k(f"ds_write_b128 v{PA}, {V(KA+4*r,4)} offset:{1024*r}")
    if cfg.xtat[0] > 52: xt_read(); k.wait(lg="*"); xt_store()
    stamp(k, cfg, 5, 7)
    for n in range(4): k(*c1[n])
    stamp(k, cfg, 6, 7)
    while cap.l: k(cap.l.pop(0))
    k.wait(vm="c0")
    stamp(k, cfg, 7, 7)
    stamp(k, cfg, 3)
    stamp(k, cfg, 10, 3)
    k("s_barrier")
    stamp(k, cfg, 11, 3); stamp(k, cfg, 8, 7)

XD, WD, sXH = 150, 132, sJ
ADV = (f"s_add_u32 s{sDO}, s{sDO}, 128\ns_add_u32 s{sDM}, s{sDM}, 229376\ns_cmp_ge_u32 s{sDM}, 1605632\ns_cselect_b32 s{sDT}, 896, 0\n"
       f"s_cselect_b32 s{sDT2}, 1605632, 0\ns_sub_u32 s{sDO}, s{sDO}, s{sDT}\ns_sub_u32 s{sDM}, s{sDM}, s{sDT2}")
def chunk(cfg, c, adv=True):
    out = []
    for vd, srdr, so, slots in ((XD, sX, sDO, L_XS), (WD, sW1, sDM, L_WS)):
        o = [f"buffer_load_dwordx4 v{vd+n}, {S(srdr,4)}, s{so} offen offset:{n*1024} lds" for n in range(4)]
        o[0] = f"s_add_u32 m0, s{sM}, {slots[c % 3]}\n" + o[0]
        out += o
    if adv and c == 1: out[-1] += "\n" + ADV
    if adv and 1 < c < 6:
        out[4] += f"\ns_cmp_ge_u32 s{sDM}, {6*229376}\ns_cselect_b32 s{sDT}, -768, s50\ns_cselect_b32 s{sDT2}, {-6*229376}, s51\ns_add_u32 s{sDO}, s{sDO}, s{sDT}"
        out[7] += f"\ns_add_u32 s{sDM}, s{sDM}, s{sDT2}"
    return [(g, f"c{c}") for g in out]

def setup_G(k, cfg, part):
    if part == 0:
        k(f"v_lshrrev_b32 v{gH}, 5, v0\nv_and_b32 v15, 31, v0")
        k(f"s_lshl_b32 s{sT}, s{sHH}, 13\ns_add_u32 s{sT}, s{sT}, {L_GB+L_XS[2]}")
        k(f"v_bfe_u32 v13, v0, 1, 3\nv_xor_b32 v12, v13, v{gH}\nv_lshlrev_b32 v12, 4, v12\nv_lshl_add_u32 v12, v15, 7, v12\nv_add_u32 v{gXA}, s{sT}, v12")
        for s in (1,2,3): k(f"v_xor_b32 v{gXA+s}, {32*s}, v{gXA}")
        k(f"v_lshrrev_b32 v50, 4, v0\nv_and_b32 v54, 1, v0\nv_lshlrev_b32 v53, 13, v13\nv_lshl_add_u32 v53, v50, 4, v53\nv_lshl_add_u32 v{XTS}, v54, 6, v53")
        k(f"v_bfe_u32 v10, v0, 2, 2\nv_and_b32 v11, 3, v0\nv_lshlrev_b32 v11, 3, v11\nv_and_b32 v12, 16, v0\nv_lshl_add_u32 v11, v12, 1, v11")
        k(f"s_and_b32 s{sT}, s3, 2\nv_xor_b32 v12, s{sT}, v10\nv_lshl_add_u32 v12, v12, 6, v11")
        k(f"v_lshl_add_u32 v13, v{gH}, 3, v10\nv_lshl_add_u32 v12, v13, 8, v12\nv_add_u32 v{gWA}, {L_GB+L_WS[0]}, v12\nv_xor_b32 v{gWA+1}, 64, v{gWA}\nv_add_u32 v{gWA+2}, {L_GB+L_WS[2]}, v12\nv_xor_b32 v{gWA+3}, 64, v{gWA+2}")
        k(f"s_lshl_b32 s{sT}, s{sXH}, 2\nv_lshl_add_u32 v52, v50, 3, v10")
        k(f"v_bfe_u32 v53, v0, 1, 1\nv_or_b32 v53, s{sT}, v53\nv_bfe_u32 v51, v52, 1, 3\nv_xor_b32 v53, v53, v51\nv_lshlrev_b32 v53, 4, v53")
        k(f"s_add_u32 s{sT}, s{sM}, {L_XS[0]}\nv_lshl_add_u32 v53, v52, 7, v53\nv_lshl_add_u32 v53, v54, 3, v53\nv_add_u32 v{XTA}, s{sT}, v53\nv_xor_b32 v{XTA+1}, 32, v{XTA}")
        k(f"s_lshl_b32 s{sT}, s{sG32}, 8\ns_add_u32 s{sT}, s{sT}, s{sRB}\ns_lshl2_add_u32 s{sT}, s{sT}, s{sCOL}\ns_lshl_b32 s{sT}, s{sT}, 7\ns_add_u32 s{sE1}, s{sT}, {XT}\ns_add_u32 s{sE2}, s{sE1}, 65536")
        k(f"s_mul_i32 s{sT}, s3, 4576\ns_cmp_ge_u32 s3, 2\ns_cselect_b32 s{sT}, {L_SY}, s{sT}\ns_sub_u32 s{sT2}, s{sE3}, 16")
        k(f"v_min_u32 v156, 29, v0\nv_lshl_add_u32 v156, v156, 4, s{sT}\nv_mov_b32 v155, s{sT2}\nv_cmp_eq_u32 vcc, 0, v{gH}\ns_nop 1\nv_cndmask_b32 v156, v155, v156, vcc\nds_write_b128 v156, {V(ZERO,4)}")
        return
    k(f"s_lshl_b32 s{sT}, s{sCS}, 4\ns_lshr_b32 s{sO2}, s{sO2}, s{sT}\ns_lshl_b32 s{sO2}, s{sO2}, 16\ns_cmp_eq_u32 s{sHH}, 0\ns_cselect_b32 s{sO2}, s{sO2}, 0")
    k(f"v_mov_b32 v154, s{sO2}\nv_cmp_eq_u32 vcc, 0, v0")
    srd(k, sW2, pW2); srd_const(k, sW2, 1605632)
    k(f"v_cndmask_b32 v{DSK}, 0, v154, vcc")
    w2_bases(k, cfg); w2_offsets(k, gW2D)
    k(f"v_lshl_add_u32 v13, v{gH}, 2, v10\nv_lshl_add_u32 v12, v13, 7, v11\nv_lshrrev_b32 v13, 1, v10\nv_lshl_add_u32 v12, v13, 6, v12")
    k(f"v_add_u32 v{gW2A}, s{sM}, v12\nv_xor_b32 v{gW2A+1}, 64, v{gW2A}\nv_add_u32 v{gW2A+2}, 65536, v{gW2A}\nv_add_u32 v{gW2A+3}, 65536, v{gW2A+1}")
    k(f"s_mul_i32 s{sT}, s{sCS}, 768\ns_add_u32 s{sT}, s{sT}, {L_GS}\nv_lshl_add_u32 v13, v15, 3, s{sT}\nv_cmp_eq_u32 vcc, 0, v{gH}")
    k(f"s_mul_i32 s{sT}, s{sHH}, 768\ns_add_u32 s{sT}, s{sT}, {L_GS+256}\nv_cndmask_b32 v{gAGA}, 0, v13, vcc\nv_lshl_add_u32 v{gSTA}, v15, 2, s{sT}")
    k(f"v_lshlrev_b32 v{gL16}, 4, v0\nv_mov_b32 v{gSY}, {L_SY}\nv_mov_b32 v{gONE}, 1\nv_lshl_add_u32 v10, s{sCOL}, 2, v{gSY}")
    k(f"s_lshl1_add_u32 s{sE0}, s{sRB}, s{sHH}\ns_lshl1_add_u32 s{sXO}, s{sFC}, s{sCS}")
    k(f"s_lshl1_add_u32 s{sWO}, s{sE0}, s{sCS}\ns_lshl1_add_u32 s{sWO}, s{sWO}, s{sXH}\ns_lshr_b32 s{sT}, s{sC}, {1 if cfg.aspread == 4 else 3}\ns_lshl2_add_u32 s{sWO}, s{sWO}, s{sT}\ns_lshl_b32 s{sWO}, s{sWO}, 7\ns_add_u32 s{sWO}, s{sWO}, {ACNT}")
    k(f"s_lshl_b32 s{sXO}, s{sXO}, 13\ns_mul_i32 s{sT}, s{sE0}, 229376\ns_add_u32 s{sXO}, s{sXO}, s{sT}\ns_add_u32 s{sXO}, s{sXO}, {ACT}\ns_add_u32 s{sE3}, s{sXO}, 4096")

def gather_addresses(k, part):
    if part == 1:
        k(f"s_mul_i32 s48, s{sCS}, {L_PCH//132*32}\ns_add_u32 s48, s48, {L_PART//132*32}")
        k(f"v_lshl_add_u32 v50, s{sHH}, 6, v0\ns_add_u32 s{sT}, s48, {255+384}\nv_sub_u32 v2, s{sT}, v50\nv_add_u32 v3, 1, v2\nv_cmp_eq_u32 vcc, 127, v50")
        k(f"v_lshlrev_b32 v50, 3, v50\nv_sub_u32 v50, 1023, v50\nv_subbrev_co_u32 v4, vcc, 0, v2, vcc")
        for e in range(3): k(f"v_lshrrev_b32 v5, 5, v{2+e}\nv_add_lshl_u32 v{sGA+11+e}, v{2+e}, v5, 2")
        k(f"s_sub_u32 s{sT}, s48, 0x4300")
        k(f"v_cvt_f32_i32 v51, v50\nv_add_u32 v50, s{sT}, v50\ns_sub_u32 s{sT2}, s{sT}, 1\nv_mov_b32 v52, s{sT2}\ns_add_u32 s{sT}, s{sT}, 128\ns_mov_b32 s{sT2}, {fbits(128.0)}")
    for n in {0: [], 1: [0, 2], 2: [4, 6, 8, 10]}[part]:
        es = (0, 1) if n < 10 else (0,)
        for e in es:
            k(f"v_subrev_f32 v{2+e}, {fbits(float(n+e))}, v51\nv_max_f32 v{2+e}, s{sT2}, v{2+e}\nv_subrev_u32 v{4+e}, {n+e}, v50\nv_med3_i32 v{4+e}, v{4+e}, v52, s{sT}")
        k(f"v_cvt_pk_bf16_f32 v2, v2, v3")
        for e in es:
            k(f"v_add_u32_sdwa v{4+e}, v{4+e}, v2 dst_sel:DWORD dst_unused:UNUSED_PAD src0_sel:DWORD src1_sel:WORD_{e}")
            k(f"v_lshrrev_b32 v3, 5, v{4+e}\nv_add_lshl_u32 v{sGA+n+e}, v{4+e}, v3, 2")
    if part == 0:
        k(f"v_and_b32 v50, 31, v0\nv_lshrrev_b32 v51, 5, v0")
        k(f"v_lshlrev_b32 v2, 3, v50\nv_lshl_add_u32 v2, v51, 2, v2\nv_sub_u32 v3, 2, v51\nv_lshlrev_b32 v3, v3, v50\nv_lshl_add_u32 v3, v51, 7, v3\nv_add_u32 v3, 256, v3")
        k(f"v_lshl_add_u32 v4, v51, 7, v50\nv_add_u32 v4, 512, v4")
        for e, d in ((0, 0), (1, 1), (2, 3)): k(f"v_lshrrev_b32 v5, 5, v{2+e}\nv_add_u32 v5, v5, v{2+e}\nv_lshl_add_u32 v{sPW+d}, v5, 2, s{sE3}")
        k(f"v_lshl_add_u32 v{sPW+2}, v51, 8, v{sPW+1}")

RS = [0]
JSETS = (([7, 6, 0], [5, 4, 3, 2, 1]), ([7, 6, 1], [5, 4, 3, 2, 0]), ([7, 6, 2], [5, 4, 1, 0, 3]))
vXC, vST, vXW, vODD, vGA, vGW, vSC = 26, 27, 28, 29, 36, 37, 38
def S_addresses(k, part):
    sWV = sCOL
    if part < 3: gather_addresses(k, part)
    if part == 3:
        k(f"s_mul_i32 s{sT}, s{sCS}, 16640\ns_add_u32 s{sT}, s{sT}, {L_KC}\ns_lshl_b32 s{sT2}, s{sHH}, 10\ns_add_u32 s{sT2}, s{sT2}, s{sT}\nv_lshl_add_u32 v{EW}, v0, 4, s{sT2}")
        k(f"v_bfe_u32 v2, v0, 1, 2\nv_mul_u32_u24 v2, 4160, v2\nv_and_b32 v{vODD}, 1, v0\nv_lshl_add_u32 v2, v{vODD}, 4, v2\nv_add_u32 v{TZ}, s{sT}, v2")
        k(f"s_lshr_b32 s{sT}, s{sCP}, 4\ns_lshl_b32 s{sT}, s{sT}, 2\ns_add_u32 s{sT}, s{sT}, {C_XT}\ns_lshl_b32 s{sT}, s{sT}, 7\nv_and_b32 v2, 3, v0\nv_lshl_add_u32 v{vXC}, v2, 7, s{sT}")
        k(f"s_lshl_b32 s{sT}, s{sCP}, 13\ns_add_u32 s{sT}, s{sT}, {XT}\nv_lshl_add_u32 v2, s{sWV}, 6, v0\nv_and_b32 v3, 0xfc, v2\nv_add_u32 v3, v3, v2\nv_lshl_add_u32 v{vXW}, v3, 4, s{sT}\nv_lshlrev_b32 v{vST}, 4, v2\nv_add_u32 v{UW}, {L_U+480}, v{vST}")
        k(f"s_mov_b32 s{sXO}, {STATS}\ns_mov_b32 s{sWO}, {STATS+4096}")
    if part == 4:
        k(f"s_lshl_b32 s{sT}, s{sFC}, 2\ns_add_u32 s{sT}, s{sT}, s{sWV}\ns_lshl_b32 s{sT}, s{sT}, 8\ns_add_u32 s{sT}, s{sT}, {AUGW}\nv_lshl_add_u32 v3, v0, 4, s{sT}")
        k(f"s_lshl_b32 s{sT}, s{sRB}, 2\ns_add_u32 s{sT}, s{sT}, s{sWV}\ns_lshl_b32 s{sT}, s{sT}, 6\ns_add_u32 s{sT}, s{sT}, {STATS}\nv_lshl_add_u32 v4, v{vODD}, 12, s{sT}")
        k(f"v_bfe_u32 v2, v0, 1, 2\nv_lshl_add_u32 v4, v2, 4, v4\nv_cmp_gt_u32 vcc, 16, v0\ns_mul_i32 s{sE0}, s{sWV}, 384\ns_add_u32 s{sE0}, s{sE0}, {L_GS}\nv_cndmask_b32 v{vGA}, v4, v3, vcc")
        k(f"v_min_u32 v2, 23, v0\nv_lshl_add_u32 v{vGW}, v2, 4, s{sE0}")
        w2_offsets(k, sW2D)
    if part == 7:
        k(f"v_bfe_u32 v53, v0, 2, 2\nv_lshlrev_b32 v53, 7, v53\nv_and_b32 v54, 3, v0\nv_lshl_add_u32 v53, v54, 4, v53\nv_lshrrev_b32 v54, 5, v0\nv_lshl_add_u32 v53, v54, 6, v53")
        k(f"v_bfe_u32 v54, v0, 4, 1\nv_lshl_add_u32 v54, v54, 9, v53")
        k(f"s_lshl_b32 s{sO1}, s{sCP}, 1\ns_add_u32 s{sO1}, s{sO1}, s{sCS}")
        k(f"s_lshr_b32 s{sT}, s{sO1}, 6\ns_lshl_b32 s{sT}, s{sT}, 1\ns_add_u32 s{sT}, s{sT}, s{sHH}\ns_lshl_b32 s{sT}, s{sT}, 2\ns_bfe_u32 s{sT2}, s{sO1}, 0x20004")
        k(f"s_add_u32 s{sT}, s{sT}, s{sT2}\ns_add_u32 s{sT}, s{sT}, {C_ST}\ns_lshl_b32 s{sO2}, s{sT}, 7")
        k(f"s_lshl_b32 s{sO1}, s{sO1}, 12\ns_add_u32 s{sO1}, s{sO1}, {ST}")
    if part == 6:
        srd(k, sW2, pW2); srd_const(k, sW2, 1605632); srd(k, sOUT, pOUT); srd_const(k, sOUT, 1835008)
        w2_bases(k, None)
    if part == 5:
        k(f"s_mul_i32 s{sT}, s{sCS}, 16640\ns_add_u32 s{sT}, s{sT}, {L_KC+24}" + (f"\ns_lshl_b32 s{sT2}, s{sHH}, 8\ns_sub_u32 s{sT}, s{sT}, s{sT2}" if RS[0] else ""))
        k(f"v_and_b32 v2, 3, v0\nv_sub_u32 v2, 3, v2\nv_mul_u32_u24 v2, 4160, v2\nv_bfe_u32 v3, v0, 2, 2\nv_lshlrev_b32 v3, 3, v3\nv_sub_u32 v2, v2, v3")
        k(f"v_lshrrev_b32 v3, 4, v0\nv_lshl_add_u32 v2, v3, 4, v2\nv_add_u32 v{CA}, s{sT}, v2")
        k(f"s_mul_i32 s{sT}, s{sCS}, 4576\ns_add_u32 s{sT}, s{sT}, {L_U+256*RS[0]}" + (f"\ns_sub_u32 s{sT}, s{sT}, s{sT2}" if RS[0] else ""))
        k(f"v_and_b32 v2, 15, v0\nv_lshlrev_b32 v2, 5, v2\nv_lshl_add_u32 v2, v3, 4, v2\nv_add_u32 v{CBA}, s{sT}, v2")
        k(f"v_lshl_add_u32 v{vSC}, s{sWV}, 2, v{VSY}")

def gen_G(k, cfg):
    ACC, W2R, RING = 16, 80, 192
    FS = [100, 116, 132]
    W2D, W2A, L16, XA, WA, AUG, STT = gW2D, gW2A, gL16, gXA, gWA, gAUG, gSTT
    RC, RL, T, P = 240, 244, 248, 208
    assert cfg.depth <= 6
    k("s_setprio 2")
    stamp(k, cfg, 1, 2); cstamp(k, cfg, 10)
    def w2read(step, dst_step):
        b = step // 2; loc = LOC[b % 7]*16384 + (step & 1)*2048; hi = 2 if loc >= 65536 else 0; loc -= hi*32768
        out = []
        for d2 in (0, 1):
            for rd in (0, 1):
                out.append(f"ds_read_b64_tr_b16 {V(W2R + dst_step*8 + d2*4 + rd*2, 2)}, v{W2A+hi+d2} offset:{loc + rd*1024}")
        return out
    def reads(i):
        c, s, F = i // 4, i % 4, FS[i % 3]; sl = c % 3
        wa, wo = (WA, L_WS[sl] - L_WS[0]) if sl < 2 else (WA + 2, 0)
        w = lambda ft: [f"ds_read_b64_tr_b16 {V(F+8+4*ft+2*rd,2)}, v{wa+ft} offset:{wo + s*4096 + rd*1024}" for rd in (0, 1)]
        x = [f"ds_read_b128 {V(F+4*tt,4)}, v{XA+s} offset:{L_XS[sl] - L_XS[2] + tt*4096}" for tt in (0, 1)]
        return w(0) + x + w(1)
    dq = []
    cap = Cap()
    for i in (0, 1):
        for r in reads(i): k(r, f"f{i}")
    for i in range(28):
        F = FS[i % 3]
        rd = reads(i+2) if i + 2 < 28 else []
        edge = rd and (i + 2) % 4 == 0
        gaps = [[], rd[:3], rd[3:], []] if edge else [rd[:2], rd[2:4], rd[4:], []]
        k.wait(lg=f"f{i}")
        for m in range(4):
            ft, tt = m >> 1, m & 1; a = ACC + 16*m
            k(f"v_mfma_f32_32x32x16_bf16 {V(a,16)}, {V(F+8+4*ft,4)}, {V(F+4*tt,4)}, {'0' if i == 0 else V(a,16)}")
            if edge and m == 1:
                c = (i+2)//4
                if c == 1: stamp(k, cfg, 9, 7)
                k.wait(vm={1: "c1", cfg.xtbar: "*"}.get(c), lg="*")
                if c == 1: stamp(k, cfg, 10, 7)
                if not cfg.x_nobar: k("s_barrier")
                stamp(k, cfg, 1 + c, 2)
                if c == 1: stamp(k, cfg, 11, 7)
                dq += [x for b in (2*c-10, 2*c-9) if int(cfg.sblk) <= b < cfg.gblk and not cfg.sall for x in w2dma(ORD[b], W2D)]
            if dq and i >= cfg.w2from and m in (3, 0 if (edge or i >= 26) else 1): g, t = dq.pop(0); k(g, t)
            for r in gaps[m]: k(r, f"f{i+2}")
            if m == 3:
                for _ in range(4):
                    if cap.l: k(cap.l.pop(0))
                assert i < 18 or not cap.l
            if i == 26 and m == 1:
                k.wait(lg="*"); k("s_barrier")
                if cfg.sblk and not cfg.s45: dq += w2dma(ORD[4], W2D)
                for tt in (0, 1): k(f"ds_read_b32 v{STT+tt}, v{gSTA} offset:{384*tt}", "st")
            if i == 26 and m == 2:
                for ft in (0, 1): k(f"ds_read_b64 {V(AUG+4+2*ft,2)}, v{gAGA} offset:{384*ft}", "ag")
            if i == 27 and m == 0: k(f"s_mov_b32 s50, {fbits(-15.0)}\ns_mov_b32 s44, {fbits(2.0**-15)}\ns_mov_b32 s45, {fbits(2.0**-30)}")
            if i == 27 and m == 1: k.wait(lg="*")
            if i == 27 and m in (1, 2):
                tt = m - 1
                k(f"s_mov_b32 s{sT}, 0x01000100\nv_and_b32 v11, 0xffff0000, v{STT+tt}\nv_rcp_f32 v{RC+2*tt}, v11")
                k(f"v_perm_b32 v{AUG+2*tt}, v{STT+tt}, v{STT+tt}, s{sT}\nv_lshrrev_b32 v{AUG+2*tt+1}, 16, v{STT+tt}")
            if i == 27 and m == 3:
                for tt in (0, 1): k(f"v_mul_f32 v{RC+2*tt+1}, {fbits(-2.0**-29) if cfg.rshare else '-2.0'}, v{RC+2*tt}\nv_mul_f32 v{RL+tt}, {fbits(LOG2E)}, v{RC+2*tt}")
    for m in range(4):
        ft, tt = m >> 1, m & 1; a = ACC + 16*m
        k(f"v_mfma_f32_32x32x8_bf16 {V(a,16)}, {V(AUG+4+2*ft,2)}, {V(AUG+2*tt,2)}, {V(a,16)}")
        if dq: g, t = dq.pop(0); k(g, t)
    assert not dq
    if cfg.pages: k.page("mish")
    stamp(k, cfg, 4); stamp(k, cfg, 8, 2); cstamp(k, cfg, 11)
    stq = []
    assert cfg.b8at % 2 == 0 and cfg.pbar2 == 0
    for g in range(8):
        if (cfg.mbar == 2 and 2*g == cfg.b8at) or (g and 2*g == cfg.pbar2): k("s_barrier")
        stamp(k, cfg, 1 + g, 6)
        m, sp = g >> 1, g & 1; ft, tt = m >> 1, m & 1; a = ACC + 16*m + 8*sp; p = P + 4*(g & 1)
        if cfg.rshare:
            U = 224; t = lambda i: V(T+2*i, 2); u = lambda i: V(U+2*i, 2)
            for i in range(4): k(f"v_pk_fma_f32 {t(i)}, {V(a+2*i,2)}, {V(RL,2)}, s[50:51] op_sel:[0,{tt},0] op_sel_hi:[1,{tt},0]")
            for i in range(8): k(f"v_exp_f32 v{T+i}, v{T+i} clamp")
            for i in range(4): k(f"v_pk_add_f32 {t(i)}, {t(i)}, s[44:45] op_sel_hi:[1,0]")
            for i in range(4): k(f"v_pk_fma_f32 {t(i)}, {t(i)}, {t(i)}, s[44:45] op_sel:[0,0,1] op_sel_hi:[1,1,1]")
            k(f"v_pk_mul_f32 {u(0)}, {t(0)}, {t(1)}\nv_pk_mul_f32 {u(1)}, {t(2)}, {t(3)}\nv_pk_mul_f32 {u(2)}, {u(0)}, {u(1)}")
            k(f"v_rcp_f32 v{U+4}, v{U+4}\nv_rcp_f32 v{U+5}, v{U+5}")
            for i in (0, 1): k(f"v_pk_mul_f32 {u(i)}, {u(i)}, {V(RC+2*tt,2)} op_sel:[0,1] op_sel_hi:[1,1]") if False else None
            k(f"v_pk_mul_f32 {u(2)}, {u(2)}, {V(RC+2*tt,2)} op_sel:[0,1] op_sel_hi:[1,1]")
            k(f"v_pk_mul_f32 {u(1)}, {u(1)}, {u(2)}\nv_pk_mul_f32 {u(0)}, {u(0)}, {u(2)}")
            for i in range(4): k(f"v_pk_fma_f32 {t(i)}, {t(i)}, {u(1 - (i >> 1))}, {V(RC+2*tt,2)} op_sel_hi:[1,1,0]")
        else:
            for i in range(4): k(f"v_pk_mul_f32 {V(T+2*i,2)}, {V(a+2*i,2)}, {V(RL,2)} op_sel:[0,{tt}] op_sel_hi:[1,{tt}]")
            for i in range(8): k(f"v_exp_f32 v{T+i}, v{T+i}")
            for i in range(4): k(f"v_pk_add_f32 {V(T+2*i,2)}, {V(T+2*i,2)}, 1.0 op_sel_hi:[1,0]")
            for i in range(4): k(f"v_pk_fma_f32 {V(T+2*i,2)}, {V(T+2*i,2)}, {V(T+2*i,2)}, 1.0 op_sel_hi:[1,1,0]")
            if (cfg.mbar == 2 and 2*g + 1 == cfg.b8at) or 2*g + 1 == cfg.pbar2: k("s_barrier")
            for i in range(8): k(f"v_rcp_f32 v{T+i}, v{T+i}")
            for i in range(4): k(f"v_pk_fma_f32 {V(T+2*i,2)}, {V(T+2*i,2)}, {V(RC+2*tt,2)}, {V(RC+2*tt,2)} op_sel:[0,1,0] op_sel_hi:[1,1,0]")
        sw = 1 if cfg.rshare else 0
        for i in range(4): k(f"v_pk_mul_f32 {V(T+2*i,2)}, {V(T+2*i,2)}, {V(a+2*(i^sw),2)}")
        if g == 7 and cfg.mbar: k("s_barrier")
        if g == 7 and not cfg.mbar:
            lds_signal(k, 10, SY_M, gONE)
            if cfg.sblk: k(f"ds_read_b32 v11, v{gSY} offset:{SY_U}", "w2r1")
        p = RING + 4*(2*(2*ft + sp) + tt)
        for i in range(4): k(f"v_cvt_pk_bf16_f32 v{p+(i^sw)}, v{T+2*i}, v{T+2*i+1}")
        stq.append(f"buffer_store_dwordx4 {V(p,4)}, v{L16}, {S(sWS,4)}, s{sXO if ft == 0 else sE3} offen offset:{sp*2048 + tt*1024} sc1")
        if g in cfg.stat:
            while stq: k(stq.pop(0), "act")
    stamp(k, cfg, 5); stamp(k, cfg, 9, 6)
    k("s_setprio 3")
    k.wait(vm=f"w2_{ORD[3 if cfg.s45 else 4]}" if cfg.sblk else "w2_3")
    def rdblk(b):
        for s in (0, 1):
            for r in w2read(2*b+s, 2*b+s): k(r, f"w2r{b}")
    sSTO = sE0
    k(f"s_lshl_b32 s{sSTO}, s{sRB}, 1\ns_and_b32 s{sT}, s{sXCD}, 1\ns_add_u32 s{sSTO}, s{sSTO}, s{sT}")
    k(f"s_lshl_b32 s{sE1}, s{sSTO}, 2\ns_add_u32 s{sE1}, s{sE1}, s3\ns_lshl_b32 s{sE1}, s{sE1}, 9\ns_add_u32 s{sE1}, s{sE1}, {ACNT}\ns_add_u32 s48, s{pWS}, s{sE1}\ns_addc_u32 s49, s{pWS+1}, 0")
    apoll = "\n".join(f"s_load_dword s{52+i}, s[48:49], {128*i} glc" for i in range(cfg.aspread))
    asum = "".join(f"s_add_u32 s52, s52, s{52+i}\n" for i in range(1, cfg.aspread))
    blk = lambda b: [(r, f"w2r{b}") for s in (0, 1) for r in w2read(2*b+s, 2*b+s)]
    assert cfg.gblk == 4
    order = [4, 5, 7, 6, 8, 9, 10, 11, 12, 13]
    rq = blk(0) + blk(1) + blk(2) + blk(3)
    if cfg.sblk: order = [6, 7, 8, 9, 10, 11, 12, 13]; rq += blk(4) + blk(5)
    for n, b in enumerate(order):
        if b == 7 and not cfg.sblk: k(f"ds_read_b32 v11, v{gSY} offset:{SY_U}", "w2r1")
        if b == 6 and not cfg.mbar:
            k.wait(lg="w2r1")
            o = k.lab("wl"); sl = list(k.lg)
            k(f"v_readfirstlane_b32 s{sT}, v11\ns_cmp_ge_u32 s{sT}, 4\ns_cbranch_scc1 {o}")
            lds_spin(k, gSY, SY_U, 4, 11, sT, sSP)
            k(f"{o}:"); k.lg = sl
        if b in (9, 10, 11) and (b == 11 or not cfg.sblk):
            k.wait(vm=f"w2_{b-5}"); rq += blk(b-5)
        if b == 12: k(f"ds_read_b32 v11, v{gSY}"); k.wait(lg="w2r6")
        if b >= 7: k.wait(lg=f"w2r{b-7}")
        for g, t in w2dma(b, W2D):
            k(g, t)
            for _ in range(4 if (cfg.sblk and n == 0) else 2):
                if rq: k(*rq.pop(0))
        if n == cfg.flagat:
            k.wait(vm="act")
            s_inc(k, pWS, f"s{sWO}", sT2)
            stamp(k, cfg, 6)
        if n == cfg.pollat: k(apoll)
    assert not rq
    assert order[cfg.pollat] >= 12
    k(f"s_and_b32 s{sT}, s3, 1\ns_mul_i32 s{sT}, s{sT}, 14\ns_add_u32 s{sT}, s{sT}, s{sCS}\ns_lshl_b32 s{sT}, s{sT}, 13\ns_mul_i32 s{sA2}, s{sSTO}, 229376\ns_add_u32 s{sA2}, s{sA2}, s{sT}\ns_add_u32 s{sA2}, s{sA2}, {ACT}")
    piece_bases(k, 16384)
    stamp(k, cfg, 7)
    if cfg.pages: k.page("g2")
    l = k.lab("ap"); o = k.lab("ar")
    k(f"s_mov_b32 s{sSP}, 0\n{l}:")
    k.wait(lg="*")
    k(f"{asum}s_add_u32 s{sSP}, s{sSP}, 1\ns_cmp_ge_u32 s52, 7\ns_cbranch_scc1 {o}\ns_cmp_gt_u32 s{sSP}, {SPIN}\ns_cbranch_scc1 {o}")
    if cfg.actsleep: k(f"s_sleep {cfg.actsleep}")
    k(f"{apoll}\ns_branch {l}\n{o}:")
    stamp(k, cfg, 8)
    k(f"s_setprio {cfg.g2prio}")
    D = 2*cfg.depth; n0 = 28 - cfg.tailn
    seq = [(s, tt) for s in range(n0) for tt in (0, 1)] + [(s, tt) for tt in (0, 1) for s in range(n0, 28)]
    cur = [None]
    def actload(j):
        s, tt = seq[j]; out = []
        if cur[0] != s//2:
            cur[0] = s//2
            out.append(piece(s//4, 16384, (s & 2)*2048, sT) + (f"\ns_and_b32 s{sT}, s{sT}, 0xfffff" if cfg.x_acthit else ""))
        out.append(f"buffer_load_dwordx4 {V(RING + (j % D)*4, 4)}, v{L16}, {S(sW2 if cfg.x_acthit else sWS,4)}, s{sT} offen offset:{(s & 1)*2048 + tt*1024} {cfg.actmod}")
        return "\n".join(out)
    stamp(k, cfg, 1, 5)
    o = k.lab("own")
    if cfg.own: k(f"s_xor_b32 s{sT}, s3, s{sXCD}\ns_bitcmp0_b32 s{sT}, 0\ns_cbranch_scc1 {o}")
    k(f"s_setprio {cfg.nprio}")
    for j in range(D):
        if j == 8: k(f"{o}:")
        k(actload(j), f"a{j}")
    stamp(k, cfg, 2, 5)
    DA = [1, 2, 3, 4, 10, 11, 14, 15]
    if cfg.pdump:
        k(f"v_and_b32 v14, 7, v0\nv_lshrrev_b32 v15, 5, v0\nv_xor_b32 v15, v15, v14\nv_lshlrev_b32 v15, 4, v15\nv_and_b32 v14, 31, v0\nv_lshl_add_u32 v15, v14, 7, v15\nv_add_u32 v{DA[0]}, s{sM}, v15")
        for i in range(1, 4): k(f"v_xor_b32 v{DA[i]}, {32*i}, v{DA[0]}")
        def dump(tt, d2s):
            out = []
            for d2 in d2s:
                r = [ACC + 16*(2*d2+tt) + 8*jp for jp in (0, 1)]
                out += ["\n".join(f"v_cvt_pk_bf16_f32 v{x+i}, v{x+2*i}, v{x+2*i+1}" for i in range(4)) for x in r]
                out += [f"v_permlane32_swap_b32 v{x}, v{x+2}\nv_permlane32_swap_b32 v{x+1}, v{x+3}\nds_write_b128 v{DA[2*d2+jp]}, {V(x,4)} offset:{tt*16384}" for jp, x in enumerate(r)]
            return out
    else:
        k(f"v_and_b32 v14, 15, v0\nv_lshrrev_b32 v15, 5, v0\nv_xor_b32 v15, v15, v14\nv_lshlrev_b32 v15, 4, v15\nv_lshl_add_u32 v15, v14, 8, v15")
        k(f"v_bfe_u32 v14, v0, 4, 1\nv_lshl_add_u32 v15, v14, 14, v15\nv_add_u32 v{DA[0]}, s{sM}, v15")
        for i in range(1, 8): k(f"v_xor_b32 v{DA[i]}, {32*i}, v{DA[0]}")
        dump = lambda tt, d2s: [f"ds_write_b128 v{DA[4*d2+jj]}, {V(ACC+16*(2*d2+tt)+4*jj,4)} offset:{tt*32768}" for d2 in d2s for jj in range(4)]
    jlast0 = max(j for j in range(56) if seq[j][1] == 0)
    assert 14 + cfg.rdlag < n0 and cfg.tailq <= min(D, cfg.tailn)
    q0 = 56 - cfg.tailq
    ops = [(j, d2) for j in range(q0) for d2 in (0, 1)] + [(j, d2) for d2 in (0, 1) for j in range(q0, 56)]
    d0 = dump(0, (0, 1)); d1 = dump(1, (0, 1)); i0 = ops.index((jlast0, 1)); i1 = ops.index((55, 0)); sig = [False]
    for i, (j, d2) in enumerate(ops):
        s, tt = seq[j]
        if d2 == 0:
            k.wait(vm=f"a{j}", lg=f"r{s}" if s >= 14 else None)
            if j % 8 == 0: stamp(k, cfg, 3 + j//8, 5)
        w = W2R + (s % 14)*8; x = RING + (j % D)*4; a = ACC + 16*(2*d2 + tt)
        rs = s - cfg.rdlag
        k(f"v_mfma_f32_32x32x16_bf16 {V(a,16)}, {V(w+4*d2,4)}, {V(x,4)}, {'0' if s == 0 else V(a,16)}")
        if d2 == 0 and j >= 1 and j - 1 + D < 56: k(actload(j - 1 + D), f"a{j-1+D}")
        if d2 == 1 and 1 <= rs <= 14: k("\n".join(w2read(rs + 13, rs - 1)[2*tt:2*tt+2]), f"r{rs+13}")
        if i >= i0 + 2 and d0 and (cfg.pdump or (i - i0) % 2 == 0 or len(d0) >= len(ops) - i): k(d0.pop(0))
        elif not d0 and not sig[0]: lds_signal(k, gSY, SY_GS, gONE); sig[0] = True
        elif cfg.tailq and sig[0] and i >= i1 + 2 and len(d1) > 4 and (cfg.pdump or (i - i1) % 2 == 0): k(d1.pop(0))
    while d0: k(d0.pop(0))
    if not sig[0]: lds_signal(k, gSY, SY_GS, gONE)
    stamp(k, cfg, 9); stamp(k, cfg, 10, 5)
    for x in d1: k(x)
    k.wait(lg="*")
    stamp(k, cfg, 11, 5)
    k("s_barrier")
    stamp(k, cfg, 10)
    prof_dump(k, cfg, role="G")
    k("s_endpgm")

class Pacer:
    def __init__(self, k, pace): self.k, self.pace, self.q, self.n = k, pace, [], 0
    def __call__(self, text, tag=None):
        lines = text.split("\n")
        for i, ln in enumerate(lines):
            self.k(ln, tag)
            if i + 1 < len(lines) and lines[i+1].startswith(("s_cselect", "s_addc", "s_cbranch")): continue
            self.n += 11 if "ds_write_b128" in ln else 5 if "ds_write" in ln else 2 if ("ds_read" in ln or "v_rcp" in ln) else 1
            if self.q and self.n >= self.pace: self.pop()
    def pop(self):
        g, t = self.q.pop(0); self.k(g, t); self.n = 0
    def flush(self):
        while self.q: self.pop()

def gen_S(k, cfg, vm0):
    k.reset()
    if cfg.pages: k(".p2align 12")
    k("L_S:")
    k.s_tail()
    sWV, GA = sCOL, sGA
    p = Pacer(k, cfg.pace)
    def bar(c, lg="*"):
        p.flush()
        if c == 1: stamp(k, cfg, 9, 7)
        k.wait(vm=f"c{c}", lg=lg)
        if c == 1: stamp(k, cfg, 10, 7)
        stamp(k, cfg, 1+c, 2)
        if not cfg.x_nobar: k("s_barrier")
    G0, XV, CP = 160, 192, 208
    SV, XW, CN, MM, RR, XF, GS = 100, 108, 116, 120, 128, 136, 144
    def copies(x, off, sgs):
        for sg in sgs:
            c = CP + 4*sg
            for jj in range(4): p(f"v_cvt_pk_bf16_f32 v{c+jj}, v{x[sg+2*jj]}, v{x[sg+2*jj+1]}")
            p(f"ds_write_b128 v{EW}, {V(c,4)} offset:{sg*4160 + off}")
    k("s_setprio 0")
    k(CLRL, "clr")
    w2t = f"s_lshl2_add_u32 s{sT}, s{sCP}, s{sCOL}\ns_mul_i32 s{sT}, s{sT}, 1792\nv_mul_u32_u24 v62, 28, v0\nbuffer_load_dword v62, v62, {S(sW2,4)}, s{sT} offen"
    if cfg.w2touch == 1: assert 6 in cfg.early; k(w2t)
    held = []
    late = lambda part: S_addresses(p, part) if part not in cfg.early else None
    def ring(c):
        ch = chunk(cfg, c); p.q = held + ch[:cfg.r2cut]; held[:] = ch[cfg.r2cut:]; p.pop()
    stl = f"buffer_load_dwordx4 {V(SV,4)}, v{vST}, {S(sWS,4)}, s{sXO} offen sc1\nbuffer_load_dwordx4 {V(SV+4,4)}, v{vST}, {S(sWS,4)}, s{sWO} offen sc1"
    xcl = f"buffer_load_dword v{CN}, v{vXC}, {S(sWS,4)}, 0 offen sc1"
    gsl = f"s_mov_b32 m0, s{sE0}\ns_mov_b64 exec, 0xffffff\nbuffer_load_dwordx4 v{vGA}, {S(sWS,4)}, 0 offen sc1 lds\ns_mov_b64 exec, -1"
    pw = [f"ds_write2_b32 v{sPW+a}, v{KA+r}, v{KA+r+1} offset0:{o0} offset1:{o1}" for a, r, o0, o1 in
          ((0, 0, 0, 1), (0, 2, 2, 3), (1, 4, 0, 1), (2, 6, 2, 3), (3, 8, 0, 33), (3, 10, 66, 99))]
    ring(2)
    p(f"v_lshrrev_b32 v50, 1, v0\nv_and_b32 v52, 1, v0\nv_lshl_add_u32 v52, s{sWV}, 1, v52\nv_bfe_u32 v51, v0, 2, 3\nv_xor_b32 v51, v51, v52\nv_lshlrev_b32 v51, 4, v51\nv_lshl_add_u32 v51, v50, 7, v51")
    p(f"s_and_b32 s{sT}, s{sXCD}, 1\ns_lshl_b32 s{sT}, s{sT}, 13\ns_add_u32 s{sT}, s{sT}, {L_GB+L_XS[0]}\nv_add_u32 v51, s{sT}, v51")
    p(f"ds_read_b128 v[248:251], v51\nds_read_b128 v[252:255], v51 offset:4096")
    late(6); late(3)
    if cfg.w2touch == 2: p.flush(); k(w2t)
    bar(1)
    def xtflag():
        v_poll(k, CLRL, 49, 4, sSP, 2, first=False, tag="clr")
        o = k.lab("xf")
        k(f"s_lshl_b32 s{sT}, s{sG32}, 2\ns_add_u32 s{sT}, s{sT}, s{sR}\ns_add_u32 s{sT}, s{sT}, {C_XT}\ns_lshl_b32 s{sT}, s{sT}, 7\ns_cmp_lg_u32 s{sCOL}, 0\ns_cbranch_scc1 {o}")
        s_inc(k, pWS, f"s{sT}", sE2)
        k(f"{o}:")
    ring(3)
    if cfg.xtbar == 1: p.pop(); xtflag(); p.pop(); p.pop()
    late(0); late(5)
    for r in range(3): p(f"ds_read_b128 {V(G0+4*r,4)}, v{PA} offset:{1024*r}", "raw")
    bar(2, None)
    if cfg.xtbar == 2: xtflag()
    ring(4)
    late(1)
    bar(3, None)
    ring(5)
    late(2)
    bar(4, None)
    stamp(k, cfg, 4)
    if cfg.r2cut == 8: k(xcl, "xc")
    ring(6)
    for _ in range(8 - cfg.r2cut - 1): p.pop()
    if cfg.r2cut < 8: k(xcl, "xc")
    k.wait(lg="*")
    for i in range(12): p(f"v_add_f32 v{KA+i}, v{KA+i}, v{G0+i}")
    late(4)
    bar(5, None)
    p.q = list(held); p.flush()
    v_poll(k, xcl, CN, 4, sSP, 2, first=False, tag="xc")
    k(stl, "st")
    for e in (0, 1): k(f"buffer_load_dwordx4 {V(XW+4*e,4)}, v{vXW}, {S(sWS,4)}, 0 offen offset:{64*e} sc1", "xw")
    k(gsl, "gs")
    if cfg.sall:
        n1, n2 = cfg.sall
        assert n1 <= 8 and n2 % 4 == 0 and n2 <= 16
        wq = [x for b in range(6) for x in w2dma(ORD[b], sW2D)]
        p.q = wq[:n1]
        bar(6, None)
        p.q = wq[n1:n2]; p.pop()
        late(7); p.flush()
    else:
        p.q = w2dma(ORD[0], sW2D); p.pop()
        late(7)
        bar(6, None)
    stamp(k, cfg, 5)
    if cfg.pages:
        o = k.lab("wm")
        for n, name in enumerate(("cvA", "cvB", "mish")):
            if name not in cfg.warm: continue
            o2 = k.lab("wn")
            k(f"s_cmp_lg_u32 s{sWV}, {n}\ns_cbranch_scc1 {o2}"); k.warm(name); k(f"{o2}:")
    k.wait(vm="gs")
    k(f"s_mov_b32 s{sSP}, 0")
    l = k.lab("xp"); o = k.lab("xpo")
    k(f"{l}:")
    k(f"ds_read_b128 {V(GS,4)}, v{vGW}")
    k(f"v_min_u32 v{CN}, v{SV}, v{SV+1}\ns_add_u32 s{sSP}, s{sSP}, 1")
    for i in range(1, 4): k(f"v_min3_u32 v{CN}, v{CN}, v{SV+2*i}, v{SV+2*i+1}")
    for i in range(8): k(f"v_and_b32 v{RR+i}, 0xffff0000, v{SV+i}")
    k.wait(lg="*")
    k(f"v_min3_u32 v{CN}, v{CN}, v{GS+1}, v{GS+3}")
    k(f"v_cmp_eq_u32 vcc, 0, v{CN}\ns_cmp_gt_u32 s{sSP}, {SPIN}\ns_cbranch_scc1 {o}\ns_cbranch_vccz {o}")
    sv = list(k.vm); k(stl); k(gsl); k("s_waitcnt vmcnt(0)"); k.vm = sv
    k(f"s_branch {l}")
    k(f"{o}:")
    stamp(k, cfg, 8, 2)
    k("s_barrier")
    stamp(k, cfg, 1, 6)
    if cfg.sall: p.q = wq[n2:]; p.pace = cfg.pace2; p.pop()
    for i in range(8): p(f"v_rcp_f32 v{RR+i}, v{RR+i}\nv_lshlrev_b32 v{MM+i}, 16, v{SV+i}")
    for i in range(8): p(f"v_mul_f32 v{MM+i}, v{MM+i}, v{RR+i}")
    for ch in (0, 1):
        if ch: k("s_setprio 3")
        for i in range(4): p(f"v_lshlrev_b32 v{XF+2*i}, 16, v{XW+4*ch+i}\nv_and_b32 v{XF+2*i+1}, 0xffff0000, v{XW+4*ch+i}")
        for i in range(8): p(f"v_fma_f32 v{XF+i}, v{XF+i}, v{RR+i}, -v{MM+i}")
        for i in range(4): p(f"v_cvt_pk_bf16_f32 v{XW+4*ch+i}, v{XF+2*i}, v{XF+2*i+1}")
    stamp(k, cfg, 9, 2); stamp(k, cfg, 2, 6)
    k(f"v_lshl_add_u32 v55, s{sCS}, 2, v{VSY}")
    p.flush()
    if cfg.sblk and not cfg.sall:
        for g, t in (w2dma(ORD[4], sW2D) if cfg.s45 else []) + w2dma(ORD[5], sW2D): k(g, t)
    stamp(k, cfg, 3, 6)
    k("\n".join(pw))
    if not cfg.pbar2: lds_signal(k, 55, SY_PAIR, VONE)
    stamp(k, cfg, 4, 6)
    stamp(k, cfg, 5, 6)
    if cfg.pbar2: assert cfg.split == 'J'; k.wait(lg="*"); k("s_barrier")
    else: lds_spin(k, 55, SY_PAIR, 2, 50, sT, sSP)
    stamp(k, cfg, 6, 6)
    for i in list(range(11, 14)) + list(range(11)): k(f"ds_read2st64_b32 {V(G0+2*i,2)}, v{GA+i} offset1:13", "ga" if i > 10 else "gb")
    for ch in (0, 1): k(f"ds_write_b128 v{UW}, {V(XW+4*ch,4)} offset:{4576*ch}")
    k(f"ds_write_b128 v{TZ}, {V(ZERO,4)} offset:4096")
    for ps, x in enumerate(([XV+12]*3 + [XV+14] + [XV+11]*6 + [XV+13], [XV+i for i in range(11)])):
        k.wait(lg="gb" if ps else "ga")
        stamp(k, cfg, 7 + ps, 6)
        for i in (range(11) if ps else range(11, 14)): k(f"v_add_f32 v{XV+i}, v{G0+2*i}, v{G0+2*i+1}")
        if ps == 0: k(f"v_cmp_eq_u32 vcc, 1, v{vODD}\nv_cndmask_b32 v{XV+14}, v{XV+12}, v{XV+11}, vcc")
        for sg in range(4):
            for jj in range(4): k(f"v_cvt_pk_bf16_f32 v{CP+16*ps+4*sg+jj}, v{x[sg+2*jj]}, v{x[sg+2*jj+1]}")
            k(f"ds_write_b128 v{EW}, {V(CP+16*ps+4*sg,4)} offset:{sg*4160 + ps*2048}")
    stamp(k, cfg, 9, 6)
    if cfg.mbar:
        k.wait(vm="*", lg="*"); k("s_barrier")
    else:
        k.wait(vm="*")
        lds_signal(k, VSY, SY_U, VONE)
        lds_spin(k, VSY, SY_U, 4, 50, sT, sSP, cfg.usleep)
    stamp(k, cfg, 10, 6)
    Y, FS, YS = 68, [100, 164], 228
    def a_read(r, F, a): return [f"ds_read_b64 {V(F+4*a+2*e,2)}, v{CA} offset:{(7-a)*512 + (7-r)*64 + 8*e}" for e in (0, 1)]
    def b_read(r, F, c): return [f"ds_read_b128 {V(F+32+4*c,4)}, v{CBA} offset:{c*512 + (7-r)*64 - 256*RS[0]}"]
    def first(ms):
        seen = []
        for J, a in ms:
            for t in (("a", a), ("b", J - a)):
                if t not in seen: seen.append(t)
        rd = [(x, f"z{t[0]}{t[1]}") for t in seen for x in (a_read if t[0] == "a" else b_read)(0, FS[0], t[1])]
        for x in rd[:cfg.cvpre]: k(*x)
        stamp(k, cfg, 10, 2)
        if cfg.mbar == 2: k("s_barrier")
        if not cfg.mbar: lds_spin(k, vSC, SY_M, 1, 50, sT, sSP, cfg.usleep)
        k(f"s_setprio {cfg.cvprio}")
        stamp(k, cfg, 6); stamp(k, cfg, 11, 2); stamp(k, cfg, 11, 6)
        return rd[cfg.cvpre:]
    if cfg.split == 'r':
        ms = [(a + c, a) for c in range(8) for a in range(8 - c)]
        cfg.cvpre = 24; first(ms); k.wait(lg='*')
        for r in range(4):
            F = FS[r & 1]; N = FS[(r+1) & 1]; nxt = []
            if r < 3:
                for i in range(8): nxt += a_read(r+1, N, i) + b_read(r+1, N, i)
            if r > 0: k.wait(lg="*")
            if r == 3:
                lds_signal(k, VSY, SY_RD, VONE)
                nxt = f"s_lshl_b32 s{sT}, s{sWV}, 12\ns_add_u32 s{sT}, s{sT}, 16384\nv_lshl_add_u32 v51, v0, 4, s{sT}\nv_xor_b32 v52, 0x1000, v51\ns_lshl_b32 s{sT}, s{sHH}, 11\ns_add_u32 s{sO1}, s{sO1}, s{sT}".split("\n")
            n = 0
            for i, (J, a) in enumerate(ms):
                k(f"v_mfma_f32_16x16x32_bf16 {V(Y+4*J,4)}, {V(F+4*a,4)}, {V(F+32+4*(J-a),4)}, {'0' if (r == 0 and J == a) else V(Y+4*J,4)}")
                if n < len(nxt): k(nxt[n]); n += 1
                if r == 3 and i == 28: k(f"ds_read_b32 v50, v{VSY} offset:{SY_RD}")
        stamp(k, cfg, 7); stamp(k, cfg, 1, 5)
        k("s_setprio 3")
        o = k.lab("rd")
        k.wait(lg="*")
        k(f"v_readfirstlane_b32 s{sT}, v50\ns_cmp_ge_u32 s{sT}, 4\ns_cbranch_scc1 {o}")
        lds_spin(k, VSY, SY_RD, 4, 50, sT, sSP)
        k(f"{o}:")
        l1 = k.lab("h1"); l2 = k.lab("hj"); EX = 100
        k(f"s_cmp_eq_u32 s{sHH}, 1\ns_cbranch_scc1 {l1}\ns_nop 3")
        for i in range(4): k(f"ds_write_b128 v51, {V(Y+16+4*i,4)} offset:{1024*i}")
        lds_signal(k, 55, SY_PAIR, VONE)
        k(f"s_branch {l2}")
        k(f"{l1}:")
        for i in range(4): k(f"ds_write_b128 v51, {V(Y+4*i,4)} offset:{1024*i}")
        lds_signal(k, 55, SY_PAIR, VONE)
        for i in range(16): k(f"v_mov_b32 v{Y+i}, v{Y+16+i}")
        k(f"{l2}:")
        lds_spin(k, 55, SY_PAIR, 4, 50, sT, sSP)
        for i in range(4): k(f"ds_read_b128 {V(EX+4*i,4)}, v52 offset:{1024*i}", f"e{i}")
        for g in (0, 1):
            for i in (2*g, 2*g+1):
                k.wait(lg=f"e{i}")
                for e in range(4): k(f"v_add_f32 v{Y+4*i+e}, v{Y+4*i+e}, v{EX+4*i+e}")
                for e in (0, 1): k(f"v_cvt_pk_bf16_f32 v{YS+2*i+e}, v{Y+4*i+2*e}, v{Y+4*i+2*e+1}")
            for e in (0, 1): k(f"v_permlane16_swap_b32 v{YS+4*g+e}, v{YS+4*g+2+e}")
            k(f"buffer_store_dwordx4 {V(YS+4*g,4)}, v54, {S(sWS,4)}, s{sO1} offen offset:{1024*g} sc1", "sts")
    else:
        lB = "L_cvB"; lJ = "L_epi"
        k(f"s_cmp_eq_u32 s{sHH}, 1\ns_cbranch_scc1 {lB}")
        if cfg.pages: k.page("cvA")
        for Js in JSETS[cfg.jbal]:
            top = max(Js)
            ms = [(J, a) for a in range(top+1) for J in Js if a <= J]
            rest = first(ms)
            for r in range(8):
                F = FS[r & 1]; N = FS[(r+1) & 1]; nxt = list(rest); rest = []
                if r < 7:
                    for i in range(top+1): nxt += [(x, None) for x in a_read(r+1, N, i) + b_read(r+1, N, top-i)]
                if r > 0: k.wait(lg="*")
                if r == 7: lds_signal(k, VSY, SY_RD, VONE)
                n = 0; slots = len(ms) - cfg.cvfree
                for i, (J, a) in enumerate(ms):
                    if r == 0:
                        for t in (f"za{a}", f"zb{J-a}"):
                            assert t not in [y[1] for y in nxt[n:]]
                            k.wait(lg=t)
                    k(f"v_mfma_f32_16x16x32_bf16 {V(Y+4*J,4)}, {V(F+4*a,4)}, {V(F+32+4*(J-a),4)}, {'0' if (r == 0 and a == 0) else V(Y+4*J,4)}")
                    while n < len(nxt) and n*slots < (i+1)*len(nxt): k(*nxt[n]); n += 1
                assert n == len(nxt)
            stamp(k, cfg, 7); stamp(k, cfg, 1, 5)
            groups = [(Js[-1], Js[-1])] + [(Js[i+1], Js[i]) for i in range(len(Js)-3, -1, -2)]
            for g, (lo, hi) in enumerate(groups):
                y = YS + 4*g
                for q, J in enumerate((lo, hi)):
                    for e in (0, 1): k(f"v_cvt_pk_bf16_f32 v{y+2*q+e}, v{Y+4*J+2*e}, v{Y+4*J+2*e+1}")
                for e in (0, 1): k(f"v_permlane16_swap_b32 v{y+e}, v{y+2+e}")
                k(f"buffer_store_dwordx4 {V(y,4)}, v{53 if lo == hi else 54}, {S(sWS,4)}, s{sO1} offen offset:{512*lo} sc1", "sts")
            if top == 7:
                k(f"s_branch {lJ}")
                if cfg.pages: k.page("cvB", False)
                else: k(f"{lB}:")
                k.reset()
        if cfg.pages: k.page("epi")
        else: k(f"{lJ}:")
    if cfg.x_nos2:
        k("s_barrier"); prof_dump(k, cfg, True); k("s_endpgm"); return
    XE, OA, RA, SA, XU, SU = 248, 64, 68, 70, 120, 136
    k(f"s_lshl1_add_u32 s{sRB}, s{sRB}, s{sXH}\ns_mov_b32 s{sC}, s{sKAP}")
    k(f"v_lshrrev_b32 v50, 1, v0\nv_mul_u32_u24 v52, 896, v50\nv_lshl_add_u32 v{OA}, v{vODD}, 4, v52")
    k(f"s_mul_i32 s{sG32}, s{sRB}, {64*896}\ns_lshl2_add_u32 s{sT}, s{sC}, s{sWV}\ns_lshl_b32 s{sT}, s{sT}, 5\ns_add_u32 s{sG32}, s{sG32}, s{sT}\ns_add_u32 s{sKAP}, s{sG32}, {32*896}")
    k(f"v_lshl_add_u32 v51, s{sWV}, 1, v{vODD}\nv_and_b32 v55, 15, v50\nv_lshlrev_b32 v52, 1, v51\nv_xor_b32 v52, v52, v55\nv_lshlrev_b32 v52, 4, v52\nv_lshl_add_u32 v52, v55, 8, v52")
    k(f"v_lshrrev_b32 v55, 5, v0\nv_lshl_add_u32 v52, v55, 14, v52\nv_add_u32 v{RA}, {L_GB}, v52\nv_xor_b32 v{RA+1}, 16, v{RA}")
    if cfg.pdump: k(f"v_and_b32 v52, 7, v50\nv_xor_b32 v52, v52, v51\nv_lshlrev_b32 v52, 4, v52\nv_lshl_add_u32 v52, v50, 7, v52\nv_add_u32 v{RA}, {L_GB}, v52")
    k(f"v_bfe_u32 v52, v0, 4, 1\nv_lshl_add_u32 v52, v52, 2, v55\nv_xor_b32 v52, v52, v51\nv_lshlrev_b32 v52, 4, v52\nv_lshl_add_u32 v52, v51, 10, v52\nv_and_b32 v55, 14, v0\nv_add_u32 v{SA}, v55, v52\nv_xor_b32 v{SA+1}, 32, v{SA}")
    assert L_U == 0
    k(f"v_lshrrev_b32 v50, 3, v0\nv_and_b32 v51, 7, v0\ns_lshl_b32 s{sT}, s{sWV}, 1\nv_xor_b32 v56, s{sT}, v51\nv_lshlrev_b32 v56, 4, v56\nv_lshl_add_u32 v56, v50, 12, v56\nv_xor_b32 v57, 16, v56\nv_add_u32 v57, {32768-1024}, v57")
    k.wait(vm="*")
    s_inc(k, pWS, f"s{sO2}", sE3)
    stamp(k, cfg, 8); stamp(k, cfg, 2, 5)
    for i in range(8): k(f"v_lshlrev_b32 v{XU+2*i}, 16, v{XE+i}\nv_and_b32 v{XU+2*i+1}, 0xffff0000, v{XE+i}")
    k(f"s_lshr_b32 s{sT2}, s{sRB}, 2\ns_lshr_b32 s{sT2}, {0xf0 if RS[0] else sum(1 << J for J in JSETS[cfg.jbal][1])}, s{sT2}\ns_and_b32 s{sT2}, s{sT2}, 1")
    k(f"s_lshl_b32 s{sT}, s{sC}, 1\ns_add_u32 s{sT}, s{sT}, s{sT2}\ns_lshl_b32 s{sT}, s{sT}, 2\ns_add_u32 s{sT}, s{sT}, s{sWV}\ns_add_u32 s{sT}, s{sT}, {C_ST}\ns_lshl_b32 s{sO1}, s{sT}, 7")
    k(f"s_lshl_b32 s{sT}, s{sC}, 2\ns_add_u32 s{sT}, s{sT}, s{sWV}\ns_lshl_b32 s{sT}, s{sT}, 16\ns_lshl_b32 s{sT2}, s{sRB}, 7\ns_add_u32 s{sT}, s{sT}, s{sT2}\ns_add_u32 s{sO2}, s{sT}, {ST}")
    for i in range(16): k(f"v_mov_b32 v{SU+i}, 0")
    k(f"s_lshl_b32 m0, s{sWV}, 11")
    if not RS[0]: lds_spin(k, VSY, SY_RD, 4, 50, sT, sSP, 1)
    s_poll(k, pWS, [f"s{sO1}"], 16, sT, sSP, cfg.stpoll[1])
    stamp(k, cfg, 3, 5)
    k(f"buffer_load_dwordx4 v56, {S(sWS,4)}, s{sO2} offen sc1 lds\nbuffer_load_dwordx4 v57, {S(sWS,4)}, s{sO2} offen offset:1024 sc1 lds")
    k.wait(vm="*")
    stamp(k, cfg, 9); stamp(k, cfg, 4, 5)
    for ps in (0, 1):
        for e in range(8): k(f"ds_read_u16_d16_hi v{SU+8*ps+e}, v{SA+ps} offset:{128*e}")
    k(f"s_mov_b32 s{sO1}, {fbits(-LOG2E)}\ns_movk_i32 s50, 0x3f80\ns_mov_b32 s51, 0x3f800000")
    PR, T = 160, 224
    for ps in (0, 1):
        b = PR + 32*ps; plain = ps == 0 and cfg.p0plain
        if ps == 0:
            stamp(k, cfg, 5, 5); lds_spin(k, VSY, SY_GS, 4, 50, sT, sSP, cfg.finsleep); stamp(k, cfg, 6, 5)
        else:
            stamp(k, cfg, 7, 5); k("s_barrier"); stamp(k, cfg, 10); stamp(k, cfg, 8, 5)
        if cfg.pdump:
            for w in range(4): k(f"ds_read_b128 {V(b+8+4*w,4)}, v{RA} offset:{16384*ps + 4096*w}", f"p{w}")
            for w in range(4):
                k.wait(lg=f"p{w}")
                for i in range(4):
                    x = b + 8 + 4*w + i
                    if w == 0: k(f"v_lshlrev_b32 v{b+2*i}, 16, v{x}\nv_and_b32 v{b+2*i+1}, 0xffff0000, v{x}")
                    elif plain: k(f"v_lshlrev_b32 v{T}, 16, v{x}\nv_and_b32 v{x}, 0xffff0000, v{x}\nv_add_f32 v{b+2*i}, v{b+2*i}, v{T}\nv_add_f32 v{b+2*i+1}, v{b+2*i+1}, v{x}")
                    else: k(f"v_dot2c_f32_bf16 v{b+2*i}, s50, v{x}\nv_dot2c_f32_bf16 v{b+2*i+1}, s51, v{x}")
        else:
            for w in range(4):
                for e in (0, 1): k(f"ds_read_b128 {V(b+8*w+4*e,4)}, v{RA+e} offset:{32768*ps + 4096*w}", f"p{w}")
            def add(x, y):
                if ps == 0 and cfg.p0plain:
                    for i in range(8): k(f"v_add_f32 v{x+i}, v{x+i}, v{y+i}")
                else:
                    for i in range(4): k(f"v_pk_add_f32 {V(x+2*i,2)}, {V(x+2*i,2)}, {V(y+2*i,2)}")
            k.wait(lg="p1")
            add(b, b+8)
            k.wait(lg="p3")
            add(b+16, b+24); add(b, b+16)
        if plain and cfg.p0plain == 2:
            for i in range(8): k(f"v_mul_f32 v{T+i}, s{sO1}, v{b+i}")
            for i in range(8): k(f"v_exp_f32 v{T+i}, v{T+i}")
            for i in range(8): k(f"v_mul_f32 v{b+i}, v{b+i}, v{SU+i}")
            for i in range(8): k(f"v_add_f32 v{T+i}, 1.0, v{T+i}")
            for i in range(8): k(f"v_rcp_f32 v{T+i}, v{T+i}")
            for i in range(8): k(f"v_fma_f32 v{b+i}, v{b+i}, v{T+i}, v{XU+i}")
        else:
            for i in range(4): k(f"v_pk_mul_f32 {V(T+2*i,2)}, {V(b+2*i,2)}, {S(sO1,2)} op_sel_hi:[1,0]")
            for i in range(8): k(f"v_exp_f32 v{T+i}, v{T+i}")
            for i in range(4): k(f"v_pk_mul_f32 {V(b+2*i,2)}, {V(b+2*i,2)}, {V(SU+8*ps+2*i,2)}")
            for i in range(4): k(f"v_pk_add_f32 {V(T+2*i,2)}, {V(T+2*i,2)}, 1.0 op_sel_hi:[1,0]")
            for i in range(8): k(f"v_rcp_f32 v{T+i}, v{T+i}")
            for i in range(4): k(f"v_pk_fma_f32 {V(b+2*i,2)}, {V(b+2*i,2)}, {V(T+2*i,2)}, {V(XU+8*ps+2*i,2)}")
        for i in range(4): k(f"v_cvt_pk_bf16_f32 v{b+8+i}, v{b+2*i}, v{b+2*i+1}")
        k(f"buffer_store_dwordx4 {V(b+8,4)}, v{OA}, {S(sOUT,4)}, s{sG32 if ps == 0 else sKAP} offen {cfg.outmod}")
    if cfg.prof or cfg.probe: k("s_waitcnt vmcnt(0)")
    stamp(k, cfg, 11); stamp(k, cfg, 9, 5)
    prof_dump(k, cfg, True, role="S")
    k("s_endpgm")

def gen_helper(k, cfg):
    k.reset()
    k("L_helper:")
    sHB, sIH, sST = 62, 63, 64
    k(f"v_lshrrev_b32 v1, 6, v0\nv_and_b32 v0, 63, v0\nv_readfirstlane_b32 s3, v1\ns_and_b32 s{sXCD}, s2, 7")
    k(f"s_lshl_b32 s{sHB}, s{sXCD}, 2\ns_add_u32 s{sHB}, s{sHB}, s{sJ}")
    k(f"s_lshr_b32 s{sIH}, s{sXCD}, 1\ns_lshl_b32 s{sIH}, s{sIH}, 2\ns_add_u32 s{sIH}, s{sIH}, s{sJ}\ns_and_b32 s{sST}, s{sXCD}, 1\ns_mul_i32 s{sST}, s{sST}, 14\ns_add_u32 s{sST}, s{sST}, s{sIH}")
    k(f"s_lshl_b32 s{sT}, s{sHB}, 3\ns_add_u32 s{sT}, s{sT}, s3\ns_mul_i32 s65, s{sT}, {8*896}")
    k(f"v_lshrrev_b32 v1, 3, v0\nv_and_b32 v2, 7, v0\nv_mul_u32_u24 v3, 896, v1\nv_lshl_add_u32 v3, v2, 4, v3")
    k(f"v_lshlrev_b32 v4, 4, v0\nv_and_b32 v5, 1, v0\nv_lshlrev_b32 v5, 12, v5\nv_lshrrev_b32 v6, 1, v0\nv_lshl_add_u32 v5, v6, 4, v5")
    k(f"v_mul_u32_u24 v15, 3584, v1\nv_lshl_add_u32 v15, v2, 4, v15")
    k(f"s_lshl_b32 s67, s{sHB}, 7\ns_add_u32 s67, s67, {STATS}")
    k(f"s_lshl_b32 s69, s{sST}, 9\ns_add_u32 s69, s69, {AUGW}\ns_mul_i32 s70, s3, {56*3584}\ns_lshl_b32 s74, s{sST}, 7\ns_add_u32 s70, s70, s74")
    srd_const(k, sAUX, 256); srd_const(k, sWS, WSN); srd_const(k, sX, 1835008); srd_const(k, sW1, 1605632); srd_const(k, sW2, 1605632); srd_const(k, sOUT, 3584)
    k("s_waitcnt lgkmcnt(0)")
    srd(k, sW1, pW1); srd(k, sX, pX); srd(k, sWS, pWS); srd(k, sAUX, pDBG); srd(k, sW2, pW2); srd(k, sOUT, pB1)
    stamp(k, cfg, 5)
    if cfg.tlb:
        k(f"s_lshl_b32 s72, s3, 21\ns_load_dword s30, {S(pWS,2)}, s72\ns_load_dword s31, {S(pW2,2)}, 0\ns_load_dword s32, {S(pOUT,2)}, 0\ns_load_dword s33, {S(pW1,2)}, 0\ns_load_dword s34, {S(pDBG,2)}, 128")
    l0 = k.lab("h0")
    k(f"s_cmp_lt_u32 s{sIH}, 14\ns_cbranch_scc1 {l0}")
    for i in range(4): k(f"v_mov_b32 v{8+i}, 0")
    k(f"s_and_b32 s66, s{sXCD}, 1\ns_lshl_b32 s66, s66, 1\ns_and_b32 s{sT}, s{sJ}, 1\ns_add_u32 s66, s66, s{sT}\ns_lshl_b32 s66, s66, 3\ns_add_u32 s66, s66, s3\ns_lshl_b32 s66, s66, 12")
    for n in range(4): k(f"buffer_store_dwordx4 v[8:11], v4, {S(sWS,4)}, s66 offen offset:{1024*n} sc1")
    k(f"s_mov_b32 s69, {WSN}\ns_mov_b32 s70, {WSN}\ns_waitcnt vmcnt(0)\ns_barrier\ns_cmp_lg_u32 s3, 7\ns_cbranch_scc1 {l0}")
    s_inc(k, pDBG, "0", 75)
    k(f"{l0}:")
    stamp(k, cfg, 4)
    if cfg.hdelay: k(f"s_sleep {cfg.hdelay}")
    k.reset()
    if cfg.hxfirst:
        for i in range(7): k(f"buffer_load_dwordx4 {V(16+4*i,4)}, v3, {S(sX,4)}, s65 offen offset:{128*i}", f"x{i}")
    if cfg.hsplit: k("s_barrier")
    for i in range(7): k(f"s_add_u32 s76, s70, {i*8*3584}\nbuffer_load_dwordx4 {V(44+4*i,4)}, v15, {S(sW1,4)}, s76 offen", f"w{i}")
    k(f"v_lshlrev_b32 v6, 1, v0\nbuffer_load_ushort v81, v6, {S(sOUT,4)}, s74 offen", "b1")
    k("v_and_b32 v12, 1, v0\nv_lshlrev_b32 v12, 4, v12\nv_mov_b32 v13, 0xbf80\nv_lshlrev_b32 v13, v12, v13\nv_bfe_u32 v12, v0, 1, 2")
    for e in range(4): k(f"v_cmp_eq_u32 vcc, {e}, v12\nv_cndmask_b32 v{72+e}, 0, v13, vcc")
    k(f"v_lshrrev_b32 v82, 5, v0\nv_lshl_add_u32 v82, s3, 1, v82\nv_lshlrev_b32 v82, 8, v82\nv_bfe_u32 v13, v0, 4, 1\nv_lshl_add_u32 v82, v13, 7, v82\nv_lshl_add_u32 v82, v2, 2, v82\nv_add_u32 v82, 1024, v82")
    k("v_mov_b32 v12, 0\nv_mov_b32 v13, 0\ns_mov_b32 s68, 0x3f803f80")
    if not cfg.hxfirst:
        for i in range(7): k(f"buffer_load_dwordx4 {V(16+4*i,4)}, v3, {S(sX,4)}, s65 offen offset:{128*i}", f"x{i}")
    hclr = f"buffer_load_dword v83, off, {S(sAUX,4)}, 0 sc1"
    k(hclr, "clr")
    if int(cfg.prof) == 8:
        stamp(k, cfg, 1, 8)
        for i, t in enumerate(("x0", "x3", "x6", "w0", "w3", "w6")):
            sv = list(k.vm); k.wait(vm=t); k.vm = sv; stamp(k, cfg, 2 + i, 8)
    if cfg.hearly:
        k(f"s_lshr_b32 s71, s{sHB}, 4\ns_mul_i32 s71, s71, {512*896}\ns_lshl3_add_u32 s72, s{sHB}, s3\ns_mul_i32 s72, s72, {3*896}\ns_add_u32 s71, s71, s72")
        k(f"v_min_u32 v84, 20, v0\nv_lshlrev_b32 v84, 7, v84\nbuffer_load_dword v84, v84, {S(sW2,4)}, s71 offen", "pf0")
    for i in range(7):
        k.wait(vm=f"x{i}")
        for e in range(4): k(f"v_dot2c_f32_bf16 v12, s68, v{16+4*i+e}\nv_dot2c_f32_bf16 v13, v{16+4*i+e}, v{16+4*i+e}")
    stamp(k, cfg, 6)
    for m in ("quad_perm:[1,0,3,2]", "quad_perm:[2,3,0,1]", "row_half_mirror"):
        for r in (12, 13): k(f"v_add_f32_dpp v{r}, v{r}, v{r} {m} row_mask:0xf bank_mask:0xf")
    k(f"v_mul_f32 v12, {fbits(1/448)}, v12\nv_mul_f32 v13, {fbits(1/448)}, v13\nv_fma_f32 v13, -v12, v12, v13\nv_max_f32 v13, 0, v13")
    k(f"v_cvt_pk_bf16_f32 v13, v13, v13\nv_and_b32 v13, 0xffff0000, v13\nv_add_f32 v13, {fbits(1e-5)}, v13\nv_cvt_pk_bf16_f32 v13, v13, v13\nv_and_b32 v13, 0xffff0000, v13")
    k(f"v_sqrt_f32 v13, v13\nv_lshl_add_u32 v14, s3, 3, v1\nv_lshlrev_b32 v14, 2, v14\nv_cvt_pk_bf16_f32 v12, v12, v13")
    k("ds_write_b32 v14, v12")
    for j in range(7):
        k.wait(vm=f"w{j}")
        k(f"v_mfma_f32_16x16x32_bf16 v[76:79], {V(44+4*j,4)}, v[72:75], {'0' if j == 0 else 'v[76:79]'}")
    k("ds_write2_b32 v82, v76, v77 offset0:0 offset1:8\nds_write2_b32 v82, v78, v79 offset0:16 offset1:24")
    stamp(k, cfg, 7)
    v_poll(k, hclr, 83, 4, 73, 2, first=False, tag="clr")
    stamp(k, cfg, 8)
    k.wait(lg="*")
    k("s_barrier")
    stamp(k, cfg, 1)
    l2 = k.lab("h2"); l3 = k.lab("h3")
    k(f"s_cmp_lg_u32 s3, 0\ns_cbranch_scc1 {l2}")
    k("s_mov_b64 exec, 0xffff\nds_read_b128 v[8:11], v4")
    k.wait(lg="*")
    k(f"buffer_store_dwordx4 v[8:11], v5, {S(sWS,4)}, s67 offen sc1\ns_mov_b64 exec, -1")
    k(f"{l2}:")
    k(f"s_cmp_lg_u32 s3, 1\ns_cbranch_scc1 {l3}")
    k("v_lshlrev_b32 v12, 2, v0")
    for j in range(8): k(f"ds_read2st64_b32 {V(16+2*j,2)}, v12 offset0:{4+2*j} offset1:{5+2*j}")
    k.wait(lg="*")
    for st_ in (1, 2, 4, 8):
        for j in range(0, 16, 2*st_): k(f"v_add_f32 v{16+j}, v{16+j}, v{16+j+st_}")
    k(f"v_cvt_pk_bf16_f32 v12, v16, v16\nv_and_b32 v12, 0xffff0000, v12\nv_sub_f32 v12, v16, v12\nv_cvt_pk_bf16_f32 v80, v16, v12\nv_or_b32 v81, 0x10000, v81\nv_lshlrev_b32 v12, 3, v0")
    k(f"buffer_store_dwordx2 v[80:81], v12, {S(sWS,4)}, s69 offen sc1")
    k(f"{l3}:")
    k("s_barrier")
    stamp(k, cfg, 2)
    k(f"v_lshlrev_b32 v14, 7, v0\ns_mul_i32 s76, s{sJ}, 401408\ns_mul_i32 s77, s{sXCD}, 49\ns_lshr_b32 s77, s77, 3\ns_add_u32 s77, s77, s3")
    for i in range(cfg.w2pf):
        k(f"s_sub_u32 s71, s77, 49\ns_cmp_ge_u32 s77, 49\ns_cselect_b32 s77, s71, s77\ns_lshl_b32 s71, s77, 13\ns_add_u32 s71, s71, s76\ns_add_u32 s77, s77, 8")
        k(f"buffer_load_dword v{90+i}, v14, {S(sW2,4)}, s71 offen", "pf")
    if cfg.actpf:
        k(f"s_lshl1_add_u32 s71, s{sIH}, 0\ns_and_b32 s72, s{sXCD}, 1\ns_add_u32 s71, s71, s72\ns_lshr_b32 s72, s3, 1\ns_lshl2_add_u32 s74, s71, s72\ns_lshl_b32 s74, s74, 9\ns_add_u32 s74, s74, {ACNT}")
        k(f"s_add_u32 s48, s{pWS}, s74\ns_addc_u32 s49, s{pWS+1}, 0")
        k(f"s_and_b32 s74, s72, 1\ns_mul_i32 s74, s74, 7\ns_and_b32 s75, s3, 1\ns_add_u32 s74, s74, s75\ns_lshr_b32 s72, s72, 1\ns_lshl1_add_u32 s74, s74, s72\ns_lshl_b32 s74, s74, 13")
        k(f"s_mul_i32 s76, s71, 229376\ns_add_u32 s76, s76, s74\ns_add_u32 s76, s76, {ACT + cfg.apf0*16384}\ns_mov_b32 s73, 0\ns_sleep {cfg.apfwait}")
        l = k.lab("hp"); o = k.lab("hpo")
        k(f"{l}:\ns_sleep {cfg.actpf}")
        for i in range(4): k(f"s_load_dword s{52+i}, s[48:49], {128*i} glc")
        k(f"s_add_u32 s73, s73, 1\ns_waitcnt lgkmcnt(0)\ns_cmp_gt_u32 s73, {SPIN}\ns_cbranch_scc1 L_end\ns_add_u32 s52, s52, s53\ns_add_u32 s54, s54, s55\ns_add_u32 s52, s52, s54\ns_cmp_lt_u32 s52, 7\ns_cbranch_scc1 {l}")
        for i in range((7 - cfg.apf0)//2): k(f"buffer_load_dword v{100+i}, v14, {S(sWS,4)}, s76 offen sc1\ns_add_u32 s76, s76, 32768")
    k("s_waitcnt vmcnt(0)")
    stamp(k, cfg, 3)
    prof_dump(k, cfg, role="H")
    k("L_end:")
    k("s_endpgm")

HEADER = open("recurrent_scan__ssm_conv_s4__dense_activation_mish__prompt.s.ref").read().split("; Override launch")[0] if __name__ == "__main__" else ""
def build(cfg, header=""):
    ORD[:] = cfg.ord; LOC[:] = [LOCT[ORD.index(b)] for b in range(7)]; assert ORD[6] == 6
    k = K(); RS[0] = int(cfg.split == 'r')
    front(k, cfg); vm0 = list(k.vm); gen_G(k, cfg); gen_S(k, cfg, vm0); gen_helper(k, cfg)
    return file_wrap([(KNAME, 256, 512, L_TOT)], [kernel_wrap(KNAME, k.text(), 256).replace(".text\n", f".text\n.p2align 12\n.fill {cfg.lead//4}, 4, 0xbf800000\n" if cfg.lead is not None else ".text\n", 1).replace('denorm_mode_32 3', f'denorm_mode_32 {cfg.denorm}')], header), k

if __name__ == "__main__":
    cfg = Cfg()
    for a in sys.argv[2:]:
        n, v = a.split("=", 1); setattr(cfg, n, eval(v))
    txt, k = build(cfg, HEADER)
    open(sys.argv[1], "w").write(txt)
    print("instructions", len(k.ins), "padded states", k.padded)
```

```python
import sys, struct
from kasm import *
from asmlib import KNAME, kernel_wrap, file_wrap

def fbits(x): return "0x%08x" % struct.unpack("<I", struct.pack("<f", x))[0]
LOG2E = 1.4426950408889634

AUGW, ACNT = 0xA000, 0x10000
CNT, STATS, PROF, XT, ST, ACT, KDBG, WSN = 0, 0x8000, 0x20000, 0x100000, 0x300000, 0x500000, 0xD00000, 0x2000000
C_ACT, C_XT, C_ST = 0, 128, 184
L_WS, L_XS = [81920, 98304, 0], [49152, 65536, 16384]
L_GB, L_KC, L_U, L_SY, L_TOT = 49152, 14336, 0, 13312, 163840
L_PART, L_PCH, L_GS = 84480, 6864, L_U + 9216
sX, sW1, sW2, sWS, sAUX, sOUT = 4, 8, 12, 16, 20, 24
pX, pARE, pLDT, pDSK, pW1, pB1, pW2, pOUT, pDBG, pWS = 28, 30, 42, 44, 48, 50, 52, 54, 56, 58
sXCD, sJ, sR, sC, sRB, sFC, sKAP = 60, 61, 62, 63, 64, 65, 66
SPIN, LSPIN = 1000000, 30000000

class Cfg:
    prof = False
    kdbg = False
    span = False
    probe = None
    probewg = None
    probemin = False
    probe2 = None
    cyc = False
    depth = 6
    rot = False
    stpoll = ('s', 4)
    actsleep = 1
    c1at = [14, 22, 30, 38]
    statstep = 20
    pace2 = 9
    pace = 8
    actpf = 0
    apf0 = 3
    apfwait = 60
    w2pf = 1
    codepf = True
    outmod = ""
    pbar = False
    flagat = 1
    cut = [3, 4]
    early = [0, 6]
    xtat = [46, 50]
    touch = 36
    w2touch = 0
    tlb = False
    ord = [2, 3, 4, 5, 0, 1, 6]
    s45 = True
    jbal = 2
    partner = 1
    pmask2 = 0x400
    xtearly = True
    gc1early = True
    w2from = 22
    rdlag = 1
    p0plain = 0
    pollat = 6
    cvprio = 2
    nprio = 0
    tailq = 6
    usleep = 0
    mbar = 1
    hearly = False
    hdelay = 0
    hsplit = True
    pmod = ('', 'nt')
    rshare = True
    pdump = False
    pages = True
    prew = 1
    g16 = True
    tn = 5
    rl16 = 0
    c0wat = 6
    lead = 0xD00
    warm = ('g1', 'mish', 'cvA', 'cvB')
    sall = None
    b8at = 14
    pbar2 = 0
    cvpre = 12
    g2prio = 0
    finsleep = 0
    bclate = True
    own = True
    aspread = 4
    gc0 = True
    c0x = 2
    c0w = 2
    gat = dict(xr=46, xs=50, touch=36)
    xtbar = 1
    hxfirst = True
    gearly = 1
    c0late = 2
    r2cut = 8
    sblk = True
    split = 'J'
    x_noconv = False
    cvfree = 3
    tailn = 12
    gblk = 4
    x_noside = False
    x_nodma = False
    x_nobar = False
    x_nokw = False
    x_acthit = False
    x_nos2 = False
    ssleep = 0
    stat = [1,2,3,4,5,6,7]
    actmod = 'sc1'
    x_noc01 = False
    kbar = False
    kdelay = False
    kprio = 0
    denorm = 3

def srd(k, d, ptr): k(f"s_mov_b64 {S(d,2)}, {S(ptr,2)}")
def srd_const(k, d, n): k(f"s_mov_b32 s{d+2}, {n}\ns_mov_b32 s{d+3}, 0x20000")

def stamp(k, cfg, i, mode=1):
    if cfg.probe:
        if i == 0 or (mode, i) == cfg.probe[1:]: k(f"s_memrealtime {S(78+2*i,2)}")
        return
    if cfg.cyc and cfg.prof and (mode == int(cfg.prof) or i == 0):
        k(f"s_memtime {S(78+2*i,2)}"); return
    if (cfg.span and i == 0) or cfg.prof and (int(cfg.prof) == mode or i == 0): k(f"s_memrealtime {S(78+2*i,2)}")
def cstamp(k, cfg, i, mode=2):
    if int(cfg.prof) == mode: k(f"s_memtime {S(78+2*i,2)}")
def prof_dump(k, cfg, last=False, role=None):
    if cfg.probe:
        if role == cfg.probe[0]:
            l = k.lab("pad"); i = cfg.probe[2]
            if cfg.probe2:
                k(f"s_waitcnt lgkmcnt(0)\ns_cmp_lg_u32 s{sCOL}, 0\ns_cbranch_scc1 L_end")
                srd(k, sAUX, pDBG); srd_const(k, sAUX, 256)
                k(f"s_not_b32 s76, s78\nv_mov_b32 v4, s76\nv_mov_b32 v5, s78\nv_mov_b32 v6, s{78+2*i}\ns_mov_b64 exec, 1")
                for n in range(3): k(f"buffer_atomic_umax v{4+n}, off, {S(sAUX,4)}, 0 offset:{128+4*n}")
                k(f"s_cmp_lg_u32 s2, 40\ns_cbranch_scc1 L_end")
                l2 = k.lab("pw")
                k(f"{l2}:\ns_memrealtime s[74:75]\ns_waitcnt lgkmcnt(0)\ns_sub_u32 s74, s74, s78\ns_cmp_lt_u32 s74, 8000\ns_cbranch_scc1 {l2}")
                k(f"buffer_load_dwordx3 v[4:6], off, {S(sAUX,4)}, 0 offset:128 sc1\ns_waitcnt vmcnt(0)\nv_readfirstlane_b32 s72, v4\nv_readfirstlane_b32 s73, v5\nv_readfirstlane_b32 s76, v6\ns_not_b32 s72, s72")
                k({"first": "s_sub_u32 s76, s76, s72", "last": "s_sub_u32 s76, s76, s73"}[cfg.probe2])
                k(f"s_lshl_b32 s76, s76, 4\ns_min_u32 s76, s76, 30000\ns_add_u32 s76, s76, 10000")
                k(f"{l}:\ns_memrealtime s[74:75]\ns_waitcnt lgkmcnt(0)\ns_sub_u32 s74, s74, s72\ns_cmp_lt_u32 s74, s76\ns_cbranch_scc1 {l}")
                return
            k(f"s_waitcnt lgkmcnt(0)\ns_sub_u32 s76, s{78+2*i}, s78\ns_lshl_b32 s76, s76, 4\ns_min_u32 s76, s76, 27000\n" + ("s_add_u32 s76, s76, 3000" if not cfg.probemin else "s_sub_u32 s76, 30000, s76"))
            if cfg.probewg is not None: k(f"s_cmp_lg_u32 s2, {cfg.probewg}\ns_cselect_b32 s76, 0, s76")
            k(f"{l}:\ns_memrealtime s[74:75]\ns_waitcnt lgkmcnt(0)\ns_sub_u32 s74, s74, s78\ns_cmp_lt_u32 s74, s76\ns_cbranch_scc1 {l}")
        return
    if cfg.span == 2 and last:
        k("L_pad:\ns_memrealtime s[80:81]\ns_waitcnt lgkmcnt(0)\ns_sub_u32 s80, s80, s78\ns_cmp_lt_u32 s80, 4000\ns_cbranch_scc1 L_pad")
    if cfg.span == 1 and last:
        k("s_memrealtime s[80:81]\ns_waitcnt lgkmcnt(0)\ns_not_b32 s78, s78\nv_mov_b32 v4, s78\nv_mov_b32 v5, s80\ns_mov_b64 exec, 1")
        k("s_cmp_lg_u32 s3, 4\ns_cbranch_scc1 L_end")
        k(f"buffer_atomic_umax v4, off, {S(sAUX,4)}, 0 offset:8\nbuffer_atomic_umax v5, off, {S(sAUX,4)}, 0 offset:12")
    if not cfg.prof: return
    k("s_waitcnt lgkmcnt(0)")
    k("s_lshl_b32 s76, s2, 3\ns_add_u32 s76, s76, s3\ns_lshl_b32 s76, s76, 6\ns_add_u32 s76, s76, %d" % PROF)
    k("s_mov_b64 exec, 1")
    for q in range(3):
        for e in range(4): k(f"v_mov_b32 v{4+e}, s{78+2*(4*q+e)}")
        k(f"buffer_store_dwordx4 v[4:7], off, {S(sWS,4)}, s76 offset:{16*q}")
    k("s_mov_b64 exec, -1")

def atomic_inc(k, srdreg, soff, vt):
    k(f"v_mov_b32 v{vt}, 1\ns_mov_b64 exec, 1")
    k(f"buffer_atomic_add v{vt}, off, {S(srdreg,4)}, {soff} sc1", "atom")
    k("s_mov_b64 exec, -1")

def s_inc(k, ptr, soff, st):
    k(f"s_mov_b32 s{st}, 1\ns_atomic_add s{st}, {S(ptr,2)}, {soff}")
def s_poll(k, ptr, soffs, want, st, sc, sleep=0):
    l = k.lab("sp"); o = k.lab("spo")
    k(f"s_mov_b32 s{sc}, 0")
    k(f"{l}:")
    for i, so in enumerate(soffs): k(f"s_load_dword s{st+i}, {S(ptr,2)}, {so} glc")
    k(f"s_add_u32 s{sc}, s{sc}, 1")
    k.wait(lg="*")
    k(f"s_cmp_gt_u32 s{sc}, {SPIN}\ns_cbranch_scc1 {o}")
    for i in range(1, len(soffs)): k(f"s_min_u32 s{st}, s{st}, s{st+i}")
    if sleep: k(f"s_cmp_ge_u32 s{st}, {want}\ns_cbranch_scc1 {o}\ns_sleep {sleep}\ns_branch {l}")
    else: k(f"s_cmp_lt_u32 s{st}, {want}\ns_cbranch_scc1 {l}")
    k(f"{o}:")
def v_poll(k, load, vt, want, sc, sleep=0, first=True, tag="*"):
    l = k.lab("vp"); o = k.lab("vpo")
    if first: k(load)
    k(f"s_mov_b32 s{sc}, 0")
    k.wait(vm=tag)
    k(f"{l}:")
    k(f"v_cmp_gt_u32 vcc, {want}, v{vt}\ns_add_u32 s{sc}, s{sc}, 1\ns_cmp_gt_u32 s{sc}, {SPIN}\ns_cbranch_scc1 {o}\ns_cbranch_vccz {o}")
    if sleep: k(f"s_sleep {sleep}")
    sv = list(k.vm); k(load); k("s_waitcnt vmcnt(0)"); k.vm = sv
    k(f"s_branch {l}")
    k(f"{o}:")

def lds_signal(k, vaddr, off, vone):
    k("s_mov_b64 exec, 1")
    k(f"ds_add_u32 v{vaddr}, v{vone} offset:{off}", "sig")
    k("s_mov_b64 exec, -1")
def lds_spin(k, vaddr, off, want, vt, st, sc, sleep=0):
    l = k.lab("spin"); o = k.lab("spun")
    k(f"s_mov_b32 s{sc}, 0")
    k(f"{l}:")
    k(f"ds_read_b32 v{vt}, v{vaddr} offset:{off}\ns_add_u32 s{sc}, s{sc}, 1")
    k.wait(lg="*")
    k(f"v_readfirstlane_b32 s{st}, v{vt}\ns_cmp_gt_u32 s{sc}, {LSPIN}\ns_cbranch_scc1 {o}")
    if sleep: k(f"s_cmp_ge_u32 s{st}, {want}\ns_cbranch_scc1 {o}\ns_sleep {sleep}\ns_branch {l}")
    else: k(f"s_cmp_lt_u32 s{st}, {want}\ns_cbranch_scc1 {l}")
    k(f"{o}:")

sCP, sCS, sCOL, sM, sT, sT2, sSP, sO1, sO2, sDO, sDM = 67, 68, 69, 70, 71, 72, 73, 74, 75, 76, 77
sXO, sWO, sA2, sB2, sDT, sDT2, sE0, sE1, sE2, sE3 = 30, 31, 32, 33, 34, 35, 36, 37, 38, 39
sHH, sG32, sKM = 40, 41, 46
sRW = 40
AB, BB, CB, X1, X8, X256, W1, W8, W256, W2, W4, TT, Z0, Z1, PK = 100, 102, 104, 106, 108, 110, 112, 114, 116, 118, 120, 122, 124, 126, 128
KWG, KR, PA, DSK, DT, VD, VF, UF, KA = 132, 140, 141, 145, 146, 150, 160, 192, 224
LOCT = [4, 6, 1, 0, 3, 5, 2]
ORD = list(range(7))
LOC = list(LOCT)
SY_GS, SY_RING, SY_RD, SY_U, SY_PAIR, SY_S, SY_W2, SY_M = 0, 4, 8, 12, 16, 24, 32, 48

def x_offsets(k, d):
    k(f"v_lshrrev_b32 v154, 3, v0\nv_and_b32 v155, 7, v0\nv_lshrrev_b32 v156, 4, v0\nv_xor_b32 v155, v155, v156")
    k(f"v_lshl_add_u32 v154, s{sCOL}, 5, v154\nv_mul_u32_u24 v154, 896, v154\nv_lshl_add_u32 v{d}, v155, 4, v154\nv_xor_b32 v155, 64, v{d}")
    k(f"v_add_u32 v{d+1}, 6144, v155\nv_add_u32 v{d+2}, {2*6144}, v{d}\nv_add_u32 v{d+3}, {3*6144}, v155")
def w1_offsets(k, d):
    k(f"v_lshrrev_b32 v154, 4, v0\nv_and_b32 v155, 15, v0\nv_lshlrev_b32 v156, 2, v154\nv_xor_b32 v155, v155, v156")
    k(f"v_lshl_add_u32 v154, s{sCOL}, 4, v154\nv_mul_u32_u24 v154, 3584, v154\nv_lshl_add_u32 v{d}, v155, 4, v154")
    for n in (1,2,3): k(f"v_add_u32 v{d+n}, {n*13312}, v{d}")
G16 = [0]
def w2_offsets(k, d):
    k(f"v_lshrrev_b32 v154, 3, v0\nv_and_b32 v155, 7, v0\nv_bfe_u32 v156, v0, 4, 1\nv_lshlrev_b32 v156, {1 if G16[0] else 2}, v156\nv_xor_b32 v155, v155, v156")
    k(f"v_mul_u32_u24 v154, 896, v154\nv_lshl_add_u32 v{d}, v155, 4, v154")
    if G16[0]: k(f"v_xor_b32 v155, 64, v{d}")
    for n in (1,2,3): k(f"v_add_u32 v{d+n}, {n*6144}, v{155 if (G16[0] and n >= 2) else d}")
sC0, sCE = 42, 43
def piece_bases(k, unit):
    k(f"s_add_u32 s{sB2}, s{sA2}, {unit}\ns_mul_i32 s{sC0}, s{sCE}, {unit}\ns_add_u32 s{sC0}, s{sC0}, s{sA2}")
def piece(n, unit, extra, d):
    if n == 0: return f"s_add_u32 s{d}, s{sC0}, {extra}"
    return f"s_cmp_le_u32 s{sCE}, {n-1}\ns_cselect_b32 s{d}, s{sB2}, s{sA2}\ns_add_u32 s{d}, s{d}, {(n-1)*unit + extra}"
def w2_bases(k, cfg):
    k(f"s_xor_b32 s{sT}, s3, s{sXCD}\ns_bitcmp1_b32 s{sT}, 0\ns_cselect_b32 s{sCE}, 0, s{sC}")
    k(f"s_and_b32 s{sT}, s3, 1\ns_mul_i32 s{sT}, s{sT}, 14\ns_add_u32 s{sT}, s{sT}, s{sCS}\ns_mul_i32 s{sA2}, s{sT}, {64*896}\ns_lshl_b32 s{sT}, s{sKAP}, 7\ns_add_u32 s{sA2}, s{sA2}, s{sT}")
    piece_bases(k, 114688)
def w2dma(b, d):
    out = [f"s_add_u32 m0, s{sM}, {LOC[b%7]*16384}\n" + piece(b//2, 114688, (b & 1)*28672, sDT) + f"\nbuffer_load_dwordx4 v{d}, {S(sW2,4)}, s{sDT} offen lds"]
    for n in (1,2,3): out.append(f"buffer_load_dwordx4 v{d+n}, {S(sW2,4)}, s{sDT} offen offset:{n*1024} lds")
    return [(g, f"w2_{b}") for g in out]
def cmul(k, z, a, w, t):
    k(f"v_pk_mul_f32 {V(t,2)}, {V(a,2)}, {V(w,2)} op_sel_hi:[1,0]")
    k(f"v_pk_fma_f32 {V(z,2)}, {V(a,2)}, {V(w,2)}, {V(t,2)} op_sel:[1,1,0] op_sel_hi:[0,1,1] neg_lo:[0,1,0]")

gW2D, gW2A, gL16, gSY, gONE, gXA, gWA, gSTA, gAGA, gAUG, gSTT, gH = 1, 5, 9, 12, 13, 80, 84, 88, 89, 90, 98, 14
sPW = 22
sGA, ZERO, VSY, VONE, _WD, sW2D, XTA, XTS, EW, CA, CBA, UW, TZ = 8, 30, 34, 35, 36, 40, 44, 46, 64, 65, 66, 67, 48

XR = 56
CLRL = f"buffer_load_dword v49, off, {S(sAUX,4)}, 0 sc1"
class Cap:
    def __init__(self): self.l = []
    def __call__(self, text, tag=None): self.l += [x for x in text.split("\n") if x.strip()]

def front(k, cfg):
    stamp(k, cfg, 0)
    k("s_load_dwordx16 s[28:43], s[0:1], 0\ns_load_dwordx16 s[44:59], s[0:1], 64")
    k("s_cmpk_ge_u32 s2, 256\ns_cbranch_scc1 L_end")
    k(f"s_lshr_b32 s{sJ}, s2, 3")
    if cfg.codepf:
        lp = k.lab("pc")
        k(f"s_getpc_b64 s[72:73]\n{lp}:\nv_and_b32 v2, 15, v0\nv_lshl_add_u32 v2, s{sJ}, 4, v2\nv_min_u32 v2, (L_end-{lp})/64, v2\nv_mov_b32 v3, 0")
        k(f"v_lshlrev_b32 v2, 6, v2\nv_lshl_add_u64 v[2:3], v[2:3], 0, s[72:73]\nglobal_load_dword v159, v[2:3], off", "code")
    k(f"s_sub_u32 s{sCP}, s2, 32\ns_cbranch_scc1 L_helper")
    k(f"v_and_b32 v1, 0xff, v0\nv_lshl_add_u32 v1, s{sCP}, 8, v1\nv_lshlrev_b32 v1, 2, v1\ns_lshl_b32 s{sSP}, s{sCP}, 2")
    if cfg.partner:
        k("v_xor_b32 v3, 0x1000, v1")
        if cfg.pmask2: k(f"v_lshrrev_b32 v2, 8, v0\nv_mul_u32_u24 v2, {cfg.pmask2}, v2\nv_xor_b32 v3, v2, v3")
    def ids():
        k("v_lshrrev_b32 v2, 6, v0\nv_and_b32 v0, 63, v0\nv_readfirstlane_b32 s3, v2")
        k(f"s_and_b32 s{sXCD}, s2, 7\ns_sub_u32 s{sJ}, s{sJ}, 4")
        k(f"s_mul_i32 s{sR}, s{sJ}, 37\ns_lshr_b32 s{sR}, s{sR}, 8\ns_mul_i32 s{sC}, s{sR}, 7\ns_sub_u32 s{sC}, s{sJ}, s{sC}")
        k(f"s_lshr_b32 s{sRB}, s{sXCD}, 1\ns_lshl2_add_u32 s{sRB}, s{sRB}, s{sR}")
        k(f"s_and_b32 s{sXH}, s{sXCD}, 1\ns_mul_i32 s{sFC}, s{sXH}, 7\ns_add_u32 s{sFC}, s{sFC}, s{sC}")
        k(f"s_lshl1_add_u32 s{sKAP}, s{sR}, s{sC}\ns_sub_u32 s{sT}, s{sKAP}, 7\ns_cselect_b32 s{sKAP}, s{sKAP}, s{sT}")
        k(f"s_bfe_u32 s{sCS}, s3, 0x10001\ns_and_b32 s{sCOL}, s3, 3\ns_lshl_b32 s{sM}, s{sCOL}, 12\ns_add_u32 s{sM}, s{sM}, {L_GB}")
    def offs(): x_offsets(k, XD); w1_offsets(k, WD)
    if cfg.prew >= 1: ids()
    if cfg.prew >= 2: offs()
    k("s_waitcnt lgkmcnt(0)")
    stamp(k, cfg, 1, 3)
    for i in range(2): k(f"global_load_dword v{AB+i}, v1, {S(pARE+2*i,2)} {cfg.pmod[0]}", "prm")
    k(f"s_load_dword s{sO1}, {S(pLDT,2)}, s{sSP}\ns_load_dword s{sO2}, {S(pDSK,2)}, s{sSP}")
    if cfg.partner:
        for i in range(2): k(f"global_load_dword v{157+i}, v3, {S(pARE+2*i,2)}", "pp")
    if cfg.prew < 1: ids()
    if cfg.prew == 1: offs()
    for i in range(2, 6): k(f"global_load_dword v{AB+i}, v1, {S(pARE+2*i,2)} {cfg.pmod[1]}", "prm2")
    if cfg.partner == 2:
        for i in range(2, 6): k(f"global_load_dword v157, v3, {S(pARE+2*i,2)}", "pp2")
    stamp(k, cfg, 2, 3)
    if cfg.prew < 1: offs()
    srd(k, sX, pX); srd(k, sW1, pW1); srd_const(k, sX, 1835008); srd_const(k, sW1, 1605632)
    k(f"s_mul_i32 s{sDO}, s{sRB}, 114688\ns_lshl_b32 s{sT}, s{sKAP}, 7\ns_add_u32 s{sDO}, s{sDO}, s{sT}")
    k(f"s_mul_i32 s{sDM}, s{sKAP}, 229376\ns_lshl_b32 s{sT}, s{sFC}, 8\ns_add_u32 s{sDM}, s{sDM}, s{sT}")
    k(f"s_xor_b32 s{sKM}, s3, 4\ns_mul_i32 s{sKM}, s{sKM}, 8704\ns_mov_b32 s47, 0x03020c0c")
    k(f"s_cmp_lt_u32 s3, 4\ns_cselect_b32 s47, 0x01000c0c, s47\ns_cselect_b32 s1, 0, 1")
    def c0issue(part="xw"):
        o = k.lab("c0")
        k(f"s_cmp_eq_u32 s1, 1\ns_cbranch_scc1 {o}")
        if "x" in part: stamp(k, cfg, 1, 7)
        for n, (g, t) in enumerate(chunk(cfg, 0, False)):
            if "xw"[n // 4] in part: k(g, "c0x" if n < 4 else t)
        if "w" in part: stamp(k, cfg, 2, 7)
        k(f"{o}:\ns_mov_b32 m0, s{sKM}" + (f"\n{ADV}" if "w" in part else ""))
    def role_wait(tag, n_s):
        o = k.lab("rw")
        k(f"s_cmp_eq_u32 s1, 0\ns_cbranch_scc1 {o}\ns_waitcnt vmcnt({n_s})\n{o}:")
        k.wait(vm=tag)
    if cfg.c0x == 1: c0issue()
    else: k(f"s_mov_b32 m0, s{sKM}")
    k(f"s_add_u32 s{sT}, s{sKM}, {L_KC}\nv_and_b32 v154, 31, v0\nv_lshrrev_b32 v155, 5, v0\nv_mul_u32_u24 v156, 272, v154\nv_lshl_add_u32 v156, v155, 4, v156\nv_add_u32 v{KR}, s{sT}, v156")
    k(f"s_mov_b32 s44, {fbits(8.0)}\ns_mov_b32 s45, {fbits(256.0)}\nv_mov_b32 v{PK}, 0x3f80\nds_write_addtid_b32 v{PK} offset:{L_KC}")
    k(f"s_mul_i32 s{sE3}, s{sCS}, {L_PCH}\ns_and_b32 s{sHH}, s3, 1\ns_mul_i32 s{sT}, s{sHH}, 3328\ns_add_u32 s{sE3}, s{sE3}, s{sT}\ns_add_u32 s{sE3}, s{sE3}, {L_PART}\nv_lshl_add_u32 v{PA}, v0, 4, s{sE3}")
    srd(k, sWS, pWS); srd_const(k, sWS, WSN)
    k(f"s_lshl1_add_u32 s{sG32}, s{sKAP}, s{sXH}")
    for i in range(4): k(f"v_mov_b32 v{ZERO+i}, 0")
    o = k.lab("g0"); j = k.lab("g1")
    k(f"s_cmp_eq_u32 s1, 1\ns_cbranch_scc1 {o}")
    setup_G(k, cfg, 0)
    k(f"s_branch {j}\n{o}:")
    for part in cfg.early: S_addresses(k, part)
    k(f"{j}:")
    Lhi = struct.unpack("<f", struct.pack("<f", LOG2E))[0]; Llo = LOG2E - Lhi
    k(f"v_mov_b32 v154, {fbits(Lhi)}\nv_mov_b32 v149, {fbits(Llo)}\ns_lshl_b32 s{sT}, s{sCS}, 4")
    stamp(k, cfg, 3, 3)
    k("s_waitcnt lgkmcnt(0)"); k.lg = []
    k(f"s_lshr_b32 s{sO1}, s{sO1}, s{sT}\ns_lshl_b32 s{sO1}, s{sO1}, 16")
    k(f"v_mul_f32 v155, s{sO1}, v154\nv_fma_f32 v156, s{sO1}, v154, -v155\nv_fmac_f32 v156, s{sO1}, v149")
    k(f"v_exp_f32 v155, v155\nv_mul_f32 v156, {fbits(0.6931471805599453)}, v156\nv_fmac_f32 v155, v155, v156\nv_cvt_pk_bf16_f32 v155, v155, v155\nv_and_b32 v{DT+2}, 0xffff0000, v155")
    k(f"v_mul_f32 v{DT}, v154, v{DT+2}\nv_mul_f32 v{DT+1}, 0.15915494, v{DT+2}")
    stamp(k, cfg, 1); stamp(k, cfg, 4, 3)
    if cfg.c0x == 1: role_wait("prm", (4, 6, 10)[cfg.partner])
    else: k.wait(vm="prm")
    stamp(k, cfg, 2); stamp(k, cfg, 5, 3)
    if cfg.c0x == 2: c0issue('x' if cfg.c0wat else 'xw')
    def xt_read():
        stamp(k, cfg, 3, 7)
        k.wait(vm="c0x")
        stamp(k, cfg, 4, 7)
        k(f"ds_read_b64_tr_b16 {V(XR,2)}, v{XTA}\nds_read_b64_tr_b16 {V(XR+2,2)}, v{XTA+1} offset:512")
        k(f"ds_read_b64_tr_b16 {V(XR+4,2)}, v{XTA+1}\nds_read_b64_tr_b16 {V(XR+6,2)}, v{XTA} offset:512")
    def xt_store():
        for g in (0, 1): k(f"buffer_store_dwordx4 {V(XR+4*g,4)}, v{XTS}, {S(sWS,4)}, s{sE1+g} offen sc1", "xts")
    nv = [0]; pend = []
    def put(z, row, neg, last=False):
        p = PK + row % 4
        k(f"v_cvt_pk_bf16_f32 v{p}, v{z}, {'-' if neg else ''}v{z+1}")
        w = f"ds_write_addtid_b32 v{p} offset:{L_KC + 272*row}"
        if cfg.kdelay:
            if pend: k(pend.pop())
            pend.append(w)
            if last or row == 31: k(pend.pop())
        elif not cfg.x_nokw: k(w)
        nv[0] += 1
        if nv[0] == cfg.c0wat: c0issue("w")
        if nv[0] in cfg.xtat:
            o = k.lab("g"); sl = list(k.lg)
            k(f"s_cmp_eq_u32 s1, 1\ns_cbranch_scc1 {o}")
            if nv[0] == cfg.xtat[0]: xt_read(); sl[-1] = "xt"
            else: k.wait(lg="xt"); xt_store()
            k(f"{o}:"); k.lg = sl
        if nv[0] == cfg.touch:
            o = k.lab("g")
            k(f"s_cmp_eq_u32 s1, 1\ns_cbranch_scc1 {o}")
            for n in range(4): k(f"buffer_load_dword v159, v{WD+n}, {S(sW1,4)}, s{sDM} offen offset:{n*1024}", "touch")
            if cfg.w2touch == 3:
                srd(k, sW2, pW2); srd_const(k, sW2, 1605632)
                k(f"s_lshl2_add_u32 s{sT}, s{sCP}, s{sCOL}\ns_mul_i32 s{sT}, s{sT}, 1792\nv_mul_u32_u24 v158, 28, v0\nbuffer_load_dword v159, v158, {S(sW2,4)}, s{sT} offen", "touch")
            k(f"{o}:")
    for i in (0, 1): k(f"v_perm_b32 v{AB+i}, v{AB+i}, v{AB+i}, s47")
    k(f"v_pk_mul_f32 {V(X1,2)}, {V(AB,2)}, {V(DT,2)}")
    k(f"v_pk_mul_f32 {V(X8,2)}, {V(X1,2)}, s[44:45] op_sel_hi:[1,0]\nv_pk_mul_f32 {V(X256,2)}, {V(X1,2)}, s[44:45] op_sel:[0,1] op_sel_hi:[1,1]")
    for x in (X8, X1, X256): k(f"v_fract_f32 v{x+1}, v{x+1}")
    for x, w in ((X8, W8), (X1, W1), (X256, W256)):
        k(f"v_exp_f32 v{x}, v{x}\nv_cos_f32 v{w}, v{x+1}\nv_sin_f32 v{w+1}, v{x+1}")
    for x, w in ((X8, W8), (X1, W1), (X256, W256)):
        k(f"v_pk_mul_f32 {V(w,2)}, {V(w,2)}, {V(x,2)} op_sel_hi:[1,0]")
    if cfg.c0wat == -1: c0issue("w")
    stamp(k, cfg, 6, 3)
    put(W8, 1, False)
    prev = W8
    for b in range(2, 32):
        cmul(k, Z0, prev, W8, TT); prev = Z0; put(Z0, b, False)
    stamp(k, cfg, 7, 3)
    for s in range(8): k(f"ds_read_b128 {V(VF+4*s,4)}, v{KR} offset:{32*s}", "vf")
    role_wait("prm2", 4 if cfg.partner == 2 else 0)
    for i in range(2, 6): k(f"v_perm_b32 v{AB+i}, v{AB+i}, v{AB+i}, s47")
    cmul(k, Z1, BB, CB, TT)
    k(f"v_pk_mul_f32 {V(Z1,2)}, {V(Z1,2)}, {V(DT+2,2)} op_sel_hi:[1,0]")
    put(Z1, 0, True)
    cmul(k, W2, W1, W1, TT); cmul(k, W4, W2, W2, TT)
    prev = Z1
    for a in range(1, 21):
        if a in (8, 12, 14) or a >= 16: cmul(k, Z1, Z1, W256, TT); prev = Z1
        else: cmul(k, Z0, prev, W1 if a < 8 else (W2 if a < 12 else W4), TT); prev = Z0
        put(prev, a, True, a == 20)
    stamp(k, cfg, 8, 3)
    for s in range(8): k(f"ds_read_b128 {V(UF+4*s,4)}, v{KR} offset:{32*s}", f"uf{s}")
    kmf = lambda s: f"v_mfma_f32_32x32x16_bf16 {V(KA,16)}, {V(UF+4*s,4)}, {V(VF+4*s,4)}, {'0' if s == 0 else V(KA,16)}"
    c1 = chunk(cfg, 1)
    o = k.lab("c1"); sl = list(k.lg); sv = list(k.vm)
    k("s_cmp_eq_u32 s1, 1\ns_cbranch_scc1 L_S")
    def s_tail():
        k.lg = list(sl); k.vm = []
        for s in range(8):
            k.wait(lg=f"uf{s}")
            k(kmf(s))
            if s % 2 == 0: k(*c1[4 + s//2])
            if s == 1: srd(k, sAUX, pDBG); srd_const(k, sAUX, 256)
            if s == 3: k(f"v_mov_b32 v{VSY}, {L_SY}\nv_mov_b32 v{VONE}, 1\ns_movk_i32 s50, 128\ns_mov_b32 s51, 229376")
        stamp(k, cfg, 9, 3); stamp(k, cfg, 3); stamp(k, cfg, 7, 7)
        if cfg.pages and "g1" in cfg.warm: k.warm("g1")
        k("s_barrier")
    k.s_tail = s_tail
    cap = Cap(); setup_G(cap, cfg, 1)
    for _ in range(12): k(cap.l.pop(0))
    for s in range(8):
        k.wait(lg=f"uf{s}")
        k(kmf(s))
        if s == 7 and cfg.pages: k.page("g1")
        for _ in range(5): k(cap.l.pop(0))
    stamp(k, cfg, 9, 3)
    for _ in range(8): k(cap.l.pop(0))
    k(f"v_add_f32 v{KA}, v{KA}, v{DSK}")
    for r in (1, 2, 0): k(f"ds_write_b128 v{PA}, {V(KA+4*r,4)} offset:{1024*r}")
    if cfg.xtat[0] > 52: xt_read(); k.wait(lg="*"); xt_store()
    stamp(k, cfg, 5, 7)
    for n in range(4): k(*c1[n])
    stamp(k, cfg, 6, 7)
    while cap.l: k(cap.l.pop(0))
    k.wait(vm="c0")
    stamp(k, cfg, 7, 7)
    stamp(k, cfg, 3)
    stamp(k, cfg, 10, 3)
    k("s_barrier")
    stamp(k, cfg, 11, 3); stamp(k, cfg, 8, 7)

XD, WD, sXH = 150, 132, sJ
ADV = (f"s_add_u32 s{sDO}, s{sDO}, 128\ns_add_u32 s{sDM}, s{sDM}, 229376\ns_cmp_ge_u32 s{sDM}, 1605632\ns_cselect_b32 s{sDT}, 896, 0\n"
       f"s_cselect_b32 s{sDT2}, 1605632, 0\ns_sub_u32 s{sDO}, s{sDO}, s{sDT}\ns_sub_u32 s{sDM}, s{sDM}, s{sDT2}")
def chunk(cfg, c, adv=True):
    out = []
    for vd, srdr, so, slots in ((XD, sX, sDO, L_XS), (WD, sW1, sDM, L_WS)):
        o = [f"buffer_load_dwordx4 v{vd+n}, {S(srdr,4)}, s{so} offen offset:{n*1024} lds" for n in range(4)]
        o[0] = f"s_add_u32 m0, s{sM}, {slots[c % 3]}\n" + o[0]
        out += o
    if adv and c == 1: out[-1] += "\n" + ADV
    if adv and 1 < c < 6:
        out[4] += f"\ns_cmp_ge_u32 s{sDM}, {6*229376}\ns_cselect_b32 s{sDT}, -768, s50\ns_cselect_b32 s{sDT2}, {-6*229376}, s51\ns_add_u32 s{sDO}, s{sDO}, s{sDT}"
        out[7] += f"\ns_add_u32 s{sDM}, s{sDM}, s{sDT2}"
    return [(g, f"c{c}") for g in out]

def setup_G(k, cfg, part):
    if part == 0:
        k(f"v_lshrrev_b32 v{gH}, 5, v0\nv_and_b32 v15, 31, v0")
        k(f"s_lshl_b32 s{sT}, s{sHH}, 13\ns_add_u32 s{sT}, s{sT}, {L_GB+L_XS[2]}")
        k(f"v_bfe_u32 v13, v0, 1, 3\nv_xor_b32 v12, v13, v{gH}\nv_lshlrev_b32 v12, 4, v12\nv_lshl_add_u32 v12, v15, 7, v12\nv_add_u32 v{gXA}, s{sT}, v12")
        for s in (1,2,3): k(f"v_xor_b32 v{gXA+s}, {32*s}, v{gXA}")
        k(f"v_lshrrev_b32 v50, 4, v0\nv_and_b32 v54, 1, v0\nv_lshlrev_b32 v53, 13, v13\nv_lshl_add_u32 v53, v50, 4, v53\nv_lshl_add_u32 v{XTS}, v54, 6, v53")
        k(f"v_bfe_u32 v10, v0, 2, 2\nv_and_b32 v11, 3, v0\nv_lshlrev_b32 v11, 3, v11\nv_and_b32 v12, 16, v0\nv_lshl_add_u32 v11, v12, 1, v11")
        k(f"s_and_b32 s{sT}, s3, 2\nv_xor_b32 v12, s{sT}, v10\nv_lshl_add_u32 v12, v12, 6, v11")
        k(f"v_lshl_add_u32 v13, v{gH}, 3, v10\nv_lshl_add_u32 v12, v13, 8, v12\nv_add_u32 v{gWA}, {L_GB+L_WS[0]}, v12\nv_xor_b32 v{gWA+1}, 64, v{gWA}\nv_add_u32 v{gWA+2}, {L_GB+L_WS[2]}, v12\nv_xor_b32 v{gWA+3}, 64, v{gWA+2}")
        k(f"s_lshl_b32 s{sT}, s{sXH}, 2\nv_lshl_add_u32 v52, v50, 3, v10")
        k(f"v_bfe_u32 v53, v0, 1, 1\nv_or_b32 v53, s{sT}, v53\nv_bfe_u32 v51, v52, 1, 3\nv_xor_b32 v53, v53, v51\nv_lshlrev_b32 v53, 4, v53")
        k(f"s_add_u32 s{sT}, s{sM}, {L_XS[0]}\nv_lshl_add_u32 v53, v52, 7, v53\nv_lshl_add_u32 v53, v54, 3, v53\nv_add_u32 v{XTA}, s{sT}, v53\nv_xor_b32 v{XTA+1}, 32, v{XTA}")
        k(f"s_lshl_b32 s{sT}, s{sG32}, 8\ns_add_u32 s{sT}, s{sT}, s{sRB}\ns_lshl2_add_u32 s{sT}, s{sT}, s{sCOL}\ns_lshl_b32 s{sT}, s{sT}, 7\ns_add_u32 s{sE1}, s{sT}, {XT}\ns_add_u32 s{sE2}, s{sE1}, 65536")
        k(f"s_mul_i32 s{sT}, s3, 4576\ns_cmp_ge_u32 s3, 2\ns_cselect_b32 s{sT}, {L_SY}, s{sT}\ns_sub_u32 s{sT2}, s{sE3}, 16")
        k(f"v_min_u32 v156, 29, v0\nv_lshl_add_u32 v156, v156, 4, s{sT}\nv_mov_b32 v155, s{sT2}\nv_cmp_eq_u32 vcc, 0, v{gH}\ns_nop 1\nv_cndmask_b32 v156, v155, v156, vcc\nds_write_b128 v156, {V(ZERO,4)}")
        return
    k(f"s_lshl_b32 s{sT}, s{sCS}, 4\ns_lshr_b32 s{sO2}, s{sO2}, s{sT}\ns_lshl_b32 s{sO2}, s{sO2}, 16\ns_cmp_eq_u32 s{sHH}, 0\ns_cselect_b32 s{sO2}, s{sO2}, 0")
    k(f"v_mov_b32 v154, s{sO2}\nv_cmp_eq_u32 vcc, 0, v0")
    srd(k, sW2, pW2); srd_const(k, sW2, 1605632)
    k(f"v_cndmask_b32 v{DSK}, 0, v154, vcc")
    w2_bases(k, cfg); w2_offsets(k, gW2D)
    if cfg.g16:
        k(f"v_lshl_add_u32 v13, v{gH}, 2, v10\nv_and_b32 v12, 16, v0\nv_add_u32 v13, v13, v12\nv_and_b32 v12, 24, v11\nv_lshl_add_u32 v12, v13, 7, v12\nv_bfe_u32 v13, v0, 3, 2\nv_lshl_add_u32 v12, v13, 5, v12")
        k(f"v_add_u32 v{gW2A}, s{sM}, v12")
        for i in (1, 2, 3): k(f"v_xor_b32 v{gW2A+i}, {32*i}, v{gW2A}")
    else:
        k(f"v_lshl_add_u32 v13, v{gH}, 2, v10\nv_lshl_add_u32 v12, v13, 7, v11\nv_lshrrev_b32 v13, 1, v10\nv_lshl_add_u32 v12, v13, 6, v12")
        k(f"v_add_u32 v{gW2A}, s{sM}, v12\nv_xor_b32 v{gW2A+1}, 64, v{gW2A}\nv_add_u32 v{gW2A+2}, 65536, v{gW2A}\nv_add_u32 v{gW2A+3}, 65536, v{gW2A+1}")
    k(f"s_mul_i32 s{sT}, s{sCS}, 768\ns_add_u32 s{sT}, s{sT}, {L_GS}\nv_lshl_add_u32 v13, v15, 3, s{sT}\nv_cmp_eq_u32 vcc, 0, v{gH}")
    k(f"s_mul_i32 s{sT}, s{sHH}, 768\ns_add_u32 s{sT}, s{sT}, {L_GS+256}\nv_cndmask_b32 v{gAGA}, 0, v13, vcc\nv_lshl_add_u32 v{gSTA}, v15, 2, s{sT}")
    k(f"v_lshlrev_b32 v{gL16}, 4, v0\nv_mov_b32 v{gSY}, {L_SY}\nv_mov_b32 v{gONE}, 1\nv_lshl_add_u32 v10, s{sCOL}, 2, v{gSY}")
    k(f"s_lshl1_add_u32 s{sE0}, s{sRB}, s{sHH}\ns_lshl1_add_u32 s{sXO}, s{sFC}, s{sCS}")
    k(f"s_lshl1_add_u32 s{sWO}, s{sE0}, s{sCS}\ns_lshl1_add_u32 s{sWO}, s{sWO}, s{sXH}\ns_lshr_b32 s{sT}, s{sC}, {1 if cfg.aspread == 4 else 3}\ns_lshl2_add_u32 s{sWO}, s{sWO}, s{sT}\ns_lshl_b32 s{sWO}, s{sWO}, 7\ns_add_u32 s{sWO}, s{sWO}, {ACNT}")
    k(f"s_lshl_b32 s{sXO}, s{sXO}, 13\ns_mul_i32 s{sT}, s{sE0}, 229376\ns_add_u32 s{sXO}, s{sXO}, s{sT}\ns_add_u32 s{sXO}, s{sXO}, {ACT}\ns_add_u32 s{sE3}, s{sXO}, 4096")

def gather_addresses(k, part):
    if part == 1:
        k(f"s_mul_i32 s48, s{sCS}, {L_PCH//132*32}\ns_add_u32 s48, s48, {L_PART//132*32}")
        k(f"v_lshl_add_u32 v50, s{sHH}, 6, v0\ns_add_u32 s{sT}, s48, {255+384}\nv_sub_u32 v2, s{sT}, v50\nv_add_u32 v3, 1, v2\nv_cmp_eq_u32 vcc, 127, v50")
        k(f"v_lshlrev_b32 v50, 3, v50\nv_sub_u32 v50, 1023, v50\nv_subbrev_co_u32 v4, vcc, 0, v2, vcc")
        for e in range(3): k(f"v_lshrrev_b32 v5, 5, v{2+e}\nv_add_lshl_u32 v{sGA+11+e}, v{2+e}, v5, 2")
        k(f"s_sub_u32 s{sT}, s48, 0x4300")
        k(f"v_cvt_f32_i32 v51, v50\nv_add_u32 v50, s{sT}, v50\ns_sub_u32 s{sT2}, s{sT}, 1\nv_mov_b32 v52, s{sT2}\ns_add_u32 s{sT}, s{sT}, 128\ns_mov_b32 s{sT2}, {fbits(128.0)}")
    for n in {0: [], 1: [0, 2], 2: [4, 6, 8, 10]}[part]:
        es = (0, 1) if n < 10 else (0,)
        for e in es:
            k(f"v_subrev_f32 v{2+e}, {fbits(float(n+e))}, v51\nv_max_f32 v{2+e}, s{sT2}, v{2+e}\nv_subrev_u32 v{4+e}, {n+e}, v50\nv_med3_i32 v{4+e}, v{4+e}, v52, s{sT}")
        k(f"v_cvt_pk_bf16_f32 v2, v2, v3")
        for e in es:
            k(f"v_add_u32_sdwa v{4+e}, v{4+e}, v2 dst_sel:DWORD dst_unused:UNUSED_PAD src0_sel:DWORD src1_sel:WORD_{e}")
            k(f"v_lshrrev_b32 v3, 5, v{4+e}\nv_add_lshl_u32 v{sGA+n+e}, v{4+e}, v3, 2")
    if part == 0:
        k(f"v_and_b32 v50, 31, v0\nv_lshrrev_b32 v51, 5, v0")
        k(f"v_lshlrev_b32 v2, 3, v50\nv_lshl_add_u32 v2, v51, 2, v2\nv_sub_u32 v3, 2, v51\nv_lshlrev_b32 v3, v3, v50\nv_lshl_add_u32 v3, v51, 7, v3\nv_add_u32 v3, 256, v3")
        k(f"v_lshl_add_u32 v4, v51, 7, v50\nv_add_u32 v4, 512, v4")
        for e, d in ((0, 0), (1, 1), (2, 3)): k(f"v_lshrrev_b32 v5, 5, v{2+e}\nv_add_u32 v5, v5, v{2+e}\nv_lshl_add_u32 v{sPW+d}, v5, 2, s{sE3}")
        k(f"v_lshl_add_u32 v{sPW+2}, v51, 8, v{sPW+1}")

RS = [0]
JSETS = (([7, 6, 0], [5, 4, 3, 2, 1]), ([7, 6, 1], [5, 4, 3, 2, 0]), ([7, 6, 2], [5, 4, 1, 0, 3]))
vXC, vST, vXW, vODD, vGA, vGW, vSC = 26, 27, 28, 29, 36, 37, 38
def S_addresses(k, part):
    sWV = sCOL
    if part < 3: gather_addresses(k, part)
    if part == 3:
        k(f"s_mul_i32 s{sT}, s{sCS}, 16640\ns_add_u32 s{sT}, s{sT}, {L_KC}\ns_lshl_b32 s{sT2}, s{sHH}, 10\ns_add_u32 s{sT2}, s{sT2}, s{sT}\nv_lshl_add_u32 v{EW}, v0, 4, s{sT2}")
        k(f"v_bfe_u32 v2, v0, 1, 2\nv_mul_u32_u24 v2, 4160, v2\nv_and_b32 v{vODD}, 1, v0\nv_lshl_add_u32 v2, v{vODD}, 4, v2\nv_add_u32 v{TZ}, s{sT}, v2")
        k(f"s_lshr_b32 s{sT}, s{sCP}, 4\ns_lshl_b32 s{sT}, s{sT}, 2\ns_add_u32 s{sT}, s{sT}, {C_XT}\ns_lshl_b32 s{sT}, s{sT}, 7\nv_and_b32 v2, 3, v0\nv_lshl_add_u32 v{vXC}, v2, 7, s{sT}")
        k(f"s_lshl_b32 s{sT}, s{sCP}, 13\ns_add_u32 s{sT}, s{sT}, {XT}\nv_lshl_add_u32 v2, s{sWV}, 6, v0\nv_and_b32 v3, 0xfc, v2\nv_add_u32 v3, v3, v2\nv_lshl_add_u32 v{vXW}, v3, 4, s{sT}\nv_lshlrev_b32 v{vST}, 4, v2\nv_add_u32 v{UW}, {L_U+480}, v{vST}")
        k(f"s_mov_b32 s{sXO}, {STATS}\ns_mov_b32 s{sWO}, {STATS+4096}")
    if part == 4:
        k(f"s_lshl_b32 s{sT}, s{sFC}, 2\ns_add_u32 s{sT}, s{sT}, s{sWV}\ns_lshl_b32 s{sT}, s{sT}, 8\ns_add_u32 s{sT}, s{sT}, {AUGW}\nv_lshl_add_u32 v3, v0, 4, s{sT}")
        k(f"s_lshl_b32 s{sT}, s{sRB}, 2\ns_add_u32 s{sT}, s{sT}, s{sWV}\ns_lshl_b32 s{sT}, s{sT}, 6\ns_add_u32 s{sT}, s{sT}, {STATS}\nv_lshl_add_u32 v4, v{vODD}, 12, s{sT}")
        k(f"v_bfe_u32 v2, v0, 1, 2\nv_lshl_add_u32 v4, v2, 4, v4\nv_cmp_gt_u32 vcc, 16, v0\ns_mul_i32 s{sE0}, s{sWV}, 384\ns_add_u32 s{sE0}, s{sE0}, {L_GS}\nv_cndmask_b32 v{vGA}, v4, v3, vcc")
        k(f"v_min_u32 v2, 23, v0\nv_lshl_add_u32 v{vGW}, v2, 4, s{sE0}")
        w2_offsets(k, sW2D)
    if part == 7:
        k(f"v_bfe_u32 v53, v0, 2, 2\nv_lshlrev_b32 v53, 7, v53\nv_and_b32 v54, 3, v0\nv_lshl_add_u32 v53, v54, 4, v53\nv_lshrrev_b32 v54, 5, v0\nv_lshl_add_u32 v53, v54, 6, v53")
        k(f"v_bfe_u32 v54, v0, 4, 1\nv_lshl_add_u32 v54, v54, 9, v53")
        k(f"s_lshl_b32 s{sO1}, s{sCP}, 1\ns_add_u32 s{sO1}, s{sO1}, s{sCS}")
        k(f"s_lshr_b32 s{sT}, s{sO1}, 6\ns_lshl_b32 s{sT}, s{sT}, 1\ns_add_u32 s{sT}, s{sT}, s{sHH}\ns_lshl_b32 s{sT}, s{sT}, 2\ns_bfe_u32 s{sT2}, s{sO1}, 0x20004")
        k(f"s_add_u32 s{sT}, s{sT}, s{sT2}\ns_add_u32 s{sT}, s{sT}, {C_ST}\ns_lshl_b32 s{sO2}, s{sT}, 7")
        k(f"s_lshl_b32 s{sO1}, s{sO1}, 12\ns_add_u32 s{sO1}, s{sO1}, {ST}")
    if part == 6:
        srd(k, sW2, pW2); srd_const(k, sW2, 1605632); srd(k, sOUT, pOUT); srd_const(k, sOUT, 1835008)
        w2_bases(k, None)
    if part == 5:
        k(f"s_mul_i32 s{sT}, s{sCS}, 16640\ns_add_u32 s{sT}, s{sT}, {L_KC+24}" + (f"\ns_lshl_b32 s{sT2}, s{sHH}, 8\ns_sub_u32 s{sT}, s{sT}, s{sT2}" if RS[0] else ""))
        k(f"v_and_b32 v2, 3, v0\nv_sub_u32 v2, 3, v2\nv_mul_u32_u24 v2, 4160, v2\nv_bfe_u32 v3, v0, 2, 2\nv_lshlrev_b32 v3, 3, v3\nv_sub_u32 v2, v2, v3")
        k(f"v_lshrrev_b32 v3, 4, v0\nv_lshl_add_u32 v2, v3, 4, v2\nv_add_u32 v{CA}, s{sT}, v2")
        k(f"s_mul_i32 s{sT}, s{sCS}, 4576\ns_add_u32 s{sT}, s{sT}, {L_U+256*RS[0]}" + (f"\ns_sub_u32 s{sT}, s{sT}, s{sT2}" if RS[0] else ""))
        k(f"v_and_b32 v2, 15, v0\nv_lshlrev_b32 v2, 5, v2\nv_lshl_add_u32 v2, v3, 4, v2\nv_add_u32 v{CBA}, s{sT}, v2")
        k(f"v_lshl_add_u32 v{vSC}, s{sWV}, 2, v{VSY}")

def gen_G(k, cfg):
    ACC, W2R, RING = 16, 80, 192
    FS = [100, 116, 132]
    W2D, W2A, L16, XA, WA, AUG, STT = gW2D, gW2A, gL16, gXA, gWA, gAUG, gSTT
    RC, RL, T, P = 240, 244, 248, 208
    assert cfg.depth <= 6
    k("s_setprio 2")
    stamp(k, cfg, 1, 2); cstamp(k, cfg, 10)
    def w2read(step, dst_step):
        b = step // 2; loc = LOC[b % 7]*16384 + (step & 1)*2048; hi = 2 if loc >= 65536 else 0; loc -= hi*32768
        out = []
        if cfg.g16:
            loc = LOC[b % 7]*16384 % 65536
            return [f"ds_read_b64_tr_b16 {V(W2R + dst_step*8 + d2*4 + rd*2, 2)}, v{(240 if hi else W2A) + 2*(step & 1) + d2} offset:{loc + rd*1024}" for d2 in (0, 1) for rd in (0, 1)]
        for d2 in (0, 1):
            for rd in (0, 1):
                out.append(f"ds_read_b64_tr_b16 {V(W2R + dst_step*8 + d2*4 + rd*2, 2)}, v{W2A+hi+d2} offset:{loc + rd*1024}")
        return out
    def reads(i):
        c, s, F = i // 4, i % 4, FS[i % 3]; sl = c % 3
        wa, wo = (WA, L_WS[sl] - L_WS[0]) if sl < 2 else (WA + 2, 0)
        w = lambda ft: [f"ds_read_b64_tr_b16 {V(F+8+4*ft+2*rd,2)}, v{wa+ft} offset:{wo + s*4096 + rd*1024}" for rd in (0, 1)]
        x = [f"ds_read_b128 {V(F+4*tt,4)}, v{XA+s} offset:{L_XS[sl] - L_XS[2] + tt*4096}" for tt in (0, 1)]
        return w(0) + x + w(1)
    dq = []
    cap = Cap()
    for i in (0, 1):
        for r in reads(i): k(r, f"f{i}")
    for i in range(28):
        F = FS[i % 3]
        rd = reads(i+2) if i + 2 < 28 else []
        edge = rd and (i + 2) % 4 == 0
        gaps = [[], rd[:3], rd[3:], []] if edge else [rd[:2], rd[2:4], rd[4:], []]
        k.wait(lg=f"f{i}")
        for m in range(4):
            ft, tt = m >> 1, m & 1; a = ACC + 16*m
            k(f"v_mfma_f32_32x32x16_bf16 {V(a,16)}, {V(F+8+4*ft,4)}, {V(F+4*tt,4)}, {'0' if i == 0 else V(a,16)}")
            if edge and m == 1:
                c = (i+2)//4
                if c == 1: stamp(k, cfg, 9, 7)
                k.wait(vm={1: "c1", cfg.xtbar: "*"}.get(c), lg="*")
                if c == 1: stamp(k, cfg, 10, 7)
                if not cfg.x_nobar: k("s_barrier")
                stamp(k, cfg, 1 + c, 2)
                if c == 1: stamp(k, cfg, 11, 7)
                dq += [x for b in (2*c-10, 2*c-9) if int(cfg.sblk) <= b < cfg.gblk and not cfg.sall for x in w2dma(ORD[b], W2D)]
            if dq and i >= cfg.w2from and m in (3, 0 if (edge or i >= 26) else 1): g, t = dq.pop(0); k(g, t)
            for r in gaps[m]: k(r, f"f{i+2}")
            if m == 3:
                for _ in range(4):
                    if cap.l: k(cap.l.pop(0))
                assert i < 18 or not cap.l
            if i == 26 and m == 1:
                k.wait(lg="*"); k("s_barrier")
                if cfg.sblk and not cfg.s45: dq += w2dma(ORD[4], W2D)
                for tt in (0, 1): k(f"ds_read_b32 v{STT+tt}, v{gSTA} offset:{384*tt}", "st")
            if i == 26 and m == 2:
                for ft in (0, 1): k(f"ds_read_b64 {V(AUG+4+2*ft,2)}, v{gAGA} offset:{384*ft}", "ag")
            if i == 27 and m == 0: k(f"s_mov_b32 s50, {fbits(-15.0)}\ns_mov_b32 s44, {fbits(2.0**-15)}\ns_mov_b32 s45, {fbits(2.0**-30)}")
            if i == 27 and m == 1: k.wait(lg="*")
            if i == 27 and m in (1, 2):
                tt = m - 1
                k(f"s_mov_b32 s{sT}, 0x01000100\nv_and_b32 v11, 0xffff0000, v{STT+tt}\nv_rcp_f32 v{RC+2*tt}, v11")
                k(f"v_perm_b32 v{AUG+2*tt}, v{STT+tt}, v{STT+tt}, s{sT}\nv_lshrrev_b32 v{AUG+2*tt+1}, 16, v{STT+tt}")
            if i == 27 and m == 3:
                for tt in (0, 1): k(f"v_mul_f32 v{RC+2*tt+1}, {fbits(-2.0**-29) if cfg.rshare else '-2.0'}, v{RC+2*tt}\nv_mul_f32 v{RL+tt}, {fbits(LOG2E)}, v{RC+2*tt}")
    for m in range(4):
        ft, tt = m >> 1, m & 1; a = ACC + 16*m
        k(f"v_mfma_f32_32x32x8_bf16 {V(a,16)}, {V(AUG+4+2*ft,2)}, {V(AUG+2*tt,2)}, {V(a,16)}")
        if dq: g, t = dq.pop(0); k(g, t)
    assert not dq
    if cfg.pages: k.page("mish")
    stamp(k, cfg, 4); stamp(k, cfg, 8, 2); cstamp(k, cfg, 11)
    stq = []
    assert cfg.b8at % 2 == 0 and cfg.pbar2 == 0
    for g in range(8):
        if (cfg.mbar == 2 and 2*g == cfg.b8at) or (g and 2*g == cfg.pbar2): k("s_barrier")
        stamp(k, cfg, 1 + g, 6)
        m, sp = g >> 1, g & 1; ft, tt = m >> 1, m & 1; a = ACC + 16*m + 8*sp; p = P + 4*(g & 1)
        if cfg.rshare:
            U = 224; t = lambda i: V(T+2*i, 2); u = lambda i: V(U+2*i, 2)
            for i in range(4): k(f"v_pk_fma_f32 {t(i)}, {V(a+2*i,2)}, {V(RL,2)}, s[50:51] op_sel:[0,{tt},0] op_sel_hi:[1,{tt},0]")
            for i in range(8): k(f"v_exp_f32 v{T+i}, v{T+i} clamp")
            for i in range(4): k(f"v_pk_add_f32 {t(i)}, {t(i)}, s[44:45] op_sel_hi:[1,0]")
            for i in range(4): k(f"v_pk_fma_f32 {t(i)}, {t(i)}, {t(i)}, s[44:45] op_sel:[0,0,1] op_sel_hi:[1,1,1]")
            k(f"v_pk_mul_f32 {u(0)}, {t(0)}, {t(1)}\nv_pk_mul_f32 {u(1)}, {t(2)}, {t(3)}\nv_pk_mul_f32 {u(2)}, {u(0)}, {u(1)}")
            k(f"v_rcp_f32 v{U+4}, v{U+4}\nv_rcp_f32 v{U+5}, v{U+5}")
            for i in (0, 1): k(f"v_pk_mul_f32 {u(i)}, {u(i)}, {V(RC+2*tt,2)} op_sel:[0,1] op_sel_hi:[1,1]") if False else None
            k(f"v_pk_mul_f32 {u(2)}, {u(2)}, {V(RC+2*tt,2)} op_sel:[0,1] op_sel_hi:[1,1]")
            k(f"v_pk_mul_f32 {u(1)}, {u(1)}, {u(2)}\nv_pk_mul_f32 {u(0)}, {u(0)}, {u(2)}")
            for i in range(4): k(f"v_pk_fma_f32 {t(i)}, {t(i)}, {u(1 - (i >> 1))}, {V(RC+2*tt,2)} op_sel_hi:[1,1,0]")
        else:
            for i in range(4): k(f"v_pk_mul_f32 {V(T+2*i,2)}, {V(a+2*i,2)}, {V(RL,2)} op_sel:[0,{tt}] op_sel_hi:[1,{tt}]")
            for i in range(8): k(f"v_exp_f32 v{T+i}, v{T+i}")
            for i in range(4): k(f"v_pk_add_f32 {V(T+2*i,2)}, {V(T+2*i,2)}, 1.0 op_sel_hi:[1,0]")
            for i in range(4): k(f"v_pk_fma_f32 {V(T+2*i,2)}, {V(T+2*i,2)}, {V(T+2*i,2)}, 1.0 op_sel_hi:[1,1,0]")
            if (cfg.mbar == 2 and 2*g + 1 == cfg.b8at) or 2*g + 1 == cfg.pbar2: k("s_barrier")
            for i in range(8): k(f"v_rcp_f32 v{T+i}, v{T+i}")
            for i in range(4): k(f"v_pk_fma_f32 {V(T+2*i,2)}, {V(T+2*i,2)}, {V(RC+2*tt,2)}, {V(RC+2*tt,2)} op_sel:[0,1,0] op_sel_hi:[1,1,0]")
        sw = 1 if cfg.rshare else 0
        for i in range(4): k(f"v_pk_mul_f32 {V(T+2*i,2)}, {V(T+2*i,2)}, {V(a+2*(i^sw),2)}")
        if g == 7 and cfg.mbar: k("s_barrier")
        if g == 7 and not cfg.mbar:
            lds_signal(k, 10, SY_M, gONE)
            if cfg.sblk: k(f"ds_read_b32 v11, v{gSY} offset:{SY_U}", "w2r1")
        p = RING + 4*((4*ft + 2*tt + sp) if cfg.g16 else (2*(2*ft + sp) + tt))
        for i in range(4): k(f"v_cvt_pk_bf16_f32 v{p+(i^sw)}, v{T+2*i}, v{T+2*i+1}")
        stq.append(f"buffer_store_dwordx4 {V(p,4)}, v{L16}, {S(sWS,4)}, s{sXO if ft == 0 else sE3} offen offset:{sp*2048 + tt*1024} sc1")
        if g in cfg.stat:
            while stq: k(stq.pop(0), "act")
    stamp(k, cfg, 5); stamp(k, cfg, 9, 6)
    k("s_setprio 3")
    k.wait(vm=f"w2_{ORD[3 if cfg.s45 else 4]}" if cfg.sblk else "w2_3")
    if cfg.g16:
        for i in range(4): k(f"v_add_u32 v{240+i}, 65536, v{W2A+i}")
    def rdblk(b):
        for s in (0, 1):
            for r in w2read(2*b+s, 2*b+s): k(r, f"w2r{b}")
    sSTO = sE0
    k(f"s_lshl_b32 s{sSTO}, s{sRB}, 1\ns_and_b32 s{sT}, s{sXCD}, 1\ns_add_u32 s{sSTO}, s{sSTO}, s{sT}")
    k(f"s_lshl_b32 s{sE1}, s{sSTO}, 2\ns_add_u32 s{sE1}, s{sE1}, s3\ns_lshl_b32 s{sE1}, s{sE1}, 9\ns_add_u32 s{sE1}, s{sE1}, {ACNT}\ns_add_u32 s48, s{pWS}, s{sE1}\ns_addc_u32 s49, s{pWS+1}, 0")
    apoll = "\n".join(f"s_load_dword s{52+i}, s[48:49], {128*i} glc" for i in range(cfg.aspread))
    asum = "".join(f"s_add_u32 s52, s52, s{52+i}\n" for i in range(1, cfg.aspread))
    blk = lambda b: [(r, f"w2r{b}") for s in (0, 1) for r in w2read(2*b+s, 2*b+s)]
    assert cfg.gblk == 4
    order = [4, 5, 7, 6, 8, 9, 10, 11, 12, 13]
    rq = blk(0) + blk(1) + blk(2) + blk(3)
    if cfg.sblk: order = [6, 7, 8, 9, 10, 11, 12, 13]; rq += blk(4) + blk(5)
    for n, b in enumerate(order):
        if b == 7 and not cfg.sblk: k(f"ds_read_b32 v11, v{gSY} offset:{SY_U}", "w2r1")
        if b == 6 and not cfg.mbar:
            k.wait(lg="w2r1")
            o = k.lab("wl"); sl = list(k.lg)
            k(f"v_readfirstlane_b32 s{sT}, v11\ns_cmp_ge_u32 s{sT}, 4\ns_cbranch_scc1 {o}")
            lds_spin(k, gSY, SY_U, 4, 11, sT, sSP)
            k(f"{o}:"); k.lg = sl
        if b in (9, 10, 11) and (b == 11 or not cfg.sblk):
            k.wait(vm=f"w2_{b-5}"); rq += blk(b-5)
        if b == 12: k(f"ds_read_b32 v11, v{gSY}"); k.wait(lg="w2r6")
        if b >= 7: k.wait(lg=f"w2r{b-7}")
        for g, t in w2dma(b, W2D):
            k(g, t)
            for _ in range(4 if (cfg.sblk and n == 0) else 2):
                if rq: k(*rq.pop(0))
        if n == cfg.flagat:
            k.wait(vm="act")
            s_inc(k, pWS, f"s{sWO}", sT2)
            stamp(k, cfg, 6)
        if cfg.g16 and 2 <= n < 6:
            for e in range(4): k(f"v_permlane16_swap_b32 v{RING+8*(n-2)+e}, v{RING+8*(n-2)+4+e}")
        if n == cfg.pollat: k(apoll)
    assert not rq
    assert order[cfg.pollat] >= 12
    k(f"s_and_b32 s{sT}, s3, 1\ns_mul_i32 s{sT}, s{sT}, 14\ns_add_u32 s{sT}, s{sT}, s{sCS}\ns_lshl_b32 s{sT}, s{sT}, 13\ns_mul_i32 s{sA2}, s{sSTO}, 229376\ns_add_u32 s{sA2}, s{sA2}, s{sT}\ns_add_u32 s{sA2}, s{sA2}, {ACT}")
    piece_bases(k, 16384)
    if cfg.g16: k(f"v_and_b32 v14, 47, v0\nv_lshlrev_b32 v14, 4, v14\nv_bfe_u32 v15, v0, 4, 1\nv_lshl_add_u32 v{L16}, v15, 11, v14")
    stamp(k, cfg, 7)
    if cfg.pages: k.page("g2")
    l = k.lab("ap"); o = k.lab("ar")
    k(f"s_mov_b32 s{sSP}, 0\n{l}:")
    k.wait(lg="*")
    k(f"{asum}s_add_u32 s{sSP}, s{sSP}, 1\ns_cmp_ge_u32 s52, 7\ns_cbranch_scc1 {o}\ns_cmp_gt_u32 s{sSP}, {SPIN}\ns_cbranch_scc1 {o}")
    if cfg.actsleep: k(f"s_sleep {cfg.actsleep}")
    k(f"{apoll}\ns_branch {l}\n{o}:")
    stamp(k, cfg, 8)
    k(f"s_setprio {cfg.g2prio}")
    if cfg.g16:
        D = 2*cfg.depth; n0 = 14 - cfg.tn
        assert n0 >= 8 + cfg.rl16
        seq = [(s, tt) for s in range(n0) for tt in range(4)] + [(s, tt) for tt in range(4) for s in range(n0, 14)]
        cur = [None]
        def actload(j):
            s, tt = seq[j]; out = []
            if s >= n0:
                if tt == 0: out.append(piece(s//2, 16384, (s & 1)*4096, 52 + s - n0))
                so = 52 + s - n0
            else:
                if cur[0] != s: cur[0] = s; out.append(piece(s//2, 16384, (s & 1)*4096, sT))
                so = sT
            out.append(f"buffer_load_dwordx4 {V(RING + (j % D)*4, 4)}, v{L16}, {S(sWS,4)}, s{so} offen offset:{(tt >> 1)*1024 + (tt & 1)*256} sc1")
            return "\n".join(out)
        stamp(k, cfg, 1, 5)
        o = k.lab("own")
        k(f"s_xor_b32 s{sT}, s3, s{sXCD}\ns_bitcmp0_b32 s{sT}, 0\ns_cbranch_scc1 {o}")
        for j in range(D):
            if j == 8: k(f"{o}:")
            k(actload(j), f"a{j}")
        stamp(k, cfg, 2, 5)
        DA = [1, 2, 3, 4]
        k(f"v_and_b32 v14, 15, v0\nv_lshrrev_b32 v15, 4, v0\nv_xor_b32 v15, v15, v14\nv_lshlrev_b32 v15, 4, v15\nv_lshl_add_u32 v15, v14, 8, v15\nv_add_u32 v{DA[0]}, s{sM}, v15")
        for i in range(1, 4): k(f"v_xor_b32 v{DA[i]}, {64*i}, v{DA[0]}")
        dq2 = []; nd = 0
        for j, (s, tt) in enumerate(seq):
            k.wait(vm=f"a{j}", lg=f"r{s}" if s >= 7 else None)
            if j % 8 == 0: stamp(k, cfg, 3 + j//8, 5)
            rs = s - cfg.rl16
            rd = (w2read(2*(rs+6), 2*(rs-1)) + w2read(2*(rs+6)+1, 2*(rs-1)+1))[2*tt:2*tt+2] if 1 <= rs <= 7 else []
            for d4 in range(4):
                a = ACC + 16*tt + 4*d4
                k(f"v_mfma_f32_16x16x32_bf16 {V(a,4)}, {V(W2R + (s % 7)*16 + 4*d4,4)}, {V(RING + (j % D)*4,4)}, {'0' if s == 0 else V(a,4)}")
                if d4 == 0 and j >= 1 and j - 1 + D < 56: k(actload(j - 1 + D), f"a{j-1+D}")
                if d4 >= 2 and rd: k(rd[d4-2], f"r{rs+6}")
                if d4 == 3 and dq2:
                    k(dq2.pop(0)); nd += 1
                    if nd == 8: lds_signal(k, gSY, SY_GS, gONE)
            if s == 13: dq2 += [f"ds_write_b128 v{DA[d4]}, {V(ACC + 16*tt + 4*d4,4)} offset:{tt*16384}" for d4 in range(4)]
        stamp(k, cfg, 9); stamp(k, cfg, 10, 5)
        assert nd >= 8
        for x in dq2: k(x)
    else:
        D = 2*cfg.depth; n0 = 28 - cfg.tailn
        seq = [(s, tt) for s in range(n0) for tt in (0, 1)] + [(s, tt) for tt in (0, 1) for s in range(n0, 28)]
        cur = [None]
        def actload(j):
            s, tt = seq[j]; out = []
            if cur[0] != s//2:
                cur[0] = s//2
                out.append(piece(s//4, 16384, (s & 2)*2048, sT) + (f"\ns_and_b32 s{sT}, s{sT}, 0xfffff" if cfg.x_acthit else ""))
            out.append(f"buffer_load_dwordx4 {V(RING + (j % D)*4, 4)}, v{L16}, {S(sW2 if cfg.x_acthit else sWS,4)}, s{sT} offen offset:{(s & 1)*2048 + tt*1024} {cfg.actmod}")
            return "\n".join(out)
        stamp(k, cfg, 1, 5)
        o = k.lab("own")
        if cfg.own: k(f"s_xor_b32 s{sT}, s3, s{sXCD}\ns_bitcmp0_b32 s{sT}, 0\ns_cbranch_scc1 {o}")
        k(f"s_setprio {cfg.nprio}")
        for j in range(D):
            if j == 8: k(f"{o}:")
            k(actload(j), f"a{j}")
        stamp(k, cfg, 2, 5)
        DA = [1, 2, 3, 4, 10, 11, 14, 15]
        if cfg.pdump:
            k(f"v_and_b32 v14, 7, v0\nv_lshrrev_b32 v15, 5, v0\nv_xor_b32 v15, v15, v14\nv_lshlrev_b32 v15, 4, v15\nv_and_b32 v14, 31, v0\nv_lshl_add_u32 v15, v14, 7, v15\nv_add_u32 v{DA[0]}, s{sM}, v15")
            for i in range(1, 4): k(f"v_xor_b32 v{DA[i]}, {32*i}, v{DA[0]}")
            def dump(tt, d2s):
                out = []
                for d2 in d2s:
                    r = [ACC + 16*(2*d2+tt) + 8*jp for jp in (0, 1)]
                    out += ["\n".join(f"v_cvt_pk_bf16_f32 v{x+i}, v{x+2*i}, v{x+2*i+1}" for i in range(4)) for x in r]
                    out += [f"v_permlane32_swap_b32 v{x}, v{x+2}\nv_permlane32_swap_b32 v{x+1}, v{x+3}\nds_write_b128 v{DA[2*d2+jp]}, {V(x,4)} offset:{tt*16384}" for jp, x in enumerate(r)]
                return out
        else:
            k(f"v_and_b32 v14, 15, v0\nv_lshrrev_b32 v15, 5, v0\nv_xor_b32 v15, v15, v14\nv_lshlrev_b32 v15, 4, v15\nv_lshl_add_u32 v15, v14, 8, v15")
            k(f"v_bfe_u32 v14, v0, 4, 1\nv_lshl_add_u32 v15, v14, 14, v15\nv_add_u32 v{DA[0]}, s{sM}, v15")
            for i in range(1, 8): k(f"v_xor_b32 v{DA[i]}, {32*i}, v{DA[0]}")
            dump = lambda tt, d2s: [f"ds_write_b128 v{DA[4*d2+jj]}, {V(ACC+16*(2*d2+tt)+4*jj,4)} offset:{tt*32768}" for d2 in d2s for jj in range(4)]
        jlast0 = max(j for j in range(56) if seq[j][1] == 0)
        assert 14 + cfg.rdlag < n0 and cfg.tailq <= min(D, cfg.tailn)
        q0 = 56 - cfg.tailq
        ops = [(j, d2) for j in range(q0) for d2 in (0, 1)] + [(j, d2) for d2 in (0, 1) for j in range(q0, 56)]
        d0 = dump(0, (0, 1)); d1 = dump(1, (0, 1)); i0 = ops.index((jlast0, 1)); i1 = ops.index((55, 0)); sig = [False]
        for i, (j, d2) in enumerate(ops):
            s, tt = seq[j]
            if d2 == 0:
                k.wait(vm=f"a{j}", lg=f"r{s}" if s >= 14 else None)
                if j % 8 == 0: stamp(k, cfg, 3 + j//8, 5)
            w = W2R + (s % 14)*8; x = RING + (j % D)*4; a = ACC + 16*(2*d2 + tt)
            rs = s - cfg.rdlag
            k(f"v_mfma_f32_32x32x16_bf16 {V(a,16)}, {V(w+4*d2,4)}, {V(x,4)}, {'0' if s == 0 else V(a,16)}")
            if d2 == 0 and j >= 1 and j - 1 + D < 56: k(actload(j - 1 + D), f"a{j-1+D}")
            if d2 == 1 and 1 <= rs <= 14: k("\n".join(w2read(rs + 13, rs - 1)[2*tt:2*tt+2]), f"r{rs+13}")
            if i >= i0 + 2 and d0 and (cfg.pdump or (i - i0) % 2 == 0 or len(d0) >= len(ops) - i): k(d0.pop(0))
            elif not d0 and not sig[0]: lds_signal(k, gSY, SY_GS, gONE); sig[0] = True
            elif cfg.tailq and sig[0] and i >= i1 + 2 and len(d1) > 4 and (cfg.pdump or (i - i1) % 2 == 0): k(d1.pop(0))
        while d0: k(d0.pop(0))
        if not sig[0]: lds_signal(k, gSY, SY_GS, gONE)
        stamp(k, cfg, 9); stamp(k, cfg, 10, 5)
        for x in d1: k(x)
    k.wait(lg="*")
    stamp(k, cfg, 11, 5)
    k("s_barrier")
    stamp(k, cfg, 10)
    prof_dump(k, cfg, role="G")
    k("s_endpgm")

class Pacer:
    def __init__(self, k, pace): self.k, self.pace, self.q, self.n = k, pace, [], 0
    def __call__(self, text, tag=None):
        lines = text.split("\n")
        for i, ln in enumerate(lines):
            self.k(ln, tag)
            if i + 1 < len(lines) and lines[i+1].startswith(("s_cselect", "s_addc", "s_cbranch")): continue
            self.n += 11 if "ds_write_b128" in ln else 5 if "ds_write" in ln else 2 if ("ds_read" in ln or "v_rcp" in ln) else 1
            if self.q and self.n >= self.pace: self.pop()
    def pop(self):
        g, t = self.q.pop(0); self.k(g, t); self.n = 0
    def flush(self):
        while self.q: self.pop()

def gen_S(k, cfg, vm0):
    k.reset()
    if cfg.pages: k(".p2align 12")
    k("L_S:")
    k.s_tail()
    sWV, GA = sCOL, sGA
    p = Pacer(k, cfg.pace)
    def bar(c, lg="*"):
        p.flush()
        if c == 1: stamp(k, cfg, 9, 7)
        k.wait(vm=f"c{c}", lg=lg)
        if c == 1: stamp(k, cfg, 10, 7)
        stamp(k, cfg, 1+c, 2)
        if not cfg.x_nobar: k("s_barrier")
    G0, XV, CP = 160, 192, 208
    SV, XW, CN, MM, RR, XF, GS = 100, 108, 116, 120, 128, 136, 144
    def copies(x, off, sgs):
        for sg in sgs:
            c = CP + 4*sg
            for jj in range(4): p(f"v_cvt_pk_bf16_f32 v{c+jj}, v{x[sg+2*jj]}, v{x[sg+2*jj+1]}")
            p(f"ds_write_b128 v{EW}, {V(c,4)} offset:{sg*4160 + off}")
    k("s_setprio 0")
    k(CLRL, "clr")
    w2t = f"s_lshl2_add_u32 s{sT}, s{sCP}, s{sCOL}\ns_mul_i32 s{sT}, s{sT}, 1792\nv_mul_u32_u24 v62, 28, v0\nbuffer_load_dword v62, v62, {S(sW2,4)}, s{sT} offen"
    if cfg.w2touch == 1: assert 6 in cfg.early; k(w2t)
    held = []
    late = lambda part: S_addresses(p, part) if part not in cfg.early else None
    def ring(c):
        ch = chunk(cfg, c); p.q = held + ch[:cfg.r2cut]; held[:] = ch[cfg.r2cut:]; p.pop()
    stl = f"buffer_load_dwordx4 {V(SV,4)}, v{vST}, {S(sWS,4)}, s{sXO} offen sc1\nbuffer_load_dwordx4 {V(SV+4,4)}, v{vST}, {S(sWS,4)}, s{sWO} offen sc1"
    xcl = f"buffer_load_dword v{CN}, v{vXC}, {S(sWS,4)}, 0 offen sc1"
    gsl = f"s_mov_b32 m0, s{sE0}\ns_mov_b64 exec, 0xffffff\nbuffer_load_dwordx4 v{vGA}, {S(sWS,4)}, 0 offen sc1 lds\ns_mov_b64 exec, -1"
    pw = [f"ds_write2_b32 v{sPW+a}, v{KA+r}, v{KA+r+1} offset0:{o0} offset1:{o1}" for a, r, o0, o1 in
          ((0, 0, 0, 1), (0, 2, 2, 3), (1, 4, 0, 1), (2, 6, 2, 3), (3, 8, 0, 33), (3, 10, 66, 99))]
    ring(2)
    p(f"v_lshrrev_b32 v50, 1, v0\nv_and_b32 v52, 1, v0\nv_lshl_add_u32 v52, s{sWV}, 1, v52\nv_bfe_u32 v51, v0, 2, 3\nv_xor_b32 v51, v51, v52\nv_lshlrev_b32 v51, 4, v51\nv_lshl_add_u32 v51, v50, 7, v51")
    p(f"s_and_b32 s{sT}, s{sXCD}, 1\ns_lshl_b32 s{sT}, s{sT}, 13\ns_add_u32 s{sT}, s{sT}, {L_GB+L_XS[0]}\nv_add_u32 v51, s{sT}, v51")
    p(f"ds_read_b128 v[248:251], v51\nds_read_b128 v[252:255], v51 offset:4096")
    late(6); late(3)
    if cfg.w2touch == 2: p.flush(); k(w2t)
    bar(1)
    def xtflag():
        v_poll(k, CLRL, 49, 4, sSP, 2, first=False, tag="clr")
        o = k.lab("xf")
        k(f"s_lshl_b32 s{sT}, s{sG32}, 2\ns_add_u32 s{sT}, s{sT}, s{sR}\ns_add_u32 s{sT}, s{sT}, {C_XT}\ns_lshl_b32 s{sT}, s{sT}, 7\ns_cmp_lg_u32 s{sCOL}, 0\ns_cbranch_scc1 {o}")
        s_inc(k, pWS, f"s{sT}", sE2)
        k(f"{o}:")
    ring(3)
    if cfg.xtbar == 1: p.pop(); xtflag(); p.pop(); p.pop()
    late(0); late(5)
    for r in range(3): p(f"ds_read_b128 {V(G0+4*r,4)}, v{PA} offset:{1024*r}", "raw")
    bar(2, None)
    if cfg.xtbar == 2: xtflag()
    ring(4)
    late(1)
    bar(3, None)
    ring(5)
    late(2)
    bar(4, None)
    stamp(k, cfg, 4)
    if cfg.r2cut == 8: k(xcl, "xc")
    ring(6)
    for _ in range(8 - cfg.r2cut - 1): p.pop()
    if cfg.r2cut < 8: k(xcl, "xc")
    k.wait(lg="*")
    for i in range(12): p(f"v_add_f32 v{KA+i}, v{KA+i}, v{G0+i}")
    late(4)
    bar(5, None)
    p.q = list(held); p.flush()
    v_poll(k, xcl, CN, 4, sSP, 2, first=False, tag="xc")
    k(stl, "st")
    for e in (0, 1): k(f"buffer_load_dwordx4 {V(XW+4*e,4)}, v{vXW}, {S(sWS,4)}, 0 offen offset:{64*e} sc1", "xw")
    k(gsl, "gs")
    if cfg.sall:
        n1, n2 = cfg.sall
        assert n1 <= 8 and n2 % 4 == 0 and n2 <= 16
        wq = [x for b in range(6) for x in w2dma(ORD[b], sW2D)]
        p.q = wq[:n1]
        bar(6, None)
        p.q = wq[n1:n2]; p.pop()
        late(7); p.flush()
    else:
        p.q = w2dma(ORD[0], sW2D); p.pop()
        late(7)
        bar(6, None)
    stamp(k, cfg, 5)
    if cfg.pages:
        o = k.lab("wm")
        for n, name in enumerate(("cvA", "cvB", "mish")):
            if name not in cfg.warm or (name == 'cvB' and cfg.split == 'r'): continue
            o2 = k.lab("wn")
            k(f"s_cmp_lg_u32 s{sWV}, {n}\ns_cbranch_scc1 {o2}"); k.warm(name); k(f"{o2}:")
    k.wait(vm="gs")
    k(f"s_mov_b32 s{sSP}, 0")
    l = k.lab("xp"); o = k.lab("xpo")
    k(f"{l}:")
    k(f"ds_read_b128 {V(GS,4)}, v{vGW}")
    k(f"v_min_u32 v{CN}, v{SV}, v{SV+1}\ns_add_u32 s{sSP}, s{sSP}, 1")
    for i in range(1, 4): k(f"v_min3_u32 v{CN}, v{CN}, v{SV+2*i}, v{SV+2*i+1}")
    for i in range(8): k(f"v_and_b32 v{RR+i}, 0xffff0000, v{SV+i}")
    k.wait(lg="*")
    k(f"v_min3_u32 v{CN}, v{CN}, v{GS+1}, v{GS+3}")
    k(f"v_cmp_eq_u32 vcc, 0, v{CN}\ns_cmp_gt_u32 s{sSP}, {SPIN}\ns_cbranch_scc1 {o}\ns_cbranch_vccz {o}")
    sv = list(k.vm); k(stl); k(gsl); k("s_waitcnt vmcnt(0)"); k.vm = sv
    k(f"s_branch {l}")
    k(f"{o}:")
    stamp(k, cfg, 8, 2)
    k("s_barrier")
    stamp(k, cfg, 1, 6)
    if cfg.sall: p.q = wq[n2:]; p.pace = cfg.pace2; p.pop()
    for i in range(8): p(f"v_rcp_f32 v{RR+i}, v{RR+i}\nv_lshlrev_b32 v{MM+i}, 16, v{SV+i}")
    for i in range(8): p(f"v_mul_f32 v{MM+i}, v{MM+i}, v{RR+i}")
    for ch in (0, 1):
        if ch: k("s_setprio 3")
        for i in range(4): p(f"v_lshlrev_b32 v{XF+2*i}, 16, v{XW+4*ch+i}\nv_and_b32 v{XF+2*i+1}, 0xffff0000, v{XW+4*ch+i}")
        for i in range(8): p(f"v_fma_f32 v{XF+i}, v{XF+i}, v{RR+i}, -v{MM+i}")
        for i in range(4): p(f"v_cvt_pk_bf16_f32 v{XW+4*ch+i}, v{XF+2*i}, v{XF+2*i+1}")
    stamp(k, cfg, 9, 2); stamp(k, cfg, 2, 6)
    k(f"v_lshl_add_u32 v55, s{sCS}, 2, v{VSY}")
    p.flush()
    if cfg.sblk and not cfg.sall:
        for g, t in (w2dma(ORD[4], sW2D) if cfg.s45 else []) + w2dma(ORD[5], sW2D): k(g, t)
    stamp(k, cfg, 3, 6)
    k("\n".join(pw))
    if not cfg.pbar2: lds_signal(k, 55, SY_PAIR, VONE)
    stamp(k, cfg, 4, 6)
    stamp(k, cfg, 5, 6)
    if cfg.pbar2: assert cfg.split == 'J'; k.wait(lg="*"); k("s_barrier")
    else: lds_spin(k, 55, SY_PAIR, 2, 50, sT, sSP)
    stamp(k, cfg, 6, 6)
    for i in list(range(11, 14)) + list(range(11)): k(f"ds_read2st64_b32 {V(G0+2*i,2)}, v{GA+i} offset1:13", "ga" if i > 10 else "gb")
    for ch in (0, 1): k(f"ds_write_b128 v{UW}, {V(XW+4*ch,4)} offset:{4576*ch}")
    k(f"ds_write_b128 v{TZ}, {V(ZERO,4)} offset:4096")
    for ps, x in enumerate(([XV+12]*3 + [XV+14] + [XV+11]*6 + [XV+13], [XV+i for i in range(11)])):
        k.wait(lg="gb" if ps else "ga")
        stamp(k, cfg, 7 + ps, 6)
        for i in (range(11) if ps else range(11, 14)): k(f"v_add_f32 v{XV+i}, v{G0+2*i}, v{G0+2*i+1}")
        if ps == 0: k(f"v_cmp_eq_u32 vcc, 1, v{vODD}\nv_cndmask_b32 v{XV+14}, v{XV+12}, v{XV+11}, vcc")
        for sg in range(4):
            for jj in range(4): k(f"v_cvt_pk_bf16_f32 v{CP+16*ps+4*sg+jj}, v{x[sg+2*jj]}, v{x[sg+2*jj+1]}")
            k(f"ds_write_b128 v{EW}, {V(CP+16*ps+4*sg,4)} offset:{sg*4160 + ps*2048}")
    stamp(k, cfg, 9, 6)
    if cfg.mbar:
        k.wait(vm="*", lg="*"); k("s_barrier")
    else:
        k.wait(vm="*")
        lds_signal(k, VSY, SY_U, VONE)
        lds_spin(k, VSY, SY_U, 4, 50, sT, sSP, cfg.usleep)
    stamp(k, cfg, 10, 6)
    Y, FS, YS = 68, [100, 164], 228
    def a_read(r, F, a): return [f"ds_read_b64 {V(F+4*a+2*e,2)}, v{CA} offset:{(7-a)*512 + (7-r)*64 + 8*e}" for e in (0, 1)]
    def b_read(r, F, c): return [f"ds_read_b128 {V(F+32+4*c,4)}, v{CBA} offset:{c*512 + (7-r)*64 - 256*RS[0]}"]
    def first(ms):
        seen = []
        for J, a in ms:
            for t in (("a", a), ("b", J - a)):
                if t not in seen: seen.append(t)
        rd = [(x, f"z{t[0]}{t[1]}") for t in seen for x in (a_read if t[0] == "a" else b_read)(0, FS[0], t[1])]
        for x in rd[:cfg.cvpre]: k(*x)
        stamp(k, cfg, 10, 2)
        if cfg.mbar == 2: k("s_barrier")
        if not cfg.mbar: lds_spin(k, vSC, SY_M, 1, 50, sT, sSP, cfg.usleep)
        k(f"s_setprio {cfg.cvprio}")
        stamp(k, cfg, 6); stamp(k, cfg, 11, 2); stamp(k, cfg, 11, 6)
        return rd[cfg.cvpre:]
    if cfg.split == 'r':
        ms = sorted(((a + c, a) for c in range(8) for a in range(8 - c)), key=lambda x: (max(x[1], x[0]-x[1]), x[0]))
        if cfg.pages: k.page("cvA")
        rest = first(ms)
        for r in range(4):
            F = FS[r & 1]; N = FS[(r+1) & 1]; nxt = list(rest); rest = []
            if r < 3:
                for i in range(8): nxt += [(x, None) for x in a_read(r+1, N, i) + b_read(r+1, N, i)]
            if r > 0: k.wait(lg="*")
            if r == 3:
                lds_signal(k, VSY, SY_RD, VONE)
                nxt = f"s_lshl_b32 s{sT}, s{sWV}, 12\ns_add_u32 s{sT}, s{sT}, 16384\nv_lshl_add_u32 v51, v0, 4, s{sT}\nv_xor_b32 v52, 0x1000, v51\ns_lshl_b32 s{sT}, s{sHH}, 11\ns_add_u32 s{sO1}, s{sO1}, s{sT}".split("\n"); nxt = [(x, None) for x in nxt]
            n = 0
            seen = set()
            for i, (J, a) in enumerate(ms):
                if r == 0:
                    for t in (f"za{a}", f"zb{J-a}"):
                        assert t not in [y[1] for y in nxt[n:]]
                        k.wait(lg=t)
                k(f"v_mfma_f32_16x16x32_bf16 {V(Y+4*J,4)}, {V(F+4*a,4)}, {V(F+32+4*(J-a),4)}, {'0' if (r == 0 and J not in seen) else V(Y+4*J,4)}")
                seen.add(J)
                while n < len(nxt) and n*min(len(nxt), 33) < (i+1)*len(nxt): k(*nxt[n]); n += 1
                if r == 3 and i == 28: k(f"ds_read_b32 v50, v{VSY} offset:{SY_RD}")
        stamp(k, cfg, 7); stamp(k, cfg, 1, 5)
        k("s_setprio 3")
        o = k.lab("rd")
        k.wait(lg="*")
        k(f"v_readfirstlane_b32 s{sT}, v50\ns_cmp_ge_u32 s{sT}, 4\ns_cbranch_scc1 {o}")
        lds_spin(k, VSY, SY_RD, 4, 50, sT, sSP)
        k(f"{o}:")
        l1 = k.lab("h1"); l2 = k.lab("hj"); EX = 100
        k(f"s_cmp_eq_u32 s{sHH}, 1\ns_cbranch_scc1 {l1}\ns_nop 3")
        for i in range(4): k(f"ds_write_b128 v51, {V(Y+16+4*i,4)} offset:{1024*i}")
        lds_signal(k, 55, SY_PAIR, VONE)
        k(f"s_branch {l2}")
        k(f"{l1}:")
        for i in range(4): k(f"ds_write_b128 v51, {V(Y+4*i,4)} offset:{1024*i}")
        lds_signal(k, 55, SY_PAIR, VONE)
        for i in range(16): k(f"v_mov_b32 v{Y+i}, v{Y+16+i}")
        k(f"{l2}:")
        lds_spin(k, 55, SY_PAIR, 4, 50, sT, sSP)
        for i in range(4): k(f"ds_read_b128 {V(EX+4*i,4)}, v52 offset:{1024*i}", f"e{i}")
        for g in (0, 1):
            for i in (2*g, 2*g+1):
                k.wait(lg=f"e{i}")
                for e in range(4): k(f"v_add_f32 v{Y+4*i+e}, v{Y+4*i+e}, v{EX+4*i+e}")
                for e in (0, 1): k(f"v_cvt_pk_bf16_f32 v{YS+2*i+e}, v{Y+4*i+2*e}, v{Y+4*i+2*e+1}")
            for e in (0, 1): k(f"v_permlane16_swap_b32 v{YS+4*g+e}, v{YS+4*g+2+e}")
            k(f"buffer_store_dwordx4 {V(YS+4*g,4)}, v54, {S(sWS,4)}, s{sO1} offen offset:{1024*g} sc1", "sts")
        if cfg.pages: k.page("epi")
    else:
        lB = "L_cvB"; lJ = "L_epi"
        k(f"s_cmp_eq_u32 s{sHH}, 1\ns_cbranch_scc1 {lB}")
        if cfg.pages: k.page("cvA")
        for Js in JSETS[cfg.jbal]:
            top = max(Js)
            ms = [(J, a) for a in range(top+1) for J in Js if a <= J]
            rest = first(ms)
            for r in range(8):
                F = FS[r & 1]; N = FS[(r+1) & 1]; nxt = list(rest); rest = []
                if r < 7:
                    for i in range(top+1): nxt += [(x, None) for x in a_read(r+1, N, i) + b_read(r+1, N, top-i)]
                if r > 0: k.wait(lg="*")
                if r == 7: lds_signal(k, VSY, SY_RD, VONE)
                n = 0; slots = len(ms) - cfg.cvfree
                for i, (J, a) in enumerate(ms):
                    if r == 0:
                        for t in (f"za{a}", f"zb{J-a}"):
                            assert t not in [y[1] for y in nxt[n:]]
                            k.wait(lg=t)
                    k(f"v_mfma_f32_16x16x32_bf16 {V(Y+4*J,4)}, {V(F+4*a,4)}, {V(F+32+4*(J-a),4)}, {'0' if (r == 0 and a == 0) else V(Y+4*J,4)}")
                    while n < len(nxt) and n*slots < (i+1)*len(nxt): k(*nxt[n]); n += 1
                assert n == len(nxt)
            stamp(k, cfg, 7); stamp(k, cfg, 1, 5)
            groups = [(Js[-1], Js[-1])] + [(Js[i+1], Js[i]) for i in range(len(Js)-3, -1, -2)]
            for g, (lo, hi) in enumerate(groups):
                y = YS + 4*g
                for q, J in enumerate((lo, hi)):
                    for e in (0, 1): k(f"v_cvt_pk_bf16_f32 v{y+2*q+e}, v{Y+4*J+2*e}, v{Y+4*J+2*e+1}")
                for e in (0, 1): k(f"v_permlane16_swap_b32 v{y+e}, v{y+2+e}")
                k(f"buffer_store_dwordx4 {V(y,4)}, v{53 if lo == hi else 54}, {S(sWS,4)}, s{sO1} offen offset:{512*lo} sc1", "sts")
            if top == 7:
                k(f"s_branch {lJ}")
                if cfg.pages: k.page("cvB", False)
                else: k(f"{lB}:")
                k.reset()
        if cfg.pages: k.page("epi")
        else: k(f"{lJ}:")
    if cfg.x_nos2:
        k("s_barrier"); prof_dump(k, cfg, True); k("s_endpgm"); return
    XE, OA, RA, SA, XU, SU = 248, 64, 68, 70, 120, 136
    k(f"s_lshl1_add_u32 s{sRB}, s{sRB}, s{sXH}\ns_mov_b32 s{sC}, s{sKAP}")
    k(f"v_lshrrev_b32 v50, 1, v0\nv_mul_u32_u24 v52, 896, v50\nv_lshl_add_u32 v{OA}, v{vODD}, 4, v52")
    k(f"s_mul_i32 s{sG32}, s{sRB}, {64*896}\ns_lshl2_add_u32 s{sT}, s{sC}, s{sWV}\ns_lshl_b32 s{sT}, s{sT}, 5\ns_add_u32 s{sG32}, s{sG32}, s{sT}\ns_add_u32 s{sKAP}, s{sG32}, {32*896}")
    k(f"v_lshl_add_u32 v51, s{sWV}, 1, v{vODD}\nv_and_b32 v55, 15, v50\nv_lshlrev_b32 v52, 1, v51\nv_xor_b32 v52, v52, v55\nv_lshlrev_b32 v52, 4, v52\nv_lshl_add_u32 v52, v55, 8, v52")
    k(f"v_lshrrev_b32 v55, 5, v0\nv_lshl_add_u32 v52, v55, 14, v52\nv_add_u32 v{RA}, {L_GB}, v52\nv_xor_b32 v{RA+1}, 16, v{RA}")
    if cfg.pdump: k(f"v_and_b32 v52, 7, v50\nv_xor_b32 v52, v52, v51\nv_lshlrev_b32 v52, 4, v52\nv_lshl_add_u32 v52, v50, 7, v52\nv_add_u32 v{RA}, {L_GB}, v52")
    k(f"v_bfe_u32 v52, v0, 4, 1\nv_lshl_add_u32 v52, v52, 2, v55\nv_xor_b32 v52, v52, v51\nv_lshlrev_b32 v52, 4, v52\nv_lshl_add_u32 v52, v51, 10, v52\nv_and_b32 v55, 14, v0\nv_add_u32 v{SA}, v55, v52\nv_xor_b32 v{SA+1}, 32, v{SA}")
    assert L_U == 0
    k(f"v_lshrrev_b32 v50, 3, v0\nv_and_b32 v51, 7, v0\ns_lshl_b32 s{sT}, s{sWV}, 1\nv_xor_b32 v56, s{sT}, v51\nv_lshlrev_b32 v56, 4, v56\nv_lshl_add_u32 v56, v50, 12, v56\nv_xor_b32 v57, 16, v56\nv_add_u32 v57, {32768-1024}, v57")
    k.wait(vm="*")
    s_inc(k, pWS, f"s{sO2}", sE3)
    stamp(k, cfg, 8); stamp(k, cfg, 2, 5)
    for i in range(8): k(f"v_lshlrev_b32 v{XU+2*i}, 16, v{XE+i}\nv_and_b32 v{XU+2*i+1}, 0xffff0000, v{XE+i}")
    k(f"s_lshr_b32 s{sT2}, s{sRB}, 2\ns_lshr_b32 s{sT2}, {0xf0 if RS[0] else sum(1 << J for J in JSETS[cfg.jbal][1])}, s{sT2}\ns_and_b32 s{sT2}, s{sT2}, 1")
    k(f"s_lshl_b32 s{sT}, s{sC}, 1\ns_add_u32 s{sT}, s{sT}, s{sT2}\ns_lshl_b32 s{sT}, s{sT}, 2\ns_add_u32 s{sT}, s{sT}, s{sWV}\ns_add_u32 s{sT}, s{sT}, {C_ST}\ns_lshl_b32 s{sO1}, s{sT}, 7")
    k(f"s_lshl_b32 s{sT}, s{sC}, 2\ns_add_u32 s{sT}, s{sT}, s{sWV}\ns_lshl_b32 s{sT}, s{sT}, 16\ns_lshl_b32 s{sT2}, s{sRB}, 7\ns_add_u32 s{sT}, s{sT}, s{sT2}\ns_add_u32 s{sO2}, s{sT}, {ST}")
    for i in range(16): k(f"v_mov_b32 v{SU+i}, 0")
    k(f"s_lshl_b32 m0, s{sWV}, 11")
    if not RS[0]: lds_spin(k, VSY, SY_RD, 4, 50, sT, sSP, 1)
    s_poll(k, pWS, [f"s{sO1}"], 16, sT, sSP, cfg.stpoll[1])
    stamp(k, cfg, 3, 5)
    k(f"buffer_load_dwordx4 v56, {S(sWS,4)}, s{sO2} offen sc1 lds\nbuffer_load_dwordx4 v57, {S(sWS,4)}, s{sO2} offen offset:1024 sc1 lds")
    k.wait(vm="*")
    stamp(k, cfg, 9); stamp(k, cfg, 4, 5)
    for ps in (0, 1):
        for e in range(8): k(f"ds_read_u16_d16_hi v{SU+8*ps+e}, v{SA+ps} offset:{128*e}")
    k(f"s_mov_b32 s{sO1}, {fbits(-LOG2E)}\ns_movk_i32 s50, 0x3f80\ns_mov_b32 s51, 0x3f800000")
    PR, T = 160, 224
    for ps in (0, 1):
        b = PR + 32*ps; plain = ps == 0 and cfg.p0plain
        if ps == 0:
            stamp(k, cfg, 5, 5); lds_spin(k, VSY, SY_GS, 4, 50, sT, sSP, cfg.finsleep); stamp(k, cfg, 6, 5)
        else:
            stamp(k, cfg, 7, 5); k("s_barrier"); stamp(k, cfg, 10); stamp(k, cfg, 8, 5)
        if cfg.pdump:
            for w in range(4): k(f"ds_read_b128 {V(b+8+4*w,4)}, v{RA} offset:{16384*ps + 4096*w}", f"p{w}")
            for w in range(4):
                k.wait(lg=f"p{w}")
                for i in range(4):
                    x = b + 8 + 4*w + i
                    if w == 0: k(f"v_lshlrev_b32 v{b+2*i}, 16, v{x}\nv_and_b32 v{b+2*i+1}, 0xffff0000, v{x}")
                    elif plain: k(f"v_lshlrev_b32 v{T}, 16, v{x}\nv_and_b32 v{x}, 0xffff0000, v{x}\nv_add_f32 v{b+2*i}, v{b+2*i}, v{T}\nv_add_f32 v{b+2*i+1}, v{b+2*i+1}, v{x}")
                    else: k(f"v_dot2c_f32_bf16 v{b+2*i}, s50, v{x}\nv_dot2c_f32_bf16 v{b+2*i+1}, s51, v{x}")
        else:
            for w in range(4):
                for e in (0, 1): k(f"ds_read_b128 {V(b+8*w+4*e,4)}, v{RA+e} offset:{32768*ps + 4096*w}", f"p{w}")
            def add(x, y):
                if ps == 0 and cfg.p0plain:
                    for i in range(8): k(f"v_add_f32 v{x+i}, v{x+i}, v{y+i}")
                else:
                    for i in range(4): k(f"v_pk_add_f32 {V(x+2*i,2)}, {V(x+2*i,2)}, {V(y+2*i,2)}")
            k.wait(lg="p1")
            add(b, b+8)
            k.wait(lg="p3")
            add(b+16, b+24); add(b, b+16)
        if plain and cfg.p0plain == 2:
            for i in range(8): k(f"v_mul_f32 v{T+i}, s{sO1}, v{b+i}")
            for i in range(8): k(f"v_exp_f32 v{T+i}, v{T+i}")
            for i in range(8): k(f"v_mul_f32 v{b+i}, v{b+i}, v{SU+i}")
            for i in range(8): k(f"v_add_f32 v{T+i}, 1.0, v{T+i}")
            for i in range(8): k(f"v_rcp_f32 v{T+i}, v{T+i}")
            for i in range(8): k(f"v_fma_f32 v{b+i}, v{b+i}, v{T+i}, v{XU+i}")
        else:
            for i in range(4): k(f"v_pk_mul_f32 {V(T+2*i,2)}, {V(b+2*i,2)}, {S(sO1,2)} op_sel_hi:[1,0]")
            for i in range(8): k(f"v_exp_f32 v{T+i}, v{T+i}")
            for i in range(4): k(f"v_pk_mul_f32 {V(b+2*i,2)}, {V(b+2*i,2)}, {V(SU+8*ps+2*i,2)}")
            for i in range(4): k(f"v_pk_add_f32 {V(T+2*i,2)}, {V(T+2*i,2)}, 1.0 op_sel_hi:[1,0]")
            for i in range(8): k(f"v_rcp_f32 v{T+i}, v{T+i}")
            for i in range(4): k(f"v_pk_fma_f32 {V(b+2*i,2)}, {V(b+2*i,2)}, {V(T+2*i,2)}, {V(XU+8*ps+2*i,2)}")
        for i in range(4): k(f"v_cvt_pk_bf16_f32 v{b+8+i}, v{b+2*i}, v{b+2*i+1}")
        k(f"buffer_store_dwordx4 {V(b+8,4)}, v{OA}, {S(sOUT,4)}, s{sG32 if ps == 0 else sKAP} offen {cfg.outmod}")
    if cfg.prof or cfg.probe: k("s_waitcnt vmcnt(0)")
    stamp(k, cfg, 11); stamp(k, cfg, 9, 5)
    prof_dump(k, cfg, True, role="S")
    k("s_endpgm")

def gen_helper(k, cfg):
    k.reset()
    k("L_helper:")
    sHB, sIH, sST = 62, 63, 64
    k(f"v_lshrrev_b32 v1, 6, v0\nv_and_b32 v0, 63, v0\nv_readfirstlane_b32 s3, v1\ns_and_b32 s{sXCD}, s2, 7")
    k(f"s_lshl_b32 s{sHB}, s{sXCD}, 2\ns_add_u32 s{sHB}, s{sHB}, s{sJ}")
    k(f"s_lshr_b32 s{sIH}, s{sXCD}, 1\ns_lshl_b32 s{sIH}, s{sIH}, 2\ns_add_u32 s{sIH}, s{sIH}, s{sJ}\ns_and_b32 s{sST}, s{sXCD}, 1\ns_mul_i32 s{sST}, s{sST}, 14\ns_add_u32 s{sST}, s{sST}, s{sIH}")
    k(f"s_lshl_b32 s{sT}, s{sHB}, 3\ns_add_u32 s{sT}, s{sT}, s3\ns_mul_i32 s65, s{sT}, {8*896}")
    k(f"v_lshrrev_b32 v1, 3, v0\nv_and_b32 v2, 7, v0\nv_mul_u32_u24 v3, 896, v1\nv_lshl_add_u32 v3, v2, 4, v3")
    k(f"v_lshlrev_b32 v4, 4, v0\nv_and_b32 v5, 1, v0\nv_lshlrev_b32 v5, 12, v5\nv_lshrrev_b32 v6, 1, v0\nv_lshl_add_u32 v5, v6, 4, v5")
    k(f"v_mul_u32_u24 v15, 3584, v1\nv_lshl_add_u32 v15, v2, 4, v15")
    k(f"s_lshl_b32 s67, s{sHB}, 7\ns_add_u32 s67, s67, {STATS}")
    k(f"s_lshl_b32 s69, s{sST}, 9\ns_add_u32 s69, s69, {AUGW}\ns_mul_i32 s70, s3, {56*3584}\ns_lshl_b32 s74, s{sST}, 7\ns_add_u32 s70, s70, s74")
    srd_const(k, sAUX, 256); srd_const(k, sWS, WSN); srd_const(k, sX, 1835008); srd_const(k, sW1, 1605632); srd_const(k, sW2, 1605632); srd_const(k, sOUT, 3584)
    k("s_waitcnt lgkmcnt(0)")
    srd(k, sW1, pW1); srd(k, sX, pX); srd(k, sWS, pWS); srd(k, sAUX, pDBG); srd(k, sW2, pW2); srd(k, sOUT, pB1)
    stamp(k, cfg, 5)
    if cfg.tlb:
        k(f"s_lshl_b32 s72, s3, 21\ns_load_dword s30, {S(pWS,2)}, s72\ns_load_dword s31, {S(pW2,2)}, 0\ns_load_dword s32, {S(pOUT,2)}, 0\ns_load_dword s33, {S(pW1,2)}, 0\ns_load_dword s34, {S(pDBG,2)}, 128")
    l0 = k.lab("h0")
    k(f"s_cmp_lt_u32 s{sIH}, 14\ns_cbranch_scc1 {l0}")
    for i in range(4): k(f"v_mov_b32 v{8+i}, 0")
    k(f"s_and_b32 s66, s{sXCD}, 1\ns_lshl_b32 s66, s66, 1\ns_and_b32 s{sT}, s{sJ}, 1\ns_add_u32 s66, s66, s{sT}\ns_lshl_b32 s66, s66, 3\ns_add_u32 s66, s66, s3\ns_lshl_b32 s66, s66, 12")
    for n in range(4): k(f"buffer_store_dwordx4 v[8:11], v4, {S(sWS,4)}, s66 offen offset:{1024*n} sc1")
    k(f"s_mov_b32 s69, {WSN}\ns_mov_b32 s70, {WSN}\ns_waitcnt vmcnt(0)\ns_barrier\ns_cmp_lg_u32 s3, 7\ns_cbranch_scc1 {l0}")
    s_inc(k, pDBG, "0", 75)
    k(f"{l0}:")
    stamp(k, cfg, 4)
    if cfg.hdelay: k(f"s_sleep {cfg.hdelay}")
    k.reset()
    if cfg.hxfirst:
        for i in range(7): k(f"buffer_load_dwordx4 {V(16+4*i,4)}, v3, {S(sX,4)}, s65 offen offset:{128*i}", f"x{i}")
    if cfg.hsplit: k("s_barrier")
    for i in range(7): k(f"s_add_u32 s76, s70, {i*8*3584}\nbuffer_load_dwordx4 {V(44+4*i,4)}, v15, {S(sW1,4)}, s76 offen", f"w{i}")
    k(f"v_lshlrev_b32 v6, 1, v0\nbuffer_load_ushort v81, v6, {S(sOUT,4)}, s74 offen", "b1")
    k("v_and_b32 v12, 1, v0\nv_lshlrev_b32 v12, 4, v12\nv_mov_b32 v13, 0xbf80\nv_lshlrev_b32 v13, v12, v13\nv_bfe_u32 v12, v0, 1, 2")
    for e in range(4): k(f"v_cmp_eq_u32 vcc, {e}, v12\nv_cndmask_b32 v{72+e}, 0, v13, vcc")
    k(f"v_lshrrev_b32 v82, 5, v0\nv_lshl_add_u32 v82, s3, 1, v82\nv_lshlrev_b32 v82, 8, v82\nv_bfe_u32 v13, v0, 4, 1\nv_lshl_add_u32 v82, v13, 7, v82\nv_lshl_add_u32 v82, v2, 2, v82\nv_add_u32 v82, 1024, v82")
    k("v_mov_b32 v12, 0\nv_mov_b32 v13, 0\ns_mov_b32 s68, 0x3f803f80")
    if not cfg.hxfirst:
        for i in range(7): k(f"buffer_load_dwordx4 {V(16+4*i,4)}, v3, {S(sX,4)}, s65 offen offset:{128*i}", f"x{i}")
    hclr = f"buffer_load_dword v83, off, {S(sAUX,4)}, 0 sc1"
    k(hclr, "clr")
    if int(cfg.prof) == 8:
        stamp(k, cfg, 1, 8)
        for i, t in enumerate(("x0", "x3", "x6", "w0", "w3", "w6")):
            sv = list(k.vm); k.wait(vm=t); k.vm = sv; stamp(k, cfg, 2 + i, 8)
    if cfg.hearly:
        k(f"s_lshr_b32 s71, s{sHB}, 4\ns_mul_i32 s71, s71, {512*896}\ns_lshl3_add_u32 s72, s{sHB}, s3\ns_mul_i32 s72, s72, {3*896}\ns_add_u32 s71, s71, s72")
        k(f"v_min_u32 v84, 20, v0\nv_lshlrev_b32 v84, 7, v84\nbuffer_load_dword v84, v84, {S(sW2,4)}, s71 offen", "pf0")
    for i in range(7):
        k.wait(vm=f"x{i}")
        for e in range(4): k(f"v_dot2c_f32_bf16 v12, s68, v{16+4*i+e}\nv_dot2c_f32_bf16 v13, v{16+4*i+e}, v{16+4*i+e}")
    stamp(k, cfg, 6)
    for m in ("quad_perm:[1,0,3,2]", "quad_perm:[2,3,0,1]", "row_half_mirror"):
        for r in (12, 13): k(f"v_add_f32_dpp v{r}, v{r}, v{r} {m} row_mask:0xf bank_mask:0xf")
    k(f"v_mul_f32 v12, {fbits(1/448)}, v12\nv_mul_f32 v13, {fbits(1/448)}, v13\nv_fma_f32 v13, -v12, v12, v13\nv_max_f32 v13, 0, v13")
    k(f"v_cvt_pk_bf16_f32 v13, v13, v13\nv_and_b32 v13, 0xffff0000, v13\nv_add_f32 v13, {fbits(1e-5)}, v13\nv_cvt_pk_bf16_f32 v13, v13, v13\nv_and_b32 v13, 0xffff0000, v13")
    k(f"v_sqrt_f32 v13, v13\nv_lshl_add_u32 v14, s3, 3, v1\nv_lshlrev_b32 v14, 2, v14\nv_cvt_pk_bf16_f32 v12, v12, v13")
    k("ds_write_b32 v14, v12")
    for j in range(7):
        k.wait(vm=f"w{j}")
        k(f"v_mfma_f32_16x16x32_bf16 v[76:79], {V(44+4*j,4)}, v[72:75], {'0' if j == 0 else 'v[76:79]'}")
    k("ds_write2_b32 v82, v76, v77 offset0:0 offset1:8\nds_write2_b32 v82, v78, v79 offset0:16 offset1:24")
    stamp(k, cfg, 7)
    v_poll(k, hclr, 83, 4, 73, 2, first=False, tag="clr")
    stamp(k, cfg, 8)
    k.wait(lg="*")
    k("s_barrier")
    stamp(k, cfg, 1)
    l2 = k.lab("h2"); l3 = k.lab("h3")
    k(f"s_cmp_lg_u32 s3, 0\ns_cbranch_scc1 {l2}")
    k("s_mov_b64 exec, 0xffff\nds_read_b128 v[8:11], v4")
    k.wait(lg="*")
    k(f"buffer_store_dwordx4 v[8:11], v5, {S(sWS,4)}, s67 offen sc1\ns_mov_b64 exec, -1")
    k(f"{l2}:")
    k(f"s_cmp_lg_u32 s3, 1\ns_cbranch_scc1 {l3}")
    k("v_lshlrev_b32 v12, 2, v0")
    for j in range(8): k(f"ds_read2st64_b32 {V(16+2*j,2)}, v12 offset0:{4+2*j} offset1:{5+2*j}")
    k.wait(lg="*")
    for st_ in (1, 2, 4, 8):
        for j in range(0, 16, 2*st_): k(f"v_add_f32 v{16+j}, v{16+j}, v{16+j+st_}")
    k(f"v_cvt_pk_bf16_f32 v12, v16, v16\nv_and_b32 v12, 0xffff0000, v12\nv_sub_f32 v12, v16, v12\nv_cvt_pk_bf16_f32 v80, v16, v12\nv_or_b32 v81, 0x10000, v81\nv_lshlrev_b32 v12, 3, v0")
    k(f"buffer_store_dwordx2 v[80:81], v12, {S(sWS,4)}, s69 offen sc1")
    k(f"{l3}:")
    k("s_barrier")
    stamp(k, cfg, 2)
    k(f"v_lshlrev_b32 v14, 7, v0\ns_mul_i32 s76, s{sJ}, 401408\ns_mul_i32 s77, s{sXCD}, 49\ns_lshr_b32 s77, s77, 3\ns_add_u32 s77, s77, s3")
    for i in range(cfg.w2pf):
        k(f"s_sub_u32 s71, s77, 49\ns_cmp_ge_u32 s77, 49\ns_cselect_b32 s77, s71, s77\ns_lshl_b32 s71, s77, 13\ns_add_u32 s71, s71, s76\ns_add_u32 s77, s77, 8")
        k(f"buffer_load_dword v{90+i}, v14, {S(sW2,4)}, s71 offen", "pf")
    if cfg.actpf:
        k(f"s_lshl1_add_u32 s71, s{sIH}, 0\ns_and_b32 s72, s{sXCD}, 1\ns_add_u32 s71, s71, s72\ns_lshr_b32 s72, s3, 1\ns_lshl2_add_u32 s74, s71, s72\ns_lshl_b32 s74, s74, 9\ns_add_u32 s74, s74, {ACNT}")
        k(f"s_add_u32 s48, s{pWS}, s74\ns_addc_u32 s49, s{pWS+1}, 0")
        k(f"s_and_b32 s74, s72, 1\ns_mul_i32 s74, s74, 7\ns_and_b32 s75, s3, 1\ns_add_u32 s74, s74, s75\ns_lshr_b32 s72, s72, 1\ns_lshl1_add_u32 s74, s74, s72\ns_lshl_b32 s74, s74, 13")
        k(f"s_mul_i32 s76, s71, 229376\ns_add_u32 s76, s76, s74\ns_add_u32 s76, s76, {ACT + cfg.apf0*16384}\ns_mov_b32 s73, 0\ns_sleep {cfg.apfwait}")
        l = k.lab("hp"); o = k.lab("hpo")
        k(f"{l}:\ns_sleep {cfg.actpf}")
        for i in range(4): k(f"s_load_dword s{52+i}, s[48:49], {128*i} glc")
        k(f"s_add_u32 s73, s73, 1\ns_waitcnt lgkmcnt(0)\ns_cmp_gt_u32 s73, {SPIN}\ns_cbranch_scc1 L_end\ns_add_u32 s52, s52, s53\ns_add_u32 s54, s54, s55\ns_add_u32 s52, s52, s54\ns_cmp_lt_u32 s52, 7\ns_cbranch_scc1 {l}")
        for i in range((7 - cfg.apf0)//2): k(f"buffer_load_dword v{100+i}, v14, {S(sWS,4)}, s76 offen sc1\ns_add_u32 s76, s76, 32768")
    k("s_waitcnt vmcnt(0)")
    stamp(k, cfg, 3)
    prof_dump(k, cfg, role="H")
    k("L_end:")
    k("s_endpgm")

HEADER = open("recurrent_scan__ssm_conv_s4__dense_activation_mish__prompt.s.ref").read().split("; Override launch")[0] if __name__ == "__main__" else ""
def build(cfg, header=""):
    ORD[:] = cfg.ord; LOC[:] = [LOCT[ORD.index(b)] for b in range(7)]; assert ORD[6] == 6
    G16[0] = cfg.g16
    k = K(); RS[0] = int(cfg.split == 'r')
    front(k, cfg); vm0 = list(k.vm); gen_G(k, cfg); gen_S(k, cfg, vm0); gen_helper(k, cfg)
    return file_wrap([(KNAME, 256, 512, L_TOT)], [kernel_wrap(KNAME, k.text(), 256).replace(".text\n", f".text\n.p2align 12\n.fill {cfg.lead//4}, 4, 0xbf800000\n" if cfg.lead is not None else ".text\n", 1).replace('denorm_mode_32 3', f'denorm_mode_32 {cfg.denorm}')], header), k

if __name__ == "__main__":
    cfg = Cfg()
    for a in sys.argv[2:]:
        n, v = a.split("=", 1); setattr(cfg, n, eval(v))
    txt, k = build(cfg, HEADER)
    open(sys.argv[1], "w").write(txt)
    print("instructions", len(k.ins), "padded states", k.padded)
```

```python
import sys, struct
from kasm import *
from asmlib import KNAME, kernel_wrap, file_wrap

def fbits(x): return "0x%08x" % struct.unpack("<I", struct.pack("<f", x))[0]
LOG2E = 1.4426950408889634

AUGW, ACNT = 0xA000, 0x10000
CNT, STATS, PROF, XT, ST, ACT, KDBG, WSN = 0, 0x8000, 0x20000, 0x100000, 0x300000, 0x500000, 0xD00000, 0x2000000
C_ACT, C_XT, C_ST = 0, 128, 184
L_WS, L_XS = [81920, 98304, 0], [49152, 65536, 16384]
L_GB, L_KC, L_U, L_SY, L_TOT = 49152, 14336, 0, 13312, 163840
L_PART, L_PCH, L_GS = 84480, 6864, L_U + 9216
sX, sW1, sW2, sWS, sAUX, sOUT = 4, 8, 12, 16, 20, 24
pX, pARE, pLDT, pDSK, pW1, pB1, pW2, pOUT, pDBG, pWS = 28, 30, 42, 44, 48, 50, 52, 54, 56, 58
sXCD, sJ, sR, sC, sRB, sFC, sKAP = 60, 61, 62, 63, 64, 65, 66
SPIN, LSPIN = 1000000, 30000000

class Cfg:
    prof = False
    kdbg = False
    span = False
    probe = None
    probewg = None
    probemin = False
    probe2 = None
    cyc = False
    depth = 6
    rot = False
    stpoll = ('s', 4)
    actsleep = 1
    c1at = [14, 22, 30, 38]
    statstep = 20
    pace2 = 9
    pace = 8
    actpf = 0
    apf0 = 3
    apfwait = 60
    w2pf = 1
    codepf = True
    outmod = ""
    pbar = False
    flagat = 1
    cut = [3, 4]
    early = [0, 6]
    xtat = [46, 50]
    touch = 36
    w2touch = 0
    tlb = False
    ord = [2, 3, 4, 5, 0, 1, 6]
    s45 = True
    jbal = 2
    partner = 1
    pmask2 = 0x400
    xtearly = True
    gc1early = True
    w2from = 22
    rdlag = 1
    p0plain = 0
    pollat = 6
    cvprio = 2
    nprio = 0
    tailq = 6
    usleep = 0
    mbar = 1
    hearly = False
    hdelay = 0
    hsplit = True
    pmod = ('', 'nt')
    rshare = True
    pdump = False
    pages = True
    prew = 1
    g16 = True
    tn = 5
    rl16 = 1
    c0wat = 6
    lead = 0xD00
    warm = ('g1', 'mish', 'cvA', 'cvB')
    sall = None
    b8at = 14
    pbar2 = 0
    cvpre = 12
    g2prio = 0
    finsleep = 0
    bclate = True
    own = True
    aspread = 4
    gc0 = True
    c0x = 2
    c0w = 2
    gat = dict(xr=46, xs=50, touch=36)
    xtbar = 1
    hxfirst = True
    gearly = 1
    c0late = 2
    r2cut = 8
    sblk = True
    split = 'r'
    x_noconv = False
    cvfree = 3
    tailn = 12
    gblk = 4
    x_noside = False
    x_nodma = False
    x_nobar = False
    x_nokw = False
    x_acthit = False
    x_nos2 = False
    ssleep = 0
    stat = [1,2,3,4,5,6,7]
    actmod = 'sc1'
    x_noc01 = False
    kbar = False
    kdelay = False
    kprio = 0
    denorm = 3

def srd(k, d, ptr): k(f"s_mov_b64 {S(d,2)}, {S(ptr,2)}")
def srd_const(k, d, n): k(f"s_mov_b32 s{d+2}, {n}\ns_mov_b32 s{d+3}, 0x20000")

def stamp(k, cfg, i, mode=1):
    if cfg.probe:
        if i == 0 or (mode, i) == cfg.probe[1:]: k(f"s_memrealtime {S(78+2*i,2)}")
        return
    if cfg.cyc and cfg.prof and (mode == int(cfg.prof) or i == 0):
        k(f"s_memtime {S(78+2*i,2)}"); return
    if (cfg.span and i == 0) or cfg.prof and (int(cfg.prof) == mode or i == 0): k(f"s_memrealtime {S(78+2*i,2)}")
def cstamp(k, cfg, i, mode=2):
    if int(cfg.prof) == mode: k(f"s_memtime {S(78+2*i,2)}")
def prof_dump(k, cfg, last=False, role=None):
    if cfg.probe:
        if role == cfg.probe[0]:
            l = k.lab("pad"); i = cfg.probe[2]
            if cfg.probe2:
                k(f"s_waitcnt lgkmcnt(0)\ns_cmp_lg_u32 s{sCOL}, 0\ns_cbranch_scc1 L_end")
                srd(k, sAUX, pDBG); srd_const(k, sAUX, 256)
                k(f"s_not_b32 s76, s78\nv_mov_b32 v4, s76\nv_mov_b32 v5, s78\nv_mov_b32 v6, s{78+2*i}\ns_mov_b64 exec, 1")
                for n in range(3): k(f"buffer_atomic_umax v{4+n}, off, {S(sAUX,4)}, 0 offset:{128+4*n}")
                k(f"s_cmp_lg_u32 s2, 40\ns_cbranch_scc1 L_end")
                l2 = k.lab("pw")
                k(f"{l2}:\ns_memrealtime s[74:75]\ns_waitcnt lgkmcnt(0)\ns_sub_u32 s74, s74, s78\ns_cmp_lt_u32 s74, 8000\ns_cbranch_scc1 {l2}")
                k(f"buffer_load_dwordx3 v[4:6], off, {S(sAUX,4)}, 0 offset:128 sc1\ns_waitcnt vmcnt(0)\nv_readfirstlane_b32 s72, v4\nv_readfirstlane_b32 s73, v5\nv_readfirstlane_b32 s76, v6\ns_not_b32 s72, s72")
                k({"first": "s_sub_u32 s76, s76, s72", "last": "s_sub_u32 s76, s76, s73"}[cfg.probe2])
                k(f"s_lshl_b32 s76, s76, 4\ns_min_u32 s76, s76, 30000\ns_add_u32 s76, s76, 10000")
                k(f"{l}:\ns_memrealtime s[74:75]\ns_waitcnt lgkmcnt(0)\ns_sub_u32 s74, s74, s72\ns_cmp_lt_u32 s74, s76\ns_cbranch_scc1 {l}")
                return
            k(f"s_waitcnt lgkmcnt(0)\ns_sub_u32 s76, s{78+2*i}, s78\ns_lshl_b32 s76, s76, 4\ns_min_u32 s76, s76, 27000\n" + ("s_add_u32 s76, s76, 3000" if not cfg.probemin else "s_sub_u32 s76, 30000, s76"))
            if cfg.probewg is not None: k(f"s_cmp_lg_u32 s2, {cfg.probewg}\ns_cselect_b32 s76, 0, s76")
            k(f"{l}:\ns_memrealtime s[74:75]\ns_waitcnt lgkmcnt(0)\ns_sub_u32 s74, s74, s78\ns_cmp_lt_u32 s74, s76\ns_cbranch_scc1 {l}")
        return
    if cfg.span == 2 and last:
        k("L_pad:\ns_memrealtime s[80:81]\ns_waitcnt lgkmcnt(0)\ns_sub_u32 s80, s80, s78\ns_cmp_lt_u32 s80, 4000\ns_cbranch_scc1 L_pad")
    if cfg.span == 1 and last:
        k("s_memrealtime s[80:81]\ns_waitcnt lgkmcnt(0)\ns_not_b32 s78, s78\nv_mov_b32 v4, s78\nv_mov_b32 v5, s80\ns_mov_b64 exec, 1")
        k("s_cmp_lg_u32 s3, 4\ns_cbranch_scc1 L_end")
        k(f"buffer_atomic_umax v4, off, {S(sAUX,4)}, 0 offset:8\nbuffer_atomic_umax v5, off, {S(sAUX,4)}, 0 offset:12")
    if not cfg.prof: return
    k("s_waitcnt lgkmcnt(0)")
    k("s_lshl_b32 s76, s2, 3\ns_add_u32 s76, s76, s3\ns_lshl_b32 s76, s76, 6\ns_add_u32 s76, s76, %d" % PROF)
    k("s_mov_b64 exec, 1")
    for q in range(3):
        for e in range(4): k(f"v_mov_b32 v{4+e}, s{78+2*(4*q+e)}")
        k(f"buffer_store_dwordx4 v[4:7], off, {S(sWS,4)}, s76 offset:{16*q}")
    k("s_mov_b64 exec, -1")

def atomic_inc(k, srdreg, soff, vt):
    k(f"v_mov_b32 v{vt}, 1\ns_mov_b64 exec, 1")
    k(f"buffer_atomic_add v{vt}, off, {S(srdreg,4)}, {soff} sc1", "atom")
    k("s_mov_b64 exec, -1")

def s_inc(k, ptr, soff, st):
    k(f"s_mov_b32 s{st}, 1\ns_atomic_add s{st}, {S(ptr,2)}, {soff}")
def s_poll(k, ptr, soffs, want, st, sc, sleep=0):
    l = k.lab("sp"); o = k.lab("spo")
    k(f"s_mov_b32 s{sc}, 0")
    k(f"{l}:")
    for i, so in enumerate(soffs): k(f"s_load_dword s{st+i}, {S(ptr,2)}, {so} glc")
    k(f"s_add_u32 s{sc}, s{sc}, 1")
    k.wait(lg="*")
    k(f"s_cmp_gt_u32 s{sc}, {SPIN}\ns_cbranch_scc1 {o}")
    for i in range(1, len(soffs)): k(f"s_min_u32 s{st}, s{st}, s{st+i}")
    if sleep: k(f"s_cmp_ge_u32 s{st}, {want}\ns_cbranch_scc1 {o}\ns_sleep {sleep}\ns_branch {l}")
    else: k(f"s_cmp_lt_u32 s{st}, {want}\ns_cbranch_scc1 {l}")
    k(f"{o}:")
def v_poll(k, load, vt, want, sc, sleep=0, first=True, tag="*"):
    l = k.lab("vp"); o = k.lab("vpo")
    if first: k(load)
    k(f"s_mov_b32 s{sc}, 0")
    k.wait(vm=tag)
    k(f"{l}:")
    k(f"v_cmp_gt_u32 vcc, {want}, v{vt}\ns_add_u32 s{sc}, s{sc}, 1\ns_cmp_gt_u32 s{sc}, {SPIN}\ns_cbranch_scc1 {o}\ns_cbranch_vccz {o}")
    if sleep: k(f"s_sleep {sleep}")
    sv = list(k.vm); k(load); k("s_waitcnt vmcnt(0)"); k.vm = sv
    k(f"s_branch {l}")
    k(f"{o}:")

def lds_signal(k, vaddr, off, vone):
    k("s_mov_b64 exec, 1")
    k(f"ds_add_u32 v{vaddr}, v{vone} offset:{off}", "sig")
    k("s_mov_b64 exec, -1")
def lds_spin(k, vaddr, off, want, vt, st, sc, sleep=0):
    l = k.lab("spin"); o = k.lab("spun")
    k(f"s_mov_b32 s{sc}, 0")
    k(f"{l}:")
    k(f"ds_read_b32 v{vt}, v{vaddr} offset:{off}\ns_add_u32 s{sc}, s{sc}, 1")
    k.wait(lg="*")
    k(f"v_readfirstlane_b32 s{st}, v{vt}\ns_cmp_gt_u32 s{sc}, {LSPIN}\ns_cbranch_scc1 {o}")
    if sleep: k(f"s_cmp_ge_u32 s{st}, {want}\ns_cbranch_scc1 {o}\ns_sleep {sleep}\ns_branch {l}")
    else: k(f"s_cmp_lt_u32 s{st}, {want}\ns_cbranch_scc1 {l}")
    k(f"{o}:")

sCP, sCS, sCOL, sM, sT, sT2, sSP, sO1, sO2, sDO, sDM = 67, 68, 69, 70, 71, 72, 73, 74, 75, 76, 77
sXO, sWO, sA2, sB2, sDT, sDT2, sE0, sE1, sE2, sE3 = 30, 31, 32, 33, 34, 35, 36, 37, 38, 39
sHH, sG32, sKM = 40, 41, 46
sRW = 40
AB, BB, CB, X1, X8, X256, W1, W8, W256, W2, W4, TT, Z0, Z1, PK = 100, 102, 104, 106, 108, 110, 112, 114, 116, 118, 120, 122, 124, 126, 128
KWG, KR, PA, DSK, DT, VD, VF, UF, KA = 132, 140, 141, 145, 146, 150, 160, 192, 224
LOCT = [4, 6, 1, 0, 3, 5, 2]
ORD = list(range(7))
LOC = list(LOCT)
SY_GS, SY_RING, SY_RD, SY_U, SY_PAIR, SY_S, SY_W2, SY_M = 0, 4, 8, 12, 16, 24, 32, 48

def x_offsets(k, d):
    k(f"v_lshrrev_b32 v154, 3, v0\nv_and_b32 v155, 7, v0\nv_lshrrev_b32 v156, 4, v0\nv_xor_b32 v155, v155, v156")
    k(f"v_lshl_add_u32 v154, s{sCOL}, 5, v154\nv_mul_u32_u24 v154, 896, v154\nv_lshl_add_u32 v{d}, v155, 4, v154\nv_xor_b32 v155, 64, v{d}")
    k(f"v_add_u32 v{d+1}, 6144, v155\nv_add_u32 v{d+2}, {2*6144}, v{d}\nv_add_u32 v{d+3}, {3*6144}, v155")
def w1_offsets(k, d):
    k(f"v_lshrrev_b32 v154, 4, v0\nv_and_b32 v155, 15, v0\nv_lshlrev_b32 v156, 2, v154\nv_xor_b32 v155, v155, v156")
    k(f"v_lshl_add_u32 v154, s{sCOL}, 4, v154\nv_mul_u32_u24 v154, 3584, v154\nv_lshl_add_u32 v{d}, v155, 4, v154")
    for n in (1,2,3): k(f"v_add_u32 v{d+n}, {n*13312}, v{d}")
G16 = [0]
def w2_offsets(k, d):
    k(f"v_lshrrev_b32 v154, 3, v0\nv_and_b32 v155, 7, v0\nv_bfe_u32 v156, v0, 4, 1\nv_lshlrev_b32 v156, {1 if G16[0] else 2}, v156\nv_xor_b32 v155, v155, v156")
    k(f"v_mul_u32_u24 v154, 896, v154\nv_lshl_add_u32 v{d}, v155, 4, v154")
    if G16[0]: k(f"v_xor_b32 v155, 64, v{d}")
    for n in (1,2,3): k(f"v_add_u32 v{d+n}, {n*6144}, v{155 if (G16[0] and n >= 2) else d}")
sC0, sCE = 42, 43
def piece_bases(k, unit):
    k(f"s_add_u32 s{sB2}, s{sA2}, {unit}\ns_mul_i32 s{sC0}, s{sCE}, {unit}\ns_add_u32 s{sC0}, s{sC0}, s{sA2}")
def piece(n, unit, extra, d):
    if n == 0: return f"s_add_u32 s{d}, s{sC0}, {extra}"
    return f"s_cmp_le_u32 s{sCE}, {n-1}\ns_cselect_b32 s{d}, s{sB2}, s{sA2}\ns_add_u32 s{d}, s{d}, {(n-1)*unit + extra}"
def w2_bases(k, cfg):
    k(f"s_xor_b32 s{sT}, s3, s{sXCD}\ns_bitcmp1_b32 s{sT}, 0\ns_cselect_b32 s{sCE}, 0, s{sC}")
    k(f"s_and_b32 s{sT}, s3, 1\ns_mul_i32 s{sT}, s{sT}, 14\ns_add_u32 s{sT}, s{sT}, s{sCS}\ns_mul_i32 s{sA2}, s{sT}, {64*896}\ns_lshl_b32 s{sT}, s{sKAP}, 7\ns_add_u32 s{sA2}, s{sA2}, s{sT}")
    piece_bases(k, 114688)
def w2dma(b, d):
    out = [f"s_add_u32 m0, s{sM}, {LOC[b%7]*16384}\n" + piece(b//2, 114688, (b & 1)*28672, sDT) + f"\nbuffer_load_dwordx4 v{d}, {S(sW2,4)}, s{sDT} offen lds"]
    for n in (1,2,3): out.append(f"buffer_load_dwordx4 v{d+n}, {S(sW2,4)}, s{sDT} offen offset:{n*1024} lds")
    return [(g, f"w2_{b}") for g in out]
def cmul(k, z, a, w, t):
    k(f"v_pk_mul_f32 {V(t,2)}, {V(a,2)}, {V(w,2)} op_sel_hi:[1,0]")
    k(f"v_pk_fma_f32 {V(z,2)}, {V(a,2)}, {V(w,2)}, {V(t,2)} op_sel:[1,1,0] op_sel_hi:[0,1,1] neg_lo:[0,1,0]")

gW2D, gW2A, gL16, gSY, gONE, gXA, gWA, gSTA, gAGA, gAUG, gSTT, gH = 1, 5, 9, 12, 13, 80, 84, 88, 89, 90, 98, 14
sPW = 22
sGA, ZERO, VSY, VONE, _WD, sW2D, XTA, XTS, EW, CA, CBA, UW, TZ = 8, 30, 34, 35, 36, 40, 44, 46, 64, 65, 66, 67, 48

XR = 56
CLRL = f"buffer_load_dword v49, off, {S(sAUX,4)}, 0 sc1"
class Cap:
    def __init__(self): self.l = []
    def __call__(self, text, tag=None): self.l += [x for x in text.split("\n") if x.strip()]

def front(k, cfg):
    stamp(k, cfg, 0)
    k("s_load_dwordx16 s[28:43], s[0:1], 0\ns_load_dwordx16 s[44:59], s[0:1], 64")
    k("s_cmpk_ge_u32 s2, 256\ns_cbranch_scc1 L_end")
    k(f"s_lshr_b32 s{sJ}, s2, 3")
    if cfg.codepf:
        lp = k.lab("pc")
        k(f"s_getpc_b64 s[72:73]\n{lp}:\nv_and_b32 v2, 15, v0\nv_lshl_add_u32 v2, s{sJ}, 4, v2\nv_min_u32 v2, (L_end-{lp})/64, v2\nv_mov_b32 v3, 0")
        k(f"v_lshlrev_b32 v2, 6, v2\nv_lshl_add_u64 v[2:3], v[2:3], 0, s[72:73]\nglobal_load_dword v159, v[2:3], off", "code")
    k(f"s_sub_u32 s{sCP}, s2, 32\ns_cbranch_scc1 L_helper")
    k(f"v_and_b32 v1, 0xff, v0\nv_lshl_add_u32 v1, s{sCP}, 8, v1\nv_lshlrev_b32 v1, 2, v1\ns_lshl_b32 s{sSP}, s{sCP}, 2")
    if cfg.partner:
        k("v_xor_b32 v3, 0x1000, v1")
        if cfg.pmask2: k(f"v_lshrrev_b32 v2, 8, v0\nv_mul_u32_u24 v2, {cfg.pmask2}, v2\nv_xor_b32 v3, v2, v3")
    def ids():
        k("v_lshrrev_b32 v2, 6, v0\nv_and_b32 v0, 63, v0\nv_readfirstlane_b32 s3, v2")
        k(f"s_and_b32 s{sXCD}, s2, 7\ns_sub_u32 s{sJ}, s{sJ}, 4")
        k(f"s_mul_i32 s{sR}, s{sJ}, 37\ns_lshr_b32 s{sR}, s{sR}, 8\ns_mul_i32 s{sC}, s{sR}, 7\ns_sub_u32 s{sC}, s{sJ}, s{sC}")
        k(f"s_lshr_b32 s{sRB}, s{sXCD}, 1\ns_lshl2_add_u32 s{sRB}, s{sRB}, s{sR}")
        k(f"s_and_b32 s{sXH}, s{sXCD}, 1\ns_mul_i32 s{sFC}, s{sXH}, 7\ns_add_u32 s{sFC}, s{sFC}, s{sC}")
        k(f"s_lshl1_add_u32 s{sKAP}, s{sR}, s{sC}\ns_sub_u32 s{sT}, s{sKAP}, 7\ns_cselect_b32 s{sKAP}, s{sKAP}, s{sT}")
        k(f"s_bfe_u32 s{sCS}, s3, 0x10001\ns_and_b32 s{sCOL}, s3, 3\ns_lshl_b32 s{sM}, s{sCOL}, 12\ns_add_u32 s{sM}, s{sM}, {L_GB}")
    def offs(): x_offsets(k, XD); w1_offsets(k, WD)
    if cfg.prew >= 1: ids()
    if cfg.prew >= 2: offs()
    k("s_waitcnt lgkmcnt(0)")
    stamp(k, cfg, 1, 3)
    for i in range(2): k(f"global_load_dword v{AB+i}, v1, {S(pARE+2*i,2)} {cfg.pmod[0]}", "prm")
    k(f"s_load_dword s{sO1}, {S(pLDT,2)}, s{sSP}\ns_load_dword s{sO2}, {S(pDSK,2)}, s{sSP}")
    if cfg.partner:
        for i in range(2): k(f"global_load_dword v{157+i}, v3, {S(pARE+2*i,2)}", "pp")
    if cfg.prew < 1: ids()
    if cfg.prew == 1: offs()
    for i in range(2, 6): k(f"global_load_dword v{AB+i}, v1, {S(pARE+2*i,2)} {cfg.pmod[1]}", "prm2")
    if cfg.partner == 2:
        for i in range(2, 6): k(f"global_load_dword v157, v3, {S(pARE+2*i,2)}", "pp2")
    stamp(k, cfg, 2, 3)
    if cfg.prew < 1: offs()
    srd(k, sX, pX); srd(k, sW1, pW1); srd_const(k, sX, 1835008); srd_const(k, sW1, 1605632)
    k(f"s_mul_i32 s{sDO}, s{sRB}, 114688\ns_lshl_b32 s{sT}, s{sKAP}, 7\ns_add_u32 s{sDO}, s{sDO}, s{sT}")
    k(f"s_mul_i32 s{sDM}, s{sKAP}, 229376\ns_lshl_b32 s{sT}, s{sFC}, 8\ns_add_u32 s{sDM}, s{sDM}, s{sT}")
    k(f"s_xor_b32 s{sKM}, s3, 4\ns_mul_i32 s{sKM}, s{sKM}, 8704\ns_mov_b32 s47, 0x03020c0c")
    k(f"s_cmp_lt_u32 s3, 4\ns_cselect_b32 s47, 0x01000c0c, s47\ns_cselect_b32 s1, 0, 1")
    def c0issue(part="xw"):
        o = k.lab("c0")
        k(f"s_cmp_eq_u32 s1, 1\ns_cbranch_scc1 {o}")
        if "x" in part: stamp(k, cfg, 1, 7)
        for n, (g, t) in enumerate(chunk(cfg, 0, False)):
            if "xw"[n // 4] in part: k(g, "c0x" if n < 4 else t)
        if "w" in part: stamp(k, cfg, 2, 7)
        k(f"{o}:\ns_mov_b32 m0, s{sKM}" + (f"\n{ADV}" if "w" in part else ""))
    def role_wait(tag, n_s):
        o = k.lab("rw")
        k(f"s_cmp_eq_u32 s1, 0\ns_cbranch_scc1 {o}\ns_waitcnt vmcnt({n_s})\n{o}:")
        k.wait(vm=tag)
    if cfg.c0x == 1: c0issue()
    else: k(f"s_mov_b32 m0, s{sKM}")
    k(f"s_add_u32 s{sT}, s{sKM}, {L_KC}\nv_and_b32 v154, 31, v0\nv_lshrrev_b32 v155, 5, v0\nv_mul_u32_u24 v156, 272, v154\nv_lshl_add_u32 v156, v155, 4, v156\nv_add_u32 v{KR}, s{sT}, v156")
    k(f"s_mov_b32 s44, {fbits(8.0)}\ns_mov_b32 s45, {fbits(256.0)}\nv_mov_b32 v{PK}, 0x3f80\nds_write_addtid_b32 v{PK} offset:{L_KC}")
    k(f"s_mul_i32 s{sE3}, s{sCS}, {L_PCH}\ns_and_b32 s{sHH}, s3, 1\ns_mul_i32 s{sT}, s{sHH}, 3328\ns_add_u32 s{sE3}, s{sE3}, s{sT}\ns_add_u32 s{sE3}, s{sE3}, {L_PART}\nv_lshl_add_u32 v{PA}, v0, 4, s{sE3}")
    srd(k, sWS, pWS); srd_const(k, sWS, WSN)
    k(f"s_lshl1_add_u32 s{sG32}, s{sKAP}, s{sXH}")
    for i in range(4): k(f"v_mov_b32 v{ZERO+i}, 0")
    o = k.lab("g0"); j = k.lab("g1")
    k(f"s_cmp_eq_u32 s1, 1\ns_cbranch_scc1 {o}")
    setup_G(k, cfg, 0)
    k(f"s_branch {j}\n{o}:")
    for part in cfg.early: S_addresses(k, part)
    k(f"{j}:")
    Lhi = struct.unpack("<f", struct.pack("<f", LOG2E))[0]; Llo = LOG2E - Lhi
    k(f"v_mov_b32 v154, {fbits(Lhi)}\nv_mov_b32 v149, {fbits(Llo)}\ns_lshl_b32 s{sT}, s{sCS}, 4")
    stamp(k, cfg, 3, 3)
    k("s_waitcnt lgkmcnt(0)"); k.lg = []
    k(f"s_lshr_b32 s{sO1}, s{sO1}, s{sT}\ns_lshl_b32 s{sO1}, s{sO1}, 16")
    k(f"v_mul_f32 v155, s{sO1}, v154\nv_fma_f32 v156, s{sO1}, v154, -v155\nv_fmac_f32 v156, s{sO1}, v149")
    k(f"v_exp_f32 v155, v155\nv_mul_f32 v156, {fbits(0.6931471805599453)}, v156\nv_fmac_f32 v155, v155, v156\nv_cvt_pk_bf16_f32 v155, v155, v155\nv_and_b32 v{DT+2}, 0xffff0000, v155")
    k(f"v_mul_f32 v{DT}, v154, v{DT+2}\nv_mul_f32 v{DT+1}, 0.15915494, v{DT+2}")
    stamp(k, cfg, 1); stamp(k, cfg, 4, 3)
    if cfg.c0x == 1: role_wait("prm", (4, 6, 10)[cfg.partner])
    else: k.wait(vm="prm")
    stamp(k, cfg, 2); stamp(k, cfg, 5, 3)
    if cfg.c0x == 2: c0issue('x' if cfg.c0wat else 'xw')
    def xt_read():
        stamp(k, cfg, 3, 7)
        k.wait(vm="c0x")
        stamp(k, cfg, 4, 7)
        k(f"ds_read_b64_tr_b16 {V(XR,2)}, v{XTA}\nds_read_b64_tr_b16 {V(XR+2,2)}, v{XTA+1} offset:512")
        k(f"ds_read_b64_tr_b16 {V(XR+4,2)}, v{XTA+1}\nds_read_b64_tr_b16 {V(XR+6,2)}, v{XTA} offset:512")
    def xt_store():
        for g in (0, 1): k(f"buffer_store_dwordx4 {V(XR+4*g,4)}, v{XTS}, {S(sWS,4)}, s{sE1+g} offen sc1", "xts")
    nv = [0]; pend = []
    def put(z, row, neg, last=False):
        p = PK + row % 4
        k(f"v_cvt_pk_bf16_f32 v{p}, v{z}, {'-' if neg else ''}v{z+1}")
        w = f"ds_write_addtid_b32 v{p} offset:{L_KC + 272*row}"
        if cfg.kdelay:
            if pend: k(pend.pop())
            pend.append(w)
            if last or row == 31: k(pend.pop())
        elif not cfg.x_nokw: k(w)
        nv[0] += 1
        if nv[0] == cfg.c0wat: c0issue("w")
        if nv[0] in cfg.xtat:
            o = k.lab("g"); sl = list(k.lg)
            k(f"s_cmp_eq_u32 s1, 1\ns_cbranch_scc1 {o}")
            if nv[0] == cfg.xtat[0]: xt_read(); sl[-1] = "xt"
            else: k.wait(lg="xt"); xt_store()
            k(f"{o}:"); k.lg = sl
        if nv[0] == cfg.touch:
            o = k.lab("g")
            k(f"s_cmp_eq_u32 s1, 1\ns_cbranch_scc1 {o}")
            for n in range(4): k(f"buffer_load_dword v159, v{WD+n}, {S(sW1,4)}, s{sDM} offen offset:{n*1024}", "touch")
            if cfg.w2touch == 3:
                srd(k, sW2, pW2); srd_const(k, sW2, 1605632)
                k(f"s_lshl2_add_u32 s{sT}, s{sCP}, s{sCOL}\ns_mul_i32 s{sT}, s{sT}, 1792\nv_mul_u32_u24 v158, 28, v0\nbuffer_load_dword v159, v158, {S(sW2,4)}, s{sT} offen", "touch")
            k(f"{o}:")
    for i in (0, 1): k(f"v_perm_b32 v{AB+i}, v{AB+i}, v{AB+i}, s47")
    k(f"v_pk_mul_f32 {V(X1,2)}, {V(AB,2)}, {V(DT,2)}")
    k(f"v_pk_mul_f32 {V(X8,2)}, {V(X1,2)}, s[44:45] op_sel_hi:[1,0]\nv_pk_mul_f32 {V(X256,2)}, {V(X1,2)}, s[44:45] op_sel:[0,1] op_sel_hi:[1,1]")
    for x in (X8, X1, X256): k(f"v_fract_f32 v{x+1}, v{x+1}")
    for x, w in ((X8, W8), (X1, W1), (X256, W256)):
        k(f"v_exp_f32 v{x}, v{x}\nv_cos_f32 v{w}, v{x+1}\nv_sin_f32 v{w+1}, v{x+1}")
    for x, w in ((X8, W8), (X1, W1), (X256, W256)):
        k(f"v_pk_mul_f32 {V(w,2)}, {V(w,2)}, {V(x,2)} op_sel_hi:[1,0]")
    if cfg.c0wat == -1: c0issue("w")
    stamp(k, cfg, 6, 3)
    put(W8, 1, False)
    prev = W8
    for b in range(2, 32):
        cmul(k, Z0, prev, W8, TT); prev = Z0; put(Z0, b, False)
    stamp(k, cfg, 7, 3)
    for s in range(8): k(f"ds_read_b128 {V(VF+4*s,4)}, v{KR} offset:{32*s}", "vf")
    role_wait("prm2", 4 if cfg.partner == 2 else 0)
    for i in range(2, 6): k(f"v_perm_b32 v{AB+i}, v{AB+i}, v{AB+i}, s47")
    cmul(k, Z1, BB, CB, TT)
    k(f"v_pk_mul_f32 {V(Z1,2)}, {V(Z1,2)}, {V(DT+2,2)} op_sel_hi:[1,0]")
    put(Z1, 0, True)
    cmul(k, W2, W1, W1, TT); cmul(k, W4, W2, W2, TT)
    prev = Z1
    for a in range(1, 21):
        if a in (8, 12, 14) or a >= 16: cmul(k, Z1, Z1, W256, TT); prev = Z1
        else: cmul(k, Z0, prev, W1 if a < 8 else (W2 if a < 12 else W4), TT); prev = Z0
        put(prev, a, True, a == 20)
    stamp(k, cfg, 8, 3)
    for s in range(8): k(f"ds_read_b128 {V(UF+4*s,4)}, v{KR} offset:{32*s}", f"uf{s}")
    kmf = lambda s: f"v_mfma_f32_32x32x16_bf16 {V(KA,16)}, {V(UF+4*s,4)}, {V(VF+4*s,4)}, {'0' if s == 0 else V(KA,16)}"
    c1 = chunk(cfg, 1)
    o = k.lab("c1"); sl = list(k.lg); sv = list(k.vm)
    k("s_cmp_eq_u32 s1, 1\ns_cbranch_scc1 L_S")
    def s_tail():
        k.lg = list(sl); k.vm = []
        for s in range(8):
            k.wait(lg=f"uf{s}")
            k(kmf(s))
            if s % 2 == 0: k(*c1[4 + s//2])
            if s == 1: srd(k, sAUX, pDBG); srd_const(k, sAUX, 256)
            if s == 3: k(f"v_mov_b32 v{VSY}, {L_SY}\nv_mov_b32 v{VONE}, 1\ns_movk_i32 s50, 128\ns_mov_b32 s51, 229376")
        stamp(k, cfg, 9, 3); stamp(k, cfg, 3); stamp(k, cfg, 7, 7)
        if cfg.pages and "g1" in cfg.warm: k.warm("g1")
        k("s_barrier")
    k.s_tail = s_tail
    cap = Cap(); setup_G(cap, cfg, 1)
    for _ in range(12): k(cap.l.pop(0))
    for s in range(8):
        k.wait(lg=f"uf{s}")
        k(kmf(s))
        if s == 7 and cfg.pages: k.page("g1")
        for _ in range(5): k(cap.l.pop(0))
    stamp(k, cfg, 9, 3)
    for _ in range(8): k(cap.l.pop(0))
    k(f"v_add_f32 v{KA}, v{KA}, v{DSK}")
    for r in (1, 2, 0): k(f"ds_write_b128 v{PA}, {V(KA+4*r,4)} offset:{1024*r}")
    if cfg.xtat[0] > 52: xt_read(); k.wait(lg="*"); xt_store()
    stamp(k, cfg, 5, 7)
    for n in range(4): k(*c1[n])
    stamp(k, cfg, 6, 7)
    while cap.l: k(cap.l.pop(0))
    k.wait(vm="c0")
    stamp(k, cfg, 7, 7)
    stamp(k, cfg, 3)
    stamp(k, cfg, 10, 3)
    k("s_barrier")
    stamp(k, cfg, 11, 3); stamp(k, cfg, 8, 7)

XD, WD, sXH = 150, 132, sJ
ADV = (f"s_add_u32 s{sDO}, s{sDO}, 128\ns_add_u32 s{sDM}, s{sDM}, 229376\ns_cmp_ge_u32 s{sDM}, 1605632\ns_cselect_b32 s{sDT}, 896, 0\n"
       f"s_cselect_b32 s{sDT2}, 1605632, 0\ns_sub_u32 s{sDO}, s{sDO}, s{sDT}\ns_sub_u32 s{sDM}, s{sDM}, s{sDT2}")
def chunk(cfg, c, adv=True):
    out = []
    for vd, srdr, so, slots in ((XD, sX, sDO, L_XS), (WD, sW1, sDM, L_WS)):
        o = [f"buffer_load_dwordx4 v{vd+n}, {S(srdr,4)}, s{so} offen offset:{n*1024} lds" for n in range(4)]
        o[0] = f"s_add_u32 m0, s{sM}, {slots[c % 3]}\n" + o[0]
        out += o
    if adv and c == 1: out[-1] += "\n" + ADV
    if adv and 1 < c < 6:
        out[4] += f"\ns_cmp_ge_u32 s{sDM}, {6*229376}\ns_cselect_b32 s{sDT}, -768, s50\ns_cselect_b32 s{sDT2}, {-6*229376}, s51\ns_add_u32 s{sDO}, s{sDO}, s{sDT}"
        out[7] += f"\ns_add_u32 s{sDM}, s{sDM}, s{sDT2}"
    return [(g, f"c{c}") for g in out]

def setup_G(k, cfg, part):
    if part == 0:
        k(f"v_lshrrev_b32 v{gH}, 5, v0\nv_and_b32 v15, 31, v0")
        k(f"s_lshl_b32 s{sT}, s{sHH}, 13\ns_add_u32 s{sT}, s{sT}, {L_GB+L_XS[2]}")
        k(f"v_bfe_u32 v13, v0, 1, 3\nv_xor_b32 v12, v13, v{gH}\nv_lshlrev_b32 v12, 4, v12\nv_lshl_add_u32 v12, v15, 7, v12\nv_add_u32 v{gXA}, s{sT}, v12")
        for s in (1,2,3): k(f"v_xor_b32 v{gXA+s}, {32*s}, v{gXA}")
        k(f"v_lshrrev_b32 v50, 4, v0\nv_and_b32 v54, 1, v0\nv_lshlrev_b32 v53, 13, v13\nv_lshl_add_u32 v53, v50, 4, v53\nv_lshl_add_u32 v{XTS}, v54, 6, v53")
        k(f"v_bfe_u32 v10, v0, 2, 2\nv_and_b32 v11, 3, v0\nv_lshlrev_b32 v11, 3, v11\nv_and_b32 v12, 16, v0\nv_lshl_add_u32 v11, v12, 1, v11")
        k(f"s_and_b32 s{sT}, s3, 2\nv_xor_b32 v12, s{sT}, v10\nv_lshl_add_u32 v12, v12, 6, v11")
        k(f"v_lshl_add_u32 v13, v{gH}, 3, v10\nv_lshl_add_u32 v12, v13, 8, v12\nv_add_u32 v{gWA}, {L_GB+L_WS[0]}, v12\nv_xor_b32 v{gWA+1}, 64, v{gWA}\nv_add_u32 v{gWA+2}, {L_GB+L_WS[2]}, v12\nv_xor_b32 v{gWA+3}, 64, v{gWA+2}")
        k(f"s_lshl_b32 s{sT}, s{sXH}, 2\nv_lshl_add_u32 v52, v50, 3, v10")
        k(f"v_bfe_u32 v53, v0, 1, 1\nv_or_b32 v53, s{sT}, v53\nv_bfe_u32 v51, v52, 1, 3\nv_xor_b32 v53, v53, v51\nv_lshlrev_b32 v53, 4, v53")
        k(f"s_add_u32 s{sT}, s{sM}, {L_XS[0]}\nv_lshl_add_u32 v53, v52, 7, v53\nv_lshl_add_u32 v53, v54, 3, v53\nv_add_u32 v{XTA}, s{sT}, v53\nv_xor_b32 v{XTA+1}, 32, v{XTA}")
        k(f"s_lshl_b32 s{sT}, s{sG32}, 8\ns_add_u32 s{sT}, s{sT}, s{sRB}\ns_lshl2_add_u32 s{sT}, s{sT}, s{sCOL}\ns_lshl_b32 s{sT}, s{sT}, 7\ns_add_u32 s{sE1}, s{sT}, {XT}\ns_add_u32 s{sE2}, s{sE1}, 65536")
        k(f"s_mul_i32 s{sT}, s3, 4576\ns_cmp_ge_u32 s3, 2\ns_cselect_b32 s{sT}, {L_SY}, s{sT}\ns_sub_u32 s{sT2}, s{sE3}, 16")
        k(f"v_min_u32 v156, 29, v0\nv_lshl_add_u32 v156, v156, 4, s{sT}\nv_mov_b32 v155, s{sT2}\nv_cmp_eq_u32 vcc, 0, v{gH}\ns_nop 1\nv_cndmask_b32 v156, v155, v156, vcc\nds_write_b128 v156, {V(ZERO,4)}")
        return
    k(f"s_lshl_b32 s{sT}, s{sCS}, 4\ns_lshr_b32 s{sO2}, s{sO2}, s{sT}\ns_lshl_b32 s{sO2}, s{sO2}, 16\ns_cmp_eq_u32 s{sHH}, 0\ns_cselect_b32 s{sO2}, s{sO2}, 0")
    k(f"v_mov_b32 v154, s{sO2}\nv_cmp_eq_u32 vcc, 0, v0")
    srd(k, sW2, pW2); srd_const(k, sW2, 1605632)
    k(f"v_cndmask_b32 v{DSK}, 0, v154, vcc")
    w2_bases(k, cfg); w2_offsets(k, gW2D)
    if cfg.g16:
        k(f"v_lshl_add_u32 v13, v{gH}, 2, v10\nv_and_b32 v12, 16, v0\nv_add_u32 v13, v13, v12\nv_and_b32 v12, 24, v11\nv_lshl_add_u32 v12, v13, 7, v12\nv_bfe_u32 v13, v0, 3, 2\nv_lshl_add_u32 v12, v13, 5, v12")
        k(f"v_add_u32 v{gW2A}, s{sM}, v12")
        for i in (1, 2, 3): k(f"v_xor_b32 v{gW2A+i}, {32*i}, v{gW2A}")
    else:
        k(f"v_lshl_add_u32 v13, v{gH}, 2, v10\nv_lshl_add_u32 v12, v13, 7, v11\nv_lshrrev_b32 v13, 1, v10\nv_lshl_add_u32 v12, v13, 6, v12")
        k(f"v_add_u32 v{gW2A}, s{sM}, v12\nv_xor_b32 v{gW2A+1}, 64, v{gW2A}\nv_add_u32 v{gW2A+2}, 65536, v{gW2A}\nv_add_u32 v{gW2A+3}, 65536, v{gW2A+1}")
    k(f"s_mul_i32 s{sT}, s{sCS}, 768\ns_add_u32 s{sT}, s{sT}, {L_GS}\nv_lshl_add_u32 v13, v15, 3, s{sT}\nv_cmp_eq_u32 vcc, 0, v{gH}")
    k(f"s_mul_i32 s{sT}, s{sHH}, 768\ns_add_u32 s{sT}, s{sT}, {L_GS+256}\nv_cndmask_b32 v{gAGA}, 0, v13, vcc\nv_lshl_add_u32 v{gSTA}, v15, 2, s{sT}")
    k(f"v_lshlrev_b32 v{gL16}, 4, v0\nv_mov_b32 v{gSY}, {L_SY}\nv_mov_b32 v{gONE}, 1\nv_lshl_add_u32 v10, s{sCOL}, 2, v{gSY}")
    k(f"s_lshl1_add_u32 s{sE0}, s{sRB}, s{sHH}\ns_lshl1_add_u32 s{sXO}, s{sFC}, s{sCS}")
    k(f"s_lshl1_add_u32 s{sWO}, s{sE0}, s{sCS}\ns_lshl1_add_u32 s{sWO}, s{sWO}, s{sXH}\ns_lshr_b32 s{sT}, s{sC}, {1 if cfg.aspread == 4 else 3}\ns_lshl2_add_u32 s{sWO}, s{sWO}, s{sT}\ns_lshl_b32 s{sWO}, s{sWO}, 7\ns_add_u32 s{sWO}, s{sWO}, {ACNT}")
    k(f"s_lshl_b32 s{sXO}, s{sXO}, 13\ns_mul_i32 s{sT}, s{sE0}, 229376\ns_add_u32 s{sXO}, s{sXO}, s{sT}\ns_add_u32 s{sXO}, s{sXO}, {ACT}\ns_add_u32 s{sE3}, s{sXO}, 4096")

def gather_addresses(k, part):
    if part == 1:
        k(f"s_mul_i32 s48, s{sCS}, {L_PCH//132*32}\ns_add_u32 s48, s48, {L_PART//132*32}")
        k(f"v_lshl_add_u32 v50, s{sHH}, 6, v0\ns_add_u32 s{sT}, s48, {255+384}\nv_sub_u32 v2, s{sT}, v50\nv_add_u32 v3, 1, v2\nv_cmp_eq_u32 vcc, 127, v50")
        k(f"v_lshlrev_b32 v50, 3, v50\nv_sub_u32 v50, 1023, v50\nv_subbrev_co_u32 v4, vcc, 0, v2, vcc")
        for e in range(3): k(f"v_lshrrev_b32 v5, 5, v{2+e}\nv_add_lshl_u32 v{sGA+11+e}, v{2+e}, v5, 2")
        k(f"s_sub_u32 s{sT}, s48, 0x4300")
        k(f"v_cvt_f32_i32 v51, v50\nv_add_u32 v50, s{sT}, v50\ns_sub_u32 s{sT2}, s{sT}, 1\nv_mov_b32 v52, s{sT2}\ns_add_u32 s{sT}, s{sT}, 128\ns_mov_b32 s{sT2}, {fbits(128.0)}")
    for n in {0: [], 1: [0, 2], 2: [4, 6, 8, 10]}[part]:
        es = (0, 1) if n < 10 else (0,)
        for e in es:
            k(f"v_subrev_f32 v{2+e}, {fbits(float(n+e))}, v51\nv_max_f32 v{2+e}, s{sT2}, v{2+e}\nv_subrev_u32 v{4+e}, {n+e}, v50\nv_med3_i32 v{4+e}, v{4+e}, v52, s{sT}")
        k(f"v_cvt_pk_bf16_f32 v2, v2, v3")
        for e in es:
            k(f"v_add_u32_sdwa v{4+e}, v{4+e}, v2 dst_sel:DWORD dst_unused:UNUSED_PAD src0_sel:DWORD src1_sel:WORD_{e}")
            k(f"v_lshrrev_b32 v3, 5, v{4+e}\nv_add_lshl_u32 v{sGA+n+e}, v{4+e}, v3, 2")
    if part == 0:
        k(f"v_and_b32 v50, 31, v0\nv_lshrrev_b32 v51, 5, v0")
        k(f"v_lshlrev_b32 v2, 3, v50\nv_lshl_add_u32 v2, v51, 2, v2\nv_sub_u32 v3, 2, v51\nv_lshlrev_b32 v3, v3, v50\nv_lshl_add_u32 v3, v51, 7, v3\nv_add_u32 v3, 256, v3")
        k(f"v_lshl_add_u32 v4, v51, 7, v50\nv_add_u32 v4, 512, v4")
        for e, d in ((0, 0), (1, 1), (2, 3)): k(f"v_lshrrev_b32 v5, 5, v{2+e}\nv_add_u32 v5, v5, v{2+e}\nv_lshl_add_u32 v{sPW+d}, v5, 2, s{sE3}")
        k(f"v_lshl_add_u32 v{sPW+2}, v51, 8, v{sPW+1}")

RS = [0]
JSETS = (([7, 6, 0], [5, 4, 3, 2, 1]), ([7, 6, 1], [5, 4, 3, 2, 0]), ([7, 6, 2], [5, 4, 1, 0, 3]))
vXC, vST, vXW, vODD, vGA, vGW, vSC = 26, 27, 28, 29, 36, 37, 38
def S_addresses(k, part):
    sWV = sCOL
    if part < 3: gather_addresses(k, part)
    if part == 3:
        k(f"s_mul_i32 s{sT}, s{sCS}, 16640\ns_add_u32 s{sT}, s{sT}, {L_KC}\ns_lshl_b32 s{sT2}, s{sHH}, 10\ns_add_u32 s{sT2}, s{sT2}, s{sT}\nv_lshl_add_u32 v{EW}, v0, 4, s{sT2}")
        k(f"v_bfe_u32 v2, v0, 1, 2\nv_mul_u32_u24 v2, 4160, v2\nv_and_b32 v{vODD}, 1, v0\nv_lshl_add_u32 v2, v{vODD}, 4, v2\nv_add_u32 v{TZ}, s{sT}, v2")
        k(f"s_lshr_b32 s{sT}, s{sCP}, 4\ns_lshl_b32 s{sT}, s{sT}, 2\ns_add_u32 s{sT}, s{sT}, {C_XT}\ns_lshl_b32 s{sT}, s{sT}, 7\nv_and_b32 v2, 3, v0\nv_lshl_add_u32 v{vXC}, v2, 7, s{sT}")
        k(f"s_lshl_b32 s{sT}, s{sCP}, 13\ns_add_u32 s{sT}, s{sT}, {XT}\nv_lshl_add_u32 v2, s{sWV}, 6, v0\nv_and_b32 v3, 0xfc, v2\nv_add_u32 v3, v3, v2\nv_lshl_add_u32 v{vXW}, v3, 4, s{sT}\nv_lshlrev_b32 v{vST}, 4, v2\nv_add_u32 v{UW}, {L_U+480}, v{vST}")
        k(f"s_mov_b32 s{sXO}, {STATS}\ns_mov_b32 s{sWO}, {STATS+4096}")
    if part == 4:
        k(f"s_lshl_b32 s{sT}, s{sFC}, 2\ns_add_u32 s{sT}, s{sT}, s{sWV}\ns_lshl_b32 s{sT}, s{sT}, 8\ns_add_u32 s{sT}, s{sT}, {AUGW}\nv_lshl_add_u32 v3, v0, 4, s{sT}")
        k(f"s_lshl_b32 s{sT}, s{sRB}, 2\ns_add_u32 s{sT}, s{sT}, s{sWV}\ns_lshl_b32 s{sT}, s{sT}, 6\ns_add_u32 s{sT}, s{sT}, {STATS}\nv_lshl_add_u32 v4, v{vODD}, 12, s{sT}")
        k(f"v_bfe_u32 v2, v0, 1, 2\nv_lshl_add_u32 v4, v2, 4, v4\nv_cmp_gt_u32 vcc, 16, v0\ns_mul_i32 s{sE0}, s{sWV}, 384\ns_add_u32 s{sE0}, s{sE0}, {L_GS}\nv_cndmask_b32 v{vGA}, v4, v3, vcc")
        k(f"v_min_u32 v2, 23, v0\nv_lshl_add_u32 v{vGW}, v2, 4, s{sE0}")
        w2_offsets(k, sW2D)
    if part == 7:
        k(f"v_bfe_u32 v53, v0, 2, 2\nv_lshlrev_b32 v53, 7, v53\nv_and_b32 v54, 3, v0\nv_lshl_add_u32 v53, v54, 4, v53\nv_lshrrev_b32 v54, 5, v0\nv_lshl_add_u32 v53, v54, 6, v53")
        k(f"v_bfe_u32 v54, v0, 4, 1\nv_lshl_add_u32 v54, v54, 9, v53")
        k(f"s_lshl_b32 s{sO1}, s{sCP}, 1\ns_add_u32 s{sO1}, s{sO1}, s{sCS}")
        k(f"s_lshr_b32 s{sT}, s{sO1}, 6\ns_lshl_b32 s{sT}, s{sT}, 1\ns_add_u32 s{sT}, s{sT}, s{sHH}\ns_lshl_b32 s{sT}, s{sT}, 2\ns_bfe_u32 s{sT2}, s{sO1}, 0x20004")
        k(f"s_add_u32 s{sT}, s{sT}, s{sT2}\ns_add_u32 s{sT}, s{sT}, {C_ST}\ns_lshl_b32 s{sO2}, s{sT}, 7")
        k(f"s_lshl_b32 s{sO1}, s{sO1}, 12\ns_add_u32 s{sO1}, s{sO1}, {ST}")
    if part == 6:
        srd(k, sW2, pW2); srd_const(k, sW2, 1605632); srd(k, sOUT, pOUT); srd_const(k, sOUT, 1835008)
        w2_bases(k, None)
    if part == 5:
        k(f"s_mul_i32 s{sT}, s{sCS}, 16640\ns_add_u32 s{sT}, s{sT}, {L_KC+24}" + (f"\ns_lshl_b32 s{sT2}, s{sHH}, 8\ns_sub_u32 s{sT}, s{sT}, s{sT2}" if RS[0] else ""))
        k(f"v_and_b32 v2, 3, v0\nv_sub_u32 v2, 3, v2\nv_mul_u32_u24 v2, 4160, v2\nv_bfe_u32 v3, v0, 2, 2\nv_lshlrev_b32 v3, 3, v3\nv_sub_u32 v2, v2, v3")
        k(f"v_lshrrev_b32 v3, 4, v0\nv_lshl_add_u32 v2, v3, 4, v2\nv_add_u32 v{CA}, s{sT}, v2")
        k(f"s_mul_i32 s{sT}, s{sCS}, 4576\ns_add_u32 s{sT}, s{sT}, {L_U+256*RS[0]}" + (f"\ns_sub_u32 s{sT}, s{sT}, s{sT2}" if RS[0] else ""))
        k(f"v_and_b32 v2, 15, v0\nv_lshlrev_b32 v2, 5, v2\nv_lshl_add_u32 v2, v3, 4, v2\nv_add_u32 v{CBA}, s{sT}, v2")
        k(f"v_lshl_add_u32 v{vSC}, s{sWV}, 2, v{VSY}")

def gen_G(k, cfg):
    ACC, W2R, RING = 16, 80, 192
    FS = [100, 116, 132]
    W2D, W2A, L16, XA, WA, AUG, STT = gW2D, gW2A, gL16, gXA, gWA, gAUG, gSTT
    RC, RL, T, P = 240, 244, 248, 208
    assert cfg.depth <= 6
    k("s_setprio 2")
    stamp(k, cfg, 1, 2); cstamp(k, cfg, 10)
    def w2read(step, dst_step):
        b = step // 2; loc = LOC[b % 7]*16384 + (step & 1)*2048; hi = 2 if loc >= 65536 else 0; loc -= hi*32768
        out = []
        if cfg.g16:
            loc = LOC[b % 7]*16384 % 65536
            return [f"ds_read_b64_tr_b16 {V(W2R + dst_step*8 + d2*4 + rd*2, 2)}, v{(240 if hi else W2A) + 2*(step & 1) + d2} offset:{loc + rd*1024}" for d2 in (0, 1) for rd in (0, 1)]
        for d2 in (0, 1):
            for rd in (0, 1):
                out.append(f"ds_read_b64_tr_b16 {V(W2R + dst_step*8 + d2*4 + rd*2, 2)}, v{W2A+hi+d2} offset:{loc + rd*1024}")
        return out
    def reads(i):
        c, s, F = i // 4, i % 4, FS[i % 3]; sl = c % 3
        wa, wo = (WA, L_WS[sl] - L_WS[0]) if sl < 2 else (WA + 2, 0)
        w = lambda ft: [f"ds_read_b64_tr_b16 {V(F+8+4*ft+2*rd,2)}, v{wa+ft} offset:{wo + s*4096 + rd*1024}" for rd in (0, 1)]
        x = [f"ds_read_b128 {V(F+4*tt,4)}, v{XA+s} offset:{L_XS[sl] - L_XS[2] + tt*4096}" for tt in (0, 1)]
        return w(0) + x + w(1)
    dq = []
    cap = Cap()
    for i in (0, 1):
        for r in reads(i): k(r, f"f{i}")
    for i in range(28):
        F = FS[i % 3]
        rd = reads(i+2) if i + 2 < 28 else []
        edge = rd and (i + 2) % 4 == 0
        gaps = [[], rd[:3], rd[3:], []] if edge else [rd[:2], rd[2:4], rd[4:], []]
        k.wait(lg=f"f{i}")
        for m in range(4):
            ft, tt = m >> 1, m & 1; a = ACC + 16*m
            k(f"v_mfma_f32_32x32x16_bf16 {V(a,16)}, {V(F+8+4*ft,4)}, {V(F+4*tt,4)}, {'0' if i == 0 else V(a,16)}")
            if edge and m == 1:
                c = (i+2)//4
                if c == 1: stamp(k, cfg, 9, 7)
                k.wait(vm={1: "c1", cfg.xtbar: "*"}.get(c), lg="*")
                if c == 1: stamp(k, cfg, 10, 7)
                if not cfg.x_nobar: k("s_barrier")
                stamp(k, cfg, 1 + c, 2)
                if c == 1: stamp(k, cfg, 11, 7)
                dq += [x for b in (2*c-10, 2*c-9) if int(cfg.sblk) <= b < cfg.gblk and not cfg.sall for x in w2dma(ORD[b], W2D)]
            if dq and i >= cfg.w2from and m in (3, 0 if (edge or i >= 26) else 1): g, t = dq.pop(0); k(g, t)
            for r in gaps[m]: k(r, f"f{i+2}")
            if m == 3:
                for _ in range(4):
                    if cap.l: k(cap.l.pop(0))
                assert i < 18 or not cap.l
            if i == 26 and m == 1:
                k.wait(lg="*"); k("s_barrier")
                if cfg.sblk and not cfg.s45: dq += w2dma(ORD[4], W2D)
                for tt in (0, 1): k(f"ds_read_b32 v{STT+tt}, v{gSTA} offset:{384*tt}", "st")
            if i == 26 and m == 2:
                for ft in (0, 1): k(f"ds_read_b64 {V(AUG+4+2*ft,2)}, v{gAGA} offset:{384*ft}", "ag")
            if i == 27 and m == 0: k(f"s_mov_b32 s50, {fbits(-15.0)}\ns_mov_b32 s44, {fbits(2.0**-15)}\ns_mov_b32 s45, {fbits(2.0**-30)}")
            if i == 27 and m == 1: k.wait(lg="*")
            if i == 27 and m in (1, 2):
                tt = m - 1
                k(f"s_mov_b32 s{sT}, 0x01000100\nv_and_b32 v11, 0xffff0000, v{STT+tt}\nv_rcp_f32 v{RC+2*tt}, v11")
                k(f"v_perm_b32 v{AUG+2*tt}, v{STT+tt}, v{STT+tt}, s{sT}\nv_lshrrev_b32 v{AUG+2*tt+1}, 16, v{STT+tt}")
            if i == 27 and m == 3:
                for tt in (0, 1): k(f"v_mul_f32 v{RC+2*tt+1}, {fbits(-2.0**-29) if cfg.rshare else '-2.0'}, v{RC+2*tt}\nv_mul_f32 v{RL+tt}, {fbits(LOG2E)}, v{RC+2*tt}")
    for m in range(4):
        ft, tt = m >> 1, m & 1; a = ACC + 16*m
        k(f"v_mfma_f32_32x32x8_bf16 {V(a,16)}, {V(AUG+4+2*ft,2)}, {V(AUG+2*tt,2)}, {V(a,16)}")
        if dq: g, t = dq.pop(0); k(g, t)
    assert not dq
    if cfg.pages: k.page("mish")
    stamp(k, cfg, 4); stamp(k, cfg, 8, 2); cstamp(k, cfg, 11)
    stq = []
    assert cfg.b8at % 2 == 0 and cfg.pbar2 == 0
    for g in range(8):
        if (cfg.mbar == 2 and 2*g == cfg.b8at) or (g and 2*g == cfg.pbar2): k("s_barrier")
        stamp(k, cfg, 1 + g, 6)
        m, sp = g >> 1, g & 1; ft, tt = m >> 1, m & 1; a = ACC + 16*m + 8*sp; p = P + 4*(g & 1)
        if cfg.rshare:
            U = 224; t = lambda i: V(T+2*i, 2); u = lambda i: V(U+2*i, 2)
            for i in range(4): k(f"v_pk_fma_f32 {t(i)}, {V(a+2*i,2)}, {V(RL,2)}, s[50:51] op_sel:[0,{tt},0] op_sel_hi:[1,{tt},0]")
            for i in range(8): k(f"v_exp_f32 v{T+i}, v{T+i} clamp")
            for i in range(4): k(f"v_pk_add_f32 {t(i)}, {t(i)}, s[44:45] op_sel_hi:[1,0]")
            for i in range(4): k(f"v_pk_fma_f32 {t(i)}, {t(i)}, {t(i)}, s[44:45] op_sel:[0,0,1] op_sel_hi:[1,1,1]")
            k(f"v_pk_mul_f32 {u(0)}, {t(0)}, {t(1)}\nv_pk_mul_f32 {u(1)}, {t(2)}, {t(3)}\nv_pk_mul_f32 {u(2)}, {u(0)}, {u(1)}")
            k(f"v_rcp_f32 v{U+4}, v{U+4}\nv_rcp_f32 v{U+5}, v{U+5}")
            for i in (0, 1): k(f"v_pk_mul_f32 {u(i)}, {u(i)}, {V(RC+2*tt,2)} op_sel:[0,1] op_sel_hi:[1,1]") if False else None
            k(f"v_pk_mul_f32 {u(2)}, {u(2)}, {V(RC+2*tt,2)} op_sel:[0,1] op_sel_hi:[1,1]")
            k(f"v_pk_mul_f32 {u(1)}, {u(1)}, {u(2)}\nv_pk_mul_f32 {u(0)}, {u(0)}, {u(2)}")
            for i in range(4): k(f"v_pk_fma_f32 {t(i)}, {t(i)}, {u(1 - (i >> 1))}, {V(RC+2*tt,2)} op_sel_hi:[1,1,0]")
        else:
            for i in range(4): k(f"v_pk_mul_f32 {V(T+2*i,2)}, {V(a+2*i,2)}, {V(RL,2)} op_sel:[0,{tt}] op_sel_hi:[1,{tt}]")
            for i in range(8): k(f"v_exp_f32 v{T+i}, v{T+i}")
            for i in range(4): k(f"v_pk_add_f32 {V(T+2*i,2)}, {V(T+2*i,2)}, 1.0 op_sel_hi:[1,0]")
            for i in range(4): k(f"v_pk_fma_f32 {V(T+2*i,2)}, {V(T+2*i,2)}, {V(T+2*i,2)}, 1.0 op_sel_hi:[1,1,0]")
            if (cfg.mbar == 2 and 2*g + 1 == cfg.b8at) or 2*g + 1 == cfg.pbar2: k("s_barrier")
            for i in range(8): k(f"v_rcp_f32 v{T+i}, v{T+i}")
            for i in range(4): k(f"v_pk_fma_f32 {V(T+2*i,2)}, {V(T+2*i,2)}, {V(RC+2*tt,2)}, {V(RC+2*tt,2)} op_sel:[0,1,0] op_sel_hi:[1,1,0]")
        sw = 1 if cfg.rshare else 0
        for i in range(4): k(f"v_pk_mul_f32 {V(T+2*i,2)}, {V(T+2*i,2)}, {V(a+2*(i^sw),2)}")
        if g == 7 and cfg.mbar: k("s_barrier")
        if g == 7 and not cfg.mbar:
            lds_signal(k, 10, SY_M, gONE)
            if cfg.sblk: k(f"ds_read_b32 v11, v{gSY} offset:{SY_U}", "w2r1")
        p = RING + 4*((4*ft + 2*tt + sp) if cfg.g16 else (2*(2*ft + sp) + tt))
        for i in range(4): k(f"v_cvt_pk_bf16_f32 v{p+(i^sw)}, v{T+2*i}, v{T+2*i+1}")
        stq.append(f"buffer_store_dwordx4 {V(p,4)}, v{L16}, {S(sWS,4)}, s{sXO if ft == 0 else sE3} offen offset:{sp*2048 + tt*1024} sc1")
        if g in cfg.stat:
            while stq: k(stq.pop(0), "act")
    stamp(k, cfg, 5); stamp(k, cfg, 9, 6)
    k("s_setprio 3")
    k.wait(vm=f"w2_{ORD[3 if cfg.s45 else 4]}" if cfg.sblk else "w2_3")
    if cfg.g16:
        for i in range(4): k(f"v_add_u32 v{240+i}, 65536, v{W2A+i}")
    def rdblk(b):
        for s in (0, 1):
            for r in w2read(2*b+s, 2*b+s): k(r, f"w2r{b}")
    sSTO = sE0
    k(f"s_lshl_b32 s{sSTO}, s{sRB}, 1\ns_and_b32 s{sT}, s{sXCD}, 1\ns_add_u32 s{sSTO}, s{sSTO}, s{sT}")
    k(f"s_lshl_b32 s{sE1}, s{sSTO}, 2\ns_add_u32 s{sE1}, s{sE1}, s3\ns_lshl_b32 s{sE1}, s{sE1}, 9\ns_add_u32 s{sE1}, s{sE1}, {ACNT}\ns_add_u32 s48, s{pWS}, s{sE1}\ns_addc_u32 s49, s{pWS+1}, 0")
    apoll = "\n".join(f"s_load_dword s{52+i}, s[48:49], {128*i} glc" for i in range(cfg.aspread))
    asum = "".join(f"s_add_u32 s52, s52, s{52+i}\n" for i in range(1, cfg.aspread))
    blk = lambda b: [(r, f"w2r{b}") for s in (0, 1) for r in w2read(2*b+s, 2*b+s)]
    assert cfg.gblk == 4
    order = [4, 5, 7, 6, 8, 9, 10, 11, 12, 13]
    rq = blk(0) + blk(1) + blk(2) + blk(3)
    if cfg.sblk: order = [6, 7, 8, 9, 10, 11, 12, 13]; rq += blk(4) + blk(5)
    for n, b in enumerate(order):
        if b == 7 and not cfg.sblk: k(f"ds_read_b32 v11, v{gSY} offset:{SY_U}", "w2r1")
        if b == 6 and not cfg.mbar:
            k.wait(lg="w2r1")
            o = k.lab("wl"); sl = list(k.lg)
            k(f"v_readfirstlane_b32 s{sT}, v11\ns_cmp_ge_u32 s{sT}, 4\ns_cbranch_scc1 {o}")
            lds_spin(k, gSY, SY_U, 4, 11, sT, sSP)
            k(f"{o}:"); k.lg = sl
        if b in (9, 10, 11) and (b == 11 or not cfg.sblk):
            k.wait(vm=f"w2_{b-5}"); rq += blk(b-5)
        if b == 12: k(f"ds_read_b32 v11, v{gSY}"); k.wait(lg="w2r6")
        if b >= 7: k.wait(lg=f"w2r{b-7}")
        for g, t in w2dma(b, W2D):
            k(g, t)
            for _ in range(4 if (cfg.sblk and n == 0) else 2):
                if rq: k(*rq.pop(0))
        if n == cfg.flagat:
            k.wait(vm="act")
            s_inc(k, pWS, f"s{sWO}", sT2)
            stamp(k, cfg, 6)
        if cfg.g16 and 2 <= n < 6:
            for e in range(4): k(f"v_permlane16_swap_b32 v{RING+8*(n-2)+e}, v{RING+8*(n-2)+4+e}")
        if n == cfg.pollat: k(apoll)
    assert not rq
    assert order[cfg.pollat] >= 12
    k(f"s_and_b32 s{sT}, s3, 1\ns_mul_i32 s{sT}, s{sT}, 14\ns_add_u32 s{sT}, s{sT}, s{sCS}\ns_lshl_b32 s{sT}, s{sT}, 13\ns_mul_i32 s{sA2}, s{sSTO}, 229376\ns_add_u32 s{sA2}, s{sA2}, s{sT}\ns_add_u32 s{sA2}, s{sA2}, {ACT}")
    piece_bases(k, 16384)
    if cfg.g16: k(f"v_and_b32 v14, 47, v0\nv_lshlrev_b32 v14, 4, v14\nv_bfe_u32 v15, v0, 4, 1\nv_lshl_add_u32 v{L16}, v15, 11, v14")
    stamp(k, cfg, 7)
    if cfg.pages: k.page("g2")
    l = k.lab("ap"); o = k.lab("ar")
    k(f"s_mov_b32 s{sSP}, 0\n{l}:")
    k.wait(lg="*")
    k(f"{asum}s_add_u32 s{sSP}, s{sSP}, 1\ns_cmp_ge_u32 s52, 7\ns_cbranch_scc1 {o}\ns_cmp_gt_u32 s{sSP}, {SPIN}\ns_cbranch_scc1 {o}")
    if cfg.actsleep: k(f"s_sleep {cfg.actsleep}")
    k(f"{apoll}\ns_branch {l}\n{o}:")
    stamp(k, cfg, 8)
    k(f"s_setprio {cfg.g2prio}")
    if cfg.g16:
        D = 2*cfg.depth; n0 = 14 - cfg.tn
        assert n0 >= 8 + cfg.rl16
        seq = [(s, tt) for s in range(n0) for tt in range(4)] + [(s, tt) for tt in range(4) for s in range(n0, 14)]
        cur = [None]
        def actload(j):
            s, tt = seq[j]; out = []
            if s >= n0:
                if tt == 0: out.append(piece(s//2, 16384, (s & 1)*4096, 52 + s - n0))
                so = 52 + s - n0
            else:
                if cur[0] != s: cur[0] = s; out.append(piece(s//2, 16384, (s & 1)*4096, sT))
                so = sT
            out.append(f"buffer_load_dwordx4 {V(RING + (j % D)*4, 4)}, v{L16}, {S(sWS,4)}, s{so} offen offset:{(tt >> 1)*1024 + (tt & 1)*256} sc1")
            return "\n".join(out)
        stamp(k, cfg, 1, 5)
        o = k.lab("own")
        k(f"s_xor_b32 s{sT}, s3, s{sXCD}\ns_bitcmp0_b32 s{sT}, 0\ns_cbranch_scc1 {o}")
        for j in range(D):
            if j == 8: k(f"{o}:")
            k(actload(j), f"a{j}")
        stamp(k, cfg, 2, 5)
        DA = [1, 2, 3, 4]
        k(f"v_and_b32 v14, 15, v0\nv_lshrrev_b32 v15, 4, v0\nv_xor_b32 v15, v15, v14\nv_lshlrev_b32 v15, 4, v15\nv_lshl_add_u32 v15, v14, 8, v15\nv_add_u32 v{DA[0]}, s{sM}, v15")
        for i in range(1, 4): k(f"v_xor_b32 v{DA[i]}, {64*i}, v{DA[0]}")
        dq2 = []; nd = 0
        for j, (s, tt) in enumerate(seq):
            k.wait(vm=f"a{j}", lg=f"r{s}" if s >= 7 else None)
            if j % 8 == 0: stamp(k, cfg, 3 + j//8, 5)
            rs = s - cfg.rl16
            rd = (w2read(2*(rs+6), 2*(rs-1)) + w2read(2*(rs+6)+1, 2*(rs-1)+1))[2*tt:2*tt+2] if 1 <= rs <= 7 else []
            for d4 in range(4):
                a = ACC + 16*tt + 4*d4
                k(f"v_mfma_f32_16x16x32_bf16 {V(a,4)}, {V(W2R + (s % 7)*16 + 4*d4,4)}, {V(RING + (j % D)*4,4)}, {'0' if s == 0 else V(a,4)}")
                if d4 == 0 and j >= 1 and j - 1 + D < 56: k(actload(j - 1 + D), f"a{j-1+D}")
                if d4 >= 2 and rd: k(rd[d4-2], f"r{rs+6}")
                if d4 == 3 and dq2:
                    k(dq2.pop(0)); nd += 1
                    if nd == 8: lds_signal(k, gSY, SY_GS, gONE)
            if s == 13: dq2 += [f"ds_write_b128 v{DA[d4]}, {V(ACC + 16*tt + 4*d4,4)} offset:{tt*16384}" for d4 in range(4)]
        stamp(k, cfg, 9); stamp(k, cfg, 10, 5)
        assert nd >= 8
        for x in dq2: k(x)
    else:
        D = 2*cfg.depth; n0 = 28 - cfg.tailn
        seq = [(s, tt) for s in range(n0) for tt in (0, 1)] + [(s, tt) for tt in (0, 1) for s in range(n0, 28)]
        cur = [None]
        def actload(j):
            s, tt = seq[j]; out = []
            if cur[0] != s//2:
                cur[0] = s//2
                out.append(piece(s//4, 16384, (s & 2)*2048, sT) + (f"\ns_and_b32 s{sT}, s{sT}, 0xfffff" if cfg.x_acthit else ""))
            out.append(f"buffer_load_dwordx4 {V(RING + (j % D)*4, 4)}, v{L16}, {S(sW2 if cfg.x_acthit else sWS,4)}, s{sT} offen offset:{(s & 1)*2048 + tt*1024} {cfg.actmod}")
            return "\n".join(out)
        stamp(k, cfg, 1, 5)
        o = k.lab("own")
        if cfg.own: k(f"s_xor_b32 s{sT}, s3, s{sXCD}\ns_bitcmp0_b32 s{sT}, 0\ns_cbranch_scc1 {o}")
        k(f"s_setprio {cfg.nprio}")
        for j in range(D):
            if j == 8: k(f"{o}:")
            k(actload(j), f"a{j}")
        stamp(k, cfg, 2, 5)
        DA = [1, 2, 3, 4, 10, 11, 14, 15]
        if cfg.pdump:
            k(f"v_and_b32 v14, 7, v0\nv_lshrrev_b32 v15, 5, v0\nv_xor_b32 v15, v15, v14\nv_lshlrev_b32 v15, 4, v15\nv_and_b32 v14, 31, v0\nv_lshl_add_u32 v15, v14, 7, v15\nv_add_u32 v{DA[0]}, s{sM}, v15")
            for i in range(1, 4): k(f"v_xor_b32 v{DA[i]}, {32*i}, v{DA[0]}")
            def dump(tt, d2s):
                out = []
                for d2 in d2s:
                    r = [ACC + 16*(2*d2+tt) + 8*jp for jp in (0, 1)]
                    out += ["\n".join(f"v_cvt_pk_bf16_f32 v{x+i}, v{x+2*i}, v{x+2*i+1}" for i in range(4)) for x in r]
                    out += [f"v_permlane32_swap_b32 v{x}, v{x+2}\nv_permlane32_swap_b32 v{x+1}, v{x+3}\nds_write_b128 v{DA[2*d2+jp]}, {V(x,4)} offset:{tt*16384}" for jp, x in enumerate(r)]
                return out
        else:
            k(f"v_and_b32 v14, 15, v0\nv_lshrrev_b32 v15, 5, v0\nv_xor_b32 v15, v15, v14\nv_lshlrev_b32 v15, 4, v15\nv_lshl_add_u32 v15, v14, 8, v15")
            k(f"v_bfe_u32 v14, v0, 4, 1\nv_lshl_add_u32 v15, v14, 14, v15\nv_add_u32 v{DA[0]}, s{sM}, v15")
            for i in range(1, 8): k(f"v_xor_b32 v{DA[i]}, {32*i}, v{DA[0]}")
            dump = lambda tt, d2s: [f"ds_write_b128 v{DA[4*d2+jj]}, {V(ACC+16*(2*d2+tt)+4*jj,4)} offset:{tt*32768}" for d2 in d2s for jj in range(4)]
        jlast0 = max(j for j in range(56) if seq[j][1] == 0)
        assert 14 + cfg.rdlag < n0 and cfg.tailq <= min(D, cfg.tailn)
        q0 = 56 - cfg.tailq
        ops = [(j, d2) for j in range(q0) for d2 in (0, 1)] + [(j, d2) for d2 in (0, 1) for j in range(q0, 56)]
        d0 = dump(0, (0, 1)); d1 = dump(1, (0, 1)); i0 = ops.index((jlast0, 1)); i1 = ops.index((55, 0)); sig = [False]
        for i, (j, d2) in enumerate(ops):
            s, tt = seq[j]
            if d2 == 0:
                k.wait(vm=f"a{j}", lg=f"r{s}" if s >= 14 else None)
                if j % 8 == 0: stamp(k, cfg, 3 + j//8, 5)
            w = W2R + (s % 14)*8; x = RING + (j % D)*4; a = ACC + 16*(2*d2 + tt)
            rs = s - cfg.rdlag
            k(f"v_mfma_f32_32x32x16_bf16 {V(a,16)}, {V(w+4*d2,4)}, {V(x,4)}, {'0' if s == 0 else V(a,16)}")
            if d2 == 0 and j >= 1 and j - 1 + D < 56: k(actload(j - 1 + D), f"a{j-1+D}")
            if d2 == 1 and 1 <= rs <= 14: k("\n".join(w2read(rs + 13, rs - 1)[2*tt:2*tt+2]), f"r{rs+13}")
            if i >= i0 + 2 and d0 and (cfg.pdump or (i - i0) % 2 == 0 or len(d0) >= len(ops) - i): k(d0.pop(0))
            elif not d0 and not sig[0]: lds_signal(k, gSY, SY_GS, gONE); sig[0] = True
            elif cfg.tailq and sig[0] and i >= i1 + 2 and len(d1) > 4 and (cfg.pdump or (i - i1) % 2 == 0): k(d1.pop(0))
        while d0: k(d0.pop(0))
        if not sig[0]: lds_signal(k, gSY, SY_GS, gONE)
        stamp(k, cfg, 9); stamp(k, cfg, 10, 5)
        for x in d1: k(x)
    k.wait(lg="*")
    stamp(k, cfg, 11, 5)
    k("s_barrier")
    stamp(k, cfg, 10)
    prof_dump(k, cfg, role="G")
    k("s_endpgm")

class Pacer:
    def __init__(self, k, pace): self.k, self.pace, self.q, self.n = k, pace, [], 0
    def __call__(self, text, tag=None):
        lines = text.split("\n")
        for i, ln in enumerate(lines):
            self.k(ln, tag)
            if i + 1 < len(lines) and lines[i+1].startswith(("s_cselect", "s_addc", "s_cbranch")): continue
            self.n += 11 if "ds_write_b128" in ln else 5 if "ds_write" in ln else 2 if ("ds_read" in ln or "v_rcp" in ln) else 1
            if self.q and self.n >= self.pace: self.pop()
    def pop(self):
        g, t = self.q.pop(0); self.k(g, t); self.n = 0
    def flush(self):
        while self.q: self.pop()

def gen_S(k, cfg, vm0):
    k.reset()
    if cfg.pages: k(".p2align 12")
    k("L_S:")
    k.s_tail()
    sWV, GA = sCOL, sGA
    p = Pacer(k, cfg.pace)
    def bar(c, lg="*"):
        p.flush()
        if c == 1: stamp(k, cfg, 9, 7)
        k.wait(vm=f"c{c}", lg=lg)
        if c == 1: stamp(k, cfg, 10, 7)
        stamp(k, cfg, 1+c, 2)
        if not cfg.x_nobar: k("s_barrier")
    G0, XV, CP = 160, 192, 208
    SV, XW, CN, MM, RR, XF, GS = 100, 108, 116, 120, 128, 136, 144
    def copies(x, off, sgs):
        for sg in sgs:
            c = CP + 4*sg
            for jj in range(4): p(f"v_cvt_pk_bf16_f32 v{c+jj}, v{x[sg+2*jj]}, v{x[sg+2*jj+1]}")
            p(f"ds_write_b128 v{EW}, {V(c,4)} offset:{sg*4160 + off}")
    k("s_setprio 0")
    k(CLRL, "clr")
    w2t = f"s_lshl2_add_u32 s{sT}, s{sCP}, s{sCOL}\ns_mul_i32 s{sT}, s{sT}, 1792\nv_mul_u32_u24 v62, 28, v0\nbuffer_load_dword v62, v62, {S(sW2,4)}, s{sT} offen"
    if cfg.w2touch == 1: assert 6 in cfg.early; k(w2t)
    held = []
    late = lambda part: S_addresses(p, part) if part not in cfg.early else None
    def ring(c):
        ch = chunk(cfg, c); p.q = held + ch[:cfg.r2cut]; held[:] = ch[cfg.r2cut:]; p.pop()
    stl = f"buffer_load_dwordx4 {V(SV,4)}, v{vST}, {S(sWS,4)}, s{sXO} offen sc1\nbuffer_load_dwordx4 {V(SV+4,4)}, v{vST}, {S(sWS,4)}, s{sWO} offen sc1"
    xcl = f"buffer_load_dword v{CN}, v{vXC}, {S(sWS,4)}, 0 offen sc1"
    gsl = f"s_mov_b32 m0, s{sE0}\ns_mov_b64 exec, 0xffffff\nbuffer_load_dwordx4 v{vGA}, {S(sWS,4)}, 0 offen sc1 lds\ns_mov_b64 exec, -1"
    pw = [f"ds_write2_b32 v{sPW+a}, v{KA+r}, v{KA+r+1} offset0:{o0} offset1:{o1}" for a, r, o0, o1 in
          ((0, 0, 0, 1), (0, 2, 2, 3), (1, 4, 0, 1), (2, 6, 2, 3), (3, 8, 0, 33), (3, 10, 66, 99))]
    ring(2)
    p(f"v_lshrrev_b32 v50, 1, v0\nv_and_b32 v52, 1, v0\nv_lshl_add_u32 v52, s{sWV}, 1, v52\nv_bfe_u32 v51, v0, 2, 3\nv_xor_b32 v51, v51, v52\nv_lshlrev_b32 v51, 4, v51\nv_lshl_add_u32 v51, v50, 7, v51")
    p(f"s_and_b32 s{sT}, s{sXCD}, 1\ns_lshl_b32 s{sT}, s{sT}, 13\ns_add_u32 s{sT}, s{sT}, {L_GB+L_XS[0]}\nv_add_u32 v51, s{sT}, v51")
    p(f"ds_read_b128 v[248:251], v51\nds_read_b128 v[252:255], v51 offset:4096")
    late(6); late(3)
    if cfg.w2touch == 2: p.flush(); k(w2t)
    bar(1)
    def xtflag():
        v_poll(k, CLRL, 49, 4, sSP, 2, first=False, tag="clr")
        o = k.lab("xf")
        k(f"s_lshl_b32 s{sT}, s{sG32}, 2\ns_add_u32 s{sT}, s{sT}, s{sR}\ns_add_u32 s{sT}, s{sT}, {C_XT}\ns_lshl_b32 s{sT}, s{sT}, 7\ns_cmp_lg_u32 s{sCOL}, 0\ns_cbranch_scc1 {o}")
        s_inc(k, pWS, f"s{sT}", sE2)
        k(f"{o}:")
    ring(3)
    if cfg.xtbar == 1: p.pop(); xtflag(); p.pop(); p.pop()
    late(0); late(5)
    for r in range(3): p(f"ds_read_b128 {V(G0+4*r,4)}, v{PA} offset:{1024*r}", "raw")
    bar(2, None)
    if cfg.xtbar == 2: xtflag()
    ring(4)
    late(1)
    bar(3, None)
    ring(5)
    late(2)
    bar(4, None)
    stamp(k, cfg, 4)
    if cfg.r2cut == 8: k(xcl, "xc")
    ring(6)
    for _ in range(8 - cfg.r2cut - 1): p.pop()
    if cfg.r2cut < 8: k(xcl, "xc")
    k.wait(lg="*")
    for i in range(12): p(f"v_add_f32 v{KA+i}, v{KA+i}, v{G0+i}")
    late(4)
    bar(5, None)
    p.q = list(held); p.flush()
    v_poll(k, xcl, CN, 4, sSP, 2, first=False, tag="xc")
    k(stl, "st")
    for e in (0, 1): k(f"buffer_load_dwordx4 {V(XW+4*e,4)}, v{vXW}, {S(sWS,4)}, 0 offen offset:{64*e} sc1", "xw")
    k(gsl, "gs")
    if cfg.sall:
        n1, n2 = cfg.sall
        assert n1 <= 8 and n2 % 4 == 0 and n2 <= 16
        wq = [x for b in range(6) for x in w2dma(ORD[b], sW2D)]
        p.q = wq[:n1]
        bar(6, None)
        p.q = wq[n1:n2]; p.pop()
        late(7); p.flush()
    else:
        p.q = w2dma(ORD[0], sW2D); p.pop()
        late(7)
        bar(6, None)
    stamp(k, cfg, 5)
    if cfg.pages:
        o = k.lab("wm")
        for n, name in enumerate(("cvA", "cvB", "mish")):
            if name not in cfg.warm or (name == 'cvB' and cfg.split == 'r'): continue
            o2 = k.lab("wn")
            k(f"s_cmp_lg_u32 s{sWV}, {n}\ns_cbranch_scc1 {o2}"); k.warm(name); k(f"{o2}:")
    k.wait(vm="gs")
    k(f"s_mov_b32 s{sSP}, 0")
    l = k.lab("xp"); o = k.lab("xpo")
    k(f"{l}:")
    k(f"ds_read_b128 {V(GS,4)}, v{vGW}")
    k(f"v_min_u32 v{CN}, v{SV}, v{SV+1}\ns_add_u32 s{sSP}, s{sSP}, 1")
    for i in range(1, 4): k(f"v_min3_u32 v{CN}, v{CN}, v{SV+2*i}, v{SV+2*i+1}")
    for i in range(8): k(f"v_and_b32 v{RR+i}, 0xffff0000, v{SV+i}")
    k.wait(lg="*")
    k(f"v_min3_u32 v{CN}, v{CN}, v{GS+1}, v{GS+3}")
    k(f"v_cmp_eq_u32 vcc, 0, v{CN}\ns_cmp_gt_u32 s{sSP}, {SPIN}\ns_cbranch_scc1 {o}\ns_cbranch_vccz {o}")
    sv = list(k.vm); k(stl); k(gsl); k("s_waitcnt vmcnt(0)"); k.vm = sv
    k(f"s_branch {l}")
    k(f"{o}:")
    stamp(k, cfg, 8, 2)
    k("s_barrier")
    stamp(k, cfg, 1, 6)
    if cfg.sall: p.q = wq[n2:]; p.pace = cfg.pace2; p.pop()
    for i in range(8): p(f"v_rcp_f32 v{RR+i}, v{RR+i}\nv_lshlrev_b32 v{MM+i}, 16, v{SV+i}")
    for i in range(8): p(f"v_mul_f32 v{MM+i}, v{MM+i}, v{RR+i}")
    for ch in (0, 1):
        if ch: k("s_setprio 3")
        for i in range(4): p(f"v_lshlrev_b32 v{XF+2*i}, 16, v{XW+4*ch+i}\nv_and_b32 v{XF+2*i+1}, 0xffff0000, v{XW+4*ch+i}")
        for i in range(8): p(f"v_fma_f32 v{XF+i}, v{XF+i}, v{RR+i}, -v{MM+i}")
        for i in range(4): p(f"v_cvt_pk_bf16_f32 v{XW+4*ch+i}, v{XF+2*i}, v{XF+2*i+1}")
    stamp(k, cfg, 9, 2); stamp(k, cfg, 2, 6)
    k(f"v_lshl_add_u32 v55, s{sCS}, 2, v{VSY}")
    p.flush()
    if cfg.sblk and not cfg.sall:
        for g, t in (w2dma(ORD[4], sW2D) if cfg.s45 else []) + w2dma(ORD[5], sW2D): k(g, t)
    stamp(k, cfg, 3, 6)
    k("\n".join(pw))
    if not cfg.pbar2: lds_signal(k, 55, SY_PAIR, VONE)
    stamp(k, cfg, 4, 6)
    stamp(k, cfg, 5, 6)
    if cfg.pbar2: assert cfg.split == 'J'; k.wait(lg="*"); k("s_barrier")
    else: lds_spin(k, 55, SY_PAIR, 2, 50, sT, sSP)
    stamp(k, cfg, 6, 6)
    for i in list(range(11, 14)) + list(range(11)): k(f"ds_read2st64_b32 {V(G0+2*i,2)}, v{GA+i} offset1:13", "ga" if i > 10 else "gb")
    for ch in (0, 1): k(f"ds_write_b128 v{UW}, {V(XW+4*ch,4)} offset:{4576*ch}")
    k(f"ds_write_b128 v{TZ}, {V(ZERO,4)} offset:4096")
    for ps, x in enumerate(([XV+12]*3 + [XV+14] + [XV+11]*6 + [XV+13], [XV+i for i in range(11)])):
        k.wait(lg="gb" if ps else "ga")
        stamp(k, cfg, 7 + ps, 6)
        for i in (range(11) if ps else range(11, 14)): k(f"v_add_f32 v{XV+i}, v{G0+2*i}, v{G0+2*i+1}")
        if ps == 0: k(f"v_cmp_eq_u32 vcc, 1, v{vODD}\nv_cndmask_b32 v{XV+14}, v{XV+12}, v{XV+11}, vcc")
        for sg in range(4):
            for jj in range(4): k(f"v_cvt_pk_bf16_f32 v{CP+16*ps+4*sg+jj}, v{x[sg+2*jj]}, v{x[sg+2*jj+1]}")
            k(f"ds_write_b128 v{EW}, {V(CP+16*ps+4*sg,4)} offset:{sg*4160 + ps*2048}")
    stamp(k, cfg, 9, 6)
    if cfg.mbar:
        k.wait(vm="*", lg="*"); k("s_barrier")
    else:
        k.wait(vm="*")
        lds_signal(k, VSY, SY_U, VONE)
        lds_spin(k, VSY, SY_U, 4, 50, sT, sSP, cfg.usleep)
    stamp(k, cfg, 10, 6)
    Y, FS, YS = 68, [100, 164], 228
    def a_read(r, F, a): return [f"ds_read_b64 {V(F+4*a+2*e,2)}, v{CA} offset:{(7-a)*512 + (7-r)*64 + 8*e}" for e in (0, 1)]
    def b_read(r, F, c): return [f"ds_read_b128 {V(F+32+4*c,4)}, v{CBA} offset:{c*512 + (7-r)*64 - 256*RS[0]}"]
    def first(ms):
        seen = []
        for J, a in ms:
            for t in (("a", a), ("b", J - a)):
                if t not in seen: seen.append(t)
        rd = [(x, f"z{t[0]}{t[1]}") for t in seen for x in (a_read if t[0] == "a" else b_read)(0, FS[0], t[1])]
        for x in rd[:cfg.cvpre]: k(*x)
        stamp(k, cfg, 10, 2)
        if cfg.mbar == 2: k("s_barrier")
        if not cfg.mbar: lds_spin(k, vSC, SY_M, 1, 50, sT, sSP, cfg.usleep)
        k(f"s_setprio {cfg.cvprio}")
        stamp(k, cfg, 6); stamp(k, cfg, 11, 2); stamp(k, cfg, 11, 6)
        return rd[cfg.cvpre:]
    if cfg.split == 'r':
        ms = sorted(((a + c, a) for c in range(8) for a in range(8 - c)), key=lambda x: (max(x[1], x[0]-x[1]), x[0]))
        if cfg.pages: k.page("cvA")
        rest = first(ms)
        for r in range(4):
            F = FS[r & 1]; N = FS[(r+1) & 1]; nxt = list(rest); rest = []
            if r < 3:
                for i in range(8): nxt += [(x, None) for x in a_read(r+1, N, i) + b_read(r+1, N, i)]
            if r > 0: k.wait(lg="*")
            if r == 3:
                lds_signal(k, VSY, SY_RD, VONE)
                nxt = f"s_lshl_b32 s{sT}, s{sWV}, 12\ns_add_u32 s{sT}, s{sT}, 16384\nv_lshl_add_u32 v51, v0, 4, s{sT}\nv_xor_b32 v52, 0x1000, v51\ns_lshl_b32 s{sT}, s{sHH}, 11\ns_add_u32 s{sO1}, s{sO1}, s{sT}".split("\n"); nxt = [(x, None) for x in nxt]
            n = 0
            seen = set()
            for i, (J, a) in enumerate(ms):
                if r == 0:
                    for t in (f"za{a}", f"zb{J-a}"):
                        assert t not in [y[1] for y in nxt[n:]]
                        k.wait(lg=t)
                k(f"v_mfma_f32_16x16x32_bf16 {V(Y+4*J,4)}, {V(F+4*a,4)}, {V(F+32+4*(J-a),4)}, {'0' if (r == 0 and J not in seen) else V(Y+4*J,4)}")
                seen.add(J)
                while n < len(nxt) and n*min(len(nxt), 33) < (i+1)*len(nxt): k(*nxt[n]); n += 1
                if r == 3 and i == 28: k(f"ds_read_b32 v50, v{VSY} offset:{SY_RD}")
        stamp(k, cfg, 7); stamp(k, cfg, 1, 5)
        k("s_setprio 3")
        o = k.lab("rd")
        k.wait(lg="*")
        k(f"v_readfirstlane_b32 s{sT}, v50\ns_cmp_ge_u32 s{sT}, 4\ns_cbranch_scc1 {o}")
        lds_spin(k, VSY, SY_RD, 4, 50, sT, sSP)
        k(f"{o}:")
        l1 = k.lab("h1"); l2 = k.lab("hj"); EX = 100
        k(f"s_cmp_eq_u32 s{sHH}, 1\ns_cbranch_scc1 {l1}\ns_nop 3")
        for i in range(4): k(f"ds_write_b128 v51, {V(Y+16+4*i,4)} offset:{1024*i}")
        lds_signal(k, 55, SY_PAIR, VONE)
        k(f"s_branch {l2}")
        k(f"{l1}:")
        for i in range(4): k(f"ds_write_b128 v51, {V(Y+4*i,4)} offset:{1024*i}")
        lds_signal(k, 55, SY_PAIR, VONE)
        for i in range(16): k(f"v_mov_b32 v{Y+i}, v{Y+16+i}")
        k(f"{l2}:")
        lds_spin(k, 55, SY_PAIR, 4, 50, sT, sSP)
        for i in range(4): k(f"ds_read_b128 {V(EX+4*i,4)}, v52 offset:{1024*i}", f"e{i}")
        for g in (0, 1):
            for i in (2*g, 2*g+1):
                k.wait(lg=f"e{i}")
                for e in range(4): k(f"v_add_f32 v{Y+4*i+e}, v{Y+4*i+e}, v{EX+4*i+e}")
                for e in (0, 1): k(f"v_cvt_pk_bf16_f32 v{YS+2*i+e}, v{Y+4*i+2*e}, v{Y+4*i+2*e+1}")
            for e in (0, 1): k(f"v_permlane16_swap_b32 v{YS+4*g+e}, v{YS+4*g+2+e}")
            k(f"buffer_store_dwordx4 {V(YS+4*g,4)}, v54, {S(sWS,4)}, s{sO1} offen offset:{1024*g} sc1", "sts")
        if cfg.pages: k.page("epi")
    else:
        lB = "L_cvB"; lJ = "L_epi"
        k(f"s_cmp_eq_u32 s{sHH}, 1\ns_cbranch_scc1 {lB}")
        if cfg.pages: k.page("cvA")
        for Js in JSETS[cfg.jbal]:
            top = max(Js)
            ms = [(J, a) for a in range(top+1) for J in Js if a <= J]
            rest = first(ms)
            for r in range(8):
                F = FS[r & 1]; N = FS[(r+1) & 1]; nxt = list(rest); rest = []
                if r < 7:
                    for i in range(top+1): nxt += [(x, None) for x in a_read(r+1, N, i) + b_read(r+1, N, top-i)]
                if r > 0: k.wait(lg="*")
                if r == 7: lds_signal(k, VSY, SY_RD, VONE)
                n = 0; slots = len(ms) - cfg.cvfree
                for i, (J, a) in enumerate(ms):
                    if r == 0:
                        for t in (f"za{a}", f"zb{J-a}"):
                            assert t not in [y[1] for y in nxt[n:]]
                            k.wait(lg=t)
                    k(f"v_mfma_f32_16x16x32_bf16 {V(Y+4*J,4)}, {V(F+4*a,4)}, {V(F+32+4*(J-a),4)}, {'0' if (r == 0 and a == 0) else V(Y+4*J,4)}")
                    while n < len(nxt) and n*slots < (i+1)*len(nxt): k(*nxt[n]); n += 1
                assert n == len(nxt)
            stamp(k, cfg, 7); stamp(k, cfg, 1, 5)
            groups = [(Js[-1], Js[-1])] + [(Js[i+1], Js[i]) for i in range(len(Js)-3, -1, -2)]
            for g, (lo, hi) in enumerate(groups):
                y = YS + 4*g
                for q, J in enumerate((lo, hi)):
                    for e in (0, 1): k(f"v_cvt_pk_bf16_f32 v{y+2*q+e}, v{Y+4*J+2*e}, v{Y+4*J+2*e+1}")
                for e in (0, 1): k(f"v_permlane16_swap_b32 v{y+e}, v{y+2+e}")
                k(f"buffer_store_dwordx4 {V(y,4)}, v{53 if lo == hi else 54}, {S(sWS,4)}, s{sO1} offen offset:{512*lo} sc1", "sts")
            if top == 7:
                k(f"s_branch {lJ}")
                if cfg.pages: k.page("cvB", False)
                else: k(f"{lB}:")
                k.reset()
        if cfg.pages: k.page("epi")
        else: k(f"{lJ}:")
    if cfg.x_nos2:
        k("s_barrier"); prof_dump(k, cfg, True); k("s_endpgm"); return
    XE, OA, RA, SA, XU, SU = 248, 64, 68, 70, 120, 136
    k(f"s_lshl1_add_u32 s{sRB}, s{sRB}, s{sXH}\ns_mov_b32 s{sC}, s{sKAP}")
    k(f"v_lshrrev_b32 v50, 1, v0\nv_mul_u32_u24 v52, 896, v50\nv_lshl_add_u32 v{OA}, v{vODD}, 4, v52")
    k(f"s_mul_i32 s{sG32}, s{sRB}, {64*896}\ns_lshl2_add_u32 s{sT}, s{sC}, s{sWV}\ns_lshl_b32 s{sT}, s{sT}, 5\ns_add_u32 s{sG32}, s{sG32}, s{sT}\ns_add_u32 s{sKAP}, s{sG32}, {32*896}")
    k(f"v_lshl_add_u32 v51, s{sWV}, 1, v{vODD}\nv_and_b32 v55, 15, v50\nv_lshlrev_b32 v52, 1, v51\nv_xor_b32 v52, v52, v55\nv_lshlrev_b32 v52, 4, v52\nv_lshl_add_u32 v52, v55, 8, v52")
    k(f"v_lshrrev_b32 v55, 5, v0\nv_lshl_add_u32 v52, v55, 14, v52\nv_add_u32 v{RA}, {L_GB}, v52\nv_xor_b32 v{RA+1}, 16, v{RA}")
    if cfg.pdump: k(f"v_and_b32 v52, 7, v50\nv_xor_b32 v52, v52, v51\nv_lshlrev_b32 v52, 4, v52\nv_lshl_add_u32 v52, v50, 7, v52\nv_add_u32 v{RA}, {L_GB}, v52")
    k(f"v_bfe_u32 v52, v0, 4, 1\nv_lshl_add_u32 v52, v52, 2, v55\nv_xor_b32 v52, v52, v51\nv_lshlrev_b32 v52, 4, v52\nv_lshl_add_u32 v52, v51, 10, v52\nv_and_b32 v55, 14, v0\nv_add_u32 v{SA}, v55, v52\nv_xor_b32 v{SA+1}, 32, v{SA}")
    assert L_U == 0
    k(f"v_lshrrev_b32 v50, 3, v0\nv_and_b32 v51, 7, v0\ns_lshl_b32 s{sT}, s{sWV}, 1\nv_xor_b32 v56, s{sT}, v51\nv_lshlrev_b32 v56, 4, v56\nv_lshl_add_u32 v56, v50, 12, v56\nv_xor_b32 v57, 16, v56\nv_add_u32 v57, {32768-1024}, v57")
    k.wait(vm="*")
    s_inc(k, pWS, f"s{sO2}", sE3)
    stamp(k, cfg, 8); stamp(k, cfg, 2, 5)
    for i in range(8): k(f"v_lshlrev_b32 v{XU+2*i}, 16, v{XE+i}\nv_and_b32 v{XU+2*i+1}, 0xffff0000, v{XE+i}")
    k(f"s_lshr_b32 s{sT2}, s{sRB}, 2\ns_lshr_b32 s{sT2}, {0xf0 if RS[0] else sum(1 << J for J in JSETS[cfg.jbal][1])}, s{sT2}\ns_and_b32 s{sT2}, s{sT2}, 1")
    k(f"s_lshl_b32 s{sT}, s{sC}, 1\ns_add_u32 s{sT}, s{sT}, s{sT2}\ns_lshl_b32 s{sT}, s{sT}, 2\ns_add_u32 s{sT}, s{sT}, s{sWV}\ns_add_u32 s{sT}, s{sT}, {C_ST}\ns_lshl_b32 s{sO1}, s{sT}, 7")
    k(f"s_lshl_b32 s{sT}, s{sC}, 2\ns_add_u32 s{sT}, s{sT}, s{sWV}\ns_lshl_b32 s{sT}, s{sT}, 16\ns_lshl_b32 s{sT2}, s{sRB}, 7\ns_add_u32 s{sT}, s{sT}, s{sT2}\ns_add_u32 s{sO2}, s{sT}, {ST}")
    for i in range(16): k(f"v_mov_b32 v{SU+i}, 0")
    k(f"s_lshl_b32 m0, s{sWV}, 11")
    if not RS[0]: lds_spin(k, VSY, SY_RD, 4, 50, sT, sSP, 1)
    s_poll(k, pWS, [f"s{sO1}"], 16, sT, sSP, cfg.stpoll[1])
    stamp(k, cfg, 3, 5)
    k(f"buffer_load_dwordx4 v56, {S(sWS,4)}, s{sO2} offen sc1 lds\nbuffer_load_dwordx4 v57, {S(sWS,4)}, s{sO2} offen offset:1024 sc1 lds")
    k.wait(vm="*")
    stamp(k, cfg, 9); stamp(k, cfg, 4, 5)
    for ps in (0, 1):
        for e in range(8): k(f"ds_read_u16_d16_hi v{SU+8*ps+e}, v{SA+ps} offset:{128*e}")
    k(f"s_mov_b32 s{sO1}, {fbits(-LOG2E)}\ns_movk_i32 s50, 0x3f80\ns_mov_b32 s51, 0x3f800000")
    PR, T = 160, 224
    for ps in (0, 1):
        b = PR + 32*ps; plain = ps == 0 and cfg.p0plain
        if ps == 0:
            stamp(k, cfg, 5, 5); lds_spin(k, VSY, SY_GS, 4, 50, sT, sSP, cfg.finsleep); stamp(k, cfg, 6, 5)
        else:
            stamp(k, cfg, 7, 5); k("s_barrier"); stamp(k, cfg, 10); stamp(k, cfg, 8, 5)
        if cfg.pdump:
            for w in range(4): k(f"ds_read_b128 {V(b+8+4*w,4)}, v{RA} offset:{16384*ps + 4096*w}", f"p{w}")
            for w in range(4):
                k.wait(lg=f"p{w}")
                for i in range(4):
                    x = b + 8 + 4*w + i
                    if w == 0: k(f"v_lshlrev_b32 v{b+2*i}, 16, v{x}\nv_and_b32 v{b+2*i+1}, 0xffff0000, v{x}")
                    elif plain: k(f"v_lshlrev_b32 v{T}, 16, v{x}\nv_and_b32 v{x}, 0xffff0000, v{x}\nv_add_f32 v{b+2*i}, v{b+2*i}, v{T}\nv_add_f32 v{b+2*i+1}, v{b+2*i+1}, v{x}")
                    else: k(f"v_dot2c_f32_bf16 v{b+2*i}, s50, v{x}\nv_dot2c_f32_bf16 v{b+2*i+1}, s51, v{x}")
        else:
            for w in range(4):
                for e in (0, 1): k(f"ds_read_b128 {V(b+8*w+4*e,4)}, v{RA+e} offset:{32768*ps + 4096*w}", f"p{w}")
            def add(x, y):
                if ps == 0 and cfg.p0plain:
                    for i in range(8): k(f"v_add_f32 v{x+i}, v{x+i}, v{y+i}")
                else:
                    for i in range(4): k(f"v_pk_add_f32 {V(x+2*i,2)}, {V(x+2*i,2)}, {V(y+2*i,2)}")
            k.wait(lg="p1")
            add(b, b+8)
            k.wait(lg="p3")
            add(b+16, b+24); add(b, b+16)
        if plain and cfg.p0plain == 2:
            for i in range(8): k(f"v_mul_f32 v{T+i}, s{sO1}, v{b+i}")
            for i in range(8): k(f"v_exp_f32 v{T+i}, v{T+i}")
            for i in range(8): k(f"v_mul_f32 v{b+i}, v{b+i}, v{SU+i}")
            for i in range(8): k(f"v_add_f32 v{T+i}, 1.0, v{T+i}")
            for i in range(8): k(f"v_rcp_f32 v{T+i}, v{T+i}")
            for i in range(8): k(f"v_fma_f32 v{b+i}, v{b+i}, v{T+i}, v{XU+i}")
        else:
            for i in range(4): k(f"v_pk_mul_f32 {V(T+2*i,2)}, {V(b+2*i,2)}, {S(sO1,2)} op_sel_hi:[1,0]")
            for i in range(8): k(f"v_exp_f32 v{T+i}, v{T+i}")
            for i in range(4): k(f"v_pk_mul_f32 {V(b+2*i,2)}, {V(b+2*i,2)}, {V(SU+8*ps+2*i,2)}")
            for i in range(4): k(f"v_pk_add_f32 {V(T+2*i,2)}, {V(T+2*i,2)}, 1.0 op_sel_hi:[1,0]")
            for i in range(8): k(f"v_rcp_f32 v{T+i}, v{T+i}")
            for i in range(4): k(f"v_pk_fma_f32 {V(b+2*i,2)}, {V(b+2*i,2)}, {V(T+2*i,2)}, {V(XU+8*ps+2*i,2)}")
        for i in range(4): k(f"v_cvt_pk_bf16_f32 v{b+8+i}, v{b+2*i}, v{b+2*i+1}")
        k(f"buffer_store_dwordx4 {V(b+8,4)}, v{OA}, {S(sOUT,4)}, s{sG32 if ps == 0 else sKAP} offen {cfg.outmod}")
    if cfg.prof or cfg.probe: k("s_waitcnt vmcnt(0)")
    stamp(k, cfg, 11); stamp(k, cfg, 9, 5)
    prof_dump(k, cfg, True, role="S")
    k("s_endpgm")

def gen_helper(k, cfg):
    k.reset()
    k("L_helper:")
    sHB, sIH, sST = 62, 63, 64
    k(f"v_lshrrev_b32 v1, 6, v0\nv_and_b32 v0, 63, v0\nv_readfirstlane_b32 s3, v1\ns_and_b32 s{sXCD}, s2, 7")
    k(f"s_lshl_b32 s{sHB}, s{sXCD}, 2\ns_add_u32 s{sHB}, s{sHB}, s{sJ}")
    k(f"s_lshr_b32 s{sIH}, s{sXCD}, 1\ns_lshl_b32 s{sIH}, s{sIH}, 2\ns_add_u32 s{sIH}, s{sIH}, s{sJ}\ns_and_b32 s{sST}, s{sXCD}, 1\ns_mul_i32 s{sST}, s{sST}, 14\ns_add_u32 s{sST}, s{sST}, s{sIH}")
    k(f"s_lshl_b32 s{sT}, s{sHB}, 3\ns_add_u32 s{sT}, s{sT}, s3\ns_mul_i32 s65, s{sT}, {8*896}")
    k(f"v_lshrrev_b32 v1, 3, v0\nv_and_b32 v2, 7, v0\nv_mul_u32_u24 v3, 896, v1\nv_lshl_add_u32 v3, v2, 4, v3")
    k(f"v_lshlrev_b32 v4, 4, v0\nv_and_b32 v5, 1, v0\nv_lshlrev_b32 v5, 12, v5\nv_lshrrev_b32 v6, 1, v0\nv_lshl_add_u32 v5, v6, 4, v5")
    k(f"v_mul_u32_u24 v15, 3584, v1\nv_lshl_add_u32 v15, v2, 4, v15")
    k(f"s_lshl_b32 s67, s{sHB}, 7\ns_add_u32 s67, s67, {STATS}")
    k(f"s_lshl_b32 s69, s{sST}, 9\ns_add_u32 s69, s69, {AUGW}\ns_mul_i32 s70, s3, {56*3584}\ns_lshl_b32 s74, s{sST}, 7\ns_add_u32 s70, s70, s74")
    srd_const(k, sAUX, 256); srd_const(k, sWS, WSN); srd_const(k, sX, 1835008); srd_const(k, sW1, 1605632); srd_const(k, sW2, 1605632); srd_const(k, sOUT, 3584)
    k("s_waitcnt lgkmcnt(0)")
    srd(k, sW1, pW1); srd(k, sX, pX); srd(k, sWS, pWS); srd(k, sAUX, pDBG); srd(k, sW2, pW2); srd(k, sOUT, pB1)
    stamp(k, cfg, 5)
    if cfg.tlb:
        k(f"s_lshl_b32 s72, s3, 21\ns_load_dword s30, {S(pWS,2)}, s72\ns_load_dword s31, {S(pW2,2)}, 0\ns_load_dword s32, {S(pOUT,2)}, 0\ns_load_dword s33, {S(pW1,2)}, 0\ns_load_dword s34, {S(pDBG,2)}, 128")
    l0 = k.lab("h0")
    k(f"s_cmp_lt_u32 s{sIH}, 14\ns_cbranch_scc1 {l0}")
    for i in range(4): k(f"v_mov_b32 v{8+i}, 0")
    k(f"s_and_b32 s66, s{sXCD}, 1\ns_lshl_b32 s66, s66, 1\ns_and_b32 s{sT}, s{sJ}, 1\ns_add_u32 s66, s66, s{sT}\ns_lshl_b32 s66, s66, 3\ns_add_u32 s66, s66, s3\ns_lshl_b32 s66, s66, 12")
    for n in range(4): k(f"buffer_store_dwordx4 v[8:11], v4, {S(sWS,4)}, s66 offen offset:{1024*n} sc1")
    k(f"s_mov_b32 s69, {WSN}\ns_mov_b32 s70, {WSN}\ns_waitcnt vmcnt(0)\ns_barrier\ns_cmp_lg_u32 s3, 7\ns_cbranch_scc1 {l0}")
    s_inc(k, pDBG, "0", 75)
    k(f"{l0}:")
    stamp(k, cfg, 4)
    if cfg.hdelay: k(f"s_sleep {cfg.hdelay}")
    k.reset()
    if cfg.hxfirst:
        for i in range(7): k(f"buffer_load_dwordx4 {V(16+4*i,4)}, v3, {S(sX,4)}, s65 offen offset:{128*i}", f"x{i}")
    if cfg.hsplit: k("s_barrier")
    for i in range(7): k(f"s_add_u32 s76, s70, {i*8*3584}\nbuffer_load_dwordx4 {V(44+4*i,4)}, v15, {S(sW1,4)}, s76 offen", f"w{i}")
    k(f"v_lshlrev_b32 v6, 1, v0\nbuffer_load_ushort v81, v6, {S(sOUT,4)}, s74 offen", "b1")
    k("v_and_b32 v12, 1, v0\nv_lshlrev_b32 v12, 4, v12\nv_mov_b32 v13, 0xbf80\nv_lshlrev_b32 v13, v12, v13\nv_bfe_u32 v12, v0, 1, 2")
    for e in range(4): k(f"v_cmp_eq_u32 vcc, {e}, v12\nv_cndmask_b32 v{72+e}, 0, v13, vcc")
    k(f"v_lshrrev_b32 v82, 5, v0\nv_lshl_add_u32 v82, s3, 1, v82\nv_lshlrev_b32 v82, 8, v82\nv_bfe_u32 v13, v0, 4, 1\nv_lshl_add_u32 v82, v13, 7, v82\nv_lshl_add_u32 v82, v2, 2, v82\nv_add_u32 v82, 1024, v82")
    k("v_mov_b32 v12, 0\nv_mov_b32 v13, 0\ns_mov_b32 s68, 0x3f803f80")
    if not cfg.hxfirst:
        for i in range(7): k(f"buffer_load_dwordx4 {V(16+4*i,4)}, v3, {S(sX,4)}, s65 offen offset:{128*i}", f"x{i}")
    hclr = f"buffer_load_dword v83, off, {S(sAUX,4)}, 0 sc1"
    k(hclr, "clr")
    if int(cfg.prof) == 8:
        stamp(k, cfg, 1, 8)
        for i, t in enumerate(("x0", "x3", "x6", "w0", "w3", "w6")):
            sv = list(k.vm); k.wait(vm=t); k.vm = sv; stamp(k, cfg, 2 + i, 8)
    if cfg.hearly:
        k(f"s_lshr_b32 s71, s{sHB}, 4\ns_mul_i32 s71, s71, {512*896}\ns_lshl3_add_u32 s72, s{sHB}, s3\ns_mul_i32 s72, s72, {3*896}\ns_add_u32 s71, s71, s72")
        k(f"v_min_u32 v84, 20, v0\nv_lshlrev_b32 v84, 7, v84\nbuffer_load_dword v84, v84, {S(sW2,4)}, s71 offen", "pf0")
    for i in range(7):
        k.wait(vm=f"x{i}")
        for e in range(4): k(f"v_dot2c_f32_bf16 v12, s68, v{16+4*i+e}\nv_dot2c_f32_bf16 v13, v{16+4*i+e}, v{16+4*i+e}")
    stamp(k, cfg, 6)
    for m in ("quad_perm:[1,0,3,2]", "quad_perm:[2,3,0,1]", "row_half_mirror"):
        for r in (12, 13): k(f"v_add_f32_dpp v{r}, v{r}, v{r} {m} row_mask:0xf bank_mask:0xf")
    k(f"v_mul_f32 v12, {fbits(1/448)}, v12\nv_mul_f32 v13, {fbits(1/448)}, v13\nv_fma_f32 v13, -v12, v12, v13\nv_max_f32 v13, 0, v13")
    k(f"v_cvt_pk_bf16_f32 v13, v13, v13\nv_and_b32 v13, 0xffff0000, v13\nv_add_f32 v13, {fbits(1e-5)}, v13\nv_cvt_pk_bf16_f32 v13, v13, v13\nv_and_b32 v13, 0xffff0000, v13")
    k(f"v_sqrt_f32 v13, v13\nv_lshl_add_u32 v14, s3, 3, v1\nv_lshlrev_b32 v14, 2, v14\nv_cvt_pk_bf16_f32 v12, v12, v13")
    k("ds_write_b32 v14, v12")
    for j in range(7):
        k.wait(vm=f"w{j}")
        k(f"v_mfma_f32_16x16x32_bf16 v[76:79], {V(44+4*j,4)}, v[72:75], {'0' if j == 0 else 'v[76:79]'}")
    k("ds_write2_b32 v82, v76, v77 offset0:0 offset1:8\nds_write2_b32 v82, v78, v79 offset0:16 offset1:24")
    stamp(k, cfg, 7)
    v_poll(k, hclr, 83, 4, 73, 2, first=False, tag="clr")
    stamp(k, cfg, 8)
    k.wait(lg="*")
    k("s_barrier")
    stamp(k, cfg, 1)
    l2 = k.lab("h2"); l3 = k.lab("h3")
    k(f"s_cmp_lg_u32 s3, 0\ns_cbranch_scc1 {l2}")
    k("s_mov_b64 exec, 0xffff\nds_read_b128 v[8:11], v4")
    k.wait(lg="*")
    k(f"buffer_store_dwordx4 v[8:11], v5, {S(sWS,4)}, s67 offen sc1\ns_mov_b64 exec, -1")
    k(f"{l2}:")
    k(f"s_cmp_lg_u32 s3, 1\ns_cbranch_scc1 {l3}")
    k("v_lshlrev_b32 v12, 2, v0")
    for j in range(8): k(f"ds_read2st64_b32 {V(16+2*j,2)}, v12 offset0:{4+2*j} offset1:{5+2*j}")
    k.wait(lg="*")
    for st_ in (1, 2, 4, 8):
        for j in range(0, 16, 2*st_): k(f"v_add_f32 v{16+j}, v{16+j}, v{16+j+st_}")
    k(f"v_cvt_pk_bf16_f32 v12, v16, v16\nv_and_b32 v12, 0xffff0000, v12\nv_sub_f32 v12, v16, v12\nv_cvt_pk_bf16_f32 v80, v16, v12\nv_or_b32 v81, 0x10000, v81\nv_lshlrev_b32 v12, 3, v0")
    k(f"buffer_store_dwordx2 v[80:81], v12, {S(sWS,4)}, s69 offen sc1")
    k(f"{l3}:")
    k("s_barrier")
    stamp(k, cfg, 2)
    k(f"v_lshlrev_b32 v14, 7, v0\ns_mul_i32 s76, s{sJ}, 401408\ns_mul_i32 s77, s{sXCD}, 49\ns_lshr_b32 s77, s77, 3\ns_add_u32 s77, s77, s3")
    for i in range(cfg.w2pf):
        k(f"s_sub_u32 s71, s77, 49\ns_cmp_ge_u32 s77, 49\ns_cselect_b32 s77, s71, s77\ns_lshl_b32 s71, s77, 13\ns_add_u32 s71, s71, s76\ns_add_u32 s77, s77, 8")
        k(f"buffer_load_dword v{90+i}, v14, {S(sW2,4)}, s71 offen", "pf")
    if cfg.actpf:
        k(f"s_lshl1_add_u32 s71, s{sIH}, 0\ns_and_b32 s72, s{sXCD}, 1\ns_add_u32 s71, s71, s72\ns_lshr_b32 s72, s3, 1\ns_lshl2_add_u32 s74, s71, s72\ns_lshl_b32 s74, s74, 9\ns_add_u32 s74, s74, {ACNT}")
        k(f"s_add_u32 s48, s{pWS}, s74\ns_addc_u32 s49, s{pWS+1}, 0")
        k(f"s_and_b32 s74, s72, 1\ns_mul_i32 s74, s74, 7\ns_and_b32 s75, s3, 1\ns_add_u32 s74, s74, s75\ns_lshr_b32 s72, s72, 1\ns_lshl1_add_u32 s74, s74, s72\ns_lshl_b32 s74, s74, 13")
        k(f"s_mul_i32 s76, s71, 229376\ns_add_u32 s76, s76, s74\ns_add_u32 s76, s76, {ACT + cfg.apf0*16384}\ns_mov_b32 s73, 0\ns_sleep {cfg.apfwait}")
        l = k.lab("hp"); o = k.lab("hpo")
        k(f"{l}:\ns_sleep {cfg.actpf}")
        for i in range(4): k(f"s_load_dword s{52+i}, s[48:49], {128*i} glc")
        k(f"s_add_u32 s73, s73, 1\ns_waitcnt lgkmcnt(0)\ns_cmp_gt_u32 s73, {SPIN}\ns_cbranch_scc1 L_end\ns_add_u32 s52, s52, s53\ns_add_u32 s54, s54, s55\ns_add_u32 s52, s52, s54\ns_cmp_lt_u32 s52, 7\ns_cbranch_scc1 {l}")
        for i in range((7 - cfg.apf0)//2): k(f"buffer_load_dword v{100+i}, v14, {S(sWS,4)}, s76 offen sc1\ns_add_u32 s76, s76, 32768")
    k("s_waitcnt vmcnt(0)")
    stamp(k, cfg, 3)
    prof_dump(k, cfg, role="H")
    k("L_end:")
    k("s_endpgm")

DOC = """;
"""
HEADER = open("recurrent_scan__ssm_conv_s4__dense_activation_mish__prompt.s.ref").read().split("; Override launch")[0] if __name__ == "__main__" else ""
def build(cfg, header=""):
    ORD[:] = cfg.ord; LOC[:] = [LOCT[ORD.index(b)] for b in range(7)]; assert ORD[6] == 6
    G16[0] = cfg.g16
    k = K(); RS[0] = int(cfg.split == 'r')
    front(k, cfg); vm0 = list(k.vm); gen_G(k, cfg); gen_S(k, cfg, vm0); gen_helper(k, cfg)
    return file_wrap([(KNAME, 256, 512, L_TOT)], [kernel_wrap(KNAME, k.text(), 256).replace(".text\n", f".text\n; never executed: places the entry point at the start of a 4 KB page\n.p2align 12\n.fill {cfg.lead//4}, 4, 0xbf800000\n" if cfg.lead is not None else ".text\n", 1).replace('denorm_mode_32 3', f'denorm_mode_32 {cfg.denorm}')], header), k

if __name__ == "__main__":
    cfg = Cfg()
    for a in sys.argv[2:]:
        n, v = a.split("=", 1); setattr(cfg, n, eval(v))
    txt, k = build(cfg, HEADER + DOC)
    open(sys.argv[1], "w").write(txt)
    print("instructions", len(k.ins), "padded states", k.padded)
```

```python
import sys, struct
from kasm import *
from asmlib import KNAME, kernel_wrap, file_wrap

def fbits(x): return "0x%08x" % struct.unpack("<I", struct.pack("<f", x))[0]
LOG2E = 1.4426950408889634

AUGW, ACNT = 0xA000, 0x10000
CNT, STATS, PROF, XT, ST, ACT, KDBG, WSN = 0, 0x8000, 0x20000, 0x100000, 0x300000, 0x500000, 0xD00000, 0x2000000
C_ACT, C_XT, C_ST = 0, 128, 184
L_WS, L_XS = [81920, 98304, 0], [49152, 65536, 16384]
L_GB, L_KC, L_U, L_SY, L_TOT = 49152, 14336, 0, 13312, 163840
L_PART, L_PCH, L_GS = 84480, 6864, L_U + 9216
sX, sW1, sW2, sWS, sAUX, sOUT = 4, 8, 12, 16, 20, 24
pX, pARE, pLDT, pDSK, pW1, pB1, pW2, pOUT, pDBG, pWS = 28, 30, 42, 44, 48, 50, 52, 54, 56, 58
sXCD, sJ, sR, sC, sRB, sFC, sKAP = 60, 61, 62, 63, 64, 65, 66
SPIN, LSPIN = 1000000, 30000000

class Cfg:
    prof = False
    kdbg = False
    span = False
    probe = None
    probewg = None
    probemin = False
    probe2 = None
    cyc = False
    depth = 6
    rot = False
    stpoll = ('s', 2)
    actsleep = 1
    c1at = [14, 22, 30, 38]
    statstep = 20
    pace2 = 9
    pace = 5
    actpf = 0
    apf0 = 3
    apfwait = 60
    w2pf = 1
    codepf = True
    outmod = ""
    pbar = False
    flagat = 1
    cut = [3, 4]
    early = [6]
    xtat = [50, 52]
    touch = 36
    w2touch = 0
    tlb = False
    ord = [2, 3, 4, 5, 0, 1, 6]
    s45 = True
    jbal = 2
    partner = 1
    pmask2 = 0
    xtearly = True
    gc1early = True
    w2from = 22
    rdlag = 1
    p0plain = 0
    pollat = 6
    cvprio = 2
    nprio = 0
    tailq = 6
    usleep = 0
    mbar = 1
    hearly = False
    hdelay = 0
    hsplit = True
    pmod = ('', 'nt')
    rshare = True
    pdump = False
    pages = True
    prew = 1
    tab = True
    four = False
    npat = 0
    npk = False
    rpre = 0
    touchS = False
    c1s = False
    gpl = (4, 5)
    spl = (5, 4)
    cpre = 2
    tabat = 99
    nearly = False
    c6cut = 4
    ncut = (16, 44)
    dmod = ''
    c1g = False
    pplate = True
    xover = True
    xo = (3, 10, [11, 14, 19, 24], 31)
    fast = True
    pollpos = 45
    c1mid = 0
    g16 = 2
    gsplit = ([0], [2, 4], [6, 8, 10])
    tn = 5
    rl16 = 1
    c0wat = 6
    lead = 0xD00
    warm = ('g1', 'mish', 'cvA', 'cvB')
    sall = None
    b8at = 14
    pbar2 = 0
    cvpre = 12
    g2prio = 0
    finsleep = 0
    bclate = True
    own = True
    aspread = 4
    gc0 = True
    c0x = 2
    c0w = 2
    gat = dict(xr=46, xs=50, touch=36)
    xtbar = 1
    hxfirst = True
    gearly = 1
    c0late = 2
    r2cut = 8
    sblk = True
    split = 'r'
    x_noconv = False
    cvfree = 3
    tailn = 12
    gblk = 4
    x_noside = False
    x_nodma = False
    x_nobar = False
    x_nokw = False
    x_acthit = False
    x_nos2 = False
    ssleep = 0
    stat = [1,2,3,4,5,6,7]
    actmod = 'sc1'
    x_noc01 = False
    kbar = False
    kdelay = False
    kprio = 1
    denorm = 3

def srd(k, d, ptr): k(f"s_mov_b64 {S(d,2)}, {S(ptr,2)}")
def srd_const(k, d, n): k(f"s_mov_b32 s{d+2}, {n}\ns_mov_b32 s{d+3}, 0x20000")

def stamp(k, cfg, i, mode=1):
    if cfg.probe:
        if i == 0 or (mode, i) == cfg.probe[1:]: k(f"s_memrealtime {S(78+2*i,2)}")
        return
    if cfg.cyc and cfg.prof and (mode == int(cfg.prof) or i == 0):
        k(f"s_memtime {S(78+2*i,2)}"); return
    if (cfg.span and i == 0) or cfg.prof and (int(cfg.prof) == mode or i == 0): k(f"s_memrealtime {S(78+2*i,2)}")
def cstamp(k, cfg, i, mode=2):
    if int(cfg.prof) == mode: k(f"s_memtime {S(78+2*i,2)}")
def prof_dump(k, cfg, last=False, role=None):
    if cfg.probe:
        if role == cfg.probe[0]:
            l = k.lab("pad"); i = cfg.probe[2]
            if cfg.probe2:
                k(f"s_waitcnt lgkmcnt(0)\ns_cmp_lg_u32 s{sCOL}, 0\ns_cbranch_scc1 L_end")
                srd(k, sAUX, pDBG); srd_const(k, sAUX, 256)
                k(f"s_not_b32 s76, s78\nv_mov_b32 v4, s76\nv_mov_b32 v5, s78\nv_mov_b32 v6, s{78+2*i}\ns_mov_b64 exec, 1")
                for n in range(3): k(f"buffer_atomic_umax v{4+n}, off, {S(sAUX,4)}, 0 offset:{128+4*n}")
                k(f"s_cmp_lg_u32 s2, 40\ns_cbranch_scc1 L_end")
                l2 = k.lab("pw")
                k(f"{l2}:\ns_memrealtime s[74:75]\ns_waitcnt lgkmcnt(0)\ns_sub_u32 s74, s74, s78\ns_cmp_lt_u32 s74, 8000\ns_cbranch_scc1 {l2}")
                k(f"buffer_load_dwordx3 v[4:6], off, {S(sAUX,4)}, 0 offset:128 sc1\ns_waitcnt vmcnt(0)\nv_readfirstlane_b32 s72, v4\nv_readfirstlane_b32 s73, v5\nv_readfirstlane_b32 s76, v6\ns_not_b32 s72, s72")
                k({"first": "s_sub_u32 s76, s76, s72", "last": "s_sub_u32 s76, s76, s73"}[cfg.probe2])
                k(f"s_lshl_b32 s76, s76, 4\ns_min_u32 s76, s76, 30000\ns_add_u32 s76, s76, 10000")
                k(f"{l}:\ns_memrealtime s[74:75]\ns_waitcnt lgkmcnt(0)\ns_sub_u32 s74, s74, s72\ns_cmp_lt_u32 s74, s76\ns_cbranch_scc1 {l}")
                return
            k(f"s_waitcnt lgkmcnt(0)\ns_sub_u32 s76, s{78+2*i}, s78\ns_lshl_b32 s76, s76, 4\ns_min_u32 s76, s76, 27000\n" + ("s_add_u32 s76, s76, 3000" if not cfg.probemin else "s_sub_u32 s76, 30000, s76"))
            if cfg.probewg is not None: k(f"s_cmp_lg_u32 s2, {cfg.probewg}\ns_cselect_b32 s76, 0, s76")
            k(f"{l}:\ns_memrealtime s[74:75]\ns_waitcnt lgkmcnt(0)\ns_sub_u32 s74, s74, s78\ns_cmp_lt_u32 s74, s76\ns_cbranch_scc1 {l}")
        return
    if cfg.span == 2 and last:
        k("L_pad:\ns_memrealtime s[80:81]\ns_waitcnt lgkmcnt(0)\ns_sub_u32 s80, s80, s78\ns_cmp_lt_u32 s80, 4000\ns_cbranch_scc1 L_pad")
    if cfg.span == 1 and last:
        k("s_memrealtime s[80:81]\ns_waitcnt lgkmcnt(0)\ns_not_b32 s78, s78\nv_mov_b32 v4, s78\nv_mov_b32 v5, s80\ns_mov_b64 exec, 1")
        k("s_cmp_lg_u32 s3, 4\ns_cbranch_scc1 L_end")
        k(f"buffer_atomic_umax v4, off, {S(sAUX,4)}, 0 offset:8\nbuffer_atomic_umax v5, off, {S(sAUX,4)}, 0 offset:12")
    if not cfg.prof: return
    k("s_waitcnt lgkmcnt(0)")
    k("s_lshl_b32 s76, s2, 3\ns_add_u32 s76, s76, s3\ns_lshl_b32 s76, s76, 6\ns_add_u32 s76, s76, %d" % PROF)
    k("s_mov_b64 exec, 1")
    for q in range(3):
        for e in range(4): k(f"v_mov_b32 v{4+e}, s{78+2*(4*q+e)}")
        k(f"buffer_store_dwordx4 v[4:7], off, {S(sWS,4)}, s76 offset:{16*q}")
    k("s_mov_b64 exec, -1")

def atomic_inc(k, srdreg, soff, vt):
    k(f"v_mov_b32 v{vt}, 1\ns_mov_b64 exec, 1")
    k(f"buffer_atomic_add v{vt}, off, {S(srdreg,4)}, {soff} sc1", "atom")
    k("s_mov_b64 exec, -1")

def s_inc(k, ptr, soff, st):
    k(f"s_mov_b32 s{st}, 1\ns_atomic_add s{st}, {S(ptr,2)}, {soff}")
def s_poll(k, ptr, soffs, want, st, sc, sleep=0):
    l = k.lab("sp"); o = k.lab("spo")
    k(f"s_mov_b32 s{sc}, 0")
    k(f"{l}:")
    for i, so in enumerate(soffs): k(f"s_load_dword s{st+i}, {S(ptr,2)}, {so} glc")
    k(f"s_add_u32 s{sc}, s{sc}, 1")
    k.wait(lg="*")
    k(f"s_cmp_gt_u32 s{sc}, {SPIN}\ns_cbranch_scc1 {o}")
    for i in range(1, len(soffs)): k(f"s_min_u32 s{st}, s{st}, s{st+i}")
    if sleep: k(f"s_cmp_ge_u32 s{st}, {want}\ns_cbranch_scc1 {o}\ns_sleep {sleep}\ns_branch {l}")
    else: k(f"s_cmp_lt_u32 s{st}, {want}\ns_cbranch_scc1 {l}")
    k(f"{o}:")
def v_poll(k, load, vt, want, sc, sleep=0, first=True, tag="*"):
    l = k.lab("vp"); o = k.lab("vpo")
    if first: k(load)
    k(f"s_mov_b32 s{sc}, 0")
    k.wait(vm=tag)
    k(f"{l}:")
    k(f"v_cmp_gt_u32 vcc, {want}, v{vt}\ns_add_u32 s{sc}, s{sc}, 1\ns_cmp_gt_u32 s{sc}, {SPIN}\ns_cbranch_scc1 {o}\ns_cbranch_vccz {o}")
    if sleep: k(f"s_sleep {sleep}")
    sv = list(k.vm); k(load); k("s_waitcnt vmcnt(0)"); k.vm = sv
    k(f"s_branch {l}")
    k(f"{o}:")

def lds_signal(k, vaddr, off, vone):
    k("s_mov_b64 exec, 1")
    k(f"ds_add_u32 v{vaddr}, v{vone} offset:{off}", "sig")
    k("s_mov_b64 exec, -1")
def lds_spin(k, vaddr, off, want, vt, st, sc, sleep=0):
    l = k.lab("spin"); o = k.lab("spun")
    k(f"s_mov_b32 s{sc}, 0")
    k(f"{l}:")
    k(f"ds_read_b32 v{vt}, v{vaddr} offset:{off}\ns_add_u32 s{sc}, s{sc}, 1")
    k.wait(lg="*")
    k(f"v_readfirstlane_b32 s{st}, v{vt}\ns_cmp_gt_u32 s{sc}, {LSPIN}\ns_cbranch_scc1 {o}")
    if sleep: k(f"s_cmp_ge_u32 s{st}, {want}\ns_cbranch_scc1 {o}\ns_sleep {sleep}\ns_branch {l}")
    else: k(f"s_cmp_lt_u32 s{st}, {want}\ns_cbranch_scc1 {l}")
    k(f"{o}:")

sCP, sCS, sCOL, sM, sT, sT2, sSP, sO1, sO2, sDO, sDM = 67, 68, 69, 70, 71, 72, 73, 74, 75, 76, 77
sXO, sWO, sA2, sB2, sDT, sDT2, sE0, sE1, sE2, sE3 = 30, 31, 32, 33, 34, 35, 36, 37, 38, 39
sHH, sG32, sKM = 40, 41, 46
sRW = 40
AB, BB, CB, X1, X8, X256, W1, W8, W256, W2, W4, TT, Z0, Z1, PK = 100, 102, 104, 106, 108, 110, 112, 114, 116, 118, 120, 122, 124, 126, 128
KWG, KR, PA, DSK, DT, VD, VF, UF, KA = 132, 140, 141, 145, 146, 150, 160, 192, 224
LOCT = [4, 6, 1, 0, 3, 5, 2]
ORD = list(range(7))
LOC = list(LOCT)
SY_GS, SY_RING, SY_RD, SY_U, SY_PAIR, SY_S, SY_W2, SY_M = 0, 4, 8, 12, 16, 24, 32, 48

def x_offsets(k, d):
    k(f"v_lshrrev_b32 v154, 3, v0\nv_and_b32 v155, 7, v0\nv_lshrrev_b32 v156, 4, v0\nv_xor_b32 v155, v155, v156")
    k(f"v_lshl_add_u32 v154, s{sCOL}, 5, v154\nv_mul_u32_u24 v154, 896, v154\nv_lshl_add_u32 v{d}, v155, 4, v154\nv_xor_b32 v155, 64, v{d}")
    k(f"v_add_u32 v{d+1}, 6144, v155\nv_add_u32 v{d+2}, {2*6144}, v{d}\nv_add_u32 v{d+3}, {3*6144}, v155")
G16 = [0]
def w1_offsets(k, d):
    f = G16[0] == 2
    k(f"v_lshrrev_b32 v154, 4, v0\nv_and_b32 v155, 15, v0\nv_lshlrev_b32 v156, {1 if f else 2}, v154\nv_xor_b32 v155, v155, v156")
    k(f"v_lshl_add_u32 v154, s{sCOL}, 4, v154\nv_mul_u32_u24 v154, 3584, v154\nv_lshl_add_u32 v{d}, v155, 4, v154")
    if f: k(f"v_xor_b32 v155, 0x80, v{d}")
    for n in (1,2,3): k(f"v_add_u32 v{d+n}, {n*13312}, v{155 if (f and n >= 2) else d}")
def w2_offsets(k, d):
    k(f"v_lshrrev_b32 v154, 3, v0\nv_and_b32 v155, 7, v0\nv_bfe_u32 v156, v0, 4, {2 if G16[0] == 2 else 1}\nv_lshlrev_b32 v156, {1 if G16[0] else 2}, v156\nv_xor_b32 v155, v155, v156")
    k(f"v_mul_u32_u24 v154, 896, v154\nv_lshl_add_u32 v{d}, v155, 4, v154")
    if G16[0] == 1: k(f"v_xor_b32 v155, 64, v{d}")
    for n in (1,2,3): k(f"v_add_u32 v{d+n}, {n*6144}, v{155 if (G16[0] == 1 and n >= 2) else d}")
sC0, sCE = 42, 43
def piece_bases(k, unit):
    k(f"s_add_u32 s{sB2}, s{sA2}, {unit}\ns_mul_i32 s{sC0}, s{sCE}, {unit}\ns_add_u32 s{sC0}, s{sC0}, s{sA2}")
def piece(n, unit, extra, d):
    if n == 0: return f"s_add_u32 s{d}, s{sC0}, {extra}"
    return f"s_cmp_le_u32 s{sCE}, {n-1}\ns_cselect_b32 s{d}, s{sB2}, s{sA2}\ns_add_u32 s{d}, s{d}, {(n-1)*unit + extra}"
def w2_bases(k, cfg):
    k(f"s_xor_b32 s{sT}, s3, s{sXCD}\ns_bitcmp1_b32 s{sT}, 0\ns_cselect_b32 s{sCE}, 0, s{sC}")
    k(f"s_and_b32 s{sT}, s3, 1\ns_mul_i32 s{sT}, s{sT}, 14\ns_add_u32 s{sT}, s{sT}, s{sCS}\ns_mul_i32 s{sA2}, s{sT}, {64*896}\ns_lshl_b32 s{sT}, s{sKAP}, 7\ns_add_u32 s{sA2}, s{sA2}, s{sT}")
    piece_bases(k, 114688)
def w2dma(b, d):
    out = [f"s_add_u32 m0, s{sM}, {LOC[b%7]*16384}\n" + piece(b//2, 114688, (b & 1)*28672, sDT) + f"\nbuffer_load_dwordx4 v{d}, {S(sW2,4)}, s{sDT} offen lds"]
    for n in (1,2,3): out.append(f"buffer_load_dwordx4 v{d+n}, {S(sW2,4)}, s{sDT} offen offset:{n*1024} lds")
    return [(g, f"w2_{b}") for g in out]
def cmul(k, z, a, w, t):
    k(f"v_pk_mul_f32 {V(t,2)}, {V(a,2)}, {V(w,2)} op_sel_hi:[1,0]")
    k(f"v_pk_fma_f32 {V(z,2)}, {V(a,2)}, {V(w,2)}, {V(t,2)} op_sel:[1,1,0] op_sel_hi:[0,1,1] neg_lo:[0,1,0]")

gW2D, gW2A, gL16, gSY, gONE, gXA, gWA, gSTA, gAGA, gAUG, gSTT, gH = 1, 5, 9, 12, 13, 80, 84, 88, 89, 90, 98, 14
sPW = 22
sGA, ZERO, VSY, VONE, _WD, sW2D, XTA, XTS, EW, CA, CBA, UW, TZ = 8, 30, 34, 35, 36, 40, 44, 46, 64, 65, 66, 67, 48

XR = 56
CLRL = f"buffer_load_dword v49, off, {S(sAUX,4)}, 0 sc1"
class Cap:
    def __init__(self): self.l = []
    def __call__(self, text, tag=None): self.l += [x for x in text.split("\n") if x.strip()]

def front(k, cfg):
    stamp(k, cfg, 0)
    k("s_load_dwordx16 s[28:43], s[0:1], 0\ns_load_dwordx16 s[44:59], s[0:1], 64")
    k("s_cmpk_ge_u32 s2, 256\ns_cbranch_scc1 L_end")
    k(f"s_lshr_b32 s{sJ}, s2, 3")
    if cfg.codepf:
        lp = k.lab("pc")
        k(f"s_getpc_b64 s[72:73]\n{lp}:\nv_and_b32 v2, 15, v0\nv_lshl_add_u32 v2, s{sJ}, 4, v2\nv_min_u32 v2, ({'L_tab+4032' if cfg.tab else 'L_end'}-{lp})/64, v2\nv_mov_b32 v3, 0")
        k(f"v_lshlrev_b32 v2, 6, v2\nv_lshl_add_u64 v[2:3], v[2:3], 0, s[72:73]\nglobal_load_dword v99, v[2:3], off", "code")
    k(f"s_sub_u32 s{sCP}, s2, 32\ns_cbranch_scc1 L_helper")
    k(f"v_and_b32 v1, 0xff, v0\nv_lshl_add_u32 v1, s{sCP}, 8, v1\nv_lshlrev_b32 v1, 2, v1\ns_lshl_b32 s{sSP}, s{sCP}, 2")
    if cfg.partner:
        k("v_xor_b32 v3, 0x1000, v1")
        if cfg.pmask2: k(f"v_lshrrev_b32 v2, 8, v0\nv_mul_u32_u24 v2, {cfg.pmask2}, v2\nv_xor_b32 v3, v2, v3")
    def ids():
        k("v_lshrrev_b32 v2, 6, v0\nv_and_b32 v0, 63, v0\nv_readfirstlane_b32 s3, v2")
        k(f"s_and_b32 s{sXCD}, s2, 7\ns_sub_u32 s{sJ}, s{sJ}, 4")
        k(f"s_mul_i32 s{sR}, s{sJ}, 37\ns_lshr_b32 s{sR}, s{sR}, 8\ns_mul_i32 s{sC}, s{sR}, 7\ns_sub_u32 s{sC}, s{sJ}, s{sC}")
        k(f"s_lshr_b32 s{sRB}, s{sXCD}, 1\ns_lshl2_add_u32 s{sRB}, s{sRB}, s{sR}")
        k(f"s_and_b32 s{sXH}, s{sXCD}, 1\ns_mul_i32 s{sFC}, s{sXH}, 7\ns_add_u32 s{sFC}, s{sFC}, s{sC}")
        k(f"s_lshl1_add_u32 s{sKAP}, s{sR}, s{sC}\ns_sub_u32 s{sT}, s{sKAP}, 7\ns_cselect_b32 s{sKAP}, s{sKAP}, s{sT}")
        k(f"s_bfe_u32 s{sCS}, s3, 0x10001\ns_and_b32 s{sCOL}, s3, 3\ns_lshl_b32 s{sM}, s{sCOL}, 12\ns_add_u32 s{sM}, s{sM}, {L_GB}")
    def pp():
        if cfg.partner:
            for i in range(2): k(f"global_load_dword v99, v3, {S(pARE+2*i,2)}", "pp")
    def offs(): x_offsets(k, XD); w1_offsets(k, WD)
    if cfg.prew >= 1: ids()
    if cfg.prew >= 2: offs()
    k("s_waitcnt lgkmcnt(0)")
    stamp(k, cfg, 1, 3)
    for i in range(2): k(f"global_load_dword v{AB+i}, v1, {S(pARE+2*i,2)} {cfg.pmod[0]}", "prm")
    k(f"s_load_dword s{sO1}, {S(pLDT,2)}, s{sSP}\ns_load_dword s{sO2}, {S(pDSK,2)}, s{sSP}")
    if not cfg.pplate: pp()
    if cfg.prew < 1: ids()
    if cfg.prew == 1: offs()
    if cfg.pplate: pp()
    for i in range(2, 6): k(f"global_load_dword v{AB+i}, v1, {S(pARE+2*i,2)} {cfg.pmod[1]}", "prm2")
    if cfg.partner == 2:
        for i in range(2, 6): k(f"global_load_dword v99, v3, {S(pARE+2*i,2)}", "pp2")
    stamp(k, cfg, 2, 3)
    if cfg.prew < 1: offs()
    srd(k, sX, pX); srd(k, sW1, pW1); srd_const(k, sX, 1835008); srd_const(k, sW1, 1605632)
    k(f"s_mul_i32 s{sDO}, s{sRB}, 114688\ns_lshl_b32 s{sT}, s{sKAP}, 7\ns_add_u32 s{sDO}, s{sDO}, s{sT}")
    k(f"s_mul_i32 s{sDM}, s{sKAP}, 229376\ns_lshl_b32 s{sT}, s{sFC}, 8\ns_add_u32 s{sDM}, s{sDM}, s{sT}")
    k(f"s_xor_b32 s{sKM}, s3, 4\ns_mul_i32 s{sKM}, s{sKM}, 8704\ns_mov_b32 s47, 0x03020c0c")
    k(f"s_cmp_lt_u32 s3, 4\ns_cselect_b32 s47, 0x01000c0c, s47\ns_cselect_b32 s1, 0, 1")
    def c0issue(part="xw"):
        o = k.lab("c0")
        k(f"s_cmp_eq_u32 s1, 1\ns_cbranch_scc1 {o}")
        if "x" in part: stamp(k, cfg, 1, 7)
        for n, (g, t) in enumerate(chunk(cfg, 0, False)):
            if "xw"[n // 4] in part: k(g, "c0x" if n < 4 else t)
        if "w" in part: stamp(k, cfg, 2, 7)
        k(f"{o}:\ns_mov_b32 m0, s{sKM}" + (f"\n{ADV}" if "w" in part else ""))
    def role_wait(tag, n_s):
        o = k.lab("rw")
        k(f"s_cmp_eq_u32 s1, 0\ns_cbranch_scc1 {o}\ns_waitcnt vmcnt({n_s})\n{o}:")
        k.wait(vm=tag)
    if cfg.c0x == 1: c0issue()
    else: k(f"s_mov_b32 m0, s{sKM}")
    k(f"s_add_u32 s{sT}, s{sKM}, {L_KC}\nv_and_b32 v154, 31, v0\nv_lshrrev_b32 v155, 5, v0\nv_mul_u32_u24 v156, 272, v154\nv_lshl_add_u32 v156, v155, 4, v156\nv_add_u32 v{KR}, s{sT}, v156")
    k(f"s_mov_b32 s44, {fbits(8.0)}\ns_mov_b32 s45, {fbits(256.0)}\nv_mov_b32 v{PK}, 0x3f80\nds_write_addtid_b32 v{PK} offset:{L_KC}")
    k(f"s_mul_i32 s{sE3}, s{sCS}, {L_PCH}\ns_and_b32 s{sHH}, s3, 1\ns_mul_i32 s{sT}, s{sHH}, 3328\ns_add_u32 s{sE3}, s{sE3}, s{sT}\ns_add_u32 s{sE3}, s{sE3}, {L_PART}\nv_lshl_add_u32 v{PA}, v0, 4, s{sE3}")
    srd(k, sWS, pWS); srd_const(k, sWS, WSN)
    k(f"s_lshl1_add_u32 s{sG32}, s{sKAP}, s{sXH}")
    for i in range(4): k(f"v_mov_b32 v{ZERO+i}, 0")
    o = k.lab("g0"); j = k.lab("g1")
    k(f"s_cmp_eq_u32 s1, 1\ns_cbranch_scc1 {o}")
    setup_G(k, cfg, 0)
    k(f"s_branch {j}\n{o}:")
    if cfg.tab:
        lp = k.lab("tb"); sv = list(k.vm)
        k(f"s_getpc_b64 s[72:73]\n{lp}:\nv_lshl_add_u32 v2, s{sHH}, 7, v0\nv_lshlrev_b32 v2, 4, v2\nv_add_u32 v2, L_tab-{lp}, v2\nv_mov_b32 v3, 0\nv_lshl_add_u64 v[76:77], v[2:3], 0, s[72:73]")
    if cfg.four:
        k(f"s_add_u32 s{sE3}, s{sKM}, {L_KC+272}\nv_mov_b32 v136, s{sKM}\nds_write_b32 v136, v{ZERO} offset:{L_KC+264}")
        writer_addresses(k)
    for part in cfg.early: S_addresses(k, part)
    k(f"{j}:")
    Lhi = struct.unpack("<f", struct.pack("<f", LOG2E))[0]; Llo = LOG2E - Lhi
    k(f"v_mov_b32 v154, {fbits(Lhi)}\nv_mov_b32 v149, {fbits(Llo)}\ns_lshl_b32 s{sT}, s{sCS}, 4")
    stamp(k, cfg, 3, 3)
    k("s_waitcnt lgkmcnt(0)"); k.lg = []
    k(f"s_lshr_b32 s{sO1}, s{sO1}, s{sT}\ns_lshl_b32 s{sO1}, s{sO1}, 16")
    k(f"v_mul_f32 v155, s{sO1}, v154\nv_fma_f32 v156, s{sO1}, v154, -v155\nv_fmac_f32 v156, s{sO1}, v149")
    k(f"v_exp_f32 v155, v155\nv_mul_f32 v156, {fbits(0.6931471805599453)}, v156\nv_fmac_f32 v155, v155, v156\nv_cvt_pk_bf16_f32 v155, v155, v155\nv_and_b32 v{DT+2}, 0xffff0000, v155")
    k(f"v_mul_f32 v{DT}, v154, v{DT+2}\nv_mul_f32 v{DT+1}, 0.15915494, v{DT+2}")
    stamp(k, cfg, 1); stamp(k, cfg, 4, 3)
    if cfg.c0x == 1: role_wait("prm", (4, 6, 10)[cfg.partner])
    else: k.wait(vm="prm")
    stamp(k, cfg, 2); stamp(k, cfg, 5, 3)
    if cfg.c0x == 2: c0issue('x' if cfg.c0wat else 'xw')
    def xt_read():
        stamp(k, cfg, 3, 7)
        k.wait(vm="c0x")
        stamp(k, cfg, 4, 7)
        k(f"ds_read_b64_tr_b16 {V(XR,2)}, v{XTA}\nds_read_b64_tr_b16 {V(XR+2,2)}, v{XTA+1} offset:512")
        k(f"ds_read_b64_tr_b16 {V(XR+4,2)}, v{XTA+1}\nds_read_b64_tr_b16 {V(XR+6,2)}, v{XTA} offset:512")
    def xt_store():
        for g in (0, 1): k(f"buffer_store_dwordx4 {V(XR+4*g,4)}, v{XTS}, {S(sWS,4)}, s{sE1+g} offen sc1", "xts")
    nv = [0]; pend = []
    def put(z, row, neg, last=False):
        p = PK + row % 4
        k(f"v_cvt_pk_bf16_f32 v{p}, v{z}, {'-' if neg else ''}v{z+1}")
        w = f"ds_write_addtid_b32 v{p} offset:{L_KC + 272*row}"
        if cfg.kdelay:
            if pend: k(pend.pop())
            pend.append(w)
            if last or row == 31: k(pend.pop())
        elif not cfg.x_nokw: k(w)
        nv[0] += 1
        if nv[0] == cfg.c0wat: c0issue("w")
        if cfg.tab and nv[0] == cfg.tabat:
            o = k.lab("tl"); sv = list(k.vm)
            k(f"s_cmp_eq_u32 s1, 0\ns_cbranch_scc1 {o}\nglobal_load_dwordx4 v[68:71], v[76:77], off\nglobal_load_dwordx4 v[72:75], v[76:77], off offset:1024\n{o}:"); k.vm = sv
        if nv[0] == cfg.kprio:
            o = k.lab("kp"); k(f"s_cmp_eq_u32 s1, 0\ns_cbranch_scc1 {o}\ns_setprio 1\n{o}:")
        if nv[0] in (35, 37, 45, 47, 49, 51): stamp(k, cfg, 3 + (35, 37, 45, 47, 49, 51).index(nv[0]), 10)
        if nv[0] in cfg.xtat:
            o = k.lab("g"); sl = list(k.lg)
            k(f"s_cmp_eq_u32 s1, 1\ns_cbranch_scc1 {o}")
            if nv[0] == cfg.xtat[0]:
                xt_read(); sl[-1] = "xt"
                if cfg.c1mid:
                    for g, t in chunk(cfg, 1, False)[:4]: k(g, t)
                    k(f"s_mov_b32 m0, s{sKM}")
            else: k.wait(lg="xt"); xt_store()
            k(f"{o}:"); k.lg = sl
        if nv[0] == cfg.touch:
            o = k.lab("g")
            k(f"s_cmp_eq_u32 s1, {0 if cfg.touchS else 1}\ns_cbranch_scc1 {o}"); sv = list(k.vm)
            if cfg.c1mid == 2:
                for g, t in chunk(cfg, 1, False)[4:]: k(g, t)
                k(f"s_mov_b32 m0, s{sKM}")
            else:
                for n in range(4): k(f"buffer_load_dword v99, v{WD+n}, {S(sW1,4)}, s{sDM} offen offset:{n*1024}", "touch")
            if cfg.touchS: assert cfg.touch >= 32; k.vm = sv
            if cfg.w2touch == 3:
                srd(k, sW2, pW2); srd_const(k, sW2, 1605632)
                k(f"s_lshl2_add_u32 s{sT}, s{sCP}, s{sCOL}\ns_mul_i32 s{sT}, s{sT}, 1792\nv_mul_u32_u24 v158, 28, v0\nbuffer_load_dword v99, v158, {S(sW2,4)}, s{sT} offen", "touch")
            k(f"{o}:")
    for i in (0, 1): k(f"v_perm_b32 v{AB+i}, v{AB+i}, v{AB+i}, s47")
    k(f"v_pk_mul_f32 {V(X1,2)}, {V(AB,2)}, {V(DT,2)}")
    k(f"v_pk_mul_f32 {V(X8,2)}, {V(X1,2)}, s[44:45] op_sel_hi:[1,0]\nv_pk_mul_f32 {V(X256,2)}, {V(X1,2)}, s[44:45] op_sel:[0,1] op_sel_hi:[1,1]")
    for x in (X8, X1, X256): k(f"v_fract_f32 v{x+1}, v{x+1}")
    for x, w in ((X8, W8), (X1, W1), (X256, W256)):
        k(f"v_exp_f32 v{x}, v{x}\nv_cos_f32 v{w}, v{x+1}\nv_sin_f32 v{w+1}, v{x+1}")
    for x, w in ((X8, W8), (X1, W1), (X256, W256)):
        k(f"v_pk_mul_f32 {V(w,2)}, {V(w,2)}, {V(x,2)} op_sel_hi:[1,0]")
    if cfg.c0wat == -1: c0issue("w")
    stamp(k, cfg, 6, 3)
    put(W8, 1, False)
    prev = W8
    for b in range(2, 32):
        cmul(k, Z0, prev, W8, TT); prev = Z0; put(Z0, b, False)
    stamp(k, cfg, 7, 3)
    for s in range(8): k(f"ds_read_b128 {V(VF+4*s,4)}, v{KR} offset:{32*s}", "vf")
    stamp(k, cfg, 1, 10)
    role_wait("prm2", (4 if cfg.partner == 2 else 0) + (2 if cfg.tab and cfg.tabat < 32 else 0))
    stamp(k, cfg, 2, 10)
    for i in range(2, 6): k(f"v_perm_b32 v{AB+i}, v{AB+i}, v{AB+i}, s47")
    cmul(k, Z1, BB, CB, TT)
    k(f"v_pk_mul_f32 {V(Z1,2)}, {V(Z1,2)}, {V(DT+2,2)} op_sel_hi:[1,0]")
    put(Z1, 0, True)
    cmul(k, W2, W1, W1, TT); cmul(k, W4, W2, W2, TT)
    prev = Z1
    for a in range(1, 21):
        if a in (8, 12, 14) or a >= 16: cmul(k, Z1, Z1, W256, TT); prev = Z1
        else: cmul(k, Z0, prev, W1 if a < 8 else (W2 if a < 12 else W4), TT); prev = Z0
        put(prev, a, True, a == 20)
    stamp(k, cfg, 8, 3)
    for s in range(8): k(f"ds_read_b128 {V(UF+4*s,4)}, v{KR} offset:{32*s}", f"uf{s}")
    kmf = lambda s: f"v_mfma_f32_32x32x16_bf16 {V(KA,16)}, {V(UF+4*s,4)}, {V(VF+4*s,4)}, {'0' if s == 0 else V(KA,16)}"
    c1 = chunk(cfg, 1)
    o = k.lab("c1"); sl = list(k.lg); sv = list(k.vm)
    k("s_cmp_eq_u32 s1, 1\ns_cbranch_scc1 L_S")
    def s_tail():
        k.lg = list(sl); k.vm = []
        for s in range(8):
            k.wait(lg=f"uf{s}")
            k(kmf(s))
            if cfg.c1s: k(*c1[s])
            elif s % 2 == 0 and cfg.c1mid < 2 and not cfg.c1g: k(*c1[4 + s//2])
            if s == 5 and (cfg.c1mid == 2 or cfg.c1g): k(ADV)
            if s == 1: srd(k, sAUX, pDBG); srd_const(k, sAUX, 256)
            if s == 3: k(f"v_mov_b32 v{VSY}, {L_SY}\nv_mov_b32 v{VONE}, 1\ns_movk_i32 s50, 128\ns_mov_b32 s51, 229376")
        stamp(k, cfg, 9, 3); stamp(k, cfg, 3); stamp(k, cfg, 7, 7)
        if cfg.tab and cfg.tabat > 52: k("global_load_dwordx4 v[68:71], v[76:77], off\nglobal_load_dwordx4 v[72:75], v[76:77], off offset:1024", "tab")
        if cfg.pages and "g1" in cfg.warm: k.warm("g1")
        if cfg.four: k(PW)
        k("s_barrier")
    k.s_tail = s_tail
    cap = Cap()
    if cfg.four: writer_addresses(cap)
    setup_G(cap, cfg, 1)
    for _ in range(12): k(cap.l.pop(0))
    for s in range(8):
        k.wait(lg=f"uf{s}")
        k(kmf(s))
        if s == 7 and cfg.pages: k.page("g1")
        for _ in range(5): k(cap.l.pop(0))
    stamp(k, cfg, 9, 3)
    for _ in range(8): k(cap.l.pop(0))
    k(f"v_add_f32 v{KA}, v{KA}, v{DSK}")
    if cfg.four: k(PW)
    else:
        for r in (1, 2, 0): k(f"ds_write_b128 v{PA}, {V(KA+4*r,4)} offset:{1024*r}")
    if cfg.xtat[0] > 52: xt_read(); k.wait(lg="*"); xt_store()
    stamp(k, cfg, 5, 7)
    if not cfg.c1mid and not cfg.c1s:
        for n in range(4): k(*c1[n])
    if cfg.c1g:
        for g, t in chunk(cfg, 1, False)[4:]: k(g, t)
    stamp(k, cfg, 6, 7); stamp(k, cfg, 9, 10)
    while cap.l: k(cap.l.pop(0))
    k.wait(vm="c0")
    stamp(k, cfg, 7, 7); stamp(k, cfg, 10, 10)
    stamp(k, cfg, 3)
    stamp(k, cfg, 10, 3)
    k("s_barrier")
    stamp(k, cfg, 11, 3); stamp(k, cfg, 8, 7); stamp(k, cfg, 11, 10)

XD, WD, sXH = 150, 132, sJ
ADV = (f"s_add_u32 s{sDO}, s{sDO}, 128\ns_add_u32 s{sDM}, s{sDM}, 229376\ns_cmp_ge_u32 s{sDM}, 1605632\ns_cselect_b32 s{sDT}, 896, 0\n"
       f"s_cselect_b32 s{sDT2}, 1605632, 0\ns_sub_u32 s{sDO}, s{sDO}, s{sDT}\ns_sub_u32 s{sDM}, s{sDM}, s{sDT2}")
def chunk(cfg, c, adv=True):
    out = []
    for vd, srdr, so, slots in ((XD, sX, sDO, L_XS), (WD, sW1, sDM, L_WS)):
        o = [f"buffer_load_dwordx4 v{vd+n}, {S(srdr,4)}, s{so} offen offset:{n*1024} lds" for n in range(4)]
        o[0] = f"s_add_u32 m0, s{sM}, {slots[c % 3]}\n" + o[0]
        out += o
    if adv and c == 1: out[-1] += "\n" + ADV
    if adv and 1 < c < 6:
        out[4] += f"\ns_cmp_ge_u32 s{sDM}, {6*229376}\ns_cselect_b32 s{sDT}, -768, s50\ns_cselect_b32 s{sDT2}, {-6*229376}, s51\ns_add_u32 s{sDO}, s{sDO}, s{sDT}"
        out[7] += f"\ns_add_u32 s{sDM}, s{sDM}, s{sDT2}"
    return [(g, f"c{c}") for g in out]

def setup_G(k, cfg, part):
    if part == 0:
        k(f"v_lshrrev_b32 v{gH}, 5, v0\nv_and_b32 v15, 31, v0")
        k(f"s_lshl_b32 s{sT}, s{sHH}, 13\ns_add_u32 s{sT}, s{sT}, {L_GB+L_XS[2]}")
        if cfg.g16 == 2:
            k(f"v_bfe_u32 v13, v0, 1, 3\nv_lshrrev_b32 v50, 4, v0\nv_xor_b32 v12, v13, v50\nv_lshlrev_b32 v12, 4, v12\nv_and_b32 v11, 15, v0\nv_lshl_add_u32 v12, v11, 7, v12\nv_add_u32 v80, s{sT}, v12\nv_xor_b32 v81, 64, v80")
            k(f"v_and_b32 v54, 1, v0\nv_lshlrev_b32 v53, 13, v13\nv_lshl_add_u32 v53, v50, 4, v53\nv_lshl_add_u32 v{XTS}, v54, 6, v53")
            k(f"v_bfe_u32 v10, v0, 2, 2\nv_and_b32 v11, 3, v0\nv_lshlrev_b32 v11, 3, v11\nv_bfe_u32 v12, v0, 2, 3\ns_lshl_b32 s{sT}, s{sCS}, 2\nv_xor_b32 v12, s{sT}, v12\nv_lshl_add_u32 v12, v12, 5, v11")
            k(f"v_lshl_add_u32 v13, v50, 3, v10\nv_lshl_add_u32 v12, v13, 8, v12\nv_add_u32 v82, {L_GB+L_WS[0]}, v12")
            for i in (1, 2, 3): k(f"v_xor_b32 v{82+i}, {32*i}, v82")
        else:
            k(f"v_bfe_u32 v13, v0, 1, 3\nv_xor_b32 v12, v13, v{gH}\nv_lshlrev_b32 v12, 4, v12\nv_lshl_add_u32 v12, v15, 7, v12\nv_add_u32 v{gXA}, s{sT}, v12")
            for s in (1,2,3): k(f"v_xor_b32 v{gXA+s}, {32*s}, v{gXA}")
            k(f"v_lshrrev_b32 v50, 4, v0\nv_and_b32 v54, 1, v0\nv_lshlrev_b32 v53, 13, v13\nv_lshl_add_u32 v53, v50, 4, v53\nv_lshl_add_u32 v{XTS}, v54, 6, v53")
            k(f"v_bfe_u32 v10, v0, 2, 2\nv_and_b32 v11, 3, v0\nv_lshlrev_b32 v11, 3, v11\nv_and_b32 v12, 16, v0\nv_lshl_add_u32 v11, v12, 1, v11")
            k(f"s_and_b32 s{sT}, s3, 2\nv_xor_b32 v12, s{sT}, v10\nv_lshl_add_u32 v12, v12, 6, v11")
            k(f"v_lshl_add_u32 v13, v{gH}, 3, v10\nv_lshl_add_u32 v12, v13, 8, v12\nv_add_u32 v{gWA}, {L_GB+L_WS[0]}, v12\nv_xor_b32 v{gWA+1}, 64, v{gWA}\nv_add_u32 v{gWA+2}, {L_GB+L_WS[2]}, v12\nv_xor_b32 v{gWA+3}, 64, v{gWA+2}")
        k(f"s_lshl_b32 s{sT}, s{sXH}, 2\nv_lshl_add_u32 v52, v50, 3, v10")
        k(f"v_bfe_u32 v53, v0, 1, 1\nv_or_b32 v53, s{sT}, v53\nv_bfe_u32 v51, v52, 1, 3\nv_xor_b32 v53, v53, v51\nv_lshlrev_b32 v53, 4, v53")
        k(f"s_add_u32 s{sT}, s{sM}, {L_XS[0]}\nv_lshl_add_u32 v53, v52, 7, v53\nv_lshl_add_u32 v53, v54, 3, v53\nv_add_u32 v{XTA}, s{sT}, v53\nv_xor_b32 v{XTA+1}, 32, v{XTA}")
        k(f"s_lshl_b32 s{sT}, s{sG32}, 8\ns_add_u32 s{sT}, s{sT}, s{sRB}\ns_lshl2_add_u32 s{sT}, s{sT}, s{sCOL}\ns_lshl_b32 s{sT}, s{sT}, 7\ns_add_u32 s{sE1}, s{sT}, {XT}\ns_add_u32 s{sE2}, s{sE1}, 65536")
        k(f"s_mul_i32 s{sT}, s3, 4576\ns_cmp_ge_u32 s3, 2\ns_cselect_b32 s{sT}, {L_SY}, s{sT}\ns_sub_u32 s{sT2}, s{sE3}, 16")
        k(f"v_min_u32 v156, 29, v0\nv_lshl_add_u32 v156, v156, 4, s{sT}\nv_mov_b32 v155, s{sT2}\nv_cmp_eq_u32 vcc, 0, v{gH}\ns_nop 1\nv_cndmask_b32 v156, v155, v156, vcc\nds_write_b128 v156, {V(ZERO,4)}")
        return
    k(f"s_lshl_b32 s{sT}, s{sCS}, 4\ns_lshr_b32 s{sO2}, s{sO2}, s{sT}\ns_lshl_b32 s{sO2}, s{sO2}, 16\ns_cmp_eq_u32 s{sHH}, 0\ns_cselect_b32 s{sO2}, s{sO2}, 0")
    k(f"v_mov_b32 v154, s{sO2}\nv_cmp_eq_u32 vcc, 0, v0")
    srd(k, sW2, pW2); srd_const(k, sW2, 1605632)
    k(f"v_cndmask_b32 v{DSK}, 0, v154, vcc")
    w2_bases(k, cfg); w2_offsets(k, gW2D)
    if cfg.g16 == 2:
        for i in range(4): k(f"v_subrev_u32 v{86+i}, {L_WS[0]-L_WS[2]}, v{82+i}")
        k(f"v_lshrrev_b32 v13, 2, v0\nv_lshl_add_u32 v12, v13, 7, v11\nv_bfe_u32 v13, v0, 3, 2\nv_lshl_add_u32 v12, v13, 5, v12\nv_add_u32 v{gW2A}, s{sM}, v12")
        for i in (1, 2, 3): k(f"v_xor_b32 v{gW2A+i}, {32*i}, v{gW2A}")
    elif cfg.g16:
        k(f"v_lshl_add_u32 v13, v{gH}, 2, v10\nv_and_b32 v12, 16, v0\nv_add_u32 v13, v13, v12\nv_and_b32 v12, 24, v11\nv_lshl_add_u32 v12, v13, 7, v12\nv_bfe_u32 v13, v0, 3, 2\nv_lshl_add_u32 v12, v13, 5, v12")
        k(f"v_add_u32 v{gW2A}, s{sM}, v12")
        for i in (1, 2, 3): k(f"v_xor_b32 v{gW2A+i}, {32*i}, v{gW2A}")
    else:
        k(f"v_lshl_add_u32 v13, v{gH}, 2, v10\nv_lshl_add_u32 v12, v13, 7, v11\nv_lshrrev_b32 v13, 1, v10\nv_lshl_add_u32 v12, v13, 6, v12")
        k(f"v_add_u32 v{gW2A}, s{sM}, v12\nv_xor_b32 v{gW2A+1}, 64, v{gW2A}\nv_add_u32 v{gW2A+2}, 65536, v{gW2A}\nv_add_u32 v{gW2A+3}, 65536, v{gW2A+1}")
    if cfg.g16 == 2:
        k(f"v_mul_u32_u24 v13, 384, v{gH}\ns_mul_i32 s{sT}, s{sCS}, 768\ns_add_u32 s{sT}, s{sT}, {L_GS}\nv_lshl_add_u32 v12, v15, 3, s{sT}\nv_add_u32 v92, v12, v13")
        k(f"s_mul_i32 s{sT}, s{sHH}, 768\ns_add_u32 s{sT}, s{sT}, {L_GS+256}\nv_lshl_add_u32 v12, v15, 2, s{sT}\nv_add_u32 v91, v12, v13\nv_and_b32 v12, 15, v0\nv_lshl_add_u32 v90, v12, 2, s{sT}")
    else:
        k(f"s_mul_i32 s{sT}, s{sCS}, 768\ns_add_u32 s{sT}, s{sT}, {L_GS}\nv_lshl_add_u32 v13, v15, 3, s{sT}\nv_cmp_eq_u32 vcc, 0, v{gH}")
        k(f"s_mul_i32 s{sT}, s{sHH}, 768\ns_add_u32 s{sT}, s{sT}, {L_GS+256}\nv_cndmask_b32 v{gAGA}, 0, v13, vcc\nv_lshl_add_u32 v{gSTA}, v15, 2, s{sT}")
    k(f"v_lshlrev_b32 v{gL16}, 4, v0\nv_mov_b32 v{gSY}, {L_SY}\nv_mov_b32 v{gONE}, 1\nv_lshl_add_u32 v10, s{sCOL}, 2, v{gSY}")
    k(f"s_lshl1_add_u32 s{sE0}, s{sRB}, s{sHH}\ns_lshl1_add_u32 s{sXO}, s{sFC}, s{sCS}")
    k(f"s_lshl1_add_u32 s{sWO}, s{sE0}, s{sCS}\ns_lshl1_add_u32 s{sWO}, s{sWO}, s{sXH}\ns_lshr_b32 s{sT}, s{sC}, {1 if cfg.aspread == 4 else 3}\ns_lshl2_add_u32 s{sWO}, s{sWO}, s{sT}\ns_lshl_b32 s{sWO}, s{sWO}, 7\ns_add_u32 s{sWO}, s{sWO}, {ACNT}")
    k(f"s_lshl_b32 s{sXO}, s{sXO}, 13\ns_mul_i32 s{sT}, s{sE0}, 229376\ns_add_u32 s{sXO}, s{sXO}, s{sT}\ns_add_u32 s{sXO}, s{sXO}, {ACT}\ns_add_u32 s{sE3}, s{sXO}, 4096")

GSP = [[], [], []]
def gather_addresses(k, part):
    if part == 1:
        k(f"s_mul_i32 s48, s{sCS}, {L_PCH//132*32}\ns_add_u32 s48, s48, {L_PART//132*32}")
        k(f"v_lshl_add_u32 v50, s{sHH}, 6, v0\ns_add_u32 s54, s48, {255+384}\nv_sub_u32 v2, s54, v50\nv_add_u32 v3, 1, v2\nv_cmp_eq_u32 vcc, 127, v50")
        k(f"v_lshlrev_b32 v50, 3, v50\nv_sub_u32 v50, 1023, v50\nv_subbrev_co_u32 v4, vcc, 0, v2, vcc")
        for e in range(3): k(f"v_lshrrev_b32 v5, 5, v{2+e}\nv_add_lshl_u32 v{sGA+11+e}, v{2+e}, v5, 2")
        k(f"s_sub_u32 s54, s48, 0x4300")
        k(f"v_cvt_f32_i32 v51, v50\nv_add_u32 v50, s54, v50\ns_sub_u32 s55, s54, 1\nv_mov_b32 v52, s55\ns_add_u32 s54, s54, 128\ns_mov_b32 s55, {fbits(128.0)}")
    for n in {0: [], 1: GSP[0], 2: GSP[1], 8: GSP[2]}[part]:
        es = (0, 1) if n < 10 else (0,)
        for e in es:
            k(f"v_subrev_f32 v{2+e}, {fbits(float(n+e))}, v51\nv_max_f32 v{2+e}, s55, v{2+e}\nv_subrev_u32 v{4+e}, {n+e}, v50\nv_med3_i32 v{4+e}, v{4+e}, v52, s54")
        k(f"v_cvt_pk_bf16_f32 v2, v2, v3")
        for e in es:
            k(f"v_add_u32_sdwa v{4+e}, v{4+e}, v2 dst_sel:DWORD dst_unused:UNUSED_PAD src0_sel:DWORD src1_sel:WORD_{e}")
            k(f"v_lshrrev_b32 v3, 5, v{4+e}\nv_add_lshl_u32 v{sGA+n+e}, v{4+e}, v3, 2")
    if part == 0:
        k(f"v_and_b32 v50, 31, v0\nv_lshrrev_b32 v51, 5, v0")
        k(f"v_lshlrev_b32 v2, 3, v50\nv_lshl_add_u32 v2, v51, 2, v2\nv_sub_u32 v3, 2, v51\nv_lshlrev_b32 v3, v3, v50\nv_lshl_add_u32 v3, v51, 7, v3\nv_add_u32 v3, 256, v3")
        k(f"v_lshl_add_u32 v4, v51, 7, v50\nv_add_u32 v4, 512, v4")
        for e, d in ((0, 0), (1, 1), (2, 3)): k(f"v_lshrrev_b32 v5, 5, v{2+e}\nv_add_u32 v5, v5, v{2+e}\nv_lshl_add_u32 v{sPW+d}, v5, 2, s{sE3}")
        k(f"v_lshl_add_u32 v{sPW+2}, v51, 8, v{sPW+1}")

def writer_addresses(k):
    k(f"v_and_b32 v136, 31, v0\nv_lshrrev_b32 v137, 5, v0")
    k(f"v_lshlrev_b32 v{PA}, 3, v136\nv_lshl_add_u32 v{PA}, v137, 2, v{PA}\nv_sub_u32 v{PA+1}, 2, v137\nv_lshlrev_b32 v{PA+1}, v{PA+1}, v136\nv_lshl_add_u32 v{PA+1}, v137, 7, v{PA+1}\nv_add_u32 v{PA+1}, 256, v{PA+1}")
    k(f"v_mad_u32_u24 v{PA+3}, v137, s45, v136".replace("s45", "v138").replace("v_mad", "v_mov_b32 v138, 132\nv_mad") + f"\nv_lshl_add_u32 v{PA+3}, v{PA+3}, 2, s{sE3}\nv_add_u32 v{PA+3}, {528*4}, v{PA+3}")
    for d in (0, 1): k(f"v_lshrrev_b32 v138, 5, v{PA+d}\nv_add_u32 v138, v138, v{PA+d}\nv_lshl_add_u32 v{PA+d}, v138, 2, s{sE3}")
    k(f"v_lshl_add_u32 v{PA+2}, v137, 8, v{PA+1}")
PW = "\n".join(f"ds_write2_b32 v{PA+a}, v{KA+r}, v{KA+r+1} offset0:{o0} offset1:{o1}" for a, r, o0, o1 in
               ((3, 8, 0, 33), (3, 10, 66, 99), (1, 4, 0, 1), (2, 6, 2, 3), (0, 2, 2, 3), (0, 0, 0, 1)))

sGB = 78
FOUR = [0]
RS = [0]
JSETS = (([7, 6, 0], [5, 4, 3, 2, 1]), ([7, 6, 1], [5, 4, 3, 2, 0]), ([7, 6, 2], [5, 4, 1, 0, 3]))
vXC, vST, vXW, vODD, vGA, vGW, vSC = 26, 27, 28, 29, 36, 37, 38
def S_addresses(k, part):
    sWV = sCOL
    if part < 3 or part == 8: gather_addresses(k, part)
    if part == 9:
        ent = lambda d, n: f"v_add_u32_sdwa v{d}, s{sT}, v{68 + n//2} dst_sel:DWORD dst_unused:UNUSED_PAD src0_sel:DWORD src1_sel:WORD_{n & 1}"
        k(f"s_mul_i32 s{sT}, s{sCS}, {L_PCH}\ns_add_u32 s{sT}, s{sT}, {L_PART-16}")
        for n in range(14): k(ent(sGA+n, n))
        if FOUR[0]:
            k(f"s_mul_i32 s{sT}, s{sCS}, 17408\ns_add_u32 s{sT}, s{sT}, {L_KC+272-16}")
            for n in range(14): k(ent(sGB+n, n))
        k(f"s_mul_i32 s{sT}, s{sCS}, 16640\ns_add_u32 s{sT}, s{sT}, {L_KC-256}\n" + ent(CA, 14))
        k(f"s_mul_i32 s{sT}, s{sCS}, 4576\n" + ent(CBA, 15))
    if part == 3:
        k(f"s_mul_i32 s{sT}, s{sCS}, 16640\ns_add_u32 s{sT}, s{sT}, {L_KC}\ns_lshl_b32 s{sT2}, s{sHH}, 10\ns_add_u32 s{sT2}, s{sT2}, s{sT}\nv_lshl_add_u32 v{EW}, v0, 4, s{sT2}")
        k(f"v_bfe_u32 v2, v0, 1, 2\nv_mul_u32_u24 v2, 4160, v2\nv_and_b32 v{vODD}, 1, v0\nv_lshl_add_u32 v2, v{vODD}, 4, v2\nv_add_u32 v{TZ}, s{sT}, v2")
        k(f"s_lshr_b32 s{sT}, s{sCP}, 4\ns_lshl_b32 s{sT}, s{sT}, 2\ns_add_u32 s{sT}, s{sT}, {C_XT}\ns_lshl_b32 s{sT}, s{sT}, 7\nv_and_b32 v2, 3, v0\nv_lshl_add_u32 v{vXC}, v2, 7, s{sT}")
        k(f"s_lshl_b32 s{sT}, s{sCP}, 13\ns_add_u32 s{sT}, s{sT}, {XT}\nv_lshl_add_u32 v2, s{sWV}, 6, v0\nv_and_b32 v3, 0xfc, v2\nv_add_u32 v3, v3, v2\nv_lshl_add_u32 v{vXW}, v3, 4, s{sT}\nv_lshlrev_b32 v{vST}, 4, v2\nv_add_u32 v{UW}, {L_U+480}, v{vST}")
        k(f"s_mov_b32 s{sXO}, {STATS}\ns_mov_b32 s{sWO}, {STATS+4096}")
    if part == 4:
        k(f"s_lshl_b32 s{sT}, s{sFC}, 2\ns_add_u32 s{sT}, s{sT}, s{sWV}\ns_lshl_b32 s{sT}, s{sT}, 8\ns_add_u32 s{sT}, s{sT}, {AUGW}\nv_lshl_add_u32 v3, v0, 4, s{sT}")
        k(f"s_lshl_b32 s{sT}, s{sRB}, 2\ns_add_u32 s{sT}, s{sT}, s{sWV}\ns_lshl_b32 s{sT}, s{sT}, 6\ns_add_u32 s{sT}, s{sT}, {STATS}\nv_lshl_add_u32 v4, v{vODD}, 12, s{sT}")
        k(f"v_bfe_u32 v2, v0, 1, 2\nv_lshl_add_u32 v4, v2, 4, v4\nv_cmp_gt_u32 vcc, 16, v0\ns_mul_i32 s{sE0}, s{sWV}, 384\ns_add_u32 s{sE0}, s{sE0}, {L_GS}\nv_cndmask_b32 v{vGA}, v4, v3, vcc")
        k(f"v_min_u32 v2, 23, v0\nv_lshl_add_u32 v{vGW}, v2, 4, s{sE0}")
        w2_offsets(k, sW2D)
    if part == 7:
        k(f"v_bfe_u32 v53, v0, 2, 2\nv_lshlrev_b32 v53, 7, v53\nv_and_b32 v54, 3, v0\nv_lshl_add_u32 v53, v54, 4, v53\nv_lshrrev_b32 v54, 5, v0\nv_lshl_add_u32 v53, v54, 6, v53")
        k(f"v_bfe_u32 v54, v0, 4, 1\nv_lshl_add_u32 v54, v54, 9, v53")
        k(f"s_lshl_b32 s{sO1}, s{sCP}, 1\ns_add_u32 s{sO1}, s{sO1}, s{sCS}")
        k(f"s_lshr_b32 s{sT}, s{sO1}, 6\ns_lshl_b32 s{sT}, s{sT}, 1\ns_add_u32 s{sT}, s{sT}, s{sHH}\ns_lshl_b32 s{sT}, s{sT}, 2\ns_bfe_u32 s{sT2}, s{sO1}, 0x20004")
        k(f"s_add_u32 s{sT}, s{sT}, s{sT2}\ns_add_u32 s{sT}, s{sT}, {C_ST}\ns_lshl_b32 s{sO2}, s{sT}, 7")
        k(f"s_lshl_b32 s{sO1}, s{sO1}, 12\ns_add_u32 s{sO1}, s{sO1}, {ST}")
    if part == 6:
        srd(k, sW2, pW2); srd_const(k, sW2, 1605632); srd(k, sOUT, pOUT); srd_const(k, sOUT, 1835008)
        w2_bases(k, None)
    if part == 5:
        k(f"s_mul_i32 s{sT}, s{sCS}, 16640\ns_add_u32 s{sT}, s{sT}, {L_KC+24}" + (f"\ns_lshl_b32 s{sT2}, s{sHH}, 8\ns_sub_u32 s{sT}, s{sT}, s{sT2}" if RS[0] else ""))
        k(f"v_and_b32 v2, 3, v0\nv_sub_u32 v2, 3, v2\nv_mul_u32_u24 v2, 4160, v2\nv_bfe_u32 v3, v0, 2, 2\nv_lshlrev_b32 v3, 3, v3\nv_sub_u32 v2, v2, v3")
        k(f"v_lshrrev_b32 v3, 4, v0\nv_lshl_add_u32 v2, v3, 4, v2\nv_add_u32 v{CA}, s{sT}, v2")
        k(f"s_mul_i32 s{sT}, s{sCS}, 4576\ns_add_u32 s{sT}, s{sT}, {L_U+256*RS[0]}" + (f"\ns_sub_u32 s{sT}, s{sT}, s{sT2}" if RS[0] else ""))
        k(f"v_and_b32 v2, 15, v0\nv_lshlrev_b32 v2, 5, v2\nv_lshl_add_u32 v2, v3, 4, v2\nv_add_u32 v{CBA}, s{sT}, v2")
        k(f"v_lshl_add_u32 v{vSC}, s{sWV}, 2, v{VSY}")

def gen_G(k, cfg):
    ACC, W2R, RING = 16, 80, 192
    FS = [100, 116, 132]
    W2D, W2A, L16, XA, WA, AUG, STT = gW2D, gW2A, gL16, gXA, gWA, gAUG, gSTT
    RC, RL, T, P = 240, 244, 248, 208
    assert cfg.depth <= 6
    k("s_setprio 2")
    stamp(k, cfg, 1, 2); cstamp(k, cfg, 10)
    def w2read(step, dst_step):
        b = step // 2; loc = LOC[b % 7]*16384 + (step & 1)*2048; hi = 2 if loc >= 65536 else 0; loc -= hi*32768
        out = []
        if cfg.g16:
            loc = LOC[b % 7]*16384 % 65536
            return [f"ds_read_b64_tr_b16 {V(W2R + dst_step*8 + d2*4 + rd*2, 2)}, v{(240 if hi else W2A) + 2*(step & 1) + d2} offset:{loc + rd*(2048 if cfg.g16 == 2 else 1024)}" for d2 in (0, 1) for rd in (0, 1)]
        for d2 in (0, 1):
            for rd in (0, 1):
                out.append(f"ds_read_b64_tr_b16 {V(W2R + dst_step*8 + d2*4 + rd*2, 2)}, v{W2A+hi+d2} offset:{loc + rd*1024}")
        return out
    def reads(i):
        c, s, F = i // 4, i % 4, FS[i % 3]; sl = c % 3
        wa, wo = (WA, L_WS[sl] - L_WS[0]) if sl < 2 else (WA + 2, 0)
        w = lambda ft: [f"ds_read_b64_tr_b16 {V(F+8+4*ft+2*rd,2)}, v{wa+ft} offset:{wo + s*4096 + rd*1024}" for rd in (0, 1)]
        x = [f"ds_read_b128 {V(F+4*tt,4)}, v{XA+s} offset:{L_XS[sl] - L_XS[2] + tt*4096}" for tt in (0, 1)]
        return w(0) + x + w(1)
    dq = []
    cap = Cap()
    if cfg.g16 == 2:
        F2 = [100, 132]; RC, RL, ST4 = 232, 240, 164
        def reads16(i):
            c, s, F = i // 2, i % 2, F2[i % 2]; sl = c % 3
            wa, wo = (82, L_WS[sl] - L_WS[0]) if sl < 2 else (86, 0)
            w = lambda ft: [(f"ds_read_b64_tr_b16 {V(F+16+4*ft+2*rd,2)}, v{wa+ft} offset:{wo + s*8192 + rd*1024}", f"w{i}_{ft}") for rd in (0, 1)]
            x = [(f"ds_read_b128 {V(F+4*tt,4)}, v{80+s} offset:{L_XS[sl] - L_XS[2] + tt*2048}", f"x{i}_{tt}") for tt in range(4)]
            return w(0) + x + w(1) + w(2) + w(3)
        for r in reads16(0): k(*r)
        prep = []
        for i in range(14):
            F = F2[i % 2]; rd = reads16(i+1) if i < 13 else []
            edge = i % 2 == 1; m0 = 4 if edge else 1
            for m in range(16):
                ft, tt = m >> 2, m & 3; a = ACC + 4*m
                if i == 0 and ft == 0: k.wait(lg=f"x0_{tt}")
                elif m == 0: k.wait(lg=f"x{i}_3")
                if tt == 0 and ft: k.wait(lg=f"w{i}_{ft}")
                k(f"v_mfma_f32_16x16x32_bf16 {V(a,4)}, {V(F+16+4*ft,4)}, {V(F+4*tt,4)}, {'0' if i == 0 else V(a,4)}")
                if edge and m == 3:
                    c = (i+1)//2
                    if c == 1: stamp(k, cfg, 9, 7)
                    k.wait(vm={1: "c1", cfg.xtbar: "*"}.get(c), lg="*")
                    if c == 1: stamp(k, cfg, 10, 7)
                    k("s_barrier")
                    if c < 7: stamp(k, cfg, 1 + c, 2)
                    if c == 1: stamp(k, cfg, 11, 7)
                    dq += [x for b in (2*c-10, 2*c-9) if 1 <= b < 4 for x in w2dma(ORD[b], W2D)]
                    if c == 7:
                        rd = [(f"ds_read_b32 v{ST4+4}, v91", "sb"), (f"ds_read_b64 v[94:95], v92", "sb")]
                        rd += [(f"ds_read_b32 v{ST4+t4}, v90 offset:{(t4 >> 1)*384 + (t4 & 1)*64}", "st") for t4 in range(4)]
                        m0 = 3
                if dq and 2*i >= cfg.w2from and m % 4 == 1: k(*dq.pop(0))
                if m >= m0 and rd: k(*rd.pop(0))
                if i == 13 and m == 0: k(f"s_mov_b32 s50, {fbits(-15.0)}\ns_mov_b32 s44, {fbits(2.0**-15)}")
                if i == 13 and m == 2: k(f"s_mov_b32 s45, {fbits(2.0**-30)}\ns_mov_b32 s{sT}, 0x01000100")
                if i == 13 and m == 11:
                    k.wait(lg="sb"); k(f"v_perm_b32 v96, v{ST4+4}, v{ST4+4}, s{sT}")
                if i == 13 and m == 12: k(f"v_lshrrev_b32 v97, 16, v{ST4+4}")
                if i == 13 and m == 14:
                    k.wait(lg="*"); k(f"v_and_b32 v{ST4}, 0xffff0000, v{ST4}")
                if i == 13 and m == 15: k(f"v_and_b32 v{ST4+1}, 0xffff0000, v{ST4+1}")
            assert not rd
        fill = [f"v_rcp_f32 v{RC}, v{ST4}\nv_rcp_f32 v{RC+2}, v{ST4+1}\nv_and_b32 v{ST4+2}, 0xffff0000, v{ST4+2}\nv_and_b32 v{ST4+3}, 0xffff0000, v{ST4+3}",
                f"v_rcp_f32 v{RC+4}, v{ST4+2}\nv_rcp_f32 v{RC+6}, v{ST4+3}"]
        fill += ["\n".join(f"v_mul_f32 v{RC+2*t4+1}, {fbits(-2.0**-29)}, v{RC+2*t4}\nv_mul_f32 v{RL+t4}, {fbits(LOG2E)}, v{RC+2*t4}" for t4 in p_) for p_ in ((0, 1), (2, 3))]
        for ft in range(4):
            k(f"v_mfma_f32_16x16x4_4b_bf16 {V(ACC+16*ft,16)}, v[94:95], v[96:97], {V(ACC+16*ft,16)} cbsz:2 abid:{ft}")
            k(fill[ft])
    else:
        for i in (0, 1):
            for r in reads(i): k(r, f"f{i}")
        for i in range(28):
            F = FS[i % 3]
            rd = reads(i+2) if i + 2 < 28 else []
            edge = rd and (i + 2) % 4 == 0
            gaps = [[], rd[:3], rd[3:], []] if edge else [rd[:2], rd[2:4], rd[4:], []]
            k.wait(lg=f"f{i}")
            for m in range(4):
                ft, tt = m >> 1, m & 1; a = ACC + 16*m
                k(f"v_mfma_f32_32x32x16_bf16 {V(a,16)}, {V(F+8+4*ft,4)}, {V(F+4*tt,4)}, {'0' if i == 0 else V(a,16)}")
                if edge and m == 1:
                    c = (i+2)//4
                    if c == 1: stamp(k, cfg, 9, 7)
                    k.wait(vm={1: "c1", cfg.xtbar: "*"}.get(c), lg="*")
                    if c == 1: stamp(k, cfg, 10, 7)
                    if not cfg.x_nobar: k("s_barrier")
                    stamp(k, cfg, 1 + c, 2)
                    if c == 1: stamp(k, cfg, 11, 7)
                    dq += [x for b in (2*c-10, 2*c-9) if int(cfg.sblk) <= b < cfg.gblk and not cfg.sall for x in w2dma(ORD[b], W2D)]
                if dq and i >= cfg.w2from and m in (3, 0 if (edge or i >= 26) else 1): g, t = dq.pop(0); k(g, t)
                for r in gaps[m]: k(r, f"f{i+2}")
                if m == 3:
                    for _ in range(4):
                        if cap.l: k(cap.l.pop(0))
                    assert i < 18 or not cap.l
                if i == 26 and m == 1:
                    k.wait(lg="*"); k("s_barrier")
                    if cfg.sblk and not cfg.s45: dq += w2dma(ORD[4], W2D)
                    for tt in (0, 1): k(f"ds_read_b32 v{STT+tt}, v{gSTA} offset:{384*tt}", "st")
                if i == 26 and m == 2:
                    for ft in (0, 1): k(f"ds_read_b64 {V(AUG+4+2*ft,2)}, v{gAGA} offset:{384*ft}", "ag")
                if i == 27 and m == 0: k(f"s_mov_b32 s50, {fbits(-15.0)}\ns_mov_b32 s44, {fbits(2.0**-15)}\ns_mov_b32 s45, {fbits(2.0**-30)}")
                if i == 27 and m == 1: k.wait(lg="*")
                if i == 27 and m in (1, 2):
                    tt = m - 1
                    k(f"s_mov_b32 s{sT}, 0x01000100\nv_and_b32 v11, 0xffff0000, v{STT+tt}\nv_rcp_f32 v{RC+2*tt}, v11")
                    k(f"v_perm_b32 v{AUG+2*tt}, v{STT+tt}, v{STT+tt}, s{sT}\nv_lshrrev_b32 v{AUG+2*tt+1}, 16, v{STT+tt}")
                if i == 27 and m == 3:
                    for tt in (0, 1): k(f"v_mul_f32 v{RC+2*tt+1}, {fbits(-2.0**-29) if cfg.rshare else '-2.0'}, v{RC+2*tt}\nv_mul_f32 v{RL+tt}, {fbits(LOG2E)}, v{RC+2*tt}")
        for m in range(4):
            ft, tt = m >> 1, m & 1; a = ACC + 16*m
            k(f"v_mfma_f32_32x32x8_bf16 {V(a,16)}, {V(AUG+4+2*ft,2)}, {V(AUG+2*tt,2)}, {V(a,16)}")
            if dq: g, t = dq.pop(0); k(g, t)
    assert not dq
    if cfg.pages: k.page("mish")
    stamp(k, cfg, 4); stamp(k, cfg, 8, 2); cstamp(k, cfg, 11)
    stq = []
    assert cfg.b8at % 2 == 0 and cfg.pbar2 == 0
    for g in range(8):
        if (cfg.mbar == 2 and 2*g == cfg.b8at) or (g and 2*g == cfg.pbar2): k("s_barrier")
        stamp(k, cfg, 1 + g, 6)
        m, sp = g >> 1, g & 1; ft, tt = m >> 1, m & 1; a = ACC + 16*m + 8*sp; p = P + 4*(g & 1)
        ap = [a + 2*i for i in range(4)]; rl, rs_ = RL, tt
        if cfg.g16 == 2:
            assert cfg.rshare
            ft, tt = g >> 2, g & 3; ap = [ACC + 32*ft + 16*(i >> 1) + 4*tt + 2*(i & 1) for i in range(4)]; rl, rs_ = RL + (tt & 2), tt & 1
        if cfg.rshare:
            U = 224; t = lambda i: V(T+2*i, 2); u = lambda i: V(U+2*i, 2)
            for i in range(4): k(f"v_pk_fma_f32 {t(i)}, {V(ap[i],2)}, {V(rl,2)}, s[50:51] op_sel:[0,{rs_},0] op_sel_hi:[1,{rs_},0]")
            for i in range(8): k(f"v_exp_f32 v{T+i}, v{T+i} clamp")
            for i in range(4): k(f"v_pk_add_f32 {t(i)}, {t(i)}, s[44:45] op_sel_hi:[1,0]")
            for i in range(4): k(f"v_pk_fma_f32 {t(i)}, {t(i)}, {t(i)}, s[44:45] op_sel:[0,0,1] op_sel_hi:[1,1,1]")
            k(f"v_pk_mul_f32 {u(0)}, {t(0)}, {t(1)}\nv_pk_mul_f32 {u(1)}, {t(2)}, {t(3)}\nv_pk_mul_f32 {u(2)}, {u(0)}, {u(1)}")
            k(f"v_rcp_f32 v{U+4}, v{U+4}\nv_rcp_f32 v{U+5}, v{U+5}")
            for i in (0, 1): k(f"v_pk_mul_f32 {u(i)}, {u(i)}, {V(RC+2*tt,2)} op_sel:[0,1] op_sel_hi:[1,1]") if False else None
            k(f"v_pk_mul_f32 {u(2)}, {u(2)}, {V(RC+2*tt,2)} op_sel:[0,1] op_sel_hi:[1,1]")
            k(f"v_pk_mul_f32 {u(1)}, {u(1)}, {u(2)}\nv_pk_mul_f32 {u(0)}, {u(0)}, {u(2)}")
            for i in range(4): k(f"v_pk_fma_f32 {t(i)}, {t(i)}, {u(1 - (i >> 1))}, {V(RC+2*tt,2)} op_sel_hi:[1,1,0]")
        else:
            for i in range(4): k(f"v_pk_mul_f32 {V(T+2*i,2)}, {V(a+2*i,2)}, {V(RL,2)} op_sel:[0,{tt}] op_sel_hi:[1,{tt}]")
            for i in range(8): k(f"v_exp_f32 v{T+i}, v{T+i}")
            for i in range(4): k(f"v_pk_add_f32 {V(T+2*i,2)}, {V(T+2*i,2)}, 1.0 op_sel_hi:[1,0]")
            for i in range(4): k(f"v_pk_fma_f32 {V(T+2*i,2)}, {V(T+2*i,2)}, {V(T+2*i,2)}, 1.0 op_sel_hi:[1,1,0]")
            if (cfg.mbar == 2 and 2*g + 1 == cfg.b8at) or 2*g + 1 == cfg.pbar2: k("s_barrier")
            for i in range(8): k(f"v_rcp_f32 v{T+i}, v{T+i}")
            for i in range(4): k(f"v_pk_fma_f32 {V(T+2*i,2)}, {V(T+2*i,2)}, {V(RC+2*tt,2)}, {V(RC+2*tt,2)} op_sel:[0,1,0] op_sel_hi:[1,1,0]")
        sw = 1 if cfg.rshare else 0
        for i in range(4): k(f"v_pk_mul_f32 {V(T+2*i,2)}, {V(T+2*i,2)}, {V(ap[i^sw],2)}")
        if g == 7 and cfg.mbar: k("s_barrier")
        if g == 7 and not cfg.mbar:
            lds_signal(k, 10, SY_M, gONE)
            if cfg.sblk: k(f"ds_read_b32 v11, v{gSY} offset:{SY_U}", "w2r1")
        p = RING + 4*(g if cfg.g16 == 2 else (4*ft + 2*tt + sp) if cfg.g16 else (2*(2*ft + sp) + tt))
        for i in range(4): k(f"v_cvt_pk_bf16_f32 v{p+(i^sw)}, v{T+2*i}, v{T+2*i+1}")
        stq.append(f"buffer_store_dwordx4 {V(p,4)}, v{L16}, {S(sWS,4)}, s{sXO if ft == 0 else sE3} offen offset:{tt*1024 if cfg.g16 == 2 else sp*2048 + tt*1024} sc1")
        if g in cfg.stat:
            while stq: k(stq.pop(0), "act")
    stamp(k, cfg, 5); stamp(k, cfg, 9, 6)
    k("s_setprio 3")
    k.wait(vm=f"w2_{ORD[3 if cfg.s45 else 4]}" if cfg.sblk else "w2_3")
    if cfg.g16:
        for i in range(4): k(f"v_add_u32 v{240+i}, 65536, v{W2A+i}")
    def rdblk(b):
        for s in (0, 1):
            for r in w2read(2*b+s, 2*b+s): k(r, f"w2r{b}")
    sSTO = sE0
    k(f"s_lshl_b32 s{sSTO}, s{sRB}, 1\ns_and_b32 s{sT}, s{sXCD}, 1\ns_add_u32 s{sSTO}, s{sSTO}, s{sT}")
    k(f"s_lshl_b32 s{sE1}, s{sSTO}, 2\ns_add_u32 s{sE1}, s{sE1}, s3\ns_lshl_b32 s{sE1}, s{sE1}, 9\ns_add_u32 s{sE1}, s{sE1}, {ACNT}\ns_add_u32 s48, s{pWS}, s{sE1}\ns_addc_u32 s49, s{pWS+1}, 0")
    apoll = "\n".join(f"s_load_dword s{52+i}, s[48:49], {128*i} glc" for i in range(cfg.aspread))
    asum = "".join(f"s_add_u32 s52, s52, s{52+i}\n" for i in range(1, cfg.aspread))
    blk = lambda b: [(r, f"w2r{b}") for s in (0, 1) for r in w2read(2*b+s, 2*b+s)]
    assert cfg.gblk == 4
    order = [4, 5, 7, 6, 8, 9, 10, 11, 12, 13]
    rq = blk(0) + blk(1) + blk(2) + blk(3)
    if cfg.sblk: order = [6, 7, 8, 9, 10, 11, 12, 13]; rq += blk(4) + blk(5)
    for n, b in enumerate(order):
        if b == 7 and not cfg.sblk: k(f"ds_read_b32 v11, v{gSY} offset:{SY_U}", "w2r1")
        if b == 6 and not cfg.mbar:
            k.wait(lg="w2r1")
            o = k.lab("wl"); sl = list(k.lg)
            k(f"v_readfirstlane_b32 s{sT}, v11\ns_cmp_ge_u32 s{sT}, 4\ns_cbranch_scc1 {o}")
            lds_spin(k, gSY, SY_U, 4, 11, sT, sSP)
            k(f"{o}:"); k.lg = sl
        lastb = 11 if cfg.fast else 12
        if b == lastb - 1: k.wait(vm="w2_6"); rq += blk(6)
        if b == lastb: k(f"ds_read_b32 v11, v{gSY}"); k.wait(lg="w2r6")
        if b >= 7: k.wait(lg=f"w2r{b-7}")
        for m, (g, t) in enumerate(w2dma(b, W2D)):
            k(g, t)
            for _ in range(4 if n == 0 else 3 if cfg.fast else 2):
                if rq: k(*rq.pop(0))
            if 4*b + m == cfg.pollpos: assert b >= lastb; k(apoll)
        if n == cfg.flagat:
            k.wait(vm="act")
            s_inc(k, pWS, f"s{sWO}", sT2)
            stamp(k, cfg, 6)
        if cfg.g16 == 1 and 2 <= n < 6:
            for e in range(4): k(f"v_permlane16_swap_b32 v{RING+8*(n-2)+e}, v{RING+8*(n-2)+4+e}")
    assert not rq
    k(f"s_and_b32 s{sT}, s3, 1\ns_mul_i32 s{sT}, s{sT}, 14\ns_add_u32 s{sT}, s{sT}, s{sCS}\ns_lshl_b32 s{sT}, s{sT}, 13\ns_mul_i32 s{sA2}, s{sSTO}, 229376\ns_add_u32 s{sA2}, s{sA2}, s{sT}\ns_add_u32 s{sA2}, s{sA2}, {ACT}")
    piece_bases(k, 16384)
    if cfg.g16 == 1: k(f"v_and_b32 v14, 47, v0\nv_lshlrev_b32 v14, 4, v14\nv_bfe_u32 v15, v0, 4, 1\nv_lshl_add_u32 v{L16}, v15, 11, v14")
    stamp(k, cfg, 7)
    if cfg.pages: k.page("g2")
    l = k.lab("ap"); o = k.lab("ar")
    k(f"s_mov_b32 s{sSP}, 0\n{l}:")
    k.wait(lg="*")
    k(f"{asum}s_add_u32 s{sSP}, s{sSP}, 1\ns_cmp_ge_u32 s52, 7\ns_cbranch_scc1 {o}\ns_cmp_gt_u32 s{sSP}, {SPIN}\ns_cbranch_scc1 {o}")
    if cfg.actsleep: k(f"s_sleep {cfg.actsleep}")
    k(f"{apoll}\ns_branch {l}\n{o}:")
    stamp(k, cfg, 8)
    k(f"s_setprio {cfg.g2prio}")
    if cfg.g16:
        D = 2*cfg.depth; n0 = 14 - cfg.tn
        assert n0 >= 8 + cfg.rl16
        seq = [(s, tt) for s in range(n0) for tt in range(4)] + [(s, tt) for tt in range(4) for s in range(n0, 14)]
        cur = [None]
        def actload(j):
            s, tt = seq[j]; out = []
            if s >= n0:
                if tt == 0: out.append(piece(s//2, 16384, (s & 1)*4096, 52 + s - n0))
                so = 52 + s - n0
            else:
                if cur[0] != s: cur[0] = s; out.append(piece(s//2, 16384, (s & 1)*4096, sT))
                so = sT
            out.append(f"buffer_load_dwordx4 {V(RING + (j % D)*4, 4)}, v{L16}, {S(sWS,4)}, s{so} offen offset:{tt*1024 if cfg.g16 == 2 else (tt >> 1)*1024 + (tt & 1)*256} sc1")
            return "\n".join(out)
        stamp(k, cfg, 1, 5)
        o = k.lab("own")
        k(f"s_xor_b32 s{sT}, s3, s{sXCD}\ns_bitcmp0_b32 s{sT}, 0\ns_cbranch_scc1 {o}")
        for j in range(D):
            if j == 8: k(f"{o}:")
            k(actload(j), f"a{j}")
        stamp(k, cfg, 2, 5)
        DA = [1, 2, 3, 4]
        k(f"v_and_b32 v14, 15, v0\nv_lshrrev_b32 v15, 4, v0\nv_xor_b32 v15, v15, v14\nv_lshlrev_b32 v15, 4, v15\nv_lshl_add_u32 v15, v14, 8, v15\nv_add_u32 v{DA[0]}, s{sM}, v15")
        for i in range(1, 4): k(f"v_xor_b32 v{DA[i]}, {64*i}, v{DA[0]}")
        dq2 = []; nd = 0
        for j, (s, tt) in enumerate(seq):
            k.wait(vm=f"a{j}", lg=f"r{s}" if s >= 7 else None)
            if j % 8 == 0: stamp(k, cfg, 3 + j//8, 5)
            rs = s - cfg.rl16
            rd = (w2read(2*(rs+6), 2*(rs-1)) + w2read(2*(rs+6)+1, 2*(rs-1)+1))[2*tt:2*tt+2] if 1 <= rs <= 7 else []
            for d4 in range(4):
                a = ACC + 16*tt + 4*d4
                k(f"v_mfma_f32_16x16x32_bf16 {V(a,4)}, {V(W2R + (s % 7)*16 + 4*d4,4)}, {V(RING + (j % D)*4,4)}, {'0' if s == 0 else V(a,4)}")
                if d4 == 0 and j >= 1 and j - 1 + D < 56: k(actload(j - 1 + D), f"a{j-1+D}")
                if d4 >= 2 and rd: k(rd[d4-2], f"r{rs+6}")
                if d4 == 3 and dq2:
                    k(dq2.pop(0)); nd += 1
                    if nd == 8: lds_signal(k, gSY, SY_GS, gONE)
            if s == 13: dq2 += [f"ds_write_b128 v{DA[d4]}, {V(ACC + 16*tt + 4*d4,4)} offset:{tt*16384}" for d4 in range(4)]
        stamp(k, cfg, 9); stamp(k, cfg, 10, 5)
        assert nd >= 8
        for x in dq2: k(x)
    else:
        D = 2*cfg.depth; n0 = 28 - cfg.tailn
        seq = [(s, tt) for s in range(n0) for tt in (0, 1)] + [(s, tt) for tt in (0, 1) for s in range(n0, 28)]
        cur = [None]
        def actload(j):
            s, tt = seq[j]; out = []
            if cur[0] != s//2:
                cur[0] = s//2
                out.append(piece(s//4, 16384, (s & 2)*2048, sT) + (f"\ns_and_b32 s{sT}, s{sT}, 0xfffff" if cfg.x_acthit else ""))
            out.append(f"buffer_load_dwordx4 {V(RING + (j % D)*4, 4)}, v{L16}, {S(sW2 if cfg.x_acthit else sWS,4)}, s{sT} offen offset:{(s & 1)*2048 + tt*1024} {cfg.actmod}")
            return "\n".join(out)
        stamp(k, cfg, 1, 5)
        o = k.lab("own")
        if cfg.own: k(f"s_xor_b32 s{sT}, s3, s{sXCD}\ns_bitcmp0_b32 s{sT}, 0\ns_cbranch_scc1 {o}")
        k(f"s_setprio {cfg.nprio}")
        for j in range(D):
            if j == 8: k(f"{o}:")
            k(actload(j), f"a{j}")
        stamp(k, cfg, 2, 5)
        DA = [1, 2, 3, 4, 10, 11, 14, 15]
        if cfg.pdump:
            k(f"v_and_b32 v14, 7, v0\nv_lshrrev_b32 v15, 5, v0\nv_xor_b32 v15, v15, v14\nv_lshlrev_b32 v15, 4, v15\nv_and_b32 v14, 31, v0\nv_lshl_add_u32 v15, v14, 7, v15\nv_add_u32 v{DA[0]}, s{sM}, v15")
            for i in range(1, 4): k(f"v_xor_b32 v{DA[i]}, {32*i}, v{DA[0]}")
            def dump(tt, d2s):
                out = []
                for d2 in d2s:
                    r = [ACC + 16*(2*d2+tt) + 8*jp for jp in (0, 1)]
                    out += ["\n".join(f"v_cvt_pk_bf16_f32 v{x+i}, v{x+2*i}, v{x+2*i+1}" for i in range(4)) for x in r]
                    out += [f"v_permlane32_swap_b32 v{x}, v{x+2}\nv_permlane32_swap_b32 v{x+1}, v{x+3}\nds_write_b128 v{DA[2*d2+jp]}, {V(x,4)} offset:{tt*16384}" for jp, x in enumerate(r)]
                return out
        else:
            k(f"v_and_b32 v14, 15, v0\nv_lshrrev_b32 v15, 5, v0\nv_xor_b32 v15, v15, v14\nv_lshlrev_b32 v15, 4, v15\nv_lshl_add_u32 v15, v14, 8, v15")
            k(f"v_bfe_u32 v14, v0, 4, 1\nv_lshl_add_u32 v15, v14, 14, v15\nv_add_u32 v{DA[0]}, s{sM}, v15")
            for i in range(1, 8): k(f"v_xor_b32 v{DA[i]}, {32*i}, v{DA[0]}")
            dump = lambda tt, d2s: [f"ds_write_b128 v{DA[4*d2+jj]}, {V(ACC+16*(2*d2+tt)+4*jj,4)} offset:{tt*32768}" for d2 in d2s for jj in range(4)]
        jlast0 = max(j for j in range(56) if seq[j][1] == 0)
        assert 14 + cfg.rdlag < n0 and cfg.tailq <= min(D, cfg.tailn)
        q0 = 56 - cfg.tailq
        ops = [(j, d2) for j in range(q0) for d2 in (0, 1)] + [(j, d2) for d2 in (0, 1) for j in range(q0, 56)]
        d0 = dump(0, (0, 1)); d1 = dump(1, (0, 1)); i0 = ops.index((jlast0, 1)); i1 = ops.index((55, 0)); sig = [False]
        for i, (j, d2) in enumerate(ops):
            s, tt = seq[j]
            if d2 == 0:
                k.wait(vm=f"a{j}", lg=f"r{s}" if s >= 14 else None)
                if j % 8 == 0: stamp(k, cfg, 3 + j//8, 5)
            w = W2R + (s % 14)*8; x = RING + (j % D)*4; a = ACC + 16*(2*d2 + tt)
            rs = s - cfg.rdlag
            k(f"v_mfma_f32_32x32x16_bf16 {V(a,16)}, {V(w+4*d2,4)}, {V(x,4)}, {'0' if s == 0 else V(a,16)}")
            if d2 == 0 and j >= 1 and j - 1 + D < 56: k(actload(j - 1 + D), f"a{j-1+D}")
            if d2 == 1 and 1 <= rs <= 14: k("\n".join(w2read(rs + 13, rs - 1)[2*tt:2*tt+2]), f"r{rs+13}")
            if i >= i0 + 2 and d0 and (cfg.pdump or (i - i0) % 2 == 0 or len(d0) >= len(ops) - i): k(d0.pop(0))
            elif not d0 and not sig[0]: lds_signal(k, gSY, SY_GS, gONE); sig[0] = True
            elif cfg.tailq and sig[0] and i >= i1 + 2 and len(d1) > 4 and (cfg.pdump or (i - i1) % 2 == 0): k(d1.pop(0))
        while d0: k(d0.pop(0))
        if not sig[0]: lds_signal(k, gSY, SY_GS, gONE)
        stamp(k, cfg, 9); stamp(k, cfg, 10, 5)
        for x in d1: k(x)
    k.wait(lg="*")
    stamp(k, cfg, 11, 5)
    k("s_barrier")
    stamp(k, cfg, 10)
    prof_dump(k, cfg, role="G")
    k("s_endpgm")

class Pacer:
    def __init__(self, k, pace): self.k, self.pace, self.q, self.n = k, pace, [], 0
    def __call__(self, text, tag=None):
        lines = text.split("\n")
        for i, ln in enumerate(lines):
            self.k(ln, tag)
            if i + 1 < len(lines) and lines[i+1].startswith(("s_cselect", "s_addc", "s_cbranch")): continue
            self.n += 11 if "ds_write_b128" in ln else 5 if "ds_write" in ln else 3 if "ds_read2" in ln else 2 if ("ds_read" in ln or "v_rcp" in ln) else 1
            if self.q and self.n >= self.pace: self.pop()
    def pop(self):
        g, t = self.q.pop(0); self.k(g, t); self.n = 0
    def flush(self):
        while self.q: self.pop()

def gen_S(k, cfg, vm0):
    k.reset()
    if cfg.pages: k(".p2align 12")
    k("L_S:")
    k.s_tail()
    sWV, GA = sCOL, sGA
    p = Pacer(k, cfg.pace)
    def bar(c, lg="*"):
        p.flush()
        if c == 1: stamp(k, cfg, 9, 7)
        k.wait(vm=f"c{c}", lg=lg)
        if c == 1: stamp(k, cfg, 10, 7)
        stamp(k, cfg, 1+c, 2)
        if not cfg.x_nobar: k("s_barrier")
    G0, XV, CP = 160, 192, 208
    if cfg.four: CP = 216
    gq = list(range(13, -1, -1)); done = []; summed = []
    def gnext(n):
        for i in gq[:n]: p(f"ds_read2st64_b32 {V(G0+4*i,2)}, v{GA+i} offset1:13\nds_read2st64_b32 {V(G0+4*i+2,2)}, v{sGB+i} offset1:34")
        done.extend(gq[:n]); del gq[:n]
    def snext(n):
        todo = [i for i in done if i not in summed][:n]; summed.extend(todo)
        for i in todo: p(f"v_add_f32 v{G0+4*i}, v{G0+4*i}, v{G0+4*i+1}\nv_add_f32 v{G0+4*i+2}, v{G0+4*i+2}, v{G0+4*i+3}\nv_add_f32 v{G0+4*i}, v{G0+4*i}, v{G0+4*i+2}")
    A_, B_, C_, M_ = G0+44, G0+48, G0+52, G0+45
    XS = ([B_]*3 + [M_] + [A_]*6 + [C_], [G0+4*i for i in range(11)])
    def cvts(ps, sg):
        for jj in range(4): p(f"v_cvt_pk_bf16_f32 v{CP+16*ps+4*sg+jj}, v{XS[ps][sg+2*jj]}, v{XS[ps][sg+2*jj+1]}")
    SV, XW, CN, MM, RR, XF, GS = 100, 108, 116, 120, 128, 136, 144
    def copies(x, off, sgs):
        for sg in sgs:
            c = CP + 4*sg
            for jj in range(4): p(f"v_cvt_pk_bf16_f32 v{c+jj}, v{x[sg+2*jj]}, v{x[sg+2*jj+1]}")
            p(f"ds_write_b128 v{EW}, {V(c,4)} offset:{sg*4160 + off}")
    k("s_setprio 0")
    k(CLRL, "clr")
    w2t = f"s_lshl2_add_u32 s{sT}, s{sCP}, s{sCOL}\ns_mul_i32 s{sT}, s{sT}, 1792\nv_mul_u32_u24 v62, 28, v0\nbuffer_load_dword v62, v62, {S(sW2,4)}, s{sT} offen"
    if cfg.w2touch == 1: assert 6 in cfg.early; k(w2t)
    held = []
    late = lambda part: S_addresses(p, part) if part not in cfg.early else None
    def ring(c):
        ch = chunk(cfg, c); p.q = held + ch[:cfg.r2cut]; held[:] = ch[cfg.r2cut:]; p.pop()
    stl = f"buffer_load_dwordx4 {V(SV,4)}, v{vST}, {S(sWS,4)}, s{sXO} offen sc1\nbuffer_load_dwordx4 {V(SV+4,4)}, v{vST}, {S(sWS,4)}, s{sWO} offen sc1"
    xcl = f"buffer_load_dword v{CN}, v{vXC}, {S(sWS,4)}, 0 offen sc1"
    gsl = f"s_mov_b32 m0, s{sE0}\ns_mov_b64 exec, 0xffffff\nbuffer_load_dwordx4 v{vGA}, {S(sWS,4)}, 0 offen sc1 lds\ns_mov_b64 exec, -1"
    pw = [f"ds_write2_b32 v{sPW+a}, v{KA+r}, v{KA+r+1} offset0:{o0} offset1:{o1}" for a, r, o0, o1 in
          ((0, 0, 0, 1), (0, 2, 2, 3), (1, 4, 0, 1), (2, 6, 2, 3), (3, 8, 0, 33), (3, 10, 66, 99))]
    ring(2)
    p(f"v_lshrrev_b32 v50, 1, v0\nv_and_b32 v52, 1, v0\nv_lshl_add_u32 v52, s{sWV}, 1, v52\nv_bfe_u32 v51, v0, 2, 3\nv_xor_b32 v51, v51, v52\nv_lshlrev_b32 v51, 4, v51\nv_lshl_add_u32 v51, v50, 7, v51")
    p(f"s_and_b32 s{sT}, s{sXCD}, 1\ns_lshl_b32 s{sT}, s{sT}, 13\ns_add_u32 s{sT}, s{sT}, {L_GB+L_XS[0]}\nv_add_u32 v51, s{sT}, v51")
    p(f"ds_read_b128 v[248:251], v51\nds_read_b128 v[252:255], v51 offset:4096")
    late(6); late(3)
    if cfg.w2touch == 2: p.flush(); k(w2t)
    bar(1)
    def xtflag():
        v_poll(k, CLRL, 49, 4, sSP, 2, first=False, tag="clr")
        o = k.lab("xf")
        k(f"s_lshl_b32 s{sT}, s{sG32}, 2\ns_add_u32 s{sT}, s{sT}, s{sR}\ns_add_u32 s{sT}, s{sT}, {C_XT}\ns_lshl_b32 s{sT}, s{sT}, 7\ns_cmp_lg_u32 s{sCOL}, 0\ns_cbranch_scc1 {o}")
        s_inc(k, pWS, f"s{sT}", sE2)
        k(f"{o}:")
    ring(3)
    if cfg.xtbar == 1: p.pop(); xtflag(); p.pop(); p.pop()
    k.wait(vm="tab")
    late(9 if cfg.tab else 1)
    if not cfg.four:
        for r in range(3): p(f"ds_read_b128 {V(G0+4*r,4)}, v{PA} offset:{1024*r}", "raw")
    bar(2, None)
    if cfg.xtbar == 2: xtflag()
    ring(4)
    if cfg.four: gnext(cfg.gpl[0])
    if cfg.tab: late(4)
    else: late(2); late(5)
    if cfg.nearly:
        assert cfg.tab and cfg.r2cut == 8
        bar(3, None)
        k(xcl, "xc")
        ring(5)
        late(7)
        k.wait(lg="*")
        for i in range(12): p(f"v_add_f32 v{KA+i}, v{KA+i}, v{G0+i}")
        bar(4, None)
        stamp(k, cfg, 4)
        c6 = chunk(cfg, 6)
        for x in stl.split("\n"): k(x, "st")
        v_poll(k, xcl, CN, 4, sSP, 2, first=False, tag="xc")
        p.q = [(f"buffer_load_dwordx4 {V(XW+4*e,4)}, v{vXW}, {S(sWS,4)}, 0 offen offset:{64*e} sc1", "xw") for e in (0, 1)] + c6[:cfg.c6cut]; p.pop()
        late(0)
        bar(5, None)
        p.q = c6[cfg.c6cut:]; p.flush()
        k(gsl, "gs")
        k.wait(vm="st")
        k(f"s_mov_b32 s{sSP}, 0")
        l = k.lab("xp"); o = k.lab("xpo")
        k(f"{l}:")
        k(f"v_min_u32 v{CN}, v{SV}, v{SV+1}\ns_add_u32 s{sSP}, s{sSP}, 1")
        for i in range(1, 4): k(f"v_min3_u32 v{CN}, v{CN}, v{SV+2*i}, v{SV+2*i+1}")
        k(f"v_cmp_eq_u32 vcc, 0, v{CN}\ns_cmp_gt_u32 s{sSP}, {SPIN}\ns_cbranch_scc1 {o}\ns_cbranch_vccz {o}")
        sv = list(k.vm); k(stl); k("s_waitcnt vmcnt(0)"); k.vm = sv
        k(f"s_branch {l}")
        k(f"{o}:")
        nq = [f"v_and_b32 v{RR+i}, 0xffff0000, v{SV+i}" for i in range(8)]
        for i in range(8): nq += [f"v_rcp_f32 v{RR+i}, v{RR+i}", f"v_lshlrev_b32 v{MM+i}, 16, v{SV+i}"]
        nq += [f"v_mul_f32 v{MM+i}, v{MM+i}, v{RR+i}" for i in range(8)]
        for ch in (0, 1):
            for i in range(4): nq += [f"v_lshlrev_b32 v{XF+2*i}, 16, v{XW+4*ch+i}", f"v_and_b32 v{XF+2*i+1}, 0xffff0000, v{XW+4*ch+i}"]
            nq += [f"v_fma_f32 v{XF+i}, v{XF+i}, v{RR+i}, -v{MM+i}" for i in range(8)]
            nq += [f"v_cvt_pk_bf16_f32 v{XW+4*ch+i}, v{XF+2*i}, v{XF+2*i+1}" for i in range(4)]
        p.q = w2dma(ORD[0], sW2D); p.pop()
        for x in nq[:cfg.ncut[0]]: p(x)
        bar(6, None)
        stamp(k, cfg, 5)
        for x in nq[cfg.ncut[0]:cfg.ncut[1]]: k(x)
        k.wait(vm="gs")
        k(f"s_mov_b32 s{sSP}, 0")
        l = k.lab("gp"); o = k.lab("gpo")
        k(f"{l}:")
        k(f"ds_read_b128 {V(GS,4)}, v{vGW}\ns_add_u32 s{sSP}, s{sSP}, 1")
        if cfg.pages:
            o = k.lab("wm")
            for n, name in enumerate(("cvA", "cvB", "mish")):
                if name not in cfg.warm or (name == 'cvB' and cfg.split == 'r'): continue
                o2 = k.lab("wn")
                k(f"s_cmp_lg_u32 s{sWV}, {n}\ns_cbranch_scc1 {o2}"); k.warm(name); k(f"{o2}:")
        k.wait(lg="*")
        k(f"v_min_u32 v{CN}, v{GS+1}, v{GS+3}")
        k(f"v_cmp_eq_u32 vcc, 0, v{CN}\ns_cmp_gt_u32 s{sSP}, {SPIN}\ns_cbranch_scc1 {o}\ns_cbranch_vccz {o}")
        sv = list(k.vm); k(gsl); k("s_waitcnt vmcnt(0)"); k.vm = sv
        k(f"s_branch {l}")
        k(f"{o}:")
        stamp(k, cfg, 8, 2)
        k("s_barrier")
        stamp(k, cfg, 1, 6)
        for x in nq[cfg.ncut[1]:]: k(x)
        k("s_setprio 3")
    else:
        bar(3, None)
        ring(5)
        if cfg.four: gnext(cfg.gpl[1])
        late(7 if cfg.tab else 8)
        bar(4, None)
        stamp(k, cfg, 4)
        if cfg.r2cut == 8: k(xcl, "xc")
        ring(6)
        for _ in range(8 - cfg.r2cut - 1): p.pop()
        if cfg.r2cut < 8: k(xcl, "xc")
        k.wait(lg="*")
        if cfg.four:
            ready = list(done); gnext(14); allg = list(done); done[:] = ready; snext(cfg.spl[0]); done[:] = allg
        else:
            for i in range(12): p(f"v_add_f32 v{KA+i}, v{KA+i}, v{G0+i}")
            late(0 if cfg.tab else 4)
        bar(5, None)
        p.q = list(held); p.flush()
        v_poll(k, xcl, CN, 4, sSP, 2, first=False, tag="xc")
        k(stl, "st")
        for e in (0, 1): k(f"buffer_load_dwordx4 {V(XW+4*e,4)}, v{vXW}, {S(sWS,4)}, 0 offen offset:{64*e} sc1", "xw")
        k(gsl, "gs")
        if cfg.sall:
            n1, n2 = cfg.sall
            assert n1 <= 8 and n2 % 4 == 0 and n2 <= 16
            wq = [x for b in range(6) for x in w2dma(ORD[b], sW2D)]
            p.q = wq[:n1]
            bar(6, None)
            p.q = wq[n1:n2]; p.pop()
            late(7); p.flush()
        else:
            p.q = w2dma(ORD[0], sW2D); p.pop()
            if cfg.four: k.wait(lg="*"); snext(cfg.spl[1])
            if not cfg.tab: late(7)
            bar(6, None)
        stamp(k, cfg, 5)
        if cfg.pages:
            o = k.lab("wm")
            for n, name in enumerate(("cvA", "cvB", "mish")):
                if name not in cfg.warm or (name == 'cvB' and cfg.split == 'r'): continue
                o2 = k.lab("wn")
                k(f"s_cmp_lg_u32 s{sWV}, {n}\ns_cbranch_scc1 {o2}"); k.warm(name); k(f"{o2}:")
        if cfg.four:
            k(f"v_cmp_eq_u32 vcc, 1, v{vODD}"); snext(14)
            k(f"v_cndmask_b32 v{M_}, v{B_}, v{A_}, vcc")
            for n in range(cfg.cpre): cvts(n >> 2, n & 3)
        k.wait(vm="gs")
        k(f"s_mov_b32 s{sSP}, 0")
        l = k.lab("xp"); o = k.lab("xpo")
        k(f"{l}:")
        k(f"ds_read_b128 {V(GS,4)}, v{vGW}")
        k(f"v_min_u32 v{CN}, v{SV}, v{SV+1}\ns_add_u32 s{sSP}, s{sSP}, 1")
        for i in range(1, 4): k(f"v_min3_u32 v{CN}, v{CN}, v{SV+2*i}, v{SV+2*i+1}")
        for i in range(8): k(f"v_and_b32 v{RR+i}, 0xffff0000, v{SV+i}")
        k.wait(lg="*")
        k(f"v_min3_u32 v{CN}, v{CN}, v{GS+1}, v{GS+3}")
        k(f"v_cmp_eq_u32 vcc, 0, v{CN}\ns_cmp_gt_u32 s{sSP}, {SPIN}\ns_cbranch_scc1 {o}\ns_cbranch_vccz {o}")
        sv = list(k.vm); k(stl); k(gsl); k("s_waitcnt vmcnt(0)"); k.vm = sv
        k(f"s_branch {l}")
        k(f"{o}:")
        for i in range(cfg.rpre): k(f"v_rcp_f32 v{RR+i}, v{RR+i}\nv_lshlrev_b32 v{MM+i}, 16, v{SV+i}")
        stamp(k, cfg, 8, 2)
        k("s_barrier")
        stamp(k, cfg, 1, 6)
        if cfg.sall: p.q = wq[n2:]; p.pace = cfg.pace2; p.pop()
        cap = Cap()
        if cfg.rpre < 8:
            for i in range(cfg.rpre, 8): cap(f"v_rcp_f32 v{RR+i}, v{RR+i}\nv_lshlrev_b32 v{MM+i}, 16, v{SV+i}")
        unp = lambda ch, x: [cap(f"v_lshlrev_b32 v{x+2*i}, 16, v{XW+4*ch+i}\nv_and_b32 v{x+2*i+1}, 0xffff0000, v{XW+4*ch+i}") for i in range(4)]
        if cfg.npk:
            unp(0, XF); unp(1, SV)
            for i in range(4): cap(f"v_pk_mul_f32 {V(MM+2*i,2)}, {V(MM+2*i,2)}, {V(RR+2*i,2)}")
            for ch, x in ((0, XF), (1, SV)):
                for i in range(4): cap(f"v_pk_fma_f32 {V(x+2*i,2)}, {V(x+2*i,2)}, {V(RR+2*i,2)}, {V(MM+2*i,2)} neg_lo:[0,0,1] neg_hi:[0,0,1]")
                for i in range(4): cap(f"v_cvt_pk_bf16_f32 v{XW+4*ch+i}, v{x+2*i}, v{x+2*i+1}")
        else:
            for i in range(8): cap(f"v_mul_f32 v{MM+i}, v{MM+i}, v{RR+i}")
            for ch in (0, 1):
                unp(ch, XF)
                for i in range(8): cap(f"v_fma_f32 v{XF+i}, v{XF+i}, v{RR+i}, -v{MM+i}")
                for i in range(4): cap(f"v_cvt_pk_bf16_f32 v{XW+4*ch+i}, v{XF+2*i}, v{XF+2*i+1}")
        cap.l.insert(cfg.npat, "s_setprio 3")
        for x in cap.l: p(x)
    stamp(k, cfg, 9, 2); stamp(k, cfg, 2, 6)
    k(f"v_lshl_add_u32 v55, s{sCS}, 2, v{VSY}")
    if cfg.four:
        p.q = [x for b in (4, 5) for x in w2dma(ORD[b], sW2D)]; p.pace = 4; p.pop()
        for n in range(cfg.cpre, 8): cvts(n >> 2, n & 3)
        p.flush()
        stamp(k, cfg, 3, 6)
        for ch in (0, 1): k(f"ds_write_b128 v{UW}, {V(XW+4*ch,4)} offset:{4576*ch}")
        k(f"ds_write_b128 v{TZ}, {V(ZERO,4)} offset:4096")
        for ps in (0, 1):
            for sg in range(4): k(f"ds_write_b128 v{EW}, {V(CP+16*ps+4*sg,4)} offset:{sg*4160 + ps*2048}")
    else:
        p.flush()
        if cfg.sblk and not cfg.sall:
            for g, t in (w2dma(ORD[4], sW2D) if cfg.s45 else []) + w2dma(ORD[5], sW2D): k(g, t)
        stamp(k, cfg, 3, 6)
        k("\n".join(pw))
        if not cfg.pbar2: lds_signal(k, 55, SY_PAIR, VONE)
        stamp(k, cfg, 4, 6)
        stamp(k, cfg, 5, 6)
        if cfg.pbar2: assert cfg.split == 'J'; k.wait(lg="*"); k("s_barrier")
        else: lds_spin(k, 55, SY_PAIR, 2, 50, sT, sSP)
        stamp(k, cfg, 6, 6)
        for i in list(range(11, 14)) + list(range(11)): k(f"ds_read2st64_b32 {V(G0+2*i,2)}, v{GA+i} offset1:13", "ga" if i > 10 else "gb")
        for ch in (0, 1): k(f"ds_write_b128 v{UW}, {V(XW+4*ch,4)} offset:{4576*ch}")
        k(f"ds_write_b128 v{TZ}, {V(ZERO,4)} offset:4096")
        for ps, x in enumerate(([XV+12]*3 + [XV+14] + [XV+11]*6 + [XV+13], [XV+i for i in range(11)])):
            k.wait(lg="gb" if ps else "ga")
            stamp(k, cfg, 7 + ps, 6)
            for i in (range(11) if ps else range(11, 14)): k(f"v_add_f32 v{XV+i}, v{G0+2*i}, v{G0+2*i+1}")
            if ps == 0: k(f"v_cmp_eq_u32 vcc, 1, v{vODD}\nv_cndmask_b32 v{XV+14}, v{XV+12}, v{XV+11}, vcc")
            for sg in range(4):
                for jj in range(4): k(f"v_cvt_pk_bf16_f32 v{CP+16*ps+4*sg+jj}, v{x[sg+2*jj]}, v{x[sg+2*jj+1]}")
                k(f"ds_write_b128 v{EW}, {V(CP+16*ps+4*sg,4)} offset:{sg*4160 + ps*2048}")
    stamp(k, cfg, 9, 6)
    if cfg.mbar:
        k.wait(vm="*", lg="*"); k("s_barrier")
    else:
        k.wait(vm="*")
        lds_signal(k, VSY, SY_U, VONE)
        lds_spin(k, VSY, SY_U, 4, 50, sT, sSP, cfg.usleep)
    stamp(k, cfg, 10, 6)
    Y, FS, YS = 68, [100, 164], 228
    def a_read(r, F, a): return [f"ds_read_b64 {V(F+4*a+2*e,2)}, v{CA} offset:{(7-a)*512 + (7-r)*64 + 8*e}" for e in (0, 1)]
    def b_read(r, F, c): return [f"ds_read_b128 {V(F+32+4*c,4)}, v{CBA} offset:{c*512 + (7-r)*64 - 256*RS[0]}"]
    def first(ms):
        seen = []
        for J, a in ms:
            for t in (("a", a), ("b", J - a)):
                if t not in seen: seen.append(t)
        rd = [(x, f"z{t[0]}{t[1]}") for t in seen for x in (a_read if t[0] == "a" else b_read)(0, FS[0], t[1])]
        for x in rd[:cfg.cvpre]: k(*x)
        stamp(k, cfg, 10, 2)
        if cfg.mbar == 2: k("s_barrier")
        if not cfg.mbar: lds_spin(k, vSC, SY_M, 1, 50, sT, sSP, cfg.usleep)
        k(f"s_setprio {cfg.cvprio}")
        stamp(k, cfg, 6); stamp(k, cfg, 11, 2); stamp(k, cfg, 11, 6)
        return rd[cfg.cvpre:]
    if cfg.split == 'r':
        ms = sorted(((a + c, a) for c in range(8) for a in range(8 - c)), key=lambda x: (max(x[1], x[0]-x[1]), x[0]))
        if cfg.pages: k.page("cvA")
        rest = first(ms)
        for r in range(3 if cfg.xover else 4):
            F = FS[r & 1]; N = FS[(r+1) & 1]; nxt = list(rest); rest = []
            if r < 3:
                for i in range(8): nxt += [(x, None) for x in a_read(r+1, N, i) + b_read(r+1, N, i)]
            if r > 0: k.wait(lg="*")
            if r == 3:
                lds_signal(k, VSY, SY_RD, VONE)
                nxt = f"s_lshl_b32 s{sT}, s{sWV}, 12\ns_add_u32 s{sT}, s{sT}, 16384\nv_lshl_add_u32 v51, v0, 4, s{sT}\nv_xor_b32 v52, 0x1000, v51\ns_lshl_b32 s{sT}, s{sHH}, 11\ns_add_u32 s{sO1}, s{sO1}, s{sT}".split("\n"); nxt = [(x, None) for x in nxt]
            n = 0
            seen = set()
            for i, (J, a) in enumerate(ms):
                if r == 0:
                    for t in (f"za{a}", f"zb{J-a}"):
                        assert t not in [y[1] for y in nxt[n:]]
                        k.wait(lg=t)
                k(f"v_mfma_f32_16x16x32_bf16 {V(Y+4*J,4)}, {V(F+4*a,4)}, {V(F+32+4*(J-a),4)}, {'0' if (r == 0 and J not in seen) else V(Y+4*J,4)}")
                seen.add(J)
                while n < len(nxt) and n*min(len(nxt), 33) < (i+1)*len(nxt): k(*nxt[n]); n += 1
                if r == 3 and i == 28: k(f"ds_read_b32 v50, v{VSY} offset:{SY_RD}")
        if cfg.xover:
            F = FS[1]; EX = FS[0]; sets = ([0, 3, 4, 7], [1, 2, 5, 6]); pairs = ([(3, 4, 54), (0, 7, 56)], [(1, 2, 54), (5, 6, 54)])
            k.wait(lg="*")
            lds_signal(k, VSY, SY_RD, VONE)
            l1 = k.lab("h1"); l2 = k.lab("hj")
            k(f"s_cmp_eq_u32 s{sHH}, 1\ns_cbranch_scc1 {l1}")
            def check(addr, off):
                o = k.lab("ck"); want = 2 if (cfg.four and off == SY_PAIR) else 4
                k.wait(lg="*")
                k(f"v_readfirstlane_b32 s{sT}, v50\ns_cmp_ge_u32 s{sT}, {want}\ns_cbranch_scc1 {o}")
                lds_spin(k, addr, off, want, 50, sT, sSP)
                k(f"{o}:")
            for hh in (0, 1):
                keep, send = sets[hh], sets[1-hh]
                ms3 = [(J, a) for J in send + keep[::-1] for a in range(J+1)]
                fill = f"s_lshl_b32 s{sT}, s{sWV}, 12\ns_add_u32 s{sT}, s{sT}, 16384\nv_lshl_add_u32 v51, v0, 4, s{sT}\nv_xor_b32 v52, 0x1000, v51".split("\n")
                if hh == 0: fill += "v_bfe_u32 v56, v0, 4, 1\nv_mul_u32_u24 v56, 3584, v56\nv_add_u32 v56, v56, v53".split("\n")
                for i, (J, a) in enumerate(ms3):
                    k(f"v_mfma_f32_16x16x32_bf16 {V(Y+4*J,4)}, {V(F+4*a,4)}, {V(F+32+4*(J-a),4)}, {V(Y+4*J,4)}")
                    if i == cfg.xo[0]: k(f"ds_read_b32 v50, v{VSY} offset:{SY_RD}")
                    elif fill: k(fill.pop(0))
                    if i == cfg.xo[1]: check(VSY, SY_RD)
                    if i in cfg.xo[2]:
                        n = cfg.xo[2].index(i)
                        assert (send[n], send[n]) in ms3[:i]
                        k(f"ds_write_b128 v51, {V(Y+4*send[n],4)} offset:{1024*n}")
                        if n == 3: lds_signal(k, 55, SY_PAIR, VONE)
                    if i == cfg.xo[3]: k(f"ds_read_b32 v50, v55 offset:{SY_PAIR}")
                stamp(k, cfg, 7); stamp(k, cfg, 1, 5); stamp(k, cfg, 1, 9)
                k("s_setprio 3")
                check(55, SY_PAIR)
                stamp(k, cfg, 4, 9)
                for lo, hi, _ in pairs[hh]:
                    for J in (lo, hi): k(f"ds_read_b128 {V(EX+4*J,4)}, v52 offset:{1024*keep.index(J)}", f"e{J}")
                for g, (lo, hi, va) in enumerate(pairs[hh]):
                    for q, J in enumerate((lo, hi)):
                        k.wait(lg=f"e{J}")
                        for e in range(4): k(f"v_add_f32 v{Y+4*J+e}, v{Y+4*J+e}, v{EX+4*J+e}")
                        for e in (0, 1): k(f"v_cvt_pk_bf16_f32 v{YS+4*g+2*q+e}, v{Y+4*J+2*e}, v{Y+4*J+2*e+1}")
                    for e in (0, 1): k(f"v_permlane16_swap_b32 v{YS+4*g+e}, v{YS+4*g+2+e}")
                    stamp(k, cfg, 5 + g, 9)
                    k(f"buffer_store_dwordx4 {V(YS+4*g,4)}, v{va}, {S(sWS,4)}, s{sO1} offen offset:{512*lo} sc1", "sts")
                if hh == 0: k(f"s_branch {l2}\n{l1}:"); k.reset()
            k(f"{l2}:")
        else:
            stamp(k, cfg, 7); stamp(k, cfg, 1, 5)
            stamp(k, cfg, 1, 9)
            k("s_setprio 3")
            o = k.lab("rd")
            k.wait(lg="*")
            k(f"v_readfirstlane_b32 s{sT}, v50\ns_cmp_ge_u32 s{sT}, 4\ns_cbranch_scc1 {o}")
            lds_spin(k, VSY, SY_RD, 4, 50, sT, sSP)
            k(f"{o}:")
            stamp(k, cfg, 2, 9)
            l1 = k.lab("h1"); l2 = k.lab("hj"); EX = 100
            k(f"s_cmp_eq_u32 s{sHH}, 1\ns_cbranch_scc1 {l1}\ns_nop 3")
            for i in range(4): k(f"ds_write_b128 v51, {V(Y+16+4*i,4)} offset:{1024*i}")
            lds_signal(k, 55, SY_PAIR, VONE)
            k(f"s_branch {l2}")
            k(f"{l1}:")
            for i in range(4): k(f"ds_write_b128 v51, {V(Y+4*i,4)} offset:{1024*i}")
            lds_signal(k, 55, SY_PAIR, VONE)
            for i in range(16): k(f"v_mov_b32 v{Y+i}, v{Y+16+i}")
            k(f"{l2}:")
            stamp(k, cfg, 3, 9)
            lds_spin(k, 55, SY_PAIR, 4, 50, sT, sSP)
            stamp(k, cfg, 4, 9)
            for i in range(4): k(f"ds_read_b128 {V(EX+4*i,4)}, v52 offset:{1024*i}", f"e{i}")
            for g in (0, 1):
                for i in (2*g, 2*g+1):
                    k.wait(lg=f"e{i}")
                    for e in range(4): k(f"v_add_f32 v{Y+4*i+e}, v{Y+4*i+e}, v{EX+4*i+e}")
                    for e in (0, 1): k(f"v_cvt_pk_bf16_f32 v{YS+2*i+e}, v{Y+4*i+2*e}, v{Y+4*i+2*e+1}")
                for e in (0, 1): k(f"v_permlane16_swap_b32 v{YS+4*g+e}, v{YS+4*g+2+e}")
                stamp(k, cfg, 5 + g, 9)
                k(f"buffer_store_dwordx4 {V(YS+4*g,4)}, v54, {S(sWS,4)}, s{sO1} offen offset:{1024*g} sc1", "sts")
        stamp(k, cfg, 7, 9)
        if cfg.pages: k.page("epi")
    else:
        lB = "L_cvB"; lJ = "L_epi"
        k(f"s_cmp_eq_u32 s{sHH}, 1\ns_cbranch_scc1 {lB}")
        if cfg.pages: k.page("cvA")
        for Js in JSETS[cfg.jbal]:
            top = max(Js)
            ms = [(J, a) for a in range(top+1) for J in Js if a <= J]
            rest = first(ms)
            for r in range(8):
                F = FS[r & 1]; N = FS[(r+1) & 1]; nxt = list(rest); rest = []
                if r < 7:
                    for i in range(top+1): nxt += [(x, None) for x in a_read(r+1, N, i) + b_read(r+1, N, top-i)]
                if r > 0: k.wait(lg="*")
                if r == 7: lds_signal(k, VSY, SY_RD, VONE)
                n = 0; slots = len(ms) - cfg.cvfree
                for i, (J, a) in enumerate(ms):
                    if r == 0:
                        for t in (f"za{a}", f"zb{J-a}"):
                            assert t not in [y[1] for y in nxt[n:]]
                            k.wait(lg=t)
                    k(f"v_mfma_f32_16x16x32_bf16 {V(Y+4*J,4)}, {V(F+4*a,4)}, {V(F+32+4*(J-a),4)}, {'0' if (r == 0 and a == 0) else V(Y+4*J,4)}")
                    while n < len(nxt) and n*slots < (i+1)*len(nxt): k(*nxt[n]); n += 1
                assert n == len(nxt)
            stamp(k, cfg, 7); stamp(k, cfg, 1, 5)
            groups = [(Js[-1], Js[-1])] + [(Js[i+1], Js[i]) for i in range(len(Js)-3, -1, -2)]
            for g, (lo, hi) in enumerate(groups):
                y = YS + 4*g
                for q, J in enumerate((lo, hi)):
                    for e in (0, 1): k(f"v_cvt_pk_bf16_f32 v{y+2*q+e}, v{Y+4*J+2*e}, v{Y+4*J+2*e+1}")
                for e in (0, 1): k(f"v_permlane16_swap_b32 v{y+e}, v{y+2+e}")
                k(f"buffer_store_dwordx4 {V(y,4)}, v{53 if lo == hi else 54}, {S(sWS,4)}, s{sO1} offen offset:{512*lo} sc1", "sts")
            if top == 7:
                k(f"s_branch {lJ}")
                if cfg.pages: k.page("cvB", False)
                else: k(f"{lB}:")
                k.reset()
        if cfg.pages: k.page("epi")
        else: k(f"{lJ}:")
    if cfg.x_nos2:
        k("s_barrier"); prof_dump(k, cfg, True); k("s_endpgm"); return
    XE, OA, RA, SA, XU, SU = 248, 64, 68, 70, 120, 136
    k(f"s_lshl1_add_u32 s{sRB}, s{sRB}, s{sXH}\ns_mov_b32 s{sC}, s{sKAP}")
    k(f"v_lshrrev_b32 v50, 1, v0\nv_mul_u32_u24 v52, 896, v50\nv_lshl_add_u32 v{OA}, v{vODD}, 4, v52")
    k(f"s_mul_i32 s{sG32}, s{sRB}, {64*896}\ns_lshl2_add_u32 s{sT}, s{sC}, s{sWV}\ns_lshl_b32 s{sT}, s{sT}, 5\ns_add_u32 s{sG32}, s{sG32}, s{sT}\ns_add_u32 s{sKAP}, s{sG32}, {32*896}")
    k(f"v_lshl_add_u32 v51, s{sWV}, 1, v{vODD}\nv_and_b32 v55, 15, v50\nv_lshlrev_b32 v52, 1, v51\nv_xor_b32 v52, v52, v55\nv_lshlrev_b32 v52, 4, v52\nv_lshl_add_u32 v52, v55, 8, v52")
    k(f"v_lshrrev_b32 v55, 5, v0\nv_lshl_add_u32 v52, v55, 14, v52\nv_add_u32 v{RA}, {L_GB}, v52\nv_xor_b32 v{RA+1}, 16, v{RA}")
    if cfg.pdump: k(f"v_and_b32 v52, 7, v50\nv_xor_b32 v52, v52, v51\nv_lshlrev_b32 v52, 4, v52\nv_lshl_add_u32 v52, v50, 7, v52\nv_add_u32 v{RA}, {L_GB}, v52")
    k(f"v_bfe_u32 v52, v0, 4, 1\nv_lshl_add_u32 v52, v52, 2, v55\nv_xor_b32 v52, v52, v51\nv_lshlrev_b32 v52, 4, v52\nv_lshl_add_u32 v52, v51, 10, v52\nv_and_b32 v55, 14, v0\nv_add_u32 v{SA}, v55, v52\nv_xor_b32 v{SA+1}, 32, v{SA}")
    assert L_U == 0
    k(f"v_lshrrev_b32 v50, 3, v0\nv_and_b32 v51, 7, v0\ns_lshl_b32 s{sT}, s{sWV}, 1\nv_xor_b32 v56, s{sT}, v51\nv_lshlrev_b32 v56, 4, v56\nv_lshl_add_u32 v56, v50, 12, v56\nv_xor_b32 v57, 16, v56\nv_add_u32 v57, {32768-1024}, v57")
    stamp(k, cfg, 8, 9)
    k.wait(vm="*")
    stamp(k, cfg, 9, 9)
    s_inc(k, pWS, f"s{sO2}", sE3)
    stamp(k, cfg, 8); stamp(k, cfg, 2, 5)
    for i in range(8): k(f"v_lshlrev_b32 v{XU+2*i}, 16, v{XE+i}\nv_and_b32 v{XU+2*i+1}, 0xffff0000, v{XE+i}")
    k(f"s_lshr_b32 s{sT2}, s{sRB}, 2\ns_lshr_b32 s{sT2}, {(0x66 if cfg.xover else 0xf0) if RS[0] else sum(1 << J for J in JSETS[cfg.jbal][1])}, s{sT2}\ns_and_b32 s{sT2}, s{sT2}, 1")
    k(f"s_lshl_b32 s{sT}, s{sC}, 1\ns_add_u32 s{sT}, s{sT}, s{sT2}\ns_lshl_b32 s{sT}, s{sT}, 2\ns_add_u32 s{sT}, s{sT}, s{sWV}\ns_add_u32 s{sT}, s{sT}, {C_ST}\ns_lshl_b32 s{sO1}, s{sT}, 7")
    k(f"s_lshl_b32 s{sT}, s{sC}, 2\ns_add_u32 s{sT}, s{sT}, s{sWV}\ns_lshl_b32 s{sT}, s{sT}, 16\ns_lshl_b32 s{sT2}, s{sRB}, 7\ns_add_u32 s{sT}, s{sT}, s{sT2}\ns_add_u32 s{sO2}, s{sT}, {ST}")
    for i in range(16): k(f"v_mov_b32 v{SU+i}, 0")
    k(f"s_lshl_b32 m0, s{sWV}, 11")
    if not RS[0]: lds_spin(k, VSY, SY_RD, 4, 50, sT, sSP, 1)
    s_poll(k, pWS, [f"s{sO1}"], 16, sT, sSP, cfg.stpoll[1])
    stamp(k, cfg, 3, 5)
    k(f"buffer_load_dwordx4 v56, {S(sWS,4)}, s{sO2} offen sc1 lds\nbuffer_load_dwordx4 v57, {S(sWS,4)}, s{sO2} offen offset:1024 sc1 lds")
    k.wait(vm="*")
    stamp(k, cfg, 9); stamp(k, cfg, 4, 5)
    for ps in (0, 1):
        for e in range(8): k(f"ds_read_u16_d16_hi v{SU+8*ps+e}, v{SA+ps} offset:{128*e}")
    k(f"s_mov_b32 s{sO1}, {fbits(-LOG2E)}\ns_movk_i32 s50, 0x3f80\ns_mov_b32 s51, 0x3f800000")
    PR, T = 160, 224
    for ps in (0, 1):
        b = PR + 32*ps; plain = ps == 0 and cfg.p0plain
        if ps == 0:
            stamp(k, cfg, 5, 5); lds_spin(k, VSY, SY_GS, 4, 50, sT, sSP, cfg.finsleep); stamp(k, cfg, 6, 5)
        else:
            stamp(k, cfg, 7, 5); k("s_barrier"); stamp(k, cfg, 10); stamp(k, cfg, 8, 5)
        if cfg.pdump:
            for w in range(4): k(f"ds_read_b128 {V(b+8+4*w,4)}, v{RA} offset:{16384*ps + 4096*w}", f"p{w}")
            for w in range(4):
                k.wait(lg=f"p{w}")
                for i in range(4):
                    x = b + 8 + 4*w + i
                    if w == 0: k(f"v_lshlrev_b32 v{b+2*i}, 16, v{x}\nv_and_b32 v{b+2*i+1}, 0xffff0000, v{x}")
                    elif plain: k(f"v_lshlrev_b32 v{T}, 16, v{x}\nv_and_b32 v{x}, 0xffff0000, v{x}\nv_add_f32 v{b+2*i}, v{b+2*i}, v{T}\nv_add_f32 v{b+2*i+1}, v{b+2*i+1}, v{x}")
                    else: k(f"v_dot2c_f32_bf16 v{b+2*i}, s50, v{x}\nv_dot2c_f32_bf16 v{b+2*i+1}, s51, v{x}")
        else:
            for w in range(4):
                for e in (0, 1): k(f"ds_read_b128 {V(b+8*w+4*e,4)}, v{RA+e} offset:{32768*ps + 4096*w}", f"p{w}")
            def add(x, y):
                if ps == 0 and cfg.p0plain:
                    for i in range(8): k(f"v_add_f32 v{x+i}, v{x+i}, v{y+i}")
                else:
                    for i in range(4): k(f"v_pk_add_f32 {V(x+2*i,2)}, {V(x+2*i,2)}, {V(y+2*i,2)}")
            k.wait(lg="p1")
            add(b, b+8)
            k.wait(lg="p3")
            add(b+16, b+24); add(b, b+16)
        if plain and cfg.p0plain == 2:
            for i in range(8): k(f"v_mul_f32 v{T+i}, s{sO1}, v{b+i}")
            for i in range(8): k(f"v_exp_f32 v{T+i}, v{T+i}")
            for i in range(8): k(f"v_mul_f32 v{b+i}, v{b+i}, v{SU+i}")
            for i in range(8): k(f"v_add_f32 v{T+i}, 1.0, v{T+i}")
            for i in range(8): k(f"v_rcp_f32 v{T+i}, v{T+i}")
            for i in range(8): k(f"v_fma_f32 v{b+i}, v{b+i}, v{T+i}, v{XU+i}")
        else:
            for i in range(4): k(f"v_pk_mul_f32 {V(T+2*i,2)}, {V(b+2*i,2)}, {S(sO1,2)} op_sel_hi:[1,0]")
            for i in range(8): k(f"v_exp_f32 v{T+i}, v{T+i}")
            for i in range(4): k(f"v_pk_mul_f32 {V(b+2*i,2)}, {V(b+2*i,2)}, {V(SU+8*ps+2*i,2)}")
            for i in range(4): k(f"v_pk_add_f32 {V(T+2*i,2)}, {V(T+2*i,2)}, 1.0 op_sel_hi:[1,0]")
            for i in range(8): k(f"v_rcp_f32 v{T+i}, v{T+i}")
            for i in range(4): k(f"v_pk_fma_f32 {V(b+2*i,2)}, {V(b+2*i,2)}, {V(T+2*i,2)}, {V(XU+8*ps+2*i,2)}")
        for i in range(4): k(f"v_cvt_pk_bf16_f32 v{b+8+i}, v{b+2*i}, v{b+2*i+1}")
        k(f"buffer_store_dwordx4 {V(b+8,4)}, v{OA}, {S(sOUT,4)}, s{sG32 if ps == 0 else sKAP} offen {cfg.outmod}")
    if cfg.prof or cfg.probe: k("s_waitcnt vmcnt(0)")
    stamp(k, cfg, 11); stamp(k, cfg, 9, 5)
    prof_dump(k, cfg, True, role="S")
    k("s_endpgm")

def gen_helper(k, cfg):
    k.reset()
    k("L_helper:")
    sHB, sIH, sST = 62, 63, 64
    k(f"v_lshrrev_b32 v1, 6, v0\nv_and_b32 v0, 63, v0\nv_readfirstlane_b32 s3, v1\ns_and_b32 s{sXCD}, s2, 7")
    k(f"s_lshl_b32 s{sHB}, s{sXCD}, 2\ns_add_u32 s{sHB}, s{sHB}, s{sJ}")
    k(f"s_lshr_b32 s{sIH}, s{sXCD}, 1\ns_lshl_b32 s{sIH}, s{sIH}, 2\ns_add_u32 s{sIH}, s{sIH}, s{sJ}\ns_and_b32 s{sST}, s{sXCD}, 1\ns_mul_i32 s{sST}, s{sST}, 14\ns_add_u32 s{sST}, s{sST}, s{sIH}")
    k(f"s_lshl_b32 s{sT}, s{sHB}, 3\ns_add_u32 s{sT}, s{sT}, s3\ns_mul_i32 s65, s{sT}, {8*896}")
    k(f"v_lshrrev_b32 v1, 3, v0\nv_and_b32 v2, 7, v0\nv_mul_u32_u24 v3, 896, v1\nv_lshl_add_u32 v3, v2, 4, v3")
    k(f"v_lshlrev_b32 v4, 4, v0\nv_and_b32 v5, 1, v0\nv_lshlrev_b32 v5, 12, v5\nv_lshrrev_b32 v6, 1, v0\nv_lshl_add_u32 v5, v6, 4, v5")
    k(f"v_mul_u32_u24 v15, 3584, v1\nv_lshl_add_u32 v15, v2, 4, v15")
    k(f"s_lshl_b32 s67, s{sHB}, 7\ns_add_u32 s67, s67, {STATS}")
    k(f"s_lshl_b32 s69, s{sST}, 9\ns_add_u32 s69, s69, {AUGW}\ns_mul_i32 s70, s3, {56*3584}\ns_lshl_b32 s74, s{sST}, 7\ns_add_u32 s70, s70, s74")
    srd_const(k, sAUX, 256); srd_const(k, sWS, WSN); srd_const(k, sX, 1835008); srd_const(k, sW1, 1605632); srd_const(k, sW2, 1605632); srd_const(k, sOUT, 3584)
    k("s_waitcnt lgkmcnt(0)")
    srd(k, sW1, pW1); srd(k, sX, pX); srd(k, sWS, pWS); srd(k, sAUX, pDBG); srd(k, sW2, pW2); srd(k, sOUT, pB1)
    stamp(k, cfg, 5)
    if cfg.tlb:
        k(f"s_lshl_b32 s72, s3, 21\ns_load_dword s30, {S(pWS,2)}, s72\ns_load_dword s31, {S(pW2,2)}, 0\ns_load_dword s32, {S(pOUT,2)}, 0\ns_load_dword s33, {S(pW1,2)}, 0\ns_load_dword s34, {S(pDBG,2)}, 128")
    l0 = k.lab("h0")
    k(f"s_cmp_lt_u32 s{sIH}, 14\ns_cbranch_scc1 {l0}")
    for i in range(4): k(f"v_mov_b32 v{8+i}, 0")
    k(f"s_and_b32 s66, s{sXCD}, 1\ns_lshl_b32 s66, s66, 1\ns_and_b32 s{sT}, s{sJ}, 1\ns_add_u32 s66, s66, s{sT}\ns_lshl_b32 s66, s66, 3\ns_add_u32 s66, s66, s3\ns_lshl_b32 s66, s66, 12")
    for n in range(4): k(f"buffer_store_dwordx4 v[8:11], v4, {S(sWS,4)}, s66 offen offset:{1024*n} sc1")
    k(f"s_mov_b32 s69, {WSN}\ns_mov_b32 s70, {WSN}\ns_waitcnt vmcnt(0)\ns_barrier\ns_cmp_lg_u32 s3, 7\ns_cbranch_scc1 {l0}")
    s_inc(k, pDBG, "0", 75)
    k(f"{l0}:")
    stamp(k, cfg, 4)
    if cfg.hdelay: k(f"s_sleep {cfg.hdelay}")
    k.reset()
    if cfg.hxfirst:
        for i in range(7): k(f"buffer_load_dwordx4 {V(16+4*i,4)}, v3, {S(sX,4)}, s65 offen offset:{128*i}", f"x{i}")
    if cfg.hsplit: k("s_barrier")
    for i in range(7): k(f"s_add_u32 s76, s70, {i*8*3584}\nbuffer_load_dwordx4 {V(44+4*i,4)}, v15, {S(sW1,4)}, s76 offen", f"w{i}")
    k(f"v_lshlrev_b32 v6, 1, v0\nbuffer_load_ushort v81, v6, {S(sOUT,4)}, s74 offen", "b1")
    k("v_and_b32 v12, 1, v0\nv_lshlrev_b32 v12, 4, v12\nv_mov_b32 v13, 0xbf80\nv_lshlrev_b32 v13, v12, v13\nv_bfe_u32 v12, v0, 1, 2")
    for e in range(4): k(f"v_cmp_eq_u32 vcc, {e}, v12\nv_cndmask_b32 v{72+e}, 0, v13, vcc")
    k(f"v_lshrrev_b32 v82, 5, v0\nv_lshl_add_u32 v82, s3, 1, v82\nv_lshlrev_b32 v82, 8, v82\nv_bfe_u32 v13, v0, 4, 1\nv_lshl_add_u32 v82, v13, 7, v82\nv_lshl_add_u32 v82, v2, 2, v82\nv_add_u32 v82, 1024, v82")
    k("v_mov_b32 v12, 0\nv_mov_b32 v13, 0\ns_mov_b32 s68, 0x3f803f80")
    if not cfg.hxfirst:
        for i in range(7): k(f"buffer_load_dwordx4 {V(16+4*i,4)}, v3, {S(sX,4)}, s65 offen offset:{128*i}", f"x{i}")
    hclr = f"buffer_load_dword v83, off, {S(sAUX,4)}, 0 sc1"
    k(hclr, "clr")
    if int(cfg.prof) == 8:
        stamp(k, cfg, 1, 8)
        for i, t in enumerate(("x0", "x3", "x6", "w0", "w3", "w6")):
            sv = list(k.vm); k.wait(vm=t); k.vm = sv; stamp(k, cfg, 2 + i, 8)
    if cfg.hearly:
        k(f"s_lshr_b32 s71, s{sHB}, 4\ns_mul_i32 s71, s71, {512*896}\ns_lshl3_add_u32 s72, s{sHB}, s3\ns_mul_i32 s72, s72, {3*896}\ns_add_u32 s71, s71, s72")
        k(f"v_min_u32 v84, 20, v0\nv_lshlrev_b32 v84, 7, v84\nbuffer_load_dword v84, v84, {S(sW2,4)}, s71 offen", "pf0")
    for i in range(7):
        k.wait(vm=f"x{i}")
        for e in range(4): k(f"v_dot2c_f32_bf16 v12, s68, v{16+4*i+e}\nv_dot2c_f32_bf16 v13, v{16+4*i+e}, v{16+4*i+e}")
    stamp(k, cfg, 6)
    for m in ("quad_perm:[1,0,3,2]", "quad_perm:[2,3,0,1]", "row_half_mirror"):
        for r in (12, 13): k(f"v_add_f32_dpp v{r}, v{r}, v{r} {m} row_mask:0xf bank_mask:0xf")
    k(f"v_mul_f32 v12, {fbits(1/448)}, v12\nv_mul_f32 v13, {fbits(1/448)}, v13\nv_fma_f32 v13, -v12, v12, v13\nv_max_f32 v13, 0, v13")
    k(f"v_cvt_pk_bf16_f32 v13, v13, v13\nv_and_b32 v13, 0xffff0000, v13\nv_add_f32 v13, {fbits(1e-5)}, v13\nv_cvt_pk_bf16_f32 v13, v13, v13\nv_and_b32 v13, 0xffff0000, v13")
    k(f"v_sqrt_f32 v13, v13\nv_lshl_add_u32 v14, s3, 3, v1\nv_lshlrev_b32 v14, 2, v14\nv_cvt_pk_bf16_f32 v12, v12, v13")
    k("ds_write_b32 v14, v12")
    for j in range(7):
        k.wait(vm=f"w{j}")
        k(f"v_mfma_f32_16x16x32_bf16 v[76:79], {V(44+4*j,4)}, v[72:75], {'0' if j == 0 else 'v[76:79]'}")
    k("ds_write2_b32 v82, v76, v77 offset0:0 offset1:8\nds_write2_b32 v82, v78, v79 offset0:16 offset1:24")
    stamp(k, cfg, 7)
    v_poll(k, hclr, 83, 4, 73, 2, first=False, tag="clr")
    stamp(k, cfg, 8)
    k.wait(lg="*")
    k("s_barrier")
    stamp(k, cfg, 1)
    l2 = k.lab("h2"); l3 = k.lab("h3")
    k(f"s_cmp_lg_u32 s3, 0\ns_cbranch_scc1 {l2}")
    k("s_mov_b64 exec, 0xffff\nds_read_b128 v[8:11], v4")
    k.wait(lg="*")
    k(f"buffer_store_dwordx4 v[8:11], v5, {S(sWS,4)}, s67 offen sc1\ns_mov_b64 exec, -1")
    k(f"{l2}:")
    k(f"s_cmp_lg_u32 s3, 1\ns_cbranch_scc1 {l3}")
    k("v_lshlrev_b32 v12, 2, v0")
    for j in range(8): k(f"ds_read2st64_b32 {V(16+2*j,2)}, v12 offset0:{4+2*j} offset1:{5+2*j}")
    k.wait(lg="*")
    for st_ in (1, 2, 4, 8):
        for j in range(0, 16, 2*st_): k(f"v_add_f32 v{16+j}, v{16+j}, v{16+j+st_}")
    k(f"v_cvt_pk_bf16_f32 v12, v16, v16\nv_and_b32 v12, 0xffff0000, v12\nv_sub_f32 v12, v16, v12\nv_cvt_pk_bf16_f32 v80, v16, v12\nv_or_b32 v81, 0x10000, v81\nv_lshlrev_b32 v12, 3, v0")
    k(f"buffer_store_dwordx2 v[80:81], v12, {S(sWS,4)}, s69 offen sc1")
    k(f"{l3}:")
    k("s_barrier")
    stamp(k, cfg, 2)
    k(f"v_lshlrev_b32 v14, 7, v0\ns_mul_i32 s76, s{sJ}, 401408\ns_mul_i32 s77, s{sXCD}, 49\ns_lshr_b32 s77, s77, 3\ns_add_u32 s77, s77, s3")
    for i in range(cfg.w2pf):
        k(f"s_sub_u32 s71, s77, 49\ns_cmp_ge_u32 s77, 49\ns_cselect_b32 s77, s71, s77\ns_lshl_b32 s71, s77, 13\ns_add_u32 s71, s71, s76\ns_add_u32 s77, s77, 8")
        k(f"buffer_load_dword v{90+i}, v14, {S(sW2,4)}, s71 offen", "pf")
    if cfg.actpf:
        k(f"s_lshl1_add_u32 s71, s{sIH}, 0\ns_and_b32 s72, s{sXCD}, 1\ns_add_u32 s71, s71, s72\ns_lshr_b32 s72, s3, 1\ns_lshl2_add_u32 s74, s71, s72\ns_lshl_b32 s74, s74, 9\ns_add_u32 s74, s74, {ACNT}")
        k(f"s_add_u32 s48, s{pWS}, s74\ns_addc_u32 s49, s{pWS+1}, 0")
        k(f"s_and_b32 s74, s72, 1\ns_mul_i32 s74, s74, 7\ns_and_b32 s75, s3, 1\ns_add_u32 s74, s74, s75\ns_lshr_b32 s72, s72, 1\ns_lshl1_add_u32 s74, s74, s72\ns_lshl_b32 s74, s74, 13")
        k(f"s_mul_i32 s76, s71, 229376\ns_add_u32 s76, s76, s74\ns_add_u32 s76, s76, {ACT + cfg.apf0*16384}\ns_mov_b32 s73, 0\ns_sleep {cfg.apfwait}")
        l = k.lab("hp"); o = k.lab("hpo")
        k(f"{l}:\ns_sleep {cfg.actpf}")
        for i in range(4): k(f"s_load_dword s{52+i}, s[48:49], {128*i} glc")
        k(f"s_add_u32 s73, s73, 1\ns_waitcnt lgkmcnt(0)\ns_cmp_gt_u32 s73, {SPIN}\ns_cbranch_scc1 L_end\ns_add_u32 s52, s52, s53\ns_add_u32 s54, s54, s55\ns_add_u32 s52, s52, s54\ns_cmp_lt_u32 s52, 7\ns_cbranch_scc1 {l}")
        for i in range((7 - cfg.apf0)//2): k(f"buffer_load_dword v{100+i}, v14, {S(sWS,4)}, s76 offen sc1\ns_add_u32 s76, s76, 32768")
    k("s_waitcnt vmcnt(0)")
    stamp(k, cfg, 3)
    prof_dump(k, cfg, role="H")
    k("L_end:")
    k("s_endpgm")

DOC = """;
"""
HEADER = open("recurrent_scan__ssm_conv_s4__dense_activation_mish__prompt.s.ref").read().split("; Override launch")[0] if __name__ == "__main__" else ""
def table(cfg):
    def bf(l):
        u = struct.unpack("<I", struct.pack("<f", float(l)))[0]
        return (u + 0x7fff + ((u >> 16) & 1)) >> 16
    ci = lambda l: -1 if l < 0 else l if l < 128 else bf(l) - 0x4300 + 128
    off = lambda c: (c + (c >> 5))*4 + 16
    rows = []
    for hh in (0, 1):
        e = []
        for l in range(64):
            v = 64*hh + l; a = 255 + 384 - v
            t = [off(ci(1023 - 8*v - i)) for i in range(11)] + [off(a), off(a+1), off(a - (v == 127))]
            t.append((3 - (l & 3))*4160 - 8*((l >> 2) & 3) + 16*(l >> 4) + 24 + 256 - 256*hh*RS[0])
            t.append(32*(l & 15) + 16*(l >> 4) + 256*RS[0]*(1 - hh))
            e.append(t)
        for half in (0, 1): rows += [t[8*half:8*half+8] for t in e]
    assert L_U == 0 and all(0 <= x < 65536 for r in rows for x in r)
    return ".p2align 7\n.type L_tab,@object\n.size L_tab, 4096\nL_tab:\n" + "".join(".short " + ", ".join(map(str, r)) + "\n" for r in rows)

def build(cfg, header=""):
    ORD[:] = cfg.ord; LOC[:] = [LOCT[ORD.index(b)] for b in range(7)]; assert ORD[6] == 6
    assert not cfg.tab or (cfg.mbar and cfg.split == 'r' and not cfg.c1g and cfg.c1mid < 2)
    FOUR[0] = cfg.four; assert not cfg.four or (cfg.tab and not cfg.nearly)
    G16[0] = cfg.g16; GSP[:] = cfg.gsplit; assert 6 in cfg.early and (0 in cfg.early or cfg.tab)
    k = K(); RS[0] = int(cfg.split == 'r')
    front(k, cfg); vm0 = list(k.vm); gen_G(k, cfg); gen_S(k, cfg, vm0); gen_helper(k, cfg)
    if cfg.dmod:
        for i in k.ins:
            if i.kind == "vm" and i.lds and "sc1" not in i.text: i.text = i.text.replace(" lds", f" {cfg.dmod} lds")
    return file_wrap([(KNAME, 256, 512, L_TOT)], [kernel_wrap(KNAME, k.text() + (table(cfg) if cfg.tab else ''), 256).replace(".text\n", f".text\n; never executed: places the entry point at the start of a 4 KB page\n.p2align 12\n.fill {cfg.lead//4}, 4, 0xbf800000\n" if cfg.lead is not None else ".text\n", 1).replace('denorm_mode_32 3', f'denorm_mode_32 {cfg.denorm}')], header), k

if __name__ == "__main__":
    cfg = Cfg()
    for a in sys.argv[2:]:
        n, v = a.split("=", 1); setattr(cfg, n, eval(v))
    txt, k = build(cfg, HEADER + DOC)
    open(sys.argv[1], "w").write(txt)
    print("instructions", len(k.ins), "padded states", k.padded)
```

```python
import sys, struct
from kasm import *
from asmlib import KNAME, kernel_wrap, file_wrap

def fbits(x): return "0x%08x" % struct.unpack("<I", struct.pack("<f", x))[0]
LOG2E = 1.4426950408889634

AUGW, ACNT = 0xA000, 0x10000
CNT, STATS, PROF, XT, ST, ACT, KDBG, WSN = 0, 0x8000, 0x20000, 0x100000, 0x300000, 0x500000, 0xD00000, 0x2000000
C_ACT, C_XT, C_ST = 0, 128, 184
L_WS, L_XS = [81920, 98304, 0], [49152, 65536, 16384]
L_GB, L_KC, L_U, L_SY, L_TOT = 49152, 14336, 0, 13312, 163840
L_PART, L_PCH, L_GS = 84480, 6864, L_U + 9216
sX, sW1, sW2, sWS, sAUX, sOUT = 4, 8, 12, 16, 20, 24
pX, pARE, pLDT, pDSK, pW1, pB1, pW2, pOUT, pDBG, pWS = 28, 30, 42, 44, 48, 50, 52, 54, 56, 58
sXCD, sJ, sR, sC, sRB, sFC, sKAP = 60, 61, 62, 63, 64, 65, 66
SPIN, LSPIN = 1000000, 30000000

class Cfg:
    prof = False
    kdbg = False
    span = False
    probe = None
    probewg = None
    probemin = False
    probe2 = None
    cyc = False
    depth = 6
    rot = False
    stpoll = ('s', 2)
    actsleep = 1
    c1at = [14, 22, 30, 38]
    statstep = 20
    pace2 = 9
    pace = 5
    actpf = 0
    apf0 = 3
    apfwait = 60
    w2pf = 1
    codepf = True
    outmod = ""
    pbar = False
    flagat = 1
    cut = [3, 4]
    early = [6]
    xtat = [50, 52]
    touch = 36
    w2touch = 0
    tlb = False
    ord = [2, 3, 4, 5, 0, 1, 6]
    s45 = True
    jbal = 2
    partner = 1
    pmask2 = 0
    xtearly = True
    gc1early = True
    w2from = 22
    rdlag = 1
    p0plain = 0
    pollat = 6
    cvprio = 2
    nprio = 0
    tailq = 6
    usleep = 0
    mbar = 1
    hearly = False
    hdelay = 0
    hsplit = True
    pmod = ('', 'nt')
    rshare = True
    pdump = False
    pages = True
    prew = 1
    tab = True
    four = False
    gsearly = 4
    nprio0 = 0
    paces = (5,6,5,4,5)
    lprio = 3
    sched = ((3,), (7,), (4,), (9,), (0,))
    stair = True
    xs = (2, 8)
    pfsh = 6
    pfn = 18
    npat = 24
    npk = False
    rpre = 8
    touchS = False
    c1s = False
    gpl = (4, 5)
    spl = (5, 4)
    cpre = 2
    tabat = 99
    tabw = '0'
    nearly = False
    c6cut = 4
    ncut = (16, 44)
    dmod = ''
    c1g = False
    pplate = True
    xover = True
    xo = (3, 10, [11, 14, 19, 24], 31)
    fast = True
    pollpos = 45
    c1mid = 0
    g16 = 2
    gsplit = ([0], [2, 4], [6, 8, 10])
    tn = 5
    rl16 = 1
    c0wat = 6
    lead = 0xD00
    warm = ('g1', 'mish', 'cvA', 'cvB')
    sall = None
    b8at = 14
    pbar2 = 0
    cvpre = 12
    g2prio = 0
    finsleep = 0
    bclate = True
    own = True
    aspread = 4
    gc0 = True
    c0x = 2
    c0w = 2
    gat = dict(xr=46, xs=50, touch=36)
    xtbar = 1
    hxfirst = True
    gearly = 1
    c0late = 2
    r2cut = 8
    sblk = True
    split = 'r'
    x_noconv = False
    cvfree = 3
    tailn = 12
    gblk = 4
    x_noside = False
    x_nodma = False
    x_nobar = False
    x_nokw = False
    x_acthit = False
    x_nos2 = False
    ssleep = 0
    stat = [1,2,3,4,5,6,7]
    actmod = 'sc1'
    x_noc01 = False
    kbar = False
    kdelay = False
    kprio = 1
    denorm = 3

def srd(k, d, ptr): k(f"s_mov_b64 {S(d,2)}, {S(ptr,2)}")
def srd_const(k, d, n): k(f"s_mov_b32 s{d+2}, {n}\ns_mov_b32 s{d+3}, 0x20000")

def stamp(k, cfg, i, mode=1):
    if cfg.probe:
        if i == 0 or (mode, i) == cfg.probe[1:]: k(f"s_memrealtime {S(78+2*i,2)}")
        return
    if cfg.cyc and cfg.prof and (mode == int(cfg.prof) or i == 0):
        k(f"s_memtime {S(78+2*i,2)}"); return
    if (cfg.span and i == 0) or cfg.prof and (int(cfg.prof) == mode or i == 0): k(f"s_memrealtime {S(78+2*i,2)}")
def cstamp(k, cfg, i, mode=2):
    if int(cfg.prof) == mode: k(f"s_memtime {S(78+2*i,2)}")
def prof_dump(k, cfg, last=False, role=None):
    if cfg.probe:
        if role == cfg.probe[0]:
            l = k.lab("pad"); i = cfg.probe[2]
            if cfg.probe2:
                k(f"s_waitcnt lgkmcnt(0)\ns_cmp_lg_u32 s{sCOL}, 0\ns_cbranch_scc1 L_end")
                srd(k, sAUX, pDBG); srd_const(k, sAUX, 256)
                l3 = k.lab("pq")
                k(f"{l3}:\ns_sleep 8\ns_memrealtime s[74:75]\ns_waitcnt lgkmcnt(0)\ns_sub_u32 s74, s74, s78\ns_cmp_lt_u32 s74, 2500\ns_cbranch_scc1 {l3}")
                k(f"s_not_b32 s76, s78\nv_mov_b32 v4, s76\nv_mov_b32 v5, s78\nv_mov_b32 v6, s{78+2*i}\ns_mov_b64 exec, 1")
                for n in range(3): k(f"buffer_atomic_umax v{4+n}, off, {S(sAUX,4)}, 0 offset:{128+4*n}")
                k(f"s_cmp_lg_u32 s2, 40\ns_cbranch_scc1 L_end")
                l2 = k.lab("pw")
                k(f"{l2}:\ns_memrealtime s[74:75]\ns_waitcnt lgkmcnt(0)\ns_sub_u32 s74, s74, s78\ns_cmp_lt_u32 s74, 8000\ns_cbranch_scc1 {l2}")
                k(f"buffer_load_dwordx3 v[4:6], off, {S(sAUX,4)}, 0 offset:128 sc1\ns_waitcnt vmcnt(0)\nv_readfirstlane_b32 s72, v4\nv_readfirstlane_b32 s73, v5\nv_readfirstlane_b32 s76, v6\ns_not_b32 s72, s72")
                k({"first": "s_sub_u32 s76, s76, s72", "last": "s_sub_u32 s76, s76, s73"}[cfg.probe2])
                k(f"s_lshl_b32 s76, s76, 4\ns_min_u32 s76, s76, 30000\ns_add_u32 s76, s76, 10000")
                k(f"{l}:\ns_memrealtime s[74:75]\ns_waitcnt lgkmcnt(0)\ns_sub_u32 s74, s74, s72\ns_cmp_lt_u32 s74, s76\ns_cbranch_scc1 {l}")
                return
            k(f"s_waitcnt lgkmcnt(0)\ns_sub_u32 s76, s{78+2*i}, s78\ns_lshl_b32 s76, s76, 4\ns_min_u32 s76, s76, 27000\n" + ("s_add_u32 s76, s76, 3000" if not cfg.probemin else "s_sub_u32 s76, 30000, s76"))
            if cfg.probewg is not None: k(f"s_cmp_lg_u32 s2, {cfg.probewg}\ns_cselect_b32 s76, 0, s76")
            k(f"{l}:\ns_memrealtime s[74:75]\ns_waitcnt lgkmcnt(0)\ns_sub_u32 s74, s74, s78\ns_cmp_lt_u32 s74, s76\ns_cbranch_scc1 {l}")
        return
    if cfg.span == 2 and last:
        k("L_pad:\ns_memrealtime s[80:81]\ns_waitcnt lgkmcnt(0)\ns_sub_u32 s80, s80, s78\ns_cmp_lt_u32 s80, 4000\ns_cbranch_scc1 L_pad")
    if cfg.span == 1 and last:
        k("s_memrealtime s[80:81]\ns_waitcnt lgkmcnt(0)\ns_not_b32 s78, s78\nv_mov_b32 v4, s78\nv_mov_b32 v5, s80\ns_mov_b64 exec, 1")
        k("s_cmp_lg_u32 s3, 4\ns_cbranch_scc1 L_end")
        k(f"buffer_atomic_umax v4, off, {S(sAUX,4)}, 0 offset:8\nbuffer_atomic_umax v5, off, {S(sAUX,4)}, 0 offset:12")
    if not cfg.prof: return
    k("s_waitcnt lgkmcnt(0)")
    k("s_lshl_b32 s76, s2, 3\ns_add_u32 s76, s76, s3\ns_lshl_b32 s76, s76, 6\ns_add_u32 s76, s76, %d" % PROF)
    k("s_mov_b64 exec, 1")
    for q in range(3):
        for e in range(4): k(f"v_mov_b32 v{4+e}, s{78+2*(4*q+e)}")
        k(f"buffer_store_dwordx4 v[4:7], off, {S(sWS,4)}, s76 offset:{16*q}")
    k("s_mov_b64 exec, -1")

def atomic_inc(k, srdreg, soff, vt):
    k(f"v_mov_b32 v{vt}, 1\ns_mov_b64 exec, 1")
    k(f"buffer_atomic_add v{vt}, off, {S(srdreg,4)}, {soff} sc1", "atom")
    k("s_mov_b64 exec, -1")

def s_inc(k, ptr, soff, st):
    k(f"s_mov_b32 s{st}, 1\ns_atomic_add s{st}, {S(ptr,2)}, {soff}")
def s_poll(k, ptr, soffs, want, st, sc, sleep=0):
    l = k.lab("sp"); o = k.lab("spo")
    k(f"s_mov_b32 s{sc}, 0")
    k(f"{l}:")
    for i, so in enumerate(soffs): k(f"s_load_dword s{st+i}, {S(ptr,2)}, {so} glc")
    k(f"s_add_u32 s{sc}, s{sc}, 1")
    k.wait(lg="*")
    k(f"s_cmp_gt_u32 s{sc}, {SPIN}\ns_cbranch_scc1 {o}")
    for i in range(1, len(soffs)): k(f"s_min_u32 s{st}, s{st}, s{st+i}")
    if sleep: k(f"s_cmp_ge_u32 s{st}, {want}\ns_cbranch_scc1 {o}\ns_sleep {sleep}\ns_branch {l}")
    else: k(f"s_cmp_lt_u32 s{st}, {want}\ns_cbranch_scc1 {l}")
    k(f"{o}:")
def v_poll(k, load, vt, want, sc, sleep=0, first=True, tag="*"):
    l = k.lab("vp"); o = k.lab("vpo")
    if first: k(load)
    k(f"s_mov_b32 s{sc}, 0")
    k.wait(vm=tag)
    k(f"{l}:")
    k(f"v_cmp_gt_u32 vcc, {want}, v{vt}\ns_add_u32 s{sc}, s{sc}, 1\ns_cmp_gt_u32 s{sc}, {SPIN}\ns_cbranch_scc1 {o}\ns_cbranch_vccz {o}")
    if sleep: k(f"s_sleep {sleep}")
    sv = list(k.vm); k(load); k("s_waitcnt vmcnt(0)"); k.vm = sv
    k(f"s_branch {l}")
    k(f"{o}:")

def lds_signal(k, vaddr, off, vone):
    k("s_mov_b64 exec, 1")
    k(f"ds_add_u32 v{vaddr}, v{vone} offset:{off}", "sig")
    k("s_mov_b64 exec, -1")
def lds_spin(k, vaddr, off, want, vt, st, sc, sleep=0):
    l = k.lab("spin"); o = k.lab("spun")
    k(f"s_mov_b32 s{sc}, 0")
    k(f"{l}:")
    k(f"ds_read_b32 v{vt}, v{vaddr} offset:{off}\ns_add_u32 s{sc}, s{sc}, 1")
    k.wait(lg="*")
    k(f"v_readfirstlane_b32 s{st}, v{vt}\ns_cmp_gt_u32 s{sc}, {LSPIN}\ns_cbranch_scc1 {o}")
    if sleep: k(f"s_cmp_ge_u32 s{st}, {want}\ns_cbranch_scc1 {o}\ns_sleep {sleep}\ns_branch {l}")
    else: k(f"s_cmp_lt_u32 s{st}, {want}\ns_cbranch_scc1 {l}")
    k(f"{o}:")

sCP, sCS, sCOL, sM, sT, sT2, sSP, sO1, sO2, sDO, sDM = 67, 68, 69, 70, 71, 72, 73, 74, 75, 76, 77
sXO, sWO, sA2, sB2, sDT, sDT2, sE0, sE1, sE2, sE3 = 30, 31, 32, 33, 34, 35, 36, 37, 38, 39
sHH, sG32, sKM = 40, 41, 46
sRW = 40
AB, BB, CB, X1, X8, X256, W1, W8, W256, W2, W4, TT, Z0, Z1, PK = 100, 102, 104, 106, 108, 110, 112, 114, 116, 118, 120, 122, 124, 126, 128
KWG, KR, PA, DSK, DT, VD, VF, UF, KA = 132, 140, 141, 145, 146, 150, 160, 192, 224
LOCT = [4, 6, 1, 0, 3, 5, 2]
ORD = list(range(7))
LOC = list(LOCT)
SY_GS, SY_RING, SY_RD, SY_U, SY_PAIR, SY_S, SY_W2, SY_M = 0, 4, 8, 12, 16, 24, 32, 48

def x_offsets(k, d):
    k(f"v_lshrrev_b32 v154, 3, v0\nv_and_b32 v155, 7, v0\nv_lshrrev_b32 v156, 4, v0\nv_xor_b32 v155, v155, v156")
    k(f"v_lshl_add_u32 v154, s{sCOL}, 5, v154\nv_mul_u32_u24 v154, 896, v154\nv_lshl_add_u32 v{d}, v155, 4, v154\nv_xor_b32 v155, 64, v{d}")
    k(f"v_add_u32 v{d+1}, 6144, v155\nv_add_u32 v{d+2}, {2*6144}, v{d}\nv_add_u32 v{d+3}, {3*6144}, v155")
G16 = [0]
def w1_offsets(k, d):
    f = G16[0] == 2
    k(f"v_lshrrev_b32 v154, 4, v0\nv_and_b32 v155, 15, v0\nv_lshlrev_b32 v156, {1 if f else 2}, v154\nv_xor_b32 v155, v155, v156")
    k(f"v_lshl_add_u32 v154, s{sCOL}, 4, v154\nv_mul_u32_u24 v154, 3584, v154\nv_lshl_add_u32 v{d}, v155, 4, v154")
    if f: k(f"v_xor_b32 v155, 0x80, v{d}")
    for n in (1,2,3): k(f"v_add_u32 v{d+n}, {n*13312}, v{155 if (f and n >= 2) else d}")
def w2_offsets(k, d):
    k(f"v_lshrrev_b32 v154, 3, v0\nv_and_b32 v155, 7, v0\nv_bfe_u32 v156, v0, 4, {2 if G16[0] == 2 else 1}\nv_lshlrev_b32 v156, {1 if G16[0] else 2}, v156\nv_xor_b32 v155, v155, v156")
    k(f"v_mul_u32_u24 v154, 896, v154\nv_lshl_add_u32 v{d}, v155, 4, v154")
    if G16[0] == 1: k(f"v_xor_b32 v155, 64, v{d}")
    for n in (1,2,3): k(f"v_add_u32 v{d+n}, {n*6144}, v{155 if (G16[0] == 1 and n >= 2) else d}")
sC0, sCE = 42, 43
def piece_bases(k, unit):
    k(f"s_add_u32 s{sB2}, s{sA2}, {unit}\ns_mul_i32 s{sC0}, s{sCE}, {unit}\ns_add_u32 s{sC0}, s{sC0}, s{sA2}")
def piece(n, unit, extra, d):
    if n == 0: return f"s_add_u32 s{d}, s{sC0}, {extra}"
    return f"s_cmp_le_u32 s{sCE}, {n-1}\ns_cselect_b32 s{d}, s{sB2}, s{sA2}\ns_add_u32 s{d}, s{d}, {(n-1)*unit + extra}"
def w2_bases(k, cfg):
    k(f"s_xor_b32 s{sT}, s3, s{sXCD}\ns_bitcmp1_b32 s{sT}, 0\ns_cselect_b32 s{sCE}, 0, s{sC}")
    k(f"s_and_b32 s{sT}, s3, 1\ns_mul_i32 s{sT}, s{sT}, 14\ns_add_u32 s{sT}, s{sT}, s{sCS}\ns_mul_i32 s{sA2}, s{sT}, {64*896}\ns_lshl_b32 s{sT}, s{sKAP}, 7\ns_add_u32 s{sA2}, s{sA2}, s{sT}")
    piece_bases(k, 114688)
def w2dma(b, d):
    out = [f"s_add_u32 m0, s{sM}, {LOC[b%7]*16384}\n" + piece(b//2, 114688, (b & 1)*28672, sDT) + f"\nbuffer_load_dwordx4 v{d}, {S(sW2,4)}, s{sDT} offen lds"]
    for n in (1,2,3): out.append(f"buffer_load_dwordx4 v{d+n}, {S(sW2,4)}, s{sDT} offen offset:{n*1024} lds")
    return [(g, f"w2_{b}") for g in out]
def cmul(k, z, a, w, t):
    k(f"v_pk_mul_f32 {V(t,2)}, {V(a,2)}, {V(w,2)} op_sel_hi:[1,0]")
    k(f"v_pk_fma_f32 {V(z,2)}, {V(a,2)}, {V(w,2)}, {V(t,2)} op_sel:[1,1,0] op_sel_hi:[0,1,1] neg_lo:[0,1,0]")

gW2D, gW2A, gL16, gSY, gONE, gXA, gWA, gSTA, gAGA, gAUG, gSTT, gH = 1, 5, 9, 12, 13, 80, 84, 88, 89, 90, 98, 14
sPW = 22
sGA, ZERO, VSY, VONE, _WD, sW2D, XTA, XTS, EW, CA, CBA, UW, TZ = 8, 30, 34, 35, 36, 40, 44, 46, 64, 65, 66, 67, 48

XR = 56
CLRL = f"buffer_load_dword v49, off, {S(sAUX,4)}, 0 sc1"
class Cap:
    def __init__(self): self.l = []
    def __call__(self, text, tag=None): self.l += [x for x in text.split("\n") if x.strip()]

def front(k, cfg):
    stamp(k, cfg, 0)
    k("s_load_dwordx16 s[28:43], s[0:1], 0\ns_load_dwordx16 s[44:59], s[0:1], 64")
    k("s_cmpk_ge_u32 s2, 256\ns_cbranch_scc1 L_end")
    k(f"s_lshr_b32 s{sJ}, s2, 3")
    if cfg.codepf:
        lp = k.lab("pc")
        pfa = f"v_and_b32 v2, 15, v0\nv_lshl_add_u32 v2, s{sJ}, 4, v2" if cfg.pfn == 16 else f"v_and_b32 v2, 31, v0\nv_min_u32 v2, {cfg.pfn-1}, v2\nv_mad_u32_u24 v2, s{sJ}, {cfg.pfn}, v2"
        k(f"s_getpc_b64 s[72:73]\n{lp}:\n{pfa}\nv_min_u32 v2, ({('L_tab+8180' if cfg.stair else 'L_tab+4084') if cfg.tab else 'L_end'}-{lp})/{1 << cfg.pfsh}, v2\nv_mov_b32 v3, 0")
        k(f"v_lshlrev_b32 v2, {cfg.pfsh}, v2\nv_lshl_add_u64 v[2:3], v[2:3], 0, s[72:73]\nglobal_load_dword v99, v[2:3], off", "code")
    k(f"s_sub_u32 s{sCP}, s2, 32\ns_cbranch_scc1 L_helper")
    k(f"v_and_b32 v1, 0xff, v0\nv_lshl_add_u32 v1, s{sCP}, 8, v1\nv_lshlrev_b32 v1, 2, v1\ns_lshl_b32 s{sSP}, s{sCP}, 2")
    if cfg.partner:
        k("v_xor_b32 v3, 0x1000, v1")
        if cfg.pmask2: k(f"v_lshrrev_b32 v2, 8, v0\nv_mul_u32_u24 v2, {cfg.pmask2}, v2\nv_xor_b32 v3, v2, v3")
    def ids():
        k("v_lshrrev_b32 v2, 6, v0\nv_and_b32 v0, 63, v0\nv_readfirstlane_b32 s3, v2")
        k(f"s_and_b32 s{sXCD}, s2, 7\ns_sub_u32 s{sJ}, s{sJ}, 4")
        k(f"s_mul_i32 s{sR}, s{sJ}, 37\ns_lshr_b32 s{sR}, s{sR}, 8\ns_mul_i32 s{sC}, s{sR}, 7\ns_sub_u32 s{sC}, s{sJ}, s{sC}")
        k(f"s_lshr_b32 s{sRB}, s{sXCD}, 1\ns_lshl2_add_u32 s{sRB}, s{sRB}, s{sR}")
        k(f"s_and_b32 s{sXH}, s{sXCD}, 1\ns_mul_i32 s{sFC}, s{sXH}, 7\ns_add_u32 s{sFC}, s{sFC}, s{sC}")
        k(f"s_lshl1_add_u32 s{sKAP}, s{sR}, s{sC}\ns_sub_u32 s{sT}, s{sKAP}, 7\ns_cselect_b32 s{sKAP}, s{sKAP}, s{sT}")
        k(f"s_bfe_u32 s{sCS}, s3, 0x10001\ns_and_b32 s{sCOL}, s3, 3\ns_lshl_b32 s{sM}, s{sCOL}, 12\ns_add_u32 s{sM}, s{sM}, {L_GB}")
    def pp():
        if cfg.partner:
            for i in range(2): k(f"global_load_dword v99, v3, {S(pARE+2*i,2)}", "pp")
    def offs(): x_offsets(k, XD); w1_offsets(k, WD)
    if cfg.prew >= 1: ids()
    if cfg.prew >= 2: offs()
    k("s_waitcnt lgkmcnt(0)")
    stamp(k, cfg, 1, 3)
    for i in range(2): k(f"global_load_dword v{AB+i}, v1, {S(pARE+2*i,2)} {cfg.pmod[0]}", "prm")
    k(f"s_load_dword s{sO1}, {S(pLDT,2)}, s{sSP}\ns_load_dword s{sO2}, {S(pDSK,2)}, s{sSP}")
    if not cfg.pplate: pp()
    if cfg.prew < 1: ids()
    if cfg.prew == 1: offs()
    if cfg.pplate: pp()
    for i in range(2, 6): k(f"global_load_dword v{AB+i}, v1, {S(pARE+2*i,2)} {cfg.pmod[1]}", "prm2")
    if cfg.partner == 2:
        for i in range(2, 6): k(f"global_load_dword v99, v3, {S(pARE+2*i,2)}", "pp2")
    stamp(k, cfg, 2, 3)
    if cfg.prew < 1: offs()
    srd(k, sX, pX); srd(k, sW1, pW1); srd_const(k, sX, 1835008); srd_const(k, sW1, 1605632)
    k(f"s_mul_i32 s{sDO}, s{sRB}, 114688\ns_lshl_b32 s{sT}, s{sKAP}, 7\ns_add_u32 s{sDO}, s{sDO}, s{sT}")
    k(f"s_mul_i32 s{sDM}, s{sKAP}, 229376\ns_lshl_b32 s{sT}, s{sFC}, 8\ns_add_u32 s{sDM}, s{sDM}, s{sT}")
    k(f"s_xor_b32 s{sKM}, s3, 4\ns_mul_i32 s{sKM}, s{sKM}, 8704\ns_mov_b32 s47, 0x03020c0c")
    k(f"s_cmp_lt_u32 s3, 4\ns_cselect_b32 s47, 0x01000c0c, s47\ns_cselect_b32 s1, 0, 1")
    def c0issue(part="xw"):
        o = k.lab("c0")
        k(f"s_cmp_eq_u32 s1, 1\ns_cbranch_scc1 {o}")
        if "x" in part: stamp(k, cfg, 1, 7)
        for n, (g, t) in enumerate(chunk(cfg, 0, False)):
            if "xw"[n // 4] in part: k(g, "c0x" if n < 4 else t)
        if "w" in part: stamp(k, cfg, 2, 7)
        k(f"{o}:\ns_mov_b32 m0, s{sKM}" + (f"\n{ADV}" if "w" in part else ""))
    def role_wait(tag, n_s):
        o = k.lab("rw")
        k(f"s_cmp_eq_u32 s1, 0\ns_cbranch_scc1 {o}\ns_waitcnt vmcnt({n_s})\n{o}:")
        k.wait(vm=tag)
    if cfg.c0x == 1: c0issue()
    else: k(f"s_mov_b32 m0, s{sKM}")
    k(f"s_add_u32 s{sT}, s{sKM}, {L_KC}\nv_and_b32 v154, 31, v0\nv_lshrrev_b32 v155, 5, v0\nv_mul_u32_u24 v156, 272, v154\nv_lshl_add_u32 v156, v155, 4, v156\nv_add_u32 v{KR}, s{sT}, v156")
    k(f"s_mov_b32 s44, {fbits(8.0)}\ns_mov_b32 s45, {fbits(256.0)}\nv_mov_b32 v{PK}, 0x3f80\nds_write_addtid_b32 v{PK} offset:{L_KC}")
    k(f"s_mul_i32 s{sE3}, s{sCS}, {L_PCH}\ns_and_b32 s{sHH}, s3, 1\ns_mul_i32 s{sT}, s{sHH}, 3328\ns_add_u32 s{sE3}, s{sE3}, s{sT}\ns_add_u32 s{sE3}, s{sE3}, {L_PART}\nv_lshl_add_u32 v{PA}, v0, 4, s{sE3}")
    srd(k, sWS, pWS); srd_const(k, sWS, WSN)
    k(f"s_lshl1_add_u32 s{sG32}, s{sKAP}, s{sXH}")
    for i in range(4): k(f"v_mov_b32 v{ZERO+i}, 0")
    o = k.lab("g0"); j = k.lab("g1")
    k(f"s_cmp_eq_u32 s1, 1\ns_cbranch_scc1 {o}")
    setup_G(k, cfg, 0)
    k(f"s_branch {j}\n{o}:")
    if cfg.tab:
        lp = k.lab("tb"); sv = list(k.vm)
        k(f"s_getpc_b64 s[72:73]\n{lp}:\nv_lshl_add_u32 v2, s{sCOL}, {7 if cfg.stair else 6}, v0\nv_lshlrev_b32 v2, 4, v2\nv_add_u32 v2, L_tab-{lp}, v2\nv_mov_b32 v3, 0\nv_lshl_add_u64 v[80:81], v[2:3], 0, s[72:73]")
    if cfg.four:
        k(f"s_add_u32 s{sE3}, s{sKM}, {L_KC+272}\nv_mov_b32 v136, s{sKM}\nds_write_b32 v136, v{ZERO} offset:{L_KC+264}")
        writer_addresses(k)
    for part in cfg.early: S_addresses(k, part)
    k(f"{j}:")
    Lhi = struct.unpack("<f", struct.pack("<f", LOG2E))[0]; Llo = LOG2E - Lhi
    k(f"v_mov_b32 v154, {fbits(Lhi)}\nv_mov_b32 v149, {fbits(Llo)}\ns_lshl_b32 s{sT}, s{sCS}, 4")
    stamp(k, cfg, 3, 3)
    k("s_waitcnt lgkmcnt(0)"); k.lg = []
    k(f"s_lshr_b32 s{sO1}, s{sO1}, s{sT}\ns_lshl_b32 s{sO1}, s{sO1}, 16")
    k(f"v_mul_f32 v155, s{sO1}, v154\nv_fma_f32 v156, s{sO1}, v154, -v155\nv_fmac_f32 v156, s{sO1}, v149")
    k(f"v_exp_f32 v155, v155\nv_mul_f32 v156, {fbits(0.6931471805599453)}, v156\nv_fmac_f32 v155, v155, v156\nv_cvt_pk_bf16_f32 v155, v155, v155\nv_and_b32 v{DT+2}, 0xffff0000, v155")
    k(f"v_mul_f32 v{DT}, v154, v{DT+2}\nv_mul_f32 v{DT+1}, 0.15915494, v{DT+2}")
    stamp(k, cfg, 1); stamp(k, cfg, 4, 3)
    if cfg.c0x == 1: role_wait("prm", (4, 6, 10)[cfg.partner])
    else: k.wait(vm="prm")
    stamp(k, cfg, 2); stamp(k, cfg, 5, 3)
    if cfg.c0x == 2: c0issue('x' if cfg.c0wat else 'xw')
    def xt_read():
        stamp(k, cfg, 3, 7)
        k.wait(vm="c0x")
        stamp(k, cfg, 4, 7)
        k(f"ds_read_b64_tr_b16 {V(XR,2)}, v{XTA}\nds_read_b64_tr_b16 {V(XR+2,2)}, v{XTA+1} offset:512")
        k(f"ds_read_b64_tr_b16 {V(XR+4,2)}, v{XTA+1}\nds_read_b64_tr_b16 {V(XR+6,2)}, v{XTA} offset:512")
    def xt_store():
        for g in (0, 1): k(f"buffer_store_dwordx4 {V(XR+4*g,4)}, v{XTS}, {S(sWS,4)}, s{sE1+g} offen sc1", "xts")
    def tabat(w):
        if cfg.tab and cfg.tabw == w:
            k(f"s_add_u32 m0, s{sKM}, {L_KC}")
            for n in range(2 if cfg.stair else 1): k(f"global_load_lds_dwordx4 v[80:81], off offset:{1024*n}", "tab")
    k.tabat = tabat
    nv = [0]; pend = []
    def put(z, row, neg, last=False):
        p = PK + row % 4
        k(f"v_cvt_pk_bf16_f32 v{p}, v{z}, {'-' if neg else ''}v{z+1}")
        w = f"ds_write_addtid_b32 v{p} offset:{L_KC + 272*row}"
        if cfg.kdelay:
            if pend: k(pend.pop())
            pend.append(w)
            if last or row == 31: k(pend.pop())
        elif not cfg.x_nokw: k(w)
        nv[0] += 1
        if nv[0] == cfg.c0wat: c0issue("w")
        if nv[0] == cfg.kprio:
            o = k.lab("kp"); k(f"s_cmp_eq_u32 s1, 0\ns_cbranch_scc1 {o}\ns_setprio 1\n{o}:")
        if nv[0] in (35, 37, 45, 47, 49, 51): stamp(k, cfg, 3 + (35, 37, 45, 47, 49, 51).index(nv[0]), 10)
        if nv[0] in cfg.xtat:
            o = k.lab("g"); sl = list(k.lg)
            k(f"s_cmp_eq_u32 s1, 1\ns_cbranch_scc1 {o}")
            if nv[0] == cfg.xtat[0]:
                xt_read(); sl[-1] = "xt"
                if cfg.c1mid:
                    for g, t in chunk(cfg, 1, False)[:4]: k(g, t)
                    k(f"s_mov_b32 m0, s{sKM}")
            else: k.wait(lg="xt"); xt_store()
            k(f"{o}:"); k.lg = sl
        if nv[0] == cfg.touch:
            o = k.lab("g")
            k(f"s_cmp_eq_u32 s1, {0 if cfg.touchS else 1}\ns_cbranch_scc1 {o}"); sv = list(k.vm)
            if cfg.c1mid == 2:
                for g, t in chunk(cfg, 1, False)[4:]: k(g, t)
                k(f"s_mov_b32 m0, s{sKM}")
            else:
                for n in range(4): k(f"buffer_load_dword v99, v{WD+n}, {S(sW1,4)}, s{sDM} offen offset:{n*1024}", "touch")
            if cfg.touchS: assert cfg.touch >= 32; k.vm = sv
            if cfg.w2touch == 3:
                srd(k, sW2, pW2); srd_const(k, sW2, 1605632)
                k(f"s_lshl2_add_u32 s{sT}, s{sCP}, s{sCOL}\ns_mul_i32 s{sT}, s{sT}, 1792\nv_mul_u32_u24 v158, 28, v0\nbuffer_load_dword v99, v158, {S(sW2,4)}, s{sT} offen", "touch")
            k(f"{o}:")
    for i in (0, 1): k(f"v_perm_b32 v{AB+i}, v{AB+i}, v{AB+i}, s47")
    k(f"v_pk_mul_f32 {V(X1,2)}, {V(AB,2)}, {V(DT,2)}")
    k(f"v_pk_mul_f32 {V(X8,2)}, {V(X1,2)}, s[44:45] op_sel_hi:[1,0]\nv_pk_mul_f32 {V(X256,2)}, {V(X1,2)}, s[44:45] op_sel:[0,1] op_sel_hi:[1,1]")
    for x in (X8, X1, X256): k(f"v_fract_f32 v{x+1}, v{x+1}")
    for x, w in ((X8, W8), (X1, W1), (X256, W256)):
        k(f"v_exp_f32 v{x}, v{x}\nv_cos_f32 v{w}, v{x+1}\nv_sin_f32 v{w+1}, v{x+1}")
    for x, w in ((X8, W8), (X1, W1), (X256, W256)):
        k(f"v_pk_mul_f32 {V(w,2)}, {V(w,2)}, {V(x,2)} op_sel_hi:[1,0]")
    if cfg.c0wat == -1: c0issue("w")
    stamp(k, cfg, 6, 3)
    put(W8, 1, False)
    prev = W8
    for b in range(2, 32):
        cmul(k, Z0, prev, W8, TT); prev = Z0; put(Z0, b, False)
    stamp(k, cfg, 7, 3)
    for s in range(8): k(f"ds_read_b128 {V(VF+4*s,4)}, v{KR} offset:{32*s}", "vf")
    stamp(k, cfg, 1, 10)
    role_wait("prm2", (4 if cfg.partner == 2 else 0) + (2 if cfg.tab and cfg.tabat < 32 else 0))
    stamp(k, cfg, 2, 10)
    for i in range(2, 6): k(f"v_perm_b32 v{AB+i}, v{AB+i}, v{AB+i}, s47")
    cmul(k, Z1, BB, CB, TT)
    k(f"v_pk_mul_f32 {V(Z1,2)}, {V(Z1,2)}, {V(DT+2,2)} op_sel_hi:[1,0]")
    put(Z1, 0, True)
    cmul(k, W2, W1, W1, TT); cmul(k, W4, W2, W2, TT)
    prev = Z1
    for a in range(1, 21):
        if a in (8, 12, 14) or a >= 16: cmul(k, Z1, Z1, W256, TT); prev = Z1
        else: cmul(k, Z0, prev, W1 if a < 8 else (W2 if a < 12 else W4), TT); prev = Z0
        put(prev, a, True, a == 20)
    stamp(k, cfg, 8, 3)
    for s in range(8): k(f"ds_read_b128 {V(UF+4*s,4)}, v{KR} offset:{32*s}", f"uf{s}")
    kmf = lambda s: f"v_mfma_f32_32x32x16_bf16 {V(KA,16)}, {V(UF+4*s,4)}, {V(VF+4*s,4)}, {'0' if s == 0 else V(KA,16)}"
    c1 = chunk(cfg, 1)
    o = k.lab("c1"); sl = list(k.lg); sv = list(k.vm)
    k("s_cmp_eq_u32 s1, 1\ns_cbranch_scc1 L_S")
    def s_tail():
        k.lg = list(sl); k.vm = []
        for s in range(8):
            k.wait(lg=f"uf{s}")
            k(kmf(s))
            if cfg.c1s: k(*c1[s])
            elif s % 2 == 0 and cfg.c1mid < 2 and not cfg.c1g: k(*c1[4 + s//2])
            if s == 5 and (cfg.c1mid == 2 or cfg.c1g): k(ADV)
            if s == 1: srd(k, sAUX, pDBG); srd_const(k, sAUX, 256)
            if s == 3: k(f"v_mov_b32 v{VSY}, {L_SY}\nv_mov_b32 v{VONE}, 1\ns_movk_i32 s50, 128\ns_mov_b32 s51, 229376")
        stamp(k, cfg, 9, 3); stamp(k, cfg, 3); stamp(k, cfg, 7, 7)
        k.tabat("t")
        if cfg.pages and "g1" in cfg.warm: k.warm("g1")
        if cfg.four: k(PW)
        k("s_barrier")
    k.s_tail = s_tail
    cap = Cap()
    if cfg.four: writer_addresses(cap)
    setup_G(cap, cfg, 1)
    for _ in range(12): k(cap.l.pop(0))
    for s in range(8):
        k.wait(lg=f"uf{s}")
        k(kmf(s))
        if s == 7 and cfg.pages: k.page("g1")
        for _ in range(5): k(cap.l.pop(0))
    stamp(k, cfg, 9, 3)
    for _ in range(8): k(cap.l.pop(0))
    k(f"v_add_f32 v{KA}, v{KA}, v{DSK}")
    if cfg.four: k(PW)
    else:
        for r in (1, 2, 0): k(f"ds_write_b128 v{PA}, {V(KA+4*r,4)} offset:{1024*r}")
    if cfg.xtat[0] > 52: xt_read(); k.wait(lg="*"); xt_store()
    stamp(k, cfg, 5, 7)
    if not cfg.c1mid and not cfg.c1s:
        for n in range(4): k(*c1[n])
    if cfg.c1g:
        for g, t in chunk(cfg, 1, False)[4:]: k(g, t)
    stamp(k, cfg, 6, 7); stamp(k, cfg, 9, 10)
    while cap.l: k(cap.l.pop(0))
    k.wait(vm="c0")
    stamp(k, cfg, 7, 7); stamp(k, cfg, 10, 10)
    stamp(k, cfg, 3)
    stamp(k, cfg, 10, 3)
    k("s_barrier")
    stamp(k, cfg, 11, 3); stamp(k, cfg, 8, 7); stamp(k, cfg, 11, 10)

XD, WD, sXH = 150, 132, sJ
ADV = (f"s_add_u32 s{sDO}, s{sDO}, 128\ns_add_u32 s{sDM}, s{sDM}, 229376\ns_cmp_ge_u32 s{sDM}, 1605632\ns_cselect_b32 s{sDT}, 896, 0\n"
       f"s_cselect_b32 s{sDT2}, 1605632, 0\ns_sub_u32 s{sDO}, s{sDO}, s{sDT}\ns_sub_u32 s{sDM}, s{sDM}, s{sDT2}")
def chunk(cfg, c, adv=True):
    out = []
    for vd, srdr, so, slots in ((XD, sX, sDO, L_XS), (WD, sW1, sDM, L_WS)):
        o = [f"buffer_load_dwordx4 v{vd+n}, {S(srdr,4)}, s{so} offen offset:{n*1024} lds" for n in range(4)]
        o[0] = f"s_add_u32 m0, s{sM}, {slots[c % 3]}\n" + o[0]
        out += o
    if adv and c == 1: out[-1] += "\n" + ADV
    if adv and 1 < c < 6:
        out[4] += f"\ns_cmp_ge_u32 s{sDM}, {6*229376}\ns_cselect_b32 s{sDT}, -768, s50\ns_cselect_b32 s{sDT2}, {-6*229376}, s51\ns_add_u32 s{sDO}, s{sDO}, s{sDT}"
        out[7] += f"\ns_add_u32 s{sDM}, s{sDM}, s{sDT2}"
    return [(g, f"c{c}") for g in out]

def setup_G(k, cfg, part):
    if part == 0:
        k(f"v_lshrrev_b32 v{gH}, 5, v0\nv_and_b32 v15, 31, v0")
        k(f"s_lshl_b32 s{sT}, s{sHH}, 13\ns_add_u32 s{sT}, s{sT}, {L_GB+L_XS[2]}")
        if cfg.g16 == 2:
            k(f"v_bfe_u32 v13, v0, 1, 3\nv_lshrrev_b32 v50, 4, v0\nv_xor_b32 v12, v13, v50\nv_lshlrev_b32 v12, 4, v12\nv_and_b32 v11, 15, v0\nv_lshl_add_u32 v12, v11, 7, v12\nv_add_u32 v80, s{sT}, v12\nv_xor_b32 v81, 64, v80")
            k(f"v_and_b32 v54, 1, v0\nv_lshlrev_b32 v53, 13, v13\nv_lshl_add_u32 v53, v50, 4, v53\nv_lshl_add_u32 v{XTS}, v54, 6, v53")
            k(f"v_bfe_u32 v10, v0, 2, 2\nv_and_b32 v11, 3, v0\nv_lshlrev_b32 v11, 3, v11\nv_bfe_u32 v12, v0, 2, 3\ns_lshl_b32 s{sT}, s{sCS}, 2\nv_xor_b32 v12, s{sT}, v12\nv_lshl_add_u32 v12, v12, 5, v11")
            k(f"v_lshl_add_u32 v13, v50, 3, v10\nv_lshl_add_u32 v12, v13, 8, v12\nv_add_u32 v82, {L_GB+L_WS[0]}, v12")
            for i in (1, 2, 3): k(f"v_xor_b32 v{82+i}, {32*i}, v82")
        else:
            k(f"v_bfe_u32 v13, v0, 1, 3\nv_xor_b32 v12, v13, v{gH}\nv_lshlrev_b32 v12, 4, v12\nv_lshl_add_u32 v12, v15, 7, v12\nv_add_u32 v{gXA}, s{sT}, v12")
            for s in (1,2,3): k(f"v_xor_b32 v{gXA+s}, {32*s}, v{gXA}")
            k(f"v_lshrrev_b32 v50, 4, v0\nv_and_b32 v54, 1, v0\nv_lshlrev_b32 v53, 13, v13\nv_lshl_add_u32 v53, v50, 4, v53\nv_lshl_add_u32 v{XTS}, v54, 6, v53")
            k(f"v_bfe_u32 v10, v0, 2, 2\nv_and_b32 v11, 3, v0\nv_lshlrev_b32 v11, 3, v11\nv_and_b32 v12, 16, v0\nv_lshl_add_u32 v11, v12, 1, v11")
            k(f"s_and_b32 s{sT}, s3, 2\nv_xor_b32 v12, s{sT}, v10\nv_lshl_add_u32 v12, v12, 6, v11")
            k(f"v_lshl_add_u32 v13, v{gH}, 3, v10\nv_lshl_add_u32 v12, v13, 8, v12\nv_add_u32 v{gWA}, {L_GB+L_WS[0]}, v12\nv_xor_b32 v{gWA+1}, 64, v{gWA}\nv_add_u32 v{gWA+2}, {L_GB+L_WS[2]}, v12\nv_xor_b32 v{gWA+3}, 64, v{gWA+2}")
        k(f"s_lshl_b32 s{sT}, s{sXH}, 2\nv_lshl_add_u32 v52, v50, 3, v10")
        k(f"v_bfe_u32 v53, v0, 1, 1\nv_or_b32 v53, s{sT}, v53\nv_bfe_u32 v51, v52, 1, 3\nv_xor_b32 v53, v53, v51\nv_lshlrev_b32 v53, 4, v53")
        k(f"s_add_u32 s{sT}, s{sM}, {L_XS[0]}\nv_lshl_add_u32 v53, v52, 7, v53\nv_lshl_add_u32 v53, v54, 3, v53\nv_add_u32 v{XTA}, s{sT}, v53\nv_xor_b32 v{XTA+1}, 32, v{XTA}")
        k(f"s_lshl_b32 s{sT}, s{sG32}, 8\ns_add_u32 s{sT}, s{sT}, s{sRB}\ns_lshl2_add_u32 s{sT}, s{sT}, s{sCOL}\ns_lshl_b32 s{sT}, s{sT}, 7\ns_add_u32 s{sE1}, s{sT}, {XT}\ns_add_u32 s{sE2}, s{sE1}, 65536")
        k(f"s_mul_i32 s{sT}, s3, 4576\ns_cmp_ge_u32 s3, 2\ns_cselect_b32 s{sT}, {L_SY}, s{sT}\ns_sub_u32 s{sT2}, s{sE3}, 16")
        k(f"v_min_u32 v156, 29, v0\nv_lshl_add_u32 v156, v156, 4, s{sT}\nv_mov_b32 v155, s{sT2}\nv_cmp_eq_u32 vcc, 0, v{gH}\ns_nop 1\nv_cndmask_b32 v156, v155, v156, vcc\nds_write_b128 v156, {V(ZERO,4)}")
        return
    k(f"s_lshl_b32 s{sT}, s{sCS}, 4\ns_lshr_b32 s{sO2}, s{sO2}, s{sT}\ns_lshl_b32 s{sO2}, s{sO2}, 16\ns_cmp_eq_u32 s{sHH}, 0\ns_cselect_b32 s{sO2}, s{sO2}, 0")
    k(f"v_mov_b32 v154, s{sO2}\nv_cmp_eq_u32 vcc, 0, v0")
    srd(k, sW2, pW2); srd_const(k, sW2, 1605632)
    k(f"v_cndmask_b32 v{DSK}, 0, v154, vcc")
    w2_bases(k, cfg); w2_offsets(k, gW2D)
    if cfg.g16 == 2:
        for i in range(4): k(f"v_subrev_u32 v{86+i}, {L_WS[0]-L_WS[2]}, v{82+i}")
        k(f"v_lshrrev_b32 v13, 2, v0\nv_lshl_add_u32 v12, v13, 7, v11\nv_bfe_u32 v13, v0, 3, 2\nv_lshl_add_u32 v12, v13, 5, v12\nv_add_u32 v{gW2A}, s{sM}, v12")
        for i in (1, 2, 3): k(f"v_xor_b32 v{gW2A+i}, {32*i}, v{gW2A}")
    elif cfg.g16:
        k(f"v_lshl_add_u32 v13, v{gH}, 2, v10\nv_and_b32 v12, 16, v0\nv_add_u32 v13, v13, v12\nv_and_b32 v12, 24, v11\nv_lshl_add_u32 v12, v13, 7, v12\nv_bfe_u32 v13, v0, 3, 2\nv_lshl_add_u32 v12, v13, 5, v12")
        k(f"v_add_u32 v{gW2A}, s{sM}, v12")
        for i in (1, 2, 3): k(f"v_xor_b32 v{gW2A+i}, {32*i}, v{gW2A}")
    else:
        k(f"v_lshl_add_u32 v13, v{gH}, 2, v10\nv_lshl_add_u32 v12, v13, 7, v11\nv_lshrrev_b32 v13, 1, v10\nv_lshl_add_u32 v12, v13, 6, v12")
        k(f"v_add_u32 v{gW2A}, s{sM}, v12\nv_xor_b32 v{gW2A+1}, 64, v{gW2A}\nv_add_u32 v{gW2A+2}, 65536, v{gW2A}\nv_add_u32 v{gW2A+3}, 65536, v{gW2A+1}")
    if cfg.g16 == 2:
        k(f"v_mul_u32_u24 v13, 384, v{gH}\ns_mul_i32 s{sT}, s{sCS}, 768\ns_add_u32 s{sT}, s{sT}, {L_GS}\nv_lshl_add_u32 v12, v15, 3, s{sT}\nv_add_u32 v92, v12, v13")
        k(f"s_mul_i32 s{sT}, s{sHH}, 768\ns_add_u32 s{sT}, s{sT}, {L_GS+256}\nv_lshl_add_u32 v12, v15, 2, s{sT}\nv_add_u32 v91, v12, v13\nv_and_b32 v12, 15, v0\nv_lshl_add_u32 v90, v12, 2, s{sT}")
    else:
        k(f"s_mul_i32 s{sT}, s{sCS}, 768\ns_add_u32 s{sT}, s{sT}, {L_GS}\nv_lshl_add_u32 v13, v15, 3, s{sT}\nv_cmp_eq_u32 vcc, 0, v{gH}")
        k(f"s_mul_i32 s{sT}, s{sHH}, 768\ns_add_u32 s{sT}, s{sT}, {L_GS+256}\nv_cndmask_b32 v{gAGA}, 0, v13, vcc\nv_lshl_add_u32 v{gSTA}, v15, 2, s{sT}")
    k(f"v_lshlrev_b32 v{gL16}, 4, v0\nv_mov_b32 v{gSY}, {L_SY}\nv_mov_b32 v{gONE}, 1\nv_lshl_add_u32 v10, s{sCOL}, 2, v{gSY}")
    k(f"s_lshl1_add_u32 s{sE0}, s{sRB}, s{sHH}\ns_lshl1_add_u32 s{sXO}, s{sFC}, s{sCS}")
    k(f"s_lshl1_add_u32 s{sWO}, s{sE0}, s{sCS}\ns_lshl1_add_u32 s{sWO}, s{sWO}, s{sXH}\ns_lshr_b32 s{sT}, s{sC}, {1 if cfg.aspread == 4 else 3}\ns_lshl2_add_u32 s{sWO}, s{sWO}, s{sT}\ns_lshl_b32 s{sWO}, s{sWO}, 7\ns_add_u32 s{sWO}, s{sWO}, {ACNT}")
    k(f"s_lshl_b32 s{sXO}, s{sXO}, 13\ns_mul_i32 s{sT}, s{sE0}, 229376\ns_add_u32 s{sXO}, s{sXO}, s{sT}\ns_add_u32 s{sXO}, s{sXO}, {ACT}\ns_add_u32 s{sE3}, s{sXO}, 4096")

GSP = [[], [], []]
def gather_addresses(k, part):
    if part == 1:
        k(f"s_mul_i32 s48, s{sCS}, {L_PCH//132*32}\ns_add_u32 s48, s48, {L_PART//132*32}")
        k(f"v_lshl_add_u32 v50, s{sHH}, 6, v0\ns_add_u32 s54, s48, {255+384}\nv_sub_u32 v2, s54, v50\nv_add_u32 v3, 1, v2\nv_cmp_eq_u32 vcc, 127, v50")
        k(f"v_lshlrev_b32 v50, 3, v50\nv_sub_u32 v50, 1023, v50\nv_subbrev_co_u32 v4, vcc, 0, v2, vcc")
        for e in range(3): k(f"v_lshrrev_b32 v5, 5, v{2+e}\nv_add_lshl_u32 v{sGA+11+e}, v{2+e}, v5, 2")
        k(f"s_sub_u32 s54, s48, 0x4300")
        k(f"v_cvt_f32_i32 v51, v50\nv_add_u32 v50, s54, v50\ns_sub_u32 s55, s54, 1\nv_mov_b32 v52, s55\ns_add_u32 s54, s54, 128\ns_mov_b32 s55, {fbits(128.0)}")
    for n in {0: [], 1: GSP[0], 2: GSP[1], 8: GSP[2]}[part]:
        es = (0, 1) if n < 10 else (0,)
        for e in es:
            k(f"v_subrev_f32 v{2+e}, {fbits(float(n+e))}, v51\nv_max_f32 v{2+e}, s55, v{2+e}\nv_subrev_u32 v{4+e}, {n+e}, v50\nv_med3_i32 v{4+e}, v{4+e}, v52, s54")
        k(f"v_cvt_pk_bf16_f32 v2, v2, v3")
        for e in es:
            k(f"v_add_u32_sdwa v{4+e}, v{4+e}, v2 dst_sel:DWORD dst_unused:UNUSED_PAD src0_sel:DWORD src1_sel:WORD_{e}")
            k(f"v_lshrrev_b32 v3, 5, v{4+e}\nv_add_lshl_u32 v{sGA+n+e}, v{4+e}, v3, 2")
    if part == 0:
        k(f"v_and_b32 v50, 31, v0\nv_lshrrev_b32 v51, 5, v0")
        k(f"v_lshlrev_b32 v2, 3, v50\nv_lshl_add_u32 v2, v51, 2, v2\nv_sub_u32 v3, 2, v51\nv_lshlrev_b32 v3, v3, v50\nv_lshl_add_u32 v3, v51, 7, v3\nv_add_u32 v3, 256, v3")
        k(f"v_lshl_add_u32 v4, v51, 7, v50\nv_add_u32 v4, 512, v4")
        for e, d in ((0, 0), (1, 1), (2, 3)): k(f"v_lshrrev_b32 v5, 5, v{2+e}\nv_add_u32 v5, v5, v{2+e}\nv_lshl_add_u32 v{sPW+d}, v5, 2, s{sE3}")
        k(f"v_lshl_add_u32 v{sPW+2}, v51, 8, v{sPW+1}")

def writer_addresses(k):
    k(f"v_and_b32 v136, 31, v0\nv_lshrrev_b32 v137, 5, v0")
    k(f"v_lshlrev_b32 v{PA}, 3, v136\nv_lshl_add_u32 v{PA}, v137, 2, v{PA}\nv_sub_u32 v{PA+1}, 2, v137\nv_lshlrev_b32 v{PA+1}, v{PA+1}, v136\nv_lshl_add_u32 v{PA+1}, v137, 7, v{PA+1}\nv_add_u32 v{PA+1}, 256, v{PA+1}")
    k(f"v_mad_u32_u24 v{PA+3}, v137, s45, v136".replace("s45", "v138").replace("v_mad", "v_mov_b32 v138, 132\nv_mad") + f"\nv_lshl_add_u32 v{PA+3}, v{PA+3}, 2, s{sE3}\nv_add_u32 v{PA+3}, {528*4}, v{PA+3}")
    for d in (0, 1): k(f"v_lshrrev_b32 v138, 5, v{PA+d}\nv_add_u32 v138, v138, v{PA+d}\nv_lshl_add_u32 v{PA+d}, v138, 2, s{sE3}")
    k(f"v_lshl_add_u32 v{PA+2}, v137, 8, v{PA+1}")
PW = "\n".join(f"ds_write2_b32 v{PA+a}, v{KA+r}, v{KA+r+1} offset0:{o0} offset1:{o1}" for a, r, o0, o1 in
               ((3, 8, 0, 33), (3, 10, 66, 99), (1, 4, 0, 1), (2, 6, 2, 3), (0, 2, 2, 3), (0, 0, 0, 1)))

sGB = 84
STAIR = [0]
GAR = list(range(8, 22)) + [44, 45, 46, 47, 48]
vJW, vTA, vUA = 58, 59, 60
FOUR = [0]
RS = [0]
JSETS = (([7, 6, 0], [5, 4, 3, 2, 1]), ([7, 6, 1], [5, 4, 3, 2, 0]), ([7, 6, 2], [5, 4, 1, 0, 3]))
vXC, vST, vXW, vODD, vGA, vGW, vSC = 26, 27, 28, 29, 36, 37, 38
def S_addresses(k, part):
    sWV = sCOL
    if part < 3 or part == 8: gather_addresses(k, part)
    if part == 9:
        ent = lambda d, n: f"v_add_u32_sdwa v{d}, s{sT}, v{68 + n//2} dst_sel:DWORD dst_unused:UNUSED_PAD src0_sel:DWORD src1_sel:WORD_{n & 1}"
        k(f"s_mul_i32 s{sT}, s{sCS}, {L_PCH}\ns_add_u32 s{sT}, s{sT}, {L_PART-16}")
        if STAIR[0]:
            for n in range(19): k(ent(GAR[n], n))
            k(f"s_mul_i32 s{sT}, s{sCS}, 16640\ns_add_u32 s{sT}, s{sT}, {L_KC-256}\n" + "\n".join(ent(d, 19+n) for n, d in enumerate((vJW, CA, vTA))))
            k(f"s_mul_i32 s{sT}, s{sCS}, 4576\n" + ent(CBA, 22) + "\n" + ent(vUA, 23))
            return
        for n in range(14): k(ent(sGA+n, n))
        if FOUR[0]:
            k(f"s_mul_i32 s{sT}, s{sCS}, 17408\ns_add_u32 s{sT}, s{sT}, {L_KC+272-16}")
            for n in range(14): k(ent(sGB+n, n))
        k(f"s_mul_i32 s{sT}, s{sCS}, 16640\ns_add_u32 s{sT}, s{sT}, {L_KC-256}\n" + ent(CA, 14))
        k(f"s_mul_i32 s{sT}, s{sCS}, 4576\n" + ent(CBA, 15))
    if part == 3:
        k(f"s_mul_i32 s{sT}, s{sCS}, 16640\ns_add_u32 s{sT}, s{sT}, {L_KC}\ns_lshl_b32 s{sT2}, s{sHH}, 10\ns_add_u32 s{sT2}, s{sT2}, s{sT}\nv_lshl_add_u32 v{EW}, v0, 4, s{sT2}")
        if STAIR[0]: k(f"v_and_b32 v{vODD}, 1, v0")
        else: k(f"v_bfe_u32 v2, v0, 1, 2\nv_mul_u32_u24 v2, 4160, v2\nv_and_b32 v{vODD}, 1, v0\nv_lshl_add_u32 v2, v{vODD}, 4, v2\nv_add_u32 v{TZ}, s{sT}, v2")
        k(f"s_lshr_b32 s{sT}, s{sCP}, 4\ns_lshl_b32 s{sT}, s{sT}, 2\ns_add_u32 s{sT}, s{sT}, {C_XT}\ns_lshl_b32 s{sT}, s{sT}, 7\nv_and_b32 v2, 3, v0\nv_lshl_add_u32 v{vXC}, v2, 7, s{sT}")
        k(f"s_lshl_b32 s{sT}, s{sCP}, 13\ns_add_u32 s{sT}, s{sT}, {XT}\nv_lshl_add_u32 v2, s{sWV}, 6, v0\nv_and_b32 v3, 0xfc, v2\nv_add_u32 v3, v3, v2\nv_lshl_add_u32 v{vXW}, v3, 4, s{sT}\nv_lshlrev_b32 v{vST}, 4, v2\nv_add_u32 v{UW}, {L_U+480}, v{vST}")
        k(f"s_mov_b32 s{sXO}, {STATS}\ns_mov_b32 s{sWO}, {STATS+4096}")
    if part == 4:
        k(f"s_lshl_b32 s{sT}, s{sFC}, 2\ns_add_u32 s{sT}, s{sT}, s{sWV}\ns_lshl_b32 s{sT}, s{sT}, 8\ns_add_u32 s{sT}, s{sT}, {AUGW}\nv_lshl_add_u32 v3, v0, 4, s{sT}")
        k(f"s_lshl_b32 s{sT}, s{sRB}, 2\ns_add_u32 s{sT}, s{sT}, s{sWV}\ns_lshl_b32 s{sT}, s{sT}, 6\ns_add_u32 s{sT}, s{sT}, {STATS}\nv_lshl_add_u32 v4, v{vODD}, 12, s{sT}")
        k(f"v_bfe_u32 v2, v0, 1, 2\nv_lshl_add_u32 v4, v2, 4, v4\nv_cmp_gt_u32 vcc, 16, v0\ns_mul_i32 s{sE0}, s{sWV}, 384\ns_add_u32 s{sE0}, s{sE0}, {L_GS}\nv_cndmask_b32 v{vGA}, v4, v3, vcc")
        k(f"v_min_u32 v2, 23, v0\nv_lshl_add_u32 v{vGW}, v2, 4, s{sE0}")
        w2_offsets(k, sW2D)
    if part == 7:
        k(f"v_bfe_u32 v53, v0, 2, 2\nv_lshlrev_b32 v53, 7, v53\nv_and_b32 v54, 3, v0\nv_lshl_add_u32 v53, v54, 4, v53\nv_lshrrev_b32 v54, 5, v0\nv_lshl_add_u32 v53, v54, 6, v53")
        k(f"v_bfe_u32 v54, v0, 4, 1\nv_lshl_add_u32 v54, v54, 9, v53")
        k(f"s_lshl_b32 s{sO1}, s{sCP}, 1\ns_add_u32 s{sO1}, s{sO1}, s{sCS}")
        k(f"s_lshr_b32 s{sT}, s{sO1}, 6\ns_lshl_b32 s{sT}, s{sT}, 1\ns_add_u32 s{sT}, s{sT}, s{sHH}\ns_lshl_b32 s{sT}, s{sT}, 2\ns_bfe_u32 s{sT2}, s{sO1}, 0x20004")
        k(f"s_add_u32 s{sT}, s{sT}, s{sT2}\ns_add_u32 s{sT}, s{sT}, {C_ST}\ns_lshl_b32 s{sO2}, s{sT}, 7")
        k(f"s_lshl_b32 s{sO1}, s{sO1}, 12\ns_add_u32 s{sO1}, s{sO1}, {ST}")
    if part == 6:
        srd(k, sW2, pW2); srd_const(k, sW2, 1605632); srd(k, sOUT, pOUT); srd_const(k, sOUT, 1835008)
        w2_bases(k, None)
    if part == 5:
        k(f"s_mul_i32 s{sT}, s{sCS}, 16640\ns_add_u32 s{sT}, s{sT}, {L_KC+24}" + (f"\ns_lshl_b32 s{sT2}, s{sHH}, 8\ns_sub_u32 s{sT}, s{sT}, s{sT2}" if RS[0] else ""))
        k(f"v_and_b32 v2, 3, v0\nv_sub_u32 v2, 3, v2\nv_mul_u32_u24 v2, 4160, v2\nv_bfe_u32 v3, v0, 2, 2\nv_lshlrev_b32 v3, 3, v3\nv_sub_u32 v2, v2, v3")
        k(f"v_lshrrev_b32 v3, 4, v0\nv_lshl_add_u32 v2, v3, 4, v2\nv_add_u32 v{CA}, s{sT}, v2")
        k(f"s_mul_i32 s{sT}, s{sCS}, 4576\ns_add_u32 s{sT}, s{sT}, {L_U+256*RS[0]}" + (f"\ns_sub_u32 s{sT}, s{sT}, s{sT2}" if RS[0] else ""))
        k(f"v_and_b32 v2, 15, v0\nv_lshlrev_b32 v2, 5, v2\nv_lshl_add_u32 v2, v3, 4, v2\nv_add_u32 v{CBA}, s{sT}, v2")
        k(f"v_lshl_add_u32 v{vSC}, s{sWV}, 2, v{VSY}")

def gen_G(k, cfg):
    ACC, W2R, RING = 16, 80, 192
    FS = [100, 116, 132]
    W2D, W2A, L16, XA, WA, AUG, STT = gW2D, gW2A, gL16, gXA, gWA, gAUG, gSTT
    RC, RL, T, P = 240, 244, 248, 208
    assert cfg.depth <= 6
    k("s_setprio 2")
    stamp(k, cfg, 1, 2); cstamp(k, cfg, 10)
    def w2read(step, dst_step):
        b = step // 2; loc = LOC[b % 7]*16384 + (step & 1)*2048; hi = 2 if loc >= 65536 else 0; loc -= hi*32768
        out = []
        if cfg.g16:
            loc = LOC[b % 7]*16384 % 65536
            return [f"ds_read_b64_tr_b16 {V(W2R + dst_step*8 + d2*4 + rd*2, 2)}, v{(240 if hi else W2A) + 2*(step & 1) + d2} offset:{loc + rd*(2048 if cfg.g16 == 2 else 1024)}" for d2 in (0, 1) for rd in (0, 1)]
        for d2 in (0, 1):
            for rd in (0, 1):
                out.append(f"ds_read_b64_tr_b16 {V(W2R + dst_step*8 + d2*4 + rd*2, 2)}, v{W2A+hi+d2} offset:{loc + rd*1024}")
        return out
    def reads(i):
        c, s, F = i // 4, i % 4, FS[i % 3]; sl = c % 3
        wa, wo = (WA, L_WS[sl] - L_WS[0]) if sl < 2 else (WA + 2, 0)
        w = lambda ft: [f"ds_read_b64_tr_b16 {V(F+8+4*ft+2*rd,2)}, v{wa+ft} offset:{wo + s*4096 + rd*1024}" for rd in (0, 1)]
        x = [f"ds_read_b128 {V(F+4*tt,4)}, v{XA+s} offset:{L_XS[sl] - L_XS[2] + tt*4096}" for tt in (0, 1)]
        return w(0) + x + w(1)
    dq = []
    cap = Cap()
    if cfg.g16 == 2:
        F2 = [100, 132]; RC, RL, ST4 = 232, 240, 164
        def reads16(i):
            c, s, F = i // 2, i % 2, F2[i % 2]; sl = c % 3
            wa, wo = (82, L_WS[sl] - L_WS[0]) if sl < 2 else (86, 0)
            w = lambda ft: [(f"ds_read_b64_tr_b16 {V(F+16+4*ft+2*rd,2)}, v{wa+ft} offset:{wo + s*8192 + rd*1024}", f"w{i}_{ft}") for rd in (0, 1)]
            x = [(f"ds_read_b128 {V(F+4*tt,4)}, v{80+s} offset:{L_XS[sl] - L_XS[2] + tt*2048}", f"x{i}_{tt}") for tt in range(4)]
            return w(0) + x + w(1) + w(2) + w(3)
        for r in reads16(0): k(*r)
        prep = []
        for i in range(14):
            F = F2[i % 2]; rd = reads16(i+1) if i < 13 else []
            edge = i % 2 == 1; m0 = 4 if edge else 1
            for m in range(16):
                ft, tt = m >> 2, m & 3; a = ACC + 4*m
                if i == 0 and ft == 0: k.wait(lg=f"x0_{tt}")
                elif m == 0: k.wait(lg=f"x{i}_3")
                if tt == 0 and ft: k.wait(lg=f"w{i}_{ft}")
                k(f"v_mfma_f32_16x16x32_bf16 {V(a,4)}, {V(F+16+4*ft,4)}, {V(F+4*tt,4)}, {'0' if i == 0 else V(a,4)}")
                if edge and m == 3:
                    c = (i+1)//2
                    if c == 1: stamp(k, cfg, 9, 7)
                    k.wait(vm={1: "c1", cfg.xtbar: "*"}.get(c), lg="*")
                    if c == 1: stamp(k, cfg, 10, 7)
                    k("s_barrier")
                    if c < 7: stamp(k, cfg, 1 + c, 2)
                    if c == 1: stamp(k, cfg, 11, 7)
                    dq += [x for b in (2*c-10, 2*c-9) if 1 <= b < cfg.gblk for x in w2dma(ORD[b], W2D)]
                    if c == 7:
                        rd = [(f"ds_read_b32 v{ST4+4}, v91", "sb"), (f"ds_read_b64 v[94:95], v92", "sb")]
                        rd += [(f"ds_read_b32 v{ST4+t4}, v90 offset:{(t4 >> 1)*384 + (t4 & 1)*64}", "st") for t4 in range(4)]
                        m0 = 3
                if dq and 2*i >= cfg.w2from and m % 4 == 1: k(*dq.pop(0))
                if m >= m0 and rd: k(*rd.pop(0))
                if i == 13 and m == 0: k(f"s_mov_b32 s50, {fbits(-15.0)}\ns_mov_b32 s44, {fbits(2.0**-15)}")
                if i == 13 and m == 2: k(f"s_mov_b32 s45, {fbits(2.0**-30)}\ns_mov_b32 s{sT}, 0x01000100")
                if i == 13 and m == 11:
                    k.wait(lg="sb"); k(f"v_perm_b32 v96, v{ST4+4}, v{ST4+4}, s{sT}")
                if i == 13 and m == 12: k(f"v_lshrrev_b32 v97, 16, v{ST4+4}")
                if i == 13 and m == 14:
                    k.wait(lg="*"); k(f"v_and_b32 v{ST4}, 0xffff0000, v{ST4}")
                if i == 13 and m == 15: k(f"v_and_b32 v{ST4+1}, 0xffff0000, v{ST4+1}")
            assert not rd
        fill = [f"v_rcp_f32 v{RC}, v{ST4}\nv_rcp_f32 v{RC+2}, v{ST4+1}\nv_and_b32 v{ST4+2}, 0xffff0000, v{ST4+2}\nv_and_b32 v{ST4+3}, 0xffff0000, v{ST4+3}",
                f"v_rcp_f32 v{RC+4}, v{ST4+2}\nv_rcp_f32 v{RC+6}, v{ST4+3}"]
        fill += ["\n".join(f"v_mul_f32 v{RC+2*t4+1}, {fbits(-2.0**-29)}, v{RC+2*t4}\nv_mul_f32 v{RL+t4}, {fbits(LOG2E)}, v{RC+2*t4}" for t4 in p_) for p_ in ((0, 1), (2, 3))]
        for ft in range(4):
            k(f"v_mfma_f32_16x16x4_4b_bf16 {V(ACC+16*ft,16)}, v[94:95], v[96:97], {V(ACC+16*ft,16)} cbsz:2 abid:{ft}")
            k(fill[ft])
    else:
        for i in (0, 1):
            for r in reads(i): k(r, f"f{i}")
        for i in range(28):
            F = FS[i % 3]
            rd = reads(i+2) if i + 2 < 28 else []
            edge = rd and (i + 2) % 4 == 0
            gaps = [[], rd[:3], rd[3:], []] if edge else [rd[:2], rd[2:4], rd[4:], []]
            k.wait(lg=f"f{i}")
            for m in range(4):
                ft, tt = m >> 1, m & 1; a = ACC + 16*m
                k(f"v_mfma_f32_32x32x16_bf16 {V(a,16)}, {V(F+8+4*ft,4)}, {V(F+4*tt,4)}, {'0' if i == 0 else V(a,16)}")
                if edge and m == 1:
                    c = (i+2)//4
                    if c == 1: stamp(k, cfg, 9, 7)
                    k.wait(vm={1: "c1", cfg.xtbar: "*"}.get(c), lg="*")
                    if c == 1: stamp(k, cfg, 10, 7)
                    if not cfg.x_nobar: k("s_barrier")
                    stamp(k, cfg, 1 + c, 2)
                    if c == 1: stamp(k, cfg, 11, 7)
                    dq += [x for b in (2*c-10, 2*c-9) if int(cfg.sblk) <= b < cfg.gblk and not cfg.sall for x in w2dma(ORD[b], W2D)]
                if dq and i >= cfg.w2from and m in (3, 0 if (edge or i >= 26) else 1): g, t = dq.pop(0); k(g, t)
                for r in gaps[m]: k(r, f"f{i+2}")
                if m == 3:
                    for _ in range(4):
                        if cap.l: k(cap.l.pop(0))
                    assert i < 18 or not cap.l
                if i == 26 and m == 1:
                    k.wait(lg="*"); k("s_barrier")
                    if cfg.sblk and not cfg.s45: dq += w2dma(ORD[4], W2D)
                    for tt in (0, 1): k(f"ds_read_b32 v{STT+tt}, v{gSTA} offset:{384*tt}", "st")
                if i == 26 and m == 2:
                    for ft in (0, 1): k(f"ds_read_b64 {V(AUG+4+2*ft,2)}, v{gAGA} offset:{384*ft}", "ag")
                if i == 27 and m == 0: k(f"s_mov_b32 s50, {fbits(-15.0)}\ns_mov_b32 s44, {fbits(2.0**-15)}\ns_mov_b32 s45, {fbits(2.0**-30)}")
                if i == 27 and m == 1: k.wait(lg="*")
                if i == 27 and m in (1, 2):
                    tt = m - 1
                    k(f"s_mov_b32 s{sT}, 0x01000100\nv_and_b32 v11, 0xffff0000, v{STT+tt}\nv_rcp_f32 v{RC+2*tt}, v11")
                    k(f"v_perm_b32 v{AUG+2*tt}, v{STT+tt}, v{STT+tt}, s{sT}\nv_lshrrev_b32 v{AUG+2*tt+1}, 16, v{STT+tt}")
                if i == 27 and m == 3:
                    for tt in (0, 1): k(f"v_mul_f32 v{RC+2*tt+1}, {fbits(-2.0**-29) if cfg.rshare else '-2.0'}, v{RC+2*tt}\nv_mul_f32 v{RL+tt}, {fbits(LOG2E)}, v{RC+2*tt}")
        for m in range(4):
            ft, tt = m >> 1, m & 1; a = ACC + 16*m
            k(f"v_mfma_f32_32x32x8_bf16 {V(a,16)}, {V(AUG+4+2*ft,2)}, {V(AUG+2*tt,2)}, {V(a,16)}")
            if dq: g, t = dq.pop(0); k(g, t)
    assert not dq
    if cfg.pages: k.page("mish")
    stamp(k, cfg, 4); stamp(k, cfg, 8, 2); cstamp(k, cfg, 11)
    stq = []
    assert cfg.b8at % 2 == 0 and cfg.pbar2 == 0
    for g in range(8):
        if (cfg.mbar == 2 and 2*g == cfg.b8at) or (g and 2*g == cfg.pbar2): k("s_barrier")
        stamp(k, cfg, 1 + g, 6)
        m, sp = g >> 1, g & 1; ft, tt = m >> 1, m & 1; a = ACC + 16*m + 8*sp; p = P + 4*(g & 1)
        ap = [a + 2*i for i in range(4)]; rl, rs_ = RL, tt
        if cfg.g16 == 2:
            assert cfg.rshare
            ft, tt = g >> 2, g & 3; ap = [ACC + 32*ft + 16*(i >> 1) + 4*tt + 2*(i & 1) for i in range(4)]; rl, rs_ = RL + (tt & 2), tt & 1
        if cfg.rshare:
            U = 224; t = lambda i: V(T+2*i, 2); u = lambda i: V(U+2*i, 2)
            for i in range(4): k(f"v_pk_fma_f32 {t(i)}, {V(ap[i],2)}, {V(rl,2)}, s[50:51] op_sel:[0,{rs_},0] op_sel_hi:[1,{rs_},0]")
            for i in range(8): k(f"v_exp_f32 v{T+i}, v{T+i} clamp")
            for i in range(4): k(f"v_pk_add_f32 {t(i)}, {t(i)}, s[44:45] op_sel_hi:[1,0]")
            for i in range(4): k(f"v_pk_fma_f32 {t(i)}, {t(i)}, {t(i)}, s[44:45] op_sel:[0,0,1] op_sel_hi:[1,1,1]")
            k(f"v_pk_mul_f32 {u(0)}, {t(0)}, {t(1)}\nv_pk_mul_f32 {u(1)}, {t(2)}, {t(3)}\nv_pk_mul_f32 {u(2)}, {u(0)}, {u(1)}")
            k(f"v_rcp_f32 v{U+4}, v{U+4}\nv_rcp_f32 v{U+5}, v{U+5}")
            for i in (0, 1): k(f"v_pk_mul_f32 {u(i)}, {u(i)}, {V(RC+2*tt,2)} op_sel:[0,1] op_sel_hi:[1,1]") if False else None
            k(f"v_pk_mul_f32 {u(2)}, {u(2)}, {V(RC+2*tt,2)} op_sel:[0,1] op_sel_hi:[1,1]")
            k(f"v_pk_mul_f32 {u(1)}, {u(1)}, {u(2)}\nv_pk_mul_f32 {u(0)}, {u(0)}, {u(2)}")
            for i in range(4): k(f"v_pk_fma_f32 {t(i)}, {t(i)}, {u(1 - (i >> 1))}, {V(RC+2*tt,2)} op_sel_hi:[1,1,0]")
        else:
            for i in range(4): k(f"v_pk_mul_f32 {V(T+2*i,2)}, {V(a+2*i,2)}, {V(RL,2)} op_sel:[0,{tt}] op_sel_hi:[1,{tt}]")
            for i in range(8): k(f"v_exp_f32 v{T+i}, v{T+i}")
            for i in range(4): k(f"v_pk_add_f32 {V(T+2*i,2)}, {V(T+2*i,2)}, 1.0 op_sel_hi:[1,0]")
            for i in range(4): k(f"v_pk_fma_f32 {V(T+2*i,2)}, {V(T+2*i,2)}, {V(T+2*i,2)}, 1.0 op_sel_hi:[1,1,0]")
            if (cfg.mbar == 2 and 2*g + 1 == cfg.b8at) or 2*g + 1 == cfg.pbar2: k("s_barrier")
            for i in range(8): k(f"v_rcp_f32 v{T+i}, v{T+i}")
            for i in range(4): k(f"v_pk_fma_f32 {V(T+2*i,2)}, {V(T+2*i,2)}, {V(RC+2*tt,2)}, {V(RC+2*tt,2)} op_sel:[0,1,0] op_sel_hi:[1,1,0]")
        sw = 1 if cfg.rshare else 0
        for i in range(4): k(f"v_pk_mul_f32 {V(T+2*i,2)}, {V(T+2*i,2)}, {V(ap[i^sw],2)}")
        if g == 7 and cfg.mbar: k("s_barrier")
        if g == 7 and not cfg.mbar:
            lds_signal(k, 10, SY_M, gONE)
            if cfg.sblk: k(f"ds_read_b32 v11, v{gSY} offset:{SY_U}", "w2r1")
        p = RING + 4*(g if cfg.g16 == 2 else (4*ft + 2*tt + sp) if cfg.g16 else (2*(2*ft + sp) + tt))
        for i in range(4): k(f"v_cvt_pk_bf16_f32 v{p+(i^sw)}, v{T+2*i}, v{T+2*i+1}")
        stq.append(f"buffer_store_dwordx4 {V(p,4)}, v{L16}, {S(sWS,4)}, s{sXO if ft == 0 else sE3} offen offset:{tt*1024 if cfg.g16 == 2 else sp*2048 + tt*1024} sc1")
        if g in cfg.stat:
            while stq: k(stq.pop(0), "act")
    stamp(k, cfg, 5); stamp(k, cfg, 9, 6)
    k("s_setprio 3")
    k.wait(vm=f"w2_{ORD[cfg.gblk-1 if cfg.s45 else 4]}" if cfg.sblk else "w2_3")
    if cfg.g16:
        for i in range(4): k(f"v_add_u32 v{240+i}, 65536, v{W2A+i}")
    def rdblk(b):
        for s in (0, 1):
            for r in w2read(2*b+s, 2*b+s): k(r, f"w2r{b}")
    sSTO = sE0
    k(f"s_lshl_b32 s{sSTO}, s{sRB}, 1\ns_and_b32 s{sT}, s{sXCD}, 1\ns_add_u32 s{sSTO}, s{sSTO}, s{sT}")
    k(f"s_lshl_b32 s{sE1}, s{sSTO}, 2\ns_add_u32 s{sE1}, s{sE1}, s3\ns_lshl_b32 s{sE1}, s{sE1}, 9\ns_add_u32 s{sE1}, s{sE1}, {ACNT}\ns_add_u32 s48, s{pWS}, s{sE1}\ns_addc_u32 s49, s{pWS+1}, 0")
    apoll = "\n".join(f"s_load_dword s{52+i}, s[48:49], {128*i} glc" for i in range(cfg.aspread))
    asum = "".join(f"s_add_u32 s52, s52, s{52+i}\n" for i in range(1, cfg.aspread))
    blk = lambda b: [(r, f"w2r{b}") for s in (0, 1) for r in w2read(2*b+s, 2*b+s)]
    order = [4, 5, 7, 6, 8, 9, 10, 11, 12, 13]
    rq = blk(0) + blk(1) + blk(2) + blk(3)
    if cfg.sblk: order = [6, 7, 8, 9, 10, 11, 12, 13]; rq += blk(4) + blk(5)
    for n, b in enumerate(order):
        if b == 7 and not cfg.sblk: k(f"ds_read_b32 v11, v{gSY} offset:{SY_U}", "w2r1")
        if b == 6 and not cfg.mbar:
            k.wait(lg="w2r1")
            o = k.lab("wl"); sl = list(k.lg)
            k(f"v_readfirstlane_b32 s{sT}, v11\ns_cmp_ge_u32 s{sT}, 4\ns_cbranch_scc1 {o}")
            lds_spin(k, gSY, SY_U, 4, 11, sT, sSP)
            k(f"{o}:"); k.lg = sl
        lastb = 11 if cfg.fast else 12
        if b == lastb - 1: k.wait(vm="w2_6"); rq += blk(6)
        if b == lastb: k(f"ds_read_b32 v11, v{gSY}"); k.wait(lg="w2r6")
        if b >= 7: k.wait(lg=f"w2r{b-7}")
        for m, (g, t) in enumerate(w2dma(b, W2D)):
            k(g, t)
            for _ in range(4 if n == 0 else 3 if cfg.fast else 2):
                if rq: k(*rq.pop(0))
            if 4*b + m == cfg.pollpos: assert b >= lastb; k(apoll)
        if n == cfg.flagat:
            k.wait(vm="act")
            s_inc(k, pWS, f"s{sWO}", sT2)
            stamp(k, cfg, 6)
        if cfg.g16 == 1 and 2 <= n < 6:
            for e in range(4): k(f"v_permlane16_swap_b32 v{RING+8*(n-2)+e}, v{RING+8*(n-2)+4+e}")
    assert not rq
    k(f"s_and_b32 s{sT}, s3, 1\ns_mul_i32 s{sT}, s{sT}, 14\ns_add_u32 s{sT}, s{sT}, s{sCS}\ns_lshl_b32 s{sT}, s{sT}, 13\ns_mul_i32 s{sA2}, s{sSTO}, 229376\ns_add_u32 s{sA2}, s{sA2}, s{sT}\ns_add_u32 s{sA2}, s{sA2}, {ACT}")
    piece_bases(k, 16384)
    if cfg.g16 == 1: k(f"v_and_b32 v14, 47, v0\nv_lshlrev_b32 v14, 4, v14\nv_bfe_u32 v15, v0, 4, 1\nv_lshl_add_u32 v{L16}, v15, 11, v14")
    stamp(k, cfg, 7)
    if cfg.pages: k.page("g2")
    l = k.lab("ap"); o = k.lab("ar")
    k(f"s_mov_b32 s{sSP}, 0\n{l}:")
    k.wait(lg="*")
    k(f"{asum}s_add_u32 s{sSP}, s{sSP}, 1\ns_cmp_ge_u32 s52, 7\ns_cbranch_scc1 {o}\ns_cmp_gt_u32 s{sSP}, {SPIN}\ns_cbranch_scc1 {o}")
    if cfg.actsleep: k(f"s_sleep {cfg.actsleep}")
    k(f"{apoll}\ns_branch {l}\n{o}:")
    stamp(k, cfg, 8)
    k(f"s_setprio {cfg.g2prio}")
    if cfg.g16:
        D = 2*cfg.depth; n0 = 14 - cfg.tn
        assert n0 >= 8 + cfg.rl16
        seq = [(s, tt) for s in range(n0) for tt in range(4)] + [(s, tt) for tt in range(4) for s in range(n0, 14)]
        cur = [None]
        def actload(j):
            s, tt = seq[j]; out = []
            if s >= n0:
                if tt == 0: out.append(piece(s//2, 16384, (s & 1)*4096, 52 + s - n0))
                so = 52 + s - n0
            else:
                if cur[0] != s: cur[0] = s; out.append(piece(s//2, 16384, (s & 1)*4096, sT))
                so = sT
            out.append(f"buffer_load_dwordx4 {V(RING + (j % D)*4, 4)}, v{L16}, {S(sWS,4)}, s{so} offen offset:{tt*1024 if cfg.g16 == 2 else (tt >> 1)*1024 + (tt & 1)*256} sc1")
            return "\n".join(out)
        stamp(k, cfg, 1, 5)
        o = k.lab("own")
        k(f"s_xor_b32 s{sT}, s3, s{sXCD}\ns_bitcmp0_b32 s{sT}, 0\ns_cbranch_scc1 {o}")
        for j in range(D):
            if j == 8: k(f"{o}:")
            k(actload(j), f"a{j}")
        stamp(k, cfg, 2, 5)
        DA = [1, 2, 3, 4]
        k(f"v_and_b32 v14, 15, v0\nv_lshrrev_b32 v15, 4, v0\nv_xor_b32 v15, v15, v14\nv_lshlrev_b32 v15, 4, v15\nv_lshl_add_u32 v15, v14, 8, v15\nv_add_u32 v{DA[0]}, s{sM}, v15")
        for i in range(1, 4): k(f"v_xor_b32 v{DA[i]}, {64*i}, v{DA[0]}")
        dq2 = []; nd = 0
        for j, (s, tt) in enumerate(seq):
            k.wait(vm=f"a{j}", lg=f"r{s}" if s >= 7 else None)
            if j % 8 == 0: stamp(k, cfg, 3 + j//8, 5)
            rs = s - cfg.rl16
            rd = (w2read(2*(rs+6), 2*(rs-1)) + w2read(2*(rs+6)+1, 2*(rs-1)+1))[2*tt:2*tt+2] if 1 <= rs <= 7 else []
            for d4 in range(4):
                a = ACC + 16*tt + 4*d4
                k(f"v_mfma_f32_16x16x32_bf16 {V(a,4)}, {V(W2R + (s % 7)*16 + 4*d4,4)}, {V(RING + (j % D)*4,4)}, {'0' if s == 0 else V(a,4)}")
                if d4 == 0 and j >= 1 and j - 1 + D < 56: k(actload(j - 1 + D), f"a{j-1+D}")
                if d4 >= 2 and rd: k(rd[d4-2], f"r{rs+6}")
                if d4 == 3 and dq2:
                    k(dq2.pop(0)); nd += 1
                    if nd == 8: lds_signal(k, gSY, SY_GS, gONE)
            if s == 13: dq2 += [f"ds_write_b128 v{DA[d4]}, {V(ACC + 16*tt + 4*d4,4)} offset:{tt*16384}" for d4 in range(4)]
        stamp(k, cfg, 9); stamp(k, cfg, 10, 5)
        assert nd >= 8
        for x in dq2: k(x)
    else:
        D = 2*cfg.depth; n0 = 28 - cfg.tailn
        seq = [(s, tt) for s in range(n0) for tt in (0, 1)] + [(s, tt) for tt in (0, 1) for s in range(n0, 28)]
        cur = [None]
        def actload(j):
            s, tt = seq[j]; out = []
            if cur[0] != s//2:
                cur[0] = s//2
                out.append(piece(s//4, 16384, (s & 2)*2048, sT) + (f"\ns_and_b32 s{sT}, s{sT}, 0xfffff" if cfg.x_acthit else ""))
            out.append(f"buffer_load_dwordx4 {V(RING + (j % D)*4, 4)}, v{L16}, {S(sW2 if cfg.x_acthit else sWS,4)}, s{sT} offen offset:{(s & 1)*2048 + tt*1024} {cfg.actmod}")
            return "\n".join(out)
        stamp(k, cfg, 1, 5)
        o = k.lab("own")
        if cfg.own: k(f"s_xor_b32 s{sT}, s3, s{sXCD}\ns_bitcmp0_b32 s{sT}, 0\ns_cbranch_scc1 {o}")
        k(f"s_setprio {cfg.nprio}")
        for j in range(D):
            if j == 8: k(f"{o}:")
            k(actload(j), f"a{j}")
        stamp(k, cfg, 2, 5)
        DA = [1, 2, 3, 4, 10, 11, 14, 15]
        if cfg.pdump:
            k(f"v_and_b32 v14, 7, v0\nv_lshrrev_b32 v15, 5, v0\nv_xor_b32 v15, v15, v14\nv_lshlrev_b32 v15, 4, v15\nv_and_b32 v14, 31, v0\nv_lshl_add_u32 v15, v14, 7, v15\nv_add_u32 v{DA[0]}, s{sM}, v15")
            for i in range(1, 4): k(f"v_xor_b32 v{DA[i]}, {32*i}, v{DA[0]}")
            def dump(tt, d2s):
                out = []
                for d2 in d2s:
                    r = [ACC + 16*(2*d2+tt) + 8*jp for jp in (0, 1)]
                    out += ["\n".join(f"v_cvt_pk_bf16_f32 v{x+i}, v{x+2*i}, v{x+2*i+1}" for i in range(4)) for x in r]
                    out += [f"v_permlane32_swap_b32 v{x}, v{x+2}\nv_permlane32_swap_b32 v{x+1}, v{x+3}\nds_write_b128 v{DA[2*d2+jp]}, {V(x,4)} offset:{tt*16384}" for jp, x in enumerate(r)]
                return out
        else:
            k(f"v_and_b32 v14, 15, v0\nv_lshrrev_b32 v15, 5, v0\nv_xor_b32 v15, v15, v14\nv_lshlrev_b32 v15, 4, v15\nv_lshl_add_u32 v15, v14, 8, v15")
            k(f"v_bfe_u32 v14, v0, 4, 1\nv_lshl_add_u32 v15, v14, 14, v15\nv_add_u32 v{DA[0]}, s{sM}, v15")
            for i in range(1, 8): k(f"v_xor_b32 v{DA[i]}, {32*i}, v{DA[0]}")
            dump = lambda tt, d2s: [f"ds_write_b128 v{DA[4*d2+jj]}, {V(ACC+16*(2*d2+tt)+4*jj,4)} offset:{tt*32768}" for d2 in d2s for jj in range(4)]
        jlast0 = max(j for j in range(56) if seq[j][1] == 0)
        assert 14 + cfg.rdlag < n0 and cfg.tailq <= min(D, cfg.tailn)
        q0 = 56 - cfg.tailq
        ops = [(j, d2) for j in range(q0) for d2 in (0, 1)] + [(j, d2) for d2 in (0, 1) for j in range(q0, 56)]
        d0 = dump(0, (0, 1)); d1 = dump(1, (0, 1)); i0 = ops.index((jlast0, 1)); i1 = ops.index((55, 0)); sig = [False]
        for i, (j, d2) in enumerate(ops):
            s, tt = seq[j]
            if d2 == 0:
                k.wait(vm=f"a{j}", lg=f"r{s}" if s >= 14 else None)
                if j % 8 == 0: stamp(k, cfg, 3 + j//8, 5)
            w = W2R + (s % 14)*8; x = RING + (j % D)*4; a = ACC + 16*(2*d2 + tt)
            rs = s - cfg.rdlag
            k(f"v_mfma_f32_32x32x16_bf16 {V(a,16)}, {V(w+4*d2,4)}, {V(x,4)}, {'0' if s == 0 else V(a,16)}")
            if d2 == 0 and j >= 1 and j - 1 + D < 56: k(actload(j - 1 + D), f"a{j-1+D}")
            if d2 == 1 and 1 <= rs <= 14: k("\n".join(w2read(rs + 13, rs - 1)[2*tt:2*tt+2]), f"r{rs+13}")
            if i >= i0 + 2 and d0 and (cfg.pdump or (i - i0) % 2 == 0 or len(d0) >= len(ops) - i): k(d0.pop(0))
            elif not d0 and not sig[0]: lds_signal(k, gSY, SY_GS, gONE); sig[0] = True
            elif cfg.tailq and sig[0] and i >= i1 + 2 and len(d1) > 4 and (cfg.pdump or (i - i1) % 2 == 0): k(d1.pop(0))
        while d0: k(d0.pop(0))
        if not sig[0]: lds_signal(k, gSY, SY_GS, gONE)
        stamp(k, cfg, 9); stamp(k, cfg, 10, 5)
        for x in d1: k(x)
    k.wait(lg="*")
    stamp(k, cfg, 11, 5)
    k("s_barrier")
    stamp(k, cfg, 10)
    prof_dump(k, cfg, role="G")
    k("s_endpgm")

class Pacer:
    def __init__(self, k, pace): self.k, self.pace, self.q, self.n = k, pace, [], 0
    def __call__(self, text, tag=None):
        lines = text.split("\n")
        for i, ln in enumerate(lines):
            self.k(ln, tag)
            if i + 1 < len(lines) and lines[i+1].startswith(("s_cselect", "s_addc", "s_cbranch")): continue
            self.n += 11 if "ds_write_b128" in ln else 5 if "ds_write" in ln else 3 if "ds_read2" in ln else 2 if ("ds_read" in ln or "v_rcp" in ln) else 1
            self.tot = getattr(self, "tot", 0) + 1
            if self.q and self.n >= self.pace: self.pop()
    def pop(self):
        g, t = self.q.pop(0); self.k(g, t); self.n = 0
    def flush(self):
        while self.q: self.pop()

def gen_S(k, cfg, vm0):
    k.reset()
    if cfg.pages: k(".p2align 12")
    k("L_S:")
    k.s_tail()
    sWV, GA = sCOL, sGA
    p = Pacer(k, cfg.pace)
    def bar(c, lg="*"):
        k.info = getattr(k, "info", []) + [(c, getattr(p, "tot", 0), len(p.q), p.n)]
        p.flush()
        if c == 1: stamp(k, cfg, 9, 7)
        k.wait(vm=f"c{c}", lg=lg)
        if c == 1: stamp(k, cfg, 10, 7)
        stamp(k, cfg, 1+c, 2)
        if not cfg.x_nobar: k("s_barrier")
    G0, XV, CP = 160, 192, 208
    if cfg.four: CP = 216
    gq = list(range(13, -1, -1)); done = []; summed = []
    def gnext(n):
        for i in gq[:n]: p(f"ds_read2st64_b32 {V(G0+4*i,2)}, v{GA+i} offset1:13\nds_read2st64_b32 {V(G0+4*i+2,2)}, v{sGB+i} offset1:34")
        done.extend(gq[:n]); del gq[:n]
    def snext(n):
        todo = [i for i in done if i not in summed][:n]; summed.extend(todo)
        for i in todo: p(f"v_add_f32 v{G0+4*i}, v{G0+4*i}, v{G0+4*i+1}\nv_add_f32 v{G0+4*i+2}, v{G0+4*i+2}, v{G0+4*i+3}\nv_add_f32 v{G0+4*i}, v{G0+4*i}, v{G0+4*i+2}")
    A_, B_, C_, M_ = G0+44, G0+48, G0+52, G0+45
    XS = ([B_]*3 + [M_] + [A_]*6 + [C_], [G0+4*i for i in range(11)])
    def cvts(ps, sg):
        for jj in range(4): p(f"v_cvt_pk_bf16_f32 v{CP+16*ps+4*sg+jj}, v{XS[ps][sg+2*jj]}, v{XS[ps][sg+2*jj+1]}")
    SV, XW, CN, MM, RR, XF, GS = 100, 108, 116, 120, 128, 136, 144
    def copies(x, off, sgs):
        for sg in sgs:
            c = CP + 4*sg
            for jj in range(4): p(f"v_cvt_pk_bf16_f32 v{c+jj}, v{x[sg+2*jj]}, v{x[sg+2*jj+1]}")
            p(f"ds_write_b128 v{EW}, {V(c,4)} offset:{sg*4160 + off}")
    k(f"s_setprio {cfg.lprio}")
    k(CLRL, "clr")
    k.tabat("0")
    w2t = f"s_lshl2_add_u32 s{sT}, s{sCP}, s{sCOL}\ns_mul_i32 s{sT}, s{sT}, 1792\nv_mul_u32_u24 v62, 28, v0\nbuffer_load_dword v62, v62, {S(sW2,4)}, s{sT} offen"
    if cfg.w2touch == 1: assert 6 in cfg.early; k(w2t)
    held = []
    late = lambda part: S_addresses(p, part) if part not in cfg.early else None
    def ring(c):
        if cfg.paces: p.pace = cfg.paces[c-2]
        p.tot = 0
        ch = chunk(cfg, c); p.q = held + ch[:cfg.r2cut]; held[:] = ch[cfg.r2cut:]; p.pop()
    stl = f"buffer_load_dwordx4 {V(SV,4)}, v{vST}, {S(sWS,4)}, s{sXO} offen sc1\nbuffer_load_dwordx4 {V(SV+4,4)}, v{vST}, {S(sWS,4)}, s{sWO} offen sc1"
    xcl = f"buffer_load_dword v{CN}, v{vXC}, {S(sWS,4)}, 0 offen sc1"
    gsl = f"s_mov_b32 m0, s{sE0}\ns_mov_b64 exec, 0xffffff\nbuffer_load_dwordx4 v{vGA}, {S(sWS,4)}, 0 offen sc1 lds\ns_mov_b64 exec, -1"
    pw = [f"ds_write2_b32 v{sPW+a}, v{KA+r}, v{KA+r+1} offset0:{o0} offset1:{o1}" for a, r, o0, o1 in
          ((0, 0, 0, 1), (0, 2, 2, 3), (1, 4, 0, 1), (2, 6, 2, 3), (3, 8, 0, 33), (3, 10, 66, 99))]
    ring(2)
    p(f"v_lshrrev_b32 v50, 1, v0\nv_and_b32 v52, 1, v0\nv_lshl_add_u32 v52, s{sWV}, 1, v52\nv_bfe_u32 v51, v0, 2, 3\nv_xor_b32 v51, v51, v52\nv_lshlrev_b32 v51, 4, v51\nv_lshl_add_u32 v51, v50, 7, v51")
    p(f"s_and_b32 s{sT}, s{sXCD}, 1\ns_lshl_b32 s{sT}, s{sT}, 13\ns_add_u32 s{sT}, s{sT}, {L_GB+L_XS[0]}\nv_add_u32 v51, s{sT}, v51")
    p(f"ds_read_b128 v[248:251], v51\nds_read_b128 v[252:255], v51 offset:4096")
    late(6)
    sch = lambda i: [late(x) for x in cfg.sched[i]]
    if cfg.tab: sch(0)
    else: late(3)
    bar(1)
    def xtflag():
        v_poll(k, CLRL, 49, 4, sSP, 2, first=False, tag="clr")
        o = k.lab("xf")
        k(f"s_lshl_b32 s{sT}, s{sG32}, 2\ns_add_u32 s{sT}, s{sT}, s{sR}\ns_add_u32 s{sT}, s{sT}, {C_XT}\ns_lshl_b32 s{sT}, s{sT}, 7\ns_cmp_lg_u32 s{sCOL}, 0\ns_cbranch_scc1 {o}")
        s_inc(k, pWS, f"s{sT}", sE2)
        k(f"{o}:")
    ring(3)
    if cfg.xtbar == 1: p.pop(); xtflag(); p.pop(); p.pop()
    if cfg.tab: sch(1)
    else: late(1)
    if not cfg.four:
        for r in range(3): p(f"ds_read_b128 {V(G0+4*r,4)}, v{PA} offset:{1024*r}", "raw")
    bar(2, None)
    if cfg.xtbar == 2: xtflag()
    ring(4)
    if cfg.four: gnext(cfg.gpl[0])
    if cfg.tab:
        assert "tab" not in k.vm
        if cfg.stair:
            p(f"v_lshlrev_b32 v2, 4, v0\nv_lshl_add_u32 v3, s{sHH}, 10, v2")
            for n in range(3): p(f"ds_read_b128 {V(68+4*n,4)}, v3 offset:{L_KC + 8704*n}")
            for n in range(2): p(f"ds_read_b128 {V(240+4*n,4)}, v2 offset:{L_KC + 8704*3 + 1024*n}")
        else:
            p(f"s_mul_i32 s{sT}, s{sHH}, 8704\nv_lshl_add_u32 v3, v0, 4, s{sT}")
            for n in range(2): p(f"ds_read_b128 {V(68+4*n,4)}, v3 offset:{L_KC + 17408*n}")
        sch(2)
    else: late(2); late(5)
    if cfg.nearly:
        assert cfg.tab and cfg.r2cut == 8
        bar(3, None)
        k(xcl, "xc")
        ring(5)
        late(7)
        k.wait(lg="*")
        for i in range(12): p(f"v_add_f32 v{KA+i}, v{KA+i}, v{G0+i}")
        bar(4, None)
        stamp(k, cfg, 4)
        c6 = chunk(cfg, 6)
        for x in stl.split("\n"): k(x, "st")
        v_poll(k, xcl, CN, 4, sSP, 2, first=False, tag="xc")
        p.q = [(f"buffer_load_dwordx4 {V(XW+4*e,4)}, v{vXW}, {S(sWS,4)}, 0 offen offset:{64*e} sc1", "xw") for e in (0, 1)] + c6[:cfg.c6cut]; p.pop()
        late(0)
        bar(5, None)
        p.q = c6[cfg.c6cut:]; p.flush()
        k(gsl, "gs")
        k.wait(vm="st")
        k(f"s_mov_b32 s{sSP}, 0")
        l = k.lab("xp"); o = k.lab("xpo")
        k(f"{l}:")
        k(f"v_min_u32 v{CN}, v{SV}, v{SV+1}\ns_add_u32 s{sSP}, s{sSP}, 1")
        for i in range(1, 4): k(f"v_min3_u32 v{CN}, v{CN}, v{SV+2*i}, v{SV+2*i+1}")
        k(f"v_cmp_eq_u32 vcc, 0, v{CN}\ns_cmp_gt_u32 s{sSP}, {SPIN}\ns_cbranch_scc1 {o}\ns_cbranch_vccz {o}")
        sv = list(k.vm); k(stl); k("s_waitcnt vmcnt(0)"); k.vm = sv
        k(f"s_branch {l}")
        k(f"{o}:")
        nq = [f"v_and_b32 v{RR+i}, 0xffff0000, v{SV+i}" for i in range(8)]
        for i in range(8): nq += [f"v_rcp_f32 v{RR+i}, v{RR+i}", f"v_lshlrev_b32 v{MM+i}, 16, v{SV+i}"]
        nq += [f"v_mul_f32 v{MM+i}, v{MM+i}, v{RR+i}" for i in range(8)]
        for ch in (0, 1):
            for i in range(4): nq += [f"v_lshlrev_b32 v{XF+2*i}, 16, v{XW+4*ch+i}", f"v_and_b32 v{XF+2*i+1}, 0xffff0000, v{XW+4*ch+i}"]
            nq += [f"v_fma_f32 v{XF+i}, v{XF+i}, v{RR+i}, -v{MM+i}" for i in range(8)]
            nq += [f"v_cvt_pk_bf16_f32 v{XW+4*ch+i}, v{XF+2*i}, v{XF+2*i+1}" for i in range(4)]
        p.q = w2dma(ORD[0], sW2D); p.pop()
        for x in nq[:cfg.ncut[0]]: p(x)
        bar(6, None)
        stamp(k, cfg, 5)
        for x in nq[cfg.ncut[0]:cfg.ncut[1]]: k(x)
        k.wait(vm="gs")
        k(f"s_mov_b32 s{sSP}, 0")
        l = k.lab("gp"); o = k.lab("gpo")
        k(f"{l}:")
        k(f"ds_read_b128 {V(GS,4)}, v{vGW}\ns_add_u32 s{sSP}, s{sSP}, 1")
        if cfg.pages:
            o = k.lab("wm")
            for n, name in enumerate(("cvA", "cvB", "mish")):
                if name not in cfg.warm or (name == 'cvB' and cfg.split == 'r'): continue
                o2 = k.lab("wn")
                k(f"s_cmp_lg_u32 s{sWV}, {n}\ns_cbranch_scc1 {o2}"); k.warm(name); k(f"{o2}:")
        k.wait(lg="*")
        k(f"v_min_u32 v{CN}, v{GS+1}, v{GS+3}")
        k(f"v_cmp_eq_u32 vcc, 0, v{CN}\ns_cmp_gt_u32 s{sSP}, {SPIN}\ns_cbranch_scc1 {o}\ns_cbranch_vccz {o}")
        sv = list(k.vm); k(gsl); k("s_waitcnt vmcnt(0)"); k.vm = sv
        k(f"s_branch {l}")
        k(f"{o}:")
        stamp(k, cfg, 8, 2)
        k("s_barrier")
        stamp(k, cfg, 1, 6)
        for x in nq[cfg.ncut[1]:]: k(x)
        k("s_setprio 3")
    else:
        bar(3, None)
        ring(5)
        if cfg.four: gnext(cfg.gpl[1])
        if cfg.tab: k.wait(lg="*")
        if cfg.tab: sch(3)
        else: late(8)
        bar(4, None)
        stamp(k, cfg, 4)
        if cfg.r2cut == 8: k(xcl, "xc")
        ring(6)
        for _ in range(8 - cfg.r2cut - 1): p.pop()
        if cfg.r2cut < 8: k(xcl, "xc")
        k.wait(lg="*")
        if cfg.four:
            ready = list(done); gnext(14); allg = list(done); done[:] = ready; snext(cfg.spl[0]); done[:] = allg
        else:
            for i in range(12): p(f"v_add_f32 v{KA+i}, v{KA+i}, v{G0+i}")
            if cfg.tab: sch(4)
            else: late(4)
        if cfg.gsearly >= 2: assert cfg.r2cut == 8; p.flush(); k(gsl, "gs")
        if cfg.gsearly == 3: k(stl, "st")
        bar(5, None)
        p.q = list(held); p.flush()
        if cfg.gsearly == 1: k(gsl, "gs")
        if cfg.gsearly == 4: k(stl, "st")
        v_poll(k, xcl, CN, 4, sSP, 2, first=False, tag="xc")
        if cfg.gsearly < 3: k(stl, "st")
        for e in (0, 1): k(f"buffer_load_dwordx4 {V(XW+4*e,4)}, v{vXW}, {S(sWS,4)}, 0 offen offset:{64*e} sc1", "xw")
        if not cfg.gsearly: k(gsl, "gs")
        if cfg.sall:
            n1, n2 = cfg.sall
            assert n1 <= 8 and n2 % 4 == 0 and n2 <= 16
            wq = [x for b in range(6) for x in w2dma(ORD[b], sW2D)]
            p.q = wq[:n1]
            bar(6, None)
            p.q = wq[n1:n2]; p.pop()
            late(7); p.flush()
        else:
            p.q = w2dma(ORD[0], sW2D); p.pop()
            if cfg.four: k.wait(lg="*"); snext(cfg.spl[1])
            if not cfg.tab: late(7)
            bar(6, None)
        stamp(k, cfg, 5)
        if cfg.pages:
            o = k.lab("wm")
            for n, name in enumerate(("cvA", "cvB", "mish")):
                if name not in cfg.warm or (name == 'cvB' and cfg.split == 'r'): continue
                o2 = k.lab("wn")
                k(f"s_cmp_lg_u32 s{sWV}, {n}\ns_cbranch_scc1 {o2}"); k.warm(name); k(f"{o2}:")
        if cfg.four:
            k(f"v_cmp_eq_u32 vcc, 1, v{vODD}"); snext(14)
            k(f"v_cndmask_b32 v{M_}, v{B_}, v{A_}, vcc")
            for n in range(cfg.cpre): cvts(n >> 2, n & 3)
        if cfg.gsearly:
            k.wait(vm="gs")
            k(f"s_mov_b32 s{sSP}, 0")
            l = k.lab("gp"); o = k.lab("gpo")
            k(f"{l}:")
            k(f"ds_read_b128 {V(GS,4)}, v{vGW}\ns_add_u32 s{sSP}, s{sSP}, 1")
            k.wait(lg="*")
            k(f"v_min_u32 v{CN}, v{GS+1}, v{GS+3}")
            k(f"v_cmp_eq_u32 vcc, 0, v{CN}\ns_cmp_gt_u32 s{sSP}, {SPIN}\ns_cbranch_scc1 {o}\ns_cbranch_vccz {o}")
            sv = list(k.vm); k(gsl); k("s_waitcnt vmcnt(0)"); k.vm = sv
            k(f"s_branch {l}")
            k(f"{o}:")
            def b7():
                stamp(k, cfg, 8, 2)
                k(f"s_setprio {cfg.nprio0}\ns_barrier")
                stamp(k, cfg, 1, 6)
                k.wait(vm="xw")
            if cfg.gsearly < 3: b7()
            else: k.wait(vm='st')
            k(f"s_mov_b32 s{sSP}, 0")
            l = k.lab("xp"); o = k.lab("xpo")
            k(f"{l}:")
            k(f"v_min_u32 v{CN}, v{SV}, v{SV+1}\ns_add_u32 s{sSP}, s{sSP}, 1")
            for i in range(1, 4): k(f"v_min3_u32 v{CN}, v{CN}, v{SV+2*i}, v{SV+2*i+1}")
            k(f"v_cmp_eq_u32 vcc, 0, v{CN}\ns_cmp_gt_u32 s{sSP}, {SPIN}\ns_cbranch_scc1 {o}\ns_cbranch_vccz {o}")
            sv = list(k.vm); k(stl); k("s_waitcnt vmcnt(0)"); k.vm = sv
            k(f"s_branch {l}")
            k(f"{o}:")
            for i in range(8): k(f"v_and_b32 v{RR+i}, 0xffff0000, v{SV+i}")
            if cfg.gsearly >= 3:
                assert cfg.rpre == 8
                for i in range(8): k(f"v_rcp_f32 v{RR+i}, v{RR+i}\nv_lshlrev_b32 v{MM+i}, 16, v{SV+i}")
                for i in range(8): k(f"v_mul_f32 v{MM+i}, v{MM+i}, v{RR+i}")
                b7()
        else:
            k.wait(vm="gs")
            k(f"s_mov_b32 s{sSP}, 0")
            l = k.lab("xp"); o = k.lab("xpo")
            k(f"{l}:")
            k(f"ds_read_b128 {V(GS,4)}, v{vGW}")
            k(f"v_min_u32 v{CN}, v{SV}, v{SV+1}\ns_add_u32 s{sSP}, s{sSP}, 1")
            for i in range(1, 4): k(f"v_min3_u32 v{CN}, v{CN}, v{SV+2*i}, v{SV+2*i+1}")
            for i in range(8): k(f"v_and_b32 v{RR+i}, 0xffff0000, v{SV+i}")
            k.wait(lg="*")
            k(f"v_min3_u32 v{CN}, v{CN}, v{GS+1}, v{GS+3}")
            k(f"v_cmp_eq_u32 vcc, 0, v{CN}\ns_cmp_gt_u32 s{sSP}, {SPIN}\ns_cbranch_scc1 {o}\ns_cbranch_vccz {o}")
            sv = list(k.vm); k(stl); k(gsl); k("s_waitcnt vmcnt(0)"); k.vm = sv
            k(f"s_branch {l}")
            k(f"{o}:")
            for i in range(cfg.rpre): k(f"v_rcp_f32 v{RR+i}, v{RR+i}\nv_lshlrev_b32 v{MM+i}, 16, v{SV+i}")
            stamp(k, cfg, 8, 2)
            k("s_barrier")
            stamp(k, cfg, 1, 6)
        if cfg.sall: p.q = wq[n2:]; p.pace = cfg.pace2; p.pop()
        cap = Cap()
        if cfg.rpre < 8:
            for i in range(cfg.rpre, 8): cap(f"v_rcp_f32 v{RR+i}, v{RR+i}\nv_lshlrev_b32 v{MM+i}, 16, v{SV+i}")
        unp = lambda ch, x: [cap(f"v_lshlrev_b32 v{x+2*i}, 16, v{XW+4*ch+i}\nv_and_b32 v{x+2*i+1}, 0xffff0000, v{XW+4*ch+i}") for i in range(4)]
        if cfg.npk:
            unp(0, XF); unp(1, SV)
            for i in range(4 if cfg.gsearly < 3 else 0): cap(f"v_pk_mul_f32 {V(MM+2*i,2)}, {V(MM+2*i,2)}, {V(RR+2*i,2)}")
            for ch, x in ((0, XF), (1, SV)):
                for i in range(4): cap(f"v_pk_fma_f32 {V(x+2*i,2)}, {V(x+2*i,2)}, {V(RR+2*i,2)}, {V(MM+2*i,2)} neg_lo:[0,0,1] neg_hi:[0,0,1]")
                for i in range(4): cap(f"v_cvt_pk_bf16_f32 v{XW+4*ch+i}, v{x+2*i}, v{x+2*i+1}")
        else:
            for i in range(8 if cfg.gsearly < 3 else 0): cap(f"v_mul_f32 v{MM+i}, v{MM+i}, v{RR+i}")
            for ch in (0, 1):
                unp(ch, XF)
                for i in range(8): cap(f"v_fma_f32 v{XF+i}, v{XF+i}, v{RR+i}, -v{MM+i}")
                for i in range(4): cap(f"v_cvt_pk_bf16_f32 v{XW+4*ch+i}, v{XF+2*i}, v{XF+2*i+1}")
        cap.l.insert(cfg.npat, "s_setprio 3")
        for x in cap.l: p(x)
    stamp(k, cfg, 9, 2); stamp(k, cfg, 2, 6)
    k(f"v_lshl_add_u32 v55, s{sCS}, 2, v{VSY}")
    if cfg.four:
        p.q = [x for b in (4, 5) for x in w2dma(ORD[b], sW2D)]; p.pace = 4; p.pop()
        for n in range(cfg.cpre, 8): cvts(n >> 2, n & 3)
        p.flush()
        stamp(k, cfg, 3, 6)
        for ch in (0, 1): k(f"ds_write_b128 v{UW}, {V(XW+4*ch,4)} offset:{4576*ch}")
        k(f"ds_write_b128 v{TZ}, {V(ZERO,4)} offset:4096")
        for ps in (0, 1):
            for sg in range(4): k(f"ds_write_b128 v{EW}, {V(CP+16*ps+4*sg,4)} offset:{sg*4160 + ps*2048}")
    else:
        p.flush()
        if cfg.sblk and not cfg.sall:
            for b in range(cfg.gblk if cfg.s45 else 5, 6):
                for g, t in w2dma(ORD[b], sW2D): k(g, t)
        stamp(k, cfg, 3, 6)
        k("\n".join(pw))
        if not cfg.pbar2: lds_signal(k, 55, SY_PAIR, VONE)
        stamp(k, cfg, 4, 6)
        stamp(k, cfg, 5, 6)
        if cfg.pbar2: assert cfg.split == 'J'; k.wait(lg="*"); k("s_barrier")
        else: lds_spin(k, 55, SY_PAIR, 2, 50, sT, sSP)
        stamp(k, cfg, 6, 6)
        if cfg.stair:
            for i in range(19): k(f"ds_read2st64_b32 {V(G0+2*i,2)}, v{GAR[i]} offset1:13", "ga" if i > 10 else "gb")
            for ch in (0, 1): k(f"ds_write_b128 v{UW}, {V(XW+4*ch,4)} offset:{4576*ch}")
            k.wait(lg="gb"); stamp(k, cfg, 7, 6)
            for i in range(11): k(f"v_add_f32 v{G0+2*i}, v{G0+2*i}, v{G0+2*i+1}")
            for sg in range(4):
                for jj in range(4): k(f"v_cvt_pk_bf16_f32 v{CP+4*sg+jj}, v{G0+2*(sg+2*jj)}, v{G0+2*(sg+2*jj+1)}")
                k(f"ds_write_b128 v{EW}, {V(CP+4*sg,4)} offset:{sg*4160 + 2048}")
            k.wait(lg="ga"); stamp(k, cfg, 8, 6)
            for i in range(11, 19): k(f"v_add_f32 v{G0+2*i}, v{G0+2*i}, v{G0+2*i+1}")
            for jj in range(4): k(f"v_cvt_pk_bf16_f32 v{CP+16+jj}, v{G0+22+4*jj}, v{G0+24+4*jj}")
            k(f"ds_write_b128 v{vJW}, {V(CP+16,4)}")
        else:
            for i in list(range(11, 14)) + list(range(11)): k(f"ds_read2st64_b32 {V(G0+2*i,2)}, v{GA+i} offset1:13", "ga" if i > 10 else "gb")
            for ch in (0, 1): k(f"ds_write_b128 v{UW}, {V(XW+4*ch,4)} offset:{4576*ch}")
            k(f"ds_write_b128 v{TZ}, {V(ZERO,4)} offset:4096")
            for ps, x in enumerate(([XV+12]*3 + [XV+14] + [XV+11]*6 + [XV+13], [XV+i for i in range(11)])):
                k.wait(lg="gb" if ps else "ga")
                stamp(k, cfg, 7 + ps, 6)
                for i in (range(11) if ps else range(11, 14)): k(f"v_add_f32 v{XV+i}, v{G0+2*i}, v{G0+2*i+1}")
                if ps == 0: k(f"v_cmp_eq_u32 vcc, 1, v{vODD}\nv_cndmask_b32 v{XV+14}, v{XV+12}, v{XV+11}, vcc")
                for sg in range(4):
                    for jj in range(4): k(f"v_cvt_pk_bf16_f32 v{CP+16*ps+4*sg+jj}, v{x[sg+2*jj]}, v{x[sg+2*jj+1]}")
                    k(f"ds_write_b128 v{EW}, {V(CP+16*ps+4*sg,4)} offset:{sg*4160 + ps*2048}")
    stamp(k, cfg, 9, 6)
    if cfg.mbar:
        k.wait(vm="*", lg="*"); k("s_barrier")
    else:
        k.wait(vm="*")
        lds_signal(k, VSY, SY_U, VONE)
        lds_spin(k, VSY, SY_U, 4, 50, sT, sSP, cfg.usleep)
    stamp(k, cfg, 10, 6)
    Y, FS, YS = 68, [100, 164], 228
    def a_read(r, F, a): return [f"ds_read_b64 {V(F+4*a+2*e,2)}, v{CA} offset:{(7-a)*512 + (7-r)*64 + 8*e}" for e in (0, 1)]
    def b_read(r, F, c): return [f"ds_read_b128 {V(F+32+4*c,4)}, v{CBA} offset:{c*512 + (7-r)*64 - 256*RS[0]}"]
    def first(ms):
        seen = []
        for J, a in ms:
            for t in (("a", a), ("b", J - a)):
                if t not in seen: seen.append(t)
        rd = [(x, f"z{t[0]}{t[1]}") for t in seen for x in (a_read if t[0] == "a" else b_read)(0, FS[0], t[1])]
        for x in rd[:cfg.cvpre]: k(*x)
        stamp(k, cfg, 10, 2)
        if cfg.mbar == 2: k("s_barrier")
        if not cfg.mbar: lds_spin(k, vSC, SY_M, 1, 50, sT, sSP, cfg.usleep)
        k(f"s_setprio {cfg.cvprio}")
        stamp(k, cfg, 6); stamp(k, cfg, 11, 2); stamp(k, cfg, 11, 6)
        return rd[cfg.cvpre:]
    if cfg.split == 'r':
        ms = sorted(((a + c, a) for c in range(8) for a in range(8 - c)), key=lambda x: (max(x[1], x[0]-x[1]), x[0]))
        if cfg.pages: k.page("cvA")
        AM = 4 if cfg.stair else 8
        if cfg.stair:
            ms = [x for x in ms if x[1] < 4]; ext = [(J, 4) for J in range(4, 8)]
            UWN, TF, BD, BP, BOX = FS[0] + 16, FS[1] + 16, 8, 40, 240
            rest = first(ms + ext)
            for r in range(3):
                F = FS[r & 1]; N = FS[(r+1) & 1]; nxt = list(rest); rest = []
                for i in range(8): nxt += [(x, None) for x in (a_read(r+1, N, i) if i < 4 else []) + b_read(r+1, N, i)]
                if r == 1: nxt += [(f"ds_read_b128 {V(UWN+4*n,4)}, v{vUA} offset:{448 + 512*(n >> 1) - 16*(n & 1)}", None) for n in range(4)]
                ops = [(V(Y+4*J,4), V(F+4*a,4), V(F+32+4*(J-a),4), J, a) for J, a in ms]
                if r == 2:
                    ops = [(V(BD+4*n,4), V(UWN+4*n,4), V(BOX+4*(n & 1),4), None, None) for n in range(4)] + ops
                    nxt += [(f"ds_read_b128 {V(TF+4*d,4)}, v{vTA} offset:{64*(3-d)}", None) for d in range(4)]
                    nxt += [(f"v_cvt_pk_bf16_f32 v{BP+2*n}, v{BD+4*n}, v{BD+4*n+1}\nv_cvt_pk_bf16_f32 v{BP+2*n+1}, v{BD+4*n+2}, v{BD+4*n+3}", None) for n in range(4)]
                if r > 0: k.wait(lg="*")
                n = 0; seen = set()
                for i, (d, a_, b_, J, a) in enumerate(ops):
                    if r == 0:
                        for t in (f"za{a}", f"zb{J-a}"):
                            assert t not in [y[1] for y in nxt[n:]]
                            k.wait(lg=t)
                    k(f"v_mfma_f32_16x16x32_bf16 {d}, {a_}, {b_}, {'0' if (J is None or (r == 0 and J not in seen)) else d}")
                    seen.add(J)
                    while n < len(nxt) and n*min(len(nxt), len(ops) - 3) < (i+1)*len(nxt): k(*nxt[n]); n += 1
                if r == 0:
                    o = k.lab("ex")
                    k.wait(lg="za4")
                    k(f"s_cmp_eq_u32 s{sHH}, 1\ns_cbranch_scc1 {o}")
                    for J, a in ext: k(f"v_mfma_f32_16x16x32_bf16 {V(Y+4*J,4)}, {V(F+4*a,4)}, {V(F+32+4*(J-a),4)}, {V(Y+4*J,4)}")
                    k(f"{o}:")
        else:
            rest = first(ms)
            for r in range(3 if cfg.xover else 4):
                F = FS[r & 1]; N = FS[(r+1) & 1]; nxt = list(rest); rest = []
                if r < 3:
                    for i in range(8): nxt += [(x, None) for x in a_read(r+1, N, i) + b_read(r+1, N, i)]
                if r > 0: k.wait(lg="*")
                if r == 3:
                    lds_signal(k, VSY, SY_RD, VONE)
                    nxt = f"s_lshl_b32 s{sT}, s{sWV}, 12\ns_add_u32 s{sT}, s{sT}, 16384\nv_lshl_add_u32 v51, v0, 4, s{sT}\nv_xor_b32 v52, 0x1000, v51\ns_lshl_b32 s{sT}, s{sHH}, 11\ns_add_u32 s{sO1}, s{sO1}, s{sT}".split("\n"); nxt = [(x, None) for x in nxt]
                n = 0
                seen = set()
                for i, (J, a) in enumerate(ms):
                    if r == 0:
                        for t in (f"za{a}", f"zb{J-a}"):
                            assert t not in [y[1] for y in nxt[n:]]
                            k.wait(lg=t)
                    k(f"v_mfma_f32_16x16x32_bf16 {V(Y+4*J,4)}, {V(F+4*a,4)}, {V(F+32+4*(J-a),4)}, {'0' if (r == 0 and J not in seen) else V(Y+4*J,4)}")
                    seen.add(J)
                    while n < len(nxt) and n*min(len(nxt), 33) < (i+1)*len(nxt): k(*nxt[n]); n += 1
                    if r == 3 and i == 28: k(f"ds_read_b32 v50, v{VSY} offset:{SY_RD}")
        if cfg.xover:
            F = FS[1]; EX = FS[0]; sets = ([0, 3, 4, 7], [1, 2, 5, 6]); pairs = ([(3, 4, 54), (0, 7, 56)], [(1, 2, 54), (5, 6, 54)])
            k.wait(lg="*")
            lds_signal(k, VSY, SY_RD, VONE)
            l1 = k.lab("h1"); l2 = k.lab("hj")
            k(f"s_cmp_eq_u32 s{sHH}, 1\ns_cbranch_scc1 {l1}")
            def check(addr, off):
                o = k.lab("ck"); want = 2 if (cfg.four and off == SY_PAIR) else 4
                k.wait(lg="*")
                k(f"v_readfirstlane_b32 s{sT}, v50\ns_cmp_ge_u32 s{sT}, {want}\ns_cbranch_scc1 {o}")
                lds_spin(k, addr, off, want, 50, sT, sSP)
                k(f"{o}:")
            for hh in (0, 1):
                keep, send = sets[hh], sets[1-hh]
                ms3 = [(J, a) for J in send + keep[::-1] for a in list(range(min(J+1, AM))) + ([("f", c) for c in (0, 1) if J - 4 - 2*(1-hh) - c >= 0] if cfg.stair else [])]
                xo = cfg.xo
                if cfg.stair:
                    last = [max(i for i, x in enumerate(ms3) if x[0] == J) for J in send]; w = []
                    for n in range(4): w.append(max(last[n] + 6, cfg.xs[1] + 1, (w[-1] + 3) if w else 0))
                    xo = (cfg.xs[0], cfg.xs[1], w, len(ms3) - 4)
                fill = f"s_lshl_b32 s{sT}, s{sWV}, 12\ns_add_u32 s{sT}, s{sT}, 16384\nv_lshl_add_u32 v51, v0, 4, s{sT}\nv_xor_b32 v52, 0x1000, v51".split("\n")
                if hh == 0: fill += "v_bfe_u32 v56, v0, 4, 1\nv_mul_u32_u24 v56, 3584, v56\nv_add_u32 v56, v56, v53".split("\n")
                for i, (J, a) in enumerate(ms3):
                    if isinstance(a, tuple): k(f"v_mfma_f32_16x16x32_bf16 {V(Y+4*J,4)}, {V(BP+4*a[1],4)}, {V(TF+4*(J - 4 - 2*(1-hh) - a[1]),4)}, {V(Y+4*J,4)}")
                    else: k(f"v_mfma_f32_16x16x32_bf16 {V(Y+4*J,4)}, {V(F+4*a,4)}, {V(F+32+4*(J-a),4)}, {V(Y+4*J,4)}")
                    if i == xo[0]: k(f"ds_read_b32 v50, v{VSY} offset:{SY_RD}")
                    elif fill: k(fill.pop(0))
                    if i == xo[1]: check(VSY, SY_RD)
                    if i in xo[2]:
                        n = xo[2].index(i)
                        assert send[n] not in [x[0] for x in ms3[i:]] and i < xo[3]
                        k(f"ds_write_b128 v51, {V(Y+4*send[n],4)} offset:{1024*n}")
                        if n == 3: lds_signal(k, 55, SY_PAIR, VONE)
                    if i == xo[3]: k(f"ds_read_b32 v50, v55 offset:{SY_PAIR}")
                stamp(k, cfg, 7); stamp(k, cfg, 1, 5); stamp(k, cfg, 1, 9)
                k("s_setprio 3")
                check(55, SY_PAIR)
                stamp(k, cfg, 4, 9)
                for lo, hi, _ in pairs[hh]:
                    for J in (lo, hi): k(f"ds_read_b128 {V(EX+4*J,4)}, v52 offset:{1024*keep.index(J)}", f"e{J}")
                for g, (lo, hi, va) in enumerate(pairs[hh]):
                    for q, J in enumerate((lo, hi)):
                        k.wait(lg=f"e{J}")
                        for e in range(4): k(f"v_add_f32 v{Y+4*J+e}, v{Y+4*J+e}, v{EX+4*J+e}")
                        for e in (0, 1): k(f"v_cvt_pk_bf16_f32 v{YS+4*g+2*q+e}, v{Y+4*J+2*e}, v{Y+4*J+2*e+1}")
                    for e in (0, 1): k(f"v_permlane16_swap_b32 v{YS+4*g+e}, v{YS+4*g+2+e}")
                    stamp(k, cfg, 5 + g, 9)
                    k(f"buffer_store_dwordx4 {V(YS+4*g,4)}, v{va}, {S(sWS,4)}, s{sO1} offen offset:{512*lo} sc1", "sts")
                if hh == 0: k(f"s_branch {l2}\n{l1}:"); k.reset()
            k(f"{l2}:")
        else:
            stamp(k, cfg, 7); stamp(k, cfg, 1, 5)
            stamp(k, cfg, 1, 9)
            k("s_setprio 3")
            o = k.lab("rd")
            k.wait(lg="*")
            k(f"v_readfirstlane_b32 s{sT}, v50\ns_cmp_ge_u32 s{sT}, 4\ns_cbranch_scc1 {o}")
            lds_spin(k, VSY, SY_RD, 4, 50, sT, sSP)
            k(f"{o}:")
            stamp(k, cfg, 2, 9)
            l1 = k.lab("h1"); l2 = k.lab("hj"); EX = 100
            k(f"s_cmp_eq_u32 s{sHH}, 1\ns_cbranch_scc1 {l1}\ns_nop 3")
            for i in range(4): k(f"ds_write_b128 v51, {V(Y+16+4*i,4)} offset:{1024*i}")
            lds_signal(k, 55, SY_PAIR, VONE)
            k(f"s_branch {l2}")
            k(f"{l1}:")
            for i in range(4): k(f"ds_write_b128 v51, {V(Y+4*i,4)} offset:{1024*i}")
            lds_signal(k, 55, SY_PAIR, VONE)
            for i in range(16): k(f"v_mov_b32 v{Y+i}, v{Y+16+i}")
            k(f"{l2}:")
            stamp(k, cfg, 3, 9)
            lds_spin(k, 55, SY_PAIR, 4, 50, sT, sSP)
            stamp(k, cfg, 4, 9)
            for i in range(4): k(f"ds_read_b128 {V(EX+4*i,4)}, v52 offset:{1024*i}", f"e{i}")
            for g in (0, 1):
                for i in (2*g, 2*g+1):
                    k.wait(lg=f"e{i}")
                    for e in range(4): k(f"v_add_f32 v{Y+4*i+e}, v{Y+4*i+e}, v{EX+4*i+e}")
                    for e in (0, 1): k(f"v_cvt_pk_bf16_f32 v{YS+2*i+e}, v{Y+4*i+2*e}, v{Y+4*i+2*e+1}")
                for e in (0, 1): k(f"v_permlane16_swap_b32 v{YS+4*g+e}, v{YS+4*g+2+e}")
                stamp(k, cfg, 5 + g, 9)
                k(f"buffer_store_dwordx4 {V(YS+4*g,4)}, v54, {S(sWS,4)}, s{sO1} offen offset:{1024*g} sc1", "sts")
        stamp(k, cfg, 7, 9)
        if cfg.pages: k.page("epi")
    else:
        lB = "L_cvB"; lJ = "L_epi"
        k(f"s_cmp_eq_u32 s{sHH}, 1\ns_cbranch_scc1 {lB}")
        if cfg.pages: k.page("cvA")
        for Js in JSETS[cfg.jbal]:
            top = max(Js)
            ms = [(J, a) for a in range(top+1) for J in Js if a <= J]
            rest = first(ms)
            for r in range(8):
                F = FS[r & 1]; N = FS[(r+1) & 1]; nxt = list(rest); rest = []
                if r < 7:
                    for i in range(top+1): nxt += [(x, None) for x in a_read(r+1, N, i) + b_read(r+1, N, top-i)]
                if r > 0: k.wait(lg="*")
                if r == 7: lds_signal(k, VSY, SY_RD, VONE)
                n = 0; slots = len(ms) - cfg.cvfree
                for i, (J, a) in enumerate(ms):
                    if r == 0:
                        for t in (f"za{a}", f"zb{J-a}"):
                            assert t not in [y[1] for y in nxt[n:]]
                            k.wait(lg=t)
                    k(f"v_mfma_f32_16x16x32_bf16 {V(Y+4*J,4)}, {V(F+4*a,4)}, {V(F+32+4*(J-a),4)}, {'0' if (r == 0 and a == 0) else V(Y+4*J,4)}")
                    while n < len(nxt) and n*slots < (i+1)*len(nxt): k(*nxt[n]); n += 1
                assert n == len(nxt)
            stamp(k, cfg, 7); stamp(k, cfg, 1, 5)
            groups = [(Js[-1], Js[-1])] + [(Js[i+1], Js[i]) for i in range(len(Js)-3, -1, -2)]
            for g, (lo, hi) in enumerate(groups):
                y = YS + 4*g
                for q, J in enumerate((lo, hi)):
                    for e in (0, 1): k(f"v_cvt_pk_bf16_f32 v{y+2*q+e}, v{Y+4*J+2*e}, v{Y+4*J+2*e+1}")
                for e in (0, 1): k(f"v_permlane16_swap_b32 v{y+e}, v{y+2+e}")
                k(f"buffer_store_dwordx4 {V(y,4)}, v{53 if lo == hi else 54}, {S(sWS,4)}, s{sO1} offen offset:{512*lo} sc1", "sts")
            if top == 7:
                k(f"s_branch {lJ}")
                if cfg.pages: k.page("cvB", False)
                else: k(f"{lB}:")
                k.reset()
        if cfg.pages: k.page("epi")
        else: k(f"{lJ}:")
    if cfg.x_nos2:
        k("s_barrier"); prof_dump(k, cfg, True); k("s_endpgm"); return
    XE, OA, RA, SA, XU, SU = 248, 64, 68, 70, 120, 136
    k(f"s_lshl1_add_u32 s{sRB}, s{sRB}, s{sXH}\ns_mov_b32 s{sC}, s{sKAP}")
    k(f"v_lshrrev_b32 v50, 1, v0\nv_mul_u32_u24 v52, 896, v50\nv_lshl_add_u32 v{OA}, v{vODD}, 4, v52")
    k(f"s_mul_i32 s{sG32}, s{sRB}, {64*896}\ns_lshl2_add_u32 s{sT}, s{sC}, s{sWV}\ns_lshl_b32 s{sT}, s{sT}, 5\ns_add_u32 s{sG32}, s{sG32}, s{sT}\ns_add_u32 s{sKAP}, s{sG32}, {32*896}")
    k(f"v_lshl_add_u32 v51, s{sWV}, 1, v{vODD}\nv_and_b32 v55, 15, v50\nv_lshlrev_b32 v52, 1, v51\nv_xor_b32 v52, v52, v55\nv_lshlrev_b32 v52, 4, v52\nv_lshl_add_u32 v52, v55, 8, v52")
    k(f"v_lshrrev_b32 v55, 5, v0\nv_lshl_add_u32 v52, v55, 14, v52\nv_add_u32 v{RA}, {L_GB}, v52\nv_xor_b32 v{RA+1}, 16, v{RA}")
    if cfg.pdump: k(f"v_and_b32 v52, 7, v50\nv_xor_b32 v52, v52, v51\nv_lshlrev_b32 v52, 4, v52\nv_lshl_add_u32 v52, v50, 7, v52\nv_add_u32 v{RA}, {L_GB}, v52")
    k(f"v_bfe_u32 v52, v0, 4, 1\nv_lshl_add_u32 v52, v52, 2, v55\nv_xor_b32 v52, v52, v51\nv_lshlrev_b32 v52, 4, v52\nv_lshl_add_u32 v52, v51, 10, v52\nv_and_b32 v55, 14, v0\nv_add_u32 v{SA}, v55, v52\nv_xor_b32 v{SA+1}, 32, v{SA}")
    assert L_U == 0
    k(f"v_lshrrev_b32 v50, 3, v0\nv_and_b32 v51, 7, v0\ns_lshl_b32 s{sT}, s{sWV}, 1\nv_xor_b32 v56, s{sT}, v51\nv_lshlrev_b32 v56, 4, v56\nv_lshl_add_u32 v56, v50, 12, v56\nv_xor_b32 v57, 16, v56\nv_add_u32 v57, {32768-1024}, v57")
    stamp(k, cfg, 8, 9)
    k.wait(vm="*")
    stamp(k, cfg, 9, 9)
    s_inc(k, pWS, f"s{sO2}", sE3)
    stamp(k, cfg, 8); stamp(k, cfg, 2, 5)
    for i in range(8): k(f"v_lshlrev_b32 v{XU+2*i}, 16, v{XE+i}\nv_and_b32 v{XU+2*i+1}, 0xffff0000, v{XE+i}")
    k(f"s_lshr_b32 s{sT2}, s{sRB}, 2\ns_lshr_b32 s{sT2}, {(0x66 if cfg.xover else 0xf0) if RS[0] else sum(1 << J for J in JSETS[cfg.jbal][1])}, s{sT2}\ns_and_b32 s{sT2}, s{sT2}, 1")
    k(f"s_lshl_b32 s{sT}, s{sC}, 1\ns_add_u32 s{sT}, s{sT}, s{sT2}\ns_lshl_b32 s{sT}, s{sT}, 2\ns_add_u32 s{sT}, s{sT}, s{sWV}\ns_add_u32 s{sT}, s{sT}, {C_ST}\ns_lshl_b32 s{sO1}, s{sT}, 7")
    k(f"s_lshl_b32 s{sT}, s{sC}, 2\ns_add_u32 s{sT}, s{sT}, s{sWV}\ns_lshl_b32 s{sT}, s{sT}, 16\ns_lshl_b32 s{sT2}, s{sRB}, 7\ns_add_u32 s{sT}, s{sT}, s{sT2}\ns_add_u32 s{sO2}, s{sT}, {ST}")
    for i in range(16): k(f"v_mov_b32 v{SU+i}, 0")
    k(f"s_lshl_b32 m0, s{sWV}, 11")
    if not RS[0]: lds_spin(k, VSY, SY_RD, 4, 50, sT, sSP, 1)
    s_poll(k, pWS, [f"s{sO1}"], 16, sT, sSP, cfg.stpoll[1])
    stamp(k, cfg, 3, 5)
    k(f"buffer_load_dwordx4 v56, {S(sWS,4)}, s{sO2} offen sc1 lds\nbuffer_load_dwordx4 v57, {S(sWS,4)}, s{sO2} offen offset:1024 sc1 lds")
    k.wait(vm="*")
    stamp(k, cfg, 9); stamp(k, cfg, 4, 5)
    for ps in (0, 1):
        for e in range(8): k(f"ds_read_u16_d16_hi v{SU+8*ps+e}, v{SA+ps} offset:{128*e}")
    k(f"s_mov_b32 s{sO1}, {fbits(-LOG2E)}\ns_movk_i32 s50, 0x3f80\ns_mov_b32 s51, 0x3f800000")
    PR, T = 160, 224
    for ps in (0, 1):
        b = PR + 32*ps; plain = ps == 0 and cfg.p0plain
        if ps == 0:
            stamp(k, cfg, 5, 5); lds_spin(k, VSY, SY_GS, 4, 50, sT, sSP, cfg.finsleep); stamp(k, cfg, 6, 5)
        else:
            stamp(k, cfg, 7, 5); k("s_barrier"); stamp(k, cfg, 10); stamp(k, cfg, 8, 5)
        if cfg.pdump:
            for w in range(4): k(f"ds_read_b128 {V(b+8+4*w,4)}, v{RA} offset:{16384*ps + 4096*w}", f"p{w}")
            for w in range(4):
                k.wait(lg=f"p{w}")
                for i in range(4):
                    x = b + 8 + 4*w + i
                    if w == 0: k(f"v_lshlrev_b32 v{b+2*i}, 16, v{x}\nv_and_b32 v{b+2*i+1}, 0xffff0000, v{x}")
                    elif plain: k(f"v_lshlrev_b32 v{T}, 16, v{x}\nv_and_b32 v{x}, 0xffff0000, v{x}\nv_add_f32 v{b+2*i}, v{b+2*i}, v{T}\nv_add_f32 v{b+2*i+1}, v{b+2*i+1}, v{x}")
                    else: k(f"v_dot2c_f32_bf16 v{b+2*i}, s50, v{x}\nv_dot2c_f32_bf16 v{b+2*i+1}, s51, v{x}")
        else:
            for w in range(4):
                for e in (0, 1): k(f"ds_read_b128 {V(b+8*w+4*e,4)}, v{RA+e} offset:{32768*ps + 4096*w}", f"p{w}")
            def add(x, y):
                if ps == 0 and cfg.p0plain:
                    for i in range(8): k(f"v_add_f32 v{x+i}, v{x+i}, v{y+i}")
                else:
                    for i in range(4): k(f"v_pk_add_f32 {V(x+2*i,2)}, {V(x+2*i,2)}, {V(y+2*i,2)}")
            k.wait(lg="p1")
            add(b, b+8)
            k.wait(lg="p3")
            add(b+16, b+24); add(b, b+16)
        if plain and cfg.p0plain == 2:
            for i in range(8): k(f"v_mul_f32 v{T+i}, s{sO1}, v{b+i}")
            for i in range(8): k(f"v_exp_f32 v{T+i}, v{T+i}")
            for i in range(8): k(f"v_mul_f32 v{b+i}, v{b+i}, v{SU+i}")
            for i in range(8): k(f"v_add_f32 v{T+i}, 1.0, v{T+i}")
            for i in range(8): k(f"v_rcp_f32 v{T+i}, v{T+i}")
            for i in range(8): k(f"v_fma_f32 v{b+i}, v{b+i}, v{T+i}, v{XU+i}")
        else:
            for i in range(4): k(f"v_pk_mul_f32 {V(T+2*i,2)}, {V(b+2*i,2)}, {S(sO1,2)} op_sel_hi:[1,0]")
            for i in range(8): k(f"v_exp_f32 v{T+i}, v{T+i}")
            for i in range(4): k(f"v_pk_mul_f32 {V(b+2*i,2)}, {V(b+2*i,2)}, {V(SU+8*ps+2*i,2)}")
            for i in range(4): k(f"v_pk_add_f32 {V(T+2*i,2)}, {V(T+2*i,2)}, 1.0 op_sel_hi:[1,0]")
            for i in range(8): k(f"v_rcp_f32 v{T+i}, v{T+i}")
            for i in range(4): k(f"v_pk_fma_f32 {V(b+2*i,2)}, {V(b+2*i,2)}, {V(T+2*i,2)}, {V(XU+8*ps+2*i,2)}")
        for i in range(4): k(f"v_cvt_pk_bf16_f32 v{b+8+i}, v{b+2*i}, v{b+2*i+1}")
        k(f"buffer_store_dwordx4 {V(b+8,4)}, v{OA}, {S(sOUT,4)}, s{sG32 if ps == 0 else sKAP} offen {cfg.outmod}")
    if cfg.prof or cfg.probe: k("s_waitcnt vmcnt(0)")
    stamp(k, cfg, 11); stamp(k, cfg, 9, 5)
    prof_dump(k, cfg, True, role="S")
    k("s_endpgm")

def gen_helper(k, cfg):
    k.reset()
    k("L_helper:")
    sHB, sIH, sST = 62, 63, 64
    k(f"v_lshrrev_b32 v1, 6, v0\nv_and_b32 v0, 63, v0\nv_readfirstlane_b32 s3, v1\ns_and_b32 s{sXCD}, s2, 7")
    k(f"s_lshl_b32 s{sHB}, s{sXCD}, 2\ns_add_u32 s{sHB}, s{sHB}, s{sJ}")
    k(f"s_lshr_b32 s{sIH}, s{sXCD}, 1\ns_lshl_b32 s{sIH}, s{sIH}, 2\ns_add_u32 s{sIH}, s{sIH}, s{sJ}\ns_and_b32 s{sST}, s{sXCD}, 1\ns_mul_i32 s{sST}, s{sST}, 14\ns_add_u32 s{sST}, s{sST}, s{sIH}")
    k(f"s_lshl_b32 s{sT}, s{sHB}, 3\ns_add_u32 s{sT}, s{sT}, s3\ns_mul_i32 s65, s{sT}, {8*896}")
    k(f"v_lshrrev_b32 v1, 3, v0\nv_and_b32 v2, 7, v0\nv_mul_u32_u24 v3, 896, v1\nv_lshl_add_u32 v3, v2, 4, v3")
    k(f"v_lshlrev_b32 v4, 4, v0\nv_and_b32 v5, 1, v0\nv_lshlrev_b32 v5, 12, v5\nv_lshrrev_b32 v6, 1, v0\nv_lshl_add_u32 v5, v6, 4, v5")
    k(f"v_mul_u32_u24 v15, 3584, v1\nv_lshl_add_u32 v15, v2, 4, v15")
    k(f"s_lshl_b32 s67, s{sHB}, 7\ns_add_u32 s67, s67, {STATS}")
    k(f"s_lshl_b32 s69, s{sST}, 9\ns_add_u32 s69, s69, {AUGW}\ns_mul_i32 s70, s3, {56*3584}\ns_lshl_b32 s74, s{sST}, 7\ns_add_u32 s70, s70, s74")
    srd_const(k, sAUX, 256); srd_const(k, sWS, WSN); srd_const(k, sX, 1835008); srd_const(k, sW1, 1605632); srd_const(k, sW2, 1605632); srd_const(k, sOUT, 3584)
    k("s_waitcnt lgkmcnt(0)")
    srd(k, sW1, pW1); srd(k, sX, pX); srd(k, sWS, pWS); srd(k, sAUX, pDBG); srd(k, sW2, pW2); srd(k, sOUT, pB1)
    stamp(k, cfg, 5)
    if cfg.tlb:
        k(f"s_lshl_b32 s72, s3, 21\ns_load_dword s30, {S(pWS,2)}, s72\ns_load_dword s31, {S(pW2,2)}, 0\ns_load_dword s32, {S(pOUT,2)}, 0\ns_load_dword s33, {S(pW1,2)}, 0\ns_load_dword s34, {S(pDBG,2)}, 128")
    l0 = k.lab("h0")
    k(f"s_cmp_lt_u32 s{sIH}, 14\ns_cbranch_scc1 {l0}")
    for i in range(4): k(f"v_mov_b32 v{8+i}, 0")
    k(f"s_and_b32 s66, s{sXCD}, 1\ns_lshl_b32 s66, s66, 1\ns_and_b32 s{sT}, s{sJ}, 1\ns_add_u32 s66, s66, s{sT}\ns_lshl_b32 s66, s66, 3\ns_add_u32 s66, s66, s3\ns_lshl_b32 s66, s66, 12")
    for n in range(4): k(f"buffer_store_dwordx4 v[8:11], v4, {S(sWS,4)}, s66 offen offset:{1024*n} sc1")
    k(f"s_mov_b32 s69, {WSN}\ns_mov_b32 s70, {WSN}\ns_waitcnt vmcnt(0)\ns_barrier\ns_cmp_lg_u32 s3, 7\ns_cbranch_scc1 {l0}")
    s_inc(k, pDBG, "0", 75)
    k(f"{l0}:")
    stamp(k, cfg, 4)
    if cfg.hdelay: k(f"s_sleep {cfg.hdelay}")
    k.reset()
    if cfg.hxfirst:
        for i in range(7): k(f"buffer_load_dwordx4 {V(16+4*i,4)}, v3, {S(sX,4)}, s65 offen offset:{128*i}", f"x{i}")
    if cfg.hsplit: k("s_barrier")
    for i in range(7): k(f"s_add_u32 s76, s70, {i*8*3584}\nbuffer_load_dwordx4 {V(44+4*i,4)}, v15, {S(sW1,4)}, s76 offen", f"w{i}")
    k(f"v_lshlrev_b32 v6, 1, v0\nbuffer_load_ushort v81, v6, {S(sOUT,4)}, s74 offen", "b1")
    k("v_and_b32 v12, 1, v0\nv_lshlrev_b32 v12, 4, v12\nv_mov_b32 v13, 0xbf80\nv_lshlrev_b32 v13, v12, v13\nv_bfe_u32 v12, v0, 1, 2")
    for e in range(4): k(f"v_cmp_eq_u32 vcc, {e}, v12\nv_cndmask_b32 v{72+e}, 0, v13, vcc")
    k(f"v_lshrrev_b32 v82, 5, v0\nv_lshl_add_u32 v82, s3, 1, v82\nv_lshlrev_b32 v82, 8, v82\nv_bfe_u32 v13, v0, 4, 1\nv_lshl_add_u32 v82, v13, 7, v82\nv_lshl_add_u32 v82, v2, 2, v82\nv_add_u32 v82, 1024, v82")
    k("v_mov_b32 v12, 0\nv_mov_b32 v13, 0\ns_mov_b32 s68, 0x3f803f80")
    if not cfg.hxfirst:
        for i in range(7): k(f"buffer_load_dwordx4 {V(16+4*i,4)}, v3, {S(sX,4)}, s65 offen offset:{128*i}", f"x{i}")
    hclr = f"buffer_load_dword v83, off, {S(sAUX,4)}, 0 sc1"
    k(hclr, "clr")
    if int(cfg.prof) == 8:
        stamp(k, cfg, 1, 8)
        for i, t in enumerate(("x0", "x3", "x6", "w0", "w3", "w6")):
            sv = list(k.vm); k.wait(vm=t); k.vm = sv; stamp(k, cfg, 2 + i, 8)
    if cfg.hearly:
        k(f"s_lshr_b32 s71, s{sHB}, 4\ns_mul_i32 s71, s71, {512*896}\ns_lshl3_add_u32 s72, s{sHB}, s3\ns_mul_i32 s72, s72, {3*896}\ns_add_u32 s71, s71, s72")
        k(f"v_min_u32 v84, 20, v0\nv_lshlrev_b32 v84, 7, v84\nbuffer_load_dword v84, v84, {S(sW2,4)}, s71 offen", "pf0")
    for i in range(7):
        k.wait(vm=f"x{i}")
        for e in range(4): k(f"v_dot2c_f32_bf16 v12, s68, v{16+4*i+e}\nv_dot2c_f32_bf16 v13, v{16+4*i+e}, v{16+4*i+e}")
    stamp(k, cfg, 6)
    for m in ("quad_perm:[1,0,3,2]", "quad_perm:[2,3,0,1]", "row_half_mirror"):
        for r in (12, 13): k(f"v_add_f32_dpp v{r}, v{r}, v{r} {m} row_mask:0xf bank_mask:0xf")
    k(f"v_mul_f32 v12, {fbits(1/448)}, v12\nv_mul_f32 v13, {fbits(1/448)}, v13\nv_fma_f32 v13, -v12, v12, v13\nv_max_f32 v13, 0, v13")
    k(f"v_cvt_pk_bf16_f32 v13, v13, v13\nv_and_b32 v13, 0xffff0000, v13\nv_add_f32 v13, {fbits(1e-5)}, v13\nv_cvt_pk_bf16_f32 v13, v13, v13\nv_and_b32 v13, 0xffff0000, v13")
    k(f"v_sqrt_f32 v13, v13\nv_lshl_add_u32 v14, s3, 3, v1\nv_lshlrev_b32 v14, 2, v14\nv_cvt_pk_bf16_f32 v12, v12, v13")
    k("ds_write_b32 v14, v12")
    for j in range(7):
        k.wait(vm=f"w{j}")
        k(f"v_mfma_f32_16x16x32_bf16 v[76:79], {V(44+4*j,4)}, v[72:75], {'0' if j == 0 else 'v[76:79]'}")
    k("ds_write2_b32 v82, v76, v77 offset0:0 offset1:8\nds_write2_b32 v82, v78, v79 offset0:16 offset1:24")
    stamp(k, cfg, 7)
    v_poll(k, hclr, 83, 4, 73, 2, first=False, tag="clr")
    stamp(k, cfg, 8)
    k.wait(lg="*")
    k("s_barrier")
    stamp(k, cfg, 1)
    l2 = k.lab("h2"); l3 = k.lab("h3")
    k(f"s_cmp_lg_u32 s3, 0\ns_cbranch_scc1 {l2}")
    k("s_mov_b64 exec, 0xffff\nds_read_b128 v[8:11], v4")
    k.wait(lg="*")
    k(f"buffer_store_dwordx4 v[8:11], v5, {S(sWS,4)}, s67 offen sc1\ns_mov_b64 exec, -1")
    k(f"{l2}:")
    k(f"s_cmp_lg_u32 s3, 1\ns_cbranch_scc1 {l3}")
    k("v_lshlrev_b32 v12, 2, v0")
    for j in range(8): k(f"ds_read2st64_b32 {V(16+2*j,2)}, v12 offset0:{4+2*j} offset1:{5+2*j}")
    k.wait(lg="*")
    for st_ in (1, 2, 4, 8):
        for j in range(0, 16, 2*st_): k(f"v_add_f32 v{16+j}, v{16+j}, v{16+j+st_}")
    k(f"v_cvt_pk_bf16_f32 v12, v16, v16\nv_and_b32 v12, 0xffff0000, v12\nv_sub_f32 v12, v16, v12\nv_cvt_pk_bf16_f32 v80, v16, v12\nv_or_b32 v81, 0x10000, v81\nv_lshlrev_b32 v12, 3, v0")
    k(f"buffer_store_dwordx2 v[80:81], v12, {S(sWS,4)}, s69 offen sc1")
    k(f"{l3}:")
    k("s_barrier")
    stamp(k, cfg, 2)
    k(f"v_lshlrev_b32 v14, 7, v0\ns_mul_i32 s76, s{sJ}, 401408\ns_mul_i32 s77, s{sXCD}, 49\ns_lshr_b32 s77, s77, 3\ns_add_u32 s77, s77, s3")
    for i in range(cfg.w2pf):
        k(f"s_sub_u32 s71, s77, 49\ns_cmp_ge_u32 s77, 49\ns_cselect_b32 s77, s71, s77\ns_lshl_b32 s71, s77, 13\ns_add_u32 s71, s71, s76\ns_add_u32 s77, s77, 8")
        k(f"buffer_load_dword v{90+i}, v14, {S(sW2,4)}, s71 offen", "pf")
    if cfg.actpf:
        k(f"s_lshl1_add_u32 s71, s{sIH}, 0\ns_and_b32 s72, s{sXCD}, 1\ns_add_u32 s71, s71, s72\ns_lshr_b32 s72, s3, 1\ns_lshl2_add_u32 s74, s71, s72\ns_lshl_b32 s74, s74, 9\ns_add_u32 s74, s74, {ACNT}")
        k(f"s_add_u32 s48, s{pWS}, s74\ns_addc_u32 s49, s{pWS+1}, 0")
        k(f"s_and_b32 s74, s72, 1\ns_mul_i32 s74, s74, 7\ns_and_b32 s75, s3, 1\ns_add_u32 s74, s74, s75\ns_lshr_b32 s72, s72, 1\ns_lshl1_add_u32 s74, s74, s72\ns_lshl_b32 s74, s74, 13")
        k(f"s_mul_i32 s76, s71, 229376\ns_add_u32 s76, s76, s74\ns_add_u32 s76, s76, {ACT + cfg.apf0*16384}\ns_mov_b32 s73, 0\ns_sleep {cfg.apfwait}")
        l = k.lab("hp"); o = k.lab("hpo")
        k(f"{l}:\ns_sleep {cfg.actpf}")
        for i in range(4): k(f"s_load_dword s{52+i}, s[48:49], {128*i} glc")
        k(f"s_add_u32 s73, s73, 1\ns_waitcnt lgkmcnt(0)\ns_cmp_gt_u32 s73, {SPIN}\ns_cbranch_scc1 L_end\ns_add_u32 s52, s52, s53\ns_add_u32 s54, s54, s55\ns_add_u32 s52, s52, s54\ns_cmp_lt_u32 s52, 7\ns_cbranch_scc1 {l}")
        for i in range((7 - cfg.apf0)//2): k(f"buffer_load_dword v{100+i}, v14, {S(sWS,4)}, s76 offen sc1\ns_add_u32 s76, s76, 32768")
    k("s_waitcnt vmcnt(0)")
    stamp(k, cfg, 3)
    prof_dump(k, cfg, role="H")
    k("L_end:")
    k("s_endpgm")

DOC = """;
"""
HEADER = open("recurrent_scan__ssm_conv_s4__dense_activation_mish__prompt.s.ref").read().split("; Override launch")[0] if __name__ == "__main__" else ""
def table(cfg):
    def bf(l):
        u = struct.unpack("<I", struct.pack("<f", float(l)))[0]
        return (u + 0x7fff + ((u >> 16) & 1)) >> 16
    ci = lambda l: -1 if l < 0 else l if l < 128 else bf(l) - 0x4300 + 128
    off = lambda c: (c + (c >> 5))*4 + 16
    rows = []; both = []
    ca = lambda l, hh: (3 - (l & 3))*4160 - 8*((l >> 2) & 3) + 16*(l >> 4) + 24 + 256 - 256*hh*RS[0]
    cb = lambda l, hh: 32*(l & 15) + 16*(l >> 4) + 256*RS[0]*(1 - hh)
    far = lambda var, m: -1 if m < 0 else 129 + var + 2*m + 384
    near = lambda lag: ci(lag) if lag <= 1028 else -1
    jobs = [([far(e >> 2, 63 - (4*n + sg + (e & 3))) for e in range(8)], sg*320 + n*16) for sg in range(4) for n in range(19)]
    jobs += [([near(2047 - p0 - e - sg) for e in range(8)], sg*4160 + 2*p0) for sg in range(4) for p0 in (992, 1000, 1008, 1016, 2048, 2056)]
    jobs += [jobs[-1]]*(128 - len(jobs))
    for hh in (0, 1):
        e = []
        for l in range(64):
            v = 64*hh + l; a = 255 + 384 - v
            t = [off(ci(1023 - 8*v - i)) for i in range(11)]
            if cfg.stair:
                t += [off(c) for c in jobs[v][0]] + [jobs[v][1] + 256, ca(l, hh)]
                t += [(3 - (l & 3))*320 + (3 - ((l >> 2) & 3) + (l >> 4))*16 + 256, cb(l, hh), cb(l, hh) + 768*(1 - hh)]
            else: t += [off(a), off(a+1), off(a - (v == 127)), ca(l, hh), cb(l, hh)]
            e.append(t)
        both.append(e)
    for part in range(len(e[0])//8):
        for e in both: rows += [t[8*part:8*part+8] for t in e]
    if cfg.stair:
        for w in (3, 4): rows += [[0x3f80 if abs(8*(l >> 4) + e - (l & 15) - 8) <= w else 0 for e in range(8)] for l in range(64)]
    assert L_U == 0 and all(0 <= x < 65536 for r in rows for x in r)
    return f".p2align 7\n.type L_tab,@object\n.size L_tab, {16*len(rows)}\nL_tab:\n" + "".join(".short " + ", ".join(map(str, r)) + "\n" for r in rows)

def build(cfg, header=""):
    ORD[:] = cfg.ord; LOC[:] = [LOCT[ORD.index(b)] for b in range(7)]; assert ORD[6] == 6
    assert not cfg.tab or (cfg.mbar and cfg.split == 'r' and not cfg.c1g and cfg.c1mid < 2)
    STAIR[0] = cfg.stair; assert not cfg.stair or (cfg.tab and cfg.xover and not cfg.four)
    FOUR[0] = cfg.four; assert not cfg.four or (cfg.tab and not cfg.nearly)
    G16[0] = cfg.g16; GSP[:] = cfg.gsplit; assert 6 in cfg.early and (0 in cfg.early or cfg.tab)
    k = K(); RS[0] = int(cfg.split == 'r')
    front(k, cfg); vm0 = list(k.vm); gen_G(k, cfg); gen_S(k, cfg, vm0); gen_helper(k, cfg)
    if cfg.dmod:
        for i in k.ins:
            if i.kind == "vm" and i.lds and "sc1" not in i.text: i.text = i.text.replace(" lds", f" {cfg.dmod} lds")
    return file_wrap([(KNAME, 256, 512, L_TOT)], [kernel_wrap(KNAME, k.text() + (table(cfg) if cfg.tab else ''), 256).replace(".text\n", f".text\n; never executed: places the entry point at the start of a 4 KB page\n.p2align 12\n.fill {cfg.lead//4}, 4, 0xbf800000\n" if cfg.lead is not None else ".text\n", 1).replace('denorm_mode_32 3', f'denorm_mode_32 {cfg.denorm}')], header), k

if __name__ == "__main__":
    cfg = Cfg()
    for a in sys.argv[2:]:
        n, v = a.split("=", 1); setattr(cfg, n, eval(v))
    txt, k = build(cfg, HEADER + DOC)
    open(sys.argv[1], "w").write(txt)
    print("instructions", len(k.ins), "padded states", k.padded, "intervals (bar, side instr, transfers left, units after last)", k.info)
```
